```python
import torch

def _softmax(x, axis=-1):
    return torch.softmax(x, dim=axis)

def _gelu(x):
    return torch.nn.functional.gelu(x, approximate='tanh')

def _silu(x):
    return torch.nn.functional.silu(x)

def _sigmoid(x):
    return torch.sigmoid(x)

def _layernorm(x, axis=-1, eps=1e-05):
    m = x.mean(dim=axis, keepdim=True)
    v = x.var(dim=axis, keepdim=True, unbiased=False)
    return (x - m) / torch.sqrt(v + eps)

def _scatter_add(tgt, idx, src, axis=0):
    return tgt.clone().index_add_(axis, idx, src)

def _segment_sum(src, seg, n):
    out = torch.zeros((n,) + src.shape[1:], dtype=src.dtype)
    return out.index_add_(0, seg, src)

def _pad(x, pw):
    flat = tuple((v for pair in reversed(pw) for v in pair))
    return torch.nn.functional.pad(x, flat)
kernel_name = 'concat_heads__ssm_conv_s4d__memory_aug_recurrent_mem_tr__prompt'

def setup_inputs():

    _w = lambda a: (lambda t: t.to(torch.bfloat16) if t.is_floating_point() else t)(torch.as_tensor(a))

    def _A_setup():
        Bsz, L, D, N = (1, 2048, 448, 256)
        return {'u': _w((lambda *s: torch.randn(*s, dtype=torch.bfloat16) * 0.05)(Bsz, L, D)), 'log_A_real': _w((lambda *s: torch.randn(*s, dtype=torch.bfloat16) * 6.4)(D, N) * 0.5), 'A_imag': _w((lambda *s: torch.randn(*s, dtype=torch.bfloat16) * 0.05)(D, N) * 3.14), 'C_real': _w((lambda *s: torch.randn(*s, dtype=torch.bfloat16) * 0.2)(D, N) / N ** 0.5), 'C_imag': _w((lambda *s: torch.randn(*s, dtype=torch.bfloat16) * 0.2)(D, N) / N ** 0.5), 'log_dt': _w((lambda *s: torch.randn(*s, dtype=torch.bfloat16) * 0.05)(D) * 0.5 - 4.0), 'D_skip': _w((lambda *s: torch.randn(*s, dtype=torch.bfloat16) * 0.05)(D))}
    _A_in = _A_setup()

    def _B_setup():
        B, S, Dm = (1, 2048, 448)
        H, Dh = (16, 256)
        M, seg = (8, 32)
        seg = min(seg, S)
        S = S // seg * seg
        return {'x': _w((lambda *s: torch.randn(*s, dtype=torch.bfloat16) * 0.05)(B, S, Dm)), 'mem0': _w((lambda *s: torch.randn(*s, dtype=torch.bfloat16) * 0.4)(B, M, Dm)), 'Wq': _w((lambda *s: torch.randn(*s, dtype=torch.bfloat16) * 6.4)(Dm, H, Dh) * Dm ** (-0.5)), 'Wk': _w((lambda *s: torch.randn(*s, dtype=torch.bfloat16) * 6.4)(Dm, H, Dh) * Dm ** (-0.5)), 'Wv': _w((lambda *s: torch.randn(*s, dtype=torch.bfloat16) * 0.4)(Dm, H, Dh) * Dm ** (-0.5)), 'Wo': _w((lambda *s: torch.randn(*s, dtype=torch.bfloat16) * 0.4)(H, Dh, Dm) * (H * Dh) ** (-0.5)), 'seg_len': seg}
    _B_in = _B_setup()
    return {'A_u': _A_in['u'], 'A_log_A_real': _A_in['log_A_real'], 'A_A_imag': _A_in['A_imag'], 'A_C_real': _A_in['C_real'], 'A_C_imag': _A_in['C_imag'], 'A_log_dt': _A_in['log_dt'], 'A_D_skip': _A_in['D_skip'], 'B_x': _B_in['x'], 'B_mem0': _B_in['mem0'], 'B_Wq': _B_in['Wq'], 'B_Wk': _B_in['Wk'], 'B_Wv': _B_in['Wv'], 'B_Wo': _B_in['Wo'], 'B_seg_len': _B_in['seg_len']}

def reference(A_u, A_log_A_real, A_A_imag, A_C_real, A_C_imag, A_log_dt, A_D_skip, B_x, B_mem0, B_Wq, B_Wk, B_Wv, B_Wo, B_seg_len):

    def _A_ref(u, log_A_real, A_imag, C_real, C_imag, log_dt, D_skip):
        L = u.shape[1]
        dt = torch.exp(log_dt)
        A = -torch.exp(log_A_real) + 1j * A_imag
        C = (C_real + 1j * C_imag) * dt[:, None]
        pos = (lambda x, dt: x.to(dt))(torch.arange(L), log_dt.dtype)
        P = torch.exp((A * dt[:, None])[:, :, None] * pos[None, None, :])
        K = 2.0 * torch.einsum('dn,dnl->dl', C, P).real
        L2 = 2 * L
        u_t = (lambda x, *d: x.permute(*d))(u, 0, 2, 1)
        Kf = (lambda x, *a, **k: torch.fft.rfft(x.float(), *a, **k))(K, L2)
        Uf = (lambda x, *a, **k: torch.fft.rfft(x.float(), *a, **k))(u_t, L2)
        y = (lambda x, *a, **k: torch.fft.irfft(x, *a, **k).to(torch.bfloat16))(Uf * Kf[None, :, :], L2)[:, :, :L]
        y = (lambda x, *d: x.permute(*d))(y, 0, 2, 1)
        return y + u * D_skip[None, None, :]

    def _B_ref(x, mem0, Wq, Wk, Wv, Wo, seg_len):
        B, S, Dm = x.shape
        H, Dh = (Wq.shape[1], Wq.shape[2])
        M = mem0.shape[1]
        scale = Dh ** (-0.5)
        n_seg = S // seg_len
        L = M + seg_len
        idx = torch.arange(L)
        mask = (idx[:, None] < M) | (idx[:, None] >= idx[None, :])
        mem = mem0
        outs = []
        for s in range(n_seg):
            xs = x[:, s * seg_len:(s + 1) * seg_len, :].clone()
            h = torch.concatenate([mem, xs], axis=1)
            q = torch.einsum('btd,dhe->bhte', h, Wq)
            k = torch.einsum('btd,dhe->bhte', h, Wk)
            v = torch.einsum('btd,dhe->bhte', h, Wv)
            scores = torch.einsum('bhqe,bhke->bhqk', q, k) * scale
            scores = torch.where(mask[None, None], scores, -1000000000.0)
            p = _softmax(scores, axis=-1)
            o = torch.einsum('bhqk,bhke->bhqe', p, v)
            o = torch.einsum('bhte,hed->btd', o, Wo)
            mem = o[:, :M, :].clone()
            outs.append(o[:, M:, :])
        return torch.concatenate(outs, axis=1)
    a = _A_ref(A_u, A_log_A_real, A_A_imag, A_C_real, A_C_imag, A_log_dt, A_D_skip)
    b = _B_ref(B_x, B_mem0, B_Wq, B_Wk, B_Wv, B_Wo, B_seg_len)
    return torch.concatenate([a, b], axis=-1)
```

```python
import re
_REG = re.compile(r'^(-?)(?:abs\()?([vas])(?:(\d+)|\[(\d+):(\d+)\])\)?$')
TRANS = ('v_exp_f32','v_log_f32','v_rcp_f32','v_rsq_f32','v_sqrt_f32','v_sin_f32','v_cos_f32','v_rcp_iflag_f32')
def regs_of(op):
    op = op.strip()
    if op == 'vcc': return {('s', 106), ('s', 107)}
    if op == 'vcc_lo': return {('s', 106)}
    if op == 'vcc_hi': return {('s', 107)}
    if op == 'exec': return {('s', 126), ('s', 127)}
    if op == 'm0': return {('s', 124)}
    m = _REG.match(op)
    if not m: return set()
    k = m.group(2)
    if m.group(3) is not None: return {(k, int(m.group(3)))}
    return {(k, i) for i in range(int(m.group(4)), int(m.group(5)) + 1)}
def split_ops(s):
    ops, depth, cur = [], 0, ''
    for ch in s:
        if ch in '[(': depth += 1
        if ch in '])': depth -= 1
        if ch == ',' and depth == 0:
            ops.append(cur.strip()); cur = ''
        else: cur += ch
    if cur.strip(): ops.append(cur.strip())
    return ops
def mfma_passes(mn):
    if '16x16x4_f32' in mn: return 8
    if '32x32x2_f32' in mn: return 16
    if '32x32' in mn: return 8
    if '16x16' in mn: return 4
    if '4x4' in mn: return 2
    raise ValueError(mn)
class Ins:
    __slots__ = ('mn','kind','w','r','rA','rC','passes','ws','dpp','sgemm','storedata')
class Asm:
    def __init__(self):
        self.lines = []; self.hist = []; self.nlabel = 0; self.count = 0
    def raw(self, s): self.lines.append(s)
    def comment(self, s): self.lines.append('  ; ' + s)
    def label(self, l):
        self.lines.append(l + ':')
    def newlabel(self, p='L'):
        self.nlabel += 1; return f'{p}_{self.nlabel}'
    def flush(self, n=None):
        need = 0; dist = 0
        for p in reversed(self.hist):
            if p.kind == 'mfma': need = max(need, self._xdl(p) - dist)
            elif p.kind in ('valu',): need = max(need, 5 - dist if any(k == 's' for k, _ in p.w) else 2 - dist)
            dist += p.ws
            if dist > 24: break
        self.nop(need)
    def nop(self, n):
        while n > 0:
            k = min(n, 16)
            self.lines.append(f'  s_nop {k-1}'); self.count += 1
            i = Ins(); i.mn = 's_nop'; i.kind = 'salu'; i.w = set(); i.r = set(); i.rA = set(); i.rC = set(); i.passes = 0; i.ws = k; i.dpp = False; i.sgemm = False; i.storedata = set()
            self.hist.append(i); n -= k
    @staticmethod
    def _xdl(p):
        if p.sgemm: return {2: 4, 4: 6, 8: 10, 16: 18}[p.passes]
        return {2: 5, 4: 8, 8: 12, 16: 20}[p.passes]
    def parse(self, s):
        s = s.split(';')[0].strip()
        parts = s.split(None, 1)
        mn = parts[0]; rest = parts[1] if len(parts) > 1 else ''
        i = Ins(); i.mn = mn; i.w = set(); i.r = set(); i.rA = set(); i.rC = set(); i.passes = 0; i.ws = 1; i.sgemm = False; i.storedata = set()
        i.dpp = ('_dpp' in mn) or ('quad_perm' in rest) or ('row_' in rest)
        ops = split_ops(rest)
        if ops:
            last = ops[-1].split()
            ops[-1] = last[0] if last else ''
            mods = ' '.join(last[1:])
        else: mods = ''
        R = [regs_of(o) for o in ops]
        if mn.startswith('v_mfma') or mn.startswith('v_smfmac'):
            i.kind = 'mfma'; i.passes = mfma_passes(mn); i.sgemm = mn.endswith('_f32') and ('x4_f32' in mn or 'x2_f32' in mn or 'x1_' in mn)
            i.w = R[0]
            if mn.startswith('v_smfmac'):
                i.rA = R[1] | R[2] | R[3]; i.rC = R[0]
            else:
                i.rA = R[1] | R[2]; i.rC = R[3]
            i.r = i.rA | i.rC
        elif mn.startswith('v_'):
            i.kind = 'valu'
            if mn.startswith('v_cmp'):
                i.w = R[0]; i.r = set().union(*R[1:])
            elif mn.startswith('v_permlane') and 'swap' in mn:
                i.w = R[0] | R[1]; i.r = R[0] | R[1]
            elif mn.startswith(('v_add_co','v_sub_co','v_addc_co','v_subb_co','v_mad_u64','v_div_scale')):
                i.w = R[0] | R[1]; i.r = set().union(*R[2:])
            else:
                i.w = R[0]; i.r = set().union(*R[1:]) if len(R) > 1 else set()
                if mn.startswith(('v_fmac','v_pk_fmac','v_dot2c','v_writelane')) or i.dpp: i.r |= R[0]
                if mn.startswith('v_cndmask') and len(ops) == 3: i.r |= regs_of('vcc')
        elif mn.startswith(('buffer_','global_','flat_')):
            i.kind = 'vmem'
            if mn.startswith(('buffer_inv','buffer_wbl2')): pass
            elif 'load' in mn and ('lds' in mods.split() or 'load_lds' in mn):
                i.r = set().union(*R) | regs_of('m0'); i.kind = 'vmem_lds'
            elif 'load' in mn:
                i.w = R[0]; i.r = set().union(*R[1:])
            elif 'atomic' in mn:
                i.r = set().union(*R)
                if 'sc0' in mods.split(): i.w = R[0] if mn.startswith('buffer') else R[0]
            else:
                i.r = set().union(*R)
                if 'x4' in mn or 'x3' in mn: i.storedata = R[0] if mn.startswith('buffer') else R[1]
        elif mn.startswith('ds_'):
            i.kind = 'ds'
            if 'read' in mn or 'permute' in mn or 'swizzle' in mn or '_rtn' in mn:
                i.w = R[0]; i.r = set().union(*R[1:])
            else: i.r = set().union(*R)
        else:
            i.kind = 'salu'
            if mn.startswith(('s_cmp','s_cbranch','s_branch','s_waitcnt','s_barrier','s_nop','s_sleep','s_setprio','s_endpgm','s_bitcmp')):
                i.r = set().union(*R) if R else set()
                if mn == 's_nop': i.ws = int(ops[0], 0) + 1
            else:
                i.w = R[0] if R else set(); i.r = set().union(*R[1:]) if len(R) > 1 else set()
                if 'saveexec' in mn: i.w |= regs_of('exec')
        return i
    def need(self, c):
        need = 0
        H = self.hist[-30:]
        n = len(H)
        for pi in range(n - 1, -1, -1):
            p = H[pi]
            req = self.req(p, c)
            if req <= 0: continue
            d = 0; lastm = (0, p.passes) if p.kind == 'mfma' else None
            prev = p
            for q in H[pi + 1:] + [c]:
                d = d + prev.ws
                if q.kind == 'mfma' and lastm is not None:
                    d = max(d, lastm[0] + lastm[1] - 1)
                if q.kind == 'mfma': lastm = (d, q.passes)
                prev = q
            need = max(need, req - (d - 1))
        return need
    def req(self, p, c):
        req = 0
        if p.kind == 'mfma':
            x = self._xdl(p)
            if c.kind == 'mfma':
                if p.w & c.rA: req = max(req, x)
                if p.w & c.rC:
                    if p.w == c.rC and p.passes == c.passes and p.sgemm == c.sgemm: req = max(req, 2 if p.passes == 2 else 0)
                    else: req = max(req, {2: 4, 4: 6, 8: 10, 16: 18}[p.passes])
                elif p.w & c.w: req = max(req, x)
            else:
                if p.w & (c.r | c.w): req = max(req, x)
                if c.kind == 'valu' and (p.rC & c.w) and not p.sgemm: req = max(req, {2: 1, 4: 3, 8: 7, 16: 15}[p.passes])
        elif p.kind == 'valu':
            vw = {x for x in p.w if x[0] != 's'}; sw = {x for x in p.w if x[0] == 's'}
            if c.kind == 'mfma' and (vw & c.r): req = max(req, 2)
            if c.kind == 'valu':
                if c.dpp and (vw & c.r): req = max(req, 2)
                if c.mn.startswith('v_permlane') and (vw & c.r): req = max(req, 2)
                if c.mn.startswith(('v_readlane','v_readfirstlane')) and (vw & c.r): req = max(req, 1)
                if p.mn.replace('_e32','').replace('_e64','') in TRANS and (vw & c.r): req = max(req, 1)
                if sw & c.r:
                    req = max(req, 4 if c.mn.startswith(('v_readlane','v_writelane')) else 2)
            if c.kind.startswith('vmem') and (sw & c.r): req = max(req, 5)
            if p.mn.replace('_e32','').replace('_e64','') in TRANS and c.kind in ('vmem','ds','mfma') and (vw & c.r): req = max(req, 2 if c.kind == 'mfma' else 1)
        elif p.kind == 'vmem':
            if p.storedata & c.w: req = max(req, 2)
        elif p.kind == 'salu':
            if c.kind == 'vmem_lds' and (('s', 124) in p.w): req = max(req, 1)
        return req
    def __call__(self, s):
        for line in s.split('\n'):
            line = line.strip()
            if not line: continue
            if line.endswith(':'): self.label(line[:-1]); continue
            c = self.parse(line)
            n = self.need(c)
            if n > 0: self.nop(n)
            self.lines.append('  ' + line); self.count += 1
            self.hist.append(c)
            if len(self.hist) > 64: self.hist = self.hist[-40:]
    def text(self): return '\n'.join(self.lines) + '\n'
def vr(b, n=1, k='v'):
    return f'{k}{b}' if n == 1 else f'{k}[{b}:{b+n-1}]'
def ureg(idx, n):
    if idx >= 256: return vr(idx - 256, n, 'a')
    assert idx + n <= 256
    return vr(idx, n, 'v')
def kernel_header(name):
    return f'.globl {name}\n.p2align 8\n.type {name},@function\n{name}:'
def kernel_desc(name, vgpr=512, accum=256, sgpr=102):
    return f""".p2align 6
.amdhsa_kernel {name}
  .amdhsa_next_free_vgpr {vgpr}
  .amdhsa_next_free_sgpr {sgpr}
  .amdhsa_accum_offset {accum}
  .amdhsa_group_segment_fixed_size 0
  .amdhsa_kernarg_size 136
  .amdhsa_user_sgpr_count 2
  .amdhsa_user_sgpr_kernarg_segment_ptr 1
  .amdhsa_system_sgpr_workgroup_id_x 1
.end_amdhsa_kernel"""

def code_prefetch(a, start, end, maxbytes, vt=10, nthreads=256):
    lbl = a.newlabel('pf_' + start)
    a.raw(f'  s_getpc_b64 s[98:99]')
    a.raw(f'{lbl}:')
    a.raw(f'  s_sub_u32 s98, s98, {lbl}-{start}')
    a.raw(f'  s_subb_u32 s99, s99, 0')
    a(f'v_lshlrev_b32 v{vt}, 7, v0')
    for k in range((maxbytes + nthreads * 128 - 1) // (nthreads * 128)):
        a.raw(f'  v_min_u32 v{vt+1}, {end}-{start}-4, v{vt}')
        a(f'global_load_dword v{vt+2}, v{vt+1}, s[98:99]')
        a(f'v_add_u32 v{vt}, {nthreads*128}, v{vt}')
```

```python
from asmlib import *
from layout import *

SRD = 's[8:11]'; DBG = 's[12:15]'
SPIN_LIMIT = 400000
NSTEPS = 64
STAMPS = 0
STAMP_STEP = 42
STEPLOG = 0
STAMP_OFF = 100 * 1024 * 1024
NST = 10
POLL_DEPTH = 3
F1_DELAY = 30
F2_POS = 3
FILL_A = 16
FILL_B = 0
DIAG = 0
CODE_PF = 1
SYNC = 1
XCD_SEL = 0
HLP_EARLY = 1
P_MOV = 2
D = 'row_mask:0xf bank_mask:0xf'
XSEG_B = 28 * KB
FLG1 = EXCH_OFF + 2 * EXCH_B
FLG2 = FLG1 + 16 * 128
RING_B = 2 * EXCH_B + 48 * 128
SC_SLEEP = 6
X_EARLY = 0
R1 = 4
R2 = 4
VO_PRE = 16
VO_EVERY = 2
B1_POS = 4
TLB_WARM = 0
WARM = 0
PCHK = 1
NOX = 0
X_POS = 12
X_EVERY = 4
XFL = 'sc1'
TAIL = 2
SC_TOUCH = 0
TOUCH_AHEAD = 1
MG_LATE = 0
P_PRE = 10
F3_POS = 5
F2_DELAY = 8
P3_SLEEP = 3
H3_DELAY = 0
H2_DELAY = 0
X_LATE = 2

def stamp(a, k):
    if STAMPS: a(f's_memtime s[{40+2*k}:{41+2*k}]')
def stamp_flush(a, path, lbl, t):
    if not STAMPS: return
    a(f's_sub_u32 s22, s19, {STAMP_STEP}')
    a('s_cmp_gt_u32 s22, 1')
    a(f's_cbranch_scc1 {lbl}')
    a('s_waitcnt lgkmcnt(0)')
    a('s_lshl_b32 s22, s22, 14')
    a('s_lshl_b32 s63, s17, 9')
    a('s_add_u32 s22, s22, s63')
    a(f's_add_u32 s22, s22, {STAMP_OFF + path * 64}')
    a(f'v_mov_b32 v{t}, 0')
    for k in range(NST):
        a(f'v_mov_b32 v{t+1}, s{40+2*k}')
        a(f'buffer_store_dword v{t+1}, v{t}, {SRD}, s22 offen offset:{4*k}')
        a.nop(1)
    a.label(lbl)
def stamp_calib(a, P):
    if not STAMPS: return
    a('s_memrealtime s[64:65]')
    a('s_waitcnt lgkmcnt(0)')
    a('s_lshr_b32 s68, s64, 10')
    a.label(P)
    a('s_memrealtime s[64:65]')
    a('s_memtime s[66:67]')
    a('s_waitcnt lgkmcnt(0)')
    a('s_lshr_b32 s69, s64, 10')
    a('s_cmp_eq_u32 s68, s69')
    a(f's_cbranch_scc1 {P}')
    a('s_lshl_b32 s22, s17, 9')
    a('s_lshl_b32 s63, s89, 6')
    a('s_add_u32 s22, s22, s63')
    a(f's_add_u32 s22, s22, {STAMP_OFF}')
    a('v_mov_b32 v8, s64\nv_mov_b32 v9, s66\nv_mov_b32 v10, 0')
    a(f'buffer_store_dwordx2 v[8:9], v10, {SRD}, s22 offen offset:56')

EVLOG = 0
EV_OFF = 101 * 1024 * 1024
def evlog(a, tag):
    if not EVLOG: return
    a('s_memrealtime s[98:99]')
    a('s_waitcnt lgkmcnt(0)')
    a(f'v_mov_b32 v36, {tag}')
    a('v_mov_b32 v37, s98')
    a('s_mov_b64 exec, 1')
    a(f'buffer_store_dwordx2 v[36:37], off, {SRD}, s100')
    a('s_mov_b64 exec, -1')
    a('s_add_u32 s100, s100, 8')

def spin(a, back, abort):
    a('s_add_u32 s30, s30, 1')
    a(f's_cmp_lt_u32 s30, {SPIN_LIMIT}')
    a(f's_cbranch_scc1 {back}')
    a(f's_branch {abort}')

def flagpoll(a, vaddr, tag, regs, lbl, abort):
    Dp = POLL_DEPTH
    for i in range(Dp):
        a(f'buffer_load_dword v{regs+i}, v{vaddr}, {SRD}, 0 offen sc1')
    a.label(lbl + '_l')
    for i in range(Dp):
        a(f's_waitcnt vmcnt({Dp-1})')
        a(f'v_cmp_gt_u32 vcc, {tag}, v{regs+i}')
        a(f's_cbranch_vccz {lbl}_d')
        a(f'buffer_load_dword v{regs+i}, v{vaddr}, {SRD}, 0 offen sc1')
    spin(a, lbl + '_l', abort)
    a.label(lbl + '_d')

def load_units(a, units, base, tmp_s='s22', fl=''):
    cur = None; n = 0
    for off, reg in units:
        for hb in range(2):
            o = off + hb * 1024
            blk = o // 4096 * 4096
            if blk != cur:
                a(f's_add_u32 {tmp_s}, {base}, {blk}'); cur = blk
            a(f'buffer_load_dwordx4 {ureg(reg + 4 * hb, 4)}, v2, {SRD}, {tmp_s} offen offset:{o - blk} {fl}')
            n += 1
            if n % 32 == 0: a('s_waitcnt vmcnt(24)')

def wreg(ti, ks):
    u = ti * 7 + ks
    return 256 + 8 * u if u < 32 else 120 + 8 * (u - 32)

def lane_consts(a):
    a('v_and_b32 v1, 63, v0')
    a('v_lshlrev_b32 v2, 4, v1')
    a('v_lshrrev_b32 v116, 4, v1')
    a('v_and_b32 v117, 15, v1')
    a('v_mov_b32 v3, 0x4444')
    a('v_mov_b32 v118, 0xeeee')
    a('v_cmp_lt_u32 vcc, 7, v117')
    a('v_cndmask_b32 v3, v3, v118, vcc')

def next_step(a):
    a('s_mov_b32 s19, s18')
    a('s_add_u32 s18, s18, 1')
    a('s_mov_b32 s22, s20')
    a('s_mov_b32 s20, s21')
    a('s_mov_b32 s21, s22')
    a('s_add_u32 s23, s20, 4096')

def gap(a, ops):
    for o in ops:
        if not o.startswith('v_'): a(o)
    for o in ops:
        if o.startswith('v_'): a(o)

def poison_max(a, acc, regs):
    regs = list(regs)
    a(f'v_max3_u32 v{acc}, v{regs[0]}, v{regs[1]}, v{regs[2]}'); regs = regs[3:]
    while len(regs) >= 2:
        a(f'v_max3_u32 v{acc}, v{acc}, v{regs[0]}, v{regs[1]}'); regs = regs[2:]
    if regs: a(f'v_max_u32 v{acc}, v{acc}, v{regs[0]}')

def poison_max16(a, acc, regs):
    regs = list(regs)
    a(f'v_pk_max_u16 v{acc}, v{regs[0]}, v{regs[1]}')
    for r in regs[2:]: a(f'v_pk_max_u16 v{acc}, v{acc}, v{r}')
    a(f'v_lshlrev_b32 v{acc+1}, 16, v{acc}')
    a(f'v_max_u32 v{acc}, v{acc}, v{acc+1}')
    a(f'v_cmp_le_u32 vcc, 0xffff0000, v{acc}')

XP = 0
MP = 4 * KB
MJ = MP + 2304
XB = 8 * KB
def score_tiles(w):
    kb = 4 + (w >> 1); pP = w & 1
    return [(w, 0), (w, 1), (w, 2), (w, 3), (kb, 2 * pP), (kb, 2 * pP + 1), (6, 2 * (1 - pP) + (w >> 1))]
def score_mreg(w):
    kb = 4 + (w >> 1)
    m = {0: 8, 1: 12, 2: 16, 3: 20, 9 - kb: 24}
    if w & 1: m[kb] = 28; m[6] = 32
    else: m[6] = 28; m[kb] = 32
    return m

def gen_score(a, w, st, tag):
    L = lambda n: f'{tag}_sc{w}_{n}'
    ABORT = f'{tag}_abort'
    MR = score_mreg(w)
    ka = w; half6 = w >> 1
    AC = [36, 40, 44, 48, 52, 56, 60 + 2 * half6]
    TMP = 66; SX = 68; BOP2 = 76; XS = [80, 88, 96, 104]
    D0, D1, BOPA = [MR[k] for k in range(4) if k != ka]
    SACC = 52; W = 56
    pb, p6 = (0, 1) if w & 1 else (1, 0)
    def S(ti, ks):
        return f'v_smfmac_f32_16x16x64_bf16 v[{AC[ti]}:{AC[ti]+3}], v[{MR[ks]}:{MR[ks]+3}], {ureg(wreg(ti, ks), 8)}, v3'
    def cvt(dst, src):
        return [f'v_cvt_pk_bf16_f32 v{dst}, v{src}, v{src+1}', f'v_cvt_pk_bf16_f32 v{dst+1}, v{src+2}, v{src+3}']
    def cin(ti, hi):
        r = AC[ti]
        return cvt(r, r) if hi else cvt(r + 2, r)[::-1]
    def T(dst, src): return f'v_mfma_f32_16x16x32_bf16 v[{dst}:{dst+3}], v[{src}:{src+3}], v[4:7], 0'
    def xld(k):
        buf, hb = k >> 1, k & 1; r = XS[buf] + 4 * hb
        return f'buffer_load_dwordx4 v[{r}:{r+3}], v{117 if buf < 2 else 2}, {SRD}, {"s26" if buf & 1 else "s24"} offen offset:{hb*1024} {XFL}'
    a.xld = xld
    def Smm(m, b, first=False):
        c = '0' if first else f'v[{SACC}:{SACC+3}]'
        return f'v_mfma_f32_16x16x32_bf16 v[{SACC}:{SACC+3}], v[{m}:{m+3}], v[{b}:{b+3}], {c}'
    def Sx(tt, b, buf):
        return f'v_smfmac_f32_16x16x64_bf16 v[{SX+4*tt}:{SX+4*tt+3}], v[{b}:{b+3}], v[{XS[buf]}:{XS[buf]+7}], v3'
    ZR = list(range(36, 52)) + list(range(AC[6], AC[6] + 4)) + list(range(SX, SX + 8)) + list(range(52, 60))
    def zero(lo=0, hi=99):
        for r in ZR[lo:hi]: a(f'v_mov_b32 v{r}, 0')
    def mls(ks): return f'buffer_load_dwordx4 v[{MR[ks]}:{MR[ks]+3}], v2, {SRD}, {"s20" if ks < 4 else "s23"} offen offset:{(ks & 3) * 1024} sc1'
    def ml(ks): a(mls(ks))
    a.raw('.p2align 6')
    a.label(L('loop'))
    a('s_mov_b32 s30, 0')
    a('s_mov_b32 s62, 0')
    a('s_setprio 3')
    if w == 0:
        if SC_SLEEP: a(f's_sleep {SC_SLEEP}')
        flagpoll(a, 0, 's19', BOP2, L('fp'), ABORT)
        ml(0)
        a('s_barrier')
    else:
        a('s_barrier')
        ml(0)
    stamp(a, 0)
    for k in (1, 2, 3):
        a(f's_setprio {3-k}')
        ml(k)
    NZ = len(ZR) - (WARM if w != 2 else 0)
    zero(NZ)
    a.flush()
    a.label(L('go'))
    chk = lambda k: f'v_cmp_eq_u32 vcc, -1, v{MR[k]}'
    ex1 = lambda k: [chk(k)]
    ex3 = [f'v_max3_u32 v{TMP}, v24, v27, v28', f'v_max3_u32 v{TMP}, v{TMP}, v31, v32', f'v_max_u32 v{TMP}, v{TMP}, v35', f'v_cmp_eq_u32 vcc, -1, v{TMP}']
    a('s_waitcnt vmcnt(3)')
    stamp(a, 1)
    xpos = [-1] * X_LATE + [X_POS + X_EVERY * k for k in range(8 - X_LATE)]
    nx = 0
    for ks in range(4):
        for ti in range(7):
            a(S(ti, ks))
            if ks == 0:
                if ti in (0, 2, 5): ml(4 + ti // 2)
                if ti == 2: a(f's_cbranch_vccnz {L("r0")}')
            if ti == 4 and ks < 3: a(f's_waitcnt vmcnt({[4, 4, 3][ks] + nx})')
            if ks == 3 and ti == 1: a(f's_waitcnt vmcnt({nx})')
            if 7 * ks + ti in xpos and not NOX:
                assert 7 * ks + ti > 5
                a(xld(X_LATE + nx)); nx += 1
            if ks == 0 and ti == 0: a(chk(0))
            if ti == 4 and ks < 3: a(chk(ks + 1))
            if ks == 3 and 1 <= ti <= 4: a(ex3[ti - 1])
            if ti == 6:
                a(f's_cbranch_vccnz {L(f"r{ks+1}")}')
                a.label(L(f'c{ks+1}'))
    stamp(a, 2)
    seq = []
    for ti in (6, 4, 5, 0, 1, 2, 3):
        for ks in (4, 5, 6): seq.append([S(ti, ks), []])
    def side(i, ops): seq[i][1] += ops
    def spread(i, ops):
        for k, o in enumerate(ops): side(i + k, [o])
    spread(5, cin(6, half6))
    seq.insert(8, [T(D0, 62 - 2 * half6), []])
    spread(8, cin(4, 0))
    spread(10, cvt(BOP2 + 2 * p6, D0))
    spread(12, cin(5, 1))
    seq.insert(15, [T(D1, 54), []])
    spread(15, cin(0, 0))
    spread(17, cvt(BOP2 + 2 * pb, D1))
    spread(19, cin(1, 1))
    c2 = cin(2, 0); c3 = cin(3, 1)
    for k in range(X_LATE + nx, 8):
        if not NOX: side(xpos[k] - 28, [xld(k)])
    side(22, ['s_waitcnt vmcnt(4)'] + c2[:1])
    seq.append([Sx(0, BOP2, 0), c2[1:]])
    seq.append([T(D0, 38), c3])
    seq.append([T(D1, 46), []])
    seq.append([Sx(1, BOP2, 1), cvt(BOPA, D0)[:1]])
    seq.append([Smm(30, BOP2, True), ['s_waitcnt vmcnt(0)'] + cvt(BOPA, D0)[1:] + cvt(BOPA + 2, D1)])
    wm = f'ds_write_b128 v113, v[{SACC}:{SACC+3}]'
    def foldx(t):
        b = SX + 4 * t
        a(f'v_permlane32_swap_b32 v{b}, v{b+2}')
        a(f'v_permlane32_swap_b32 v{b+1}, v{b+3}')
        a(f'v_add_f32 v{W+t}, v{b}, v{b+2}')
        a(f'v_add_f32 v{W+2+t}, v{b+1}, v{b+3}')
    last3 = [Sx(0, BOPA, 2), Sx(1, BOPA, 3), Smm(MR[ka], BOPA)]
    for k in [(2, 0, 1), (0, 1, 2), (0, 2, 1), (0, 1, 2)][TAIL]: seq.append([last3[k], []])
    for m, ops in seq:
        a(m)
        gap(a, ops)
    nz = 0
    if TAIL == 0:
        a(wm); foldx(0); foldx(1)
    elif TAIL == 1:
        foldx(0); foldx(1); a(wm)
    else:
        foldx(0); a(wm); foldx(1)
    a(f'ds_write_b128 v2, v[{W}:{W+3}] offset:{XP + w*1024}')
    a(f'v_cmp_u_f32 vcc, v{W+1}, v{W+3}')
    stamp(a, 3)
    zero(nz, nz + 4)
    a(f's_cbranch_vccnz {L("retry")}')
    a.label(L('cont'))
    a(f's_add_u32 s24, s24, {XSEG_B}')
    a(f's_add_u32 s26, s26, {XSEG_B}')
    for k in range(X_LATE): a(xld(k))
    zero(nz + 4, nz + FILL_A); nz += FILL_A
    a('s_waitcnt lgkmcnt(0)')
    a('s_barrier')
    stamp(a, 4)
    if w < 2:
        t = 8
        for k in range(4): a(f'ds_read_b64 v[{t+2*k}:{t+2*k+1}], v114 offset:{k*1024}')
        a(f'ds_read2_b32 v[{t+8}:{t+9}], v115 offset0:0 offset1:64')
        a(f'ds_read2_b32 v[{t+10}:{t+11}], v115 offset0:128 offset1:192')
        zero(nz, nz + FILL_B); nz += FILL_B
        a('s_waitcnt lgkmcnt(0)')
        stamp(a, 5)
        X = t; Y = t + 4; Mm = t + 8; m = t + 12; mx = t + 14; l = t + 16
        a(f'v_pk_add_f32 v[{Mm}:{Mm+1}], v[{Mm}:{Mm+1}], v[{Mm+2}:{Mm+3}]')
        a(f'v_pk_add_f32 v[{X}:{X+1}], v[{X}:{X+1}], v[{X+2}:{X+3}]')
        a(f'v_pk_add_f32 v[{Y}:{Y+1}], v[{Y}:{Y+1}], v[{Y+2}:{Y+3}]')
        a(f'v_add_f32 v{m}, v{Mm}, v{Mm+1}')
        a(f'v_pk_add_f32 v[{X}:{X+1}], v[{X}:{X+1}], v[{Y}:{Y+1}]')
        a(f'v_max_f32 v{mx}, v{X}, v{X+1}')
        a(f'v_add_f32_dpp v{m}, v{m}, v{m} row_ror:8 {D}')
        a(f'v_max_f32_dpp v{mx}, v{mx}, v{mx} row_ror:8 {D}')
        a(f'v_max_f32 v{mx}, v{mx}, v{m}')
        a(f'v_max_f32_dpp v{mx}, v{mx}, v{mx} quad_perm:[1,0,3,2] {D}')
        a(f'v_max_f32_dpp v{mx}, v{mx}, v{mx} quad_perm:[2,3,0,1] {D}')
        a(f'v_max_f32_dpp v{mx}, v{mx}, v{mx} row_half_mirror {D}')
        a(f'v_pk_add_f32 v[{X}:{X+1}], v[{X}:{X+1}], v[{mx}:{mx+1}] op_sel_hi:[1,0] neg_lo:[0,1] neg_hi:[0,1]')
        a(f'v_sub_f32 v{m}, v{m}, v{mx}')
        a(f'v_exp_f32 v{X}, v{X}')
        a(f'v_exp_f32 v{X+1}, v{X+1}')
        a(f'v_exp_f32 v{m}, v{m}')
        a(f'v_add_f32 v{l}, v{X}, v{X+1}')
        a(f'v_fmac_f32 v{l}, 0.5, v{m}')
        a(f'v_mov_b32_dpp v{m+1}, v{m} quad_perm:[1,0,3,2] {D}')
        a(f'v_add_f32_dpp v{l}, v{l}, v{l} quad_perm:[1,0,3,2] {D}')
        a(f'v_add_f32_dpp v{l}, v{l}, v{l} quad_perm:[2,3,0,1] {D}')
        a(f'v_add_f32_dpp v{l}, v{l}, v{l} row_half_mirror {D}')
        a(f'v_add_f32_dpp v{l}, v{l}, v{l} row_ror:8 {D}')
        a(f'v_rcp_f32 v{l}, v{l}')
        a(f'v_pk_mul_f32 v[{X}:{X+1}], v[{X}:{X+1}], v[{l}:{l+1}] op_sel_hi:[1,0]')
        a(f'v_pk_mul_f32 v[{m}:{m+1}], v[{m}:{m+1}], v[{l}:{l+1}] op_sel_hi:[1,0]')
        a(f'v_cvt_pk_bf16_f32 v{X}, v{X}, v{X+1}')
        a(f'v_cvt_pk_bf16_f32 v{m}, v{m}, v{m+1}')
        a(f'v_min_u32 v{X}, -2, v{X}')
        a(f'buffer_store_dword v{X}, v1, {SRD}, s20 offen {st}')
        a(f'v_min_u32 v{m}, -2, v{m}')
        a(f'buffer_store_dword v{m}, v118, {SRD}, s20 offen {st}')
        stamp(a, 6)
        if SC_TOUCH: a('s_barrier')
        a(f'buffer_store_dword v119, v1, {SRD}, s21 offen {st}')
        a(f'buffer_store_dword v119, v118, {SRD}, s21 offen {st}')
    else:
        if w == 2:
            zero(nz, nz + F1_DELAY)
            for k in range(max(0, nz + F1_DELAY - len(ZR))): a(f'v_mov_b32 v{TMP}, 0')
            nz += F1_DELAY
            a(f'buffer_store_dword v119, v1, {SRD}, 0 offen {st}')
            stamp(a, 5)
        zero(nz, NZ); nz = NZ
        if SC_TOUCH:
            a('s_barrier')
            a(f'buffer_load_dword v{TMP+1}, v116, {SRD}, s35 offen sc1')
            a(f's_add_u32 s35, s35, {GSH_B}')
    zero(nz, NZ)
    stamp_flush(a, w, L('sf'), BOP2)
    if STEPLOG and w == 1:
        a('s_memtime s[40:41]')
        a('s_lshl_b32 s22, s17, 8')
        a('s_lshl_b32 s42, s19, 2')
        a('s_add_u32 s22, s22, s42')
        a(f's_add_u32 s22, s22, {STAMP_OFF}')
        a(f'v_mov_b32 v{BOP2}, 0')
        a('s_waitcnt lgkmcnt(0)')
        a(f'v_mov_b32 v{BOP2+1}, s40')
        a(f'buffer_store_dword v{BOP2+1}, v{BOP2}, {SRD}, s22 offen')
    if DIAG and w == 3:
        a('s_cmp_lg_u32 s19, 1')
        a(f's_cbranch_scc1 {L("dg")}')
        a('s_memtime s[90:91]')
        a.label(L('dg'))
    next_step(a)
    if w == 2: a('v_mov_b32 v119, s18')
    a(f's_cmp_lt_u32 s19, {NSTEPS-1}')
    a.flush()
    a(f's_cbranch_scc1 {L("loop")}')
    a(f's_branch {tag}_done')
    for k in range(5):
        ks_ = [k] if k < 4 else [4, 5, 6]
        a.label(L(f'r{k}'))
        a('s_add_u32 s31, s31, 1')
        for ks in ks_: ml(ks)
        a('s_waitcnt vmcnt(0)')
        for x in (ex1(k) if k < 4 else ex3): a(x)
        if k == 0:
            for r in range(36, 52): a(f'v_mov_b32 v{r}, 0')
        a.flush()
        a(f's_cbranch_vccz {L("go" if k == 0 else f"c{k}")}')
        spin(a, L(f'r{k}'), ABORT)
    a.label(L('retry'))
    a('s_cmp_lg_u32 s62, 0')
    a(f's_cbranch_scc1 {L("cont")}')
    a('s_waitcnt vmcnt(0) lgkmcnt(0)')
    a.label(L('rv'))
    for ks in range(7): ml(ks)
    a('s_waitcnt vmcnt(0)')
    poison_max16(a, TMP, range(8, 36))
    a(f's_cbranch_vccz {L("rk")}')
    spin(a, L('rv'), ABORT)
    a.label(L('rk'))
    a('s_mov_b32 s62, 1')
    zero()
    a('s_add_u32 s31, s31, 0x100')
    a.flush()
    a(f's_branch {L("go")}')

def touch_ring(a, t):
    nl = RING_B // 128
    a(f's_mov_b32 s22, {EXCH_OFF}')
    for k in range((nl + 63) // 64):
        a(f'v_add_u32 v{t}, {64*k}, v1')
        a(f'v_min_u32 v{t}, {nl-1}, v{t}')
        a(f'v_lshlrev_b32 v{t}, 7, v{t}')
        a(f'buffer_load_dword v{t+1}, v{t}, {SRD}, s22 offen sc1')

def WFL(): return 'sc1' if FUSE else ''
HELP = 0
def mask_wait(a, P, vaddr, soff, smask, sleep=3):
    poll(a, P, [f'buffer_load_dword v65, {vaddr}, {SRD}, {soff} {"offen" if vaddr != "off" else ""} sc1'], [f'v_and_b32 v66, {smask}, v65', f'v_cmp_ne_u32 vcc, {smask}, v66'], sleep=sleep)
def b_wait(a, P, w):
    a('s_lshr_b32 s22, s17, 2')
    a('s_lshl_b32 s28, 0x81, s22')
    a('s_mul_i32 s27, s17, 12')
    for d in (256, 267):
        a(f's_add_u32 s22, s27, {d}')
        a('s_lshr_b32 s22, s22, 6')
        a('s_lshl_b32 s22, 0x81, s22')
        a('s_or_b32 s28, s28, s22')
    a('v_lshlrev_b32 v64, 7, v116')
    a(f's_mov_b32 s27, {PFL + w*512}')
    mask_wait(a, P, 'v64', 's27', 's28')
def a_wait(a, P, kaps):
    a('s_lshl_b32 s27, s17, 7')
    a(f's_add_u32 s27, s27, {PFL + 2048}')
    a(f's_mov_b32 s28, {sum(0x81 << k for k in kaps)}')
    mask_wait(a, P, 'off', 's27', 's28')
def touch_tiles(a, base, tiles):
    a('v_min_u32 v64, 55, v1')
    a('v_lshlrev_b32 v64, 7, v64')
    a(f's_mul_i32 s27, s17, {CUW_B}')
    for t in tiles:
        for hf in range(2):
            a(f's_add_u32 s22, s27, {base + t*TILE_B + hf*7168}')
            a(f'buffer_load_dword v67, v64, {SRD}, s22 offen sc1')
def r_wait(a, P, off):
    poll(a, P, [f'buffer_load_dword v65, off, {DBG}, 0 offset:{off} sc1'], ['v_cmp_ne_u32 vcc, 1, v65'], sleep=8)

def init_score(a, w):
    a(f's_mul_i32 s31, s17, {CUW_B}')
    a(f's_add_u32 s31, s31, {WF_A}')
    units = [((kap * 4 + q) * TILE_B + ks * UNIT, wreg(ti, ks)) for ti, (kap, q) in enumerate(score_tiles(w)) for ks in range(7)]
    if FUSE:
        r_wait(a, f'ch_wr{w}', D_R2)
        if w == 3: touch_ring(a, 64)
        if HELP:
            b_wait(a, f'ch_wh{w}', w)
            touch_tiles(a, WF_B, [7*w + 4, 7*w + 5, 7*w + 6])
        a_wait(a, f'ch_wa{w}', [w])
        evlog(a, 9002)
        a('v_readfirstlane_b32 s29, v65')
        load_units(a, units[:28], 's31', fl=WFL())
        m2 = (0x81 << (4 + (w >> 1))) | (0x81 << 6)
        a(f's_and_b32 s29, s29, {m2}')
        a(f's_cmp_eq_u32 s29, {m2}')
        a(f's_cbranch_scc1 ch_wb{w}_ok')
        a_wait(a, f'ch_wb{w}', [4 + (w >> 1), 6])
        a('s_waitcnt vmcnt(28)')
        load_units(a, units[28:], 's31', fl=WFL())
        a(f's_mov_b32 s27, {PFL + 4096}')
        a('s_mov_b32 s28, 0xffff')
        mask_wait(a, f'ch_wx{w}', 'off', 's27', 's28', sleep=8)
    else:
        if w == 3: touch_ring(a, 64)
        load_units(a, units, 's31', fl=WFL())
    a(f's_mov_b32 s24, {XF_OFF + w*2048}')
    a(f's_mov_b32 s26, {XF_OFF + w*2048 + 14336}')
    a('v_and_b32 v64, 7, v117')
    a('v_and_b32 v65, 1, v116')
    a('v_lshlrev_b32 v65, 2, v65')
    a('v_sub_u32 v64, v64, v65')
    a('v_lshrrev_b32 v65, 3, v117')
    a('v_lshl_add_u32 v66, v65, 2, v64')
    a('v_cmp_gt_u32 vcc, 4, v64')
    a('v_mov_b32 v67, 99')
    a('v_cndmask_b32 v66, v67, v66, vcc')
    a('v_mov_b32 v68, 0x3f80')
    a('v_mov_b32 v69, 0x3f800000')
    for d in range(4):
        a(f'v_mov_b32 v{4+d}, 0')
        a(f'v_cmp_eq_u32 vcc, {2*d}, v66')
        a(f'v_cndmask_b32 v{4+d}, v{4+d}, v68, vcc')
        a(f'v_cmp_eq_u32 vcc, {2*d+1}, v66')
        a(f'v_cndmask_b32 v{4+d}, v{4+d}, v69, vcc')
    a('v_lshrrev_b32 v64, 1, v116')
    a('v_lshrrev_b32 v65, 3, v117')
    a('v_and_b32 v66, 1, v116')
    a('v_and_b32 v68, 7, v117')
    a('v_lshlrev_b32 v67, 8, v65')
    a('v_lshl_add_u32 v67, v68, 5, v67')
    a('v_lshl_add_u32 v67, v66, 4, v67')
    a(f'v_add_u32 v69, {MP + (w >> 1) * 1088 + (w & 1) * 512}, v67')
    a(f'v_add_u32 v70, {MJ}, v67')
    a('v_cmp_eq_u32 vcc, v64, v65')
    a('v_cndmask_b32 v113, v70, v69, vcc')
    if w < 2:
        a('v_lshlrev_b32 v67, 9, v64')
        a('v_lshl_add_u32 v67, v117, 4, v67')
        a('v_lshl_add_u32 v67, v66, 3, v67')
        a(f'v_add_u32 v114, {XP + w*256}, v67')
        a('v_mul_u32_u24 v67, 1088, v65')
        a('v_lshl_add_u32 v67, v116, 5, v67')
        a('v_lshl_add_u32 v67, v68, 2, v67')
        a(f'v_add_u32 v115, {MP + w*128}, v67')
        a('v_and_b32 v69, 1, v117')
        a('v_lshlrev_b32 v67, 7, v69')
        a('v_lshl_add_u32 v67, v116, 4, v67')
        a('v_lshl_add_u32 v67, v65, 8, v67')
        a('v_bfe_u32 v69, v117, 1, 2')
        a('v_lshl_add_u32 v67, v69, 2, v67')
        a('s_lshl_b32 s22, s17, 9')
        a(f's_add_u32 s22, s22, {PX + w*64}')
        a('v_add_u32 v72, s22, v67')
        a('v_bfe_u32 v69, v117, 1, 1')
        a('v_lshlrev_b32 v67, 7, v69')
        a('v_lshl_add_u32 v67, v116, 4, v67')
        a('v_and_b32 v69, 4, v117')
        a('v_add_u32 v67, v67, v69')
        a('s_lshr_b32 s22, s17, 1')
        a('s_lshl_b32 s22, s22, 8')
        a('s_and_b32 s27, s17, 1')
        a('s_lshl_b32 s27, s27, 3')
        a('s_add_u32 s22, s22, s27')
        a(f's_add_u32 s22, s22, {PM + w*64}')
        a('v_add_u32 v67, s22, v67')
        a('v_and_b32 v69, 9, v117')
        a('v_mov_b32 v70, 0x40000000')
        a('v_cmp_eq_u32 vcc, 0, v69')
        a('v_cndmask_b32 v118, v70, v67, vcc')
        a('v_mov_b32 v119, -1')
    elif w == 2:
        a('s_lshl_b32 s22, s17, 2')
        a(f's_add_u32 s22, s22, {FLG1}')
        a('v_lshl_add_u32 v67, v1, 7, s22')
        a('v_mov_b32 v70, 0x40000000')
        a(f'v_cmp_gt_u32 vcc, {R1}, v1')
        a('v_cndmask_b32 v72, v70, v67, vcc')
        a('v_mov_b32 v119, 1')
    a('v_and_b32 v0, 15, v1')
    a(f's_and_b32 s22, s17, {R2-1}')
    a('s_lshl_b32 s22, s22, 7')
    a(f's_add_u32 s22, s22, {FLG2}')
    a('v_lshl_add_u32 v0, v0, 2, s22')
    kb = 4 + (w >> 1)
    k1, k2 = (kb, 6) if w & 1 else (6, kb)
    a('v_xor_b32 v69, 256, v2')
    a(f'v_mul_i32_i24 v70, {(k2 - k1) * 2048}, v66')
    a('v_add_u32 v69, v69, v70')
    a(f'v_add_u32 v117, {(k1 - w)*2048}, v69')
    if w >= 2:
        a(f'v_min_u32 v116, {max(SC_TOUCH, 1) - 1}, v1')
        a('v_lshlrev_b32 v116, 7, v116')
        a(f's_mul_i32 s35, s17, {64*GSH_B}')
        a(f's_add_u32 s35, s35, {VO_OFF + (TOUCH_AHEAD + 1)*GSH_B - (w - 1)*SC_TOUCH*128}')
    if w < 3: a('v_mov_b32 v1, v72')
    for r in range(36, 80): a(f'v_mov_b32 v{r}, 0')
    for k in range(X_LATE):
        r = 80 + 4 * k
        a(f'buffer_load_dwordx4 v[{r}:{r+3}], v117, {SRD}, {"s26" if k & 2 else "s24"} offen offset:{(k & 1)*1024} {XFL}')

YL = 0; ML = 8 * KB; WL = 16 * KB
def vwreg(w, ti, ks):
    u = ti * 7 + ks
    return 256 + 8 * u if u < 32 else (176 if w < 2 else 120) + 8 * (u - 32)

def vo_wait0(a, P):
    if FUSE: poll(a, P + 'i', [f'buffer_load_dword v9, off, {DBG}, 0 offset:{D_R2} sc1'], ['v_cmp_ne_u32 vcc, 1, v9'], sleep=8)
    a('s_lshl_b32 s27, s17, 7')
    a(f's_add_u32 s27, s27, {CNT_OFF + VOC}')
    a('s_mov_b32 s30, 0')
    a.label(P)
    a(f'buffer_load_dword v9, off, {SRD}, s27 sc1')
    a('s_waitcnt vmcnt(0)')
    a('v_cmp_ne_u32 vcc, 56, v9')
    a(f's_cbranch_vccz {P}_d')
    a('s_sleep 2')
    spin(a, P, 'cA_abort')
    a.label(P + '_d')

def resolve_waits(ins):
    out = []; pos = {}; n = 0
    for x in ins:
        if isinstance(x, tuple) and x[0] == 'tag':
            n += 1; pos[x[1]] = n; out.append(x[2])
        elif isinstance(x, tuple):
            out.append(f's_waitcnt lgkmcnt({min(15, n - pos[x[1]])})')
        else:
            if x.startswith('ds_'): n += 1
            out.append(x)
    return out

def gen_value(a, w, st, tag):
    L = lambda n: f'{tag}_va{w}_{n}'
    ABORT = f'{tag}_abort'
    fin = w < 2
    M = 8; ACC = 36
    YA = 152 if fin else 104
    YT = 64; VOR = 80; LO = 48; PL = 52; HI = 160
    STG = [64, 72, 144]
    own = [[4, 5], [5, 6], [0, 1], [2, 3]][w]
    wrt = own if w != 1 else [6]
    oth = [k for k in range(7) if k not in own]
    def S(ti, ks):
        b = f'v[{STG[ks % 3]}:{STG[ks % 3]+7}]' if fin and ti == 6 else ureg(vwreg(w, ti, ks), 8)
        return f'v_smfmac_f32_16x16x64_bf16 v[{ACC+4*ti}:{ACC+4*ti+3}], v[{M+4*ks}:{M+4*ks+3}], {b}, v3'
    def fold(t):
        r = ACC + 4 * t
        return [f'v_permlane32_swap_b32 v{r}, v{r+2}', f'v_permlane32_swap_b32 v{r+1}, v{r+3}', f'v_add_f32 v{r}, v{r}, v{r+2}', f'v_add_f32 v{r+1}, v{r+1}, v{r+3}',
                f'v_cvt_pk_bf16_f32 v{r+2}, v{r}, v{r+1}', f'ds_write_b32 v{YA+t}, v{r+2}']
    def wrd(ks):
        b = STG[ks % 3]
        return [f'ds_read_b128 v[{b}:{b+3}], v0 offset:{ks*UNIT}', ('tag', f'w{ks}', f'ds_read_b128 v[{b+4}:{b+7}], v0 offset:{ks*UNIT+1024}')]
    def mld(ks): return f'buffer_load_dwordx4 v[{M+4*ks}:{M+4*ks+3}], v2, {SRD}, {"s20" if ks < 4 else "s23"} offen offset:{(ks & 3) * 1024} sc1'
    def vol(h):
        return ([f's_add_u32 s22, s25, {h*1792}'] if h % 2 == 0 else []) + [f'buffer_load_dwordx4 v[{VOR+4*h}:{VOR+4*h+3}], v6, {SRD}, s22 offen offset:{(h & 1)*1792} sc1']
    isv = lambda o: isinstance(o, str) and o.startswith('v_')
    pois = f'buffer_store_dword v162, v1, {SRD}, s21 offen {st}'
    mg = f'buffer_store_dword v{HI}, v1, {SRD}, s38 offen sc1'
    zr = list(range(ACC, ACC + 28))
    a.raw('.p2align 6')
    a.label(L('loop'))
    a('s_mov_b32 s30, 0')
    if w == 2:
        flagpoll(a, 119, 's19', 100, L('fp'), ABORT)
        for ks in own: a(mld(ks))
        a('s_barrier')
    else:
        a('s_barrier')
        for ks in own: a(mld(ks))
    stamp(a, 0)
    a('s_barrier')
    ny = 0
    if fin:
        a(mg); ny += 1
        for h in range(VO_PRE):
            for x in vol(h): a(x)
        ny += VO_PRE
        a(f's_mul_i32 s38, s18, {7*KB}')
        a(f's_add_u32 s38, s38, {MEMG_OFF}')
    if w == 3:
        a(f'buffer_load_dword v100, v116, {SRD}, s39 offen sc1')
        a('s_add_u32 s27, s19, 2')
        a('s_min_u32 s27, s27, 63')
        a('s_lshr_b32 s27, s27, 3')
        a('s_lshl_b32 s27, s27, 11')
        a('s_add_u32 s27, s27, s35')
        a(f'buffer_load_dword v101, off, {SRD}, s27 sc1')
        a(f's_add_u32 s39, s39, {XSEG_B}')
        ny += 2
    a(f's_waitcnt vmcnt({ny})')
    stamp(a, 1)
    for ks in wrt: a(f'ds_write_b128 v2, v[{M+4*ks}:{M+4*ks+3}] offset:{ML + ks*1024}')
    nrt = 6 if fin else 7
    seq = [[t, S(t, ks), []] for ks in own for t in range(nrt)]
    seq[B1_POS][2] += ['s_waitcnt lgkmcnt(0)', 's_barrier'] + [('tag', f'm{ks}', f'ds_read_b128 v[{M+4*ks}:{M+4*ks+3}], v2 offset:{ML + ks*1024}') for ks in oth]
    n0 = len(seq)
    rest = [[t, S(t, ks), []] for t in range(nrt) for ks in oth]
    if fin:
        for j_ in range(7): rest.insert(3 + 4 * j_, [6, S(6, j_), []])
    seq += rest
    for k, ks in enumerate(oth):
        idx = next(i_ for i_ in range(n0, len(seq)) if seq[i_][1] == S(0, ks))
        seq[idx - 1][2].append(('wait', f'm{ks}'))
    if fin:
        for j_ in range(7):
            idx = n0 + 3 + 4 * j_
            seq[idx - (8 if j_ else 5)][2] += wrd(j_)
            seq[idx - 1][2].append(('wait', f'w{j_}'))
        for h in range(VO_PRE, 16): seq[(h - VO_PRE) * VO_EVERY][2] += vol(h)
        if TLB_WARM and w == 1:
            seq[(16 - VO_PRE) * VO_EVERY][2] += [f's_add_u32 s22, s25, {2*GSH_B - 128}', f'buffer_load_dword v164, off, {SRD}, s22 sc1']
    last = {}
    for i_, (t, m, sd) in enumerate(seq): last[t] = i_
    ins = []; pend = []; delay = 0; brk = None
    for i_, (t, m, sd) in enumerate(seq):
        ins.append(m)
        ops = list(sd)
        if pend and pend[0].startswith('ds_'): ops.insert(0, pend.pop(0))
        if brk == i_:
            ops.append(f's_cbranch_vccnz {L("slow")}')
            assert not fin or i_ > (16 - VO_PRE) * VO_EVERY
        if brk is not None and brk + 2 == i_ and fin: ops.append(pois)
        if delay: delay -= 1
        elif pend:
            x = pend.pop(0); ops.append(x)
            if x.startswith('v_cmp'): brk = i_ + 2
        ins += [o for o in ops if not isv(o)] + [o for o in ops if isv(o)]
        if i_ == last[t]:
            delay = max(delay, 2 - len(pend))
            f_ = fold(t)
            if t == 0: f_.insert(4, f'v_cmp_u_f32 vcc, v{ACC}, v{ACC+1}')
            pend += f_
    ins += pend
    for x in resolve_waits(ins): a(x)
    a.label(L('t2d'))
    stamp(a, 2)
    if fin:
        pr = lambda c: 8 + 4 * c
        def pld(c):
            so = ('s22', 's34', 's36')[c // 4]
            a(f'buffer_load_dwordx4 v[{pr(c)}:{pr(c)+3}], v2, {SRD}, {so} offen offset:{(c & 3)*1024} sc1')
        a(f's_add_u32 s22, s20, {PX}')
        a(f's_add_u32 s34, s20, {PX + 4096}')
        a(f's_add_u32 s36, s20, {PM}')
        a('s_mov_b32 s37, 0')
        for r in range(LO, LO + 4): a(f'v_mov_b32 v{r}, 0')
        a('v_mov_b32 v163, s18')
        a('s_waitcnt lgkmcnt(0)')
        if STAMPS:
            a('s_waitcnt vmcnt(0)')
            stamp(a, 3)
        if w == 0:
            a('s_setprio 3')
            flagpoll(a, 4, 's18', PL, L('fw'), ABORT)
            for c in range(10): pld(c)
        a('s_barrier')
        stamp(a, 4)
        if w == 1:
            for c in range(10): pld(c)
        for k in range(4): a(f'ds_read_b128 v[{YT+4*k}:{YT+4*k+3}], v2 offset:{YL + w*4096 + k*1024}')
        a.label(L('lp'))
        nst = 0
        ckc = list(range(min(F3_POS - 1, 8))) if PCHK and w == 1 else []
        for c in range(10):
            a(f's_waitcnt vmcnt({9-c+nst})' + (' lgkmcnt(0)' if c == 8 else ''))
            if c == 0: stamp(a, 5)
            B_ = VOR + 8 * c if c < 8 else YT + 8 * (c - 8)
            a(f'v_smfmac_f32_16x16x64_bf16 v[{LO}:{LO+3}], v[{pr(c)}:{pr(c)+3}], v[{B_}:{B_+7}], v3')
            if c == F3_POS and w == 1:
                if ckc: a(f's_cbranch_vccnz {L("rv")}')
                a(f'buffer_store_dword v163, v7, {SRD}, 0 offen {st}')
                nst = 1
            if c in ckc:
                if c % 2 == 0 and c > 0: a(f'v_max3_u32 v{PL+3}, v{PL+3 if c > 2 else pr(0)}, v{pr(c-1)}, v{pr(c)}')
                elif c == ckc[-1] and c > 0: a(f'v_max_u32 v{PL+3}, v{PL+3 if c > 2 else pr(0)}, v{pr(c)}')
                if c == ckc[-1]: a(f'v_cmp_eq_u32 vcc, -1, v{PL+3 if c > 0 else pr(0)}')
        stamp(a, 6)
        a(f'v_permlane32_swap_b32 v{LO}, v{LO+2}')
        a(f'v_permlane32_swap_b32 v{LO+1}, v{LO+3}')
        a(f'v_add_f32 v{LO}, v{LO}, v{LO+2}')
        a(f'v_add_f32 v{LO+1}, v{LO+1}, v{LO+3}')
        a(f'v_cvt_pk_bf16_f32 v{HI}, v{LO}, v{LO+1}')
        a(f'v_cmp_u_f32 vcc, v{LO}, v{LO+1}')
        a(f'v_mov_b32_dpp v{HI+1}, v{HI} quad_perm:[1,0,3,2] {D}')
        a(f'v_perm_b32 v{HI}, v{HI+1}, v{HI}, v5')
        a(f'v_min_u32 v{HI}, -2, v{HI}')
        a(f's_cbranch_vccnz {L("rp")}')
        a.label(L('cont'))
        a(f'buffer_store_dword v{HI}, v1, {SRD}, s21 offen {st}')
        stamp(a, 7)
        if w == 0: a('s_setprio 0')
        a(f's_cmp_lg_u32 s19, {NSTEPS-2}')
        a(f's_cbranch_scc1 {L("nl")}')
        a(mg)
        a(f's_branch {tag}_done')
        a.label(L('nl'))
        a(f's_add_u32 s25, s25, {GSH_B}')
        stamp_flush(a, 4 + w, L('sf'), PL)
        for r in zr: a(f'v_mov_b32 v{r}, 0')
    else:
        a('v_mov_b32 v117, s18')
        if w == 3:
            a.label(L('vow'))
            a('s_waitcnt vmcnt(0)')
            a('v_cmp_ne_u32 vcc, 56, v101')
            a(f's_cbranch_vccnz {L("vor")}')
        a('s_waitcnt lgkmcnt(0)')
        stamp(a, 3)
        a('s_barrier')
        nd = F2_DELAY if w == 3 else 0
        for r in zr[:nd]: a(f'v_mov_b32 v{r}, 0')
        if w == 3: a(f'buffer_store_dword v117, v118, {SRD}, 0 offen {st}')
        a(f's_cmp_eq_u32 s19, {NSTEPS-2}')
        a(f's_cbranch_scc1 {tag}_done')
        if w == 2: a('s_sleep 1')
        for r in zr[nd:]: a(f'v_mov_b32 v{r}, 0')
        if w == 2 and P3_SLEEP: a(f's_sleep {P3_SLEEP}')
        stamp_flush(a, 4 + w, L('sf'), 76)
    next_step(a)
    a.flush()
    a(f's_branch {L("loop")}')
    a.label(L('slow'))
    a('s_waitcnt lgkmcnt(0)')
    a.label(L('sl1'))
    a('s_add_u32 s31, s31, 0x1000000')
    for ks in range(7): a(mld(ks))
    a('s_waitcnt vmcnt(0)')
    poison_max(a, ACC, range(M, M + 28))
    a(f'v_cmp_eq_u32 vcc, -1, v{ACC}')
    a(f's_cbranch_vccz {L("sl2")}')
    spin(a, L('sl1'), ABORT)
    a.label(L('sl2'))
    for r in zr: a(f'v_mov_b32 v{r}, 0')
    if fin: a(pois)
    for ks in range(7):
        if fin:
            for x in resolve_waits(wrd(ks)): a(x)
        for t in range(7):
            if fin and t == 6: a('s_waitcnt lgkmcnt(0)')
            a(S(t, ks))
    for t in range(7):
        for x in fold(t): a(x)
    a(f's_branch {L("t2d")}')
    if fin:
        a.label(L('rp'))
        a('s_cmp_lg_u32 s37, 0')
        a(f's_cbranch_scc1 {L("cont")}')
        a.label(L('rv'))
        a('s_add_u32 s31, s31, 0x10000')
        for c in range(10): pld(c)
        a('s_waitcnt vmcnt(0)')
        poison_max(a, PL, [pr(c) + r for c in range(10) for r in range(4)])
        a(f'v_cmp_eq_u32 vcc, -1, v{PL}')
        a('s_mov_b32 s37, 1')
        for r in range(LO, LO + 4): a(f'v_mov_b32 v{r}, 0')
        a.flush()
        a(f's_cbranch_vccz {L("lp")}')
        spin(a, L('rv'), ABORT)
    if w == 3:
        a.label(L('vor'))
        a('s_sleep 2')
        a(f'buffer_load_dword v101, off, {SRD}, s27 sc1')
        spin(a, L('vow'), ABORT)

def init_value(a, w):
    fin = w < 2
    YA = 152 if fin else 104
    a(f's_mul_i32 s31, s17, {CUW_B}')
    a(f's_add_u32 s31, s31, {WF_B + 7*w*TILE_B}')
    if FUSE:
        r_wait(a, f'ch_wr{4+w}', D_R1)
        b_wait(a, f'ch_ww{4+w}', w)
        evlog(a, 9002)
    units = [(ti * TILE_B + ks * UNIT, vwreg(w, ti, ks)) for ti in range(6 if fin else 7) for ks in range(7)]
    load_units(a, units, 's31', fl=WFL())
    if fin:
        for f in range(14):
            if f % 4 == 0:
                a(f's_mov_b32 m0, {WL + w*TILE_B + f*1024}')
                a(f's_add_u32 s22, s31, {6*TILE_B + f*1024}')
            a(f'buffer_load_dwordx4 v2, {SRD}, s22 offen offset:{(f & 3)*1024} {WFL()} lds')
    if FUSE and HELP:
        a_wait(a, f'ch_wh{4+w}', [4 + (w >> 1), 6])
        evlog(a, 9012)
        touch_tiles(a, WF_A, [kap * 4 + q for kap, q in score_tiles(w)[4:]])
        a('s_waitcnt vmcnt(0)')
    a('v_mov_b32 v72, v116')
    a('v_mov_b32 v73, v117')
    a('v_lshrrev_b32 v65, 1, v72')
    a('v_and_b32 v66, 1, v72')
    for r in range(36, 64): a(f'v_mov_b32 v{r}, 0')
    a('v_lshlrev_b32 v75, 2, v65')
    a('v_lshl_add_u32 v75, v66, 3, v75')
    for t in range(7):
        a(f'v_add_u32 v67, {16 * (7*w + t)}, v73')
        a('v_mul_u32_u24 v68, 2341, v67')
        a('v_lshrrev_b32 v68, 16, v68')
        a('v_mul_u32_u24 v69, 28, v68')
        a('v_sub_u32 v69, v67, v69')
        a('v_lshrrev_b32 v70, 4, v69')
        a('v_and_b32 v69, 15, v69')
        a('v_lshlrev_b32 v71, 12, v70')
        a('v_lshl_add_u32 v71, v68, 8, v71')
        a('v_lshl_add_u32 v71, v69, 4, v71')
        a(f'v_add_u32 v{YA+t}, v71, v75')
    a('v_mov_b32 v74, 0x40000000')
    if fin:
        a('v_mov_b32 v76, 0\nv_mov_b32 v77, 0\nv_mov_b32 v78, 0\nv_mov_b32 v79, 0')
        for k in range(4): a(f'ds_write_b128 v2, v[76:79] offset:{YL + w*4096 + k*1024}')
        a(f's_and_b32 s22, s17, {R1-1}')
        a('s_lshl_b32 s22, s22, 7')
        a(f's_add_u32 s22, s22, {FLG1}')
        a('v_lshl_add_u32 v4, v73, 2, s22')
        a('v_and_b32 v64, 1, v73')
        a('v_mov_b32 v5, 0x05040100')
        a('v_mov_b32 v65, 0x03020706')
        a('v_cmp_eq_u32 vcc, 1, v64')
        a('v_cndmask_b32 v5, v5, v65, vcc')
        a('s_lshl_b32 s22, s17, 2')
        a(f's_add_u32 s22, s22, {FLG2 + 16*128}')
        a('v_lshl_add_u32 v7, v1, 7, s22')
        a(f'v_cmp_gt_u32 vcc, {R2}, v1')
        a('v_cndmask_b32 v7, v74, v7, vcc')
        if w == 0: a('v_mov_b32 v6, v2')
        else:
            a('v_min_u32 v65, 11, v73')
            a('v_mad_u32_u24 v65, v72, 12, v65')
            a('v_lshlrev_b32 v6, 4, v65')
            a('v_add_u32 v6, 1024, v6')
        a('v_lshl_add_u32 v64, v66, 2, v64')
        a('v_and_b32 v65, 2, v72')
        a('v_add_u32 v64, v64, v65')
        a(f's_mul_i32 s22, s17, {12 if w else 16}')
        if w: a('s_add_u32 s22, s22, 256')
        a('v_add_u32 v75, s22, v73')
        a('v_lshrrev_b32 v68, 4, v75')
        a('v_lshlrev_b32 v68, 8, v68')
        a('v_bfe_u32 v69, v75, 1, 1')
        a('v_lshl_add_u32 v68, v69, 7, v68')
        a('v_lshl_add_u32 v68, v64, 4, v68')
        a('v_and_b32 v69, 12, v75')
        a('v_add_u32 v1, v68, v69')
        if w == 1:
            a('v_cmp_gt_u32 vcc, 12, v73')
            a('v_cndmask_b32 v1, v74, v1, vcc')
        a(f's_mul_i32 s22, s17, {64*GSH_B}')
        a(f's_add_u32 s25, s22, {VO_OFF}')
        a('v_mov_b32 v162, -1')
        a('s_mov_b32 s38, 0x40000000')
        a(f'v_add_u32 v0, {WL + w*TILE_B}, v2')
    else:
        a('v_and_b32 v119, 15, v1')
        a(f's_and_b32 s22, s17, {R2-1}')
        a('s_lshl_b32 s22, s22, 7')
        a(f's_add_u32 s22, s22, {FLG2 + 16*128}')
        a('v_lshl_add_u32 v119, v119, 2, s22')
        a('s_lshl_b32 s22, s17, 2')
        a(f's_add_u32 s22, s22, {FLG2}')
        a('v_lshl_add_u32 v118, v1, 7, s22')
        a(f'v_cmp_gt_u32 vcc, {R2}, v1')
        a('v_cndmask_b32 v118, v74, v118, vcc')
        a('s_lshl_b32 s35, s17, 7')
        a(f's_add_u32 s35, s35, {CNT_OFF + VOC}')
        a('v_min_u32 v116, 13, v1')
        a('s_mul_i32 s22, s17, 14')
        a('v_add_u32 v116, s22, v116')
        a('v_lshlrev_b32 v116, 7, v116')
        a(f's_mov_b32 s39, {XF_OFF + XSEG_B}')
        if w == 3:
            vo_wait0(a, 'ch_vw7')
            a(f'buffer_load_dword v100, v116, {SRD}, s39 offen sc1')
        a(f's_mov_b32 s39, {XF_OFF + 2*XSEG_B}')

MERGE = 0
RB1_DELAY = 0
def wg_atomic(a, P, dst):
    a('v_mov_b32 v6, 160000')
    a('s_barrier')
    a('s_cmp_lg_u32 s16, 0')
    a(f's_cbranch_scc1 {P}1')
    a('s_mov_b64 exec, 1')
    a(f'buffer_atomic_add v4, v5, {DBG}, 0 offen sc0')
    a('s_waitcnt vmcnt(0)')
    a('ds_write_b32 v6, v4')
    a('s_waitcnt lgkmcnt(0)')
    a('s_mov_b64 exec, -1')
    a.label(f'{P}1')
    a('s_barrier')
    a('ds_read_b32 v4, v6')
    a('s_waitcnt lgkmcnt(0)')
    a(f'v_readfirstlane_b32 {dst}, v4')

def staff_check(a, okl, mode):
    a('s_mov_b32 s30, 0')
    a('v_mov_b32 v36, 0')
    a.label('ch_chk')
    a(f'buffer_load_dword v37, v36, {DBG}, 0 offen sc1')
    a('s_waitcnt vmcnt(0)')
    a('v_readfirstlane_b32 s22, v37')
    a('s_and_b32 s22, s22, 0xffff')
    a('s_cmp_ge_u32 s22, 32')
    a('s_cbranch_scc1 ch_go_end')
    a('s_sleep 16')
    a('s_add_u32 s30, s30, 1')
    a('s_cmp_lt_u32 s30, 64')
    a('s_cbranch_scc1 ch_chk')
    a.label('ch_go_end')
    a('v_mov_b32 v6, 160016')
    a('v_mov_b32 v4, s22')
    a('s_cmp_lg_u32 s16, 0')
    a('s_cbranch_scc1 ch_dec')
    a('ds_write_b32 v6, v4')
    a('s_waitcnt lgkmcnt(0)')
    a.label('ch_dec')
    a('s_barrier')
    a('ds_read_b32 v4, v6')
    a('s_waitcnt lgkmcnt(0)')
    a('v_readfirstlane_b32 s22, v4')
    a('s_cmp_ge_u32 s22, 32')
    a(f's_cbranch_scc1 {okl}')
    a('v_mov_b32 v4, 0x10001')
    a(f's_mov_b32 s18, {mode}')
    a('s_branch ch_take')

D_CLAIM = 4; D_CNT = 12; D_REP = 20; D_R1 = 128; D_R2 = 132; NINIT = 4
FUSE = 1
REP_WAIT = 60
def wg_signal(a, off, inc=1):
    lb = a.newlabel('sig')
    a('s_barrier')
    a('s_cmp_lg_u32 s16, 0')
    a(f's_cbranch_scc1 {lb}')
    a(f'v_mov_b32 v60, {inc}')
    a(f'v_mov_b32 v61, {off}')
    a('s_mov_b64 exec, 1')
    a(f'buffer_atomic_add v60, v61, {DBG}, 0 offen')
    a('s_mov_b64 exec, -1')
    a.label(lb)

def poll(a, P, loads, cond, sleep=2, lim=SPIN_LIMIT, fail='cA_abort'):
    a('s_mov_b32 s30, 0')
    a.label(P)
    for x in loads: a(x)
    a('s_waitcnt vmcnt(0)')
    for x in cond: a(x)
    a(f's_cbranch_vccz {P}_ok')
    a(f's_sleep {sleep}')
    a('s_add_u32 s30, s30, 1')
    a(f's_cmp_lt_u32 s30, {lim}')
    a(f's_cbranch_scc1 {P}')
    a(f's_branch {fail}')
    a.label(P + '_ok')

def uniform(a, sreg, lds=160032):
    lb = a.newlabel('uni')
    a(f'v_mov_b32 v6, {lds}')
    a(f'v_mov_b32 v7, {sreg}')
    a('s_barrier')
    a('s_cmp_lg_u32 s16, 0')
    a(f's_cbranch_scc1 {lb}')
    a('ds_write_b32 v6, v7')
    a('s_waitcnt lgkmcnt(0)')
    a.label(lb)
    a('s_barrier')
    a('ds_read_b32 v7, v6')
    a('s_waitcnt lgkmcnt(0)')
    a(f'v_readfirstlane_b32 {sreg}, v7')

def lanes(a):
    a('v_and_b32 v1, 63, v0')
    a('v_lshlrev_b32 v2, 4, v1')
    a('v_lshrrev_b32 v3, 4, v1')
    a('v_and_b32 v4, 15, v1')

def mem0_load(a):
    from prep import srd
    srd(a, 68, 50, 51, 8 * 448 * 2)
    a('v_lshrrev_b32 v6, 3, v0')
    a('v_min_u32 v6, 27, v6')
    a('v_and_b32 v7, 7, v0')
    a('v_mul_u32_u24 v9, 896, v7')
    a('v_lshl_add_u32 v9, v6, 5, v9')
    a('buffer_load_dwordx4 v[176:179], v9, s[68:71], 0 offen')
    a('buffer_load_dwordx4 v[180:183], v9, s[68:71], 0 offen offset:16')

def init_job(a, P, k_s):
    a('v_mov_b32 v10, 0x40000000')
    a('v_mov_b32 v5, 1')
    for r in range(148, 152): a(f'v_mov_b32 v{r}, 0')
    for r in range(152, 156): a(f'v_mov_b32 v{r}, -1')
    a('v_lshlrev_b32 v8, 4, v0')
    a(f's_cmp_lg_u32 {k_s}, 0')
    a(f's_cbranch_scc1 {P}_1')
    a(f's_mov_b32 s23, {PFL}')
    a(f'buffer_store_dwordx4 v[148:151], v8, {SRD}, s23 offen sc1')
    a(f's_mov_b32 s23, {PFL + 4096}')
    a(f'buffer_store_dwordx4 v[148:151], v8, {SRD}, s23 offen sc1')
    a('s_waitcnt vmcnt(0)')
    a('s_barrier')
    a(f'buffer_store_dword v5, v252, {DBG}, 0 offen offset:{D_R1} sc1')
    a.label(f'{P}_1')
    mem0_load(a)
    a(f's_lshl_b32 s20, {k_s}, 12')
    a('v_add_u32 v8, s20, v8')
    for base, n, r in ((CNT_OFF, AC, 148), (EXCH_OFF + 2 * EXCH_B, 48 * 128, 148), (EXCH_OFF + 7 * KB, 2 * EXCH_B - 7 * KB, 152), (MEMG_OFF + 7 * KB, 63 * 7 * KB, 152)):
        full, rem = divmod(n, 16384)
        a(f's_mov_b32 s23, {base}')
        if full:
            lb = a.newlabel(P)
            a.label(lb)
            a(f'buffer_store_dwordx4 v[{r}:{r+3}], v8, {SRD}, s23 offen sc1')
            a('s_add_u32 s23, s23, 16384')
            a(f's_cmp_lt_u32 s23, {base + full * 16384}')
            a(f's_cbranch_scc1 {lb}')
        if rem:
            a(f'v_cmp_gt_u32 vcc, {rem}, v8')
            a('v_cndmask_b32 v9, v10, v8, vcc')
            a(f'buffer_store_dwordx4 v[{r}:{r+3}], v9, {SRD}, s23 offen sc1')
    a(f's_cmp_lg_u32 {k_s}, 1')
    a(f's_cbranch_scc1 {P}_nm')
    a('v_lshrrev_b32 v6, 3, v0')
    a('v_and_b32 v7, 7, v0')
    a('v_lshlrev_b32 v8, 8, v6')
    a('v_lshl_add_u32 v8, v7, 4, v8')
    a('v_cmp_gt_u32 vcc, 28, v6')
    a('v_cndmask_b32 v8, v10, v8, vcc')
    a('s_waitcnt vmcnt(8)')
    for j in range(4):
        a(f'v_mov_b32 v{184+j}, v{176+2*j}')
        a(f'v_mov_b32 v{188+j}, v{177+2*j}')
    for base in (EXCH_OFF, MEMG_OFF):
        a(f's_mov_b32 s23, {base}')
        a(f'buffer_store_dwordx4 v[184:187], v8, {SRD}, s23 offen sc1')
        a(f'buffer_store_dwordx4 v[188:191], v8, {SRD}, s23 offen offset:128 sc1')
    a.label(f'{P}_nm')
    a('s_waitcnt vmcnt(0)')
    a('s_barrier')
    a('s_cmp_lg_u32 s16, 0')
    a(f's_cbranch_scc1 {P}_e')
    a('v_mov_b32 v6, 1')
    a('s_mov_b64 exec, 1')
    a(f'buffer_atomic_add v6, v252, {DBG}, 0 offen offset:{D_CNT} sc0')
    a('s_waitcnt vmcnt(0)')
    a('v_readfirstlane_b32 s20, v6')
    a(f's_cmp_lg_u32 s20, {NINIT-1}')
    a(f's_cbranch_scc1 {P}_e0')
    a(f'buffer_store_dword v5, v252, {DBG}, 0 offen offset:{D_R2} sc1')
    a.label(f'{P}_e0')
    a('s_mov_b64 exec, -1')
    a.label(f'{P}_e')

FLAG_AT = 4
TA_LATE = 0
def worker_prep(a):
    import prep2
    ldi = [f'buffer_load_dwordx2 v[254:255], v252, {DBG}, 0 offen offset:{D_R1} sc1']
    def flag(P, mat):
        a('s_barrier')
        a('s_cmp_lg_u32 s16, 0')
        a(f's_cbranch_scc1 {P}_f')
        a('v_readfirstlane_b32 s20, v254')
        a('s_cmp_eq_u32 s20, 1')
        a(f's_cbranch_scc1 {P}_w_ok')
        poll(a, P + '_w', [f'buffer_load_dword v254, off, {DBG}, 0 offset:{D_R1} sc1'], ['v_cmp_ne_u32 vcc, 1, v254'], sleep=8, lim=16, fail=P + '_f')
        a('s_lshl_b32 s20, s17, 7')
        a(f's_add_u32 s20, s20, {PFL + (2048 if mat == "A" else 0)}')
        a('s_lshl_b32 s21, 1, s19')
        a('v_mov_b32 v248, s21')
        a('s_mov_b64 exec, 1')
        a(f'buffer_atomic_or v248, v252, {SRD}, s20 offen sc0')
        a('s_mov_b64 exec, -1')
        a(f's_mov_b32 s{38 if mat == "A" else 37}, s21')
        a.label(P + '_f')
    def flag2(P, mat):
        sr = f's{38 if mat == "A" else 37}'
        a('v_readfirstlane_b32 s20, v248')
        a(f's_xor_b32 s20, s20, {sr}')
        a('s_cmp_lg_u32 s20, 0x3fff')
        a(f's_cselect_b32 s20, 0, {sr}')
        a(f's_mov_b32 {sr}, 0')
        a('s_cmp_eq_u32 s20, 0')
        a(f's_cbranch_scc1 {P}')
        a(f's_lshl_b32 s21, {0x10000 if mat == "A" else 1}, s17')
        a('v_mov_b32 v248, s21')
        a(f's_mov_b32 s20, {PFL + 4096}')
        a('s_mov_b64 exec, 1')
        a(f'buffer_atomic_or v248, v252, {SRD}, s20 offen')
        a('s_mov_b64 exec, -1')
        a.label(P)
    def role():
        a('v_readfirstlane_b32 s91, v249')
        uniform(a, 's91')
        a('s_and_b32 s91, s91, 0xffff')
        a('s_cmp_lt_u32 s91, 32')
        a('s_cbranch_scc1 ch_role2')
        a('s_branch wp_all')
    prep2.pst(a)
    a(f's_sub_u32 s35, s3, {XCD_SEL}')
    a('s_and_b32 s35, s35, 7')
    a('s_lshr_b32 s36, s2, 3')
    a('s_mul_i32 s33, s35, 28')
    a('s_add_u32 s33, s33, s36')
    a('s_mov_b32 s97, 0')
    a('s_mov_b32 s96, 0')
    a('s_mov_b32 s37, 0\ns_mov_b32 s38, 0')
    a('s_mov_b32 s39, 0xffff0000')
    lanes(a)
    prep2.consts(a)
    a('s_cmp_lt_u32 s36, 28')
    a('s_cbranch_scc1 wp_B')
    a('s_cmp_eq_u32 s35, 0')
    a('s_cbranch_scc1 wp_ini')
    a('s_lshl_b32 s33, s35, 2')
    a('s_add_u32 s33, s33, s36')
    a('s_sub_u32 s33, s33, 32')
    prep2.decode(a, 's33')
    a('s_branch wp_A0')
    a.label('wp_ini')
    a('v_mov_b32 v4, 1')
    a(f'v_mov_b32 v5, {D_CLAIM}')
    wg_atomic(a, 'wp_ic', 's33')
    lanes(a)
    a(f's_cmp_ge_u32 s33, {NINIT}')
    a('s_cbranch_scc1 wp_ini2')
    init_job(a, 'wp_ij', 's33')
    a.label('wp_ini2')
    a('s_cmp_lg_u32 s97, 0')
    a('s_cbranch_scc1 wp_all')
    a(f's_cmp_lg_u32 s3, {XCD_SEL}')
    a('s_cbranch_scc1 wp_all')
    role()
    a.label('wp_B')
    prep2.decode(a, 's33')
    prep2.touch(a, 'B', 253)
    prep2.xunit_load(a, 's33')
    prep2.issue(a, 'B')
    a('s_cmp_eq_u32 s35, 0')
    a('s_cselect_b32 s34, 1, s97')
    if not TA_LATE: prep2.touch(a, 'A', 253, skip='s34')
    prep2.compute(a, 'wpb', 'B', 0 if TA_LATE else 1, pre_epi=ldi, early=prep2.xunit_store())
    evlog(a, 9010)
    a('s_cmp_lg_u32 s34, 0')
    a('s_cbranch_scc1 wp_B2')
    if TA_LATE: prep2.touch(a, 'A', 253)
    def hook(n):
        a(f's_waitcnt vmcnt({n + TA_LATE})')
        flag('wp_f1', 'B')
        prep2.pst(a)
    prep2.issue(a, 'A', hook, FLAG_AT)
    a('s_branch wp_A')
    a.label('wp_B2')
    a('s_waitcnt vmcnt(0)')
    flag('wp_f2', 'B')
    a('s_waitcnt vmcnt(0)')
    flag2('wp_g2', 'B')
    prep2.pst(a, 4)
    prep2.pst_flush(a)
    a('s_cmp_lg_u32 s97, 0')
    a('s_cbranch_scc1 wp_rep')
    a('s_branch wp_ini2')
    a.label('wp_A0')
    prep2.issue(a, 'A')
    a.label('wp_A')
    prep2.compute(a, 'wpa', 'A', 0, pre_epi=ldi + [f'buffer_load_dword v253, v252, {DBG}, 0 offen sc1'], early=[lambda: flag2('wp_g1', 'B')])
    a('s_waitcnt vmcnt(0)')
    flag('wp_f3', 'A')
    prep2.pst(a)
    prep2.pst_flush(a)
    evlog(a, 9011)
    a('s_cmp_lg_u32 s97, 0')
    a('s_cbranch_scc1 wp_all')
    a('v_readfirstlane_b32 s20, v255')
    a('v_readfirstlane_b32 s21, v253')
    a('s_and_b32 s21, s21, 0xffe0')
    a('s_cselect_b32 s96, s20, 0')
    a('s_cmp_eq_u32 s96, 0')
    a('s_cbranch_scc1 wp_all')
    a('v_mov_b32 v250, 1')
    a(f's_mov_b32 s20, {CNT_OFF + JOBC}')
    a('s_mov_b64 exec, 1')
    a(f'buffer_atomic_add v250, v252, {SRD}, s20 offen sc0')
    a('s_mov_b64 exec, -1')
    a.label('wp_all')
    a('v_mov_b32 v252, 0x40000000')
    a('v_cmp_eq_u32 vcc, 0, v0')
    a('v_cndmask_b32 v252, v252, v0, vcc')
    a('s_mov_b32 s34, 0')
    a('s_cmp_lg_u32 s16, 0')
    a('s_cbranch_scc1 wp_w2')
    a(f's_mov_b32 s24, {PFL + 4096}')
    a(f'buffer_load_dword v66, off, {SRD}, s24 sc1')
    a('s_waitcnt vmcnt(0)')
    flag2('wp_g3', 'A')
    a('s_cmp_lg_u32 s96, 0')
    a('s_cbranch_scc1 wp_v2')
    poll(a, 'wp_v', [f'buffer_load_dwordx2 v[64:65], off, {DBG}, 0 sc1', f'buffer_load_dword v66, off, {DBG}, 0 offset:{D_R2} sc1'],
         ['v_and_b32 v68, 0xffe0, v64', 'v_min_u32 v68, v68, v66', 'v_cmp_ne_u32 vcc, 1, v68'], sleep=16, lim=REP_WAIT // 2, fail='wp_w1')
    a(f'buffer_load_dword v66, off, {SRD}, s24 sc1')
    a('s_waitcnt vmcnt(0)')
    a.label('wp_v2')
    a('v_mov_b32 v64, 32')
    a(f'v_mov_b32 v65, {NINIT}')
    a('v_or_b32 v66, s39, v66')
    a('v_cmp_ne_u32 vcc, -1, v66')
    a('s_cbranch_vccz wp_w2')
    a('s_cmp_eq_u32 s97, 2')
    a('s_cbranch_scc1 wp_w1')
    poll(a, 'wp_w', [f'buffer_load_dword v66, off, {SRD}, s24 sc1'], ['v_or_b32 v66, s39, v66', 'v_cmp_ne_u32 vcc, -1, v66'], sleep=8, lim=REP_WAIT, fail='wp_w1')
    a('s_branch wp_w2')
    a.label('wp_w1')
    a('v_readfirstlane_b32 s20, v64')
    a('v_readfirstlane_b32 s21, v65')
    a('s_and_b32 s20, s20, 0xffff')
    a('s_cmp_lt_u32 s20, 32')
    a('s_cselect_b32 s34, 2, 1')
    a(f's_cmp_lt_u32 s21, {NINIT}')
    a('s_cselect_b32 s34, 4, s34')
    a('s_add_u32 s32, s32, 1')
    a('s_cmp_lt_u32 s32, 4000')
    a('s_cselect_b32 s34, s34, 3')
    a.label('wp_w2')
    uniform(a, 's34')
    a('s_cmp_eq_u32 s34, 0')
    a('s_cbranch_scc1 wp_done')
    a('s_mov_b32 s97, 1')
    a('s_cmp_eq_u32 s34, 1')
    a('s_cbranch_scc1 wp_rep')
    a('s_cmp_eq_u32 s34, 3')
    a('s_cbranch_scc1 cA_abort')
    a('s_cmp_eq_u32 s34, 4')
    a('s_cbranch_scc1 wp_ini')
    a('v_mov_b32 v4, 0x10001')
    a('s_branch ch_take')
    a.label('wp_rep')
    a('s_load_dwordx8 s[40:47], s[0:1], 72')
    a('s_load_dwordx4 s[48:51], s[0:1], 56')
    a('s_waitcnt vmcnt(0) lgkmcnt(0)')
    a('v_mov_b32 v4, 1')
    a(f'v_mov_b32 v5, {D_REP}')
    wg_atomic(a, 'wp_el', 's33')
    lanes(a)
    prep2.consts(a)
    a('s_and_b32 s33, s33, 511')
    a('s_and_b32 s20, s33, 255')
    a('s_cmp_ge_u32 s20, 224')
    a('s_cselect_b32 s97, 1, 2')
    a('s_cbranch_scc1 wp_all')
    prep2.decode(a, 's20')
    a('s_lshl_b32 s20, s17, 7')
    a('s_lshr_b32 s21, s33, 8')
    a('s_lshl_b32 s21, s21, 11')
    a('s_add_u32 s20, s20, s21')
    a(f's_add_u32 s20, s20, {PFL}')
    a(f'buffer_load_dword v5, off, {SRD}, s20 sc1')
    a('s_waitcnt vmcnt(0)')
    a('v_readfirstlane_b32 s34, v5')
    uniform(a, 's34')
    a('s_bitcmp1_b32 s34, s19')
    a('s_cbranch_scc1 wp_rep')
    a('s_barrier')
    a('s_cmp_lt_u32 s33, 256')
    a('s_cbranch_scc1 wp_B')
    a('s_branch wp_A0')
    a.label('wp_done')

JOBS = None
def worker_all(a):
    import s4d, gemm, tok, t2srv
    JS = SRD
    JO = CNT_OFF + JOBC
    LD = 'sc1' if FUSE else ''
    N0 = 224 if FUSE else 0
    NJ = 1248
    tok.PEEK = JS
    if FUSE: worker_prep(a)
    a('s_load_dwordx2 s[36:37], s[0:1], 112')
    a('s_waitcnt lgkmcnt(0)')
    a(f's_mov_b32 s92, s36\ns_and_b32 s93, s37, 0xffff\ns_mov_b32 s94, {2048*896*2}\ns_mov_b32 s95, 0x20000')
    def ask():
        lb = a.newlabel('ask')
        a('s_cmp_lg_u32 s16, 0')
        a(f's_cbranch_scc1 {lb}')
        a('v_mov_b32 v250, 1')
        a(f'v_mov_b32 v251, {JO}')
        a('s_mov_b64 exec, 1')
        a(f'buffer_atomic_add v250, v251, {JS}, 0 offen sc0')
        a('s_mov_b64 exec, -1')
        a.label(lb)
    if FUSE:
        a('s_mov_b32 s97, s39')
        a('s_cmp_lg_u32 s96, 0')
        a('s_cbranch_scc1 wk_next')
    else: a('s_mov_b32 s96, 0')
    ask()
    a('s_branch wk_next')
    a.label('wk_loop')
    a('s_waitcnt vmcnt(0) lgkmcnt(0)')
    if not FUSE:
        a('s_cmp_eq_u32 s96, 1')
        a('s_cbranch_scc1 wk_ask')
        a('s_mov_b32 s96, 1')
        staff_check(a, 'wk_ask', 0)
    a.label('wk_ask')
    a('v_readfirstlane_b32 s22, v250')
    a(f's_cmp_ge_u32 s22, {NJ}')
    a('s_cbranch_scc1 wk_next')
    ask()
    a.label('wk_next')
    evlog(a, 9005)
    a('v_mov_b32 v6, 160000')
    a('s_waitcnt vmcnt(0)')
    a('s_barrier')
    a('s_cmp_lg_u32 s16, 0')
    a('s_cbranch_scc1 wk_n1')
    a('s_mov_b64 exec, 1')
    a('ds_write_b32 v6, v250')
    a('s_mov_b64 exec, -1')
    a('s_waitcnt lgkmcnt(0)')
    a.label('wk_n1')
    a('s_barrier')
    a('ds_read_b32 v4, v6')
    a('s_waitcnt lgkmcnt(0)')
    a('v_readfirstlane_b32 s3, v4')
    evlog(a, 's3')
    a(f's_cmp_ge_u32 s3, {NJ}')
    a('s_cbranch_scc1 wk_done')
    a('v_mov_b32 v250, 0')
    a(f'v_mov_b32 v251, {JO}')
    lanes(a)
    if FUSE:
        a('s_cmp_ge_u32 s3, 224')
        a('s_cbranch_scc1 wk_n0')
        a('s_mov_b32 s18, 0')
        a('s_and_b32 s17, s3, 15')
        a('s_add_u32 s17, s17, 16')
        a('s_lshr_b32 s34, s3, 4')
        a('s_add_u32 s35, s34, 1')
        a('s_branch wk_gemm')
        a.label('wk_n0')
        a('s_cmp_eq_u32 s97, 0')
        a('s_cbranch_scc1 wk_n2')
        a('v_mov_b32 v250, s3')
        for x in ('s96, 1', 's97, 1', 's39, 0', 's37, 0', 's38, 0', 's32, 0'): a('s_mov_b32 ' + x)
        a('s_branch wp_all')
        a.label('wk_n2')
    a('s_cmp_ge_u32 s3, 736')
    a('s_cbranch_scc1 wk_tok')
    a('s_cmp_ge_u32 s3, 624')
    a('s_cbranch_scc1 wk_s4d')
    a('s_cmp_ge_u32 s3, 432')
    a('s_cbranch_scc1 wk_full')
    a('s_cmp_ge_u32 s3, 400')
    a('s_cbranch_scc1 wk_srv')
    a('s_and_b32 s17, s3, 15')
    a('s_add_u32 s17, s17, 16')
    a('s_cmp_ge_u32 s3, 336')
    a('s_cbranch_scc1 wk_half')
    a('s_mov_b32 s18, 1')
    a('s_sub_u32 s34, s3, 224')
    a('s_lshr_b32 s34, s34, 4')
    a('s_lshl_b32 s34, s34, 1')
    a('s_add_u32 s35, s34, 2')
    a('s_branch wk_gemm')
    a.label('wk_half')
    a('s_sub_u32 s20, s3, 336')
    a('s_lshr_b32 s18, s20, 5')
    a('s_add_u32 s18, s18, 2')
    a('s_bitcmp1_b32 s20, 4')
    a('s_cselect_b32 s34, 7, 0')
    a('s_add_u32 s35, s34, 7')
    a('s_branch wk_gemm')
    a.label('wk_full')
    a('s_sub_u32 s20, s3, 368')
    a('s_and_b32 s17, s20, 15')
    a('s_lshr_b32 s18, s20, 4')
    a('s_cmp_lt_u32 s18, 8')
    a('s_cselect_b32 s21, 16, 0')
    a('s_add_u32 s17, s17, s21')
    a('s_and_b32 s18, s18, 7')
    a('s_mov_b32 s34, 0')
    a('s_mov_b32 s35, 14')
    a.label('wk_gemm')
    gemm.gemm_body(a, 'wg', 's18', 's17', st='sc1', signal=True, ld=LD)
    a('s_branch wk_loop')
    a.label('wk_srv')
    a('s_and_b32 s18, s3, 15')
    a('s_lshr_b32 s19, s3, 4')
    a('s_and_b32 s19, s19, 1')
    t2srv.t2srv_body(a, 'ws', 's18', 's19', 'cA_abort', ld=LD)
    a('v_mov_b32 v250, 0')
    a('s_branch wk_loop')
    a.label('wk_s4d')
    a('s_sub_u32 s3, s3, 624')
    s4d.s4d_setup(a)
    s4d.s4d_item(a, 'wk', 's3')
    a('s_branch wk_loop')
    a.label('wk_tok')
    a('s_sub_u32 s3, s3, 736')
    a('s_cmp_ge_u32 s3, 512')
    a('s_cbranch_scc1 wk_done')
    a('s_lshr_b32 s17, s3, 3')
    a('s_and_b32 s18, s3, 3')
    a('s_bitcmp1_b32 s3, 2')
    a('s_cbranch_scc1 wk_toko')
    tok.tokp_body(a, 's17', 's18', ld='sc1', st='sc1', sync='wp', ldx=LD)
    a('s_branch wk_loop')
    a.label('wk_toko')
    tok.toko_body(a, 's17', 's18', ld='sc1', sync='wo', OUT='s[92:95]')
    a('s_branch wk_loop')
    a.label('wp_abort')
    a.label('wo_abort')
    a('s_branch cA_abort')
    a.label('wk_done')

def gen_chain_kernel(name='main_kernel', worker=None):
    a = Asm()
    a.raw(kernel_header(name))
    a('s_cmp_ge_u32 s2, 256')
    a('s_cbranch_scc1 ch_end')
    a('s_load_dwordx2 s[4:5], s[0:1], 120')
    a('s_load_dwordx2 s[6:7], s[0:1], 128')
    a('s_load_dwordx8 s[40:47], s[0:1], 72')
    a('s_load_dwordx4 s[48:51], s[0:1], 56')
    if CODE_PF: code_prefetch(a, name, 'ch_end', 130000, 60)
    a('s_mov_b32 s32, 0')
    a('s_getreg_b32 s3, hwreg(HW_REG_XCC_ID)')
    a('s_and_b32 s3, s3, 15')
    a('v_lshrrev_b32 v1, 6, v0')
    a('v_readfirstlane_b32 s16, v1')
    a('s_waitcnt lgkmcnt(0)')
    a('s_mov_b32 s8, s6\ns_and_b32 s9, s7, 0xffff\ns_mov_b32 s10, 0x10000000\ns_mov_b32 s11, 0x20000')
    a('s_mov_b32 s12, s4\ns_and_b32 s13, s5, 0xffff\ns_mov_b32 s14, 256\ns_mov_b32 s15, 0x20000')
    if EVLOG:
        a('s_lshl_b32 s100, s2, 2')
        a('s_add_u32 s100, s100, s16')
        a('s_lshl_b32 s100, s100, 8')
        a(f's_add_u32 s100, s100, {EV_OFF}')
    evlog(a, 9000)
    if FUSE:
        a('v_mov_b32 v252, 0x40000000')
        a('v_cmp_eq_u32 vcc, 0, v0')
        a('v_cndmask_b32 v252, v252, v0, vcc')
        a(f's_cmp_lg_u32 s3, {XCD_SEL}')
        a('s_cbranch_scc1 ch_worker')
        a('s_cmp_lg_u32 s16, 0')
        a('s_cbranch_scc1 ch_worker')
        a('v_mov_b32 v249, 1')
        a('s_mov_b64 exec, 1')
        a(f'buffer_atomic_add v249, v252, {DBG}, 0 offen sc0')
        a('s_mov_b64 exec, -1')
        a('s_branch ch_worker')
    a(f's_cmp_lg_u32 s3, {XCD_SEL}')
    a('s_cbranch_scc1 ch_worker')
    a('v_mov_b32 v4, 1')
    a('s_mov_b32 s18, 0')
    a.label('ch_take')
    a('v_mov_b32 v5, 0')
    wg_atomic(a, 'ch_el', 's17')
    a('s_and_b32 s17, s17, 0xffff')
    a('s_cmp_lt_u32 s17, 32')
    a('s_cbranch_scc1 ch_role')
    if FUSE:
        lanes(a)
        a('s_branch wp_all')
    a('s_cmp_eq_u32 s18, 0')
    a('s_cbranch_scc1 ch_worker')
    a('s_branch ch_end')
    a.label('ch_role')
    if FUSE:
        a('s_mov_b32 s91, s17')
        a.label('ch_role2')
        a('s_mov_b32 s17, s91')
        evlog(a, 9001)
    lane_consts(a)
    a('s_mov_b32 s19, 0')
    a('s_mov_b32 s18, 1')
    a(f's_mov_b32 s20, {EXCH_OFF}')
    a(f's_mov_b32 s21, {EXCH_OFF + EXCH_B}')
    a(f's_mov_b32 s23, {EXCH_OFF + 4096}')
    a('s_lshr_b32 s89, s17, 4')
    a('s_lshl_b32 s89, s89, 2')
    a('s_add_u32 s89, s89, s16')
    a('s_and_b32 s17, s17, 15')
    for p in range(8):
        a(f's_cmp_eq_u32 s89, {p}')
        a(f's_cbranch_scc1 ch_init{p}')
    a('s_branch ch_end')
    for p in range(8):
        a.label(f'ch_init{p}')
        if p < 4: init_score(a, p)
        else: init_value(a, p - 4)
        if p == 6 or (p == 3 and SC_TOUCH): vo_wait0(a, f'ch_vw{p}')
        a('s_mov_b32 s30, 0')
        a('v_mov_b32 v8, 0')
        a.label(f'ch_md{p}')
        a(f'buffer_load_dword v9, v8, {DBG}, 0 offen sc1')
        a('s_waitcnt vmcnt(0) lgkmcnt(0)')
        a('v_readfirstlane_b32 s22, v9')
        a('s_and_b32 s31, s22, 0xffff')
        a('s_cmp_ge_u32 s31, 32')
        a(f's_cbranch_scc1 ch_go{p}')
        a('s_sleep 2')
        a('s_add_u32 s30, s30, 1')
        a(f's_cmp_lt_u32 s30, {SPIN_LIMIT*8}')
        a(f's_cbranch_scc1 ch_md{p}')
        a('s_branch ch_end')
        a.label(f'ch_go{p}')
        evlog(a, 9003)
        if EVLOG: a('v_mov_b32 v36, 0\nv_mov_b32 v37, 0')
        if DIAG: a('s_memtime s[90:91]')
        a('s_mov_b32 s31, 0')
        a('s_lshr_b32 s22, s22, 16')
        a('s_cmp_lg_u32 s22, 0')
        role = 'sc' if p < 4 else 'va'
        a(f's_cbranch_scc1 cB_{role}{p & 3}_loop')
        a(f's_branch cA_{role}{p & 3}_loop')
    for tag, st in (('cA', ''), ('cB', 'sc1')):
        for w in range(4): gen_score(a, w, st, tag)
        for w in range(4): gen_value(a, w, st, tag)
        a.label(f'{tag}_abort')
        a('v_mov_b32 v4, 0xdead')
        a('v_mov_b32 v5, 16')
        a(f'buffer_store_dword v4, v5, {DBG}, 0 offen')
        a('s_branch ch_end')
        a.label(f'{tag}_done')
        evlog(a, 9004)
        if DIAG:
            a('s_memtime s[60:61]')
            a('s_waitcnt lgkmcnt(0)')
            a('s_sub_u32 s60, s60, s90')
            a('v_mov_b32 v4, s60')
            a('s_cmp_eq_u32 s89, 3')
            a('s_cselect_b32 s22, 8, 0x1000')
            a('v_mov_b32 v5, s22')
            a(f'buffer_store_dword v4, v5, {DBG}, 0 offen')
            a('s_mov_b64 exec, 1')
            for k in range(4):
                a(f's_bfe_u32 s22, s31, {(8 << 16) | (8 * k)}')
                a(f'v_mov_b32 v{4+k}, s22')
                a(f'v_mov_b32 v10, {32 + 4*k}')
                a(f'buffer_atomic_add v{4+k}, v10, {DBG}, 0 offen')
                a.nop(2)
            a('s_mov_b64 exec, -1')
        stamp_calib(a, f'{tag}_cal')
        a('s_branch ch_end')
    a.label('ch_worker')
    worker_all(a)
    a.label('ch_end')
    a('s_endpgm')
    return a
```

```python
from asmlib import *
from layout import *
WS = 's[8:11]'
PB = 28 * KB

def gemm_body(a, P, rb_s, cg_s, st='', signal=False, ld=''):
    a(f's_lshl_b32 s20, {rb_s}, 4')
    a('s_lshl_b32 s21, s16, 2')
    a('s_add_u32 s20, s20, s21')
    a(f's_mul_i32 s21, s20, {14*KB}')
    a(f's_add_u32 s21, s21, {XF_OFF}')
    for f in range(56):
        if f % 4 == 0: a(f's_add_u32 s22, s21, {f*1024}')
        a(f'buffer_load_dwordx4 a[{4*f}:{4*f+3}], v2, {WS}, s22 offen offset:{(f & 3)*1024} {ld}')
    a('s_waitcnt vmcnt(40)')
    a(f's_mul_i32 s23, {cg_s}, {CUW_B}')
    a('s_and_b32 s22, s16, 1')
    a('s_mul_i32 s22, s22, 7168')
    a('s_add_u32 s23, s23, s22')
    a(f's_add_u32 s23, s23, {WF_A}')
    a('s_lshr_b32 s22, s16, 1')
    a(f's_mul_i32 s22, s22, {TILE_B}')
    a('s_add_u32 s23, s23, s22')
    a('s_mul_i32 s27, s16, 7168')
    a('s_lshr_b32 s28, s20, 1')
    a(f's_cmp_lt_u32 {cg_s}, 16')
    a(f's_cbranch_scc0 {P}_vo')
    for path in ('f', 'vo'):
        isF = path == 'f'
        L = lambda n: f'{P}_{path}_{n}'
        if not isF: a.label(f'{P}_vo')
        if isF: a('s_add_u32 s23, s23, s22')
        def dma(jreg, bufreg):
            if isF:
                a(f's_lshr_b32 s24, {jreg}, 1')
                a('s_lshl_b32 s24, s24, 2')
                a(f's_and_b32 s25, {jreg}, 1')
                a('s_add_u32 s24, s24, s25')
            else:
                a(f's_lshl_b32 s24, {jreg}, 1')
            a(f's_mul_i32 s24, s24, {TILE_B}')
            a('s_add_u32 s24, s24, s23')
            a(f's_add_u32 m0, {bufreg}, s27')
            for f in range(7):
                if f == 4:
                    a('s_add_u32 m0, m0, 4096')
                    a('s_add_u32 s24, s24, 4096')
                a(f'buffer_load_dwordx4 v2, {WS}, s24 offen offset:{(f & 3)*1024} {ld} lds')
        if isF:
            a('s_lshl_b32 s29, s28, 4')
            a(f's_add_u32 s29, s29, {cg_s}')
            a(f's_mul_i32 s29, s29, {GSH_B}')
            a(f's_add_u32 s29, s29, {F_OFF}')
        else:
            a(f's_sub_u32 s29, {cg_s}, 16')
            a('s_lshl_b32 s29, s29, 6')
            a('s_add_u32 s29, s29, s28')
            a(f's_mul_i32 s29, s29, {GSH_B}')
            a(f's_add_u32 s29, s29, {VO_OFF}')
            a('v_lshlrev_b32 v6, 4, v3')
            a('v_mul_u32_u24 v7, 12, v3')
            a('v_add_u32 v7, 48, v7')
        a('s_mov_b32 s31, 0')
        dma('s34', 's31')
        a('s_sub_u32 s36, s35, 1'); a('s_add_u32 s30, s34, 1'); a('s_min_u32 s30, s30, s36'); a(f's_mov_b32 s31, {PB}')
        dma('s30', 's31')
        a('s_mov_b32 s19, s34')
        a('s_mov_b32 s32, 0')
        a(f's_mov_b32 s33, {2*PB}')
        a('s_waitcnt vmcnt(7)')
        a(f's_branch {L("in")}')
        a.label(L('loop'))
        a('s_waitcnt vmcnt(11)')
        a.label(L('in'))
        a('s_barrier')
        a('s_add_u32 s30, s19, 2')
        a('s_min_u32 s30, s30, s36')
        dma('s30', 's33')
        a('v_add_u32 v5, s32, v2')
        FR = 8; NF = 8; ACC = 40
        order = [(kk, tau) for kk in range(14) for tau in range(2)]
        def rd(i):
            kk, tau = order[i]; r = FR + 4 * (i % NF)
            a(f'ds_read_b128 v[{r}:{r+3}], v5 offset:{(tau*14 + kk)*1024}')
        PF = 6
        for i in range(PF): rd(i)
        for i, (kk, tau) in enumerate(order):
            if i + PF < 28: rd(i + PF)
            a(f's_waitcnt lgkmcnt({min(PF, 27 - i)})')
            r = FR + 4 * (i % NF)
            for j in range(4):
                d = ACC + 16 * tau + 4 * j; x = (j * 14 + kk) * 4
                c = '0' if kk == 0 else f'v[{d}:{d+3}]'
                if isF: a(f'v_mfma_f32_16x16x32_bf16 v[{d}:{d+3}], v[{r}:{r+3}], a[{x}:{x+3}], {c}')
                else: a(f'v_mfma_f32_16x16x32_bf16 v[{d}:{d+3}], a[{x}:{x+3}], v[{r}:{r+3}], {c}')
        O = 72
        if isF:
            a('s_lshl_b32 s24, s19, 10')
            a('s_add_u32 s24, s24, s29')
            for j in range(4):
                o = O + 4 * j
                for tau in range(2):
                    d = ACC + 16 * tau + 4 * j
                    a(f'v_cvt_pk_bf16_f32 v{o+2*tau}, v{d}, v{d+1}')
                    a(f'v_cvt_pk_bf16_f32 v{o+2*tau+1}, v{d+2}, v{d+3}')
                a(f's_add_u32 s25, s24, {(j >> 1) * 16 * GSH_B + (j & 1) * 14 * 1024}')
                a(f'buffer_store_dwordx4 v[{o}:{o+3}], v2, {WS}, s25 offen {st}')
        else:
            a(f's_add_u32 s25, s29, {GSH_B}')
            for tau in range(2):
                a('s_lshl_b32 s24, s19, 5')
                a(f's_add_u32 s24, s24, {16*tau}')
                a('v_add_u32 v88, s24, v4')
                a('v_mul_u32_u24 v89, 2341, v88')
                a('v_lshrrev_b32 v89, 16, v89')
                a('v_mul_u32_u24 v92, 28, v89')
                a('v_sub_u32 v92, v88, v92')
                a('v_cmp_gt_u32 vcc, 16, v92')
                a('v_mul_u32_u24 v89, 84, v89')
                a('v_cndmask_b32 v92, v7, v6, vcc')
                a('v_add3_u32 v88, v88, v89, v92')
                a(f'v_lshlrev_b32 v{90+tau}, 4, v88')
                for sg in range(2):
                    o = O + 8 * tau + 4 * sg
                    d = ACC + 16 * tau + 8 * sg
                    for c in range(4): a(f'v_cvt_pk_bf16_f32 v{o+c}, v{d+c}, v{d+4+c}')
                    a(f'buffer_store_dwordx4 v[{o}:{o+3}], v{90+tau}, {WS}, {"s25" if sg else "s29"} offen {st}')
        a('s_mov_b32 s33, s32')
        a(f's_add_u32 s32, s32, {PB}')
        a(f's_cmp_eq_u32 s32, {3*PB}')
        a('s_cselect_b32 s32, 0, s32')
        a('s_add_u32 s19, s19, 1')
        a('s_cmp_lt_u32 s19, s35')
        a(f's_cbranch_scc1 {L("loop")}')
        a(f's_branch {P}_done')
    a.label(f'{P}_done')
    if signal:
        a(f's_lshl_b32 s20, {rb_s}, 4')
        a(f's_and_b32 s21, {cg_s}, 15')
        a('s_add_u32 s20, s20, s21')
        a('s_lshl_b32 s20, s20, 7')
        a(f's_cmp_lt_u32 {cg_s}, 16')
        a(f's_cselect_b32 s21, {FC}, {VOC}')
        a('s_add_u32 s20, s20, s21')
        a(f's_add_u32 s20, s20, {CNT_OFF}')
        a('s_sub_u32 s21, s35, s34')
        a('s_lshl_b32 s21, s21, 2')
        a('v_mov_b32 v5, s21')
        a('v_mov_b32 v6, 0')
        a('s_waitcnt vmcnt(0)')
        a('s_barrier')
        a('s_cmp_lg_u32 s16, 0')
        a(f's_cbranch_scc1 {P}_sg')
        a('s_mov_b64 exec, 1')
        a(f'buffer_atomic_add v5, v6, {WS}, s20 offen')
        a('s_mov_b64 exec, -1')
        a.label(f'{P}_sg')

def gen_gemm(name='gemm_kernel'):
    a = Asm(); a.raw(kernel_header(name))
    a('s_cmp_ge_u32 s2, 256')
    a('s_cbranch_scc1 gm_end')
    a('s_load_dwordx2 s[6:7], s[0:1], 128')
    a('v_lshrrev_b32 v1, 6, v0')
    a('v_readfirstlane_b32 s16, v1')
    a('v_and_b32 v1, 63, v0')
    a('v_lshlrev_b32 v2, 4, v1')
    a('v_lshrrev_b32 v3, 4, v1')
    a('v_and_b32 v4, 15, v1')
    a('s_waitcnt lgkmcnt(0)')
    a('s_mov_b32 s8, s6\ns_and_b32 s9, s7, 0xffff\ns_mov_b32 s10, 0x10000000\ns_mov_b32 s11, 0x20000')
    a('s_and_b32 s17, s2, 7')
    a('s_lshl_b32 s17, s17, 2')
    a('s_lshr_b32 s18, s2, 6')
    a('s_add_u32 s17, s17, s18')
    a('s_lshr_b32 s18, s2, 3')
    a('s_and_b32 s18, s18, 7')
    a('s_mov_b32 s34, 0\ns_mov_b32 s35, 14')
    gemm_body(a, 'gm', 's18', 's17')
    a.label('gm_end')
    a('s_endpgm')
    return a

if __name__ == '__main__':
    import sys
    a = gen_gemm()
    out = ['; @launch kernel=gemm_kernel grid=(256,1,1) block=(256,1,1) lds=86016',
           '.amdgcn_target "amdgcn-amd-amdhsa--gfx950"', '.text', a.text(), '.section .rodata,"a"', kernel_desc('gemm_kernel', 352, 128)]
    open(sys.argv[1], 'w').write('\n'.join(out) + '\n')
    print('instructions', a.count)
```

```python
import numpy as np
KB = 1024
UNIT = 2048
TILE_B = 7 * UNIT
CUW_B = 28 * TILE_B
WF_A = 0
WF_B = WF_A + 16 * CUW_B
G_OFF = WF_B + 16 * CUW_B
GSH_B = 28 * KB
VO_OFF = G_OFF + 64 * 16 * GSH_B
XF_OFF = VO_OFF + 64 * 16 * GSH_B
XM_OFF = XF_OFF + 128 * 14 * KB
EXCH_OFF = XM_OFF + 128 * 14 * KB
EXCH_B = 17 * KB + 256
MEMX = 0
PM = 7 * KB
PX = 9 * KB
F1 = 17 * KB
F2 = 17 * KB + 128
EXCH_END = EXCH_OFF + 66 * EXCH_B
T2_OFF = (EXCH_END + 4095) // 4096 * 4096
PT_OFF = T2_OFF + 65 * 16 * 8 * KB
PT_B = 20 * KB
KS_OFF = PT_OFF + 128 * PT_B
MEMG_OFF = KS_OFF
CNT_OFF = MEMG_OFF + 64 * 7 * KB
VOC = 0; FC = 16 * KB; PTC = 32 * KB; T2F = 40 * KB; JOBC = 56 * KB; AC = 56 * KB + 512; CNT_B = AC + 8192
PFL = CNT_OFF + AC
F_OFF = G_OFF
POISON = 0xFFFFFFFF

def memcol(ks, gA, half, s):
    return 64 * ks + 16 * gA + 4 * (s >> 1) + 2 * half + (s & 1)
def acol(kappa, q, n):
    g, r = n >> 2, n & 3
    return memcol(kappa, g, q & 1, 4 * (q >> 1) + r)
def vcol(v, cl):
    return 16 * v + cl if cl < 16 else 256 + 12 * v + cl - 16
def tokslot(g, s):
    return 16 * (s & 1) + 4 * g + (s >> 1)

def f2bf_bits(f):
    u = np.ascontiguousarray(f, dtype=np.float32).view(np.uint32)
    return ((u + 0x7FFF + ((u >> 16) & 1)) >> 16).astype(np.uint16)

def build_wfrag(W, ncols):
    out = np.zeros((28, 7, 2, 64, 8), np.uint16)
    lane = np.arange(64); g = lane >> 4; n = lane & 15
    for t in range(28):
        cols = np.asarray(ncols[t])[n]
        for ks in range(7):
            for hb in range(2):
                k = 64 * ks + 32 * hb + 8 * g[:, None] + np.arange(8)[None, :]
                out[t, ks, hb] = W[k, cols[:, None]]
    return out
def build_WFA(ATb):
    ncols = [[acol(t >> 2, t & 3, n) for n in range(16)] for t in range(28)]
    return np.stack([build_wfrag(ATb[h], ncols) for h in range(16)])
def build_WFB(Bb):
    Ball = np.concatenate([Bb[h] for h in range(16)], 1)
    res = []
    for v in range(16):
        ncols = [[((16 * t + n) // 28) * 448 + vcol(v, (16 * t + n) % 28) for n in range(16)] for t in range(28)]
        res.append(build_wfrag(Ball, ncols))
    return np.stack(res)
_Xcols = np.array([[[[memcol(ks, g, half, s) for s in range(8)] for g in range(4)] for half in range(2)] for ks in range(7)])
def build_M_order(rows):
    R = rows.shape[0] // 16
    r3 = rows.reshape(R, 16, 448)
    o = r3[:, :, _Xcols]
    return np.ascontiguousarray(o.transpose(0, 2, 3, 4, 1, 5)).reshape(R, 7, 2, 64, 8)
def build_G(Gb):
    o = np.stack([build_M_order(Gb[h]) for h in range(16)])
    o = o.reshape(16, 64, 2, 7, 2, 64, 8).transpose(1, 0, 2, 3, 4, 5, 6)
    return np.ascontiguousarray(o)
def build_VO(VOb):
    ts = np.array([[tokslot(g, s) for s in range(8)] for g in range(4)])
    vc = np.array([[vcol(v, cl) for cl in range(28)] for v in range(16)])
    V = VOb.reshape(16, 64, 32, 448)
    o = V[:, :, ts, :]
    o = o[..., vc]
    return np.ascontiguousarray(o.transpose(4, 1, 0, 2, 5, 3))
def build_xfrag(xb):
    x4 = xb.reshape(128, 16, 14, 4, 8)
    return np.ascontiguousarray(x4.transpose(0, 2, 3, 1, 4)).reshape(128, 14, 64, 8)
def build_memx(memb):
    o = memb[:, _Xcols]
    return np.ascontiguousarray(o.transpose(1, 3, 2, 0, 4)).reshape(7, 64, 8)
def decode_memx(mx):
    o = mx.reshape(7, 4, 2, 8, 8)
    res = np.zeros((8, 448), np.uint16)
    for ks in range(7):
        for g in range(4):
            for half in range(2):
                res[:, _Xcols[ks, half, g]] = o[ks, g, half]
    return res
if __name__ == "__main__":
    print("EXCH_OFF", EXCH_OFF, "END", EXCH_END, EXCH_END / 2**20)
    assert sorted(vcol(v, cl) for v in range(16) for cl in range(28)) == list(range(448))
    assert sorted(acol(k, q, n) for k in range(7) for q in range(4) for n in range(16)) == list(range(448))
    m = np.arange(8 * 448).reshape(8, 448).astype(np.uint16)
    assert (decode_memx(build_memx(m)) == m).all()
    print("T2_OFF", T2_OFF, "PT_OFF", PT_OFF, "KS_OFF", KS_OFF, KS_OFF / 2**20)
```

```python
from asmlib import *
from layout import *
import struct
WS = 's[8:11]'
def f32bits(x): return struct.unpack('<I', struct.pack('<f', x))[0]
SIGMA = f32bits(1.4426950408889634 / 16.0)
W_BYTES = 448 * 4096 * 2
PST = ''
PF2 = 1
XALL = 0
RING = 0

def srd(a, d, lo, hi, nbytes):
    a(f's_mov_b32 s{d}, s{lo}')
    a(f's_and_b32 s{d+1}, s{hi}, 0xffff')
    a(f's_mov_b32 s{d+2}, {nbytes}')
    a(f's_mov_b32 s{d+3}, 0x20000')

def prep_item(a, P, item_s, st='', signal=None, mode='mix', mid=None, defer=False):
    a('s_load_dwordx4 s[40:43], s[0:1], 72')
    a('s_load_dwordx4 s[44:47], s[0:1], 88')
    a('s_mov_b32 s28, s16')
    if mode == 'A':
        a(f's_mul_i32 s17, {item_s}, 147')
        a('s_lshr_b32 s17, s17, 10')
        a('s_mul_i32 s23, s17, 7')
        a(f's_sub_u32 s18, {item_s}, s23')
        a('s_mov_b32 s19, 0')
    else:
        a(f's_and_b32 s20, {item_s}, 7')
        a(f's_lshr_b32 s21, {item_s}, 3')
        a('s_mul_i32 s22, s21, 37')
        a('s_lshr_b32 s22, s22, 8')
        a('s_mul_i32 s23, s22, 7')
        a('s_sub_u32 s18, s21, s23')
        a('s_lshl_b32 s20, s20, 2')
        a('s_add_u32 s20, s20, s22')
        if mode == 'mix':
            a('s_lshr_b32 s19, s20, 4')
            a('s_and_b32 s17, s20, 15')
        else:
            a('s_mov_b32 s19, 1')
            a('s_lshr_b32 s17, s20, 1')
            a('s_and_b32 s20, s20, 1')
            a('s_lshl_b32 s20, s20, 3')
            a('s_add_u32 s28, s28, s20')
    a('s_waitcnt lgkmcnt(0)')
    a('s_cmp_eq_u32 s19, 0')
    a('s_cselect_b32 s52, s40, s44')
    a('s_cselect_b32 s53, s41, s45')
    a('s_cselect_b32 s54, s42, s46')
    a('s_cselect_b32 s55, s43, s47')
    a(f's_cselect_b32 s24, {SIGMA}, 1.0')
    srd(a, 60, 52, 53, W_BYTES)
    srd(a, 56, 54, 55, W_BYTES)
    SA = 's[60:63]'; SB = 's[56:59]'
    BST = 128
    def touch(row0, nlines, dst, vt):
        per = (nlines + 6) // 7
        a(f's_mul_i32 s20, s18, {per}')
        a(f'v_mov_b32 v{vt+1}, {per-1}')
        a(f'v_min_u32 v{vt}, v0, v{vt+1}')
        a(f'v_add_u32 v{vt}, s20, v{vt}')
        a(f'v_mov_b32 v{vt+1}, {nlines-1}')
        a(f'v_min_u32 v{vt}, v{vt}, v{vt+1}')
        a(f'v_lshrrev_b32 v{vt+1}, 2, v{vt}')
        a(f'v_and_b32 v{vt}, 3, v{vt}')
        a(f'v_lshlrev_b32 v{vt}, 7, v{vt}')
        a(f'v_lshl_add_u32 v{vt}, v{vt+1}, 13, v{vt}')
        a('s_lshl_b32 s20, s17, 9')
        if row0: a(f's_add_u32 s20, s20, {row0*8192}')
        a(f'buffer_load_dword v{dst}, v{vt}, {SA}, s20 offen')
    if PF2 == 1: touch(0, 1792, 203, 5)
    if PF2 == 2: touch(0, 1024, 203, 5)
    a('v_lshrrev_b32 v5, 5, v1')
    a('v_and_b32 v6, 31, v1')
    for i in range(16):
        a(f'v_add_u32 v7, {2*i}, v5')
        a('v_and_b32 v8, 3, v7')
        a(f'v_or_b32 v8, {((2*i) >> 3) << 2}, v8')
        a('v_xor_b32 v8, v6, v8')
        a('v_lshlrev_b32 v8, 4, v8')
        a(f'v_lshl_add_u32 v{16+i}, v7, 13, v8')
    a('s_lshl_b32 s25, s16, 15')
    a('s_add_u32 s25, s25, 32768')
    a('s_lshl_b32 s26, s17, 9')
    def dma_pair(pexpr_s, buf):
        a(f's_min_u32 s27, {pexpr_s}, 13')
        a('s_lshl_b32 s27, s27, 18')
        a('s_add_u32 s27, s27, s26')
        for i in range(16):
            a(f's_add_u32 m0, s25, {buf*16384 + i*1024}')
            a(f'buffer_load_dwordx4 v{16+i}, {SA}, s27 offen lds')
    def two():
        dma_pair('s28', 0)
        a('s_add_u32 s29, s28, 4')
        dma_pair('s29', 1)
    if mode == 'mix':
        a('s_cmp_eq_u32 s19, 0')
        a(f's_cbranch_scc0 {P}_pr_stB')
    if mode != 'Bhalf':
        a('s_lshl_b32 s27, s18, 19')
        a('s_add_u32 s27, s27, s26')
        a('s_lshl_b32 s29, s16, 4')
        for i in range(8):
            a(f'v_add_u32 v7, {2*i}, v5')
            a('v_xor_b32 v8, v6, v7')
            a('v_lshlrev_b32 v8, 4, v8')
            a('v_add_u32 v7, s29, v7')
            a('v_lshl_add_u32 v8, v7, 13, v8')
            a('s_lshl_b32 s30, s16, 13')
            a(f's_add_u32 m0, s30, {i*1024}')
            a(f'buffer_load_dwordx4 v8, {SB}, s27 offen lds')
        if PF2:
            a('s_waitcnt vmcnt(0)')
            a('s_barrier')
            two()
            if PF2 == 2: touch(256, 768, 95, 92)
        else:
            two()
            a('s_waitcnt vmcnt(32)')
            a('s_barrier')
        for q in range(4):
            a('v_lshrrev_b32 v7, 2, v4')
            a('v_lshlrev_b32 v7, 4, v7')
            a('v_and_b32 v8, 2, v4')
            a('v_lshl_add_u32 v7, v8, 1, v7')
            a('v_and_b32 v8, 1, v4')
            a('v_add_u32 v7, v7, v8')
            a(f'v_add_u32 v7, {8*(q>>1) + 2*(q&1)}, v7')
            a('v_and_b32 v9, 15, v7')
            for k3 in range(4):
                a(f'v_or_b32 v10, {k3*4}, v3')
                a('v_xor_b32 v10, v10, v9')
                a('v_lshlrev_b32 v10, 4, v10')
                a('v_lshl_add_u32 v10, v7, 9, v10')
                for kh in range(2):
                    r = BST + (q * 8 + kh * 4 + k3) * 4
                    a(f'ds_read_b128 v[{r}:{r+3}], v10 offset:{kh*256}')
            a('s_waitcnt lgkmcnt(0)')
            a(f's_mul_i32 s30, s17, {CUW_B}')
            a(f's_mul_i32 s31, s18, {4*TILE_B}')
            a('s_add_u32 s30, s30, s31')
            a(f's_add_u32 s30, s30, {WF_A + q*TILE_B}')
            a(f'v_add_u32 v{12+q}, s30, v2')
        if mode == 'mix': a(f's_branch {P}_pr_main')
    if mode != 'A':
        a.label(f'{P}_pr_stB')
        a('s_mul_i32 s27, s17, 229376')
        a('s_lshl_b32 s30, s18, 7')
        a('s_add_u32 s27, s27, s30')
        a('v_lshrrev_b32 v7, 3, v1')
        a('v_and_b32 v8, 7, v1')
        a('s_lshl_b32 s29, s16, 6')
        a('v_add_u32 v7, s29, v7')
        a('v_mul_u32_u24 v7, 896, v7')
        a('v_lshl_add_u32 v7, v8, 4, v7')
        for i in range(8):
            a('s_lshl_b32 s30, s16, 13')
            a(f's_add_u32 m0, s30, {i*1024}')
            a(f's_add_u32 s31, s27, {i*8*896}')
            a(f'buffer_load_dwordx4 v7, {SB}, s31 offen lds')
        if PF2:
            a('s_waitcnt vmcnt(0)')
            a('s_barrier')
            two()
            if PF2 == 2: touch(256, 768, 95, 92)
        else:
            two()
            a('s_waitcnt vmcnt(32)')
            a('s_barrier')
        a('v_lshrrev_b32 v7, 2, v4')
        a('v_lshl_add_u32 v7, v3, 3, v7')
        a('v_lshlrev_b32 v7, 7, v7')
        a('v_and_b32 v8, 3, v4')
        a('v_lshl_add_u32 v7, v8, 3, v7')
        for q in range(4):
            for kk in range(8):
                r = BST + (q * 8 + kk) * 4
                for hf in range(2):
                    a(f'ds_read_b64_tr_b16 v[{r+2*hf}:{r+2*hf+1}], v7 offset:{(32*kk + 4*hf)*128 + q*32}')
                if kk == 3 or kk == 7: a('s_waitcnt lgkmcnt(0)')
            a('s_lshl_b32 s30, s18, 6')
            a(f's_add_u32 s30, s30, {16*q}')
            a('v_add_u32 v8, s30, v4')
            a('v_subrev_u32 v9, 256, v8')
            a('v_mul_u32_u24 v11, 171, v9')
            a('v_lshrrev_b32 v11, 11, v11')
            a('v_mul_u32_u24 v33, 12, v11')
            a('v_sub_u32 v33, v9, v33')
            a('v_add_u32 v33, 16, v33')
            a('v_lshrrev_b32 v10, 4, v8')
            a('v_cmp_gt_i32 vcc, 0, v9')
            a('v_cndmask_b32 v10, v11, v10, vcc')
            a('v_cndmask_b32 v32, v33, v4, vcc')
            a('s_mul_i32 s30, s17, 28')
            a('v_add_u32 v32, s30, v32')
            a('v_lshrrev_b32 v33, 4, v32')
            a('v_and_b32 v32, 15, v32')
            a(f's_mov_b32 s30, {CUW_B}')
            a('v_mul_lo_u32 v10, v10, s30')
            a(f'v_mul_u32_u24 v33, {TILE_B}, v33')
            a('v_add_u32 v10, v10, v33')
            a('v_lshl_add_u32 v10, v3, 8, v10')
            a('v_lshl_add_u32 v10, v32, 4, v10')
            a(f'v_add_u32 v{12+q}, {WF_B}, v10')
    a.label(f'{P}_pr_main')
    a('v_lshrrev_b32 v7, 2, v4')
    a('v_lshlrev_b32 v7, 3, v7')
    a('v_and_b32 v8, 3, v4')
    a('v_add_u32 v7, v7, v8')
    for k3 in range(4):
        a(f'v_or_b32 v10, {k3*4}, v3')
        a('v_xor_b32 v10, v10, v4')
        a('v_lshlrev_b32 v10, 4, v10')
        a('v_lshl_add_u32 v10, v7, 9, v10')
        a(f'v_add_u32 v{32+k3}, s25, v10')
    FR = 36
    ACC = 96
    FRS = [36, 64]
    NIT = 2 if mode == 'Bhalf' else 4
    for it in range(NIT):
        buf = it & 1
        a(f's_waitcnt vmcnt({([16, 16, 16, 0] if defer else [16, 20, 24, 4] if NIT == 4 else [16, 4])[it] + (1 if PF2 == 2 and it < 2 else 0)}) lgkmcnt(0)')
        for tau in range(2):
            for kk in range(8):
                r = 36 + 4 * kk
                a(f'ds_read_b128 v[{r}:{r+3}], v{32 + (kk & 3)} offset:{buf*16384 + tau*2048 + (kk >> 2)*256}')
            for kk in range(8):
                a(f's_waitcnt lgkmcnt({7-kk})')
                if tau == 1 and kk == 7 and it < 2 and NIT == 4:
                    a('s_add_u32 s29, s28, 8')
                    dma_pair('s29', buf)
                for q in range(4):
                    d = ACC + 16 * tau + 4 * q; b = BST + (q * 8 + kk) * 4
                    c = '0' if kk == 0 else f'v[{d}:{d+3}]'
                    a(f'v_mfma_f32_16x16x32_bf16 v[{d}:{d+3}], v[{36+4*kk}:{39+4*kk}], v[{b}:{b+3}], {c}')
        a('s_lshl_b32 s30, s28, 10')
        for q in range(4):
            o = 68 + 4 * q
            for tau in range(2):
                d = ACC + 16 * tau + 4 * q
                for r in range(4): a(f'v_mul_f32 v{d+r}, s24, v{d+r}')
                a(f'v_cvt_pk_bf16_f32 v{o+2*tau}, v{d}, v{d+1}')
                a(f'v_cvt_pk_bf16_f32 v{o+2*tau+1}, v{d+2}, v{d+3}')
            if defer and it < NIT - 1:
                for r in range(4): a(f'v_accvgpr_write_b32 a{16 + 16*it + 4*q + r}, v{o+r}')
            else:
                a(f'buffer_store_dwordx4 v[{o}:{o+3}], v{12+q}, {WS}, s30 offen {st}')
        a('s_add_u32 s28, s28, 4')
        if it == NIT - 2:
            a('s_cmp_lt_u32 s28, 14')
            a(f's_cbranch_scc0 {P}_wend')
    a.label(f'{P}_wend')
    if defer:
        assert NIT == 4
        for it in range(3):
            a(f's_lshl_b32 s30, s16, 10')
            if it: a(f's_add_u32 s30, s30, {it*4096}')
            for q in range(4):
                r = 16 + 16 * it + 4 * q
                a(f'buffer_store_dwordx4 a[{r}:{r+3}], v{12+q}, {WS}, s30 offen {st}')
    if mid: mid()
    if signal:
        a('s_add_u32 s20, s17, 8')
        a('s_add_u32 s21, s18, 24')
        a('s_cmp_eq_u32 s19, 0')
        a('s_cselect_b32 s20, s20, s21')
        a('s_lshl_b32 s20, s20, 2')
        a('v_mov_b32 v5, 1')
        a('v_mov_b32 v6, 0')
        a('s_waitcnt vmcnt(0)')
        a('s_mov_b64 exec, 1')
        a(f'buffer_atomic_add v5, v6, {signal}, s20 offen')
        a('s_mov_b64 exec, -1')

def xprep_item(a, P, item_s, st='', signal=None, early=None):
    a('s_load_dwordx4 s[48:51], s[0:1], 56')
    a('s_waitcnt lgkmcnt(0)')
    srd(a, 60, 48, 49, 2048 * 448 * 2)
    srd(a, 56, 50, 51, 8 * 448 * 2)
    a(f's_lshl_b32 s20, {item_s}, 8')
    a('v_add_u32 v5, s20, v0')
    a('s_mov_b32 s21, 0x924925')
    M28 = (1 << 24) // 28 + 1
    assert all((i * M28) >> 24 == i // 28 for i in range(57344))
    a(f's_mov_b32 s21, {M28}')
    def fills():
        NCH = (2 * EXCH_B + 48 * 128 if RING else 66 * EXCH_B) // 16
        a(f's_mov_b32 s23, {EXCH_OFF}')
        for k in range((NCH - 448 + 8191) // 8192):
            a(f'v_add_u32 v6, {448 + 8192*k}, v5')
            a(f'v_subrev_u32 v7, {(2 * EXCH_B if RING else F2)//16}, v6')
            a('v_mov_b32 v48, -1')
            a('v_mov_b32 v9, 0')
            a(f'v_cmp_gt_u32 vcc, {384 if RING else 8}, v7')
            a('v_cndmask_b32 v48, v48, v9, vcc')
            a('v_mov_b32 v49, v48\nv_mov_b32 v50, v48\nv_mov_b32 v51, v48')
            a('v_lshlrev_b32 v8, 4, v6')
            a(f'v_mov_b32 v7, {NCH}')
            a('v_cmp_lt_u32 vcc, v6, v7')
            a('s_and_saveexec_b64 s[30:31], vcc')
            a(f's_cbranch_execz {P}_np{k}')
            a(f'buffer_store_dwordx4 v[48:51], v8, {WS}, s23 offen {st}')
            a.label(f'{P}_np{k}')
            a('s_mov_b64 exec, -1')
            a.nop(2)
        N1 = 64 * 7 * KB // 16; N2 = N1 + CNT_B // 16
        a(f's_mov_b32 s23, {MEMG_OFF}')
        for k in range((N2 - 448 + 8191) // 8192):
            a(f'v_add_u32 v6, {448 + 8192*k}, v5')
            a('v_mov_b32 v48, -1')
            a('v_mov_b32 v9, 0')
            a(f'v_mov_b32 v7, {N1}')
            a('v_cmp_ge_u32 vcc, v6, v7')
            a('v_cndmask_b32 v48, v48, v9, vcc')
            a('v_mov_b32 v49, v48\nv_mov_b32 v50, v48\nv_mov_b32 v51, v48')
            a('v_lshlrev_b32 v8, 4, v6')
            a(f'v_mov_b32 v7, {N2}')
            a('v_cmp_lt_u32 vcc, v6, v7')
            a('s_and_saveexec_b64 s[30:31], vcc')
            a(f's_cbranch_execz {P}_nq{k}')
            a(f'buffer_store_dwordx4 v[48:51], v8, {WS}, s23 offen {st}')
            a.label(f'{P}_nq{k}')
            a('s_mov_b64 exec, -1')
            a.nop(2)
    def ld(src, k):
        base = 64 + 8 * k
        a('v_lshlrev_b32 v9, 5, v6')
        a(f'buffer_load_dwordx4 v[{base}:{base+3}], v9, {src}, 0 offen')
        a(f'buffer_load_dwordx4 v[{base+4}:{base+7}], v9, {src}, 0 offen offset:16')
    def item(src, isx, k, wait):
        base = 64 + 8 * k; pb = 16 + 8 * (k & 3)
        a('v_mul_hi_u32 v7, v6, s22')
        a('v_mul_u32_u24 v8, 28, v7')
        a('v_sub_u32 v8, v6, v8')
        a('v_lshrrev_b32 v10, 4, v7')
        a('v_and_b32 v11, 15, v7')
        a('v_lshrrev_b32 v12, 2, v8')
        a('v_and_b32 v13, 3, v8')
        if isx:
            a('v_lshrrev_b32 v14, 1, v8')
            a('v_mad_u32_u24 v14, v10, 14, v14')
            a('v_lshlrev_b32 v14, 10, v14')
            a('v_and_b32 v15, 1, v8')
            a('v_lshl_add_u32 v14, v15, 9, v14')
            a('v_lshl_add_u32 v14, v11, 4, v14')
            a('v_mad_u32_u24 v15, v10, 7, v12')
            a('v_lshlrev_b32 v15, 11, v15')
            a('v_lshl_add_u32 v15, v13, 8, v15')
            a('v_lshl_add_u32 v15, v11, 4, v15')
        else:
            a('v_lshlrev_b32 v15, 10, v12')
            a('v_lshl_add_u32 v15, v13, 8, v15')
            a('v_lshl_add_u32 v15, v11, 4, v15')
        if wait: a('s_waitcnt vmcnt(0)')
        for j in range(4):
            a(f'v_mov_b32 v{pb+j}, v{base+2*j}')
            a(f'v_mov_b32 v{pb+4+j}, v{base+2*j+1}')
        if isx:
            a(f's_mov_b32 s23, {XF_OFF}')
            a(f'buffer_store_dwordx4 v[{base}:{base+3}], v14, {WS}, s23 offen {st}')
            a(f'buffer_store_dwordx4 v[{base+4}:{base+7}], v14, {WS}, s23 offen offset:256 {st}')
            a(f's_mov_b32 s23, {XM_OFF}')
            a(f'buffer_store_dwordx4 v[{pb}:{pb+3}], v15, {WS}, s23 offen {st}')
            a(f'buffer_store_dwordx4 v[{pb+4}:{pb+7}], v15, {WS}, s23 offen offset:1024 {st}')
        else:
            a(f's_mov_b32 s23, {EXCH_OFF}')
            a(f'buffer_store_dwordx4 v[{pb}:{pb+3}], v15, {WS}, s23 offen {st}')
            a(f'buffer_store_dwordx4 v[{pb+4}:{pb+7}], v15, {WS}, s23 offen offset:128 {st}')
            a(f's_mov_b32 s23, {MEMG_OFF}')
            a(f'buffer_store_dwordx4 v[{pb}:{pb+3}], v15, {WS}, s23 offen {st}')
            a(f'buffer_store_dwordx4 v[{pb+4}:{pb+7}], v15, {WS}, s23 offen offset:128 {st}')
    a(f's_mov_b32 s22, {M28 << 8}')
    if early: fills()
    for k in range(7):
        a(f'v_add_u32 v6, {8192*k}, v5') if k else a('v_mov_b32 v6, v5')
        ld('s[60:63]', k)
    a('v_mov_b32 v6, v5')
    ld('s[56:59]', 7)
    if early:
        a('s_waitcnt vmcnt(16)')
        early()
    else: fills()
    for k in range(7):
        a(f'v_add_u32 v6, {8192*k}, v5') if k else a('v_mov_b32 v6, v5')
        item('s[60:63]', True, k, k == 0)
    a('v_mov_b32 v6, v5')
    a('v_mov_b32 v7, 224')
    a('v_cmp_lt_u32 vcc, v5, v7')
    a('s_and_saveexec_b64 s[30:31], vcc')
    a(f's_cbranch_execz {P}_nomem')
    item('s[56:59]', False, 7, False)
    a.label(f'{P}_nomem')
    a('s_mov_b64 exec, -1')
    if signal:
        a('v_mov_b32 v5, 1')
        a('v_mov_b32 v6, 124')
        a('s_waitcnt vmcnt(0)')
        a('s_mov_b64 exec, 1')
        a(f'buffer_atomic_add v5, v6, {signal}, 0 offen')
        a('s_mov_b64 exec, -1')

def gen_prep(name='prep_kernel'):
    a = Asm(); a.raw(kernel_header(name))
    a('s_cmp_ge_u32 s2, 256')
    a('s_cbranch_scc1 pr_end')
    a('s_load_dwordx2 s[6:7], s[0:1], 128')
    code_prefetch(a, name, 'pr_end', 20000, 200)
    a('v_lshrrev_b32 v1, 6, v0')
    a('v_readfirstlane_b32 s16, v1')
    a('v_and_b32 v1, 63, v0')
    a('v_lshlrev_b32 v2, 4, v1')
    a('v_lshrrev_b32 v3, 4, v1')
    a('v_and_b32 v4, 15, v1')
    a('s_waitcnt lgkmcnt(0)')
    srd(a, 8, 6, 7, 0x10000000)
    if XALL:
        xall_pre(a, 's2')
        a('s_cmp_ge_u32 s2, 224')
        a('s_cbranch_scc1 pr_x')
        prep_item(a, 'pw', 's2', st=PST, mid=lambda: xall_post(a, 'pxa', 's2', PST))
        a('s_branch pr_end')
        a.label('pr_x')
        xall_post(a, 'px', 's2', PST)
    else:
        a('s_cmp_ge_u32 s2, 224')
        a('s_cbranch_scc1 pr_x')
        prep_item(a, 'pw', 's2', st=PST)
        a('s_branch pr_end')
        a.label('pr_x')
        a('s_sub_u32 s3, s2, 224')
        xprep_item(a, 'px', 's3', st=PST)
    a.label('pr_end')
    a('s_endpgm')
    return a

def xall_pre(a, wg_s):
    a('s_load_dwordx4 s[48:51], s[0:1], 56')
    a(f's_and_b32 s20, {wg_s}, 1')
    a('s_mul_i32 s20, s20, 224')
    a('v_add_u32 v5, s20, v0')
    a('v_lshrrev_b32 v6, 4, v5')
    a('v_and_b32 v7, 15, v5')
    a('v_mul_u32_u24 v7, 896, v7')
    a('v_lshl_add_u32 v7, v6, 5, v7')
    a(f's_lshr_b32 s20, {wg_s}, 1')
    a(f's_mul_i32 s20, s20, {16*896}')
    a('v_lshrrev_b32 v8, 3, v0')
    a('v_and_b32 v9, 7, v0')
    a('v_mul_u32_u24 v9, 896, v9')
    a('v_lshl_add_u32 v9, v8, 5, v9')
    a('s_waitcnt lgkmcnt(0)')
    srd(a, 60, 48, 49, 2048 * 448 * 2)
    srd(a, 56, 50, 51, 8 * 448 * 2)
    a('buffer_load_dwordx4 a[0:3], v7, s[60:63], s20 offen')
    a('buffer_load_dwordx4 a[4:7], v7, s[60:63], s20 offen offset:16')
    a('buffer_load_dwordx4 a[8:11], v9, s[56:59], 0 offen')
    a('buffer_load_dwordx4 a[12:15], v9, s[56:59], 0 offen offset:16')

def xall_post(a, P, wg_s, st, wait=True):
    a(f's_and_b32 s20, {wg_s}, 1')
    a('s_mul_i32 s20, s20, 224')
    a('v_add_u32 v5, s20, v0')
    a('v_lshrrev_b32 v6, 4, v5')
    a('v_and_b32 v7, 15, v5')
    a('v_lshlrev_b32 v14, 9, v6')
    a('v_lshl_add_u32 v14, v7, 4, v14')
    a('v_lshrrev_b32 v8, 2, v6')
    a('v_lshlrev_b32 v15, 11, v8')
    a('v_and_b32 v8, 3, v6')
    a('v_lshl_add_u32 v15, v8, 8, v15')
    a('v_lshl_add_u32 v15, v7, 4, v15')
    a(f's_lshr_b32 s20, {wg_s}, 1')
    a(f's_mul_i32 s20, s20, {14*KB}')
    a(f's_add_u32 s21, s20, {XM_OFF}')
    a(f's_add_u32 s20, s20, {XF_OFF}')
    if wait: a('s_waitcnt vmcnt(0)')
    for j in range(4):
        a(f'v_accvgpr_read_b32 v{16+j}, a{2*j}')
        a(f'v_accvgpr_read_b32 v{20+j}, a{2*j+1}')
        a(f'v_accvgpr_read_b32 v{24+j}, a{8+2*j}')
        a(f'v_accvgpr_read_b32 v{28+j}, a{8+2*j+1}')
    a('v_mov_b32 v9, 224')
    a('v_cmp_lt_u32 vcc, v0, v9')
    a('s_and_saveexec_b64 s[30:31], vcc')
    a(f'buffer_store_dwordx4 a[0:3], v14, {WS}, s20 offen {st}')
    a(f'buffer_store_dwordx4 a[4:7], v14, {WS}, s20 offen offset:256 {st}')
    a(f'buffer_store_dwordx4 v[16:19], v15, {WS}, s21 offen {st}')
    a(f'buffer_store_dwordx4 v[20:23], v15, {WS}, s21 offen offset:1024 {st}')
    a(f's_cmp_lg_u32 {wg_s}, 255')
    a(f's_cbranch_scc1 {P}_nm')
    a('v_lshrrev_b32 v6, 3, v0')
    a('v_and_b32 v7, 7, v0')
    a('v_lshlrev_b32 v15, 8, v6')
    a('v_lshl_add_u32 v15, v7, 4, v15')
    for base in (EXCH_OFF, MEMG_OFF):
        a(f's_mov_b32 s20, {base}')
        a(f'buffer_store_dwordx4 v[24:27], v15, {WS}, s20 offen {st}')
        a(f'buffer_store_dwordx4 v[28:31], v15, {WS}, s20 offen offset:128 {st}')
    a.label(f'{P}_nm')
    a('s_mov_b64 exec, -1')
    a(f's_lshl_b32 s20, {wg_s}, 8')
    a('v_add_u32 v5, s20, v0')
    k = 0
    for base, n, zlo, zn in ((EXCH_OFF, 66 * EXCH_B // 16, F2 // 16, 8), (MEMG_OFF, (64 * 7 * KB + CNT_B) // 16, 64 * 7 * KB // 16, 1 << 20)):
        a(f's_mov_b32 s23, {base}')
        for j in range((n - 448 + 65535) // 65536):
            r = 32 + 4 * k
            a(f'v_add_u32 v6, {448 + 65536*j}, v5')
            a(f'v_subrev_u32 v7, {zlo}, v6')
            a(f'v_mov_b32 v{r}, -1')
            a('v_mov_b32 v9, 0')
            a(f'v_mov_b32 v8, {zn}')
            a('v_cmp_gt_u32 vcc, v8, v7')
            a(f'v_cndmask_b32 v{r}, v{r}, v9, vcc')
            for q in range(1, 4): a(f'v_mov_b32 v{r+q}, v{r}')
            a('v_lshlrev_b32 v8, 4, v6')
            a(f'v_mov_b32 v7, {n}')
            a('v_cmp_lt_u32 vcc, v6, v7')
            a('s_and_saveexec_b64 s[30:31], vcc')
            a(f's_cbranch_execz {P}_f{k}')
            a(f'buffer_store_dwordx4 v[{r}:{r+3}], v8, {WS}, s23 offen {st}')
            a.label(f'{P}_f{k}')
            a('s_mov_b64 exec, -1')
            k += 1
```

```python
from asmlib import *
from layout import *
from prep import srd, SIGMA, W_BYTES
WS = 's[8:11]'
LDFL = ''
TFL = 'nt'
SA = 's[60:63]'; SB = 's[56:59]'
CF = 256
RF = 384

PST = 0
_n = [0]
def pst(a, k=None):
    if PST and k is not None: a(f's_memrealtime s[{72+2*k}:{73+2*k}]')
    elif PST:
        a(f's_memrealtime s[{72+2*_n[0]}:{73+2*_n[0]}]'); _n[0] += 1
def pst_flush(a):
    if not PST: return
    a('s_waitcnt lgkmcnt(0)')
    a('s_lshl_b32 s20, s2, 2\ns_add_u32 s20, s20, s16\ns_lshl_b32 s20, s20, 6\ns_add_u32 s20, s20, 104857600')
    a('v_mov_b32 v7, 0')
    for k in range(9):
        a(f'v_mov_b32 v8, s{72+2*k}')
        a(f'buffer_store_dword v8, v7, {WS}, s20 offen offset:{4*k}')
        a.nop(2)

def decode(a, item_s):
    a(f's_mul_i32 s17, {item_s}, 4682')
    a('s_lshr_b32 s17, s17, 16')
    a('s_mul_i32 s23, s17, 14')
    a(f's_sub_u32 s19, {item_s}, s23')
    a('s_cmp_lt_u32 s19, 7')
    a('s_cselect_b32 s18, 0, 7')
    a('s_cselect_b32 s28, 0, 8')
    a('s_sub_u32 s18, s19, s18')
    a('s_add_u32 s28, s28, s16')
    a('s_lshl_b32 s25, s16, 15')
    a('s_add_u32 s25, s25, 32768')
    a('s_lshl_b32 s26, s17, 9')
assert all((i * 4682) >> 16 == i // 14 for i in range(224))

def consts(a):
    a('v_lshrrev_b32 v5, 5, v1')
    a('v_and_b32 v6, 31, v1')
    a('v_xor_b32 v8, v6, v5')
    a('v_lshlrev_b32 v8, 4, v8')
    a('v_lshl_add_u32 v16, v5, 13, v8')
    for c in range(1, 8): a(f'v_xor_b32 v{16+c}, {c*32}, v16')

def issue(a, mat, hook=None, hook_at=0):
    if mat == 'A':
        srd(a, 60, 40, 41, W_BYTES); srd(a, 56, 42, 43, W_BYTES)
        a('s_lshl_b32 s27, s18, 2')
        a('s_add_u32 s27, s27, s16')
        a('s_lshl_b32 s27, s27, 17')
        a('s_add_u32 s27, s27, s26')
        a('s_lshl_b32 s30, s16, 13')
        for i in range(8):
            a(f's_add_u32 m0, s30, {i*1024}')
            a(f'buffer_load_dwordx4 v{16+i}, {SB}, s27 offen {LDFL} lds')
            a('s_add_u32 s27, s27, 16384')
    else:
        srd(a, 60, 44, 45, W_BYTES); srd(a, 56, 46, 47, W_BYTES)
        a('s_mul_i32 s27, s17, 229376')
        a('s_lshl_b32 s30, s18, 7')
        a('s_add_u32 s27, s27, s30')
        a(f's_mul_i32 s30, s16, {64*896}')
        a('s_add_u32 s27, s27, s30')
        a('v_lshrrev_b32 v7, 3, v1')
        a('v_and_b32 v8, 7, v1')
        a('v_and_b32 v9, 2, v7')
        a('v_xor_b32 v8, v8, v9')
        a('v_mul_u32_u24 v7, 896, v7')
        a('v_lshl_add_u32 v24, v8, 4, v7')
        a('v_xor_b32 v25, 64, v24')
        a('s_lshl_b32 s30, s16, 13')
        for i in range(8):
            a(f's_add_u32 m0, s30, {i*1024}')
            a(f'buffer_load_dwordx4 v{24 + (i & 1)}, {SB}, s27 offen {LDFL} lds')
            a(f's_add_u32 s27, s27, {8*896}')
    for p in range(2):
        a(f's_add_u32 s27, s28, {4*p}')
        a('s_min_u32 s27, s27, 13')
        a('s_lshl_b32 s27, s27, 18')
        a('s_add_u32 s27, s27, s26')
        for i in range(16):
            if hook and p * 16 + i == hook_at: hook(8 + hook_at)
            a(f's_add_u32 m0, s25, {p*16384 + i*1024}')
            a(f'buffer_load_dwordx4 v{16 + 2*(i >> 2) + (i & 1)}, {SA}, s27 offen {LDFL} lds')
            a('s_add_u32 s27, s27, 16384')

TOUCH_B = 1
def touch(a, mat, dst, skip=None):
    if mat == 'B' and not TOUCH_B: return
    p = 40 if mat == 'A' else 44
    a('s_cmp_lt_u32 s19, 7')
    a(f's_cselect_b32 s64, s{p}, s{p+2}')
    a(f's_cselect_b32 s65, s{p+1}, s{p+3}')
    a('s_cselect_b32 s27, 0, 7')
    srd(a, 68, 64, 65, W_BYTES)
    a('s_sub_u32 s31, s19, s27')
    a('s_lshl_b32 s27, s31, 19')
    a('s_add_u32 s27, s27, s26')
    a('v_lshrrev_b32 v7, 2, v0')
    a('v_and_b32 v8, 3, v0')
    a('v_lshlrev_b32 v8, 7, v8')
    a('v_lshl_add_u32 v9, v7, 13, v8')
    if mat == 'B':
        a('s_mul_i32 s30, s17, 229376')
        a('s_lshl_b32 s31, s31, 15')
        a('s_add_u32 s30, s30, s31')
        a('s_cmp_lt_u32 s19, 7')
        a('s_cselect_b32 s27, s27, s30')
        a('s_cselect_b64 vcc, -1, 0')
        a('v_lshlrev_b32 v8, 7, v0')
        a('v_cndmask_b32 v9, v8, v9, vcc')
    if skip:
        a(f's_cmp_lg_u32 {skip}, 0')
        a('s_cselect_b32 s27, 0x40000000, s27')
    a(f'buffer_load_dword v{dst}, v9, s[68:71], s27 offen {TFL}')

def xunit_load(a, item_s):
    a(f's_lshl_b32 s20, {item_s}, 2')
    a('s_add_u32 s20, s20, s16')
    a('s_mul_i32 s21, s20, 9363')
    a('s_lshr_b32 s21, s21, 16')
    a('s_mul_i32 s22, s21, 7')
    a('s_sub_u32 s22, s20, s22')
    a(f's_mul_i32 s21, s21, {16*896}')
    a('s_lshl_b32 s20, s22, 7')
    a('s_add_u32 s20, s20, s21')
    a('s_lshl_b32 s22, s22, 11')
    a('s_add_u32 s52, s21, s22')
    srd(a, 68, 48, 49, 2048 * 448 * 2)
    a('v_mul_u32_u24 v7, 896, v4')
    a('v_lshl_add_u32 v7, v3, 5, v7')
    a('buffer_load_dwordx4 v[128:131], v7, s[68:71], s20 offen')
    a('buffer_load_dwordx4 v[132:135], v7, s[68:71], s20 offen offset:16')
assert all((i * 9363) >> 16 == i // 7 for i in range(896))
def xunit_store():
    o = ['v_lshlrev_b32 v144, 9, v3', 'v_lshl_add_u32 v144, v4, 4, v144', f's_add_u32 s53, s52, {XM_OFF}', f's_add_u32 s52, s52, {XF_OFF}']
    for j in range(4): o += [f'v_mov_b32 v{136+j}, v{128+2*j}', f'v_mov_b32 v{140+j}, v{129+2*j}']
    o += [f'buffer_store_dwordx4 v[128:131], v144, {WS}, s52 offen sc1', f'buffer_store_dwordx4 v[132:135], v144, {WS}, s52 offen offset:256 sc1',
          f'buffer_store_dwordx4 v[136:139], v2, {WS}, s53 offen sc1', f'buffer_store_dwordx4 v[140:143], v2, {WS}, s53 offen offset:1024 sc1']
    return o

def compute(a, P, mat, younger, pre_epi=(), early=()):
    a('v_lshrrev_b32 v7, 2, v4')
    a('v_lshlrev_b32 v7, 3, v7')
    a('v_and_b32 v8, 3, v4')
    a('v_add_u32 v7, v7, v8')
    for k3 in range(4):
        a(f'v_or_b32 v10, {k3*4}, v3')
        a('v_xor_b32 v10, v10, v4')
        a('v_lshlrev_b32 v10, 4, v10')
        a('v_lshl_add_u32 v10, v7, 9, v10')
        a(f'v_add_u32 v{32+k3}, s25, v10')
    rd = [[] for _ in range(8)]
    if mat == 'A':
        a('v_lshrrev_b32 v7, 2, v4')
        a('v_lshlrev_b32 v7, 4, v7')
        a('v_and_b32 v8, 2, v4')
        a('v_lshl_add_u32 v7, v8, 1, v7')
        a('v_and_b32 v8, 1, v4')
        a('v_add_u32 v7, v7, v8')
        for q in range(4):
            dq = 8 * (q >> 1) + 2 * (q & 1)
            a(f'v_add_u32 v11, {dq}, v7')
            a('v_and_b32 v9, 15, v11')
            for k3 in range(4):
                r_ = 40 + 4 * q + k3
                a(f'v_or_b32 v10, {k3*4}, v3')
                a('v_xor_b32 v10, v10, v9')
                a('v_lshlrev_b32 v10, 4, v10')
                a(f'v_lshl_add_u32 v{r_}, v11, 9, v10')
                for kh in range(2):
                    rd[kh * 4 + k3].append(f'ds_read_b128 {ureg(CF + (q * 8 + kh * 4 + k3) * 4, 4)}, v{r_} offset:{kh*256}')
        a(f's_mul_i32 s30, s17, {CUW_B}')
        a(f's_mul_i32 s31, s18, {4*TILE_B}')
        a('s_add_u32 s30, s30, s31')
        a(f's_add_u32 s30, s30, {WF_A}')
        for q in range(4):
            a(f'v_add_u32 v{12+q}, s30, v2')
            a(f's_add_u32 s30, s30, {TILE_B}')
        a(f'v_mov_b32 v36, {SIGMA}')
    else:
        a('v_lshrrev_b32 v7, 2, v4')
        a('v_lshl_add_u32 v7, v3, 3, v7')
        a('v_lshlrev_b32 v7, 7, v7')
        a('v_and_b32 v8, 3, v4')
        a('v_lshl_add_u32 v7, v8, 3, v7')
        a('v_lshrrev_b32 v8, 3, v4')
        a('v_and_b32 v9, 1, v3')
        a('v_lshl_add_u32 v8, v9, 1, v8')
        a('v_lshl_add_u32 v40, v8, 5, v7')
        for q in range(4):
            if q: a(f'v_xor_b32 v{40+q}, {32*q}, v40')
            for kk in range(8):
                rd[kk] += [f'ds_read_b64_tr_b16 {ureg(CF + (q * 8 + kk) * 4 + 2 * hf, 2)}, v{40+q} offset:{(32*kk + 4*hf)*128}' for hf in range(2)]
            a('s_lshl_b32 s30, s18, 6')
            a(f's_add_u32 s30, s30, {16*q}')
            a('v_add_u32 v8, s30, v4')
            a('v_subrev_u32 v9, 256, v8')
            a('v_mul_u32_u24 v11, 171, v9')
            a('v_lshrrev_b32 v11, 11, v11')
            a('v_mul_u32_u24 v38, 12, v11')
            a('v_sub_u32 v38, v9, v38')
            a('v_add_u32 v38, 16, v38')
            a('v_lshrrev_b32 v10, 4, v8')
            a('v_cmp_gt_i32 vcc, 0, v9')
            a('v_cndmask_b32 v10, v11, v10, vcc')
            a('v_cndmask_b32 v37, v38, v4, vcc')
            a('s_mul_i32 s30, s17, 28')
            a('v_add_u32 v37, s30, v37')
            a('v_lshrrev_b32 v38, 4, v37')
            a('v_and_b32 v37, 15, v37')
            a(f's_mov_b32 s30, {CUW_B}')
            a('v_mul_lo_u32 v10, v10, s30')
            a(f'v_mul_u32_u24 v38, {TILE_B}, v38')
            a('v_add_u32 v10, v10, v38')
            a('v_lshl_add_u32 v10, v3, 8, v10')
            a('v_lshl_add_u32 v10, v37, 4, v10')
            a(f'v_add_u32 v{12+q}, {WF_B}, v10')
    a('s_lshl_b32 s29, s28, 10')
    a('s_add_u32 s31, s29, 4096')
    a('s_cmp_lt_u32 s28, 10')
    a('s_cselect_b32 s31, s31, 0x40000000')
    pst(a)
    a(f's_waitcnt vmcnt({younger})')
    a('s_barrier')
    pst(a)
    for kk in range(8):
        rd[kk] += [f'ds_read_b128 {ureg(RF + (pt * 8 + kk) * 4, 4)}, v{32 + (kk & 3)} offset:{(pt >> 1)*16384 + (pt & 1)*2048 + (kk >> 2)*256}' for pt in range(4)]
    ACC = [64, 96]
    def epi(p, q):
        d = ACC[p] + 8 * q
        o = [f'v_mul_f32 v{d+r}, v36, v{d+r}' for r in range(8)] if mat == 'A' else []
        o += [f'v_cvt_pk_bf16_f32 v{d+r}, v{d+2*r}, v{d+2*r+1}' for r in range(4)]
        o.append(f'buffer_store_dwordx4 v[{d}:{d+3}], v{12+q}, {WS}, {"s31" if p else "s29"} offen sc1')
        return o
    for x in rd[0]: a(x)
    for x in early:
        if callable(x): x()
        else: a(x)
    side = []
    for kk in range(8):
        a('s_waitcnt lgkmcnt(0)')
        if kk == 7:
            a('s_barrier')
            for x in pre_epi: a(x)
        nxt = list(rd[kk + 1]) if kk < 7 else []
        i = 0
        for p in range(2):
            for q in range(4):
                for tau in range(2):
                    d = ACC[p] + 8 * q + 4 * tau
                    a(f'v_mfma_f32_16x16x32_bf16 v[{d}:{d+3}], {ureg(RF + ((p * 2 + tau) * 8 + kk) * 4, 4)}, {ureg(CF + (q * 8 + kk) * 4, 4)}, ' + ('0' if kk == 0 else f'v[{d}:{d+3}]'))
                    for _ in range(2):
                        if nxt: a(nxt.pop(0))
                    if kk == 7:
                        if i >= 4:
                            for _ in range(2):
                                if side: a(side.pop(0))
                        if tau: side += epi(p, q)
                    i += 1
    for x in side: a(x)
    pst(a)
```

```python
from asmlib import *
from layout import *
import struct, math
def f32bits(x): return struct.unpack('<I', struct.pack('<f', x))[0]
LOG2E = f32bits(1.4426950408889634)
INV2PI = f32bits(1.0 / (2 * math.pi))
OST = ''
WV = 24 * KB
U_O = 512
CE_O = 4608; CO_O = CE_O + 4224
KT_O = CO_O + 4224
PR_O = KT_O + 5 * KB + 64
assert PR_O + 4096 <= WV

def srd(a, d, lo, nbytes):
    a(f's_mov_b32 s{d}, s{lo}')
    a(f's_and_b32 s{d+1}, s{lo+1}, 0xffff')
    a(f's_mov_b32 s{d+2}, {nbytes}')
    a(f's_mov_b32 s{d+3}, 0x20000')

def rne_bf16(a, r, t):
    a(f'v_cvt_pk_bf16_f32 v{t}, v{r}, v{r}')
    a(f'v_and_b32 v{r}, 0xffff0000, v{t}')

def s4d_setup(a):
    a('s_load_dwordx8 s[40:47], s[0:1], 0')
    a('s_load_dwordx4 s[48:51], s[0:1], 32')
    a('s_load_dwordx2 s[52:53], s[0:1], 48')
    a('s_load_dwordx2 s[54:55], s[0:1], 112')
    a('v_lshrrev_b32 v1, 6, v0')
    a('v_readfirstlane_b32 s16, v1')
    a('v_and_b32 v1, 63, v0')
    a('v_lshrrev_b32 v3, 4, v1')
    a('v_and_b32 v4, 15, v1')
    a(f's_mul_i32 s17, s16, {WV}')
    a('s_waitcnt lgkmcnt(0)')
    srd(a, 60, 40, 2048 * 448 * 2)
    for i in range(4): srd(a, 64 + 4 * i, 42 + 2 * i, 448 * 256 * 2)
    srd(a, 80, 50, 896); srd(a, 84, 52, 896); srd(a, 88, 54, 2048 * 896 * 2)
    a('v_lshlrev_b32 v5, 5, v1')
    a('v_sub_u32 v5, 2047, v5')
    a(f's_add_u32 s18, s17, {KT_O}')
    for k in range(33):
        a(f'v_subrev_u32 v6, {k}, v5')
        a('v_max_i32 v7, 0, v6')
        a('v_cvt_f32_u32 v7, v7')
        rne_bf16(a, 7, 8)
        a('v_lshrrev_b32 v8, 23, v7')
        a('v_subrev_u32 v8, 134, v8')
        a('v_max_i32 v8, 0, v8')
        a('v_cvt_u32_f32 v7, v7')
        a('v_lshrrev_b32 v7, v8, v7')
        a('v_lshl_add_u32 v7, v8, 8, v7')
        if k == 32:
            a('v_mov_b32 v8, 1280')
            a('v_cmp_gt_i32 vcc, 0, v6')
            a('v_cndmask_b32 v7, v7, v8, vcc')
        a(f'v_lshl_add_u32 v{200+k}, v7, 2, s18')
    a('v_mov_b32 v8, 0\nv_mov_b32 v9, 0')
    a('v_lshlrev_b32 v5, 3, v1')
    a('v_add_u32 v5, s17, v5')
    a('ds_write_b64 v5, v[8:9]')
    a('v_and_b32 v6, 15, v1')
    a('v_lshlrev_b32 v6, 3, v6')
    a('v_add_u32 v6, s17, v6')
    a(f'ds_write_b64 v6, v[8:9] offset:{CE_O + 4096}')
    a(f'ds_write_b64 v6, v[8:9] offset:{CO_O + 4096}')
    a('v_mov_b32 v6, s17')
    a(f'ds_write_b64 v6, v[8:9] offset:{KT_O + 5*KB}')

def s4d_item(a, P, item_s):
    L = lambda n: f'{P}_{n}'
    a(f's_lshl_b32 s19, {item_s}, 2')
    a('s_add_u32 s20, s19, s16')
    a(f's_lshl_b32 s21, {item_s}, 3')
    a('v_mul_u32_u24 v5, 3584, v0')
    for grp in range(2):
        a(f's_add_u32 s22, s21, {grp*1024*896}')
        for r in range(4):
            b = 8 + 8 * grp + 2 * r
            a(f'buffer_load_dwordx2 v[{b}:{b+1}], v5, s[60:63], s22 offen offset:{r*896}')
    a('s_lshl_b32 s22, s20, 9')
    a('v_lshlrev_b32 v6, 3, v1')
    for i in range(4):
        a(f'buffer_load_dwordx2 v[{24+2*i}:{25+2*i}], v6, s[{64+4*i}:{67+4*i}], s22 offen')
    a('s_lshl_b32 s22, s20, 1')
    a('v_mov_b32 v7, 0')
    a('buffer_load_ushort v32, v7, s[80:83], s22 offen')
    a('buffer_load_ushort v33, v7, s[84:87], s22 offen')
    a('s_mov_b32 s24, 0x05040100\ns_mov_b32 s25, 0x07060302')
    a('s_barrier')
    a('s_waitcnt vmcnt(6)')
    a('v_lshlrev_b32 v6, 3, v0')
    for grp in range(2):
        b = 8 + 8 * grp
        for ch in range(4):
            sel = 's24' if ch % 2 == 0 else 's25'; dw = ch >> 1
            a(f'v_perm_b32 v34, v{b+2+dw}, v{b+dw}, {sel}')
            a(f'v_perm_b32 v35, v{b+6+dw}, v{b+4+dw}, {sel}')
            a(f'v_add_u32 v36, {ch*WV + U_O + grp*2048}, v6')
            a('ds_write_b64 v36, v[34:35]')
    a('s_waitcnt vmcnt(0)')
    a(f's_mov_b32 s26, {LOG2E}\ns_mov_b32 s27, {INV2PI}')
    a('v_lshlrev_b32 v32, 16, v32')
    a('v_lshlrev_b32 v33, 16, v33')
    a('v_mul_f32 v32, s26, v32')
    a('v_exp_f32 v32, v32')
    rne_bf16(a, 32, 34)
    a('v_lshlrev_b32 v37, 6, v1')
    a(f'v_add_u32 v37, s17, v37')
    for m in range(4):
        def unpack(dst, base):
            src = base + (m >> 1)
            if m & 1: a(f'v_and_b32 v{dst}, 0xffff0000, v{src}')
            else: a(f'v_lshlrev_b32 v{dst}, 16, v{src}')
        unpack(40, 24); unpack(41, 26); unpack(42, 28); unpack(43, 30)
        a('v_mul_f32 v40, s26, v40')
        a('v_exp_f32 v40, v40')
        rne_bf16(a, 40, 34)
        a('v_mul_f32 v40, v40, v32')
        a('v_mul_f32 v40, s26, v40')
        a('v_sub_f32 v40, 0, v40')
        a('v_mul_f32 v41, v41, v32')
        a('v_mul_f32 v41, s27, v41')
        a('v_mul_f32 v42, v42, v32')
        a('v_mul_f32 v43, v43, v32')
        a('v_add_f32 v42, v42, v42')
        a('v_add_f32 v43, v43, v43')
        a(f'ds_write_b128 v37, v[40:43] offset:{PR_O + 16*m}')
    a('v_cvt_f32_u32 v44, v4')
    a('v_mul_f32 v45, 16.0, v44') if False else (a('v_lshlrev_b32 v45, 4, v4'), a('v_cvt_f32_u32 v45, v45'))
    a('v_lshlrev_b32 v46, 4, v3')
    a(f'v_add_u32 v46, s17, v46')
    DK = 48
    for r in range(DK, DK + 20): a(f'v_mov_b32 v{r}, 0')
    a('s_mov_b32 s28, 0')
    a('s_waitcnt lgkmcnt(0)')
    a(f'ds_read_b128 v[68:71], v46 offset:{PR_O}')
    a.label(L('kl'))
    a('s_waitcnt lgkmcnt(0)')
    for r in range(4): a(f'v_mov_b32 v{72+r}, v{68+r}')
    a('v_add_u32 v46, 64, v46')
    a(f'ds_read_b128 v[68:71], v46 offset:{PR_O}')
    A2, BR, CR, CI = 72, 73, 74, 75
    Er, Ei, Yr, Yi = 76, 77, 78, 79
    for (pr, pi, pos) in ((Er, Ei, 45), (Yr, Yi, 44)):
        a(f'v_mul_f32 v80, v{A2}, v{pos}')
        a(f'v_mul_f32 v81, v{BR}, v{pos}')
        a('v_exp_f32 v80, v80')
        a('v_fract_f32 v81, v81')
        a(f'v_cos_f32 v{pr}, v81')
        a(f'v_sin_f32 v{pi}, v81')
        a(f'v_mul_f32 v{pr}, v{pr}, v80')
        a(f'v_mul_f32 v{pi}, v{pi}, v80')
    for rho in range(5):
        xr, xi = 82 + 2 * (rho & 1), 83 + 2 * (rho & 1)
        d = DK + 4 * rho
        a(f'v_mul_f32 v{xr}, v{CR}, v{Er}')
        if rho < 4: a(f'v_mul_f32 v{xi}, v{CR}, v{Ei}')
        a(f'v_fma_f32 v{xr}, -v{CI}, v{Ei}, v{xr}')
        if rho < 4: a(f'v_fma_f32 v{xi}, -v{CI}, v{Er}, -v{xi}')
        if rho < 4:
            nEr, nEi = (86, 87) if Er == 76 else (76, 77)
            a(f'v_mul_f32 v{nEr}, v{Er}, v{Er}')
            a(f'v_mul_f32 v{nEi}, v{Er}, v{Ei}')
            a(f'v_fma_f32 v{nEr}, -v{Ei}, v{Ei}, v{nEr}')
            a(f'v_add_f32 v{nEi}, v{nEi}, v{nEi}')
        a(f'v_mfma_f32_16x16x4_f32 v[{d}:{d+3}], v{xr}, v{Yr}, v[{d}:{d+3}]')
        if rho < 3:
            nYr, nYi = (88, 89) if Yr == 78 else (78, 79)
            a(f'v_mul_f32 v{nYr}, v{Yr}, v{Yr}')
            a(f'v_mul_f32 v{nYi}, v{Yr}, v{Yi}')
            a(f'v_fma_f32 v{nYr}, -v{Yi}, v{Yi}, v{nYr}')
            a(f'v_add_f32 v{nYi}, v{nYi}, v{nYi}')
        if rho < 4:
            a(f'v_mfma_f32_16x16x4_f32 v[{d}:{d+3}], v{xi}, v{Yi}, v[{d}:{d+3}]')
            Er, Ei = nEr, nEi
        if rho < 3: Yr, Yi = nYr, nYi
    a('s_add_u32 s28, s28, 1')
    a('s_cmp_lt_u32 s28, 64')
    a(f's_cbranch_scc1 {L("kl")}')
    a.nop(20)
    a('v_lshlrev_b32 v46, 8, v3')
    a('v_lshl_add_u32 v46, v4, 2, v46')
    a('v_add_u32 v46, s17, v46')
    for rho in range(5):
        for r in range(4):
            a(f'ds_write_b32 v46, v{DK+4*rho+r} offset:{KT_O + rho*1024 + r*64}')
        a('s_waitcnt lgkmcnt(8)')
    a('s_waitcnt lgkmcnt(0)')
    G0 = 48
    for k in range(33):
        a(f'ds_read_b32 v{G0+k}, v{200+k}')
        if k % 8 == 7: a('s_waitcnt lgkmcnt(4)')
    a('s_waitcnt lgkmcnt(0)')
    a('v_lshlrev_b32 v46, 6, v1')
    a('v_add_u32 v46, s17, v46')
    for c in range(4):
        for k in range(4):
            i = 8 * c + 2 * k
            a(f'v_cvt_pk_bf16_f32 v{84+k}, v{G0+i}, v{G0+i+1}')
            a(f'v_cvt_pk_bf16_f32 v{88+k}, v{G0+i+1}, v{G0+i+2}')
        a(f'ds_write_b128 v46, v[84:87] offset:{CE_O + 16*c}')
        a(f'ds_write_b128 v46, v[88:91] offset:{CO_O + 16*c}')
        a('s_waitcnt lgkmcnt(0)')
    a('s_barrier')
    a('v_lshrrev_b32 v47, 1, v3')
    a('v_sub_u32 v46, v4, v47')
    a('v_add_u32 v46, 1, v46')
    a('v_lshlrev_b32 v46, 5, v46')
    a('v_and_b32 v48, 1, v3')
    a('v_lshl_add_u32 v46, v48, 4, v46')
    a('v_add_u32 v46, s17, v46')
    for f in range(64):
        a(f'ds_read_b128 a[{4*f}:{4*f+3}], v46 offset:{U_O + (2*f - 15)*32}')
        if f % 8 == 7: a('s_waitcnt lgkmcnt(4)')
    a('v_lshlrev_b32 v49, 4, v47')
    a('v_add_u32 v49, v49, v4')
    a('v_sub_u32 v49, 2047, v49')
    a('v_lshl_add_u32 v49, v48, 3, v49')
    a('v_and_b32 v50, 1, v49')
    a('v_lshrrev_b32 v49, 1, v49')
    a('v_lshlrev_b32 v49, 2, v49')
    a(f'v_mul_u32_u24 v50, {CO_O - CE_O}, v50')
    a('v_add3_u32 v49, v49, v50, s17')
    a(f'v_add_u32 v49, {CE_O}, v49')
    NB = 5
    for b in range(NB): a(f'v_subrev_u32 v{52+b}, {64*(15*b+14)}, v49')
    Y = 60; AF = 92; NA = 4
    def ard(Dd):
        b, o = divmod(Dd, 15); off = (14 - o) * 16; r = AF + 4 * (Dd % NA)
        a(f'ds_read2_b32 v[{r}:{r+1}], v{52+b} offset0:{off} offset1:{off+1}')
        a(f'ds_read2_b32 v[{r+2}:{r+3}], v{52+b} offset0:{off+2} offset1:{off+3}')
    a('s_waitcnt lgkmcnt(0)')
    for Dd in range(3): ard(Dd)
    for Dd in range(64):
        if Dd + 3 < 64: ard(Dd + 3)
        a(f's_waitcnt lgkmcnt({2*min(3, 63-Dd)})')
        r = AF + 4 * (Dd % NA)
        for n0 in range(8):
            phi = 16 * n0 - 2 * Dd
            if phi < -14: continue
            f = (phi + 14) // 2; d = Y + 4 * n0
            c = '0' if Dd == 0 else f'v[{d}:{d+3}]'
            a(f'v_mfma_f32_16x16x32_bf16 v[{d}:{d+3}], v[{r}:{r+3}], a[{4*f}:{4*f+3}], {c}')
    a('v_lshlrev_b32 v46, 5, v4')
    a('v_lshl_add_u32 v46, v3, 3, v46')
    a('v_add_u32 v46, s17, v46')
    for n0 in range(8): a(f'ds_read_b64 v[{108+2*n0}:{109+2*n0}], v46 offset:{U_O + n0*512}')
    a('s_waitcnt lgkmcnt(0)')
    for n0 in range(8):
        d = Y + 4 * n0; ub = 108 + 2 * n0
        a(f'v_lshlrev_b32 v124, 16, v{ub}')
        a(f'v_and_b32 v125, 0xffff0000, v{ub}')
        a(f'v_lshlrev_b32 v126, 16, v{ub+1}')
        a(f'v_and_b32 v127, 0xffff0000, v{ub+1}')
        for r in range(4): a(f'v_mul_f32 v{124+r}, v{124+r}, v33')
        a('v_cvt_pk_bf16_f32 v128, v124, v125')
        a('v_cvt_pk_bf16_f32 v129, v126, v127')
        a(f'v_cvt_pk_bf16_f32 v130, v{d}, v{d+1}')
        a(f'v_cvt_pk_bf16_f32 v131, v{d+2}, v{d+3}')
        for k in range(2):
            a(f'v_lshlrev_b32 v{124+2*k}, 16, v{128+k}')
            a(f'v_and_b32 v{125+2*k}, 0xffff0000, v{128+k}')
            a(f'v_lshlrev_b32 v{132+2*k}, 16, v{130+k}')
            a(f'v_and_b32 v{133+2*k}, 0xffff0000, v{130+k}')
        for r in range(4): a(f'v_add_f32 v{124+r}, v{124+r}, v{132+r}')
        a(f'v_cvt_pk_bf16_f32 v{ub}, v124, v125')
        a(f'v_cvt_pk_bf16_f32 v{ub+1}, v126, v127')
        a(f'ds_write_b64 v46, v[{ub}:{ub+1}] offset:{U_O + n0*512}')
    a('s_waitcnt lgkmcnt(0)')
    a('s_barrier')
    a('v_lshlrev_b32 v6, 3, v0')
    a('v_mul_u32_u24 v5, 7168, v0')
    for grp in range(2):
        for ch in range(4):
            a(f'v_add_u32 v36, {ch*WV + U_O + grp*2048}, v6')
            a(f'ds_read_b64 v[{8+2*ch}:{9+2*ch}], v36')
        a('s_waitcnt lgkmcnt(0)')
        a(f's_add_u32 s22, s21, {grp*1024*1792}')
        a(f's_add_u32 s23, s22, 3584')
        for r in range(4):
            sel = 's24' if r % 2 == 0 else 's25'; dw = r >> 1
            o = 16 + 8 * grp + 2 * r
            a(f'v_perm_b32 v{o}, v{10+dw}, v{8+dw}, {sel}')
            a(f'v_perm_b32 v{o+1}, v{14+dw}, v{12+dw}, {sel}')
            a(f'buffer_store_dwordx2 v[{o}:{o+1}], v5, s[88:91], {"s22" if r < 2 else "s23"} offen offset:{(r & 1)*1792} {OST}')

def gen_s4d(name='s4d_kernel'):
    a = Asm(); a.raw(kernel_header(name))
    a('s_cmp_ge_u32 s2, 112')
    a('s_cbranch_scc1 s4_end')
    s4d_setup(a)
    a('s_mov_b32 s3, s2')
    s4d_item(a, 's4', 's3')
    a.label('s4_end')
    a('s_endpgm')
    return a
def kernels():
    return {'s4d': lambda: (gen_s4d(), 's4d_kernel', f'grid=(112,1,1) block=(256,1,1) lds={4*WV}', (512, 256))}
```

```python
from asmlib import *
from layout import *
import tok
WS = 's[8:11]'
SRV_SLEEP = 6
def wreg(ti, ks):
    u = ti * 7 + ks
    return 256 + 8 * u if u < 32 else 120 + 8 * (u - 32)
def t2srv_body(a, P, v_s, par_s, abort, ld=''):
    M = 8; ACC = 36; YT = 64; YA = 72
    a(f's_mul_i32 s20, {v_s}, {CUW_B}')
    a(f's_mul_i32 s21, s16, {7*TILE_B}')
    a('s_add_u32 s20, s20, s21')
    a(f's_add_u32 s20, s20, {WF_B}')
    for f in range(98):
        if f % 4 == 0: a(f's_add_u32 s22, s20, {f*1024}')
        r = wreg(0, f // 2) + 4 * (f & 1)
        a(f'buffer_load_dwordx4 {ureg(r, 4)}, v2, {WS}, s22 offen offset:{(f & 3)*1024} {ld}')
        if f % 32 == 31: a('s_waitcnt vmcnt(24)')
    a('v_mov_b32 v5, 0x4444')
    a('v_mov_b32 v6, 0xeeee')
    a('v_cmp_lt_u32 vcc, 7, v4')
    a('v_cndmask_b32 v5, v5, v6, vcc')
    a('s_lshl_b32 s23, s16, 11')
    a('v_lshrrev_b32 v80, 1, v3')
    a('v_and_b32 v81, 1, v3')
    for p in range(4):
        if p < 3: a(f'v_add_u32 v82, {2*p}, v80')
        else: a('v_mov_b32 v82, 6')
        a('v_lshl_add_u32 v82, v82, 4, v4')
        a('v_mul_u32_u24 v83, 2341, v82')
        a('v_lshrrev_b32 v83, 16, v83')
        a('v_mul_u32_u24 v84, 28, v83')
        a('v_sub_u32 v84, v82, v84')
        a('v_lshrrev_b32 v85, 4, v84')
        a('v_and_b32 v84, 15, v84')
        a('v_lshlrev_b32 v86, 10, v85')
        a('v_lshl_add_u32 v86, v83, 8, v86')
        a('v_lshl_add_u32 v86, v84, 4, v86')
        a('v_lshl_add_u32 v86, v81, 3, v86')
        a(f'v_add_u32 v{YA+p}, s23, v86')
    a('v_add_u32 v76, s23, v2')
    a(f's_mul_i32 s27, {v_s}, 448')
    a('v_mov_b32 v77, s27')
    a('v_mov_b32 v78, 1')
    a(f's_mov_b32 s17, {par_s}')
    a(f's_mul_i32 s24, {par_s}, {7*KB}')
    a(f's_add_u32 s24, s24, {MEMG_OFF}')
    a(f's_mul_i32 s25, {v_s}, 65')
    a(f's_add_u32 s25, s25, {par_s}')
    a('s_lshl_b32 s25, s25, 13')
    a('s_add_u32 s25, s25, s23')
    a(f's_add_u32 s25, s25, {T2_OFF + 8*KB}')
    a(f's_lshl_b32 s26, {v_s}, 6')
    a(f's_add_u32 s26, s26, {par_s}')
    a('s_lshl_b32 s26, s26, 4')
    a('s_lshl_b32 s27, s16, 2')
    a('s_add_u32 s26, s26, s27')
    a(f's_add_u32 s26, s26, {CNT_OFF + T2F}')
    a.label(f'{P}_loop')
    for r in range(ACC, ACC + 28): a(f'v_mov_b32 v{r}, 0')
    a('s_mov_b32 s30, 0')
    a(f's_branch {P}_fl')
    a.label(f'{P}_pm')
    a(f'buffer_load_dword v79, v77, {WS}, s24 offen sc1')
    a('s_waitcnt vmcnt(0)')
    a('v_cmp_eq_u32 vcc, -1, v79')
    a(f's_cbranch_vccnz {P}_pr')
    a.label(f'{P}_fl')
    a('s_add_u32 s22, s24, 4096')
    for ks in range(7):
        a(f'buffer_load_dwordx4 v[{M+4*ks}:{M+4*ks+3}], v2, {WS}, {"s24" if ks < 4 else "s22"} offen offset:{(ks & 3)*1024} sc1')
    a('s_waitcnt vmcnt(0)')
    a(f'v_max_u32 v79, v{M}, v{M+1}')
    for r in range(M + 2, M + 28, 2): a(f'v_max3_u32 v79, v79, v{r}, v{r+1}')
    a('v_cmp_eq_u32 vcc, -1, v79')
    a(f's_cbranch_vccz {P}_pk')
    a.label(f'{P}_pr')
    a(f's_sleep {SRV_SLEEP}')
    a('s_add_u32 s30, s30, 1')
    a(f's_cmp_lt_u32 s30, {tok.WAIT_LIMIT}')
    a(f's_cbranch_scc1 {P}_pm')
    a(f's_branch {abort}')
    a.label(f'{P}_pk')
    for ti in range(7):
        for ks in range(7):
            a(f'v_smfmac_f32_16x16x64_bf16 v[{ACC+4*ti}:{ACC+4*ti+3}], v[{M+4*ks}:{M+4*ks+3}], {ureg(wreg(ti, ks), 8)}, v5')
    for p in range(4):
        A_ = ACC + 8 * p; B_ = A_ + 4 if p < 3 else YT
        if p == 3:
            for r in range(4): a(f'v_mov_b32 v{B_+r}, v{A_+r}')
        for r in range(4): a(f'v_permlane32_swap_b32 v{A_+r}, v{B_+r}')
        for r in range(4): a(f'v_add_f32 v{A_+r}, v{A_+r}, v{B_+r}')
        a(f'v_cvt_pk_bf16_f32 v{B_}, v{A_}, v{A_+1}')
        a(f'v_cvt_pk_bf16_f32 v{B_+1}, v{A_+2}, v{A_+3}')
        a(f'ds_write_b64 v{YA+p}, v[{B_}:{B_+1}]')
    a('s_waitcnt lgkmcnt(0)')
    a(f'ds_read_b128 v[{YT}:{YT+3}], v76')
    a(f'ds_read_b128 v[{YT+4}:{YT+7}], v76 offset:1024')
    a('s_waitcnt lgkmcnt(0)')
    a(f'buffer_store_dwordx4 v[{YT}:{YT+3}], v2, {WS}, s25 offen sc1')
    a(f'buffer_store_dwordx4 v[{YT+4}:{YT+7}], v2, {WS}, s25 offen offset:1024 sc1')
    a('s_waitcnt vmcnt(0)')
    a('s_mov_b64 exec, 1')
    a(f'buffer_store_dword v78, v2, {WS}, s26 offen sc1')
    a('s_mov_b64 exec, -1')
    a(f's_add_u32 s24, s24, {14*KB}')
    a(f's_add_u32 s25, s25, {16*KB}')
    a('s_add_u32 s26, s26, 32')
    a('s_add_u32 s17, s17, 2')
    a('s_cmp_lt_u32 s17, 64')
    a(f's_cbranch_scc1 {P}_loop')
```

```python
from asmlib import *
from layout import *
WS = 's[8:11]'
PEEK = WS
def common(a, endl):
    a('s_cmp_ge_u32 s2, 256')
    a(f's_cbranch_scc1 {endl}')
    a('s_load_dwordx2 s[6:7], s[0:1], 128')
    a('s_load_dwordx2 s[4:5], s[0:1], 112')
    a('v_lshrrev_b32 v1, 6, v0')
    a('v_readfirstlane_b32 s16, v1')
    a('v_and_b32 v1, 63, v0')
    a('v_lshlrev_b32 v2, 4, v1')
    a('v_lshrrev_b32 v3, 4, v1')
    a('v_and_b32 v4, 15, v1')
    a('s_waitcnt lgkmcnt(0)')
    a('s_mov_b32 s8, s6\ns_and_b32 s9, s7, 0xffff\ns_mov_b32 s10, 0x10000000\ns_mov_b32 s11, 0x20000')
    a(f's_mov_b32 s12, s4\ns_and_b32 s13, s5, 0xffff\ns_mov_b32 s14, {2048*896*2}\ns_mov_b32 s15, 0x20000')

WAIT_LIMIT = 2000000
SLEEP = 4
LONG = 127
NEAR = 56
FULLPOLL = 64
def backoff(a, P, sleep):
    a(f's_sleep {sleep}')
    a(f's_cmp_ge_u32 s17, {NEAR}')
    a(f's_cbranch_scc1 {P}_bo')
    a(f's_sleep {LONG}')
    a.label(P + '_bo')
def wait_eq(a, P, soff, target, abort, sleep=None, four=False):
    sleep = sleep or SLEEP
    if four: a('v_lshlrev_b32 v60, 2, v3')
    else: a('v_mov_b32 v60, 0')
    a('s_mov_b32 s30, 0')
    a.label(P)
    a(f'buffer_load_dword v61, v60, {WS}, {soff} offen sc1')
    a('s_waitcnt vmcnt(0)')
    a(f'v_cmp_ne_u32 vcc, {target}, v61')
    a(f's_cbranch_vccz {P}_ok')
    backoff(a, P, sleep)
    a('s_add_u32 s30, s30, 1')
    a(f's_cmp_lt_u32 s30, {WAIT_LIMIT}')
    a(f's_cbranch_scc1 {P}')
    a(f's_branch {abort}')
    a.label(P + '_ok')

def load_lin(a, base_s, n, areg, flags=''):
    for f in range(n):
        if f % 4 == 0: a(f's_add_u32 s22, {base_s}, {f*1024}')
        a(f'buffer_load_dwordx4 a[{areg+4*f}:{areg+4*f+3}], v2, {WS}, s22 offen offset:{(f & 3)*1024} {flags}')

def tokp_body(a, seg_s, hq_s, ld='', st='', sync=None, ldx=''):
    a(f's_lshl_b32 s20, {hq_s}, 2')
    a('s_add_u32 s20, s20, s16')
    a(f's_lshl_b32 s21, {seg_s}, 4')
    a('s_add_u32 s21, s21, s20')
    a(f's_mul_i32 s21, s21, {GSH_B}')
    a(f's_add_u32 s21, s21, {F_OFF}')
    a(f's_mul_i32 s23, {seg_s}, {28*KB}')
    a(f's_add_u32 s23, s23, {XM_OFF}')
    FA, XA, MA = 0, 112, 224
    if sync:
        a(f's_mul_i32 s24, {seg_s}, {7*KB}')
        a(f's_add_u32 s24, s24, {MEMG_OFF}')
        a(f's_lshr_b32 s25, {seg_s}, 3')
        a('s_lshl_b32 s25, s25, 4')
        a('s_add_u32 s25, s25, s20')
        a('s_lshl_b32 s25, s25, 7')
        a(f's_add_u32 s25, s25, {CNT_OFF + FC}')
        wait_eq(a, sync + '_wf', 's25', 56, sync + '_abort')
    else:
        a(f's_mul_i32 s24, {seg_s}, {EXCH_B}')
        a(f's_add_u32 s24, s24, {EXCH_OFF}')
    load_lin(a, 's21', 28, FA, ld)
    load_lin(a, 's23', 28, XA, ldx)
    if not sync: load_lin(a, 's24', 7, MA, ld)
    AX = {(0, 0): 8, (0, 1): 12, (1, 1): 16}
    AM = {(0, 0): 20, (1, 0): 24, (0, 1): 28, (1, 1): 32}
    for r in range(4):
        a(f'v_lshl_add_u32 v5, v3, 2, {r}')
        a(f'v_cmp_le_u32 s[{40+2*r}:{41+2*r}], v5, v4')
    a('v_cmp_gt_u32 s[48:49], 2, v3')
    a('v_mov_b32 v6, 0xff800000')
    a('s_waitcnt vmcnt(0)' if sync else 's_waitcnt vmcnt(7)')
    for f in range(14):
        for (tk, tt), d in AX.items():
            c = '0' if f == 0 else f'v[{d}:{d+3}]'
            xa = XA + 4 * (tk * 14 + f); fa = FA + 4 * (tt * 14 + f)
            a(f'v_mfma_f32_16x16x32_bf16 v[{d}:{d+3}], a[{xa}:{xa+3}], a[{fa}:{fa+3}], {c}')
    MV = 64
    if sync:
        a('s_mul_i32 s22, s20, 448')
        a('v_mov_b32 v62, s22')
        a('s_mov_b32 s30, 0')
        a.label(sync + '_pm')
        a(f's_cmp_ge_u32 s17, {FULLPOLL}')
        a(f's_cbranch_scc1 {sync}_pf')
        a(f'buffer_load_dword v61, v62, {WS}, s24 offen sc1')
        a('s_waitcnt vmcnt(0)')
        a('v_cmp_eq_u32 vcc, -1, v61')
        a(f's_cbranch_vccnz {sync}_pr')
        a.label(sync + '_pf')
        a('s_add_u32 s22, s24, 4096')
        for ks in range(7):
            a(f'buffer_load_dwordx4 v[{MV+4*ks}:{MV+4*ks+3}], v2, {WS}, {"s24" if ks < 4 else "s22"} offen offset:{(ks & 3)*1024} sc1')
        a('s_waitcnt vmcnt(0)')
        a(f'v_max_u32 v61, v{MV}, v{MV+1}')
        for r in range(MV + 2, MV + 28, 2): a(f'v_max3_u32 v61, v61, v{r}, v{r+1}')
        a('v_cmp_eq_u32 vcc, -1, v61')
        a(f's_cbranch_vccz {sync}_pk')
        a.label(sync + '_pr')
        backoff(a, sync + '_pm', SLEEP)
        a('s_add_u32 s30, s30, 1')
        a(f's_cmp_lt_u32 s30, {WAIT_LIMIT}')
        a(f's_cbranch_scc1 {sync}_pm')
        a(f's_branch {sync}_abort')
        a.label(sync + '_pk')
        a(f'buffer_load_dword v250, v251, {PEEK}, 0 offen sc1')
    else:
        a('s_waitcnt vmcnt(0)')
    for ks in range(7):
        for (half, tt), d in AM.items():
            c = '0' if ks == 0 else f'v[{d}:{d+3}]'
            fa = FA + 4 * (tt * 14 + ks * 2 + half)
            mop = f'v[{MV+4*ks}:{MV+4*ks+3}]' if sync else f'a[{MA+4*ks}:{MA+4*ks+3}]'
            a(f'v_mfma_f32_16x16x32_bf16 v[{d}:{d+3}], {mop}, a[{fa}:{fa+3}], {c}')
    a(f's_lshl_b32 s25, {seg_s}, 1')
    a(f's_mul_i32 s25, s25, {PT_B}')
    a(f's_add_u32 s25, s25, {PT_OFF}')
    a('s_lshl_b32 s26, s20, 10')
    a('s_add_u32 s26, s26, s25')
    a(f's_lshl_b32 s27, {hq_s}, 10')
    a('s_add_u32 s27, s27, s25')
    a('s_lshr_b32 s28, s16, 1')
    a('s_lshl_b32 s28, s28, 3')
    a('s_add_u32 s27, s27, s28')
    a(f's_add_u32 s27, s27, {16*KB}')
    a('s_and_b32 s28, s16, 1')
    a('s_cmp_eq_u32 s28, 0')
    a('s_cselect_b32 s50, -1, 0')
    a('s_cselect_b32 s51, 0, -1')
    for tt in range(2):
        xs = []
        for (tk, t2), d in AX.items():
            if t2 != tt: continue
            for r in range(4):
                if tk == tt: a(f'v_cndmask_b32 v{d+r}, v6, v{d+r}, s[{40+2*r}:{41+2*r}]')
                xs.append(d + r)
        z, t = AM[(0, tt)], AM[(1, tt)]
        for r in range(4): a(f'v_cndmask_b32 v{z+r}, v{t+r}, v{z+r}, s[48:49]')
        for r in range(4): a(f'v_mov_b32 v{t+r}, v{z+r}')
        for r in range(4): a(f'v_permlane32_swap_b32 v{z+r}, v{t+r}')
        for r in range(4): a(f'v_add_f32 v{z+r}, v{z+r}, v{t+r}')
        ms = [z + r for r in range(4)]
        al = xs + ms
        mx = 40
        a(f'v_max3_f32 v{mx}, v{al[0]}, v{al[1]}, v{al[2]}')
        rest = al[3:]
        while len(rest) >= 2:
            a(f'v_max3_f32 v{mx}, v{mx}, v{rest[0]}, v{rest[1]}'); rest = rest[2:]
        if rest: a(f'v_max_f32 v{mx}, v{mx}, v{rest[0]}')
        for sw in ('16', '32'):
            a(f'v_mov_b32 v41, v{mx}')
            a(f'v_permlane{sw}_swap_b32 v{mx}, v41')
            a(f'v_max_f32 v{mx}, v{mx}, v41')
        for r in al: a(f'v_sub_f32 v{r}, v{r}, v{mx}')
        for r in al: a(f'v_exp_f32 v{r}, v{r}')
        a(f'v_add_f32 v42, v{ms[0]}, v{ms[1]}')
        a(f'v_add_f32 v43, v{ms[2]}, v{ms[3]}')
        a('v_add_f32 v42, v42, v43')
        a('v_mul_f32 v42, 0.5, v42')
        for r in xs: a(f'v_add_f32 v42, v42, v{r}')
        for sw in ('16', '32'):
            a('v_mov_b32 v41, v42')
            a(f'v_permlane{sw}_swap_b32 v42, v41')
            a('v_add_f32 v42, v42, v41')
        a('v_rcp_f32 v42, v42')
        for r in al: a(f'v_mul_f32 v{r}, v{r}, v42')
        o = 44 + 8 * tt
        for k in range(4): a(f'v_cvt_pk_bf16_f32 v{o+k}, v{xs[k]}, ' + (f'v{xs[4+k]}' if tt else '0'))
        a(f'v_cvt_pk_bf16_f32 v{o+4}, v{ms[0]}, v{ms[1]}')
        a(f'v_cvt_pk_bf16_f32 v{o+5}, v{ms[2]}, v{ms[3]}')
        a(f'buffer_store_dwordx4 v[{o}:{o+3}], v2, {WS}, s26 offen {st}')
        a('s_mov_b64 exec, s[50:51]')
        a(f'buffer_store_dwordx2 v[{o+4}:{o+5}], v2, {WS}, s27 offen {st}')
        a('s_mov_b64 exec, -1')
        if tt == 0:
            a(f's_add_u32 s26, s26, {PT_B}')
            a(f's_add_u32 s27, s27, {PT_B}')
    if sync:
        a(f's_lshl_b32 s25, {seg_s}, 7')
        a(f's_add_u32 s25, s25, {CNT_OFF + PTC}')
        a('v_mov_b32 v5, 1')
        a('v_mov_b32 v6, 0')
        a('s_waitcnt vmcnt(0)')
        a('s_mov_b64 exec, 1')
        a(f'buffer_atomic_add v5, v6, {WS}, s25 offen')
        a('s_mov_b64 exec, -1')

def toko_body(a, seg_s, vq_s, ld='', sync=None, OUT='s[12:15]'):
    a(f's_lshl_b32 s20, {vq_s}, 2')
    a('s_add_u32 s20, s20, s16')
    a('s_mul_i32 s24, s20, 65')
    a(f's_add_u32 s24, s24, {seg_s}')
    a('s_lshl_b32 s24, s24, 13')
    a(f's_add_u32 s24, s24, {T2_OFF + 8*KB}')
    a('s_lshl_b32 s21, s20, 6')
    a(f's_add_u32 s21, s21, {seg_s}')
    a(f's_mul_i32 s21, s21, {GSH_B}')
    a(f's_add_u32 s21, s21, {VO_OFF}')
    a(f's_lshl_b32 s25, {seg_s}, 1')
    a(f's_mul_i32 s25, s25, {PT_B}')
    a(f's_add_u32 s25, s25, {PT_OFF}')
    a('v_mov_b32 v5, v2')
    a('v_min_u32 v6, 11, v4')
    a('v_mad_u32_u24 v6, v3, 12, v6')
    a('v_lshlrev_b32 v6, 4, v6')
    a('v_add_u32 v6, 1024, v6')
    a('v_lshrrev_b32 v8, 1, v3')
    a('v_lshl_add_u32 v8, v8, 4, v4')
    a('v_lshlrev_b32 v8, 4, v8')
    a('v_and_b32 v9, 1, v3')
    a('v_lshl_add_u32 v7, v9, 3, v8')
    VA, PA = 0, 128
    T2R, PMR = 28, 64
    if sync:
        a(f's_lshr_b32 s26, {seg_s}, 3')
        a('s_lshl_b32 s26, s26, 4')
        a('s_add_u32 s26, s26, s20')
        a('s_lshl_b32 s26, s26, 7')
        a(f's_add_u32 s26, s26, {CNT_OFF + VOC}')
        wait_eq(a, sync + '_wv', 's26', 56, sync + '_abort')
    for h in range(16):
        if h % 2 == 0: a(f's_add_u32 s22, s21, {h*1792}')
        for t in range(2):
            r = VA + 8 * h + 4 * t
            a(f'buffer_load_dwordx4 a[{r}:{r+3}], v{5+t}, {WS}, s22 offen offset:{(h & 1)*1792} {ld}')
    if sync:
        a('s_lshl_b32 s26, s20, 6')
        a(f's_add_u32 s26, s26, {seg_s}')
        a('s_lshl_b32 s26, s26, 4')
        a(f's_add_u32 s26, s26, {CNT_OFF + T2F}')
        wait_eq(a, sync + '_wt', 's26', 1, sync + '_abort', four=True)
    for hq in range(4):
        if hq % 2 == 0: a(f's_add_u32 s22, s24, {hq*2048}')
        for t in range(2):
            r = T2R + 8 * hq + 4 * t
            for pc in range(2):
                a(f'buffer_load_dwordx2 v[{r+2*pc}:{r+2*pc+1}], v7, {WS}, s22 offen offset:{(hq & 1)*2048 + t*1024 + pc*512} {ld}')
    if sync:
        a(f's_lshl_b32 s26, {seg_s}, 7')
        a(f's_add_u32 s26, s26, {CNT_OFF + PTC}')
        wait_eq(a, sync + '_wp', 's26', 16, sync + '_abort', sleep=2)
        a(f'buffer_load_dword v250, v251, {PEEK}, 0 offen sc1')
    else:
        a('s_waitcnt vmcnt(16)')
    for h in range(16):
        if h % 4 == 0:
            a(f's_add_u32 s26, s25, {h*1024}')
            a(f's_add_u32 s27, s25, {PT_B + h*1024}')
        for tt in range(2):
            r = PA + 8 * h + 4 * tt
            a(f'buffer_load_dwordx4 a[{r}:{r+3}], v2, {WS}, s{26+tt} offen offset:{(h & 3)*1024} {ld}')
    a(f's_add_u32 s26, s25, {16*KB}')
    a(f's_add_u32 s27, s25, {PT_B + 16*KB}')
    for hq in range(4):
        for tt in range(2):
            r = PMR + 8 * hq + 4 * tt
            a(f'buffer_load_dwordx4 v[{r}:{r+3}], v2, {WS}, s{26+tt} offen offset:{hq*1024} {ld}')
    ACC = 12
    def mm(A_, B_, t, tt, first):
        d = ACC + 8 * t + 4 * tt
        a(f'v_mfma_f32_16x16x32_bf16 v[{d}:{d+3}], {A_}, {B_}, ' + ('0' if first else f'v[{d}:{d+3}]'))
    for h in range(16):
        a(f's_waitcnt vmcnt({(15 - h) * 2 + 8})')
        for t in range(2):
            for tt in range(2):
                mm(f'a[{VA+8*h+4*t}:{VA+8*h+4*t+3}]', f'a[{PA+8*h+4*tt}:{PA+8*h+4*tt+3}]', t, tt, h == 0)
    a('s_waitcnt vmcnt(0)')
    for hq in range(4):
        for t in range(2):
            for tt in range(2):
                mm(f'v[{T2R+8*hq+4*t}:{T2R+8*hq+4*t+3}]', f'v[{PMR+8*hq+4*tt}:{PMR+8*hq+4*tt+3}]', t, tt, False)
    a('v_mul_u32_u24 v9, 1792, v4')
    a('v_lshl_add_u32 v9, v3, 3, v9')
    a('s_lshl_b32 s22, s20, 5')
    a('v_add_u32 v8, s22, v9')
    a('s_mul_i32 s22, s20, 24')
    a('s_add_u32 s22, s22, 512')
    a('v_add_u32 v9, s22, v9')
    a('v_mov_b32 v10, 0x40000000')
    a('v_cmp_eq_u32 vcc, 3, v3')
    a('v_cndmask_b32 v9, v9, v10, vcc')
    a(f's_mul_i32 s26, {seg_s}, {32*1792}')
    a('s_add_u32 s26, s26, 896')
    a(f's_add_u32 s27, s26, {16*1792}')
    for tt in range(2):
        for t_ in range(2):
            d = ACC + 8 * t_ + 4 * tt; o = 96 + 4 * tt + 2 * t_
            a(f'v_cvt_pk_bf16_f32 v{o}, v{d}, v{d+1}')
            a(f'v_cvt_pk_bf16_f32 v{o+1}, v{d+2}, v{d+3}')
            a(f'buffer_store_dwordx2 v[{o}:{o+1}], v{8+t_}, {OUT}, s{26+tt} offen')

def gen_tok(which):
    name = f'tok{which}_kernel'
    a = Asm(); a.raw(kernel_header(name))
    common(a, f't{which}_end')
    a('s_lshr_b32 s17, s2, 2')
    a('s_and_b32 s18, s2, 3')
    if which == 'p': tokp_body(a, 's17', 's18')
    else: toko_body(a, 's17', 's18')
    a.label(f't{which}_end')
    a('s_endpgm')
    return a
```

```python
import sys
from asmlib import *
import prep, chain2
import os
HDR = open(os.path.dirname(os.path.abspath(__file__)) + '/hdr.txt').read()
def build(path):
    prep.RING = 1
    ks = [(prep.gen_prep(), 'prep_kernel', 'grid=(256,1,1) block=(256,1,1) lds=163840', (272, 256)),
          (chain2.gen_chain_kernel('main_kernel'), 'main_kernel', 'grid=(256,1,1) block=(256,1,1) lds=163840', (512, 256))]
    if chain2.FUSE: ks = ks[1:]
    out = [HDR.rstrip('\n')]
    for a, n, l, _ in ks: out.append(f'; @launch kernel={n} {l}')
    out += ['.amdgcn_target "amdgcn-amd-amdhsa--gfx950"', '.text']
    for a, n, l, _ in ks: out.append(a.text())
    out.append('.section .rodata,"a"')
    for a, n, l, (v, ac) in ks: out.append(kernel_desc(n, v, ac))
    open(path, 'w').write('\n'.join(out) + '\n')
    print('instructions', sum(a.count for a, *_ in ks))
if __name__ == '__main__':
    for x in sys.argv[2:]:
        k, v = x.split('=')
        if k in ('PST', 'TOUCH_B'):
            import prep2; setattr(prep2, k, int(v)); continue
        if k in ('LDFL', 'TFL'):
            import prep2; setattr(prep2, k, v); continue
        assert hasattr(chain2, k), k
        setattr(chain2, k, int(v))
    build(sys.argv[1])
```

```python
from asmlib import *
from layout import *

SRD = 's[8:11]'; DBG = 's[12:15]'
SPIN_LIMIT = 400000
NSTEPS = 64
STAMPS = 0
STAMP_STEP = 42
STEPLOG = 0
STAMP_OFF = 100 * 1024 * 1024
NST = 10
POLL_DEPTH = 3
F1_DELAY = 30
F2_POS = 3
FILL_A = 16
FILL_B = 0
DIAG = 0
CODE_PF = 1
SYNC = 1
XCD_SEL = 0
HLP_EARLY = 1
P_MOV = 2
D = 'row_mask:0xf bank_mask:0xf'
XSEG_B = 28 * KB
FLG1 = EXCH_OFF + 2 * EXCH_B
FLG2 = FLG1 + 16 * 128
RING_B = 2 * EXCH_B + 48 * 128
SC_SLEEP = 6
X_EARLY = 0
R1 = 4
R2 = 4
VO_PRE = 16
VO_EVERY = 2
B1_POS = 4
TLB_WARM = 0
WARM = 0
PCHK = 1
NOX = 0
X_POS = 12
X_EVERY = 4
XFL = 'sc1'
TAIL = 2
SC_TOUCH = 0
TOUCH_AHEAD = 1
MG_LATE = 0
P_PRE = 10
F3_POS = 5
F2_DELAY = 8
P3_SLEEP = 3
H3_DELAY = 0
H2_DELAY = 0
X_LATE = 2

def stamp(a, k):
    if STAMPS: a(f's_memtime s[{40+2*k}:{41+2*k}]')
def stamp_flush(a, path, lbl, t):
    if not STAMPS: return
    a(f's_sub_u32 s22, s19, {STAMP_STEP}')
    a('s_cmp_gt_u32 s22, 1')
    a(f's_cbranch_scc1 {lbl}')
    a('s_waitcnt lgkmcnt(0)')
    a('s_lshl_b32 s22, s22, 14')
    a('s_lshl_b32 s63, s17, 9')
    a('s_add_u32 s22, s22, s63')
    a(f's_add_u32 s22, s22, {STAMP_OFF + path * 64}')
    a(f'v_mov_b32 v{t}, 0')
    for k in range(NST):
        a(f'v_mov_b32 v{t+1}, s{40+2*k}')
        a(f'buffer_store_dword v{t+1}, v{t}, {SRD}, s22 offen offset:{4*k}')
        a.nop(1)
    a.label(lbl)
def stamp_calib(a, P):
    if not STAMPS: return
    a('s_memrealtime s[64:65]')
    a('s_waitcnt lgkmcnt(0)')
    a('s_lshr_b32 s68, s64, 10')
    a.label(P)
    a('s_memrealtime s[64:65]')
    a('s_memtime s[66:67]')
    a('s_waitcnt lgkmcnt(0)')
    a('s_lshr_b32 s69, s64, 10')
    a('s_cmp_eq_u32 s68, s69')
    a(f's_cbranch_scc1 {P}')
    a('s_lshl_b32 s22, s17, 9')
    a('s_lshl_b32 s63, s89, 6')
    a('s_add_u32 s22, s22, s63')
    a(f's_add_u32 s22, s22, {STAMP_OFF}')
    a('v_mov_b32 v8, s64\nv_mov_b32 v9, s66\nv_mov_b32 v10, 0')
    a(f'buffer_store_dwordx2 v[8:9], v10, {SRD}, s22 offen offset:56')

EVLOG = 0
EV_OFF = 101 * 1024 * 1024
HDBG = 0
HMAP = {9000: 6, 9010: 7, 9011: 8, 9002: 9, 9003: 10, 9004: 11, 9020: 12, 9021: 13, 9022: 14}
def evlog(a, tag):
    if HDBG and tag in HMAP:
        lb = a.newlabel('hd')
        if tag not in (9002, 9003):
            a('s_cmp_lg_u32 s16, 0')
            a(f's_cbranch_scc1 {lb}')
        a('s_memrealtime s[98:99]')
        a('s_waitcnt lgkmcnt(0)')
        if tag == 9000: a('s_not_b32 s98, s98')
        a('v_mov_b32 v37, s98')
        a('s_mov_b64 exec, 1')
        a(f'buffer_atomic_umax v37, off, {DBG}, 0 offset:{4*HMAP[tag]}')
        a('s_mov_b64 exec, -1')
        a.label(lb)
    if not EVLOG: return
    a('s_memrealtime s[98:99]')
    a('s_waitcnt lgkmcnt(0)')
    a(f'v_mov_b32 v36, {tag}')
    a('v_mov_b32 v37, s98')
    a('s_mov_b64 exec, 1')
    a(f'buffer_store_dwordx2 v[36:37], off, {SRD}, s100')
    a('s_mov_b64 exec, -1')
    a('s_add_u32 s100, s100, 8')

def spin(a, back, abort):
    a('s_add_u32 s30, s30, 1')
    a(f's_cmp_lt_u32 s30, {SPIN_LIMIT}')
    a(f's_cbranch_scc1 {back}')
    a(f's_branch {abort}')

def flagpoll(a, vaddr, tag, regs, lbl, abort):
    Dp = POLL_DEPTH
    for i in range(Dp):
        a(f'buffer_load_dword v{regs+i}, v{vaddr}, {SRD}, 0 offen sc1')
    a.label(lbl + '_l')
    for i in range(Dp):
        a(f's_waitcnt vmcnt({Dp-1})')
        a(f'v_cmp_gt_u32 vcc, {tag}, v{regs+i}')
        a(f's_cbranch_vccz {lbl}_d')
        a(f'buffer_load_dword v{regs+i}, v{vaddr}, {SRD}, 0 offen sc1')
    spin(a, lbl + '_l', abort)
    a.label(lbl + '_d')

def load_units(a, units, base, tmp_s='s22', fl=''):
    cur = None; n = 0
    for off, reg in units:
        for hb in range(2):
            o = off + hb * 1024
            blk = o // 4096 * 4096
            if blk != cur:
                a(f's_add_u32 {tmp_s}, {base}, {blk}'); cur = blk
            a(f'buffer_load_dwordx4 {ureg(reg + 4 * hb, 4)}, v2, {SRD}, {tmp_s} offen offset:{o - blk} {fl}')
            n += 1
            if n % 32 == 0: a('s_waitcnt vmcnt(24)')

def wreg(ti, ks):
    u = ti * 7 + ks
    return 256 + 8 * u if u < 32 else 120 + 8 * (u - 32)

def lane_consts(a):
    a('v_and_b32 v1, 63, v0')
    a('v_lshlrev_b32 v2, 4, v1')
    a('v_lshrrev_b32 v116, 4, v1')
    a('v_and_b32 v117, 15, v1')
    a('v_mov_b32 v3, 0x4444')
    a('v_mov_b32 v118, 0xeeee')
    a('v_cmp_lt_u32 vcc, 7, v117')
    a('v_cndmask_b32 v3, v3, v118, vcc')

def next_step(a):
    a('s_mov_b32 s19, s18')
    a('s_add_u32 s18, s18, 1')
    a('s_mov_b32 s22, s20')
    a('s_mov_b32 s20, s21')
    a('s_mov_b32 s21, s22')
    a('s_add_u32 s23, s20, 4096')

def gap(a, ops):
    for o in ops:
        if not o.startswith('v_'): a(o)
    for o in ops:
        if o.startswith('v_'): a(o)

def poison_max(a, acc, regs):
    regs = list(regs)
    a(f'v_max3_u32 v{acc}, v{regs[0]}, v{regs[1]}, v{regs[2]}'); regs = regs[3:]
    while len(regs) >= 2:
        a(f'v_max3_u32 v{acc}, v{acc}, v{regs[0]}, v{regs[1]}'); regs = regs[2:]
    if regs: a(f'v_max_u32 v{acc}, v{acc}, v{regs[0]}')

def poison_max16(a, acc, regs):
    regs = list(regs)
    a(f'v_pk_max_u16 v{acc}, v{regs[0]}, v{regs[1]}')
    for r in regs[2:]: a(f'v_pk_max_u16 v{acc}, v{acc}, v{r}')
    a(f'v_lshlrev_b32 v{acc+1}, 16, v{acc}')
    a(f'v_max_u32 v{acc}, v{acc}, v{acc+1}')
    a(f'v_cmp_le_u32 vcc, 0xffff0000, v{acc}')

XP = 0
MP = 4 * KB
MJ = MP + 2304
XB = 8 * KB
def score_tiles(w):
    kb = 4 + (w >> 1); pP = w & 1
    return [(w, 0), (w, 1), (w, 2), (w, 3), (kb, 2 * pP), (kb, 2 * pP + 1), (6, 2 * (1 - pP) + (w >> 1))]
def score_mreg(w):
    kb = 4 + (w >> 1)
    m = {0: 8, 1: 12, 2: 16, 3: 20, 9 - kb: 24}
    if w & 1: m[kb] = 28; m[6] = 32
    else: m[6] = 28; m[kb] = 32
    return m

def gen_score(a, w, st, tag):
    L = lambda n: f'{tag}_sc{w}_{n}'
    ABORT = f'{tag}_abort'
    MR = score_mreg(w)
    ka = w; half6 = w >> 1
    AC = [36, 40, 44, 48, 52, 56, 60 + 2 * half6]
    TMP = 66; SX = 68; BOP2 = 76; XS = [80, 88, 96, 104]
    D0, D1, BOPA = [MR[k] for k in range(4) if k != ka]
    SACC = 52; W = 56
    pb, p6 = (0, 1) if w & 1 else (1, 0)
    def S(ti, ks):
        return f'v_smfmac_f32_16x16x64_bf16 v[{AC[ti]}:{AC[ti]+3}], v[{MR[ks]}:{MR[ks]+3}], {ureg(wreg(ti, ks), 8)}, v3'
    def cvt(dst, src):
        return [f'v_cvt_pk_bf16_f32 v{dst}, v{src}, v{src+1}', f'v_cvt_pk_bf16_f32 v{dst+1}, v{src+2}, v{src+3}']
    def cin(ti, hi):
        r = AC[ti]
        return cvt(r, r) if hi else cvt(r + 2, r)[::-1]
    def T(dst, src): return f'v_mfma_f32_16x16x32_bf16 v[{dst}:{dst+3}], v[{src}:{src+3}], v[4:7], 0'
    def xld(k):
        buf, hb = k >> 1, k & 1; r = XS[buf] + 4 * hb
        return f'buffer_load_dwordx4 v[{r}:{r+3}], v{117 if buf < 2 else 2}, {SRD}, {"s26" if buf & 1 else "s24"} offen offset:{hb*1024} {XFL}'
    a.xld = xld
    def Smm(m, b, first=False):
        c = '0' if first else f'v[{SACC}:{SACC+3}]'
        return f'v_mfma_f32_16x16x32_bf16 v[{SACC}:{SACC+3}], v[{m}:{m+3}], v[{b}:{b+3}], {c}'
    def Sx(tt, b, buf):
        return f'v_smfmac_f32_16x16x64_bf16 v[{SX+4*tt}:{SX+4*tt+3}], v[{b}:{b+3}], v[{XS[buf]}:{XS[buf]+7}], v3'
    ZR = list(range(36, 52)) + list(range(AC[6], AC[6] + 4)) + list(range(SX, SX + 8)) + list(range(52, 60))
    def zero(lo=0, hi=99):
        for r in ZR[lo:hi]: a(f'v_mov_b32 v{r}, 0')
    def mls(ks): return f'buffer_load_dwordx4 v[{MR[ks]}:{MR[ks]+3}], v2, {SRD}, {"s20" if ks < 4 else "s23"} offen offset:{(ks & 3) * 1024} sc1'
    def ml(ks): a(mls(ks))
    a.raw('.p2align 6')
    a.label(L('loop'))
    a('s_mov_b32 s30, 0')
    a('s_mov_b32 s62, 0')
    a('s_setprio 3')
    if w == 0:
        if SC_SLEEP: a(f's_sleep {SC_SLEEP}')
        flagpoll(a, 0, 's19', BOP2, L('fp'), ABORT)
        ml(0)
        a('s_barrier')
    else:
        a('s_barrier')
        ml(0)
    stamp(a, 0)
    for k in (1, 2, 3):
        a(f's_setprio {3-k}')
        ml(k)
    NZ = len(ZR) - (WARM if w != 2 else 0)
    zero(NZ)
    a.flush()
    a.label(L('go'))
    chk = lambda k: f'v_cmp_eq_u32 vcc, -1, v{MR[k]}'
    ex1 = lambda k: [chk(k)]
    ex3 = [f'v_max3_u32 v{TMP}, v24, v27, v28', f'v_max3_u32 v{TMP}, v{TMP}, v31, v32', f'v_max_u32 v{TMP}, v{TMP}, v35', f'v_cmp_eq_u32 vcc, -1, v{TMP}']
    a('s_waitcnt vmcnt(3)')
    stamp(a, 1)
    xpos = [-1] * X_LATE + [X_POS + X_EVERY * k for k in range(8 - X_LATE)]
    nx = 0
    for ks in range(4):
        for ti in range(7):
            a(S(ti, ks))
            if ks == 0:
                if ti in (0, 2, 5): ml(4 + ti // 2)
                if ti == 2: a(f's_cbranch_vccnz {L("r0")}')
            if ti == 4 and ks < 3: a(f's_waitcnt vmcnt({[4, 4, 3][ks] + nx})')
            if ks == 3 and ti == 1: a(f's_waitcnt vmcnt({nx})')
            if 7 * ks + ti in xpos and not NOX:
                assert 7 * ks + ti > 5
                a(xld(X_LATE + nx)); nx += 1
            if ks == 0 and ti == 0: a(chk(0))
            if ti == 4 and ks < 3: a(chk(ks + 1))
            if ks == 3 and 1 <= ti <= 4: a(ex3[ti - 1])
            if ti == 6:
                a(f's_cbranch_vccnz {L(f"r{ks+1}")}')
                a.label(L(f'c{ks+1}'))
    stamp(a, 2)
    seq = []
    for ti in (6, 4, 5, 0, 1, 2, 3):
        for ks in (4, 5, 6): seq.append([S(ti, ks), []])
    def side(i, ops): seq[i][1] += ops
    def spread(i, ops):
        for k, o in enumerate(ops): side(i + k, [o])
    spread(5, cin(6, half6))
    seq.insert(8, [T(D0, 62 - 2 * half6), []])
    spread(8, cin(4, 0))
    spread(10, cvt(BOP2 + 2 * p6, D0))
    spread(12, cin(5, 1))
    seq.insert(15, [T(D1, 54), []])
    spread(15, cin(0, 0))
    spread(17, cvt(BOP2 + 2 * pb, D1))
    spread(19, cin(1, 1))
    c2 = cin(2, 0); c3 = cin(3, 1)
    for k in range(X_LATE + nx, 8):
        if not NOX: side(xpos[k] - 28, [xld(k)])
    side(22, ['s_waitcnt vmcnt(4)'] + c2[:1])
    seq.append([Sx(0, BOP2, 0), c2[1:]])
    seq.append([T(D0, 38), c3])
    seq.append([T(D1, 46), []])
    seq.append([Sx(1, BOP2, 1), cvt(BOPA, D0)[:1]])
    seq.append([Smm(30, BOP2, True), ['s_waitcnt vmcnt(0)'] + cvt(BOPA, D0)[1:] + cvt(BOPA + 2, D1)])
    wm = f'ds_write_b128 v113, v[{SACC}:{SACC+3}]'
    def foldx(t):
        b = SX + 4 * t
        a(f'v_permlane32_swap_b32 v{b}, v{b+2}')
        a(f'v_permlane32_swap_b32 v{b+1}, v{b+3}')
        a(f'v_add_f32 v{W+t}, v{b}, v{b+2}')
        a(f'v_add_f32 v{W+2+t}, v{b+1}, v{b+3}')
    last3 = [Sx(0, BOPA, 2), Sx(1, BOPA, 3), Smm(MR[ka], BOPA)]
    for k in [(2, 0, 1), (0, 1, 2), (0, 2, 1), (0, 1, 2)][TAIL]: seq.append([last3[k], []])
    for m, ops in seq:
        a(m)
        gap(a, ops)
    nz = 0
    if TAIL == 0:
        a(wm); foldx(0); foldx(1)
    elif TAIL == 1:
        foldx(0); foldx(1); a(wm)
    else:
        foldx(0); a(wm); foldx(1)
    a(f'ds_write_b128 v2, v[{W}:{W+3}] offset:{XP + w*1024}')
    a(f'v_cmp_u_f32 vcc, v{W+1}, v{W+3}')
    stamp(a, 3)
    zero(nz, nz + 4)
    a(f's_cbranch_vccnz {L("retry")}')
    a.label(L('cont'))
    a(f's_add_u32 s24, s24, {XSEG_B}')
    a(f's_add_u32 s26, s26, {XSEG_B}')
    for k in range(X_LATE): a(xld(k))
    zero(nz + 4, nz + FILL_A); nz += FILL_A
    a('s_waitcnt lgkmcnt(0)')
    a('s_barrier')
    stamp(a, 4)
    if w < 2:
        t = 8
        for k in range(4): a(f'ds_read_b64 v[{t+2*k}:{t+2*k+1}], v114 offset:{k*1024}')
        a(f'ds_read2_b32 v[{t+8}:{t+9}], v115 offset0:0 offset1:64')
        a(f'ds_read2_b32 v[{t+10}:{t+11}], v115 offset0:128 offset1:192')
        zero(nz, nz + FILL_B); nz += FILL_B
        a('s_waitcnt lgkmcnt(0)')
        stamp(a, 5)
        X = t; Y = t + 4; Mm = t + 8; m = t + 12; mx = t + 14; l = t + 16
        a(f'v_pk_add_f32 v[{Mm}:{Mm+1}], v[{Mm}:{Mm+1}], v[{Mm+2}:{Mm+3}]')
        a(f'v_pk_add_f32 v[{X}:{X+1}], v[{X}:{X+1}], v[{X+2}:{X+3}]')
        a(f'v_pk_add_f32 v[{Y}:{Y+1}], v[{Y}:{Y+1}], v[{Y+2}:{Y+3}]')
        a(f'v_add_f32 v{m}, v{Mm}, v{Mm+1}')
        a(f'v_pk_add_f32 v[{X}:{X+1}], v[{X}:{X+1}], v[{Y}:{Y+1}]')
        a(f'v_max_f32 v{mx}, v{X}, v{X+1}')
        a(f'v_add_f32_dpp v{m}, v{m}, v{m} row_ror:8 {D}')
        a(f'v_max_f32_dpp v{mx}, v{mx}, v{mx} row_ror:8 {D}')
        a(f'v_max_f32 v{mx}, v{mx}, v{m}')
        a(f'v_max_f32_dpp v{mx}, v{mx}, v{mx} quad_perm:[1,0,3,2] {D}')
        a(f'v_max_f32_dpp v{mx}, v{mx}, v{mx} quad_perm:[2,3,0,1] {D}')
        a(f'v_max_f32_dpp v{mx}, v{mx}, v{mx} row_half_mirror {D}')
        a(f'v_pk_add_f32 v[{X}:{X+1}], v[{X}:{X+1}], v[{mx}:{mx+1}] op_sel_hi:[1,0] neg_lo:[0,1] neg_hi:[0,1]')
        a(f'v_sub_f32 v{m}, v{m}, v{mx}')
        a(f'v_exp_f32 v{X}, v{X}')
        a(f'v_exp_f32 v{X+1}, v{X+1}')
        a(f'v_exp_f32 v{m}, v{m}')
        a(f'v_add_f32 v{l}, v{X}, v{X+1}')
        a(f'v_fmac_f32 v{l}, 0.5, v{m}')
        a(f'v_mov_b32_dpp v{m+1}, v{m} quad_perm:[1,0,3,2] {D}')
        a(f'v_add_f32_dpp v{l}, v{l}, v{l} quad_perm:[1,0,3,2] {D}')
        a(f'v_add_f32_dpp v{l}, v{l}, v{l} quad_perm:[2,3,0,1] {D}')
        a(f'v_add_f32_dpp v{l}, v{l}, v{l} row_half_mirror {D}')
        a(f'v_add_f32_dpp v{l}, v{l}, v{l} row_ror:8 {D}')
        a(f'v_rcp_f32 v{l}, v{l}')
        a(f'v_pk_mul_f32 v[{X}:{X+1}], v[{X}:{X+1}], v[{l}:{l+1}] op_sel_hi:[1,0]')
        a(f'v_pk_mul_f32 v[{m}:{m+1}], v[{m}:{m+1}], v[{l}:{l+1}] op_sel_hi:[1,0]')
        a(f'v_cvt_pk_bf16_f32 v{X}, v{X}, v{X+1}')
        a(f'v_cvt_pk_bf16_f32 v{m}, v{m}, v{m+1}')
        a(f'v_min_u32 v{X}, -2, v{X}')
        a(f'buffer_store_dword v{X}, v1, {SRD}, s20 offen {st}')
        a(f'v_min_u32 v{m}, -2, v{m}')
        a(f'buffer_store_dword v{m}, v118, {SRD}, s20 offen {st}')
        stamp(a, 6)
        if SC_TOUCH: a('s_barrier')
        a(f'buffer_store_dword v119, v1, {SRD}, s21 offen {st}')
        a(f'buffer_store_dword v119, v118, {SRD}, s21 offen {st}')
    else:
        if w == 2:
            zero(nz, nz + F1_DELAY)
            for k in range(max(0, nz + F1_DELAY - len(ZR))): a(f'v_mov_b32 v{TMP}, 0')
            nz += F1_DELAY
            a(f'buffer_store_dword v119, v1, {SRD}, 0 offen {st}')
            stamp(a, 5)
        zero(nz, NZ); nz = NZ
        if SC_TOUCH:
            a('s_barrier')
            a(f'buffer_load_dword v{TMP+1}, v116, {SRD}, s35 offen sc1')
            a(f's_add_u32 s35, s35, {GSH_B}')
    zero(nz, NZ)
    stamp_flush(a, w, L('sf'), BOP2)
    if STEPLOG and w == 1:
        a('s_memtime s[40:41]')
        a('s_lshl_b32 s22, s17, 8')
        a('s_lshl_b32 s42, s19, 2')
        a('s_add_u32 s22, s22, s42')
        a(f's_add_u32 s22, s22, {STAMP_OFF}')
        a(f'v_mov_b32 v{BOP2}, 0')
        a('s_waitcnt lgkmcnt(0)')
        a(f'v_mov_b32 v{BOP2+1}, s40')
        a(f'buffer_store_dword v{BOP2+1}, v{BOP2}, {SRD}, s22 offen')
    if DIAG and w == 3:
        a('s_cmp_lg_u32 s19, 1')
        a(f's_cbranch_scc1 {L("dg")}')
        a('s_memtime s[90:91]')
        a.label(L('dg'))
    next_step(a)
    if w == 2: a('v_mov_b32 v119, s18')
    a(f's_cmp_lt_u32 s19, {NSTEPS-1}')
    a.flush()
    a(f's_cbranch_scc1 {L("loop")}')
    a(f's_branch {tag}_done')
    for k in range(5):
        ks_ = [k] if k < 4 else [4, 5, 6]
        a.label(L(f'r{k}'))
        a('s_add_u32 s31, s31, 1')
        for ks in ks_: ml(ks)
        a('s_waitcnt vmcnt(0)')
        for x in (ex1(k) if k < 4 else ex3): a(x)
        if k == 0:
            for r in range(36, 52): a(f'v_mov_b32 v{r}, 0')
        a.flush()
        a(f's_cbranch_vccz {L("go" if k == 0 else f"c{k}")}')
        spin(a, L(f'r{k}'), ABORT)
    a.label(L('retry'))
    a('s_cmp_lg_u32 s62, 0')
    a(f's_cbranch_scc1 {L("cont")}')
    a('s_waitcnt vmcnt(0) lgkmcnt(0)')
    a.label(L('rv'))
    for ks in range(7): ml(ks)
    a('s_waitcnt vmcnt(0)')
    poison_max16(a, TMP, range(8, 36))
    a(f's_cbranch_vccz {L("rk")}')
    spin(a, L('rv'), ABORT)
    a.label(L('rk'))
    a('s_mov_b32 s62, 1')
    zero()
    a('s_add_u32 s31, s31, 0x100')
    a.flush()
    a(f's_branch {L("go")}')

def touch_ring(a, t):
    nl = RING_B // 128
    a(f's_mov_b32 s22, {EXCH_OFF}')
    for k in range((nl + 63) // 64):
        a(f'v_add_u32 v{t}, {64*k}, v1')
        a(f'v_min_u32 v{t}, {nl-1}, v{t}')
        a(f'v_lshlrev_b32 v{t}, 7, v{t}')
        a(f'buffer_load_dword v{t+1}, v{t}, {SRD}, s22 offen sc1')

def WFL(): return 'sc1' if FUSE else ''
HELP = 0
def mask_wait(a, P, vaddr, soff, smask, sleep=3):
    poll(a, P, [f'buffer_load_dword v65, {vaddr}, {SRD}, {soff} {"offen" if vaddr != "off" else ""} sc1'], [f'v_and_b32 v66, {smask}, v65', f'v_cmp_ne_u32 vcc, {smask}, v66'], sleep=sleep)
def b_wait(a, P, w):
    a('s_lshr_b32 s22, s17, 2')
    a('s_lshl_b32 s28, 0x81, s22')
    a('s_mul_i32 s27, s17, 12')
    for d in (256, 267):
        a(f's_add_u32 s22, s27, {d}')
        a('s_lshr_b32 s22, s22, 6')
        a('s_lshl_b32 s22, 0x81, s22')
        a('s_or_b32 s28, s28, s22')
    a('v_lshlrev_b32 v64, 7, v116')
    a(f's_mov_b32 s27, {PFL + w*512}')
    mask_wait(a, P, 'v64', 's27', 's28')
def a_wait(a, P, kaps):
    a('s_lshl_b32 s27, s17, 7')
    a(f's_add_u32 s27, s27, {PFL + 2048}')
    a(f's_mov_b32 s28, {sum(0x81 << k for k in kaps)}')
    mask_wait(a, P, 'off', 's27', 's28')
def touch_tiles(a, base, tiles):
    a('v_min_u32 v64, 55, v1')
    a('v_lshlrev_b32 v64, 7, v64')
    a(f's_mul_i32 s27, s17, {CUW_B}')
    for t in tiles:
        for hf in range(2):
            a(f's_add_u32 s22, s27, {base + t*TILE_B + hf*7168}')
            a(f'buffer_load_dword v67, v64, {SRD}, s22 offen sc1')
def r_wait(a, P, off):
    poll(a, P, [f'buffer_load_dword v65, off, {DBG}, 0 offset:{off} sc1'], ['v_cmp_ne_u32 vcc, 1, v65'], sleep=8)

def init_score(a, w):
    a(f's_mul_i32 s31, s17, {CUW_B}')
    a(f's_add_u32 s31, s31, {WF_A}')
    units = [((kap * 4 + q) * TILE_B + ks * UNIT, wreg(ti, ks)) for ti, (kap, q) in enumerate(score_tiles(w)) for ks in range(7)]
    if FUSE:
        r_wait(a, f'ch_wr{w}', D_R2)
        if w == 3: touch_ring(a, 64)
        if HELP:
            b_wait(a, f'ch_wh{w}', w)
            touch_tiles(a, WF_B, [7*w + 4, 7*w + 5, 7*w + 6])
        a_wait(a, f'ch_wa{w}', [w])
        evlog(a, 9002)
        a('v_readfirstlane_b32 s29, v65')
        load_units(a, units[:28], 's31', fl=WFL())
        m2 = (0x81 << (4 + (w >> 1))) | (0x81 << 6)
        a(f's_and_b32 s29, s29, {m2}')
        a(f's_cmp_eq_u32 s29, {m2}')
        a(f's_cbranch_scc1 ch_wb{w}_ok')
        a_wait(a, f'ch_wb{w}', [4 + (w >> 1), 6])
        a('s_waitcnt vmcnt(28)')
        load_units(a, units[28:], 's31', fl=WFL())
        a(f's_mov_b32 s27, {PFL + 4096}')
        a('s_mov_b32 s28, 0xffff')
        mask_wait(a, f'ch_wx{w}', 'off', 's27', 's28', sleep=8)
    else:
        if w == 3: touch_ring(a, 64)
        load_units(a, units, 's31', fl=WFL())
    a(f's_mov_b32 s24, {XF_OFF + w*2048}')
    a(f's_mov_b32 s26, {XF_OFF + w*2048 + 14336}')
    a('v_and_b32 v64, 7, v117')
    a('v_and_b32 v65, 1, v116')
    a('v_lshlrev_b32 v65, 2, v65')
    a('v_sub_u32 v64, v64, v65')
    a('v_lshrrev_b32 v65, 3, v117')
    a('v_lshl_add_u32 v66, v65, 2, v64')
    a('v_cmp_gt_u32 vcc, 4, v64')
    a('v_mov_b32 v67, 99')
    a('v_cndmask_b32 v66, v67, v66, vcc')
    a('v_mov_b32 v68, 0x3f80')
    a('v_mov_b32 v69, 0x3f800000')
    for d in range(4):
        a(f'v_mov_b32 v{4+d}, 0')
        a(f'v_cmp_eq_u32 vcc, {2*d}, v66')
        a(f'v_cndmask_b32 v{4+d}, v{4+d}, v68, vcc')
        a(f'v_cmp_eq_u32 vcc, {2*d+1}, v66')
        a(f'v_cndmask_b32 v{4+d}, v{4+d}, v69, vcc')
    a('v_lshrrev_b32 v64, 1, v116')
    a('v_lshrrev_b32 v65, 3, v117')
    a('v_and_b32 v66, 1, v116')
    a('v_and_b32 v68, 7, v117')
    a('v_lshlrev_b32 v67, 8, v65')
    a('v_lshl_add_u32 v67, v68, 5, v67')
    a('v_lshl_add_u32 v67, v66, 4, v67')
    a(f'v_add_u32 v69, {MP + (w >> 1) * 1088 + (w & 1) * 512}, v67')
    a(f'v_add_u32 v70, {MJ}, v67')
    a('v_cmp_eq_u32 vcc, v64, v65')
    a('v_cndmask_b32 v113, v70, v69, vcc')
    if w < 2:
        a('v_lshlrev_b32 v67, 9, v64')
        a('v_lshl_add_u32 v67, v117, 4, v67')
        a('v_lshl_add_u32 v67, v66, 3, v67')
        a(f'v_add_u32 v114, {XP + w*256}, v67')
        a('v_mul_u32_u24 v67, 1088, v65')
        a('v_lshl_add_u32 v67, v116, 5, v67')
        a('v_lshl_add_u32 v67, v68, 2, v67')
        a(f'v_add_u32 v115, {MP + w*128}, v67')
        a('v_and_b32 v69, 1, v117')
        a('v_lshlrev_b32 v67, 7, v69')
        a('v_lshl_add_u32 v67, v116, 4, v67')
        a('v_lshl_add_u32 v67, v65, 8, v67')
        a('v_bfe_u32 v69, v117, 1, 2')
        a('v_lshl_add_u32 v67, v69, 2, v67')
        a('s_lshl_b32 s22, s17, 9')
        a(f's_add_u32 s22, s22, {PX + w*64}')
        a('v_add_u32 v72, s22, v67')
        a('v_bfe_u32 v69, v117, 1, 1')
        a('v_lshlrev_b32 v67, 7, v69')
        a('v_lshl_add_u32 v67, v116, 4, v67')
        a('v_and_b32 v69, 4, v117')
        a('v_add_u32 v67, v67, v69')
        a('s_lshr_b32 s22, s17, 1')
        a('s_lshl_b32 s22, s22, 8')
        a('s_and_b32 s27, s17, 1')
        a('s_lshl_b32 s27, s27, 3')
        a('s_add_u32 s22, s22, s27')
        a(f's_add_u32 s22, s22, {PM + w*64}')
        a('v_add_u32 v67, s22, v67')
        a('v_and_b32 v69, 9, v117')
        a('v_mov_b32 v70, 0x40000000')
        a('v_cmp_eq_u32 vcc, 0, v69')
        a('v_cndmask_b32 v118, v70, v67, vcc')
        a('v_mov_b32 v119, -1')
    elif w == 2:
        a('s_lshl_b32 s22, s17, 2')
        a(f's_add_u32 s22, s22, {FLG1}')
        a('v_lshl_add_u32 v67, v1, 7, s22')
        a('v_mov_b32 v70, 0x40000000')
        a(f'v_cmp_gt_u32 vcc, {R1}, v1')
        a('v_cndmask_b32 v72, v70, v67, vcc')
        a('v_mov_b32 v119, 1')
    a('v_and_b32 v0, 15, v1')
    a(f's_and_b32 s22, s17, {R2-1}')
    a('s_lshl_b32 s22, s22, 7')
    a(f's_add_u32 s22, s22, {FLG2}')
    a('v_lshl_add_u32 v0, v0, 2, s22')
    kb = 4 + (w >> 1)
    k1, k2 = (kb, 6) if w & 1 else (6, kb)
    a('v_xor_b32 v69, 256, v2')
    a(f'v_mul_i32_i24 v70, {(k2 - k1) * 2048}, v66')
    a('v_add_u32 v69, v69, v70')
    a(f'v_add_u32 v117, {(k1 - w)*2048}, v69')
    if w >= 2:
        a(f'v_min_u32 v116, {max(SC_TOUCH, 1) - 1}, v1')
        a('v_lshlrev_b32 v116, 7, v116')
        a(f's_mul_i32 s35, s17, {64*GSH_B}')
        a(f's_add_u32 s35, s35, {VO_OFF + (TOUCH_AHEAD + 1)*GSH_B - (w - 1)*SC_TOUCH*128}')
    if w < 3: a('v_mov_b32 v1, v72')
    for r in range(36, 80): a(f'v_mov_b32 v{r}, 0')
    for k in range(X_LATE):
        r = 80 + 4 * k
        a(f'buffer_load_dwordx4 v[{r}:{r+3}], v117, {SRD}, {"s26" if k & 2 else "s24"} offen offset:{(k & 1)*1024} {XFL}')

YL = 0; ML = 8 * KB; WL = 16 * KB
def vwreg(w, ti, ks):
    u = ti * 7 + ks
    return 256 + 8 * u if u < 32 else (176 if w < 2 else 120) + 8 * (u - 32)

def vo_wait0(a, P):
    if FUSE: poll(a, P + 'i', [f'buffer_load_dword v9, off, {DBG}, 0 offset:{D_R2} sc1'], ['v_cmp_ne_u32 vcc, 1, v9'], sleep=8)
    a('s_lshl_b32 s27, s17, 7')
    a(f's_add_u32 s27, s27, {CNT_OFF + VOC}')
    a('s_mov_b32 s30, 0')
    a.label(P)
    a(f'buffer_load_dword v9, off, {SRD}, s27 sc1')
    a('s_waitcnt vmcnt(0)')
    a('v_cmp_ne_u32 vcc, 56, v9')
    a(f's_cbranch_vccz {P}_d')
    a('s_sleep 2')
    spin(a, P, 'cA_abort')
    a.label(P + '_d')

def resolve_waits(ins):
    out = []; pos = {}; n = 0
    for x in ins:
        if isinstance(x, tuple) and x[0] == 'tag':
            n += 1; pos[x[1]] = n; out.append(x[2])
        elif isinstance(x, tuple):
            out.append(f's_waitcnt lgkmcnt({min(15, n - pos[x[1]])})')
        else:
            if x.startswith('ds_'): n += 1
            out.append(x)
    return out

def gen_value(a, w, st, tag):
    L = lambda n: f'{tag}_va{w}_{n}'
    ABORT = f'{tag}_abort'
    fin = w < 2
    M = 8; ACC = 36
    YA = 152 if fin else 104
    YT = 64; VOR = 80; LO = 48; PL = 52; HI = 160
    STG = [64, 72, 144]
    own = [[4, 5], [5, 6], [0, 1], [2, 3]][w]
    wrt = own if w != 1 else [6]
    oth = [k for k in range(7) if k not in own]
    def S(ti, ks):
        b = f'v[{STG[ks % 3]}:{STG[ks % 3]+7}]' if fin and ti == 6 else ureg(vwreg(w, ti, ks), 8)
        return f'v_smfmac_f32_16x16x64_bf16 v[{ACC+4*ti}:{ACC+4*ti+3}], v[{M+4*ks}:{M+4*ks+3}], {b}, v3'
    def fold(t):
        r = ACC + 4 * t
        return [f'v_permlane32_swap_b32 v{r}, v{r+2}', f'v_permlane32_swap_b32 v{r+1}, v{r+3}', f'v_add_f32 v{r}, v{r}, v{r+2}', f'v_add_f32 v{r+1}, v{r+1}, v{r+3}',
                f'v_cvt_pk_bf16_f32 v{r+2}, v{r}, v{r+1}', f'ds_write_b32 v{YA+t}, v{r+2}']
    def wrd(ks):
        b = STG[ks % 3]
        return [f'ds_read_b128 v[{b}:{b+3}], v0 offset:{ks*UNIT}', ('tag', f'w{ks}', f'ds_read_b128 v[{b+4}:{b+7}], v0 offset:{ks*UNIT+1024}')]
    def mld(ks): return f'buffer_load_dwordx4 v[{M+4*ks}:{M+4*ks+3}], v2, {SRD}, {"s20" if ks < 4 else "s23"} offen offset:{(ks & 3) * 1024} sc1'
    def vol(h):
        return ([f's_add_u32 s22, s25, {h*1792}'] if h % 2 == 0 else []) + [f'buffer_load_dwordx4 v[{VOR+4*h}:{VOR+4*h+3}], v6, {SRD}, s22 offen offset:{(h & 1)*1792} sc1']
    isv = lambda o: isinstance(o, str) and o.startswith('v_')
    pois = f'buffer_store_dword v162, v1, {SRD}, s21 offen {st}'
    mg = f'buffer_store_dword v{HI}, v1, {SRD}, s38 offen sc1'
    zr = list(range(ACC, ACC + 28))
    a.raw('.p2align 6')
    a.label(L('loop'))
    a('s_mov_b32 s30, 0')
    if w == 2:
        flagpoll(a, 119, 's19', 100, L('fp'), ABORT)
        for ks in own: a(mld(ks))
        a('s_barrier')
    else:
        a('s_barrier')
        for ks in own: a(mld(ks))
    stamp(a, 0)
    a('s_barrier')
    ny = 0
    if fin:
        a(mg); ny += 1
        for h in range(VO_PRE):
            for x in vol(h): a(x)
        ny += VO_PRE
        a(f's_mul_i32 s38, s18, {7*KB}')
        a(f's_add_u32 s38, s38, {MEMG_OFF}')
    if w == 3:
        a(f'buffer_load_dword v100, v116, {SRD}, s39 offen sc1')
        a('s_add_u32 s27, s19, 2')
        a('s_min_u32 s27, s27, 63')
        a('s_lshr_b32 s27, s27, 3')
        a('s_lshl_b32 s27, s27, 11')
        a('s_add_u32 s27, s27, s35')
        a(f'buffer_load_dword v101, off, {SRD}, s27 sc1')
        a(f's_add_u32 s39, s39, {XSEG_B}')
        ny += 2
    a(f's_waitcnt vmcnt({ny})')
    stamp(a, 1)
    for ks in wrt: a(f'ds_write_b128 v2, v[{M+4*ks}:{M+4*ks+3}] offset:{ML + ks*1024}')
    nrt = 6 if fin else 7
    seq = [[t, S(t, ks), []] for ks in own for t in range(nrt)]
    seq[B1_POS][2] += ['s_waitcnt lgkmcnt(0)', 's_barrier'] + [('tag', f'm{ks}', f'ds_read_b128 v[{M+4*ks}:{M+4*ks+3}], v2 offset:{ML + ks*1024}') for ks in oth]
    n0 = len(seq)
    rest = [[t, S(t, ks), []] for t in range(nrt) for ks in oth]
    if fin:
        for j_ in range(7): rest.insert(3 + 4 * j_, [6, S(6, j_), []])
    seq += rest
    for k, ks in enumerate(oth):
        idx = next(i_ for i_ in range(n0, len(seq)) if seq[i_][1] == S(0, ks))
        seq[idx - 1][2].append(('wait', f'm{ks}'))
    if fin:
        for j_ in range(7):
            idx = n0 + 3 + 4 * j_
            seq[idx - (8 if j_ else 5)][2] += wrd(j_)
            seq[idx - 1][2].append(('wait', f'w{j_}'))
        for h in range(VO_PRE, 16): seq[(h - VO_PRE) * VO_EVERY][2] += vol(h)
        if TLB_WARM and w == 1:
            seq[(16 - VO_PRE) * VO_EVERY][2] += [f's_add_u32 s22, s25, {2*GSH_B - 128}', f'buffer_load_dword v164, off, {SRD}, s22 sc1']
    last = {}
    for i_, (t, m, sd) in enumerate(seq): last[t] = i_
    ins = []; pend = []; delay = 0; brk = None
    for i_, (t, m, sd) in enumerate(seq):
        ins.append(m)
        ops = list(sd)
        if pend and pend[0].startswith('ds_'): ops.insert(0, pend.pop(0))
        if brk == i_:
            ops.append(f's_cbranch_vccnz {L("slow")}')
            assert not fin or i_ > (16 - VO_PRE) * VO_EVERY
        if brk is not None and brk + 2 == i_ and fin: ops.append(pois)
        if delay: delay -= 1
        elif pend:
            x = pend.pop(0); ops.append(x)
            if x.startswith('v_cmp'): brk = i_ + 2
        ins += [o for o in ops if not isv(o)] + [o for o in ops if isv(o)]
        if i_ == last[t]:
            delay = max(delay, 2 - len(pend))
            f_ = fold(t)
            if t == 0: f_.insert(4, f'v_cmp_u_f32 vcc, v{ACC}, v{ACC+1}')
            pend += f_
    ins += pend
    for x in resolve_waits(ins): a(x)
    a.label(L('t2d'))
    stamp(a, 2)
    if fin:
        pr = lambda c: 8 + 4 * c
        def pld(c):
            so = ('s22', 's34', 's36')[c // 4]
            a(f'buffer_load_dwordx4 v[{pr(c)}:{pr(c)+3}], v2, {SRD}, {so} offen offset:{(c & 3)*1024} sc1')
        a(f's_add_u32 s22, s20, {PX}')
        a(f's_add_u32 s34, s20, {PX + 4096}')
        a(f's_add_u32 s36, s20, {PM}')
        a('s_mov_b32 s37, 0')
        for r in range(LO, LO + 4): a(f'v_mov_b32 v{r}, 0')
        a('v_mov_b32 v163, s18')
        a('s_waitcnt lgkmcnt(0)')
        if STAMPS:
            a('s_waitcnt vmcnt(0)')
            stamp(a, 3)
        if w == 0:
            a('s_setprio 3')
            flagpoll(a, 4, 's18', PL, L('fw'), ABORT)
            for c in range(10): pld(c)
        a('s_barrier')
        stamp(a, 4)
        if w == 1:
            for c in range(10): pld(c)
        for k in range(4): a(f'ds_read_b128 v[{YT+4*k}:{YT+4*k+3}], v2 offset:{YL + w*4096 + k*1024}')
        a.label(L('lp'))
        nst = 0
        ckc = list(range(min(F3_POS - 1, 8))) if PCHK and w == 1 else []
        for c in range(10):
            a(f's_waitcnt vmcnt({9-c+nst})' + (' lgkmcnt(0)' if c == 8 else ''))
            if c == 0: stamp(a, 5)
            B_ = VOR + 8 * c if c < 8 else YT + 8 * (c - 8)
            a(f'v_smfmac_f32_16x16x64_bf16 v[{LO}:{LO+3}], v[{pr(c)}:{pr(c)+3}], v[{B_}:{B_+7}], v3')
            if c == F3_POS and w == 1:
                if ckc: a(f's_cbranch_vccnz {L("rv")}')
                a(f'buffer_store_dword v163, v7, {SRD}, 0 offen {st}')
                nst = 1
            if c in ckc:
                if c % 2 == 0 and c > 0: a(f'v_max3_u32 v{PL+3}, v{PL+3 if c > 2 else pr(0)}, v{pr(c-1)}, v{pr(c)}')
                elif c == ckc[-1] and c > 0: a(f'v_max_u32 v{PL+3}, v{PL+3 if c > 2 else pr(0)}, v{pr(c)}')
                if c == ckc[-1]: a(f'v_cmp_eq_u32 vcc, -1, v{PL+3 if c > 0 else pr(0)}')
        stamp(a, 6)
        a(f'v_permlane32_swap_b32 v{LO}, v{LO+2}')
        a(f'v_permlane32_swap_b32 v{LO+1}, v{LO+3}')
        a(f'v_add_f32 v{LO}, v{LO}, v{LO+2}')
        a(f'v_add_f32 v{LO+1}, v{LO+1}, v{LO+3}')
        a(f'v_cvt_pk_bf16_f32 v{HI}, v{LO}, v{LO+1}')
        a(f'v_cmp_u_f32 vcc, v{LO}, v{LO+1}')
        a(f'v_mov_b32_dpp v{HI+1}, v{HI} quad_perm:[1,0,3,2] {D}')
        a(f'v_perm_b32 v{HI}, v{HI+1}, v{HI}, v5')
        a(f'v_min_u32 v{HI}, -2, v{HI}')
        a(f's_cbranch_vccnz {L("rp")}')
        a.label(L('cont'))
        a(f'buffer_store_dword v{HI}, v1, {SRD}, s21 offen {st}')
        stamp(a, 7)
        if w == 0: a('s_setprio 0')
        a(f's_cmp_lg_u32 s19, {NSTEPS-2}')
        a(f's_cbranch_scc1 {L("nl")}')
        a(mg)
        a(f's_branch {tag}_done')
        a.label(L('nl'))
        a(f's_add_u32 s25, s25, {GSH_B}')
        stamp_flush(a, 4 + w, L('sf'), PL)
        for r in zr: a(f'v_mov_b32 v{r}, 0')
    else:
        a('v_mov_b32 v117, s18')
        if w == 3:
            a.label(L('vow'))
            a('s_waitcnt vmcnt(0)')
            a('v_cmp_ne_u32 vcc, 56, v101')
            a(f's_cbranch_vccnz {L("vor")}')
        a('s_waitcnt lgkmcnt(0)')
        stamp(a, 3)
        a('s_barrier')
        nd = F2_DELAY if w == 3 else 0
        for r in zr[:nd]: a(f'v_mov_b32 v{r}, 0')
        if w == 3: a(f'buffer_store_dword v117, v118, {SRD}, 0 offen {st}')
        a(f's_cmp_eq_u32 s19, {NSTEPS-2}')
        a(f's_cbranch_scc1 {tag}_done')
        if w == 2: a('s_sleep 1')
        for r in zr[nd:]: a(f'v_mov_b32 v{r}, 0')
        if w == 2 and P3_SLEEP: a(f's_sleep {P3_SLEEP}')
        stamp_flush(a, 4 + w, L('sf'), 76)
    next_step(a)
    a.flush()
    a(f's_branch {L("loop")}')
    a.label(L('slow'))
    a('s_waitcnt lgkmcnt(0)')
    a.label(L('sl1'))
    a('s_add_u32 s31, s31, 0x1000000')
    for ks in range(7): a(mld(ks))
    a('s_waitcnt vmcnt(0)')
    poison_max(a, ACC, range(M, M + 28))
    a(f'v_cmp_eq_u32 vcc, -1, v{ACC}')
    a(f's_cbranch_vccz {L("sl2")}')
    spin(a, L('sl1'), ABORT)
    a.label(L('sl2'))
    for r in zr: a(f'v_mov_b32 v{r}, 0')
    if fin: a(pois)
    for ks in range(7):
        if fin:
            for x in resolve_waits(wrd(ks)): a(x)
        for t in range(7):
            if fin and t == 6: a('s_waitcnt lgkmcnt(0)')
            a(S(t, ks))
    for t in range(7):
        for x in fold(t): a(x)
    a(f's_branch {L("t2d")}')
    if fin:
        a.label(L('rp'))
        a('s_cmp_lg_u32 s37, 0')
        a(f's_cbranch_scc1 {L("cont")}')
        a.label(L('rv'))
        a('s_add_u32 s31, s31, 0x10000')
        for c in range(10): pld(c)
        a('s_waitcnt vmcnt(0)')
        poison_max(a, PL, [pr(c) + r for c in range(10) for r in range(4)])
        a(f'v_cmp_eq_u32 vcc, -1, v{PL}')
        a('s_mov_b32 s37, 1')
        for r in range(LO, LO + 4): a(f'v_mov_b32 v{r}, 0')
        a.flush()
        a(f's_cbranch_vccz {L("lp")}')
        spin(a, L('rv'), ABORT)
    if w == 3:
        a.label(L('vor'))
        a('s_sleep 2')
        a(f'buffer_load_dword v101, off, {SRD}, s27 sc1')
        spin(a, L('vow'), ABORT)

def init_value(a, w):
    fin = w < 2
    YA = 152 if fin else 104
    a(f's_mul_i32 s31, s17, {CUW_B}')
    a(f's_add_u32 s31, s31, {WF_B + 7*w*TILE_B}')
    if FUSE:
        r_wait(a, f'ch_wr{4+w}', D_R1)
        b_wait(a, f'ch_ww{4+w}', w)
        evlog(a, 9002)
    units = [(ti * TILE_B + ks * UNIT, vwreg(w, ti, ks)) for ti in range(6 if fin else 7) for ks in range(7)]
    load_units(a, units, 's31', fl=WFL())
    if fin:
        for f in range(14):
            if f % 4 == 0:
                a(f's_mov_b32 m0, {WL + w*TILE_B + f*1024}')
                a(f's_add_u32 s22, s31, {6*TILE_B + f*1024}')
            a(f'buffer_load_dwordx4 v2, {SRD}, s22 offen offset:{(f & 3)*1024} {WFL()} lds')
    if FUSE and HELP:
        a_wait(a, f'ch_wh{4+w}', [4 + (w >> 1), 6])
        evlog(a, 9012)
        touch_tiles(a, WF_A, [kap * 4 + q for kap, q in score_tiles(w)[4:]])
        a('s_waitcnt vmcnt(0)')
    a('v_mov_b32 v72, v116')
    a('v_mov_b32 v73, v117')
    a('v_lshrrev_b32 v65, 1, v72')
    a('v_and_b32 v66, 1, v72')
    for r in range(36, 64): a(f'v_mov_b32 v{r}, 0')
    a('v_lshlrev_b32 v75, 2, v65')
    a('v_lshl_add_u32 v75, v66, 3, v75')
    for t in range(7):
        a(f'v_add_u32 v67, {16 * (7*w + t)}, v73')
        a('v_mul_u32_u24 v68, 2341, v67')
        a('v_lshrrev_b32 v68, 16, v68')
        a('v_mul_u32_u24 v69, 28, v68')
        a('v_sub_u32 v69, v67, v69')
        a('v_lshrrev_b32 v70, 4, v69')
        a('v_and_b32 v69, 15, v69')
        a('v_lshlrev_b32 v71, 12, v70')
        a('v_lshl_add_u32 v71, v68, 8, v71')
        a('v_lshl_add_u32 v71, v69, 4, v71')
        a(f'v_add_u32 v{YA+t}, v71, v75')
    a('v_mov_b32 v74, 0x40000000')
    if fin:
        a('v_mov_b32 v76, 0\nv_mov_b32 v77, 0\nv_mov_b32 v78, 0\nv_mov_b32 v79, 0')
        for k in range(4): a(f'ds_write_b128 v2, v[76:79] offset:{YL + w*4096 + k*1024}')
        a(f's_and_b32 s22, s17, {R1-1}')
        a('s_lshl_b32 s22, s22, 7')
        a(f's_add_u32 s22, s22, {FLG1}')
        a('v_lshl_add_u32 v4, v73, 2, s22')
        a('v_and_b32 v64, 1, v73')
        a('v_mov_b32 v5, 0x05040100')
        a('v_mov_b32 v65, 0x03020706')
        a('v_cmp_eq_u32 vcc, 1, v64')
        a('v_cndmask_b32 v5, v5, v65, vcc')
        a('s_lshl_b32 s22, s17, 2')
        a(f's_add_u32 s22, s22, {FLG2 + 16*128}')
        a('v_lshl_add_u32 v7, v1, 7, s22')
        a(f'v_cmp_gt_u32 vcc, {R2}, v1')
        a('v_cndmask_b32 v7, v74, v7, vcc')
        if w == 0: a('v_mov_b32 v6, v2')
        else:
            a('v_min_u32 v65, 11, v73')
            a('v_mad_u32_u24 v65, v72, 12, v65')
            a('v_lshlrev_b32 v6, 4, v65')
            a('v_add_u32 v6, 1024, v6')
        a('v_lshl_add_u32 v64, v66, 2, v64')
        a('v_and_b32 v65, 2, v72')
        a('v_add_u32 v64, v64, v65')
        a(f's_mul_i32 s22, s17, {12 if w else 16}')
        if w: a('s_add_u32 s22, s22, 256')
        a('v_add_u32 v75, s22, v73')
        a('v_lshrrev_b32 v68, 4, v75')
        a('v_lshlrev_b32 v68, 8, v68')
        a('v_bfe_u32 v69, v75, 1, 1')
        a('v_lshl_add_u32 v68, v69, 7, v68')
        a('v_lshl_add_u32 v68, v64, 4, v68')
        a('v_and_b32 v69, 12, v75')
        a('v_add_u32 v1, v68, v69')
        if w == 1:
            a('v_cmp_gt_u32 vcc, 12, v73')
            a('v_cndmask_b32 v1, v74, v1, vcc')
        a(f's_mul_i32 s22, s17, {64*GSH_B}')
        a(f's_add_u32 s25, s22, {VO_OFF}')
        a('v_mov_b32 v162, -1')
        a('s_mov_b32 s38, 0x40000000')
        a(f'v_add_u32 v0, {WL + w*TILE_B}, v2')
    else:
        a('v_and_b32 v119, 15, v1')
        a(f's_and_b32 s22, s17, {R2-1}')
        a('s_lshl_b32 s22, s22, 7')
        a(f's_add_u32 s22, s22, {FLG2 + 16*128}')
        a('v_lshl_add_u32 v119, v119, 2, s22')
        a('s_lshl_b32 s22, s17, 2')
        a(f's_add_u32 s22, s22, {FLG2}')
        a('v_lshl_add_u32 v118, v1, 7, s22')
        a(f'v_cmp_gt_u32 vcc, {R2}, v1')
        a('v_cndmask_b32 v118, v74, v118, vcc')
        a('s_lshl_b32 s35, s17, 7')
        a(f's_add_u32 s35, s35, {CNT_OFF + VOC}')
        a('v_min_u32 v116, 13, v1')
        a('s_mul_i32 s22, s17, 14')
        a('v_add_u32 v116, s22, v116')
        a('v_lshlrev_b32 v116, 7, v116')
        a(f's_mov_b32 s39, {XF_OFF + XSEG_B}')
        if w == 3:
            vo_wait0(a, 'ch_vw7')
            a(f'buffer_load_dword v100, v116, {SRD}, s39 offen sc1')
        a(f's_mov_b32 s39, {XF_OFF + 2*XSEG_B}')

MERGE = 0
RB1_DELAY = 0
def wg_atomic(a, P, dst):
    a('v_mov_b32 v6, 160000')
    a('s_barrier')
    a('s_cmp_lg_u32 s16, 0')
    a(f's_cbranch_scc1 {P}1')
    a('s_mov_b64 exec, 1')
    a(f'buffer_atomic_add v4, v5, {DBG}, 0 offen sc0')
    a('s_waitcnt vmcnt(0)')
    a('ds_write_b32 v6, v4')
    a('s_waitcnt lgkmcnt(0)')
    a('s_mov_b64 exec, -1')
    a.label(f'{P}1')
    a('s_barrier')
    a('ds_read_b32 v4, v6')
    a('s_waitcnt lgkmcnt(0)')
    a(f'v_readfirstlane_b32 {dst}, v4')

def staff_check(a, okl, mode):
    a('s_mov_b32 s30, 0')
    a('v_mov_b32 v36, 0')
    a.label('ch_chk')
    a(f'buffer_load_dword v37, v36, {DBG}, 0 offen sc1')
    a('s_waitcnt vmcnt(0)')
    a('v_readfirstlane_b32 s22, v37')
    a('s_and_b32 s22, s22, 0xffff')
    a('s_cmp_ge_u32 s22, 32')
    a('s_cbranch_scc1 ch_go_end')
    a('s_sleep 16')
    a('s_add_u32 s30, s30, 1')
    a('s_cmp_lt_u32 s30, 64')
    a('s_cbranch_scc1 ch_chk')
    a.label('ch_go_end')
    a('v_mov_b32 v6, 160016')
    a('v_mov_b32 v4, s22')
    a('s_cmp_lg_u32 s16, 0')
    a('s_cbranch_scc1 ch_dec')
    a('ds_write_b32 v6, v4')
    a('s_waitcnt lgkmcnt(0)')
    a.label('ch_dec')
    a('s_barrier')
    a('ds_read_b32 v4, v6')
    a('s_waitcnt lgkmcnt(0)')
    a('v_readfirstlane_b32 s22, v4')
    a('s_cmp_ge_u32 s22, 32')
    a(f's_cbranch_scc1 {okl}')
    a('v_mov_b32 v4, 0x10001')
    a(f's_mov_b32 s18, {mode}')
    a('s_branch ch_take')

D_CLAIM = 4; D_CNT = 12; D_REP = 20; D_R1 = 128; D_R2 = 132; NINIT = 4
FUSE = 1
REP_WAIT = 60
def wg_signal(a, off, inc=1):
    lb = a.newlabel('sig')
    a('s_barrier')
    a('s_cmp_lg_u32 s16, 0')
    a(f's_cbranch_scc1 {lb}')
    a(f'v_mov_b32 v60, {inc}')
    a(f'v_mov_b32 v61, {off}')
    a('s_mov_b64 exec, 1')
    a(f'buffer_atomic_add v60, v61, {DBG}, 0 offen')
    a('s_mov_b64 exec, -1')
    a.label(lb)

def poll(a, P, loads, cond, sleep=2, lim=SPIN_LIMIT, fail='cA_abort'):
    a('s_mov_b32 s30, 0')
    a.label(P)
    for x in loads: a(x)
    a('s_waitcnt vmcnt(0)')
    for x in cond: a(x)
    a(f's_cbranch_vccz {P}_ok')
    a(f's_sleep {sleep}')
    a('s_add_u32 s30, s30, 1')
    a(f's_cmp_lt_u32 s30, {lim}')
    a(f's_cbranch_scc1 {P}')
    a(f's_branch {fail}')
    a.label(P + '_ok')

def uniform(a, sreg, lds=160032):
    lb = a.newlabel('uni')
    a(f'v_mov_b32 v6, {lds}')
    a(f'v_mov_b32 v7, {sreg}')
    a('s_barrier')
    a('s_cmp_lg_u32 s16, 0')
    a(f's_cbranch_scc1 {lb}')
    a('ds_write_b32 v6, v7')
    a('s_waitcnt lgkmcnt(0)')
    a.label(lb)
    a('s_barrier')
    a('ds_read_b32 v7, v6')
    a('s_waitcnt lgkmcnt(0)')
    a(f'v_readfirstlane_b32 {sreg}, v7')

def lanes(a):
    a('v_and_b32 v1, 63, v0')
    a('v_lshlrev_b32 v2, 4, v1')
    a('v_lshrrev_b32 v3, 4, v1')
    a('v_and_b32 v4, 15, v1')

def mem0_load(a):
    from prep import srd
    srd(a, 68, 50, 51, 8 * 448 * 2)
    a('v_lshrrev_b32 v6, 3, v0')
    a('v_min_u32 v6, 27, v6')
    a('v_and_b32 v7, 7, v0')
    a('v_mul_u32_u24 v9, 896, v7')
    a('v_lshl_add_u32 v9, v6, 5, v9')
    a('buffer_load_dwordx4 v[176:179], v9, s[68:71], 0 offen')
    a('buffer_load_dwordx4 v[180:183], v9, s[68:71], 0 offen offset:16')

def init_job(a, P, k_s):
    a('v_mov_b32 v10, 0x40000000')
    a('v_mov_b32 v5, 1')
    for r in range(148, 152): a(f'v_mov_b32 v{r}, 0')
    for r in range(152, 156): a(f'v_mov_b32 v{r}, -1')
    a('v_lshlrev_b32 v8, 4, v0')
    a(f's_cmp_lg_u32 {k_s}, 0')
    a(f's_cbranch_scc1 {P}_1')
    a(f's_mov_b32 s23, {PFL}')
    a(f'buffer_store_dwordx4 v[148:151], v8, {SRD}, s23 offen sc1')
    a(f's_mov_b32 s23, {PFL + 4096}')
    a(f'buffer_store_dwordx4 v[148:151], v8, {SRD}, s23 offen sc1')
    a('s_waitcnt vmcnt(0)')
    a('s_barrier')
    a(f'buffer_store_dword v5, v252, {DBG}, 0 offen offset:{D_R1} sc1')
    a.label(f'{P}_1')
    mem0_load(a)
    a(f's_lshl_b32 s20, {k_s}, 12')
    a('v_add_u32 v8, s20, v8')
    for base, n, r in ((CNT_OFF, AC, 148), (EXCH_OFF + 2 * EXCH_B, 48 * 128, 148), (EXCH_OFF + 7 * KB, 2 * EXCH_B - 7 * KB, 152), (MEMG_OFF + 7 * KB, 63 * 7 * KB, 152)):
        full, rem = divmod(n, 16384)
        a(f's_mov_b32 s23, {base}')
        if full:
            lb = a.newlabel(P + 'lp')
            a.label(lb)
            a(f'buffer_store_dwordx4 v[{r}:{r+3}], v8, {SRD}, s23 offen sc1')
            a('s_add_u32 s23, s23, 16384')
            a(f's_cmp_lt_u32 s23, {base + full * 16384}')
            a(f's_cbranch_scc1 {lb}')
        if rem:
            a(f'v_cmp_gt_u32 vcc, {rem}, v8')
            a('v_cndmask_b32 v9, v10, v8, vcc')
            a(f'buffer_store_dwordx4 v[{r}:{r+3}], v9, {SRD}, s23 offen sc1')
    a(f's_cmp_lg_u32 {k_s}, 1')
    a(f's_cbranch_scc1 {P}_nm')
    a('v_lshrrev_b32 v6, 3, v0')
    a('v_and_b32 v7, 7, v0')
    a('v_lshlrev_b32 v8, 8, v6')
    a('v_lshl_add_u32 v8, v7, 4, v8')
    a('v_cmp_gt_u32 vcc, 28, v6')
    a('v_cndmask_b32 v8, v10, v8, vcc')
    a('s_waitcnt vmcnt(8)')
    for j in range(4):
        a(f'v_mov_b32 v{184+j}, v{176+2*j}')
        a(f'v_mov_b32 v{188+j}, v{177+2*j}')
    for base in (EXCH_OFF, MEMG_OFF):
        a(f's_mov_b32 s23, {base}')
        a(f'buffer_store_dwordx4 v[184:187], v8, {SRD}, s23 offen sc1')
        a(f'buffer_store_dwordx4 v[188:191], v8, {SRD}, s23 offen offset:128 sc1')
    a.label(f'{P}_nm')
    a('s_waitcnt vmcnt(0)')
    a('s_barrier')
    a('s_cmp_lg_u32 s16, 0')
    a(f's_cbranch_scc1 {P}_e')
    a('v_mov_b32 v6, 1')
    a('s_mov_b64 exec, 1')
    a(f'buffer_atomic_add v6, v252, {DBG}, 0 offen offset:{D_CNT} sc0')
    a('s_waitcnt vmcnt(0)')
    a('v_readfirstlane_b32 s20, v6')
    a(f's_cmp_lg_u32 s20, {NINIT-1}')
    a(f's_cbranch_scc1 {P}_e0')
    a(f'buffer_store_dword v5, v252, {DBG}, 0 offen offset:{D_R2} sc1')
    a.label(f'{P}_e0')
    a('s_mov_b64 exec, -1')
    a.label(f'{P}_e')

FLAG_AT = 4
TA_LATE = 0
def worker_prep(a):
    import prep2
    ldi = [f'buffer_load_dwordx2 v[254:255], v252, {DBG}, 0 offen offset:{D_R1} sc1']
    def flag(P, mat):
        a('s_barrier')
        a('s_cmp_lg_u32 s16, 0')
        a(f's_cbranch_scc1 {P}_f')
        a('v_readfirstlane_b32 s20, v254')
        a('s_cmp_eq_u32 s20, 1')
        a(f's_cbranch_scc1 {P}_w_ok')
        poll(a, P + '_w', [f'buffer_load_dword v254, off, {DBG}, 0 offset:{D_R1} sc1'], ['v_cmp_ne_u32 vcc, 1, v254'], sleep=8, lim=16, fail=P + '_f')
        a('s_lshl_b32 s20, s17, 7')
        a(f's_add_u32 s20, s20, {PFL + (2048 if mat == "A" else 0)}')
        a('s_lshl_b32 s21, 1, s19')
        a('v_mov_b32 v248, s21')
        a('s_mov_b64 exec, 1')
        a(f'buffer_atomic_or v248, v252, {SRD}, s20 offen sc0')
        a('s_mov_b64 exec, -1')
        a(f's_mov_b32 s{38 if mat == "A" else 37}, s21')
        a.label(P + '_f')
    def flag2(P, mat):
        sr = f's{38 if mat == "A" else 37}'
        a('v_readfirstlane_b32 s20, v248')
        a(f's_xor_b32 s20, s20, {sr}')
        a('s_cmp_lg_u32 s20, 0x3fff')
        a(f's_cselect_b32 s20, 0, {sr}')
        a(f's_mov_b32 {sr}, 0')
        a('s_cmp_eq_u32 s20, 0')
        a(f's_cbranch_scc1 {P}')
        a(f's_lshl_b32 s21, {0x10000 if mat == "A" else 1}, s17')
        a('v_mov_b32 v248, s21')
        a(f's_mov_b32 s20, {PFL + 4096}')
        a('s_mov_b64 exec, 1')
        a(f'buffer_atomic_or v248, v252, {SRD}, s20 offen')
        a('s_mov_b64 exec, -1')
        a.label(P)
    def role():
        a('v_readfirstlane_b32 s91, v249')
        uniform(a, 's91')
        a('s_and_b32 s91, s91, 0xffff')
        a('s_cmp_lt_u32 s91, 32')
        a('s_cbranch_scc1 ch_role2')
        a('s_branch wp_all')
    prep2.pst(a)
    a(f's_sub_u32 s35, s3, {XCD_SEL}')
    a('s_and_b32 s35, s35, 7')
    a('s_lshr_b32 s36, s2, 3')
    a('s_mul_i32 s33, s35, 28')
    a('s_add_u32 s33, s33, s36')
    a('s_mov_b32 s97, 0')
    a('s_mov_b32 s96, 0')
    a('s_mov_b32 s37, 0\ns_mov_b32 s38, 0')
    a('s_mov_b32 s39, 0xffff0000')
    lanes(a)
    prep2.consts(a)
    a('s_cmp_lt_u32 s36, 28')
    a('s_cbranch_scc1 wp_B')
    a('s_cmp_eq_u32 s35, 0')
    a('s_cbranch_scc1 wp_ini')
    a('s_lshl_b32 s33, s35, 2')
    a('s_add_u32 s33, s33, s36')
    a('s_sub_u32 s33, s33, 32')
    prep2.decode(a, 's33')
    a('s_branch wp_A0')
    a.label('wp_ini')
    a('v_mov_b32 v4, 1')
    a(f'v_mov_b32 v5, {D_CLAIM}')
    wg_atomic(a, 'wp_ic', 's33')
    lanes(a)
    a(f's_cmp_ge_u32 s33, {NINIT}')
    a('s_cbranch_scc1 wp_ini2')
    init_job(a, 'wp_ij', 's33')
    a.label('wp_ini2')
    a('s_cmp_lg_u32 s97, 0')
    a('s_cbranch_scc1 wp_all')
    a(f's_cmp_lg_u32 s3, {XCD_SEL}')
    a('s_cbranch_scc1 wp_all')
    role()
    a.label('wp_B')
    prep2.decode(a, 's33')
    prep2.touch(a, 'B', 253)
    prep2.xunit_load(a, 's33')
    prep2.issue(a, 'B')
    a('s_cmp_eq_u32 s35, 0')
    a('s_cselect_b32 s34, 1, s97')
    if not TA_LATE: prep2.touch(a, 'A', 253, skip='s34')
    prep2.compute(a, 'wpb', 'B', 0 if TA_LATE else 1, pre_epi=ldi, early=prep2.xunit_store())
    evlog(a, 9010)
    a('s_cmp_lg_u32 s34, 0')
    a('s_cbranch_scc1 wp_B2')
    if TA_LATE: prep2.touch(a, 'A', 253)
    def hook(n):
        a(f's_waitcnt vmcnt({n + TA_LATE})')
        flag('wp_f1', 'B')
        prep2.pst(a)
    prep2.issue(a, 'A', hook, FLAG_AT)
    a('s_branch wp_A')
    a.label('wp_B2')
    a('s_waitcnt vmcnt(0)')
    flag('wp_f2', 'B')
    a('s_waitcnt vmcnt(0)')
    flag2('wp_g2', 'B')
    prep2.pst(a, 4)
    prep2.pst_flush(a)
    a('s_cmp_lg_u32 s97, 0')
    a('s_cbranch_scc1 wp_rep')
    a('s_branch wp_ini2')
    a.label('wp_A0')
    prep2.issue(a, 'A')
    a.label('wp_A')
    prep2.compute(a, 'wpa', 'A', 0, pre_epi=ldi + [f'buffer_load_dword v253, v252, {DBG}, 0 offen sc1'], early=[lambda: flag2('wp_g1', 'B')])
    a('s_waitcnt vmcnt(0)')
    flag('wp_f3', 'A')
    prep2.pst(a)
    prep2.pst_flush(a)
    evlog(a, 9011)
    a('s_cmp_lg_u32 s97, 0')
    a('s_cbranch_scc1 wp_all')
    a('v_readfirstlane_b32 s20, v255')
    a('v_readfirstlane_b32 s21, v253')
    a('s_and_b32 s21, s21, 0xffe0')
    a('s_cselect_b32 s96, s20, 0')
    a('s_cmp_eq_u32 s96, 0')
    a('s_cbranch_scc1 wp_all')
    a('v_mov_b32 v250, 1')
    a(f's_mov_b32 s20, {CNT_OFF + JOBC}')
    a('s_mov_b64 exec, 1')
    a(f'buffer_atomic_add v250, v252, {SRD}, s20 offen sc0')
    a('s_mov_b64 exec, -1')
    a.label('wp_all')
    a('v_mov_b32 v252, 0x40000000')
    a('v_cmp_eq_u32 vcc, 0, v0')
    a('v_cndmask_b32 v252, v252, v0, vcc')
    a('s_mov_b32 s34, 0')
    a('s_cmp_lg_u32 s16, 0')
    a('s_cbranch_scc1 wp_w2')
    a(f's_mov_b32 s24, {PFL + 4096}')
    a(f'buffer_load_dword v66, off, {SRD}, s24 sc1')
    a('s_waitcnt vmcnt(0)')
    flag2('wp_g3', 'A')
    a('s_cmp_lg_u32 s96, 0')
    a('s_cbranch_scc1 wp_v2')
    poll(a, 'wp_v', [f'buffer_load_dwordx2 v[64:65], off, {DBG}, 0 sc1', f'buffer_load_dword v66, off, {DBG}, 0 offset:{D_R2} sc1'],
         ['v_and_b32 v68, 0xffe0, v64', 'v_min_u32 v68, v68, v66', 'v_cmp_ne_u32 vcc, 1, v68'], sleep=16, lim=REP_WAIT // 2, fail='wp_w1')
    a(f'buffer_load_dword v66, off, {SRD}, s24 sc1')
    a('s_waitcnt vmcnt(0)')
    a.label('wp_v2')
    a('v_mov_b32 v64, 32')
    a(f'v_mov_b32 v65, {NINIT}')
    a('v_or_b32 v66, s39, v66')
    a('v_cmp_ne_u32 vcc, -1, v66')
    a('s_cbranch_vccz wp_w2')
    a('s_cmp_eq_u32 s97, 2')
    a('s_cbranch_scc1 wp_w1')
    poll(a, 'wp_w', [f'buffer_load_dword v66, off, {SRD}, s24 sc1'], ['v_or_b32 v66, s39, v66', 'v_cmp_ne_u32 vcc, -1, v66'], sleep=8, lim=REP_WAIT, fail='wp_w1')
    a('s_branch wp_w2')
    a.label('wp_w1')
    a('v_readfirstlane_b32 s20, v64')
    a('v_readfirstlane_b32 s21, v65')
    a('s_and_b32 s20, s20, 0xffff')
    a('s_cmp_lt_u32 s20, 32')
    a('s_cselect_b32 s34, 2, 1')
    a(f's_cmp_lt_u32 s21, {NINIT}')
    a('s_cselect_b32 s34, 4, s34')
    a('s_add_u32 s32, s32, 1')
    a('s_cmp_lt_u32 s32, 4000')
    a('s_cselect_b32 s34, s34, 3')
    a.label('wp_w2')
    uniform(a, 's34')
    a('s_cmp_eq_u32 s34, 0')
    a('s_cbranch_scc1 wp_done')
    a('s_mov_b32 s97, 1')
    a('s_cmp_eq_u32 s34, 1')
    a('s_cbranch_scc1 wp_rep')
    a('s_cmp_eq_u32 s34, 3')
    a('s_cbranch_scc1 cA_abort')
    a('s_cmp_eq_u32 s34, 4')
    a('s_cbranch_scc1 wp_ini')
    a('v_mov_b32 v4, 0x10001')
    a('s_branch ch_take')
    a.label('wp_rep')
    a('s_load_dwordx8 s[40:47], s[0:1], 72')
    a('s_load_dwordx4 s[48:51], s[0:1], 56')
    a('s_waitcnt vmcnt(0) lgkmcnt(0)')
    a('v_mov_b32 v4, 1')
    a(f'v_mov_b32 v5, {D_REP}')
    wg_atomic(a, 'wp_el', 's33')
    lanes(a)
    prep2.consts(a)
    a('s_and_b32 s33, s33, 511')
    a('s_and_b32 s20, s33, 255')
    a('s_cmp_ge_u32 s20, 224')
    a('s_cselect_b32 s97, 1, 2')
    a('s_cbranch_scc1 wp_all')
    prep2.decode(a, 's20')
    a('s_lshl_b32 s20, s17, 7')
    a('s_lshr_b32 s21, s33, 8')
    a('s_lshl_b32 s21, s21, 11')
    a('s_add_u32 s20, s20, s21')
    a(f's_add_u32 s20, s20, {PFL}')
    a(f'buffer_load_dword v5, off, {SRD}, s20 sc1')
    a('s_waitcnt vmcnt(0)')
    a('v_readfirstlane_b32 s34, v5')
    uniform(a, 's34')
    a('s_bitcmp1_b32 s34, s19')
    a('s_cbranch_scc1 wp_rep')
    a('s_barrier')
    a('s_cmp_lt_u32 s33, 256')
    a('s_cbranch_scc1 wp_B')
    a('s_branch wp_A0')
    a.label('wp_done')

JOBS = None
def worker_all(a):
    import s4d, gemm, tok, t2srv
    JS = SRD
    JO = CNT_OFF + JOBC
    LD = 'sc1' if FUSE else ''
    N0 = 224 if FUSE else 0
    NJ = 1248
    tok.PEEK = JS
    if FUSE: worker_prep(a)
    a('s_load_dwordx2 s[36:37], s[0:1], 112')
    a('s_waitcnt lgkmcnt(0)')
    a(f's_mov_b32 s92, s36\ns_and_b32 s93, s37, 0xffff\ns_mov_b32 s94, {2048*896*2}\ns_mov_b32 s95, 0x20000')
    def ask():
        lb = a.newlabel('ask')
        a('s_cmp_lg_u32 s16, 0')
        a(f's_cbranch_scc1 {lb}')
        a('v_mov_b32 v250, 1')
        a(f'v_mov_b32 v251, {JO}')
        a('s_mov_b64 exec, 1')
        a(f'buffer_atomic_add v250, v251, {JS}, 0 offen sc0')
        a('s_mov_b64 exec, -1')
        a.label(lb)
    if FUSE:
        a('s_mov_b32 s97, s39')
        a('s_cmp_lg_u32 s96, 0')
        a('s_cbranch_scc1 wk_next')
    else: a('s_mov_b32 s96, 0')
    ask()
    a('s_branch wk_next')
    a.label('wk_loop')
    a('s_waitcnt vmcnt(0) lgkmcnt(0)')
    if not FUSE:
        a('s_cmp_eq_u32 s96, 1')
        a('s_cbranch_scc1 wk_ask')
        a('s_mov_b32 s96, 1')
        staff_check(a, 'wk_ask', 0)
    a.label('wk_ask')
    a('v_readfirstlane_b32 s22, v250')
    a(f's_cmp_ge_u32 s22, {NJ}')
    a('s_cbranch_scc1 wk_next')
    ask()
    a.label('wk_next')
    evlog(a, 9005)
    a('v_mov_b32 v6, 160000')
    a('s_waitcnt vmcnt(0)')
    a('s_barrier')
    a('s_cmp_lg_u32 s16, 0')
    a('s_cbranch_scc1 wk_n1')
    a('s_mov_b64 exec, 1')
    a('ds_write_b32 v6, v250')
    a('s_mov_b64 exec, -1')
    a('s_waitcnt lgkmcnt(0)')
    a.label('wk_n1')
    a('s_barrier')
    a('ds_read_b32 v4, v6')
    a('s_waitcnt lgkmcnt(0)')
    a('v_readfirstlane_b32 s3, v4')
    evlog(a, 's3')
    a(f's_cmp_ge_u32 s3, {NJ}')
    a('s_cbranch_scc1 wk_done')
    a('v_mov_b32 v250, 0')
    a(f'v_mov_b32 v251, {JO}')
    lanes(a)
    if FUSE:
        a('s_cmp_ge_u32 s3, 224')
        a('s_cbranch_scc1 wk_n0')
        a('s_mov_b32 s18, 0')
        a('s_and_b32 s17, s3, 15')
        a('s_add_u32 s17, s17, 16')
        a('s_lshr_b32 s34, s3, 4')
        a('s_add_u32 s35, s34, 1')
        a('s_branch wk_gemm')
        a.label('wk_n0')
        a('s_cmp_eq_u32 s97, 0')
        a('s_cbranch_scc1 wk_n2')
        evlog(a, 9021)
        a('v_mov_b32 v250, s3')
        for x in ('s96, 1', 's97, 1', 's39, 0', 's37, 0', 's38, 0', 's32, 0'): a('s_mov_b32 ' + x)
        a('s_branch wp_all')
        a.label('wk_n2')
    a('s_cmp_ge_u32 s3, 736')
    a('s_cbranch_scc1 wk_tok')
    a('s_cmp_ge_u32 s3, 624')
    a('s_cbranch_scc1 wk_s4d')
    a('s_cmp_ge_u32 s3, 432')
    a('s_cbranch_scc1 wk_full')
    a('s_cmp_ge_u32 s3, 400')
    a('s_cbranch_scc1 wk_srv')
    a('s_and_b32 s17, s3, 15')
    a('s_add_u32 s17, s17, 16')
    a('s_cmp_ge_u32 s3, 336')
    a('s_cbranch_scc1 wk_half')
    a('s_mov_b32 s18, 1')
    a('s_sub_u32 s34, s3, 224')
    a('s_lshr_b32 s34, s34, 4')
    a('s_lshl_b32 s34, s34, 1')
    a('s_add_u32 s35, s34, 2')
    a('s_branch wk_gemm')
    a.label('wk_half')
    a('s_sub_u32 s20, s3, 336')
    a('s_lshr_b32 s18, s20, 5')
    a('s_add_u32 s18, s18, 2')
    a('s_bitcmp1_b32 s20, 4')
    a('s_cselect_b32 s34, 7, 0')
    a('s_add_u32 s35, s34, 7')
    a('s_branch wk_gemm')
    a.label('wk_full')
    a('s_sub_u32 s20, s3, 368')
    a('s_and_b32 s17, s20, 15')
    a('s_lshr_b32 s18, s20, 4')
    a('s_cmp_lt_u32 s18, 8')
    a('s_cselect_b32 s21, 16, 0')
    a('s_add_u32 s17, s17, s21')
    a('s_and_b32 s18, s18, 7')
    a('s_mov_b32 s34, 0')
    a('s_mov_b32 s35, 14')
    a.label('wk_gemm')
    gemm.gemm_body(a, 'wg', 's18', 's17', st='sc1', signal=True, ld=LD)
    a('s_branch wk_loop')
    a.label('wk_srv')
    a('s_and_b32 s18, s3, 15')
    a('s_lshr_b32 s19, s3, 4')
    a('s_and_b32 s19, s19, 1')
    t2srv.t2srv_body(a, 'ws', 's18', 's19', 'cA_abort', ld=LD)
    a('v_mov_b32 v250, 0')
    a('s_branch wk_loop')
    a.label('wk_s4d')
    a('s_sub_u32 s3, s3, 624')
    s4d.s4d_setup(a)
    s4d.s4d_item(a, 'wk', 's3')
    a('s_branch wk_loop')
    a.label('wk_tok')
    a('s_sub_u32 s3, s3, 736')
    a('s_cmp_ge_u32 s3, 512')
    a('s_cbranch_scc1 wk_done')
    a('s_lshr_b32 s17, s3, 3')
    a('s_and_b32 s18, s3, 3')
    a('s_bitcmp1_b32 s3, 2')
    a('s_cbranch_scc1 wk_toko')
    tok.tokp_body(a, 's17', 's18', ld='sc1', st='sc1', sync='wp', ldx=LD)
    a('s_branch wk_loop')
    a.label('wk_toko')
    tok.toko_body(a, 's17', 's18', ld='sc1', sync='wo', OUT='s[92:95]')
    a('s_branch wk_loop')
    a.label('wp_abort')
    a.label('wo_abort')
    a('s_branch cA_abort')
    a.label('wk_done')
    evlog(a, 9020)

def gen_chain_kernel(name='main_kernel', worker=None):
    a = Asm()
    a.raw(kernel_header(name))
    a('s_cmp_ge_u32 s2, 256')
    a('s_cbranch_scc1 ch_end')
    a('s_load_dwordx2 s[4:5], s[0:1], 120')
    a('s_load_dwordx2 s[6:7], s[0:1], 128')
    a('s_load_dwordx8 s[40:47], s[0:1], 72')
    a('s_load_dwordx4 s[48:51], s[0:1], 56')
    if CODE_PF: code_prefetch(a, name, 'ch_end', 130000, 60)
    a('s_mov_b32 s32, 0')
    a('s_getreg_b32 s3, hwreg(HW_REG_XCC_ID)')
    a('s_and_b32 s3, s3, 15')
    a('v_lshrrev_b32 v1, 6, v0')
    a('v_readfirstlane_b32 s16, v1')
    a('s_waitcnt lgkmcnt(0)')
    a('s_mov_b32 s8, s6\ns_and_b32 s9, s7, 0xffff\ns_mov_b32 s10, 0x10000000\ns_mov_b32 s11, 0x20000')
    a('s_mov_b32 s12, s4\ns_and_b32 s13, s5, 0xffff\ns_mov_b32 s14, 256\ns_mov_b32 s15, 0x20000')
    if EVLOG:
        a('s_lshl_b32 s100, s2, 2')
        a('s_add_u32 s100, s100, s16')
        a('s_lshl_b32 s100, s100, 8')
        a(f's_add_u32 s100, s100, {EV_OFF}')
    evlog(a, 9000)
    if FUSE:
        a('v_mov_b32 v252, 0x40000000')
        a('v_cmp_eq_u32 vcc, 0, v0')
        a('v_cndmask_b32 v252, v252, v0, vcc')
        a(f's_cmp_lg_u32 s3, {XCD_SEL}')
        a('s_cbranch_scc1 ch_worker')
        a('s_cmp_lg_u32 s16, 0')
        a('s_cbranch_scc1 ch_worker')
        a('v_mov_b32 v249, 1')
        a('s_mov_b64 exec, 1')
        a(f'buffer_atomic_add v249, v252, {DBG}, 0 offen sc0')
        a('s_mov_b64 exec, -1')
        a('s_branch ch_worker')
    a(f's_cmp_lg_u32 s3, {XCD_SEL}')
    a('s_cbranch_scc1 ch_worker')
    a('v_mov_b32 v4, 1')
    a('s_mov_b32 s18, 0')
    a.label('ch_take')
    a('v_mov_b32 v5, 0')
    wg_atomic(a, 'ch_el', 's17')
    a('s_and_b32 s17, s17, 0xffff')
    a('s_cmp_lt_u32 s17, 32')
    a('s_cbranch_scc1 ch_role')
    if FUSE:
        lanes(a)
        a('s_branch wp_all')
    a('s_cmp_eq_u32 s18, 0')
    a('s_cbranch_scc1 ch_worker')
    a('s_branch ch_end')
    a.label('ch_role')
    if FUSE:
        a('s_mov_b32 s91, s17')
        a.label('ch_role2')
        a('s_mov_b32 s17, s91')
        evlog(a, 9001)
    lane_consts(a)
    a('s_mov_b32 s19, 0')
    a('s_mov_b32 s18, 1')
    a(f's_mov_b32 s20, {EXCH_OFF}')
    a(f's_mov_b32 s21, {EXCH_OFF + EXCH_B}')
    a(f's_mov_b32 s23, {EXCH_OFF + 4096}')
    a('s_lshr_b32 s89, s17, 4')
    a('s_lshl_b32 s89, s89, 2')
    a('s_add_u32 s89, s89, s16')
    a('s_and_b32 s17, s17, 15')
    for p in range(8):
        a(f's_cmp_eq_u32 s89, {p}')
        a(f's_cbranch_scc1 ch_init{p}')
    a('s_branch ch_end')
    for p in range(8):
        a.label(f'ch_init{p}')
        if p < 4: init_score(a, p)
        else: init_value(a, p - 4)
        if p == 6 or (p == 3 and SC_TOUCH): vo_wait0(a, f'ch_vw{p}')
        a('s_mov_b32 s30, 0')
        a('v_mov_b32 v8, 0')
        a.label(f'ch_md{p}')
        a(f'buffer_load_dword v9, v8, {DBG}, 0 offen sc1')
        a('s_waitcnt vmcnt(0) lgkmcnt(0)')
        a('v_readfirstlane_b32 s22, v9')
        a('s_and_b32 s31, s22, 0xffff')
        a('s_cmp_ge_u32 s31, 32')
        a(f's_cbranch_scc1 ch_go{p}')
        a('s_sleep 2')
        a('s_add_u32 s30, s30, 1')
        a(f's_cmp_lt_u32 s30, {SPIN_LIMIT*8}')
        a(f's_cbranch_scc1 ch_md{p}')
        a('s_branch ch_end')
        a.label(f'ch_go{p}')
        evlog(a, 9003)
        if EVLOG or HDBG: a('v_mov_b32 v36, 0\nv_mov_b32 v37, 0')
        if DIAG: a('s_memtime s[90:91]')
        a('s_mov_b32 s31, 0')
        a('s_lshr_b32 s22, s22, 16')
        a('s_cmp_lg_u32 s22, 0')
        role = 'sc' if p < 4 else 'va'
        a(f's_cbranch_scc1 cB_{role}{p & 3}_loop')
        a(f's_branch cA_{role}{p & 3}_loop')
    for tag, st in (('cA', ''), ('cB', 'sc1')):
        for w in range(4): gen_score(a, w, st, tag)
        for w in range(4): gen_value(a, w, st, tag)
        a.label(f'{tag}_abort')
        a('v_mov_b32 v4, 0xdead')
        a('v_mov_b32 v5, 16')
        a(f'buffer_store_dword v4, v5, {DBG}, 0 offen')
        a('s_branch ch_end')
        a.label(f'{tag}_done')
        evlog(a, 9004)
        if DIAG:
            a('s_memtime s[60:61]')
            a('s_waitcnt lgkmcnt(0)')
            a('s_sub_u32 s60, s60, s90')
            a('v_mov_b32 v4, s60')
            a('s_cmp_eq_u32 s89, 3')
            a('s_cselect_b32 s22, 8, 0x1000')
            a('v_mov_b32 v5, s22')
            a(f'buffer_store_dword v4, v5, {DBG}, 0 offen')
            a('s_mov_b64 exec, 1')
            for k in range(4):
                a(f's_bfe_u32 s22, s31, {(8 << 16) | (8 * k)}')
                a(f'v_mov_b32 v{4+k}, s22')
                a(f'v_mov_b32 v10, {32 + 4*k}')
                a(f'buffer_atomic_add v{4+k}, v10, {DBG}, 0 offen')
                a.nop(2)
            a('s_mov_b64 exec, -1')
        stamp_calib(a, f'{tag}_cal')
        a('s_branch ch_end')
    a.label('ch_worker')
    worker_all(a)
    a.label('ch_end')
    a('s_endpgm')
    return a
```

```python
from asmlib import *
from layout import *

SRD = 's[8:11]'; DBG = 's[12:15]'
SPIN_LIMIT = 400000
NSTEPS = 64
STAMPS = 0
STAMP_STEP = 42
STEPLOG = 0
STAMP_OFF = 100 * 1024 * 1024
NST = 10
POLL_DEPTH = 3
F1_DELAY = 30
F2_POS = 3
FILL_A = 16
FILL_B = 0
DIAG = 0
CODE_PF = 1
SYNC = 1
XCD_SEL = 0
HLP_EARLY = 1
P_MOV = 2
D = 'row_mask:0xf bank_mask:0xf'
XSEG_B = 28 * KB
FLG1 = EXCH_OFF + 2 * EXCH_B
FLG2 = FLG1 + 16 * 128
RING_B = 2 * EXCH_B + 48 * 128
SC_SLEEP = 6
X_EARLY = 0
R1 = 4
R2 = 4
VO_PRE = 16
VO_EVERY = 2
B1_POS = 4
TLB_WARM = 0
WARM = 0
PCHK = 1
NOX = 0
X_POS = 12
X_EVERY = 4
XFL = 'sc1'
TAIL = 2
SC_TOUCH = 0
TOUCH_AHEAD = 1
MG_LATE = 0
P_PRE = 10
F3_POS = 5
F2_DELAY = 8
P3_SLEEP = 3
H3_DELAY = 0
H2_DELAY = 0
X_LATE = 2

def stamp(a, k):
    if STAMPS: a(f's_memtime s[{40+2*k}:{41+2*k}]')
def stamp_flush(a, path, lbl, t):
    if not STAMPS: return
    a(f's_sub_u32 s22, s19, {STAMP_STEP}')
    a('s_cmp_gt_u32 s22, 1')
    a(f's_cbranch_scc1 {lbl}')
    a('s_waitcnt lgkmcnt(0)')
    a('s_lshl_b32 s22, s22, 14')
    a('s_lshl_b32 s63, s17, 9')
    a('s_add_u32 s22, s22, s63')
    a(f's_add_u32 s22, s22, {STAMP_OFF + path * 64}')
    a(f'v_mov_b32 v{t}, 0')
    for k in range(NST):
        a(f'v_mov_b32 v{t+1}, s{40+2*k}')
        a(f'buffer_store_dword v{t+1}, v{t}, {SRD}, s22 offen offset:{4*k}')
        a.nop(1)
    a.label(lbl)
def stamp_calib(a, P):
    if not STAMPS: return
    a('s_memrealtime s[64:65]')
    a('s_waitcnt lgkmcnt(0)')
    a('s_lshr_b32 s68, s64, 10')
    a.label(P)
    a('s_memrealtime s[64:65]')
    a('s_memtime s[66:67]')
    a('s_waitcnt lgkmcnt(0)')
    a('s_lshr_b32 s69, s64, 10')
    a('s_cmp_eq_u32 s68, s69')
    a(f's_cbranch_scc1 {P}')
    a('s_lshl_b32 s22, s17, 9')
    a('s_lshl_b32 s63, s89, 6')
    a('s_add_u32 s22, s22, s63')
    a(f's_add_u32 s22, s22, {STAMP_OFF}')
    a('v_mov_b32 v8, s64\nv_mov_b32 v9, s66\nv_mov_b32 v10, 0')
    a(f'buffer_store_dwordx2 v[8:9], v10, {SRD}, s22 offen offset:56')

EVLOG = 0
EV_OFF = 101 * 1024 * 1024
HDBG = 0
HMAP = {9000: 6, 9010: 7, 9011: 8, 9002: 9, 9003: 10, 9004: 11, 9020: 12, 9021: 13, 9022: 14}
def evlog(a, tag):
    if HDBG and tag in HMAP:
        lb = a.newlabel('hd')
        if tag in (9002, 9003, 9004):
            a('s_cmp_lg_u32 s17, 5')
            a(f's_cbranch_scc1 {lb}')
            a('s_cmp_lg_u32 s89, 3')
        else:
            a('s_cmp_lg_u32 s16, 0')
            a(f's_cbranch_scc1 {lb}')
            a(f's_cmp_lg_u32 s2, {HDBG}')
        a(f's_cbranch_scc1 {lb}')
        a('s_memrealtime s[98:99]')
        a('s_waitcnt lgkmcnt(0)')
        a('v_mov_b32 v37, s98')
        a(f'buffer_store_dword v37, off, {DBG}, 0 offset:{4*HMAP[tag]}')
        a.label(lb)
    if not EVLOG: return
    a('s_memrealtime s[98:99]')
    a('s_waitcnt lgkmcnt(0)')
    a(f'v_mov_b32 v36, {tag}')
    a('v_mov_b32 v37, s98')
    a('s_mov_b64 exec, 1')
    a(f'buffer_store_dwordx2 v[36:37], off, {SRD}, s100')
    a('s_mov_b64 exec, -1')
    a('s_add_u32 s100, s100, 8')

def spin(a, back, abort):
    a('s_add_u32 s30, s30, 1')
    a(f's_cmp_lt_u32 s30, {SPIN_LIMIT}')
    a(f's_cbranch_scc1 {back}')
    a(f's_branch {abort}')

def flagpoll(a, vaddr, tag, regs, lbl, abort):
    Dp = POLL_DEPTH
    for i in range(Dp):
        a(f'buffer_load_dword v{regs+i}, v{vaddr}, {SRD}, 0 offen sc1')
    a.label(lbl + '_l')
    for i in range(Dp):
        a(f's_waitcnt vmcnt({Dp-1})')
        a(f'v_cmp_gt_u32 vcc, {tag}, v{regs+i}')
        a(f's_cbranch_vccz {lbl}_d')
        a(f'buffer_load_dword v{regs+i}, v{vaddr}, {SRD}, 0 offen sc1')
    spin(a, lbl + '_l', abort)
    a.label(lbl + '_d')

def load_units(a, units, base, tmp_s='s22', fl=''):
    cur = None; n = 0
    for off, reg in units:
        for hb in range(2):
            o = off + hb * 1024
            blk = o // 4096 * 4096
            if blk != cur:
                a(f's_add_u32 {tmp_s}, {base}, {blk}'); cur = blk
            a(f'buffer_load_dwordx4 {ureg(reg + 4 * hb, 4)}, v2, {SRD}, {tmp_s} offen offset:{o - blk} {fl}')
            n += 1
            if n % 32 == 0: a('s_waitcnt vmcnt(24)')

def wreg(ti, ks):
    u = ti * 7 + ks
    return 256 + 8 * u if u < 32 else 120 + 8 * (u - 32)

def lane_consts(a):
    a('v_and_b32 v1, 63, v0')
    a('v_lshlrev_b32 v2, 4, v1')
    a('v_lshrrev_b32 v116, 4, v1')
    a('v_and_b32 v117, 15, v1')
    a('v_mov_b32 v3, 0x4444')
    a('v_mov_b32 v118, 0xeeee')
    a('v_cmp_lt_u32 vcc, 7, v117')
    a('v_cndmask_b32 v3, v3, v118, vcc')

def next_step(a):
    a('s_mov_b32 s19, s18')
    a('s_add_u32 s18, s18, 1')
    a('s_mov_b32 s22, s20')
    a('s_mov_b32 s20, s21')
    a('s_mov_b32 s21, s22')
    a('s_add_u32 s23, s20, 4096')

def gap(a, ops):
    for o in ops:
        if not o.startswith('v_'): a(o)
    for o in ops:
        if o.startswith('v_'): a(o)

def poison_max(a, acc, regs):
    regs = list(regs)
    a(f'v_max3_u32 v{acc}, v{regs[0]}, v{regs[1]}, v{regs[2]}'); regs = regs[3:]
    while len(regs) >= 2:
        a(f'v_max3_u32 v{acc}, v{acc}, v{regs[0]}, v{regs[1]}'); regs = regs[2:]
    if regs: a(f'v_max_u32 v{acc}, v{acc}, v{regs[0]}')

def poison_max16(a, acc, regs):
    regs = list(regs)
    a(f'v_pk_max_u16 v{acc}, v{regs[0]}, v{regs[1]}')
    for r in regs[2:]: a(f'v_pk_max_u16 v{acc}, v{acc}, v{r}')
    a(f'v_lshlrev_b32 v{acc+1}, 16, v{acc}')
    a(f'v_max_u32 v{acc}, v{acc}, v{acc+1}')
    a(f'v_cmp_le_u32 vcc, 0xffff0000, v{acc}')

XP = 0
MP = 4 * KB
MJ = MP + 2304
XB = 8 * KB
def score_tiles(w):
    kb = 4 + (w >> 1); pP = w & 1
    return [(w, 0), (w, 1), (w, 2), (w, 3), (kb, 2 * pP), (kb, 2 * pP + 1), (6, 2 * (1 - pP) + (w >> 1))]
def score_mreg(w):
    kb = 4 + (w >> 1)
    m = {0: 8, 1: 12, 2: 16, 3: 20, 9 - kb: 24}
    if w & 1: m[kb] = 28; m[6] = 32
    else: m[6] = 28; m[kb] = 32
    return m

def gen_score(a, w, st, tag):
    L = lambda n: f'{tag}_sc{w}_{n}'
    ABORT = f'{tag}_abort'
    MR = score_mreg(w)
    ka = w; half6 = w >> 1
    AC = [36, 40, 44, 48, 52, 56, 60 + 2 * half6]
    TMP = 66; SX = 68; BOP2 = 76; XS = [80, 88, 96, 104]
    D0, D1, BOPA = [MR[k] for k in range(4) if k != ka]
    SACC = 52; W = 56
    pb, p6 = (0, 1) if w & 1 else (1, 0)
    def S(ti, ks):
        return f'v_smfmac_f32_16x16x64_bf16 v[{AC[ti]}:{AC[ti]+3}], v[{MR[ks]}:{MR[ks]+3}], {ureg(wreg(ti, ks), 8)}, v3'
    def cvt(dst, src):
        return [f'v_cvt_pk_bf16_f32 v{dst}, v{src}, v{src+1}', f'v_cvt_pk_bf16_f32 v{dst+1}, v{src+2}, v{src+3}']
    def cin(ti, hi):
        r = AC[ti]
        return cvt(r, r) if hi else cvt(r + 2, r)[::-1]
    def T(dst, src): return f'v_mfma_f32_16x16x32_bf16 v[{dst}:{dst+3}], v[{src}:{src+3}], v[4:7], 0'
    def xld(k):
        buf, hb = k >> 1, k & 1; r = XS[buf] + 4 * hb
        return f'buffer_load_dwordx4 v[{r}:{r+3}], v{117 if buf < 2 else 2}, {SRD}, {"s26" if buf & 1 else "s24"} offen offset:{hb*1024} {XFL}'
    a.xld = xld
    def Smm(m, b, first=False):
        c = '0' if first else f'v[{SACC}:{SACC+3}]'
        return f'v_mfma_f32_16x16x32_bf16 v[{SACC}:{SACC+3}], v[{m}:{m+3}], v[{b}:{b+3}], {c}'
    def Sx(tt, b, buf):
        return f'v_smfmac_f32_16x16x64_bf16 v[{SX+4*tt}:{SX+4*tt+3}], v[{b}:{b+3}], v[{XS[buf]}:{XS[buf]+7}], v3'
    ZR = list(range(36, 52)) + list(range(AC[6], AC[6] + 4)) + list(range(SX, SX + 8)) + list(range(52, 60))
    def zero(lo=0, hi=99):
        for r in ZR[lo:hi]: a(f'v_mov_b32 v{r}, 0')
    def mls(ks): return f'buffer_load_dwordx4 v[{MR[ks]}:{MR[ks]+3}], v2, {SRD}, {"s20" if ks < 4 else "s23"} offen offset:{(ks & 3) * 1024} sc1'
    def ml(ks): a(mls(ks))
    a.raw('.p2align 6')
    a.label(L('loop'))
    a('s_mov_b32 s30, 0')
    a('s_mov_b32 s62, 0')
    a('s_setprio 3')
    if w == 0:
        if SC_SLEEP: a(f's_sleep {SC_SLEEP}')
        flagpoll(a, 0, 's19', BOP2, L('fp'), ABORT)
        ml(0)
        a('s_barrier')
    else:
        a('s_barrier')
        ml(0)
    stamp(a, 0)
    for k in (1, 2, 3):
        a(f's_setprio {3-k}')
        ml(k)
    NZ = len(ZR) - (WARM if w != 2 else 0)
    zero(NZ)
    a.flush()
    a.label(L('go'))
    chk = lambda k: f'v_cmp_eq_u32 vcc, -1, v{MR[k]}'
    ex1 = lambda k: [chk(k)]
    ex3 = [f'v_max3_u32 v{TMP}, v24, v27, v28', f'v_max3_u32 v{TMP}, v{TMP}, v31, v32', f'v_max_u32 v{TMP}, v{TMP}, v35', f'v_cmp_eq_u32 vcc, -1, v{TMP}']
    a('s_waitcnt vmcnt(3)')
    stamp(a, 1)
    xpos = [-1] * X_LATE + [X_POS + X_EVERY * k for k in range(8 - X_LATE)]
    nx = 0
    for ks in range(4):
        for ti in range(7):
            a(S(ti, ks))
            if ks == 0:
                if ti in (0, 2, 5): ml(4 + ti // 2)
                if ti == 2: a(f's_cbranch_vccnz {L("r0")}')
            if ti == 4 and ks < 3: a(f's_waitcnt vmcnt({[4, 4, 3][ks] + nx})')
            if ks == 3 and ti == 1: a(f's_waitcnt vmcnt({nx})')
            if 7 * ks + ti in xpos and not NOX:
                assert 7 * ks + ti > 5
                a(xld(X_LATE + nx)); nx += 1
            if ks == 0 and ti == 0: a(chk(0))
            if ti == 4 and ks < 3: a(chk(ks + 1))
            if ks == 3 and 1 <= ti <= 4: a(ex3[ti - 1])
            if ti == 6:
                a(f's_cbranch_vccnz {L(f"r{ks+1}")}')
                a.label(L(f'c{ks+1}'))
    stamp(a, 2)
    seq = []
    for ti in (6, 4, 5, 0, 1, 2, 3):
        for ks in (4, 5, 6): seq.append([S(ti, ks), []])
    def side(i, ops): seq[i][1] += ops
    def spread(i, ops):
        for k, o in enumerate(ops): side(i + k, [o])
    spread(5, cin(6, half6))
    seq.insert(8, [T(D0, 62 - 2 * half6), []])
    spread(8, cin(4, 0))
    spread(10, cvt(BOP2 + 2 * p6, D0))
    spread(12, cin(5, 1))
    seq.insert(15, [T(D1, 54), []])
    spread(15, cin(0, 0))
    spread(17, cvt(BOP2 + 2 * pb, D1))
    spread(19, cin(1, 1))
    c2 = cin(2, 0); c3 = cin(3, 1)
    for k in range(X_LATE + nx, 8):
        if not NOX: side(xpos[k] - 28, [xld(k)])
    side(22, ['s_waitcnt vmcnt(4)'] + c2[:1])
    seq.append([Sx(0, BOP2, 0), c2[1:]])
    seq.append([T(D0, 38), c3])
    seq.append([T(D1, 46), []])
    seq.append([Sx(1, BOP2, 1), cvt(BOPA, D0)[:1]])
    seq.append([Smm(30, BOP2, True), ['s_waitcnt vmcnt(0)'] + cvt(BOPA, D0)[1:] + cvt(BOPA + 2, D1)])
    wm = f'ds_write_b128 v113, v[{SACC}:{SACC+3}]'
    def foldx(t):
        b = SX + 4 * t
        a(f'v_permlane32_swap_b32 v{b}, v{b+2}')
        a(f'v_permlane32_swap_b32 v{b+1}, v{b+3}')
        a(f'v_add_f32 v{W+t}, v{b}, v{b+2}')
        a(f'v_add_f32 v{W+2+t}, v{b+1}, v{b+3}')
    last3 = [Sx(0, BOPA, 2), Sx(1, BOPA, 3), Smm(MR[ka], BOPA)]
    for k in [(2, 0, 1), (0, 1, 2), (0, 2, 1), (0, 1, 2)][TAIL]: seq.append([last3[k], []])
    for m, ops in seq:
        a(m)
        gap(a, ops)
    nz = 0
    if TAIL == 0:
        a(wm); foldx(0); foldx(1)
    elif TAIL == 1:
        foldx(0); foldx(1); a(wm)
    else:
        foldx(0); a(wm); foldx(1)
    a(f'ds_write_b128 v2, v[{W}:{W+3}] offset:{XP + w*1024}')
    a(f'v_cmp_u_f32 vcc, v{W+1}, v{W+3}')
    stamp(a, 3)
    zero(nz, nz + 4)
    a(f's_cbranch_vccnz {L("retry")}')
    a.label(L('cont'))
    a(f's_add_u32 s24, s24, {XSEG_B}')
    a(f's_add_u32 s26, s26, {XSEG_B}')
    for k in range(X_LATE): a(xld(k))
    zero(nz + 4, nz + FILL_A); nz += FILL_A
    a('s_waitcnt lgkmcnt(0)')
    a('s_barrier')
    stamp(a, 4)
    if w < 2:
        t = 8
        for k in range(4): a(f'ds_read_b64 v[{t+2*k}:{t+2*k+1}], v114 offset:{k*1024}')
        a(f'ds_read2_b32 v[{t+8}:{t+9}], v115 offset0:0 offset1:64')
        a(f'ds_read2_b32 v[{t+10}:{t+11}], v115 offset0:128 offset1:192')
        zero(nz, nz + FILL_B); nz += FILL_B
        a('s_waitcnt lgkmcnt(0)')
        stamp(a, 5)
        X = t; Y = t + 4; Mm = t + 8; m = t + 12; mx = t + 14; l = t + 16
        a(f'v_pk_add_f32 v[{Mm}:{Mm+1}], v[{Mm}:{Mm+1}], v[{Mm+2}:{Mm+3}]')
        a(f'v_pk_add_f32 v[{X}:{X+1}], v[{X}:{X+1}], v[{X+2}:{X+3}]')
        a(f'v_pk_add_f32 v[{Y}:{Y+1}], v[{Y}:{Y+1}], v[{Y+2}:{Y+3}]')
        a(f'v_add_f32 v{m}, v{Mm}, v{Mm+1}')
        a(f'v_pk_add_f32 v[{X}:{X+1}], v[{X}:{X+1}], v[{Y}:{Y+1}]')
        a(f'v_max_f32 v{mx}, v{X}, v{X+1}')
        a(f'v_add_f32_dpp v{m}, v{m}, v{m} row_ror:8 {D}')
        a(f'v_max_f32_dpp v{mx}, v{mx}, v{mx} row_ror:8 {D}')
        a(f'v_max_f32 v{mx}, v{mx}, v{m}')
        a(f'v_max_f32_dpp v{mx}, v{mx}, v{mx} quad_perm:[1,0,3,2] {D}')
        a(f'v_max_f32_dpp v{mx}, v{mx}, v{mx} quad_perm:[2,3,0,1] {D}')
        a(f'v_max_f32_dpp v{mx}, v{mx}, v{mx} row_half_mirror {D}')
        a(f'v_pk_add_f32 v[{X}:{X+1}], v[{X}:{X+1}], v[{mx}:{mx+1}] op_sel_hi:[1,0] neg_lo:[0,1] neg_hi:[0,1]')
        a(f'v_sub_f32 v{m}, v{m}, v{mx}')
        a(f'v_exp_f32 v{X}, v{X}')
        a(f'v_exp_f32 v{X+1}, v{X+1}')
        a(f'v_exp_f32 v{m}, v{m}')
        a(f'v_add_f32 v{l}, v{X}, v{X+1}')
        a(f'v_fmac_f32 v{l}, 0.5, v{m}')
        a(f'v_mov_b32_dpp v{m+1}, v{m} quad_perm:[1,0,3,2] {D}')
        a(f'v_add_f32_dpp v{l}, v{l}, v{l} quad_perm:[1,0,3,2] {D}')
        a(f'v_add_f32_dpp v{l}, v{l}, v{l} quad_perm:[2,3,0,1] {D}')
        a(f'v_add_f32_dpp v{l}, v{l}, v{l} row_half_mirror {D}')
        a(f'v_add_f32_dpp v{l}, v{l}, v{l} row_ror:8 {D}')
        a(f'v_rcp_f32 v{l}, v{l}')
        a(f'v_pk_mul_f32 v[{X}:{X+1}], v[{X}:{X+1}], v[{l}:{l+1}] op_sel_hi:[1,0]')
        a(f'v_pk_mul_f32 v[{m}:{m+1}], v[{m}:{m+1}], v[{l}:{l+1}] op_sel_hi:[1,0]')
        a(f'v_cvt_pk_bf16_f32 v{X}, v{X}, v{X+1}')
        a(f'v_cvt_pk_bf16_f32 v{m}, v{m}, v{m+1}')
        a(f'v_min_u32 v{X}, -2, v{X}')
        a(f'buffer_store_dword v{X}, v1, {SRD}, s20 offen {st}')
        a(f'v_min_u32 v{m}, -2, v{m}')
        a(f'buffer_store_dword v{m}, v118, {SRD}, s20 offen {st}')
        stamp(a, 6)
        if SC_TOUCH: a('s_barrier')
        a(f'buffer_store_dword v119, v1, {SRD}, s21 offen {st}')
        a(f'buffer_store_dword v119, v118, {SRD}, s21 offen {st}')
    else:
        if w == 2:
            zero(nz, nz + F1_DELAY)
            for k in range(max(0, nz + F1_DELAY - len(ZR))): a(f'v_mov_b32 v{TMP}, 0')
            nz += F1_DELAY
            a(f'buffer_store_dword v119, v1, {SRD}, 0 offen {st}')
            stamp(a, 5)
        zero(nz, NZ); nz = NZ
        if SC_TOUCH:
            a('s_barrier')
            a(f'buffer_load_dword v{TMP+1}, v116, {SRD}, s35 offen sc1')
            a(f's_add_u32 s35, s35, {GSH_B}')
    zero(nz, NZ)
    stamp_flush(a, w, L('sf'), BOP2)
    if STEPLOG and w == 1:
        a('s_memtime s[40:41]')
        a('s_lshl_b32 s22, s17, 8')
        a('s_lshl_b32 s42, s19, 2')
        a('s_add_u32 s22, s22, s42')
        a(f's_add_u32 s22, s22, {STAMP_OFF}')
        a(f'v_mov_b32 v{BOP2}, 0')
        a('s_waitcnt lgkmcnt(0)')
        a(f'v_mov_b32 v{BOP2+1}, s40')
        a(f'buffer_store_dword v{BOP2+1}, v{BOP2}, {SRD}, s22 offen')
    if DIAG and w == 3:
        a('s_cmp_lg_u32 s19, 1')
        a(f's_cbranch_scc1 {L("dg")}')
        a('s_memtime s[90:91]')
        a.label(L('dg'))
    next_step(a)
    if w == 2: a('v_mov_b32 v119, s18')
    a(f's_cmp_lt_u32 s19, {NSTEPS-1}')
    a.flush()
    a(f's_cbranch_scc1 {L("loop")}')
    a(f's_branch {tag}_done')
    for k in range(5):
        ks_ = [k] if k < 4 else [4, 5, 6]
        a.label(L(f'r{k}'))
        a('s_add_u32 s31, s31, 1')
        for ks in ks_: ml(ks)
        a('s_waitcnt vmcnt(0)')
        for x in (ex1(k) if k < 4 else ex3): a(x)
        if k == 0:
            for r in range(36, 52): a(f'v_mov_b32 v{r}, 0')
        a.flush()
        a(f's_cbranch_vccz {L("go" if k == 0 else f"c{k}")}')
        spin(a, L(f'r{k}'), ABORT)
    a.label(L('retry'))
    a('s_cmp_lg_u32 s62, 0')
    a(f's_cbranch_scc1 {L("cont")}')
    a('s_waitcnt vmcnt(0) lgkmcnt(0)')
    a.label(L('rv'))
    for ks in range(7): ml(ks)
    a('s_waitcnt vmcnt(0)')
    poison_max16(a, TMP, range(8, 36))
    a(f's_cbranch_vccz {L("rk")}')
    spin(a, L('rv'), ABORT)
    a.label(L('rk'))
    a('s_mov_b32 s62, 1')
    zero()
    a('s_add_u32 s31, s31, 0x100')
    a.flush()
    a(f's_branch {L("go")}')

def touch_ring(a, t):
    nl = RING_B // 128
    a(f's_mov_b32 s22, {EXCH_OFF}')
    for k in range((nl + 63) // 64):
        a(f'v_add_u32 v{t}, {64*k}, v1')
        a(f'v_min_u32 v{t}, {nl-1}, v{t}')
        a(f'v_lshlrev_b32 v{t}, 7, v{t}')
        a(f'buffer_load_dword v{t+1}, v{t}, {SRD}, s22 offen sc1')

def WFL(): return 'sc1' if FUSE else ''
HELP = 0
def mask_wait(a, P, vaddr, soff, smask, sleep=3):
    poll(a, P, [f'buffer_load_dword v65, {vaddr}, {SRD}, {soff} {"offen" if vaddr != "off" else ""} sc1'], [f'v_and_b32 v66, {smask}, v65', f'v_cmp_ne_u32 vcc, {smask}, v66'], sleep=sleep)
def b_wait(a, P, w):
    a('s_lshr_b32 s22, s17, 2')
    a('s_lshl_b32 s28, 0x81, s22')
    a('s_mul_i32 s27, s17, 12')
    for d in (256, 267):
        a(f's_add_u32 s22, s27, {d}')
        a('s_lshr_b32 s22, s22, 6')
        a('s_lshl_b32 s22, 0x81, s22')
        a('s_or_b32 s28, s28, s22')
    a('v_lshlrev_b32 v64, 7, v116')
    a(f's_mov_b32 s27, {PFL + w*512}')
    mask_wait(a, P, 'v64', 's27', 's28')
def a_wait(a, P, kaps):
    a('s_lshl_b32 s27, s17, 7')
    a(f's_add_u32 s27, s27, {PFL + 2048}')
    a(f's_mov_b32 s28, {sum(0x81 << k for k in kaps)}')
    mask_wait(a, P, 'off', 's27', 's28')
def touch_tiles(a, base, tiles):
    a('v_min_u32 v64, 55, v1')
    a('v_lshlrev_b32 v64, 7, v64')
    a(f's_mul_i32 s27, s17, {CUW_B}')
    for t in tiles:
        for hf in range(2):
            a(f's_add_u32 s22, s27, {base + t*TILE_B + hf*7168}')
            a(f'buffer_load_dword v67, v64, {SRD}, s22 offen sc1')
def r_wait(a, P, off):
    poll(a, P, [f'buffer_load_dword v65, off, {DBG}, 0 offset:{off} sc1'], ['v_cmp_ne_u32 vcc, 1, v65'], sleep=8)

def init_score(a, w):
    a(f's_mul_i32 s31, s17, {CUW_B}')
    a(f's_add_u32 s31, s31, {WF_A}')
    units = [((kap * 4 + q) * TILE_B + ks * UNIT, wreg(ti, ks)) for ti, (kap, q) in enumerate(score_tiles(w)) for ks in range(7)]
    if FUSE:
        r_wait(a, f'ch_wr{w}', D_R2)
        if w == 3: touch_ring(a, 64)
        if HELP:
            b_wait(a, f'ch_wh{w}', w)
            touch_tiles(a, WF_B, [7*w + 4, 7*w + 5, 7*w + 6])
        a_wait(a, f'ch_wa{w}', [w])
        evlog(a, 9002)
        a('v_readfirstlane_b32 s29, v65')
        load_units(a, units[:28], 's31', fl=WFL())
        m2 = (0x81 << (4 + (w >> 1))) | (0x81 << 6)
        a(f's_and_b32 s29, s29, {m2}')
        a(f's_cmp_eq_u32 s29, {m2}')
        a(f's_cbranch_scc1 ch_wb{w}_ok')
        a_wait(a, f'ch_wb{w}', [4 + (w >> 1), 6])
        a('s_waitcnt vmcnt(28)')
        load_units(a, units[28:], 's31', fl=WFL())
        a(f's_mov_b32 s27, {PFL + 4096}')
        a('s_mov_b32 s28, 0xffff')
        mask_wait(a, f'ch_wx{w}', 'off', 's27', 's28', sleep=8)
    else:
        if w == 3: touch_ring(a, 64)
        load_units(a, units, 's31', fl=WFL())
    a(f's_mov_b32 s24, {XF_OFF + w*2048}')
    a(f's_mov_b32 s26, {XF_OFF + w*2048 + 14336}')
    a('v_and_b32 v64, 7, v117')
    a('v_and_b32 v65, 1, v116')
    a('v_lshlrev_b32 v65, 2, v65')
    a('v_sub_u32 v64, v64, v65')
    a('v_lshrrev_b32 v65, 3, v117')
    a('v_lshl_add_u32 v66, v65, 2, v64')
    a('v_cmp_gt_u32 vcc, 4, v64')
    a('v_mov_b32 v67, 99')
    a('v_cndmask_b32 v66, v67, v66, vcc')
    a('v_mov_b32 v68, 0x3f80')
    a('v_mov_b32 v69, 0x3f800000')
    for d in range(4):
        a(f'v_mov_b32 v{4+d}, 0')
        a(f'v_cmp_eq_u32 vcc, {2*d}, v66')
        a(f'v_cndmask_b32 v{4+d}, v{4+d}, v68, vcc')
        a(f'v_cmp_eq_u32 vcc, {2*d+1}, v66')
        a(f'v_cndmask_b32 v{4+d}, v{4+d}, v69, vcc')
    a('v_lshrrev_b32 v64, 1, v116')
    a('v_lshrrev_b32 v65, 3, v117')
    a('v_and_b32 v66, 1, v116')
    a('v_and_b32 v68, 7, v117')
    a('v_lshlrev_b32 v67, 8, v65')
    a('v_lshl_add_u32 v67, v68, 5, v67')
    a('v_lshl_add_u32 v67, v66, 4, v67')
    a(f'v_add_u32 v69, {MP + (w >> 1) * 1088 + (w & 1) * 512}, v67')
    a(f'v_add_u32 v70, {MJ}, v67')
    a('v_cmp_eq_u32 vcc, v64, v65')
    a('v_cndmask_b32 v113, v70, v69, vcc')
    if w < 2:
        a('v_lshlrev_b32 v67, 9, v64')
        a('v_lshl_add_u32 v67, v117, 4, v67')
        a('v_lshl_add_u32 v67, v66, 3, v67')
        a(f'v_add_u32 v114, {XP + w*256}, v67')
        a('v_mul_u32_u24 v67, 1088, v65')
        a('v_lshl_add_u32 v67, v116, 5, v67')
        a('v_lshl_add_u32 v67, v68, 2, v67')
        a(f'v_add_u32 v115, {MP + w*128}, v67')
        a('v_and_b32 v69, 1, v117')
        a('v_lshlrev_b32 v67, 7, v69')
        a('v_lshl_add_u32 v67, v116, 4, v67')
        a('v_lshl_add_u32 v67, v65, 8, v67')
        a('v_bfe_u32 v69, v117, 1, 2')
        a('v_lshl_add_u32 v67, v69, 2, v67')
        a('s_lshl_b32 s22, s17, 9')
        a(f's_add_u32 s22, s22, {PX + w*64}')
        a('v_add_u32 v72, s22, v67')
        a('v_bfe_u32 v69, v117, 1, 1')
        a('v_lshlrev_b32 v67, 7, v69')
        a('v_lshl_add_u32 v67, v116, 4, v67')
        a('v_and_b32 v69, 4, v117')
        a('v_add_u32 v67, v67, v69')
        a('s_lshr_b32 s22, s17, 1')
        a('s_lshl_b32 s22, s22, 8')
        a('s_and_b32 s27, s17, 1')
        a('s_lshl_b32 s27, s27, 3')
        a('s_add_u32 s22, s22, s27')
        a(f's_add_u32 s22, s22, {PM + w*64}')
        a('v_add_u32 v67, s22, v67')
        a('v_and_b32 v69, 9, v117')
        a('v_mov_b32 v70, 0x40000000')
        a('v_cmp_eq_u32 vcc, 0, v69')
        a('v_cndmask_b32 v118, v70, v67, vcc')
        a('v_mov_b32 v119, -1')
    elif w == 2:
        a('s_lshl_b32 s22, s17, 2')
        a(f's_add_u32 s22, s22, {FLG1}')
        a('v_lshl_add_u32 v67, v1, 7, s22')
        a('v_mov_b32 v70, 0x40000000')
        a(f'v_cmp_gt_u32 vcc, {R1}, v1')
        a('v_cndmask_b32 v72, v70, v67, vcc')
        a('v_mov_b32 v119, 1')
    a('v_and_b32 v0, 15, v1')
    a(f's_and_b32 s22, s17, {R2-1}')
    a('s_lshl_b32 s22, s22, 7')
    a(f's_add_u32 s22, s22, {FLG2}')
    a('v_lshl_add_u32 v0, v0, 2, s22')
    kb = 4 + (w >> 1)
    k1, k2 = (kb, 6) if w & 1 else (6, kb)
    a('v_xor_b32 v69, 256, v2')
    a(f'v_mul_i32_i24 v70, {(k2 - k1) * 2048}, v66')
    a('v_add_u32 v69, v69, v70')
    a(f'v_add_u32 v117, {(k1 - w)*2048}, v69')
    if w >= 2:
        a(f'v_min_u32 v116, {max(SC_TOUCH, 1) - 1}, v1')
        a('v_lshlrev_b32 v116, 7, v116')
        a(f's_mul_i32 s35, s17, {64*GSH_B}')
        a(f's_add_u32 s35, s35, {VO_OFF + (TOUCH_AHEAD + 1)*GSH_B - (w - 1)*SC_TOUCH*128}')
    if w < 3: a('v_mov_b32 v1, v72')
    for r in range(36, 80): a(f'v_mov_b32 v{r}, 0')
    for k in range(X_LATE):
        r = 80 + 4 * k
        a(f'buffer_load_dwordx4 v[{r}:{r+3}], v117, {SRD}, {"s26" if k & 2 else "s24"} offen offset:{(k & 1)*1024} {XFL}')

YL = 0; ML = 8 * KB; WL = 16 * KB
def vwreg(w, ti, ks):
    u = ti * 7 + ks
    return 256 + 8 * u if u < 32 else (176 if w < 2 else 120) + 8 * (u - 32)

def vo_wait0(a, P):
    if FUSE: poll(a, P + 'i', [f'buffer_load_dword v9, off, {DBG}, 0 offset:{D_R2} sc1'], ['v_cmp_ne_u32 vcc, 1, v9'], sleep=8)
    a('s_lshl_b32 s27, s17, 7')
    a(f's_add_u32 s27, s27, {CNT_OFF + VOC}')
    a('s_mov_b32 s30, 0')
    a.label(P)
    a(f'buffer_load_dword v9, off, {SRD}, s27 sc1')
    a('s_waitcnt vmcnt(0)')
    a('v_cmp_ne_u32 vcc, 56, v9')
    a(f's_cbranch_vccz {P}_d')
    a('s_sleep 2')
    spin(a, P, 'cA_abort')
    a.label(P + '_d')

def resolve_waits(ins):
    out = []; pos = {}; n = 0
    for x in ins:
        if isinstance(x, tuple) and x[0] == 'tag':
            n += 1; pos[x[1]] = n; out.append(x[2])
        elif isinstance(x, tuple):
            out.append(f's_waitcnt lgkmcnt({min(15, n - pos[x[1]])})')
        else:
            if x.startswith('ds_'): n += 1
            out.append(x)
    return out

def gen_value(a, w, st, tag):
    L = lambda n: f'{tag}_va{w}_{n}'
    ABORT = f'{tag}_abort'
    fin = w < 2
    M = 8; ACC = 36
    YA = 152 if fin else 104
    YT = 64; VOR = 80; LO = 48; PL = 52; HI = 160
    STG = [64, 72, 144]
    own = [[4, 5], [5, 6], [0, 1], [2, 3]][w]
    wrt = own if w != 1 else [6]
    oth = [k for k in range(7) if k not in own]
    def S(ti, ks):
        b = f'v[{STG[ks % 3]}:{STG[ks % 3]+7}]' if fin and ti == 6 else ureg(vwreg(w, ti, ks), 8)
        return f'v_smfmac_f32_16x16x64_bf16 v[{ACC+4*ti}:{ACC+4*ti+3}], v[{M+4*ks}:{M+4*ks+3}], {b}, v3'
    def fold(t):
        r = ACC + 4 * t
        return [f'v_permlane32_swap_b32 v{r}, v{r+2}', f'v_permlane32_swap_b32 v{r+1}, v{r+3}', f'v_add_f32 v{r}, v{r}, v{r+2}', f'v_add_f32 v{r+1}, v{r+1}, v{r+3}',
                f'v_cvt_pk_bf16_f32 v{r+2}, v{r}, v{r+1}', f'ds_write_b32 v{YA+t}, v{r+2}']
    def wrd(ks):
        b = STG[ks % 3]
        return [f'ds_read_b128 v[{b}:{b+3}], v0 offset:{ks*UNIT}', ('tag', f'w{ks}', f'ds_read_b128 v[{b+4}:{b+7}], v0 offset:{ks*UNIT+1024}')]
    def mld(ks): return f'buffer_load_dwordx4 v[{M+4*ks}:{M+4*ks+3}], v2, {SRD}, {"s20" if ks < 4 else "s23"} offen offset:{(ks & 3) * 1024} sc1'
    def vol(h):
        return ([f's_add_u32 s22, s25, {h*1792}'] if h % 2 == 0 else []) + [f'buffer_load_dwordx4 v[{VOR+4*h}:{VOR+4*h+3}], v6, {SRD}, s22 offen offset:{(h & 1)*1792} sc1']
    isv = lambda o: isinstance(o, str) and o.startswith('v_')
    pois = f'buffer_store_dword v162, v1, {SRD}, s21 offen {st}'
    mg = f'buffer_store_dword v{HI}, v1, {SRD}, s38 offen sc1'
    zr = list(range(ACC, ACC + 28))
    a.raw('.p2align 6')
    a.label(L('loop'))
    a('s_mov_b32 s30, 0')
    if w == 2:
        flagpoll(a, 119, 's19', 100, L('fp'), ABORT)
        for ks in own: a(mld(ks))
        a('s_barrier')
    else:
        a('s_barrier')
        for ks in own: a(mld(ks))
    stamp(a, 0)
    a('s_barrier')
    ny = 0
    if fin:
        a(mg); ny += 1
        for h in range(VO_PRE):
            for x in vol(h): a(x)
        ny += VO_PRE
        a(f's_mul_i32 s38, s18, {7*KB}')
        a(f's_add_u32 s38, s38, {MEMG_OFF}')
    if w == 3:
        a(f'buffer_load_dword v100, v116, {SRD}, s39 offen sc1')
        a('s_add_u32 s27, s19, 2')
        a('s_min_u32 s27, s27, 63')
        a('s_lshr_b32 s27, s27, 3')
        a('s_lshl_b32 s27, s27, 11')
        a('s_add_u32 s27, s27, s35')
        a(f'buffer_load_dword v101, off, {SRD}, s27 sc1')
        a(f's_add_u32 s39, s39, {XSEG_B}')
        ny += 2
    a(f's_waitcnt vmcnt({ny})')
    stamp(a, 1)
    for ks in wrt: a(f'ds_write_b128 v2, v[{M+4*ks}:{M+4*ks+3}] offset:{ML + ks*1024}')
    nrt = 6 if fin else 7
    seq = [[t, S(t, ks), []] for ks in own for t in range(nrt)]
    seq[B1_POS][2] += ['s_waitcnt lgkmcnt(0)', 's_barrier'] + [('tag', f'm{ks}', f'ds_read_b128 v[{M+4*ks}:{M+4*ks+3}], v2 offset:{ML + ks*1024}') for ks in oth]
    n0 = len(seq)
    rest = [[t, S(t, ks), []] for t in range(nrt) for ks in oth]
    if fin:
        for j_ in range(7): rest.insert(3 + 4 * j_, [6, S(6, j_), []])
    seq += rest
    for k, ks in enumerate(oth):
        idx = next(i_ for i_ in range(n0, len(seq)) if seq[i_][1] == S(0, ks))
        seq[idx - 1][2].append(('wait', f'm{ks}'))
    if fin:
        for j_ in range(7):
            idx = n0 + 3 + 4 * j_
            seq[idx - (8 if j_ else 5)][2] += wrd(j_)
            seq[idx - 1][2].append(('wait', f'w{j_}'))
        for h in range(VO_PRE, 16): seq[(h - VO_PRE) * VO_EVERY][2] += vol(h)
        if TLB_WARM and w == 1:
            seq[(16 - VO_PRE) * VO_EVERY][2] += [f's_add_u32 s22, s25, {2*GSH_B - 128}', f'buffer_load_dword v164, off, {SRD}, s22 sc1']
    last = {}
    for i_, (t, m, sd) in enumerate(seq): last[t] = i_
    ins = []; pend = []; delay = 0; brk = None
    for i_, (t, m, sd) in enumerate(seq):
        ins.append(m)
        ops = list(sd)
        if pend and pend[0].startswith('ds_'): ops.insert(0, pend.pop(0))
        if brk == i_:
            ops.append(f's_cbranch_vccnz {L("slow")}')
            assert not fin or i_ > (16 - VO_PRE) * VO_EVERY
        if brk is not None and brk + 2 == i_ and fin: ops.append(pois)
        if delay: delay -= 1
        elif pend:
            x = pend.pop(0); ops.append(x)
            if x.startswith('v_cmp'): brk = i_ + 2
        ins += [o for o in ops if not isv(o)] + [o for o in ops if isv(o)]
        if i_ == last[t]:
            delay = max(delay, 2 - len(pend))
            f_ = fold(t)
            if t == 0: f_.insert(4, f'v_cmp_u_f32 vcc, v{ACC}, v{ACC+1}')
            pend += f_
    ins += pend
    for x in resolve_waits(ins): a(x)
    a.label(L('t2d'))
    stamp(a, 2)
    if fin:
        pr = lambda c: 8 + 4 * c
        def pld(c):
            so = ('s22', 's34', 's36')[c // 4]
            a(f'buffer_load_dwordx4 v[{pr(c)}:{pr(c)+3}], v2, {SRD}, {so} offen offset:{(c & 3)*1024} sc1')
        a(f's_add_u32 s22, s20, {PX}')
        a(f's_add_u32 s34, s20, {PX + 4096}')
        a(f's_add_u32 s36, s20, {PM}')
        a('s_mov_b32 s37, 0')
        for r in range(LO, LO + 4): a(f'v_mov_b32 v{r}, 0')
        a('v_mov_b32 v163, s18')
        a('s_waitcnt lgkmcnt(0)')
        if STAMPS:
            a('s_waitcnt vmcnt(0)')
            stamp(a, 3)
        if w == 0:
            a('s_setprio 3')
            flagpoll(a, 4, 's18', PL, L('fw'), ABORT)
            for c in range(10): pld(c)
        a('s_barrier')
        stamp(a, 4)
        if w == 1:
            for c in range(10): pld(c)
        for k in range(4): a(f'ds_read_b128 v[{YT+4*k}:{YT+4*k+3}], v2 offset:{YL + w*4096 + k*1024}')
        a.label(L('lp'))
        nst = 0
        ckc = list(range(min(F3_POS - 1, 8))) if PCHK and w == 1 else []
        for c in range(10):
            a(f's_waitcnt vmcnt({9-c+nst})' + (' lgkmcnt(0)' if c == 8 else ''))
            if c == 0: stamp(a, 5)
            B_ = VOR + 8 * c if c < 8 else YT + 8 * (c - 8)
            a(f'v_smfmac_f32_16x16x64_bf16 v[{LO}:{LO+3}], v[{pr(c)}:{pr(c)+3}], v[{B_}:{B_+7}], v3')
            if c == F3_POS and w == 1:
                if ckc: a(f's_cbranch_vccnz {L("rv")}')
                a(f'buffer_store_dword v163, v7, {SRD}, 0 offen {st}')
                nst = 1
            if c in ckc:
                if c % 2 == 0 and c > 0: a(f'v_max3_u32 v{PL+3}, v{PL+3 if c > 2 else pr(0)}, v{pr(c-1)}, v{pr(c)}')
                elif c == ckc[-1] and c > 0: a(f'v_max_u32 v{PL+3}, v{PL+3 if c > 2 else pr(0)}, v{pr(c)}')
                if c == ckc[-1]: a(f'v_cmp_eq_u32 vcc, -1, v{PL+3 if c > 0 else pr(0)}')
        stamp(a, 6)
        a(f'v_permlane32_swap_b32 v{LO}, v{LO+2}')
        a(f'v_permlane32_swap_b32 v{LO+1}, v{LO+3}')
        a(f'v_add_f32 v{LO}, v{LO}, v{LO+2}')
        a(f'v_add_f32 v{LO+1}, v{LO+1}, v{LO+3}')
        a(f'v_cvt_pk_bf16_f32 v{HI}, v{LO}, v{LO+1}')
        a(f'v_cmp_u_f32 vcc, v{LO}, v{LO+1}')
        a(f'v_mov_b32_dpp v{HI+1}, v{HI} quad_perm:[1,0,3,2] {D}')
        a(f'v_perm_b32 v{HI}, v{HI+1}, v{HI}, v5')
        a(f'v_min_u32 v{HI}, -2, v{HI}')
        a(f's_cbranch_vccnz {L("rp")}')
        a.label(L('cont'))
        a(f'buffer_store_dword v{HI}, v1, {SRD}, s21 offen {st}')
        stamp(a, 7)
        if w == 0: a('s_setprio 0')
        a(f's_cmp_lg_u32 s19, {NSTEPS-2}')
        a(f's_cbranch_scc1 {L("nl")}')
        a(mg)
        a(f's_branch {tag}_done')
        a.label(L('nl'))
        a(f's_add_u32 s25, s25, {GSH_B}')
        stamp_flush(a, 4 + w, L('sf'), PL)
        for r in zr: a(f'v_mov_b32 v{r}, 0')
    else:
        a('v_mov_b32 v117, s18')
        if w == 3:
            a.label(L('vow'))
            a('s_waitcnt vmcnt(0)')
            a('v_cmp_ne_u32 vcc, 56, v101')
            a(f's_cbranch_vccnz {L("vor")}')
        a('s_waitcnt lgkmcnt(0)')
        stamp(a, 3)
        a('s_barrier')
        nd = F2_DELAY if w == 3 else 0
        for r in zr[:nd]: a(f'v_mov_b32 v{r}, 0')
        if w == 3: a(f'buffer_store_dword v117, v118, {SRD}, 0 offen {st}')
        a(f's_cmp_eq_u32 s19, {NSTEPS-2}')
        a(f's_cbranch_scc1 {tag}_done')
        if w == 2: a('s_sleep 1')
        for r in zr[nd:]: a(f'v_mov_b32 v{r}, 0')
        if w == 2 and P3_SLEEP: a(f's_sleep {P3_SLEEP}')
        stamp_flush(a, 4 + w, L('sf'), 76)
    next_step(a)
    a.flush()
    a(f's_branch {L("loop")}')
    a.label(L('slow'))
    a('s_waitcnt lgkmcnt(0)')
    a.label(L('sl1'))
    a('s_add_u32 s31, s31, 0x1000000')
    for ks in range(7): a(mld(ks))
    a('s_waitcnt vmcnt(0)')
    poison_max(a, ACC, range(M, M + 28))
    a(f'v_cmp_eq_u32 vcc, -1, v{ACC}')
    a(f's_cbranch_vccz {L("sl2")}')
    spin(a, L('sl1'), ABORT)
    a.label(L('sl2'))
    for r in zr: a(f'v_mov_b32 v{r}, 0')
    if fin: a(pois)
    for ks in range(7):
        if fin:
            for x in resolve_waits(wrd(ks)): a(x)
        for t in range(7):
            if fin and t == 6: a('s_waitcnt lgkmcnt(0)')
            a(S(t, ks))
    for t in range(7):
        for x in fold(t): a(x)
    a(f's_branch {L("t2d")}')
    if fin:
        a.label(L('rp'))
        a('s_cmp_lg_u32 s37, 0')
        a(f's_cbranch_scc1 {L("cont")}')
        a.label(L('rv'))
        a('s_add_u32 s31, s31, 0x10000')
        for c in range(10): pld(c)
        a('s_waitcnt vmcnt(0)')
        poison_max(a, PL, [pr(c) + r for c in range(10) for r in range(4)])
        a(f'v_cmp_eq_u32 vcc, -1, v{PL}')
        a('s_mov_b32 s37, 1')
        for r in range(LO, LO + 4): a(f'v_mov_b32 v{r}, 0')
        a.flush()
        a(f's_cbranch_vccz {L("lp")}')
        spin(a, L('rv'), ABORT)
    if w == 3:
        a.label(L('vor'))
        a('s_sleep 2')
        a(f'buffer_load_dword v101, off, {SRD}, s27 sc1')
        spin(a, L('vow'), ABORT)

def init_value(a, w):
    fin = w < 2
    YA = 152 if fin else 104
    a(f's_mul_i32 s31, s17, {CUW_B}')
    a(f's_add_u32 s31, s31, {WF_B + 7*w*TILE_B}')
    if FUSE:
        r_wait(a, f'ch_wr{4+w}', D_R1)
        b_wait(a, f'ch_ww{4+w}', w)
        evlog(a, 9002)
    units = [(ti * TILE_B + ks * UNIT, vwreg(w, ti, ks)) for ti in range(6 if fin else 7) for ks in range(7)]
    load_units(a, units, 's31', fl=WFL())
    if fin:
        for f in range(14):
            if f % 4 == 0:
                a(f's_mov_b32 m0, {WL + w*TILE_B + f*1024}')
                a(f's_add_u32 s22, s31, {6*TILE_B + f*1024}')
            a(f'buffer_load_dwordx4 v2, {SRD}, s22 offen offset:{(f & 3)*1024} {WFL()} lds')
    if FUSE and HELP:
        a_wait(a, f'ch_wh{4+w}', [4 + (w >> 1), 6])
        evlog(a, 9012)
        touch_tiles(a, WF_A, [kap * 4 + q for kap, q in score_tiles(w)[4:]])
        a('s_waitcnt vmcnt(0)')
    a('v_mov_b32 v72, v116')
    a('v_mov_b32 v73, v117')
    a('v_lshrrev_b32 v65, 1, v72')
    a('v_and_b32 v66, 1, v72')
    for r in range(36, 64): a(f'v_mov_b32 v{r}, 0')
    a('v_lshlrev_b32 v75, 2, v65')
    a('v_lshl_add_u32 v75, v66, 3, v75')
    for t in range(7):
        a(f'v_add_u32 v67, {16 * (7*w + t)}, v73')
        a('v_mul_u32_u24 v68, 2341, v67')
        a('v_lshrrev_b32 v68, 16, v68')
        a('v_mul_u32_u24 v69, 28, v68')
        a('v_sub_u32 v69, v67, v69')
        a('v_lshrrev_b32 v70, 4, v69')
        a('v_and_b32 v69, 15, v69')
        a('v_lshlrev_b32 v71, 12, v70')
        a('v_lshl_add_u32 v71, v68, 8, v71')
        a('v_lshl_add_u32 v71, v69, 4, v71')
        a(f'v_add_u32 v{YA+t}, v71, v75')
    a('v_mov_b32 v74, 0x40000000')
    if fin:
        a('v_mov_b32 v76, 0\nv_mov_b32 v77, 0\nv_mov_b32 v78, 0\nv_mov_b32 v79, 0')
        for k in range(4): a(f'ds_write_b128 v2, v[76:79] offset:{YL + w*4096 + k*1024}')
        a(f's_and_b32 s22, s17, {R1-1}')
        a('s_lshl_b32 s22, s22, 7')
        a(f's_add_u32 s22, s22, {FLG1}')
        a('v_lshl_add_u32 v4, v73, 2, s22')
        a('v_and_b32 v64, 1, v73')
        a('v_mov_b32 v5, 0x05040100')
        a('v_mov_b32 v65, 0x03020706')
        a('v_cmp_eq_u32 vcc, 1, v64')
        a('v_cndmask_b32 v5, v5, v65, vcc')
        a('s_lshl_b32 s22, s17, 2')
        a(f's_add_u32 s22, s22, {FLG2 + 16*128}')
        a('v_lshl_add_u32 v7, v1, 7, s22')
        a(f'v_cmp_gt_u32 vcc, {R2}, v1')
        a('v_cndmask_b32 v7, v74, v7, vcc')
        if w == 0: a('v_mov_b32 v6, v2')
        else:
            a('v_min_u32 v65, 11, v73')
            a('v_mad_u32_u24 v65, v72, 12, v65')
            a('v_lshlrev_b32 v6, 4, v65')
            a('v_add_u32 v6, 1024, v6')
        a('v_lshl_add_u32 v64, v66, 2, v64')
        a('v_and_b32 v65, 2, v72')
        a('v_add_u32 v64, v64, v65')
        a(f's_mul_i32 s22, s17, {12 if w else 16}')
        if w: a('s_add_u32 s22, s22, 256')
        a('v_add_u32 v75, s22, v73')
        a('v_lshrrev_b32 v68, 4, v75')
        a('v_lshlrev_b32 v68, 8, v68')
        a('v_bfe_u32 v69, v75, 1, 1')
        a('v_lshl_add_u32 v68, v69, 7, v68')
        a('v_lshl_add_u32 v68, v64, 4, v68')
        a('v_and_b32 v69, 12, v75')
        a('v_add_u32 v1, v68, v69')
        if w == 1:
            a('v_cmp_gt_u32 vcc, 12, v73')
            a('v_cndmask_b32 v1, v74, v1, vcc')
        a(f's_mul_i32 s22, s17, {64*GSH_B}')
        a(f's_add_u32 s25, s22, {VO_OFF}')
        a('v_mov_b32 v162, -1')
        a('s_mov_b32 s38, 0x40000000')
        a(f'v_add_u32 v0, {WL + w*TILE_B}, v2')
    else:
        a('v_and_b32 v119, 15, v1')
        a(f's_and_b32 s22, s17, {R2-1}')
        a('s_lshl_b32 s22, s22, 7')
        a(f's_add_u32 s22, s22, {FLG2 + 16*128}')
        a('v_lshl_add_u32 v119, v119, 2, s22')
        a('s_lshl_b32 s22, s17, 2')
        a(f's_add_u32 s22, s22, {FLG2}')
        a('v_lshl_add_u32 v118, v1, 7, s22')
        a(f'v_cmp_gt_u32 vcc, {R2}, v1')
        a('v_cndmask_b32 v118, v74, v118, vcc')
        a('s_lshl_b32 s35, s17, 7')
        a(f's_add_u32 s35, s35, {CNT_OFF + VOC}')
        a('v_min_u32 v116, 13, v1')
        a('s_mul_i32 s22, s17, 14')
        a('v_add_u32 v116, s22, v116')
        a('v_lshlrev_b32 v116, 7, v116')
        a(f's_mov_b32 s39, {XF_OFF + XSEG_B}')
        if w == 3:
            vo_wait0(a, 'ch_vw7')
            a(f'buffer_load_dword v100, v116, {SRD}, s39 offen sc1')
        a(f's_mov_b32 s39, {XF_OFF + 2*XSEG_B}')

MERGE = 0
RB1_DELAY = 0
def wg_atomic(a, P, dst):
    a('v_mov_b32 v6, 160000')
    a('s_barrier')
    a('s_cmp_lg_u32 s16, 0')
    a(f's_cbranch_scc1 {P}1')
    a('s_mov_b64 exec, 1')
    a(f'buffer_atomic_add v4, v5, {DBG}, 0 offen sc0')
    a('s_waitcnt vmcnt(0)')
    a('ds_write_b32 v6, v4')
    a('s_waitcnt lgkmcnt(0)')
    a('s_mov_b64 exec, -1')
    a.label(f'{P}1')
    a('s_barrier')
    a('ds_read_b32 v4, v6')
    a('s_waitcnt lgkmcnt(0)')
    a(f'v_readfirstlane_b32 {dst}, v4')

def staff_check(a, okl, mode):
    a('s_mov_b32 s30, 0')
    a('v_mov_b32 v36, 0')
    a.label('ch_chk')
    a(f'buffer_load_dword v37, v36, {DBG}, 0 offen sc1')
    a('s_waitcnt vmcnt(0)')
    a('v_readfirstlane_b32 s22, v37')
    a('s_and_b32 s22, s22, 0xffff')
    a('s_cmp_ge_u32 s22, 32')
    a('s_cbranch_scc1 ch_go_end')
    a('s_sleep 16')
    a('s_add_u32 s30, s30, 1')
    a('s_cmp_lt_u32 s30, 64')
    a('s_cbranch_scc1 ch_chk')
    a.label('ch_go_end')
    a('v_mov_b32 v6, 160016')
    a('v_mov_b32 v4, s22')
    a('s_cmp_lg_u32 s16, 0')
    a('s_cbranch_scc1 ch_dec')
    a('ds_write_b32 v6, v4')
    a('s_waitcnt lgkmcnt(0)')
    a.label('ch_dec')
    a('s_barrier')
    a('ds_read_b32 v4, v6')
    a('s_waitcnt lgkmcnt(0)')
    a('v_readfirstlane_b32 s22, v4')
    a('s_cmp_ge_u32 s22, 32')
    a(f's_cbranch_scc1 {okl}')
    a('v_mov_b32 v4, 0x10001')
    a(f's_mov_b32 s18, {mode}')
    a('s_branch ch_take')

D_CLAIM = 4; D_CNT = 12; D_REP = 20; D_R1 = 128; D_R2 = 132; NINIT = 4
FUSE = 1
REP_WAIT = 60
def wg_signal(a, off, inc=1):
    lb = a.newlabel('sig')
    a('s_barrier')
    a('s_cmp_lg_u32 s16, 0')
    a(f's_cbranch_scc1 {lb}')
    a(f'v_mov_b32 v60, {inc}')
    a(f'v_mov_b32 v61, {off}')
    a('s_mov_b64 exec, 1')
    a(f'buffer_atomic_add v60, v61, {DBG}, 0 offen')
    a('s_mov_b64 exec, -1')
    a.label(lb)

def poll(a, P, loads, cond, sleep=2, lim=SPIN_LIMIT, fail='cA_abort'):
    a('s_mov_b32 s30, 0')
    a.label(P)
    for x in loads: a(x)
    a('s_waitcnt vmcnt(0)')
    for x in cond: a(x)
    a(f's_cbranch_vccz {P}_ok')
    a(f's_sleep {sleep}')
    a('s_add_u32 s30, s30, 1')
    a(f's_cmp_lt_u32 s30, {lim}')
    a(f's_cbranch_scc1 {P}')
    a(f's_branch {fail}')
    a.label(P + '_ok')

def uniform(a, sreg, lds=160032):
    lb = a.newlabel('uni')
    a(f'v_mov_b32 v6, {lds}')
    a(f'v_mov_b32 v7, {sreg}')
    a('s_barrier')
    a('s_cmp_lg_u32 s16, 0')
    a(f's_cbranch_scc1 {lb}')
    a('ds_write_b32 v6, v7')
    a('s_waitcnt lgkmcnt(0)')
    a.label(lb)
    a('s_barrier')
    a('ds_read_b32 v7, v6')
    a('s_waitcnt lgkmcnt(0)')
    a(f'v_readfirstlane_b32 {sreg}, v7')

def lanes(a):
    a('v_and_b32 v1, 63, v0')
    a('v_lshlrev_b32 v2, 4, v1')
    a('v_lshrrev_b32 v3, 4, v1')
    a('v_and_b32 v4, 15, v1')

def mem0_load(a):
    from prep import srd
    srd(a, 68, 50, 51, 8 * 448 * 2)
    a('v_lshrrev_b32 v6, 3, v0')
    a('v_min_u32 v6, 27, v6')
    a('v_and_b32 v7, 7, v0')
    a('v_mul_u32_u24 v9, 896, v7')
    a('v_lshl_add_u32 v9, v6, 5, v9')
    a('buffer_load_dwordx4 v[176:179], v9, s[68:71], 0 offen')
    a('buffer_load_dwordx4 v[180:183], v9, s[68:71], 0 offen offset:16')

def init_job(a, P, k_s):
    a('v_mov_b32 v10, 0x40000000')
    a('v_mov_b32 v5, 1')
    for r in range(148, 152): a(f'v_mov_b32 v{r}, 0')
    for r in range(152, 156): a(f'v_mov_b32 v{r}, -1')
    a('v_lshlrev_b32 v8, 4, v0')
    a(f's_cmp_lg_u32 {k_s}, 0')
    a(f's_cbranch_scc1 {P}_1')
    a(f's_mov_b32 s23, {PFL}')
    a(f'buffer_store_dwordx4 v[148:151], v8, {SRD}, s23 offen sc1')
    a(f's_mov_b32 s23, {PFL + 4096}')
    a(f'buffer_store_dwordx4 v[148:151], v8, {SRD}, s23 offen sc1')
    a('s_waitcnt vmcnt(0)')
    a('s_barrier')
    a(f'buffer_store_dword v5, v252, {DBG}, 0 offen offset:{D_R1} sc1')
    a.label(f'{P}_1')
    mem0_load(a)
    a(f's_lshl_b32 s20, {k_s}, 12')
    a('v_add_u32 v8, s20, v8')
    for base, n, r in ((CNT_OFF, AC, 148), (EXCH_OFF + 2 * EXCH_B, 48 * 128, 148), (EXCH_OFF + 7 * KB, 2 * EXCH_B - 7 * KB, 152), (MEMG_OFF + 7 * KB, 63 * 7 * KB, 152)):
        full, rem = divmod(n, 16384)
        a(f's_mov_b32 s23, {base}')
        if full:
            lb = a.newlabel(P + 'lp')
            a.label(lb)
            a(f'buffer_store_dwordx4 v[{r}:{r+3}], v8, {SRD}, s23 offen sc1')
            a('s_add_u32 s23, s23, 16384')
            a(f's_cmp_lt_u32 s23, {base + full * 16384}')
            a(f's_cbranch_scc1 {lb}')
        if rem:
            a(f'v_cmp_gt_u32 vcc, {rem}, v8')
            a('v_cndmask_b32 v9, v10, v8, vcc')
            a(f'buffer_store_dwordx4 v[{r}:{r+3}], v9, {SRD}, s23 offen sc1')
    a(f's_cmp_lg_u32 {k_s}, 1')
    a(f's_cbranch_scc1 {P}_nm')
    a('v_lshrrev_b32 v6, 3, v0')
    a('v_and_b32 v7, 7, v0')
    a('v_lshlrev_b32 v8, 8, v6')
    a('v_lshl_add_u32 v8, v7, 4, v8')
    a('v_cmp_gt_u32 vcc, 28, v6')
    a('v_cndmask_b32 v8, v10, v8, vcc')
    a('s_waitcnt vmcnt(8)')
    for j in range(4):
        a(f'v_mov_b32 v{184+j}, v{176+2*j}')
        a(f'v_mov_b32 v{188+j}, v{177+2*j}')
    for base in (EXCH_OFF, MEMG_OFF):
        a(f's_mov_b32 s23, {base}')
        a(f'buffer_store_dwordx4 v[184:187], v8, {SRD}, s23 offen sc1')
        a(f'buffer_store_dwordx4 v[188:191], v8, {SRD}, s23 offen offset:128 sc1')
    a.label(f'{P}_nm')
    a('s_waitcnt vmcnt(0)')
    a('s_barrier')
    a('s_cmp_lg_u32 s16, 0')
    a(f's_cbranch_scc1 {P}_e')
    a('v_mov_b32 v6, 1')
    a('s_mov_b64 exec, 1')
    a(f'buffer_atomic_add v6, v252, {DBG}, 0 offen offset:{D_CNT} sc0')
    a('s_waitcnt vmcnt(0)')
    a('v_readfirstlane_b32 s20, v6')
    a(f's_cmp_lg_u32 s20, {NINIT-1}')
    a(f's_cbranch_scc1 {P}_e0')
    a(f'buffer_store_dword v5, v252, {DBG}, 0 offen offset:{D_R2} sc1')
    a.label(f'{P}_e0')
    a('s_mov_b64 exec, -1')
    a.label(f'{P}_e')

FLAG_AT = 4
TA_LATE = 0
def worker_prep(a):
    import prep2
    ldi = [f'buffer_load_dwordx2 v[254:255], v252, {DBG}, 0 offen offset:{D_R1} sc1']
    def flag(P, mat):
        a('s_barrier')
        a('s_cmp_lg_u32 s16, 0')
        a(f's_cbranch_scc1 {P}_f')
        a('v_readfirstlane_b32 s20, v254')
        a('s_cmp_eq_u32 s20, 1')
        a(f's_cbranch_scc1 {P}_w_ok')
        poll(a, P + '_w', [f'buffer_load_dword v254, off, {DBG}, 0 offset:{D_R1} sc1'], ['v_cmp_ne_u32 vcc, 1, v254'], sleep=8, lim=16, fail=P + '_f')
        a('s_lshl_b32 s20, s17, 7')
        a(f's_add_u32 s20, s20, {PFL + (2048 if mat == "A" else 0)}')
        a('s_lshl_b32 s21, 1, s19')
        a('v_mov_b32 v248, s21')
        a('s_mov_b64 exec, 1')
        a(f'buffer_atomic_or v248, v252, {SRD}, s20 offen sc0')
        a('s_mov_b64 exec, -1')
        a(f's_mov_b32 s{38 if mat == "A" else 37}, s21')
        a.label(P + '_f')
    def flag2(P, mat):
        sr = f's{38 if mat == "A" else 37}'
        a('v_readfirstlane_b32 s20, v248')
        a(f's_xor_b32 s20, s20, {sr}')
        a('s_cmp_lg_u32 s20, 0x3fff')
        a(f's_cselect_b32 s20, 0, {sr}')
        a(f's_mov_b32 {sr}, 0')
        a('s_cmp_eq_u32 s20, 0')
        a(f's_cbranch_scc1 {P}')
        a(f's_lshl_b32 s21, {0x10000 if mat == "A" else 1}, s17')
        a('v_mov_b32 v248, s21')
        a(f's_mov_b32 s20, {PFL + 4096}')
        a('s_mov_b64 exec, 1')
        a(f'buffer_atomic_or v248, v252, {SRD}, s20 offen')
        a('s_mov_b64 exec, -1')
        a.label(P)
    def role():
        a('v_readfirstlane_b32 s91, v249')
        uniform(a, 's91')
        a('s_and_b32 s91, s91, 0xffff')
        a('s_cmp_lt_u32 s91, 32')
        a('s_cbranch_scc1 ch_role2')
        a('s_branch wp_all')
    prep2.pst(a)
    a(f's_sub_u32 s35, s3, {XCD_SEL}')
    a('s_and_b32 s35, s35, 7')
    a('s_lshr_b32 s36, s2, 3')
    a('s_mul_i32 s33, s35, 28')
    a('s_add_u32 s33, s33, s36')
    a('s_mov_b32 s97, 0')
    a('s_mov_b32 s96, 0')
    a('s_mov_b32 s37, 0\ns_mov_b32 s38, 0')
    a('s_mov_b32 s39, 0xffff0000')
    lanes(a)
    prep2.consts(a)
    a('s_cmp_lt_u32 s36, 28')
    a('s_cbranch_scc1 wp_B')
    a('s_cmp_eq_u32 s35, 0')
    a('s_cbranch_scc1 wp_ini')
    a('s_lshl_b32 s33, s35, 2')
    a('s_add_u32 s33, s33, s36')
    a('s_sub_u32 s33, s33, 32')
    prep2.decode(a, 's33')
    a('s_branch wp_A0')
    a.label('wp_ini')
    a('v_mov_b32 v4, 1')
    a(f'v_mov_b32 v5, {D_CLAIM}')
    wg_atomic(a, 'wp_ic', 's33')
    lanes(a)
    a(f's_cmp_ge_u32 s33, {NINIT}')
    a('s_cbranch_scc1 wp_ini2')
    init_job(a, 'wp_ij', 's33')
    a.label('wp_ini2')
    a('s_cmp_lg_u32 s97, 0')
    a('s_cbranch_scc1 wp_all')
    a(f's_cmp_lg_u32 s3, {XCD_SEL}')
    a('s_cbranch_scc1 wp_all')
    role()
    a.label('wp_B')
    prep2.decode(a, 's33')
    prep2.touch(a, 'B', 253)
    prep2.xunit_load(a, 's33')
    prep2.issue(a, 'B')
    a('s_cmp_eq_u32 s35, 0')
    a('s_cselect_b32 s34, 1, s97')
    if not TA_LATE: prep2.touch(a, 'A', 253, skip='s34')
    prep2.compute(a, 'wpb', 'B', 0 if TA_LATE else 1, pre_epi=ldi, early=prep2.xunit_store())
    evlog(a, 9010)
    a('s_cmp_lg_u32 s34, 0')
    a('s_cbranch_scc1 wp_B2')
    if TA_LATE: prep2.touch(a, 'A', 253)
    def hook(n):
        a(f's_waitcnt vmcnt({n + TA_LATE})')
        flag('wp_f1', 'B')
        prep2.pst(a)
    prep2.issue(a, 'A', hook, FLAG_AT)
    a('s_branch wp_A')
    a.label('wp_B2')
    a('s_waitcnt vmcnt(0)')
    flag('wp_f2', 'B')
    a('s_waitcnt vmcnt(0)')
    flag2('wp_g2', 'B')
    prep2.pst(a, 4)
    prep2.pst_flush(a)
    a('s_cmp_lg_u32 s97, 0')
    a('s_cbranch_scc1 wp_rep')
    a('s_branch wp_ini2')
    a.label('wp_A0')
    prep2.issue(a, 'A')
    a.label('wp_A')
    prep2.compute(a, 'wpa', 'A', 0, pre_epi=ldi + [f'buffer_load_dword v253, v252, {DBG}, 0 offen sc1'], early=[lambda: flag2('wp_g1', 'B')])
    a('s_waitcnt vmcnt(0)')
    flag('wp_f3', 'A')
    prep2.pst(a)
    prep2.pst_flush(a)
    evlog(a, 9011)
    a('s_cmp_lg_u32 s97, 0')
    a('s_cbranch_scc1 wp_all')
    a('v_readfirstlane_b32 s20, v255')
    a('v_readfirstlane_b32 s21, v253')
    a('s_and_b32 s21, s21, 0xffe0')
    a('s_cselect_b32 s96, s20, 0')
    a('s_cmp_eq_u32 s96, 0')
    a('s_cbranch_scc1 wp_all')
    a('v_mov_b32 v250, 1')
    a(f's_mov_b32 s20, {CNT_OFF + JOBC}')
    a('s_mov_b64 exec, 1')
    a(f'buffer_atomic_add v250, v252, {SRD}, s20 offen sc0')
    a('s_mov_b64 exec, -1')
    a.label('wp_all')
    a('v_mov_b32 v252, 0x40000000')
    a('v_cmp_eq_u32 vcc, 0, v0')
    a('v_cndmask_b32 v252, v252, v0, vcc')
    a('s_mov_b32 s34, 0')
    a('s_cmp_lg_u32 s16, 0')
    a('s_cbranch_scc1 wp_w2')
    a(f's_mov_b32 s24, {PFL + 4096}')
    a(f'buffer_load_dword v66, off, {SRD}, s24 sc1')
    a('s_waitcnt vmcnt(0)')
    flag2('wp_g3', 'A')
    a('s_cmp_lg_u32 s96, 0')
    a('s_cbranch_scc1 wp_v2')
    poll(a, 'wp_v', [f'buffer_load_dwordx2 v[64:65], off, {DBG}, 0 sc1', f'buffer_load_dword v66, off, {DBG}, 0 offset:{D_R2} sc1'],
         ['v_and_b32 v68, 0xffe0, v64', 'v_min_u32 v68, v68, v66', 'v_cmp_ne_u32 vcc, 1, v68'], sleep=16, lim=REP_WAIT // 2, fail='wp_w1')
    a(f'buffer_load_dword v66, off, {SRD}, s24 sc1')
    a('s_waitcnt vmcnt(0)')
    a.label('wp_v2')
    a('v_mov_b32 v64, 32')
    a(f'v_mov_b32 v65, {NINIT}')
    a('v_or_b32 v66, s39, v66')
    a('v_cmp_ne_u32 vcc, -1, v66')
    a('s_cbranch_vccz wp_w2')
    a('s_cmp_eq_u32 s97, 2')
    a('s_cbranch_scc1 wp_w1')
    poll(a, 'wp_w', [f'buffer_load_dword v66, off, {SRD}, s24 sc1'], ['v_or_b32 v66, s39, v66', 'v_cmp_ne_u32 vcc, -1, v66'], sleep=8, lim=REP_WAIT, fail='wp_w1')
    a('s_branch wp_w2')
    a.label('wp_w1')
    a('v_readfirstlane_b32 s20, v64')
    a('v_readfirstlane_b32 s21, v65')
    a('s_and_b32 s20, s20, 0xffff')
    a('s_cmp_lt_u32 s20, 32')
    a('s_cselect_b32 s34, 2, 1')
    a(f's_cmp_lt_u32 s21, {NINIT}')
    a('s_cselect_b32 s34, 4, s34')
    a('s_add_u32 s32, s32, 1')
    a('s_cmp_lt_u32 s32, 4000')
    a('s_cselect_b32 s34, s34, 3')
    a.label('wp_w2')
    uniform(a, 's34')
    a('s_cmp_eq_u32 s34, 0')
    a('s_cbranch_scc1 wp_done')
    a('s_mov_b32 s97, 1')
    a('s_cmp_eq_u32 s34, 1')
    a('s_cbranch_scc1 wp_rep')
    a('s_cmp_eq_u32 s34, 3')
    a('s_cbranch_scc1 cA_abort')
    a('s_cmp_eq_u32 s34, 4')
    a('s_cbranch_scc1 wp_ini')
    a('v_mov_b32 v4, 0x10001')
    a('s_branch ch_take')
    a.label('wp_rep')
    a('s_load_dwordx8 s[40:47], s[0:1], 72')
    a('s_load_dwordx4 s[48:51], s[0:1], 56')
    a('s_waitcnt vmcnt(0) lgkmcnt(0)')
    a('v_mov_b32 v4, 1')
    a(f'v_mov_b32 v5, {D_REP}')
    wg_atomic(a, 'wp_el', 's33')
    lanes(a)
    prep2.consts(a)
    a('s_and_b32 s33, s33, 511')
    a('s_and_b32 s20, s33, 255')
    a('s_cmp_ge_u32 s20, 224')
    a('s_cselect_b32 s97, 1, 2')
    a('s_cbranch_scc1 wp_all')
    prep2.decode(a, 's20')
    a('s_lshl_b32 s20, s17, 7')
    a('s_lshr_b32 s21, s33, 8')
    a('s_lshl_b32 s21, s21, 11')
    a('s_add_u32 s20, s20, s21')
    a(f's_add_u32 s20, s20, {PFL}')
    a(f'buffer_load_dword v5, off, {SRD}, s20 sc1')
    a('s_waitcnt vmcnt(0)')
    a('v_readfirstlane_b32 s34, v5')
    uniform(a, 's34')
    a('s_bitcmp1_b32 s34, s19')
    a('s_cbranch_scc1 wp_rep')
    a('s_barrier')
    a('s_cmp_lt_u32 s33, 256')
    a('s_cbranch_scc1 wp_B')
    a('s_branch wp_A0')
    a.label('wp_done')

JOBS = None
def worker_all(a):
    import s4d, gemm, tok, t2srv
    JS = SRD
    JO = CNT_OFF + JOBC
    LD = 'sc1' if FUSE else ''
    N0 = 224 if FUSE else 0
    NJ = 1248
    tok.PEEK = JS
    if FUSE: worker_prep(a)
    a('s_load_dwordx2 s[36:37], s[0:1], 112')
    a('s_waitcnt lgkmcnt(0)')
    a(f's_mov_b32 s92, s36\ns_and_b32 s93, s37, 0xffff\ns_mov_b32 s94, {2048*896*2}\ns_mov_b32 s95, 0x20000')
    def ask():
        lb = a.newlabel('ask')
        a('s_cmp_lg_u32 s16, 0')
        a(f's_cbranch_scc1 {lb}')
        a('v_mov_b32 v250, 1')
        a(f'v_mov_b32 v251, {JO}')
        a('s_mov_b64 exec, 1')
        a(f'buffer_atomic_add v250, v251, {JS}, 0 offen sc0')
        a('s_mov_b64 exec, -1')
        a.label(lb)
    if FUSE:
        a('s_mov_b32 s97, s39')
        a('s_cmp_lg_u32 s96, 0')
        a('s_cbranch_scc1 wk_next')
    else: a('s_mov_b32 s96, 0')
    ask()
    a('s_branch wk_next')
    a.label('wk_loop')
    a('s_waitcnt vmcnt(0) lgkmcnt(0)')
    if not FUSE:
        a('s_cmp_eq_u32 s96, 1')
        a('s_cbranch_scc1 wk_ask')
        a('s_mov_b32 s96, 1')
        staff_check(a, 'wk_ask', 0)
    a.label('wk_ask')
    a('v_readfirstlane_b32 s22, v250')
    a(f's_cmp_ge_u32 s22, {NJ}')
    a('s_cbranch_scc1 wk_next')
    ask()
    a.label('wk_next')
    evlog(a, 9005)
    a('v_mov_b32 v6, 160000')
    a('s_waitcnt vmcnt(0)')
    a('s_barrier')
    a('s_cmp_lg_u32 s16, 0')
    a('s_cbranch_scc1 wk_n1')
    a('s_mov_b64 exec, 1')
    a('ds_write_b32 v6, v250')
    a('s_mov_b64 exec, -1')
    a('s_waitcnt lgkmcnt(0)')
    a.label('wk_n1')
    a('s_barrier')
    a('ds_read_b32 v4, v6')
    a('s_waitcnt lgkmcnt(0)')
    a('v_readfirstlane_b32 s3, v4')
    evlog(a, 's3')
    a(f's_cmp_ge_u32 s3, {NJ}')
    a('s_cbranch_scc1 wk_done')
    a('v_mov_b32 v250, 0')
    a(f'v_mov_b32 v251, {JO}')
    lanes(a)
    if FUSE:
        a('s_cmp_ge_u32 s3, 224')
        a('s_cbranch_scc1 wk_n0')
        a('s_mov_b32 s18, 0')
        a('s_and_b32 s17, s3, 15')
        a('s_add_u32 s17, s17, 16')
        a('s_lshr_b32 s34, s3, 4')
        a('s_add_u32 s35, s34, 1')
        a('s_branch wk_gemm')
        a.label('wk_n0')
        a('s_cmp_eq_u32 s97, 0')
        a('s_cbranch_scc1 wk_n2')
        evlog(a, 9021)
        a('v_mov_b32 v250, s3')
        for x in ('s96, 1', 's97, 1', 's39, 0', 's37, 0', 's38, 0', 's32, 0'): a('s_mov_b32 ' + x)
        a('s_branch wp_all')
        a.label('wk_n2')
    a('s_cmp_ge_u32 s3, 736')
    a('s_cbranch_scc1 wk_tok')
    a('s_cmp_ge_u32 s3, 624')
    a('s_cbranch_scc1 wk_s4d')
    a('s_cmp_ge_u32 s3, 432')
    a('s_cbranch_scc1 wk_full')
    a('s_cmp_ge_u32 s3, 400')
    a('s_cbranch_scc1 wk_srv')
    a('s_and_b32 s17, s3, 15')
    a('s_add_u32 s17, s17, 16')
    a('s_cmp_ge_u32 s3, 336')
    a('s_cbranch_scc1 wk_half')
    a('s_mov_b32 s18, 1')
    a('s_sub_u32 s34, s3, 224')
    a('s_lshr_b32 s34, s34, 4')
    a('s_lshl_b32 s34, s34, 1')
    a('s_add_u32 s35, s34, 2')
    a('s_branch wk_gemm')
    a.label('wk_half')
    a('s_sub_u32 s20, s3, 336')
    a('s_lshr_b32 s18, s20, 5')
    a('s_add_u32 s18, s18, 2')
    a('s_bitcmp1_b32 s20, 4')
    a('s_cselect_b32 s34, 7, 0')
    a('s_add_u32 s35, s34, 7')
    a('s_branch wk_gemm')
    a.label('wk_full')
    a('s_sub_u32 s20, s3, 368')
    a('s_and_b32 s17, s20, 15')
    a('s_lshr_b32 s18, s20, 4')
    a('s_cmp_lt_u32 s18, 8')
    a('s_cselect_b32 s21, 16, 0')
    a('s_add_u32 s17, s17, s21')
    a('s_and_b32 s18, s18, 7')
    a('s_mov_b32 s34, 0')
    a('s_mov_b32 s35, 14')
    a.label('wk_gemm')
    gemm.gemm_body(a, 'wg', 's18', 's17', st='sc1', signal=True, ld=LD)
    a('s_branch wk_loop')
    a.label('wk_srv')
    a('s_and_b32 s18, s3, 15')
    a('s_lshr_b32 s19, s3, 4')
    a('s_and_b32 s19, s19, 1')
    t2srv.t2srv_body(a, 'ws', 's18', 's19', 'cA_abort', ld=LD)
    a('v_mov_b32 v250, 0')
    a('s_branch wk_loop')
    a.label('wk_s4d')
    a('s_sub_u32 s3, s3, 624')
    s4d.s4d_setup(a)
    s4d.s4d_item(a, 'wk', 's3')
    a('s_branch wk_loop')
    a.label('wk_tok')
    a('s_sub_u32 s3, s3, 736')
    a('s_cmp_ge_u32 s3, 512')
    a('s_cbranch_scc1 wk_done')
    a('s_lshr_b32 s17, s3, 3')
    a('s_and_b32 s18, s3, 3')
    a('s_bitcmp1_b32 s3, 2')
    a('s_cbranch_scc1 wk_toko')
    tok.tokp_body(a, 's17', 's18', ld='sc1', st='sc1', sync='wp', ldx=LD)
    a('s_branch wk_loop')
    a.label('wk_toko')
    tok.toko_body(a, 's17', 's18', ld='sc1', sync='wo', OUT='s[92:95]')
    a('s_branch wk_loop')
    a.label('wp_abort')
    a.label('wo_abort')
    a('s_branch cA_abort')
    a.label('wk_done')
    evlog(a, 9020)

def gen_chain_kernel(name='main_kernel', worker=None):
    a = Asm()
    a.raw(kernel_header(name))
    a('s_cmp_ge_u32 s2, 256')
    a('s_cbranch_scc1 ch_end')
    a('s_load_dwordx2 s[4:5], s[0:1], 120')
    a('s_load_dwordx2 s[6:7], s[0:1], 128')
    a('s_load_dwordx8 s[40:47], s[0:1], 72')
    a('s_load_dwordx4 s[48:51], s[0:1], 56')
    if CODE_PF: code_prefetch(a, name, 'ch_end', 130000, 60)
    a('s_mov_b32 s32, 0')
    a('s_getreg_b32 s3, hwreg(HW_REG_XCC_ID)')
    a('s_and_b32 s3, s3, 15')
    a('v_lshrrev_b32 v1, 6, v0')
    a('v_readfirstlane_b32 s16, v1')
    a('s_waitcnt lgkmcnt(0)')
    a('s_mov_b32 s8, s6\ns_and_b32 s9, s7, 0xffff\ns_mov_b32 s10, 0x10000000\ns_mov_b32 s11, 0x20000')
    a('s_mov_b32 s12, s4\ns_and_b32 s13, s5, 0xffff\ns_mov_b32 s14, 256\ns_mov_b32 s15, 0x20000')
    if EVLOG:
        a('s_lshl_b32 s100, s2, 2')
        a('s_add_u32 s100, s100, s16')
        a('s_lshl_b32 s100, s100, 8')
        a(f's_add_u32 s100, s100, {EV_OFF}')
    evlog(a, 9000)
    if FUSE:
        a('v_mov_b32 v252, 0x40000000')
        a('v_cmp_eq_u32 vcc, 0, v0')
        a('v_cndmask_b32 v252, v252, v0, vcc')
        a(f's_cmp_lg_u32 s3, {XCD_SEL}')
        a('s_cbranch_scc1 ch_worker')
        a('s_cmp_lg_u32 s16, 0')
        a('s_cbranch_scc1 ch_worker')
        a('v_mov_b32 v249, 1')
        a('s_mov_b64 exec, 1')
        a(f'buffer_atomic_add v249, v252, {DBG}, 0 offen sc0')
        a('s_mov_b64 exec, -1')
        a('s_branch ch_worker')
    a(f's_cmp_lg_u32 s3, {XCD_SEL}')
    a('s_cbranch_scc1 ch_worker')
    a('v_mov_b32 v4, 1')
    a('s_mov_b32 s18, 0')
    a.label('ch_take')
    a('v_mov_b32 v5, 0')
    wg_atomic(a, 'ch_el', 's17')
    a('s_and_b32 s17, s17, 0xffff')
    a('s_cmp_lt_u32 s17, 32')
    a('s_cbranch_scc1 ch_role')
    if FUSE:
        lanes(a)
        a('s_branch wp_all')
    a('s_cmp_eq_u32 s18, 0')
    a('s_cbranch_scc1 ch_worker')
    a('s_branch ch_end')
    a.label('ch_role')
    if FUSE:
        a('s_mov_b32 s91, s17')
        a.label('ch_role2')
        a('s_mov_b32 s17, s91')
        evlog(a, 9001)
    lane_consts(a)
    a('s_mov_b32 s19, 0')
    a('s_mov_b32 s18, 1')
    a(f's_mov_b32 s20, {EXCH_OFF}')
    a(f's_mov_b32 s21, {EXCH_OFF + EXCH_B}')
    a(f's_mov_b32 s23, {EXCH_OFF + 4096}')
    a('s_lshr_b32 s89, s17, 4')
    a('s_lshl_b32 s89, s89, 2')
    a('s_add_u32 s89, s89, s16')
    a('s_and_b32 s17, s17, 15')
    for p in range(8):
        a(f's_cmp_eq_u32 s89, {p}')
        a(f's_cbranch_scc1 ch_init{p}')
    a('s_branch ch_end')
    for p in range(8):
        a.label(f'ch_init{p}')
        if p < 4: init_score(a, p)
        else: init_value(a, p - 4)
        if p == 6 or (p == 3 and SC_TOUCH): vo_wait0(a, f'ch_vw{p}')
        a('s_mov_b32 s30, 0')
        a('v_mov_b32 v8, 0')
        a.label(f'ch_md{p}')
        a(f'buffer_load_dword v9, v8, {DBG}, 0 offen sc1')
        a('s_waitcnt vmcnt(0) lgkmcnt(0)')
        a('v_readfirstlane_b32 s22, v9')
        a('s_and_b32 s31, s22, 0xffff')
        a('s_cmp_ge_u32 s31, 32')
        a(f's_cbranch_scc1 ch_go{p}')
        a('s_sleep 2')
        a('s_add_u32 s30, s30, 1')
        a(f's_cmp_lt_u32 s30, {SPIN_LIMIT*8}')
        a(f's_cbranch_scc1 ch_md{p}')
        a('s_branch ch_end')
        a.label(f'ch_go{p}')
        evlog(a, 9003)
        if EVLOG or HDBG: a('v_mov_b32 v36, 0\nv_mov_b32 v37, 0')
        if DIAG: a('s_memtime s[90:91]')
        a('s_mov_b32 s31, 0')
        a('s_lshr_b32 s22, s22, 16')
        a('s_cmp_lg_u32 s22, 0')
        role = 'sc' if p < 4 else 'va'
        a(f's_cbranch_scc1 cB_{role}{p & 3}_loop')
        a(f's_branch cA_{role}{p & 3}_loop')
    for tag, st in (('cA', ''), ('cB', 'sc1')):
        for w in range(4): gen_score(a, w, st, tag)
        for w in range(4): gen_value(a, w, st, tag)
        a.label(f'{tag}_abort')
        a('v_mov_b32 v4, 0xdead')
        a('v_mov_b32 v5, 16')
        a(f'buffer_store_dword v4, v5, {DBG}, 0 offen')
        a('s_branch ch_end')
        a.label(f'{tag}_done')
        evlog(a, 9004)
        if DIAG:
            a('s_memtime s[60:61]')
            a('s_waitcnt lgkmcnt(0)')
            a('s_sub_u32 s60, s60, s90')
            a('v_mov_b32 v4, s60')
            a('s_cmp_eq_u32 s89, 3')
            a('s_cselect_b32 s22, 8, 0x1000')
            a('v_mov_b32 v5, s22')
            a(f'buffer_store_dword v4, v5, {DBG}, 0 offen')
            a('s_mov_b64 exec, 1')
            for k in range(4):
                a(f's_bfe_u32 s22, s31, {(8 << 16) | (8 * k)}')
                a(f'v_mov_b32 v{4+k}, s22')
                a(f'v_mov_b32 v10, {32 + 4*k}')
                a(f'buffer_atomic_add v{4+k}, v10, {DBG}, 0 offen')
                a.nop(2)
            a('s_mov_b64 exec, -1')
        stamp_calib(a, f'{tag}_cal')
        a('s_branch ch_end')
    a.label('ch_worker')
    worker_all(a)
    a.label('ch_end')
    a('s_endpgm')
    return a
```

```python
from asmlib import *
from layout import *

SRD = 's[8:11]'; DBG = 's[12:15]'
SPIN_LIMIT = 400000
NSTEPS = 64
STAMPS = 0
STAMP_STEP = 42
STEPLOG = 0
STAMP_OFF = 100 * 1024 * 1024
NST = 10
POLL_DEPTH = 4
F1_DELAY = 36
F2_POS = 3
FILL_A = 2
FILL_B = 0
DIAG = 0
CODE_PF = 1
SYNC = 1
XCD_SEL = 0
HLP_EARLY = 1
P_MOV = 2
D = 'row_mask:0xf bank_mask:0xf'
XSEG_B = 28 * KB
FLG1 = EXCH_OFF + 2 * EXCH_B
FLG2 = FLG1 + 16 * 128
RING_B = 2 * EXCH_B + 48 * 128
SC_SLEEP = 6
X_EARLY = 0
R1 = 1
R2 = 1
VO_PRE = 5
VO_EVERY = 1
B1_POS = 4
TLB_WARM = 0
WARM = 0
PCHK = 1
NOX = 0
X_POS = 12
X_EVERY = 4
XFL = 'sc1'
TAIL = 0
SC_TOUCH = 0
TOUCH_AHEAD = 1
MG_LATE = 0
P_PRE = 10
F3_POS = 5
F2_DELAY = 4
P3_SLEEP = 3
H3_DELAY = 0
H2_DELAY = 0
X_LATE = 2

def stamp(a, k):
    if STAMPS: a(f's_memtime s[{40+2*k}:{41+2*k}]')
def stamp_flush(a, path, lbl, t):
    if not STAMPS: return
    a(f's_sub_u32 s22, s19, {STAMP_STEP}')
    a('s_cmp_gt_u32 s22, 1')
    a(f's_cbranch_scc1 {lbl}')
    a('s_waitcnt lgkmcnt(0)')
    a('s_lshl_b32 s22, s22, 14')
    a('s_lshl_b32 s63, s17, 9')
    a('s_add_u32 s22, s22, s63')
    a(f's_add_u32 s22, s22, {STAMP_OFF + path * 64}')
    a(f'v_mov_b32 v{t}, 0')
    for k in range(NST):
        a(f'v_mov_b32 v{t+1}, s{40+2*k}')
        a(f'buffer_store_dword v{t+1}, v{t}, {SRD}, s22 offen offset:{4*k}')
        a.nop(1)
    a.label(lbl)
def stamp_calib(a, P):
    if not STAMPS: return
    a('s_memrealtime s[64:65]')
    a('s_waitcnt lgkmcnt(0)')
    a('s_lshr_b32 s68, s64, 10')
    a.label(P)
    a('s_memrealtime s[64:65]')
    a('s_memtime s[66:67]')
    a('s_waitcnt lgkmcnt(0)')
    a('s_lshr_b32 s69, s64, 10')
    a('s_cmp_eq_u32 s68, s69')
    a(f's_cbranch_scc1 {P}')
    a('s_lshl_b32 s22, s17, 9')
    a('s_lshl_b32 s63, s89, 6')
    a('s_add_u32 s22, s22, s63')
    a(f's_add_u32 s22, s22, {STAMP_OFF}')
    a('v_mov_b32 v8, s64\nv_mov_b32 v9, s66\nv_mov_b32 v10, 0')
    a(f'buffer_store_dwordx2 v[8:9], v10, {SRD}, s22 offen offset:56')

EVLOG = 0
EV_OFF = 101 * 1024 * 1024
HDBG = 0
HMAP = {9000: 6, 9010: 7, 9011: 8, 9002: 9, 9003: 10, 9004: 11, 9020: 12, 9021: 13, 9022: 14}
def evlog(a, tag):
    if HDBG and tag in HMAP:
        lb = a.newlabel('hd')
        if tag in (9002, 9003, 9004):
            a('s_cmp_lg_u32 s17, 5')
            a(f's_cbranch_scc1 {lb}')
            a('s_cmp_lg_u32 s89, 3')
        else:
            a('s_cmp_lg_u32 s16, 0')
            a(f's_cbranch_scc1 {lb}')
            a(f's_cmp_lg_u32 s2, {HDBG}')
        a(f's_cbranch_scc1 {lb}')
        a('s_memrealtime s[98:99]')
        a('s_waitcnt lgkmcnt(0)')
        a('v_mov_b32 v37, s98')
        a(f'buffer_store_dword v37, off, {DBG}, 0 offset:{4*HMAP[tag]}')
        a.label(lb)
    if not EVLOG: return
    a('s_memrealtime s[98:99]')
    a('s_waitcnt lgkmcnt(0)')
    a(f'v_mov_b32 v36, {tag}')
    a('v_mov_b32 v37, s98')
    a('s_mov_b64 exec, 1')
    a(f'buffer_store_dwordx2 v[36:37], off, {SRD}, s100')
    a('s_mov_b64 exec, -1')
    a('s_add_u32 s100, s100, 8')

def spin(a, back, abort):
    a('s_add_u32 s30, s30, 1')
    a(f's_cmp_lt_u32 s30, {SPIN_LIMIT}')
    a(f's_cbranch_scc1 {back}')
    a(f's_branch {abort}')

def flagpoll(a, vaddr, tag, regs, lbl, abort, fast=0):
    Dp = POLL_DEPTH
    if fast:
        Dp = fast
        assert Dp % 2 == 0
        ld = lambda i: a(f'buffer_load_dword v{regs+i}, v{vaddr}, {SRD}, 0 offen sc1')
        a('s_mov_b64 s[72:73], -1')
        for i in range(Dp):
            ld(i)
            if i < Dp - 1: a('s_add_u32 s74, s74, 1\ns_add_u32 s74, s74, 1\ns_add_u32 s74, s74, 1')
        a.label(lbl + '_l')
        for i in range(Dp):
            p, q = (70, 72) if i % 2 == 0 else (72, 70)
            a(f's_waitcnt vmcnt({Dp-1})')
            a(f'v_cmp_gt_u32 s[{p}:{p+1}], {tag}, v{regs+i}')
            ld(i)
            a(f's_cmp_eq_u64 s[{q}:{q+1}], 0')
            a(f's_cbranch_scc1 {lbl}_d')
        spin(a, lbl + '_l', abort)
        a.label(lbl + '_d')
        return
    for i in range(Dp):
        a(f'buffer_load_dword v{regs+i}, v{vaddr}, {SRD}, 0 offen sc1')
    a.label(lbl + '_l')
    for i in range(Dp):
        a(f's_waitcnt vmcnt({Dp-1})')
        a(f'v_cmp_gt_u32 vcc, {tag}, v{regs+i}')
        a(f's_cbranch_vccz {lbl}_d')
        a(f'buffer_load_dword v{regs+i}, v{vaddr}, {SRD}, 0 offen sc1')
    spin(a, lbl + '_l', abort)
    a.label(lbl + '_d')

def load_units(a, units, base, tmp_s='s22', fl=''):
    cur = None; n = 0
    for off, reg in units:
        for hb in range(2):
            o = off + hb * 1024
            blk = o // 4096 * 4096
            if blk != cur:
                a(f's_add_u32 {tmp_s}, {base}, {blk}'); cur = blk
            a(f'buffer_load_dwordx4 {ureg(reg + 4 * hb, 4)}, v2, {SRD}, {tmp_s} offen offset:{o - blk} {fl}')
            n += 1
            if n % 32 == 0: a('s_waitcnt vmcnt(24)')

def wreg(ti, ks):
    u = ti * 7 + ks
    return 256 + 8 * u if u < 32 else 120 + 8 * (u - 32)

def lane_consts(a):
    a('v_and_b32 v1, 63, v0')
    a('v_lshlrev_b32 v2, 4, v1')
    a('v_lshrrev_b32 v116, 4, v1')
    a('v_and_b32 v117, 15, v1')
    a('v_mov_b32 v3, 0x4444')
    a('v_mov_b32 v118, 0xeeee')
    a('v_cmp_lt_u32 vcc, 7, v117')
    a('v_cndmask_b32 v3, v3, v118, vcc')

def next_step(a):
    a('s_mov_b32 s19, s18')
    a('s_add_u32 s18, s18, 1')
    a('s_mov_b32 s22, s20')
    a('s_mov_b32 s20, s21')
    a('s_mov_b32 s21, s22')
    a('s_add_u32 s23, s20, 4096')

def gap(a, ops):
    for o in ops:
        if not o.startswith('v_'): a(o)
    for o in ops:
        if o.startswith('v_'): a(o)

def poison_max(a, acc, regs):
    regs = list(regs)
    a(f'v_max3_u32 v{acc}, v{regs[0]}, v{regs[1]}, v{regs[2]}'); regs = regs[3:]
    while len(regs) >= 2:
        a(f'v_max3_u32 v{acc}, v{acc}, v{regs[0]}, v{regs[1]}'); regs = regs[2:]
    if regs: a(f'v_max_u32 v{acc}, v{acc}, v{regs[0]}')

def poison_max16(a, acc, regs):
    regs = list(regs)
    a(f'v_pk_max_u16 v{acc}, v{regs[0]}, v{regs[1]}')
    for r in regs[2:]: a(f'v_pk_max_u16 v{acc}, v{acc}, v{r}')
    a(f'v_lshlrev_b32 v{acc+1}, 16, v{acc}')
    a(f'v_max_u32 v{acc}, v{acc}, v{acc+1}')
    a(f'v_cmp_le_u32 vcc, 0xffff0000, v{acc}')

XP = 0
MP = 4 * KB
MJ = MP + 2304
XB = 8 * KB
def score_tiles(w):
    kb = 4 + (w >> 1); pP = w & 1
    return [(w, 0), (w, 1), (w, 2), (w, 3), (kb, 2 * pP), (kb, 2 * pP + 1), (6, 2 * (1 - pP) + (w >> 1))]
def score_mreg(w):
    kb = 4 + (w >> 1)
    m = {0: 8, 1: 12, 2: 16, 3: 20, 9 - kb: 24}
    if w & 1: m[kb] = 28; m[6] = 32
    else: m[6] = 28; m[kb] = 32
    return m

def gen_score(a, w, st, tag):
    L = lambda n: f'{tag}_sc{w}_{n}'
    ABORT = f'{tag}_abort'
    MR = score_mreg(w)
    ka = w; half6 = w >> 1
    AC = [36, 40, 44, 48, 52, 56, 60 + 2 * half6]
    TMP = 66; SX = 68; BOP2 = 76; XS = [80, 88, 96, 104]
    D0, D1, BOPA = [MR[k] for k in range(4) if k != ka]
    SACC = 52; W = 56
    pb, p6 = (0, 1) if w & 1 else (1, 0)
    def S(ti, ks):
        return f'v_smfmac_f32_16x16x64_bf16 v[{AC[ti]}:{AC[ti]+3}], v[{MR[ks]}:{MR[ks]+3}], {ureg(wreg(ti, ks), 8)}, v3'
    def cvt(dst, src):
        return [f'v_cvt_pk_bf16_f32 v{dst}, v{src}, v{src+1}', f'v_cvt_pk_bf16_f32 v{dst+1}, v{src+2}, v{src+3}']
    def cin(ti, hi):
        r = AC[ti]
        return cvt(r, r) if hi else cvt(r + 2, r)[::-1]
    def T(dst, src): return f'v_mfma_f32_16x16x32_bf16 v[{dst}:{dst+3}], v[{src}:{src+3}], v[4:7], 0'
    def xld(k):
        buf, hb = k >> 1, k & 1; r = XS[buf] + 4 * hb
        return f'buffer_load_dwordx4 v[{r}:{r+3}], v{117 if buf < 2 else 2}, {SRD}, {"s26" if buf & 1 else "s24"} offen offset:{hb*1024} {XFL}'
    a.xld = xld
    def Smm(m, b, first=False):
        c = '0' if first else f'v[{SACC}:{SACC+3}]'
        return f'v_mfma_f32_16x16x32_bf16 v[{SACC}:{SACC+3}], v[{m}:{m+3}], v[{b}:{b+3}], {c}'
    def Sx(tt, b, buf):
        return f'v_smfmac_f32_16x16x64_bf16 v[{SX+4*tt}:{SX+4*tt+3}], v[{b}:{b+3}], v[{XS[buf]}:{XS[buf]+7}], v3'
    ZR = list(range(36, 52)) + list(range(AC[6], AC[6] + 4)) + list(range(SX, SX + 8)) + list(range(52, 60))
    def zero(lo=0, hi=99):
        for r in ZR[lo:hi]: a(f'v_mov_b32 v{r}, 0')
    def mls(ks): return f'buffer_load_dwordx4 v[{MR[ks]}:{MR[ks]+3}], v2, {SRD}, {"s20" if ks < 4 else "s23"} offen offset:{(ks & 3) * 1024} sc1'
    def ml(ks): a(mls(ks))
    a.raw('.p2align 6')
    a.label(L('loop'))
    a('s_mov_b32 s30, 0')
    a('s_mov_b32 s62, 0')
    a('s_setprio 3')
    if w == 0:
        if SC_SLEEP: a(f's_sleep {SC_SLEEP}')
        flagpoll(a, 0, 's19', 24 if FP2 else BOP2, L('fp'), ABORT, FP2)
        ml(0)
        a('s_barrier')
    else:
        a('s_barrier')
        ml(0)
    stamp(a, 0)
    for k in (1, 2, 3):
        a(f's_setprio {3-k}')
        ml(k)
    for k in range(WARM if w == 3 else 0): a(f'v_mfma_f32_32x32x16_bf16 v[36:51], v[{SX}:{SX+3}], v[{SX}:{SX+3}], 0')
    a.flush()
    a.label(L('go'))
    chk = lambda k: f'v_cmp_eq_u32 vcc, -1, v{MR[k]}'
    ex1 = lambda k: [chk(k)]
    ex3 = [f'v_max3_u32 v{TMP}, v24, v27, v28', f'v_max3_u32 v{TMP}, v{TMP}, v31, v32', f'v_max_u32 v{TMP}, v{TMP}, v35', f'v_cmp_eq_u32 vcc, -1, v{TMP}']
    a('s_waitcnt vmcnt(3)')
    stamp(a, 1)
    xpos = [-1] * X_LATE + [X_POS + X_EVERY * k for k in range(8 - X_LATE)]
    nx = 0
    for ks in range(4):
        for ti in range(7):
            a(S(ti, ks))
            if ks == 0:
                if ti in (0, 2, 5): ml(4 + ti // 2)
                if ti == 2: a(f's_cbranch_vccnz {L("r0")}')
            if ti == 4 and ks < 3: a(f's_waitcnt vmcnt({[4, 4, 3][ks] + nx})')
            if ks == 3 and ti == 1: a(f's_waitcnt vmcnt({nx})')
            if 7 * ks + ti in xpos and not NOX:
                assert 7 * ks + ti > 5
                a(xld(X_LATE + nx)); nx += 1
            if ks == 0 and ti == 0: a(chk(0))
            if ti == 4 and ks < 3: a(chk(ks + 1))
            if ks == 3 and 1 <= ti <= 4: a(ex3[ti - 1])
            if ti == 6:
                a(f's_cbranch_vccnz {L(f"r{ks+1}")}')
                a.label(L(f'c{ks+1}'))
    stamp(a, 2)
    seq = []
    for ti in (6, 4, 5, 0, 1, 2, 3):
        for ks in (4, 5, 6): seq.append([S(ti, ks), []])
    def side(i, ops): seq[i][1] += ops
    def spread(i, ops):
        for k, o in enumerate(ops): side(i + k, [o])
    spread(5, cin(6, half6))
    seq.insert(8, [T(D0, 62 - 2 * half6), []])
    spread(8, cin(4, 0))
    spread(10, cvt(BOP2 + 2 * p6, D0))
    spread(12, cin(5, 1))
    seq.insert(15, [T(D1, 54), []])
    spread(15, cin(0, 0))
    spread(17, cvt(BOP2 + 2 * pb, D1))
    spread(19, cin(1, 1))
    c2 = cin(2, 0); c3 = cin(3, 1)
    for k in range(X_LATE + nx, 8):
        if not NOX: side(xpos[k] - 28, [xld(k)])
    side(22, ['s_waitcnt vmcnt(4)'] + c2[:1])
    seq.append([Sx(0, BOP2, 0), c2[1:]])
    seq.append([T(D0, 38), c3])
    seq.append([T(D1, 46), []])
    seq.append([Sx(1, BOP2, 1), cvt(BOPA, D0)[:1]])
    seq.append([Smm(30, BOP2, True), ['s_waitcnt vmcnt(0)'] + cvt(BOPA, D0)[1:] + cvt(BOPA + 2, D1)])
    wm = f'ds_write_b128 v113, v[{SACC}:{SACC+3}]'
    def foldx(t):
        b = SX + 4 * t
        a(f'v_permlane32_swap_b32 v{b}, v{b+2}')
        a(f'v_permlane32_swap_b32 v{b+1}, v{b+3}')
        a(f'v_add_f32 v{W+t}, v{b}, v{b+2}')
        a(f'v_add_f32 v{W+2+t}, v{b+1}, v{b+3}')
    last3 = [Sx(0, BOPA, 2), Sx(1, BOPA, 3), Smm(MR[ka], BOPA)]
    for k in [(2, 0, 1), (0, 1, 2), (0, 2, 1), (0, 1, 2)][TAIL]: seq.append([last3[k], []])
    for m, ops in seq:
        a(m)
        gap(a, ops)
    nz = 0
    if TAIL == 0:
        a(wm); foldx(0); foldx(1)
    elif TAIL == 1:
        foldx(0); foldx(1); a(wm)
    else:
        foldx(0); a(wm); foldx(1)
    a(f'ds_write_b128 v2, v[{W}:{W+3}] offset:{XP + w*1024}')
    a(f'v_cmp_u_f32 vcc, v{W+1}, v{W+3}')
    stamp(a, 3)
    ZP = 64 - 4 * half6
    zm = lambda d, z: a(f'v_mfma_f32_32x32x16_bf16 v[{d}:{d+15}], v[{SX}:{SX+3}], v[{SX}:{SX+3}], 0')
    for r in range(SX, SX + 4): a(f'v_mov_b32 v{r}, 0')
    a(f's_cbranch_vccnz {L("retry")}')
    a.label(L('cont'))
    a(f's_add_u32 s24, s24, {XSEG_B}')
    a(f's_add_u32 s26, s26, {XSEG_B}')
    for k in range(X_LATE): a(xld(k))
    for r in range(SX + 4, SX + 4 + FILL_A): a(f'v_mov_b32 v{r}, 0')
    if ZV == 3 and w == 3: a(f'v_mfma_f32_16x16x32_bf16 v[{AC[6]}:{AC[6]+3}], v[{SX}:{SX+3}], v[{SX}:{SX+3}], 0')
    else: zm(36, ZP)
    a('s_waitcnt lgkmcnt(0)')
    a('s_barrier')
    stamp(a, 4)
    def f1(pos):
        if w == F1_W and pos == F1_POS: a(f'buffer_store_dword v112, v116, {SRD}, 0 offen {st}')
    if w < 2:
        t = 8
        for k in range(4): a(f'ds_read_b64 v[{t+2*k}:{t+2*k+1}], v114 offset:{k*1024}')
        a(f'ds_read2_b32 v[{t+8}:{t+9}], v115 offset0:0 offset1:64')
        a(f'ds_read2_b32 v[{t+10}:{t+11}], v115 offset0:128 offset1:192')
        if ZV != 2: zm(52, SX)
        a('s_waitcnt lgkmcnt(0)')
        stamp(a, 5)
        X = t; Y = t + 4; Mm = t + 8; m = t + 12; mx = t + 14; l = t + 16
        a(f'v_pk_add_f32 v[{Mm}:{Mm+1}], v[{Mm}:{Mm+1}], v[{Mm+2}:{Mm+3}]')
        a(f'v_pk_add_f32 v[{X}:{X+1}], v[{X}:{X+1}], v[{X+2}:{X+3}]')
        a(f'v_pk_add_f32 v[{Y}:{Y+1}], v[{Y}:{Y+1}], v[{Y+2}:{Y+3}]')
        a(f'v_add_f32 v{m}, v{Mm}, v{Mm+1}')
        a(f'v_pk_add_f32 v[{X}:{X+1}], v[{X}:{X+1}], v[{Y}:{Y+1}]')
        a(f'v_max_f32 v{mx}, v{X}, v{X+1}')
        a(f'v_add_f32_dpp v{m}, v{m}, v{m} row_ror:8 {D}')
        f1(0)
        a(f'v_max_f32_dpp v{mx}, v{mx}, v{mx} row_ror:8 {D}')
        a(f'v_max_f32 v{mx}, v{mx}, v{m}')
        f1(1)
        a(f'v_max_f32_dpp v{mx}, v{mx}, v{mx} quad_perm:[1,0,3,2] {D}')
        f1(2)
        a(f'v_max_f32_dpp v{mx}, v{mx}, v{mx} quad_perm:[2,3,0,1] {D}')
        f1(3)
        a(f'v_max_f32_dpp v{mx}, v{mx}, v{mx} row_half_mirror {D}')
        a(f'v_pk_add_f32 v[{X}:{X+1}], v[{X}:{X+1}], v[{mx}:{mx+1}] op_sel_hi:[1,0] neg_lo:[0,1] neg_hi:[0,1]')
        a(f'v_sub_f32 v{m}, v{m}, v{mx}')
        f1(4)
        a(f'v_exp_f32 v{X}, v{X}')
        a(f'v_exp_f32 v{X+1}, v{X+1}')
        a(f'v_exp_f32 v{m}, v{m}')
        f1(5)
        a(f'v_add_f32 v{l}, v{X}, v{X+1}')
        a(f'v_fmac_f32 v{l}, 0.5, v{m}')
        a(f'v_mov_b32_dpp v{m+1}, v{m} quad_perm:[1,0,3,2] {D}')
        a(f'v_add_f32_dpp v{l}, v{l}, v{l} quad_perm:[1,0,3,2] {D}')
        f1(6)
        a(f'v_add_f32_dpp v{l}, v{l}, v{l} quad_perm:[2,3,0,1] {D}')
        a(f'v_add_f32_dpp v{l}, v{l}, v{l} row_half_mirror {D}')
        a(f'v_add_f32_dpp v{l}, v{l}, v{l} row_ror:8 {D}')
        a(f'v_rcp_f32 v{l}, v{l}')
        a(f'v_pk_mul_f32 v[{X}:{X+1}], v[{X}:{X+1}], v[{l}:{l+1}] op_sel_hi:[1,0]')
        a(f'v_pk_mul_f32 v[{m}:{m+1}], v[{m}:{m+1}], v[{l}:{l+1}] op_sel_hi:[1,0]')
        a(f'v_cvt_pk_bf16_f32 v{X}, v{X}, v{X+1}')
        a(f'v_cvt_pk_bf16_f32 v{m}, v{m}, v{m+1}')
        a(f'v_min_u32 v{X}, -2, v{X}')
        a(f'buffer_store_dword v{X}, v1, {SRD}, s20 offen {st}')
        a(f'v_min_u32 v{m}, -2, v{m}')
        a(f'buffer_store_dword v{m}, v118, {SRD}, s20 offen {st}')
        stamp(a, 6)
        a(f'buffer_store_dword v119, v1, {SRD}, s21 offen {st}')
        a(f'buffer_store_dword v119, v118, {SRD}, s21 offen {st}')
        if ZV == 2: zm(52, SX)
    else:
        if ZV == 0 or (ZV == 3 and w == 2):
            zm(52, SX)
            if STLB:
                a(f's_buffer_load_dword s70, {SRD}, s35')
                a(f's_add_u32 s22, s24, {4*XSEG_B}')
                a(f's_buffer_load_dword s71, {SRD}, s22')
                a(f's_mul_i32 s22, s18, {7*KB}')
                a(f's_add_u32 s22, s22, {MEMG_OFF + 3*7*KB}')
                a(f's_buffer_load_dword s72, {SRD}, s22')
                a(f's_add_u32 s35, s35, {VO_SS}')
        elif ZV == 3:
            for r in range(52, 52 + ZX): a(f'v_mov_b32 v{r}, 0')
            zm(36, SX)
        else:
            for r in list(range(52, 60)) + list(range(AC[6], AC[6] + 4)): a(f'v_mov_b32 v{r}, 0')
            for k in range(ZX if w == 2 else 0): a(f'v_mov_b32 v{TMP}, 0')
    for r in range(SX + 4 + FILL_A, SX + 8): a(f'v_mov_b32 v{r}, 0')
    stamp_flush(a, w, L('sf'), BOP2)
    if STEPLOG and w in (1, 3):
        a('s_memtime s[40:41]' if w == 1 else 's_memrealtime s[40:41]')
        a('s_lshl_b32 s22, s17, 8')
        if w == 3: a('s_add_u32 s22, s22, 4096')
        a('s_lshl_b32 s42, s19, 2')
        a('s_add_u32 s22, s22, s42')
        a(f's_add_u32 s22, s22, {STAMP_OFF}')
        a(f'v_mov_b32 v{BOP2}, 0')
        a('s_waitcnt lgkmcnt(0)')
        a(f'v_mov_b32 v{BOP2+1}, s40')
        a(f'buffer_store_dword v{BOP2+1}, v{BOP2}, {SRD}, s22 offen')
    if DIAG and w == 3:
        a('s_cmp_lg_u32 s19, 1')
        a(f's_cbranch_scc1 {L("dg")}')
        a('s_memtime s[90:91]')
        a('s_memrealtime s[86:87]')
        a.label(L('dg'))
    next_step(a)
    if w == F1_W: a('v_mov_b32 v112, s18')
    a(f's_cmp_lt_u32 s19, {NSTEPS-1}')
    a.flush()
    a(f's_cbranch_scc1 {L("loop")}')
    a(f's_branch {tag}_done')
    for k in range(5):
        ks_ = [k] if k < 4 else [4, 5, 6]
        a.label(L(f'r{k}'))
        a('s_add_u32 s31, s31, 1')
        for ks in ks_: ml(ks)
        a('s_waitcnt vmcnt(0)')
        for x in (ex1(k) if k < 4 else ex3): a(x)
        if k == 0:
            for r in range(36, 52): a(f'v_mov_b32 v{r}, 0')
        a.flush()
        a(f's_cbranch_vccz {L("go" if k == 0 else f"c{k}")}')
        spin(a, L(f'r{k}'), ABORT)
    a.label(L('retry'))
    a('s_cmp_lg_u32 s62, 0')
    a(f's_cbranch_scc1 {L("cont")}')
    a('s_waitcnt vmcnt(0) lgkmcnt(0)')
    a.label(L('rv'))
    for ks in range(7): ml(ks)
    a('s_waitcnt vmcnt(0)')
    poison_max16(a, TMP, range(8, 36))
    a(f's_cbranch_vccz {L("rk")}')
    spin(a, L('rv'), ABORT)
    a.label(L('rk'))
    a('s_mov_b32 s62, 1')
    zero()
    a('s_add_u32 s31, s31, 0x100')
    a.flush()
    a(f's_branch {L("go")}')

def touch_ring(a, t):
    nl = RING_B // 128
    a(f's_mov_b32 s22, {EXCH_OFF}')
    for k in range((nl + 63) // 64):
        a(f'v_add_u32 v{t}, {64*k}, v1')
        a(f'v_min_u32 v{t}, {nl-1}, v{t}')
        a(f'v_lshlrev_b32 v{t}, 7, v{t}')
        a(f'buffer_load_dword v{t+1}, v{t}, {SRD}, s22 offen sc1')

def WFL(): return 'sc1' if FUSE else ''
HELP = 0
def mask_wait(a, P, vaddr, soff, smask, sleep=3):
    poll(a, P, [f'buffer_load_dword v65, {vaddr}, {SRD}, {soff} {"offen" if vaddr != "off" else ""} sc1'], [f'v_and_b32 v66, {smask}, v65', f'v_cmp_ne_u32 vcc, {smask}, v66'], sleep=sleep)
def b_wait(a, P, w):
    a('s_lshr_b32 s22, s17, 2')
    a('s_lshl_b32 s28, 0x81, s22')
    a('s_mul_i32 s27, s17, 12')
    for d in (256, 267):
        a(f's_add_u32 s22, s27, {d}')
        a('s_lshr_b32 s22, s22, 6')
        a('s_lshl_b32 s22, 0x81, s22')
        a('s_or_b32 s28, s28, s22')
    a('v_lshlrev_b32 v64, 7, v116')
    a(f's_mov_b32 s27, {PFL + w*512}')
    mask_wait(a, P, 'v64', 's27', 's28')
def a_wait(a, P, kaps):
    a('s_lshl_b32 s27, s17, 7')
    a(f's_add_u32 s27, s27, {PFL + 2048}')
    a(f's_mov_b32 s28, {sum(0x81 << k for k in kaps)}')
    mask_wait(a, P, 'off', 's27', 's28')
def touch_tiles(a, base, tiles):
    a('v_min_u32 v64, 55, v1')
    a('v_lshlrev_b32 v64, 7, v64')
    a(f's_mul_i32 s27, s17, {CUW_B}')
    for t in tiles:
        for hf in range(2):
            a(f's_add_u32 s22, s27, {base + t*TILE_B + hf*7168}')
            a(f'buffer_load_dword v67, v64, {SRD}, s22 offen sc1')
def r_wait(a, P, off):
    poll(a, P, [f'buffer_load_dword v65, off, {DBG}, 0 offset:{off} sc1'], ['v_cmp_ne_u32 vcc, 1, v65'], sleep=8)

def init_score(a, w):
    a(f's_mul_i32 s31, s17, {CUW_B}')
    a(f's_add_u32 s31, s31, {WF_A}')
    units = [((kap * 4 + q) * TILE_B + ks * UNIT, wreg(ti, ks)) for ti, (kap, q) in enumerate(score_tiles(w)) for ks in range(7)]
    if FUSE:
        r_wait(a, f'ch_wr{w}', D_R2)
        if HELP:
            b_wait(a, f'ch_wh{w}', w)
            touch_tiles(a, WF_B, [7*w + 4, 7*w + 5, 7*w + 6])
        a_wait(a, f'ch_wa{w}', [w])
        evlog(a, 9002)
        a('v_readfirstlane_b32 s29, v65')
        load_units(a, units[:28], 's31', fl=WFL())
        m2 = (0x81 << (4 + (w >> 1))) | (0x81 << 6)
        a(f's_and_b32 s29, s29, {m2}')
        a(f's_cmp_eq_u32 s29, {m2}')
        a(f's_cbranch_scc1 ch_wb{w}_ok')
        a_wait(a, f'ch_wb{w}', [4 + (w >> 1), 6])
        a('s_waitcnt vmcnt(28)')
        load_units(a, units[28:], 's31', fl=WFL())
        if w == 3: touch_ring(a, 64)
        a(f's_mov_b32 s27, {PFL + 4096}')
        a('s_mov_b32 s28, 0xffff')
        mask_wait(a, f'ch_wx{w}', 'off', 's27', 's28', sleep=8)
    else:
        if w == 3: touch_ring(a, 64)
        load_units(a, units, 's31', fl=WFL())
    a(f's_mov_b32 s24, {XF_OFF + w*2048}')
    a(f's_mov_b32 s26, {XF_OFF + w*2048 + 14336}')
    a('v_and_b32 v64, 7, v117')
    a('v_and_b32 v65, 1, v116')
    a('v_lshlrev_b32 v65, 2, v65')
    a('v_sub_u32 v64, v64, v65')
    a('v_lshrrev_b32 v65, 3, v117')
    a('v_lshl_add_u32 v66, v65, 2, v64')
    a('v_cmp_gt_u32 vcc, 4, v64')
    a('v_mov_b32 v67, 99')
    a('v_cndmask_b32 v66, v67, v66, vcc')
    a('v_mov_b32 v68, 0x3f80')
    a('v_mov_b32 v69, 0x3f800000')
    for d in range(4):
        a(f'v_mov_b32 v{4+d}, 0')
        a(f'v_cmp_eq_u32 vcc, {2*d}, v66')
        a(f'v_cndmask_b32 v{4+d}, v{4+d}, v68, vcc')
        a(f'v_cmp_eq_u32 vcc, {2*d+1}, v66')
        a(f'v_cndmask_b32 v{4+d}, v{4+d}, v69, vcc')
    a('v_lshrrev_b32 v64, 1, v116')
    a('v_lshrrev_b32 v65, 3, v117')
    a('v_and_b32 v66, 1, v116')
    a('v_and_b32 v68, 7, v117')
    a('v_lshlrev_b32 v67, 8, v65')
    a('v_lshl_add_u32 v67, v68, 5, v67')
    a('v_lshl_add_u32 v67, v66, 4, v67')
    a(f'v_add_u32 v69, {MP + (w >> 1) * 1088 + (w & 1) * 512}, v67')
    a(f'v_add_u32 v70, {MJ}, v67')
    a('v_cmp_eq_u32 vcc, v64, v65')
    a('v_cndmask_b32 v113, v70, v69, vcc')
    if w < 2:
        a('v_lshlrev_b32 v67, 9, v64')
        a('v_lshl_add_u32 v67, v117, 4, v67')
        a('v_lshl_add_u32 v67, v66, 3, v67')
        a(f'v_add_u32 v114, {XP + w*256}, v67')
        a('v_mul_u32_u24 v67, 1088, v65')
        a('v_lshl_add_u32 v67, v116, 5, v67')
        a('v_lshl_add_u32 v67, v68, 2, v67')
        a(f'v_add_u32 v115, {MP + w*128}, v67')
        a('v_and_b32 v69, 1, v117')
        a('v_lshlrev_b32 v67, 7, v69')
        a('v_lshl_add_u32 v67, v116, 4, v67')
        a('v_lshl_add_u32 v67, v65, 8, v67')
        a('v_bfe_u32 v69, v117, 1, 2')
        a('v_lshl_add_u32 v67, v69, 2, v67')
        a('s_lshl_b32 s22, s17, 9')
        a(f's_add_u32 s22, s22, {PX + w*64}')
        a('v_add_u32 v72, s22, v67')
        a('v_bfe_u32 v69, v117, 1, 1')
        a('v_lshlrev_b32 v67, 7, v69')
        a('v_lshl_add_u32 v67, v116, 4, v67')
        a('v_and_b32 v69, 4, v117')
        a('v_add_u32 v67, v67, v69')
        a('s_lshr_b32 s22, s17, 1')
        a('s_lshl_b32 s22, s22, 8')
        a('s_and_b32 s27, s17, 1')
        a('s_lshl_b32 s27, s27, 3')
        a('s_add_u32 s22, s22, s27')
        a(f's_add_u32 s22, s22, {PM + w*64}')
        a('v_add_u32 v67, s22, v67')
        a('v_and_b32 v69, 9, v117')
        a('v_mov_b32 v70, 0x40000000')
        a('v_cmp_eq_u32 vcc, 0, v69')
        a('v_cndmask_b32 v118, v70, v67, vcc')
        a('v_mov_b32 v119, -1')
    if w == F1_W:
        a('s_lshl_b32 s22, s17, 2')
        a(f's_add_u32 s22, s22, {FLG1}')
        a('v_lshl_add_u32 v67, v1, 7, s22')
        a('v_mov_b32 v70, 0x40000000')
        a(f'v_cmp_gt_u32 vcc, {R1}, v1')
        a('v_cndmask_b32 v73, v70, v67, vcc')
        a('v_mov_b32 v112, 1')
    a('v_and_b32 v0, 15, v1')
    a(f's_and_b32 s22, s17, {R2-1}')
    a('s_lshl_b32 s22, s22, 7')
    a(f's_add_u32 s22, s22, {FLG2}')
    a('v_lshl_add_u32 v0, v0, 2, s22')
    kb = 4 + (w >> 1)
    k1, k2 = (kb, 6) if w & 1 else (6, kb)
    a('v_xor_b32 v69, 256, v2')
    a(f'v_mul_i32_i24 v70, {(k2 - k1) * 2048}, v66')
    a('v_add_u32 v69, v69, v70')
    a(f'v_add_u32 v117, {(k1 - w)*2048}, v69')
    a('v_mov_b32 v116, v73')
    a(f's_mul_i32 s35, s17, {VO_SV}')
    a(f's_add_u32 s35, s35, {VO_OFF + 4*VO_SS}')
    if w < 2: a('v_mov_b32 v1, v72')
    for r in range(36, 80): a(f'v_mov_b32 v{r}, 0')
    for k in range(X_LATE):
        r = 80 + 4 * k
        a(f'buffer_load_dwordx4 v[{r}:{r+3}], v117, {SRD}, {"s26" if k & 2 else "s24"} offen offset:{(k & 1)*1024} {XFL}')

YL = 0; ML = 8 * KB; WL = 16 * KB
def vwreg(w, ti, ks):
    u = ti * 7 + ks
    return 256 + 8 * u if u < 32 else (176 if w < 2 else 120) + 8 * (u - 32)

def vo_wait0(a, P):
    if FUSE: poll(a, P + 'i', [f'buffer_load_dword v9, off, {DBG}, 0 offset:{D_R2} sc1'], ['v_cmp_ne_u32 vcc, 1, v9'], sleep=8)
    a('s_lshl_b32 s27, s17, 7')
    a(f's_add_u32 s27, s27, {CNT_OFF + VOC}')
    a('s_mov_b32 s30, 0')
    a.label(P)
    a(f'buffer_load_dword v9, off, {SRD}, s27 sc1')
    a('s_waitcnt vmcnt(0)')
    a('v_cmp_ne_u32 vcc, 56, v9')
    a(f's_cbranch_vccz {P}_d')
    a('s_sleep 2')
    spin(a, P, 'cA_abort')
    a.label(P + '_d')

def resolve_waits(ins):
    out = []; pos = {}; n = 0
    for x in ins:
        if isinstance(x, tuple) and x[0] == 'tag':
            n += 1; pos[x[1]] = n; out.append(x[2])
        elif isinstance(x, tuple):
            out.append(f's_waitcnt lgkmcnt({min(15, n - pos[x[1]])})')
        else:
            if x.startswith('ds_'): n += 1
            out.append(x)
    return out

def gen_value(a, w, st, tag):
    L = lambda n: f'{tag}_va{w}_{n}'
    ABORT = f'{tag}_abort'
    fin = w < 2
    M = 8; ACC = 36
    YA = 152 if fin else 104
    YT = 64; VOR = 80; LO = 48; PL = 52; HI = 160
    STG = [64, 72, 144]
    own = [[4, 5], [5, 6], [0, 1], [2, 3]][w]
    wrt = own if w != 1 else [6]
    oth = [k for k in range(7) if k not in own]
    def S(ti, ks):
        b = f'v[{STG[ks % 3]}:{STG[ks % 3]+7}]' if fin and ti == 6 else ureg(vwreg(w, ti, ks), 8)
        return f'v_smfmac_f32_16x16x64_bf16 v[{ACC+4*ti}:{ACC+4*ti+3}], v[{M+4*ks}:{M+4*ks+3}], {b}, v3'
    def fold(t):
        r = ACC + 4 * t
        return [f'v_permlane32_swap_b32 v{r}, v{r+2}', f'v_permlane32_swap_b32 v{r+1}, v{r+3}', f'v_add_f32 v{r}, v{r}, v{r+2}', f'v_add_f32 v{r+1}, v{r+1}, v{r+3}',
                f'v_cvt_pk_bf16_f32 v{r+2}, v{r}, v{r+1}', f'ds_write_b32 v{YA+t}, v{r+2}']
    def wrd(ks):
        b = STG[ks % 3]
        return [f'ds_read_b128 v[{b}:{b+3}], v0 offset:{ks*UNIT}', ('tag', f'w{ks}', f'ds_read_b128 v[{b+4}:{b+7}], v0 offset:{ks*UNIT+1024}')]
    def mld(ks): return f'buffer_load_dwordx4 v[{M+4*ks}:{M+4*ks+3}], v2, {SRD}, {"s20" if ks < 4 else "s23"} offen offset:{(ks & 3) * 1024} sc1'
    def vol(h):
        return ([f's_add_u32 s22, s25, {h*1792}'] if h % 2 == 0 else []) + [f'buffer_load_dwordx4 v[{VOR+4*h}:{VOR+4*h+3}], v6, {SRD}, s22 offen offset:{(h & 1)*1792} sc1']
    isv = lambda o: isinstance(o, str) and o.startswith('v_')
    pois = f'buffer_store_dword v162, v1, {SRD}, s21 offen {st}'
    mg = f'buffer_store_dword v{HI}, v1, {SRD}, s38 offen sc1'
    mgp = f'buffer_store_dword v{HI}, v1, {SRD}, s38 offen {st or ["sc1", "", "nt", "sc0"][MG_MODE]}'
    zr = list(range(ACC, ACC + 28))
    a.raw('.p2align 6')
    a.label(L('loop'))
    a('s_mov_b32 s30, 0')
    if w == 2:
        flagpoll(a, 119, 's19', 100, L('fp'), ABORT)
        for ks in own: a(mld(ks))
        a('s_barrier')
    else:
        a('s_barrier')
        for ks in own: a(mld(ks))
    stamp(a, 0)
    a('s_barrier')
    if STEPLOG and w == 1: a('s_memtime s[40:41]')
    ny = 0
    if fin:
        if st or not MG_MODE: a(mg)
        else:
            a(f's_cmp_lt_u32 s19, {MG_SW}')
            a(f's_cbranch_scc1 {L("m1")}')
            a(mg)
            a(f's_branch {L("m2")}')
            a.label(L('m1'))
            a(mgp)
            a.label(L('m2'))
        ny += 1
        for h in range(VO_PRE):
            for x in vol(h): a(x)
        ny += VO_PRE
        a(f's_mul_i32 s38, s18, {7*KB}')
        a(f's_add_u32 s38, s38, {MEMG_OFF}')
    if w == 3:
        a(f'buffer_load_dword v100, v116, {SRD}, {"s39" if not NOXT else "s20"} offen sc1')
        a('s_add_u32 s27, s19, 2')
        a('s_min_u32 s27, s27, 63')
        a('s_lshr_b32 s27, s27, 3')
        a('s_lshl_b32 s27, s27, 11')
        a('s_add_u32 s27, s27, s35')
        a('s_cmp_eq_u32 s27, s28')
        a(f's_cselect_b32 s29, {FLG1}, s27')
        a(f'buffer_load_dword v101, off, {SRD}, s29 sc1')
        a(f's_add_u32 s39, s39, {XSEG_B}')
        ny += 2
    if VPROBE >= 0 and w == 1:
        a(f's_waitcnt vmcnt({VPROBE})')
        a('s_memtime s[42:43]')
    a(f's_waitcnt vmcnt({ny})')
    stamp(a, 1)
    for ks in wrt: a(f'ds_write_b128 v2, v[{M+4*ks}:{M+4*ks+3}] offset:{ML + ks*1024}')
    nrt = 6 if fin else 7
    seq = [[t, S(t, ks), []] for ks in own for t in range(nrt)]
    seq[B1_POS][2] += ['s_waitcnt lgkmcnt(0)', 's_barrier'] + [('tag', f'm{ks}', f'ds_read_b128 v[{M+4*ks}:{M+4*ks+3}], v2 offset:{ML + ks*1024}') for ks in oth]
    n0 = len(seq)
    rest = [[t, S(t, ks), []] for t in range(nrt) for ks in oth]
    if fin:
        for j_ in range(7): rest.insert(3 + 4 * j_, [6, S(6, j_), []])
    seq += rest
    for k, ks in enumerate(oth):
        idx = next(i_ for i_ in range(n0, len(seq)) if seq[i_][1] == S(0, ks))
        seq[idx - 1][2].append(('wait', f'm{ks}'))
    if fin:
        for j_ in range(7):
            idx = n0 + 3 + 4 * j_
            seq[idx - (8 if j_ else 5)][2] += wrd(j_)
            seq[idx - 1][2].append(('wait', f'w{j_}'))
        for h in range(VO_PRE, 16): seq[(h - VO_PRE) * VO_EVERY][2] += vol(h)
        if TLB_WARM and w == 1:
            seq[(16 - VO_PRE) * VO_EVERY][2] += [f's_add_u32 s22, s25, {VO_SS + GSH_B - 128}', f'buffer_load_dword v164, off, {SRD}, s22 sc1']
    last = {}
    for i_, (t, m, sd) in enumerate(seq): last[t] = i_
    ins = []; pend = []; delay = 0; brk = None
    for i_, (t, m, sd) in enumerate(seq):
        ins.append(m)
        ops = list(sd)
        if pend and pend[0].startswith('ds_'): ops.insert(0, pend.pop(0))
        if brk == i_:
            ops.append(f's_cbranch_vccnz {L("slow")}')
            assert not fin or i_ > (16 - VO_PRE) * VO_EVERY
        if brk is not None and brk + 2 == i_ and fin: ops.append(pois)
        if delay: delay -= 1
        elif pend:
            x = pend.pop(0); ops.append(x)
            if x.startswith('v_cmp'): brk = i_ + 2
        ins += [o for o in ops if not isv(o)] + [o for o in ops if isv(o)]
        if i_ == last[t]:
            delay = max(delay, 2 - len(pend))
            f_ = fold(t)
            if t == 0: f_.insert(4, f'v_cmp_u_f32 vcc, v{ACC}, v{ACC+1}')
            pend += f_
    ins += pend
    for x in resolve_waits(ins): a(x)
    a.label(L('t2d'))
    stamp(a, 2)
    if fin:
        pr = lambda c: 8 + 4 * c
        def pld(c):
            so = ('s22', 's34', 's36')[c // 4]
            a(f'buffer_load_dwordx4 v[{pr(c)}:{pr(c)+3}], v2, {SRD}, {so} offen offset:{(c & 3)*1024} sc1')
        a(f's_add_u32 s22, s20, {PX}')
        a(f's_add_u32 s34, s20, {PX + 4096}')
        a(f's_add_u32 s36, s20, {PM}')
        a('s_mov_b32 s37, 0')
        for r in range(LO, LO + 4): a(f'v_mov_b32 v{r}, 0')
        a('v_mov_b32 v163, s18')
        a('s_waitcnt lgkmcnt(0)')
        if STAMPS:
            a('s_waitcnt vmcnt(0)')
            stamp(a, 3)
        if STEPLOG and w == 1 and VPROBE < 0:
            a('s_waitcnt vmcnt(0)')
            a('s_memtime s[42:43]')
        if w == 0:
            a('s_setprio 3')
            flagpoll(a, 4, 's18', PL, L('fw'), ABORT, FP1)
            for c in range(B3_AT): pld(c)
        a('s_barrier')
        if w == 0:
            for c in range(B3_AT, 10): pld(c)
        elif B3_AT < 10:
            for k in range(2 * (10 - B3_AT) + 4): a(f'v_mov_b32 v{PL+4+(k & 7)}, 0')
        stamp(a, 4)
        if w == 1:
            for c in range(10): pld(c)
        for k in range(4): a(f'ds_read_b128 v[{YT+4*k}:{YT+4*k+3}], v2 offset:{YL + w*4096 + k*1024}')
        a.label(L('lp'))
        nst = 0
        ckc = list(range(min(F3_POS - 1, 8))) if PCHK and w == 1 else []
        for c in range(10):
            a(f's_waitcnt vmcnt({9-c+nst})' + (' lgkmcnt(0)' if c == 8 else ''))
            if c == 0: stamp(a, 5)
            B_ = VOR + 8 * c if c < 8 else YT + 8 * (c - 8)
            a(f'v_smfmac_f32_16x16x64_bf16 v[{LO}:{LO+3}], v[{pr(c)}:{pr(c)+3}], v[{B_}:{B_+7}], v3')
            if c == F3_POS and w == 1:
                if ckc: a(f's_cbranch_vccnz {L("rv")}')
                a(f'buffer_store_dword v163, v7, {SRD}, 0 offen {st}')
                nst = 1
            if c in ckc:
                if c % 2 == 0 and c > 0: a(f'v_max3_u32 v{PL+3}, v{PL+3 if c > 2 else pr(0)}, v{pr(c-1)}, v{pr(c)}')
                elif c == ckc[-1] and c > 0: a(f'v_max_u32 v{PL+3}, v{PL+3 if c > 2 else pr(0)}, v{pr(c)}')
                if c == ckc[-1]: a(f'v_cmp_eq_u32 vcc, -1, v{PL+3 if c > 0 else pr(0)}')
        stamp(a, 6)
        a(f'v_permlane32_swap_b32 v{LO}, v{LO+2}')
        a(f'v_permlane32_swap_b32 v{LO+1}, v{LO+3}')
        a(f'v_add_f32 v{LO}, v{LO}, v{LO+2}')
        a(f'v_add_f32 v{LO+1}, v{LO+1}, v{LO+3}')
        a(f'v_cvt_pk_bf16_f32 v{HI}, v{LO}, v{LO+1}')
        a(f'v_cmp_u_f32 vcc, v{LO}, v{LO+1}')
        a(f'v_mov_b32_dpp v{HI+1}, v{HI} quad_perm:[1,0,3,2] {D}')
        a(f'v_perm_b32 v{HI}, v{HI+1}, v{HI}, v5')
        a(f'v_min_u32 v{HI}, -2, v{HI}')
        a(f's_cbranch_vccnz {L("rp")}')
        a.label(L('cont'))
        a(f'buffer_store_dword v{HI}, v1, {SRD}, s21 offen {st}')
        stamp(a, 7)
        if w == 0: a('s_setprio 0')
        a(f's_cmp_lg_u32 s19, {NSTEPS-2}')
        a(f's_cbranch_scc1 {L("nl")}')
        a(mg)
        if MG_MODE:
            a('s_waitcnt vmcnt(0)')
            a('buffer_wbl2 sc1')
        a(f's_branch {tag}_done')
        a.label(L('nl'))
        a(f's_add_u32 s25, s25, {VO_SS}')
        stamp_flush(a, 4 + w, L('sf'), PL)
        if STEPLOG and w == 1:
            a('s_sub_u32 s40, s42, s40')
            a('s_lshl_b32 s22, s17, 8')
            a('s_lshl_b32 s42, s19, 2')
            a('s_add_u32 s22, s22, s42')
            a(f's_add_u32 s22, s22, {STAMP_OFF + 8192}')
            a(f'v_mov_b32 v{PL+1}, s40')
            a(f'buffer_store_dword v{PL+1}, off, {SRD}, s22')
        for r in zr: a(f'v_mov_b32 v{r}, 0')
    else:
        a('v_mov_b32 v117, s18')
        if w == 3:
            a('s_cmp_eq_u32 s27, s28')
            a(f's_cbranch_scc1 {L("vok")}')
            a.label(L('vow'))
            a('s_waitcnt vmcnt(0)')
            a('v_cmp_ne_u32 vcc, 56, v101')
            a(f's_cbranch_vccnz {L("vor")}')
            a('s_mov_b32 s28, s27')
            a.label(L('vok'))
        a('s_waitcnt lgkmcnt(0)')
        stamp(a, 3)
        if w == 3 and F2_PRIO: a('s_setprio 3')
        a('s_barrier')
        nd = F2_DELAY if w == 3 else 0
        for r in zr[:nd]: a(f'v_mov_b32 v{r}, 0')
        if w == 3: a(f'buffer_store_dword v117, v118, {SRD}, 0 offen {st}')
        if w == 3 and F2_PRIO: a('s_setprio 0')
        a(f's_cmp_eq_u32 s19, {NSTEPS-2}')
        a(f's_cbranch_scc1 {tag}_done')
        if w == 2: a('s_sleep 1')
        for r in zr[nd:]: a(f'v_mov_b32 v{r}, 0')
        if w == 2 and P3_SLEEP: a(f's_sleep {P3_SLEEP}')
        stamp_flush(a, 4 + w, L('sf'), 76)
    next_step(a)
    a.flush()
    a(f's_branch {L("loop")}')
    a.label(L('slow'))
    a('s_waitcnt lgkmcnt(0)')
    a.label(L('sl1'))
    a('s_add_u32 s31, s31, 0x1000000')
    for ks in range(7): a(mld(ks))
    a('s_waitcnt vmcnt(0)')
    poison_max(a, ACC, range(M, M + 28))
    a(f'v_cmp_eq_u32 vcc, -1, v{ACC}')
    a(f's_cbranch_vccz {L("sl2")}')
    spin(a, L('sl1'), ABORT)
    a.label(L('sl2'))
    for r in zr: a(f'v_mov_b32 v{r}, 0')
    if fin: a(pois)
    for ks in range(7):
        if fin:
            for x in resolve_waits(wrd(ks)): a(x)
        for t in range(7):
            if fin and t == 6: a('s_waitcnt lgkmcnt(0)')
            a(S(t, ks))
    for t in range(7):
        for x in fold(t): a(x)
    a(f's_branch {L("t2d")}')
    if fin:
        a.label(L('rp'))
        a('s_cmp_lg_u32 s37, 0')
        a(f's_cbranch_scc1 {L("cont")}')
        a.label(L('rv'))
        a('s_add_u32 s31, s31, 0x10000')
        for c in range(10): pld(c)
        a('s_waitcnt vmcnt(0)')
        poison_max(a, PL, [pr(c) + r for c in range(10) for r in range(4)])
        a(f'v_cmp_eq_u32 vcc, -1, v{PL}')
        a('s_mov_b32 s37, 1')
        for r in range(LO, LO + 4): a(f'v_mov_b32 v{r}, 0')
        a.flush()
        a(f's_cbranch_vccz {L("lp")}')
        spin(a, L('rv'), ABORT)
    if w == 3:
        a.label(L('vor'))
        a('s_sleep 2')
        a(f'buffer_load_dword v101, off, {SRD}, s27 sc1')
        spin(a, L('vow'), ABORT)

def init_value(a, w):
    fin = w < 2
    YA = 152 if fin else 104
    a(f's_mul_i32 s31, s17, {CUW_B}')
    a(f's_add_u32 s31, s31, {WF_B + 7*w*TILE_B}')
    if FUSE:
        r_wait(a, f'ch_wr{4+w}', D_R1)
        b_wait(a, f'ch_ww{4+w}', w)
        evlog(a, 9002)
    units = [(ti * TILE_B + ks * UNIT, vwreg(w, ti, ks)) for ti in range(6 if fin else 7) for ks in range(7)]
    load_units(a, units, 's31', fl=WFL())
    if fin:
        for f in range(14):
            if f % 4 == 0:
                a(f's_mov_b32 m0, {WL + w*TILE_B + f*1024}')
                a(f's_add_u32 s22, s31, {6*TILE_B + f*1024}')
            a(f'buffer_load_dwordx4 v2, {SRD}, s22 offen offset:{(f & 3)*1024} {WFL()} lds')
    if FUSE and HELP:
        a_wait(a, f'ch_wh{4+w}', [4 + (w >> 1), 6])
        evlog(a, 9012)
        touch_tiles(a, WF_A, [kap * 4 + q for kap, q in score_tiles(w)[4:]])
        a('s_waitcnt vmcnt(0)')
    a('v_mov_b32 v72, v116')
    a('v_mov_b32 v73, v117')
    a('v_lshrrev_b32 v65, 1, v72')
    a('v_and_b32 v66, 1, v72')
    for r in range(36, 64): a(f'v_mov_b32 v{r}, 0')
    a('v_lshlrev_b32 v75, 2, v65')
    a('v_lshl_add_u32 v75, v66, 3, v75')
    for t in range(7):
        a(f'v_add_u32 v67, {16 * (7*w + t)}, v73')
        a('v_mul_u32_u24 v68, 2341, v67')
        a('v_lshrrev_b32 v68, 16, v68')
        a('v_mul_u32_u24 v69, 28, v68')
        a('v_sub_u32 v69, v67, v69')
        a('v_lshrrev_b32 v70, 4, v69')
        a('v_and_b32 v69, 15, v69')
        a('v_lshlrev_b32 v71, 12, v70')
        a('v_lshl_add_u32 v71, v68, 8, v71')
        a('v_lshl_add_u32 v71, v69, 4, v71')
        a(f'v_add_u32 v{YA+t}, v71, v75')
    a('v_mov_b32 v74, 0x40000000')
    if fin:
        a('v_mov_b32 v76, 0\nv_mov_b32 v77, 0\nv_mov_b32 v78, 0\nv_mov_b32 v79, 0')
        for k in range(4): a(f'ds_write_b128 v2, v[76:79] offset:{YL + w*4096 + k*1024}')
        a(f's_and_b32 s22, s17, {R1-1}')
        a('s_lshl_b32 s22, s22, 7')
        a(f's_add_u32 s22, s22, {FLG1}')
        a('v_lshl_add_u32 v4, v73, 2, s22')
        a('v_and_b32 v64, 1, v73')
        a('v_mov_b32 v5, 0x05040100')
        a('v_mov_b32 v65, 0x03020706')
        a('v_cmp_eq_u32 vcc, 1, v64')
        a('v_cndmask_b32 v5, v5, v65, vcc')
        a('s_lshl_b32 s22, s17, 2')
        a(f's_add_u32 s22, s22, {FLG2 + 16*128}')
        a('v_lshl_add_u32 v7, v1, 7, s22')
        a(f'v_cmp_gt_u32 vcc, {R2}, v1')
        a('v_cndmask_b32 v7, v74, v7, vcc')
        if w == 0: a('v_mov_b32 v6, v2')
        else:
            a('v_min_u32 v65, 11, v73')
            a('v_mad_u32_u24 v65, v72, 12, v65')
            a('v_lshlrev_b32 v6, 4, v65')
            a('v_add_u32 v6, 1024, v6')
        a('v_lshl_add_u32 v64, v66, 2, v64')
        a('v_and_b32 v65, 2, v72')
        a('v_add_u32 v64, v64, v65')
        a(f's_mul_i32 s22, s17, {12 if w else 16}')
        if w: a('s_add_u32 s22, s22, 256')
        a('v_add_u32 v75, s22, v73')
        a('v_lshrrev_b32 v68, 4, v75')
        a('v_lshlrev_b32 v68, 8, v68')
        a('v_bfe_u32 v69, v75, 1, 1')
        a('v_lshl_add_u32 v68, v69, 7, v68')
        a('v_lshl_add_u32 v68, v64, 4, v68')
        a('v_and_b32 v69, 12, v75')
        a('v_add_u32 v1, v68, v69')
        if w == 1:
            a('v_cmp_gt_u32 vcc, 12, v73')
            a('v_cndmask_b32 v1, v74, v1, vcc')
        a(f's_mul_i32 s22, s17, {VO_SV}')
        a(f's_add_u32 s25, s22, {VO_OFF}')
        a('v_mov_b32 v162, -1')
        a('s_mov_b32 s38, 0x40000000')
        a(f'v_add_u32 v0, {WL + w*TILE_B}, v2')
    else:
        a('v_and_b32 v119, 15, v1')
        a(f's_and_b32 s22, s17, {R2-1}')
        a('s_lshl_b32 s22, s22, 7')
        a(f's_add_u32 s22, s22, {FLG2 + 16*128}')
        a('v_lshl_add_u32 v119, v119, 2, s22')
        a('s_lshl_b32 s22, s17, 2')
        a(f's_add_u32 s22, s22, {FLG2}')
        a('v_lshl_add_u32 v118, v1, 7, s22')
        a(f'v_cmp_gt_u32 vcc, {R2}, v1')
        a('v_cndmask_b32 v118, v74, v118, vcc')
        a('s_lshl_b32 s35, s17, 7')
        a(f's_add_u32 s35, s35, {CNT_OFF + VOC}')
        a('s_mov_b32 s28, s35')
        a('v_min_u32 v116, 13, v1')
        a('s_mul_i32 s22, s17, 14')
        a('v_add_u32 v116, s22, v116')
        a('v_lshlrev_b32 v116, 7, v116')
        a(f's_mov_b32 s39, {XF_OFF + XSEG_B}')
        if w == 3:
            vo_wait0(a, 'ch_vw7')
            a(f'buffer_load_dword v100, v116, {SRD}, s39 offen sc1')
        a(f's_mov_b32 s39, {XF_OFF + 2*XSEG_B}')

MERGE = 0
RB1_DELAY = 0
def wg_atomic(a, P, dst):
    a('v_mov_b32 v6, 160000')
    a('s_barrier')
    a('s_cmp_lg_u32 s16, 0')
    a(f's_cbranch_scc1 {P}1')
    a('s_mov_b64 exec, 1')
    a(f'buffer_atomic_add v4, v5, {DBG}, 0 offen sc0')
    a('s_waitcnt vmcnt(0)')
    a('ds_write_b32 v6, v4')
    a('s_waitcnt lgkmcnt(0)')
    a('s_mov_b64 exec, -1')
    a.label(f'{P}1')
    a('s_barrier')
    a('ds_read_b32 v4, v6')
    a('s_waitcnt lgkmcnt(0)')
    a(f'v_readfirstlane_b32 {dst}, v4')

def staff_check(a, okl, mode):
    a('s_mov_b32 s30, 0')
    a('v_mov_b32 v36, 0')
    a.label('ch_chk')
    a(f'buffer_load_dword v37, v36, {DBG}, 0 offen sc1')
    a('s_waitcnt vmcnt(0)')
    a('v_readfirstlane_b32 s22, v37')
    a('s_and_b32 s22, s22, 0xffff')
    a('s_cmp_ge_u32 s22, 32')
    a('s_cbranch_scc1 ch_go_end')
    a('s_sleep 16')
    a('s_add_u32 s30, s30, 1')
    a('s_cmp_lt_u32 s30, 64')
    a('s_cbranch_scc1 ch_chk')
    a.label('ch_go_end')
    a('v_mov_b32 v6, 160016')
    a('v_mov_b32 v4, s22')
    a('s_cmp_lg_u32 s16, 0')
    a('s_cbranch_scc1 ch_dec')
    a('ds_write_b32 v6, v4')
    a('s_waitcnt lgkmcnt(0)')
    a.label('ch_dec')
    a('s_barrier')
    a('ds_read_b32 v4, v6')
    a('s_waitcnt lgkmcnt(0)')
    a('v_readfirstlane_b32 s22, v4')
    a('s_cmp_ge_u32 s22, 32')
    a(f's_cbranch_scc1 {okl}')
    a('v_mov_b32 v4, 0x10001')
    a(f's_mov_b32 s18, {mode}')
    a('s_branch ch_take')

D_CLAIM = 4; D_CNT = 12; D_REP = 20; D_R1 = 128; D_R2 = 132; NINIT = 4
FUSE = 1
REP_WAIT = 60
def wg_signal(a, off, inc=1):
    lb = a.newlabel('sig')
    a('s_barrier')
    a('s_cmp_lg_u32 s16, 0')
    a(f's_cbranch_scc1 {lb}')
    a(f'v_mov_b32 v60, {inc}')
    a(f'v_mov_b32 v61, {off}')
    a('s_mov_b64 exec, 1')
    a(f'buffer_atomic_add v60, v61, {DBG}, 0 offen')
    a('s_mov_b64 exec, -1')
    a.label(lb)

def poll(a, P, loads, cond, sleep=2, lim=SPIN_LIMIT, fail='cA_abort'):
    a('s_mov_b32 s30, 0')
    a.label(P)
    for x in loads: a(x)
    a('s_waitcnt vmcnt(0)')
    for x in cond: a(x)
    a(f's_cbranch_vccz {P}_ok')
    a(f's_sleep {sleep}')
    a('s_add_u32 s30, s30, 1')
    a(f's_cmp_lt_u32 s30, {lim}')
    a(f's_cbranch_scc1 {P}')
    a(f's_branch {fail}')
    a.label(P + '_ok')

def uniform(a, sreg, lds=160032):
    lb = a.newlabel('uni')
    a(f'v_mov_b32 v6, {lds}')
    a(f'v_mov_b32 v7, {sreg}')
    a('s_barrier')
    a('s_cmp_lg_u32 s16, 0')
    a(f's_cbranch_scc1 {lb}')
    a('ds_write_b32 v6, v7')
    a('s_waitcnt lgkmcnt(0)')
    a.label(lb)
    a('s_barrier')
    a('ds_read_b32 v7, v6')
    a('s_waitcnt lgkmcnt(0)')
    a(f'v_readfirstlane_b32 {sreg}, v7')

def lanes(a):
    a('v_and_b32 v1, 63, v0')
    a('v_lshlrev_b32 v2, 4, v1')
    a('v_lshrrev_b32 v3, 4, v1')
    a('v_and_b32 v4, 15, v1')

def mem0_load(a):
    from prep import srd
    srd(a, 68, 50, 51, 8 * 448 * 2)
    a('v_lshrrev_b32 v6, 3, v0')
    a('v_min_u32 v6, 27, v6')
    a('v_and_b32 v7, 7, v0')
    a('v_mul_u32_u24 v9, 896, v7')
    a('v_lshl_add_u32 v9, v6, 5, v9')
    a('buffer_load_dwordx4 v[176:179], v9, s[68:71], 0 offen')
    a('buffer_load_dwordx4 v[180:183], v9, s[68:71], 0 offen offset:16')

def init_job(a, P, k_s):
    a('v_mov_b32 v10, 0x40000000')
    a('v_mov_b32 v5, 1')
    for r in range(148, 152): a(f'v_mov_b32 v{r}, 0')
    for r in range(152, 156): a(f'v_mov_b32 v{r}, -1')
    a('v_lshlrev_b32 v8, 4, v0')
    a(f's_cmp_lg_u32 {k_s}, 0')
    a(f's_cbranch_scc1 {P}_1')
    a(f's_mov_b32 s23, {PFL}')
    a(f'buffer_store_dwordx4 v[148:151], v8, {SRD}, s23 offen sc1')
    a(f's_mov_b32 s23, {PFL + 4096}')
    a(f'buffer_store_dwordx4 v[148:151], v8, {SRD}, s23 offen sc1')
    a('s_waitcnt vmcnt(0)')
    a('s_barrier')
    a(f'buffer_store_dword v5, v252, {DBG}, 0 offen offset:{D_R1} sc1')
    a.label(f'{P}_1')
    mem0_load(a)
    a(f's_lshl_b32 s20, {k_s}, 12')
    a('v_add_u32 v8, s20, v8')
    for base, n, r in ((CNT_OFF, AC, 148), (EXCH_OFF + 2 * EXCH_B, 48 * 128, 148), (EXCH_OFF + 7 * KB, 2 * EXCH_B - 7 * KB, 152), (MEMG_OFF + 7 * KB, 63 * 7 * KB, 152)):
        full, rem = divmod(n, 16384)
        a(f's_mov_b32 s23, {base}')
        if full:
            lb = a.newlabel(P + 'lp')
            a.label(lb)
            a(f'buffer_store_dwordx4 v[{r}:{r+3}], v8, {SRD}, s23 offen sc1')
            a('s_add_u32 s23, s23, 16384')
            a(f's_cmp_lt_u32 s23, {base + full * 16384}')
            a(f's_cbranch_scc1 {lb}')
        if rem:
            a(f'v_cmp_gt_u32 vcc, {rem}, v8')
            a('v_cndmask_b32 v9, v10, v8, vcc')
            a(f'buffer_store_dwordx4 v[{r}:{r+3}], v9, {SRD}, s23 offen sc1')
    a(f's_cmp_lg_u32 {k_s}, 1')
    a(f's_cbranch_scc1 {P}_nm')
    a('v_lshrrev_b32 v6, 3, v0')
    a('v_and_b32 v7, 7, v0')
    a('v_lshlrev_b32 v8, 8, v6')
    a('v_lshl_add_u32 v8, v7, 4, v8')
    a('v_cmp_gt_u32 vcc, 28, v6')
    a('v_cndmask_b32 v8, v10, v8, vcc')
    a('s_waitcnt vmcnt(8)')
    for j in range(4):
        a(f'v_mov_b32 v{184+j}, v{176+2*j}')
        a(f'v_mov_b32 v{188+j}, v{177+2*j}')
    for base in (EXCH_OFF, MEMG_OFF):
        a(f's_mov_b32 s23, {base}')
        a(f'buffer_store_dwordx4 v[184:187], v8, {SRD}, s23 offen sc1')
        a(f'buffer_store_dwordx4 v[188:191], v8, {SRD}, s23 offen offset:128 sc1')
    a.label(f'{P}_nm')
    a('s_waitcnt vmcnt(0)')
    a('s_barrier')
    a('s_cmp_lg_u32 s16, 0')
    a(f's_cbranch_scc1 {P}_e')
    a('v_mov_b32 v6, 1')
    a('s_mov_b64 exec, 1')
    a(f'buffer_atomic_add v6, v252, {DBG}, 0 offen offset:{D_CNT} sc0')
    a('s_waitcnt vmcnt(0)')
    a('v_readfirstlane_b32 s20, v6')
    a(f's_cmp_lg_u32 s20, {NINIT-1}')
    a(f's_cbranch_scc1 {P}_e0')
    a(f'buffer_store_dword v5, v252, {DBG}, 0 offen offset:{D_R2} sc1')
    a.label(f'{P}_e0')
    a('s_mov_b64 exec, -1')
    a.label(f'{P}_e')

FLAG_AT = 4
TA_LATE = 0
def worker_prep(a):
    import prep2
    ldi = [f'buffer_load_dwordx2 v[254:255], v252, {DBG}, 0 offen offset:{D_R1} sc1']
    def flag(P, mat):
        a('s_barrier')
        a('s_cmp_lg_u32 s16, 0')
        a(f's_cbranch_scc1 {P}_f')
        a('v_readfirstlane_b32 s20, v254')
        a('s_cmp_eq_u32 s20, 1')
        a(f's_cbranch_scc1 {P}_w_ok')
        poll(a, P + '_w', [f'buffer_load_dword v254, off, {DBG}, 0 offset:{D_R1} sc1'], ['v_cmp_ne_u32 vcc, 1, v254'], sleep=8, lim=16, fail=P + '_f')
        a('s_lshl_b32 s20, s17, 7')
        a(f's_add_u32 s20, s20, {PFL + (2048 if mat == "A" else 0)}')
        a('s_lshl_b32 s21, 1, s19')
        a('v_mov_b32 v248, s21')
        a('s_mov_b64 exec, 1')
        a(f'buffer_atomic_or v248, v252, {SRD}, s20 offen sc0')
        a('s_mov_b64 exec, -1')
        a(f's_mov_b32 s{38 if mat == "A" else 37}, s21')
        a.label(P + '_f')
    def flag2(P, mat):
        sr = f's{38 if mat == "A" else 37}'
        a('v_readfirstlane_b32 s20, v248')
        a(f's_xor_b32 s20, s20, {sr}')
        a('s_cmp_lg_u32 s20, 0x3fff')
        a(f's_cselect_b32 s20, 0, {sr}')
        a(f's_mov_b32 {sr}, 0')
        a('s_cmp_eq_u32 s20, 0')
        a(f's_cbranch_scc1 {P}')
        a(f's_lshl_b32 s21, {0x10000 if mat == "A" else 1}, s17')
        a('v_mov_b32 v248, s21')
        a(f's_mov_b32 s20, {PFL + 4096}')
        a('s_mov_b64 exec, 1')
        a(f'buffer_atomic_or v248, v252, {SRD}, s20 offen')
        a('s_mov_b64 exec, -1')
        a.label(P)
    def role():
        a('v_readfirstlane_b32 s91, v249')
        uniform(a, 's91')
        a('s_and_b32 s91, s91, 0xffff')
        a('s_cmp_lt_u32 s91, 32')
        a('s_cbranch_scc1 ch_role2')
        a('s_branch wp_all')
    prep2.pst(a)
    a(f's_sub_u32 s35, s3, {XCD_SEL}')
    a('s_and_b32 s35, s35, 7')
    a('s_lshr_b32 s36, s2, 3')
    a('s_mul_i32 s33, s35, 28')
    a('s_add_u32 s33, s33, s36')
    a('s_mov_b32 s97, 0')
    a('s_mov_b32 s96, 0')
    a('s_mov_b32 s37, 0\ns_mov_b32 s38, 0')
    a('s_mov_b32 s39, 0xffff0000')
    lanes(a)
    prep2.consts(a)
    a('s_cmp_lt_u32 s36, 28')
    a('s_cbranch_scc1 wp_B')
    a('s_cmp_eq_u32 s35, 0')
    a('s_cbranch_scc1 wp_ini')
    a('s_lshl_b32 s33, s35, 2')
    a('s_add_u32 s33, s33, s36')
    a('s_sub_u32 s33, s33, 32')
    prep2.decode(a, 's33')
    a('s_branch wp_A0')
    a.label('wp_ini')
    a('v_mov_b32 v4, 1')
    a(f'v_mov_b32 v5, {D_CLAIM}')
    wg_atomic(a, 'wp_ic', 's33')
    lanes(a)
    a(f's_cmp_ge_u32 s33, {NINIT}')
    a('s_cbranch_scc1 wp_ini2')
    init_job(a, 'wp_ij', 's33')
    a.label('wp_ini2')
    a('s_cmp_lg_u32 s97, 0')
    a('s_cbranch_scc1 wp_all')
    a(f's_cmp_lg_u32 s3, {XCD_SEL}')
    a('s_cbranch_scc1 wp_all')
    role()
    a.label('wp_B')
    prep2.decode(a, 's33')
    prep2.touch(a, 'B', 253)
    prep2.xunit_load(a, 's33')
    prep2.issue(a, 'B')
    a('s_cmp_eq_u32 s35, 0')
    a('s_cselect_b32 s34, 1, s97')
    if not TA_LATE: prep2.touch(a, 'A', 253, skip='s34')
    prep2.compute(a, 'wpb', 'B', 0 if TA_LATE else 1, pre_epi=ldi, early=prep2.xunit_store())
    evlog(a, 9010)
    a('s_cmp_lg_u32 s34, 0')
    a('s_cbranch_scc1 wp_B2')
    if TA_LATE: prep2.touch(a, 'A', 253)
    def hook(n):
        a(f's_waitcnt vmcnt({n + TA_LATE})')
        flag('wp_f1', 'B')
        prep2.pst(a)
    prep2.issue(a, 'A', hook, FLAG_AT)
    a('s_branch wp_A')
    a.label('wp_B2')
    a('s_waitcnt vmcnt(0)')
    flag('wp_f2', 'B')
    a('s_waitcnt vmcnt(0)')
    flag2('wp_g2', 'B')
    prep2.pst(a, 4)
    prep2.pst_flush(a)
    a('s_cmp_lg_u32 s97, 0')
    a('s_cbranch_scc1 wp_rep')
    a('s_branch wp_ini2')
    a.label('wp_A0')
    prep2.issue(a, 'A')
    a.label('wp_A')
    prep2.compute(a, 'wpa', 'A', 0, pre_epi=ldi + [f'buffer_load_dword v253, v252, {DBG}, 0 offen sc1'], early=[lambda: flag2('wp_g1', 'B')])
    a('s_waitcnt vmcnt(0)')
    flag('wp_f3', 'A')
    prep2.pst(a)
    prep2.pst_flush(a)
    evlog(a, 9011)
    a('s_cmp_lg_u32 s97, 0')
    a('s_cbranch_scc1 wp_all')
    a('v_readfirstlane_b32 s20, v255')
    a('v_readfirstlane_b32 s21, v253')
    a('s_and_b32 s21, s21, 0xffe0')
    a('s_cselect_b32 s96, s20, 0')
    a('s_cmp_eq_u32 s96, 0')
    a('s_cbranch_scc1 wp_all')
    a('v_mov_b32 v250, 1')
    a(f's_mov_b32 s20, {CNT_OFF + JOBC}')
    a('s_mov_b64 exec, 1')
    a(f'buffer_atomic_add v250, v252, {SRD}, s20 offen sc0')
    a('s_mov_b64 exec, -1')
    a.label('wp_all')
    a('v_mov_b32 v252, 0x40000000')
    a('v_cmp_eq_u32 vcc, 0, v0')
    a('v_cndmask_b32 v252, v252, v0, vcc')
    a('s_mov_b32 s34, 0')
    a('s_cmp_lg_u32 s16, 0')
    a('s_cbranch_scc1 wp_w2')
    a(f's_mov_b32 s24, {PFL + 4096}')
    a(f'buffer_load_dword v66, off, {SRD}, s24 sc1')
    a('s_waitcnt vmcnt(0)')
    flag2('wp_g3', 'A')
    a('s_cmp_lg_u32 s96, 0')
    a('s_cbranch_scc1 wp_v2')
    poll(a, 'wp_v', [f'buffer_load_dwordx2 v[64:65], off, {DBG}, 0 sc1', f'buffer_load_dword v66, off, {DBG}, 0 offset:{D_R2} sc1'],
         ['v_and_b32 v68, 0xffe0, v64', 'v_min_u32 v68, v68, v66', 'v_cmp_ne_u32 vcc, 1, v68'], sleep=16, lim=REP_WAIT // 2, fail='wp_w1')
    a(f'buffer_load_dword v66, off, {SRD}, s24 sc1')
    a('s_waitcnt vmcnt(0)')
    a.label('wp_v2')
    a('v_mov_b32 v64, 32')
    a(f'v_mov_b32 v65, {NINIT}')
    a('v_or_b32 v66, s39, v66')
    a('v_cmp_ne_u32 vcc, -1, v66')
    a('s_cbranch_vccz wp_w2')
    a('s_cmp_eq_u32 s97, 2')
    a('s_cbranch_scc1 wp_w1')
    poll(a, 'wp_w', [f'buffer_load_dword v66, off, {SRD}, s24 sc1'], ['v_or_b32 v66, s39, v66', 'v_cmp_ne_u32 vcc, -1, v66'], sleep=8, lim=REP_WAIT, fail='wp_w1')
    a('s_branch wp_w2')
    a.label('wp_w1')
    a('v_readfirstlane_b32 s20, v64')
    a('v_readfirstlane_b32 s21, v65')
    a('s_and_b32 s20, s20, 0xffff')
    a('s_cmp_lt_u32 s20, 32')
    a('s_cselect_b32 s34, 2, 1')
    a(f's_cmp_lt_u32 s21, {NINIT}')
    a('s_cselect_b32 s34, 4, s34')
    a('s_add_u32 s32, s32, 1')
    a('s_cmp_lt_u32 s32, 4000')
    a('s_cselect_b32 s34, s34, 3')
    a.label('wp_w2')
    uniform(a, 's34')
    a('s_cmp_eq_u32 s34, 0')
    a('s_cbranch_scc1 wp_done')
    a('s_mov_b32 s97, 1')
    a('s_cmp_eq_u32 s34, 1')
    a('s_cbranch_scc1 wp_rep')
    a('s_cmp_eq_u32 s34, 3')
    a('s_cbranch_scc1 cA_abort')
    a('s_cmp_eq_u32 s34, 4')
    a('s_cbranch_scc1 wp_ini')
    a('v_mov_b32 v4, 0x10001')
    a('s_branch ch_take')
    a.label('wp_rep')
    a('s_load_dwordx8 s[40:47], s[0:1], 72')
    a('s_load_dwordx4 s[48:51], s[0:1], 56')
    a('s_waitcnt vmcnt(0) lgkmcnt(0)')
    a('v_mov_b32 v4, 1')
    a(f'v_mov_b32 v5, {D_REP}')
    wg_atomic(a, 'wp_el', 's33')
    lanes(a)
    prep2.consts(a)
    a('s_and_b32 s33, s33, 511')
    a('s_and_b32 s20, s33, 255')
    a('s_cmp_ge_u32 s20, 224')
    a('s_cselect_b32 s97, 1, 2')
    a('s_cbranch_scc1 wp_all')
    prep2.decode(a, 's20')
    a('s_lshl_b32 s20, s17, 7')
    a('s_lshr_b32 s21, s33, 8')
    a('s_lshl_b32 s21, s21, 11')
    a('s_add_u32 s20, s20, s21')
    a(f's_add_u32 s20, s20, {PFL}')
    a(f'buffer_load_dword v5, off, {SRD}, s20 sc1')
    a('s_waitcnt vmcnt(0)')
    a('v_readfirstlane_b32 s34, v5')
    uniform(a, 's34')
    a('s_bitcmp1_b32 s34, s19')
    a('s_cbranch_scc1 wp_rep')
    a('s_barrier')
    a('s_cmp_lt_u32 s33, 256')
    a('s_cbranch_scc1 wp_B')
    a('s_branch wp_A0')
    a.label('wp_done')

JOBS = None
NOS4D = 0
NOXT = 0
VPROBE = -1
MG_MODE = 2
MG_SW = 58
FP1 = 0
FP2 = 0
F2_PRIO = 1
B3_AT = 10
F1_W = 1
ZV = 3
ZX = 8
F1_POS = 5
STLB = 1
ENC = 0
def worker_all(a):
    import s4d, gemm, tok, t2srv
    JS = SRD
    JO = CNT_OFF + JOBC
    LD = 'sc1' if FUSE else ''
    N0 = 224 if FUSE else 0
    NJ = 1248
    tok.PEEK = JS
    if FUSE: worker_prep(a)
    a('s_load_dwordx2 s[36:37], s[0:1], 112')
    a('s_waitcnt lgkmcnt(0)')
    a(f's_mov_b32 s92, s36\ns_and_b32 s93, s37, 0xffff\ns_mov_b32 s94, {2048*896*2}\ns_mov_b32 s95, 0x20000')
    def ask():
        lb = a.newlabel('ask')
        a('s_cmp_lg_u32 s16, 0')
        a(f's_cbranch_scc1 {lb}')
        a('v_mov_b32 v250, 1')
        a(f'v_mov_b32 v251, {JO}')
        a('s_mov_b64 exec, 1')
        a(f'buffer_atomic_add v250, v251, {JS}, 0 offen sc0')
        a('s_mov_b64 exec, -1')
        a.label(lb)
    if FUSE:
        a('s_mov_b32 s97, s39')
        a('s_cmp_lg_u32 s96, 0')
        a('s_cbranch_scc1 wk_next')
    else: a('s_mov_b32 s96, 0')
    ask()
    a('s_branch wk_next')
    a.label('wk_loop')
    a('s_waitcnt vmcnt(0) lgkmcnt(0)')
    if not FUSE:
        a('s_cmp_eq_u32 s96, 1')
        a('s_cbranch_scc1 wk_ask')
        a('s_mov_b32 s96, 1')
        staff_check(a, 'wk_ask', 0)
    a.label('wk_ask')
    a('v_readfirstlane_b32 s22, v250')
    a(f's_cmp_ge_u32 s22, {NJ}')
    a('s_cbranch_scc1 wk_next')
    ask()
    a.label('wk_next')
    evlog(a, 9005)
    a('v_mov_b32 v6, 160000')
    a('s_waitcnt vmcnt(0)')
    a('s_barrier')
    a('s_cmp_lg_u32 s16, 0')
    a('s_cbranch_scc1 wk_n1')
    a('s_mov_b64 exec, 1')
    a('ds_write_b32 v6, v250')
    a('s_mov_b64 exec, -1')
    a('s_waitcnt lgkmcnt(0)')
    a.label('wk_n1')
    a('s_barrier')
    a('ds_read_b32 v4, v6')
    a('s_waitcnt lgkmcnt(0)')
    a('v_readfirstlane_b32 s3, v4')
    evlog(a, 's3')
    a(f's_cmp_ge_u32 s3, {NJ}')
    a('s_cbranch_scc1 wk_done')
    a('v_mov_b32 v250, 0')
    a(f'v_mov_b32 v251, {JO}')
    lanes(a)
    if FUSE:
        a('s_cmp_ge_u32 s3, 224')
        a('s_cbranch_scc1 wk_n0')
        a('s_mov_b32 s18, 0')
        a('s_and_b32 s17, s3, 15')
        a('s_add_u32 s17, s17, 16')
        a('s_lshr_b32 s34, s3, 4')
        a('s_add_u32 s35, s34, 1')
        a('s_branch wk_gemm')
        a.label('wk_n0')
        a('s_cmp_eq_u32 s97, 0')
        a('s_cbranch_scc1 wk_n2')
        evlog(a, 9021)
        a('v_mov_b32 v250, s3')
        for x in ('s96, 1', 's97, 1', 's39, 0', 's37, 0', 's38, 0', 's32, 0'): a('s_mov_b32 ' + x)
        a('s_branch wp_all')
        a.label('wk_n2')
    a('s_cmp_ge_u32 s3, 736')
    a('s_cbranch_scc1 wk_tok')
    a('s_cmp_ge_u32 s3, 624')
    a('s_cbranch_scc1 wk_s4d')
    a('s_cmp_ge_u32 s3, 432')
    a('s_cbranch_scc1 wk_full')
    a('s_cmp_ge_u32 s3, 400')
    a('s_cbranch_scc1 wk_srv')
    a('s_and_b32 s17, s3, 15')
    a('s_add_u32 s17, s17, 16')
    a('s_cmp_ge_u32 s3, 336')
    a('s_cbranch_scc1 wk_half')
    a('s_mov_b32 s18, 1')
    a('s_sub_u32 s34, s3, 224')
    a('s_lshr_b32 s34, s34, 4')
    a('s_lshl_b32 s34, s34, 1')
    a('s_add_u32 s35, s34, 2')
    a('s_branch wk_gemm')
    a.label('wk_half')
    a('s_sub_u32 s20, s3, 336')
    a('s_lshr_b32 s18, s20, 5')
    a('s_add_u32 s18, s18, 2')
    a('s_bitcmp1_b32 s20, 4')
    a('s_cselect_b32 s34, 7, 0')
    a('s_add_u32 s35, s34, 7')
    a('s_branch wk_gemm')
    a.label('wk_full')
    a('s_sub_u32 s20, s3, 368')
    a('s_and_b32 s17, s20, 15')
    a('s_lshr_b32 s18, s20, 4')
    a('s_cmp_lt_u32 s18, 8')
    a('s_cselect_b32 s21, 16, 0')
    a('s_add_u32 s17, s17, s21')
    a('s_and_b32 s18, s18, 7')
    a('s_mov_b32 s34, 0')
    a('s_mov_b32 s35, 14')
    a.label('wk_gemm')
    gemm.gemm_body(a, 'wg', 's18', 's17', st='sc1', signal=True, ld=LD)
    a('s_branch wk_loop')
    a.label('wk_srv')
    a('s_and_b32 s18, s3, 15')
    a('s_lshr_b32 s19, s3, 4')
    a('s_and_b32 s19, s19, 1')
    t2srv.t2srv_body(a, 'ws', 's18', 's19', 'cA_abort', ld=LD)
    a('v_mov_b32 v250, 0')
    a('s_branch wk_loop')
    a.label('wk_s4d')
    a('s_sub_u32 s3, s3, 624')
    if not NOS4D:
        s4d.s4d_setup(a)
        s4d.s4d_item(a, 'wk', 's3')
    a('s_branch wk_loop')
    a.label('wk_tok')
    a('s_sub_u32 s3, s3, 736')
    a('s_cmp_ge_u32 s3, 512')
    a('s_cbranch_scc1 wk_done')
    a('s_lshr_b32 s17, s3, 3')
    a('s_and_b32 s18, s3, 3')
    a('s_bitcmp1_b32 s3, 2')
    a('s_cbranch_scc1 wk_toko')
    tok.tokp_body(a, 's17', 's18', ld='sc1', st='sc1', sync='wp', ldx=LD)
    a('s_branch wk_loop')
    a.label('wk_toko')
    tok.toko_body(a, 's17', 's18', ld='sc1', sync='wo', OUT='s[92:95]')
    a('s_branch wk_loop')
    a.label('wp_abort')
    a.label('wo_abort')
    a('s_branch cA_abort')
    a.label('wk_done')
    evlog(a, 9020)

def gen_chain_kernel(name='main_kernel', worker=None):
    a = Asm()
    a.raw(kernel_header(name))
    a('s_cmp_ge_u32 s2, 256')
    a('s_cbranch_scc1 ch_end')
    if DIAG: a('s_memrealtime s[94:95]')
    a('s_load_dwordx2 s[4:5], s[0:1], 120')
    a('s_load_dwordx2 s[6:7], s[0:1], 128')
    a('s_load_dwordx8 s[40:47], s[0:1], 72')
    a('s_load_dwordx4 s[48:51], s[0:1], 56')
    if CODE_PF: code_prefetch(a, name, 'ch_end', 130000, 60)
    a('s_mov_b32 s32, 0')
    a('s_getreg_b32 s3, hwreg(HW_REG_XCC_ID)')
    a('s_and_b32 s3, s3, 15')
    a('v_lshrrev_b32 v1, 6, v0')
    a('v_readfirstlane_b32 s16, v1')
    a('s_waitcnt lgkmcnt(0)')
    a('s_mov_b32 s8, s6\ns_and_b32 s9, s7, 0xffff\ns_mov_b32 s10, 0x10000000\ns_mov_b32 s11, 0x20000')
    a('s_mov_b32 s12, s4\ns_and_b32 s13, s5, 0xffff\ns_mov_b32 s14, 256\ns_mov_b32 s15, 0x20000')
    if EVLOG:
        a('s_lshl_b32 s100, s2, 2')
        a('s_add_u32 s100, s100, s16')
        a('s_lshl_b32 s100, s100, 8')
        a(f's_add_u32 s100, s100, {EV_OFF}')
    evlog(a, 9000)
    if FUSE:
        a('v_mov_b32 v252, 0x40000000')
        a('v_cmp_eq_u32 vcc, 0, v0')
        a('v_cndmask_b32 v252, v252, v0, vcc')
        a(f's_cmp_lg_u32 s3, {XCD_SEL}')
        a('s_cbranch_scc1 ch_worker')
        a('s_cmp_lg_u32 s16, 0')
        a('s_cbranch_scc1 ch_worker')
        a('v_mov_b32 v249, 1')
        a('s_mov_b64 exec, 1')
        a(f'buffer_atomic_add v249, v252, {DBG}, 0 offen sc0')
        a('s_mov_b64 exec, -1')
        a('s_branch ch_worker')
    a(f's_cmp_lg_u32 s3, {XCD_SEL}')
    a('s_cbranch_scc1 ch_worker')
    a('v_mov_b32 v4, 1')
    a('s_mov_b32 s18, 0')
    a.label('ch_take')
    a('v_mov_b32 v5, 0')
    wg_atomic(a, 'ch_el', 's17')
    a('s_and_b32 s17, s17, 0xffff')
    a('s_cmp_lt_u32 s17, 32')
    a('s_cbranch_scc1 ch_role')
    if FUSE:
        lanes(a)
        a('s_branch wp_all')
    a('s_cmp_eq_u32 s18, 0')
    a('s_cbranch_scc1 ch_worker')
    a('s_branch ch_end')
    a.label('ch_role')
    if FUSE:
        a('s_mov_b32 s91, s17')
        a.label('ch_role2')
        a('s_mov_b32 s17, s91')
        evlog(a, 9001)
    lane_consts(a)
    a('s_mov_b32 s19, 0')
    a('s_mov_b32 s18, 1')
    a(f's_mov_b32 s20, {EXCH_OFF}')
    a(f's_mov_b32 s21, {EXCH_OFF + EXCH_B}')
    a(f's_mov_b32 s23, {EXCH_OFF + 4096}')
    a('s_lshr_b32 s89, s17, 4')
    a('s_lshl_b32 s89, s89, 2')
    a('s_add_u32 s89, s89, s16')
    a('s_and_b32 s17, s17, 15')
    for p in range(8):
        a(f's_cmp_eq_u32 s89, {p}')
        a(f's_cbranch_scc1 ch_init{p}')
    a('s_branch ch_end')
    for p in range(8):
        a.label(f'ch_init{p}')
        if p < 4: init_score(a, p)
        else: init_value(a, p - 4)
        if p == 6 or (p == 3 and SC_TOUCH): vo_wait0(a, f'ch_vw{p}')
        a('s_mov_b32 s30, 0')
        a('v_mov_b32 v8, 0')
        a.label(f'ch_md{p}')
        a(f'buffer_load_dword v9, v8, {DBG}, 0 offen sc1')
        a('s_waitcnt vmcnt(0) lgkmcnt(0)')
        a('v_readfirstlane_b32 s22, v9')
        a('s_and_b32 s31, s22, 0xffff')
        a('s_cmp_ge_u32 s31, 32')
        a(f's_cbranch_scc1 ch_go{p}')
        a('s_sleep 2')
        a('s_add_u32 s30, s30, 1')
        a(f's_cmp_lt_u32 s30, {SPIN_LIMIT*8}')
        a(f's_cbranch_scc1 ch_md{p}')
        a('s_branch ch_end')
        a.label(f'ch_go{p}')
        evlog(a, 9003)
        if EVLOG or HDBG: a('v_mov_b32 v36, 0\nv_mov_b32 v37, 0')
        if DIAG: a('s_memtime s[90:91]')
        a('s_mov_b32 s31, 0')
        a('s_lshr_b32 s22, s22, 16')
        a('s_cmp_lg_u32 s22, 0')
        role = 'sc' if p < 4 else 'va'
        a(f's_cbranch_scc1 cB_{role}{p & 3}_loop')
        a(f's_branch cA_{role}{p & 3}_loop')
    for tag, st in (('cA', ''), ('cB', 'sc1')):
        for w in range(4): gen_score(a, w, st, tag)
        for w in range(4): gen_value(a, w, st, tag)
        a.label(f'{tag}_abort')
        a('v_mov_b32 v4, 0xdead')
        a('v_mov_b32 v5, 16')
        a(f'buffer_store_dword v4, v5, {DBG}, 0 offen')
        a('s_branch ch_end')
        a.label(f'{tag}_done')
        evlog(a, 9004)
        if DIAG:
            a('s_memtime s[60:61]')
            a('s_waitcnt lgkmcnt(0)')
            a('s_sub_u32 s60, s60, s90')
            a('v_mov_b32 v4, s60')
            a('s_cmp_eq_u32 s89, 3')
            a('s_cselect_b32 s22, 8, 0x1000')
            a('v_mov_b32 v5, s22')
            a(f'buffer_store_dword v4, v5, {DBG}, 0 offen')
            a('s_memrealtime s[60:61]')
            a('s_sub_u32 s86, s86, s94')
            a('s_waitcnt lgkmcnt(0)')
            a('s_sub_u32 s60, s60, s94')
            a('v_mov_b32 v6, s86')
            a('v_mov_b32 v7, s60')
            a(f'buffer_store_dwordx2 v[6:7], v5, {DBG}, 0 offen offset:16')
            a('s_cmp_eq_u32 s31, 0')
            a(f's_cbranch_scc1 {tag}_dz')
            a('s_mov_b64 exec, 1')
            for k in range(4):
                a(f's_bfe_u32 s22, s31, {(8 << 16) | (8 * k)}')
                a(f'v_mov_b32 v{4+k}, s22')
                a(f'v_mov_b32 v10, {32 + 4*k}')
                a(f'buffer_atomic_add v{4+k}, v10, {DBG}, 0 offen')
                a.nop(2)
            a('s_mov_b64 exec, -1')
            a.label(f'{tag}_dz')
        if ENC:
            a('s_cmp_lg_u32 s89, 3')
            a('s_cbranch_scc1 ch_end')
            a('s_cmp_lg_u32 s17, 5')
            a('s_cbranch_scc1 ch_end')
            a('s_add_u32 s62, s94, 20000')
            if ENC == 2: a('s_add_u32 s62, s62, s86')
            if ENC == 3: a('s_add_u32 s62, s62, s60')
            a.label(f'{tag}_enc')
            a('s_memrealtime s[64:65]')
            a('s_waitcnt lgkmcnt(0)')
            a('s_sub_u32 s64, s64, s62')
            a('s_cmp_lt_i32 s64, 0')
            a(f's_cbranch_scc1 {tag}_enc')
        stamp_calib(a, f'{tag}_cal')
        a('s_branch ch_end')
    a.label('ch_worker')
    worker_all(a)
    a.label('ch_end')
    a('s_endpgm')
    return a
```

```python
from asmlib import *
from layout import *
WS = 's[8:11]'
PB = 28 * KB

def gemm_body(a, P, rb_s, cg_s, st='', signal=False, ld=''):
    a(f's_lshl_b32 s20, {rb_s}, 4')
    a('s_lshl_b32 s21, s16, 2')
    a('s_add_u32 s20, s20, s21')
    a(f's_mul_i32 s21, s20, {14*KB}')
    a(f's_add_u32 s21, s21, {XF_OFF}')
    for f in range(56):
        if f % 4 == 0: a(f's_add_u32 s22, s21, {f*1024}')
        a(f'buffer_load_dwordx4 a[{4*f}:{4*f+3}], v2, {WS}, s22 offen offset:{(f & 3)*1024} {ld}')
    a('s_waitcnt vmcnt(40)')
    a(f's_mul_i32 s23, {cg_s}, {CUW_B}')
    a('s_and_b32 s22, s16, 1')
    a('s_mul_i32 s22, s22, 7168')
    a('s_add_u32 s23, s23, s22')
    a(f's_add_u32 s23, s23, {WF_A}')
    a('s_lshr_b32 s22, s16, 1')
    a(f's_mul_i32 s22, s22, {TILE_B}')
    a('s_add_u32 s23, s23, s22')
    a('s_mul_i32 s27, s16, 7168')
    a('s_lshr_b32 s28, s20, 1')
    a(f's_cmp_lt_u32 {cg_s}, 16')
    a(f's_cbranch_scc0 {P}_vo')
    for path in ('f', 'vo'):
        isF = path == 'f'
        L = lambda n: f'{P}_{path}_{n}'
        if not isF: a.label(f'{P}_vo')
        if isF: a('s_add_u32 s23, s23, s22')
        def dma(jreg, bufreg):
            if isF:
                a(f's_lshr_b32 s24, {jreg}, 1')
                a('s_lshl_b32 s24, s24, 2')
                a(f's_and_b32 s25, {jreg}, 1')
                a('s_add_u32 s24, s24, s25')
            else:
                a(f's_lshl_b32 s24, {jreg}, 1')
            a(f's_mul_i32 s24, s24, {TILE_B}')
            a('s_add_u32 s24, s24, s23')
            a(f's_add_u32 m0, {bufreg}, s27')
            for f in range(7):
                if f == 4:
                    a('s_add_u32 m0, m0, 4096')
                    a('s_add_u32 s24, s24, 4096')
                a(f'buffer_load_dwordx4 v2, {WS}, s24 offen offset:{(f & 3)*1024} {ld} lds')
        if isF:
            a('s_lshl_b32 s29, s28, 4')
            a(f's_add_u32 s29, s29, {cg_s}')
            a(f's_mul_i32 s29, s29, {GSH_B}')
            a(f's_add_u32 s29, s29, {F_OFF}')
        else:
            a(f's_sub_u32 s29, {cg_s}, 16')
            a(f's_mul_i32 s29, s29, {VO_SV}')
            a(f's_mul_i32 s24, s28, {VO_SS}')
            a('s_add_u32 s29, s29, s24')
            a(f's_add_u32 s29, s29, {VO_OFF}')
            a('v_lshlrev_b32 v6, 4, v3')
            a('v_mul_u32_u24 v7, 12, v3')
            a('v_add_u32 v7, 48, v7')
        a('s_mov_b32 s31, 0')
        dma('s34', 's31')
        a('s_sub_u32 s36, s35, 1'); a('s_add_u32 s30, s34, 1'); a('s_min_u32 s30, s30, s36'); a(f's_mov_b32 s31, {PB}')
        dma('s30', 's31')
        a('s_mov_b32 s19, s34')
        a('s_mov_b32 s32, 0')
        a(f's_mov_b32 s33, {2*PB}')
        a('s_waitcnt vmcnt(7)')
        a(f's_branch {L("in")}')
        a.label(L('loop'))
        a('s_waitcnt vmcnt(11)')
        a.label(L('in'))
        a('s_barrier')
        a('s_add_u32 s30, s19, 2')
        a('s_min_u32 s30, s30, s36')
        dma('s30', 's33')
        a('v_add_u32 v5, s32, v2')
        FR = 8; NF = 8; ACC = 40
        order = [(kk, tau) for kk in range(14) for tau in range(2)]
        def rd(i):
            kk, tau = order[i]; r = FR + 4 * (i % NF)
            a(f'ds_read_b128 v[{r}:{r+3}], v5 offset:{(tau*14 + kk)*1024}')
        PF = 6
        for i in range(PF): rd(i)
        for i, (kk, tau) in enumerate(order):
            if i + PF < 28: rd(i + PF)
            a(f's_waitcnt lgkmcnt({min(PF, 27 - i)})')
            r = FR + 4 * (i % NF)
            for j in range(4):
                d = ACC + 16 * tau + 4 * j; x = (j * 14 + kk) * 4
                c = '0' if kk == 0 else f'v[{d}:{d+3}]'
                if isF: a(f'v_mfma_f32_16x16x32_bf16 v[{d}:{d+3}], v[{r}:{r+3}], a[{x}:{x+3}], {c}')
                else: a(f'v_mfma_f32_16x16x32_bf16 v[{d}:{d+3}], a[{x}:{x+3}], v[{r}:{r+3}], {c}')
        O = 72
        if isF:
            a('s_lshl_b32 s24, s19, 10')
            a('s_add_u32 s24, s24, s29')
            for j in range(4):
                o = O + 4 * j
                for tau in range(2):
                    d = ACC + 16 * tau + 4 * j
                    a(f'v_cvt_pk_bf16_f32 v{o+2*tau}, v{d}, v{d+1}')
                    a(f'v_cvt_pk_bf16_f32 v{o+2*tau+1}, v{d+2}, v{d+3}')
                a(f's_add_u32 s25, s24, {(j >> 1) * 16 * GSH_B + (j & 1) * 14 * 1024}')
                a(f'buffer_store_dwordx4 v[{o}:{o+3}], v2, {WS}, s25 offen {st}')
        else:
            a(f's_add_u32 s25, s29, {VO_SS}')
            for tau in range(2):
                a('s_lshl_b32 s24, s19, 5')
                a(f's_add_u32 s24, s24, {16*tau}')
                a('v_add_u32 v88, s24, v4')
                a('v_mul_u32_u24 v89, 2341, v88')
                a('v_lshrrev_b32 v89, 16, v89')
                a('v_mul_u32_u24 v92, 28, v89')
                a('v_sub_u32 v92, v88, v92')
                a('v_cmp_gt_u32 vcc, 16, v92')
                a('v_mul_u32_u24 v89, 84, v89')
                a('v_cndmask_b32 v92, v7, v6, vcc')
                a('v_add3_u32 v88, v88, v89, v92')
                a(f'v_lshlrev_b32 v{90+tau}, 4, v88')
                for sg in range(2):
                    o = O + 8 * tau + 4 * sg
                    d = ACC + 16 * tau + 8 * sg
                    for c in range(4): a(f'v_cvt_pk_bf16_f32 v{o+c}, v{d+c}, v{d+4+c}')
                    a(f'buffer_store_dwordx4 v[{o}:{o+3}], v{90+tau}, {WS}, {"s25" if sg else "s29"} offen {st}')
        a('s_mov_b32 s33, s32')
        a(f's_add_u32 s32, s32, {PB}')
        a(f's_cmp_eq_u32 s32, {3*PB}')
        a('s_cselect_b32 s32, 0, s32')
        a('s_add_u32 s19, s19, 1')
        a('s_cmp_lt_u32 s19, s35')
        a(f's_cbranch_scc1 {L("loop")}')
        a(f's_branch {P}_done')
    a.label(f'{P}_done')
    if signal:
        a(f's_lshl_b32 s20, {rb_s}, 4')
        a(f's_and_b32 s21, {cg_s}, 15')
        a('s_add_u32 s20, s20, s21')
        a('s_lshl_b32 s20, s20, 7')
        a(f's_cmp_lt_u32 {cg_s}, 16')
        a(f's_cselect_b32 s21, {FC}, {VOC}')
        a('s_add_u32 s20, s20, s21')
        a(f's_add_u32 s20, s20, {CNT_OFF}')
        a('s_sub_u32 s21, s35, s34')
        a('s_lshl_b32 s21, s21, 2')
        a('v_mov_b32 v5, s21')
        a('v_mov_b32 v6, 0')
        a('s_waitcnt vmcnt(0)')
        a('s_barrier')
        a('s_cmp_lg_u32 s16, 0')
        a(f's_cbranch_scc1 {P}_sg')
        a('s_mov_b64 exec, 1')
        a(f'buffer_atomic_add v5, v6, {WS}, s20 offen')
        a('s_mov_b64 exec, -1')
        a.label(f'{P}_sg')

def gen_gemm(name='gemm_kernel'):
    a = Asm(); a.raw(kernel_header(name))
    a('s_cmp_ge_u32 s2, 256')
    a('s_cbranch_scc1 gm_end')
    a('s_load_dwordx2 s[6:7], s[0:1], 128')
    a('v_lshrrev_b32 v1, 6, v0')
    a('v_readfirstlane_b32 s16, v1')
    a('v_and_b32 v1, 63, v0')
    a('v_lshlrev_b32 v2, 4, v1')
    a('v_lshrrev_b32 v3, 4, v1')
    a('v_and_b32 v4, 15, v1')
    a('s_waitcnt lgkmcnt(0)')
    a('s_mov_b32 s8, s6\ns_and_b32 s9, s7, 0xffff\ns_mov_b32 s10, 0x10000000\ns_mov_b32 s11, 0x20000')
    a('s_and_b32 s17, s2, 7')
    a('s_lshl_b32 s17, s17, 2')
    a('s_lshr_b32 s18, s2, 6')
    a('s_add_u32 s17, s17, s18')
    a('s_lshr_b32 s18, s2, 3')
    a('s_and_b32 s18, s18, 7')
    a('s_mov_b32 s34, 0\ns_mov_b32 s35, 14')
    gemm_body(a, 'gm', 's18', 's17')
    a.label('gm_end')
    a('s_endpgm')
    return a

if __name__ == '__main__':
    import sys
    a = gen_gemm()
    out = ['; @launch kernel=gemm_kernel grid=(256,1,1) block=(256,1,1) lds=86016',
           '.amdgcn_target "amdgcn-amd-amdhsa--gfx950"', '.text', a.text(), '.section .rodata,"a"', kernel_desc('gemm_kernel', 352, 128)]
    open(sys.argv[1], 'w').write('\n'.join(out) + '\n')
    print('instructions', a.count)
```

```python
import numpy as np
KB = 1024
UNIT = 2048
TILE_B = 7 * UNIT
CUW_B = 28 * TILE_B
WF_A = 0
WF_B = WF_A + 16 * CUW_B
G_OFF = WF_B + 16 * CUW_B
GSH_B = 28 * KB
VO_OFF = G_OFF + 64 * 16 * GSH_B
import os
VOL = int(os.environ.get('VOL', '2'))
VO_SV, VO_SS = [(64 * GSH_B, GSH_B), (65 * GSH_B, GSH_B), (GSH_B, 16 * GSH_B)][VOL]
XF_OFF = VO_OFF + 65 * 16 * GSH_B
XM_OFF = XF_OFF + 128 * 14 * KB
EXCH_OFF = XM_OFF + 128 * 14 * KB
EXCH_B = 17 * KB + 256
MEMX = 0
PM = 7 * KB
PX = 9 * KB
F1 = 17 * KB
F2 = 17 * KB + 128
EXCH_END = EXCH_OFF + 66 * EXCH_B
T2_OFF = (EXCH_END + 4095) // 4096 * 4096
PT_OFF = T2_OFF + 65 * 16 * 8 * KB
PT_B = 20 * KB
KS_OFF = PT_OFF + 128 * PT_B
MEMG_OFF = KS_OFF
CNT_OFF = MEMG_OFF + 64 * 7 * KB
VOC = 0; FC = 16 * KB; PTC = 32 * KB; T2F = 40 * KB; AC = 56 * KB + 512; JOBC = AC + 6144; CNT_B = AC + 8192
PFL = CNT_OFF + AC
F_OFF = G_OFF
POISON = 0xFFFFFFFF

def memcol(ks, gA, half, s):
    return 64 * ks + 16 * gA + 4 * (s >> 1) + 2 * half + (s & 1)
def acol(kappa, q, n):
    g, r = n >> 2, n & 3
    return memcol(kappa, g, q & 1, 4 * (q >> 1) + r)
def vcol(v, cl):
    return 16 * v + cl if cl < 16 else 256 + 12 * v + cl - 16
def tokslot(g, s):
    return 16 * (s & 1) + 4 * g + (s >> 1)

def f2bf_bits(f):
    u = np.ascontiguousarray(f, dtype=np.float32).view(np.uint32)
    return ((u + 0x7FFF + ((u >> 16) & 1)) >> 16).astype(np.uint16)

def build_wfrag(W, ncols):
    out = np.zeros((28, 7, 2, 64, 8), np.uint16)
    lane = np.arange(64); g = lane >> 4; n = lane & 15
    for t in range(28):
        cols = np.asarray(ncols[t])[n]
        for ks in range(7):
            for hb in range(2):
                k = 64 * ks + 32 * hb + 8 * g[:, None] + np.arange(8)[None, :]
                out[t, ks, hb] = W[k, cols[:, None]]
    return out
def build_WFA(ATb):
    ncols = [[acol(t >> 2, t & 3, n) for n in range(16)] for t in range(28)]
    return np.stack([build_wfrag(ATb[h], ncols) for h in range(16)])
def build_WFB(Bb):
    Ball = np.concatenate([Bb[h] for h in range(16)], 1)
    res = []
    for v in range(16):
        ncols = [[((16 * t + n) // 28) * 448 + vcol(v, (16 * t + n) % 28) for n in range(16)] for t in range(28)]
        res.append(build_wfrag(Ball, ncols))
    return np.stack(res)
_Xcols = np.array([[[[memcol(ks, g, half, s) for s in range(8)] for g in range(4)] for half in range(2)] for ks in range(7)])
def build_M_order(rows):
    R = rows.shape[0] // 16
    r3 = rows.reshape(R, 16, 448)
    o = r3[:, :, _Xcols]
    return np.ascontiguousarray(o.transpose(0, 2, 3, 4, 1, 5)).reshape(R, 7, 2, 64, 8)
def build_G(Gb):
    o = np.stack([build_M_order(Gb[h]) for h in range(16)])
    o = o.reshape(16, 64, 2, 7, 2, 64, 8).transpose(1, 0, 2, 3, 4, 5, 6)
    return np.ascontiguousarray(o)
def build_VO(VOb):
    ts = np.array([[tokslot(g, s) for s in range(8)] for g in range(4)])
    vc = np.array([[vcol(v, cl) for cl in range(28)] for v in range(16)])
    V = VOb.reshape(16, 64, 32, 448)
    o = V[:, :, ts, :]
    o = o[..., vc]
    return np.ascontiguousarray(o.transpose(4, 1, 0, 2, 5, 3))
def build_xfrag(xb):
    x4 = xb.reshape(128, 16, 14, 4, 8)
    return np.ascontiguousarray(x4.transpose(0, 2, 3, 1, 4)).reshape(128, 14, 64, 8)
def build_memx(memb):
    o = memb[:, _Xcols]
    return np.ascontiguousarray(o.transpose(1, 3, 2, 0, 4)).reshape(7, 64, 8)
def decode_memx(mx):
    o = mx.reshape(7, 4, 2, 8, 8)
    res = np.zeros((8, 448), np.uint16)
    for ks in range(7):
        for g in range(4):
            for half in range(2):
                res[:, _Xcols[ks, half, g]] = o[ks, g, half]
    return res
if __name__ == "__main__":
    print("EXCH_OFF", EXCH_OFF, "END", EXCH_END, EXCH_END / 2**20)
    assert sorted(vcol(v, cl) for v in range(16) for cl in range(28)) == list(range(448))
    assert sorted(acol(k, q, n) for k in range(7) for q in range(4) for n in range(16)) == list(range(448))
    m = np.arange(8 * 448).reshape(8, 448).astype(np.uint16)
    assert (decode_memx(build_memx(m)) == m).all()
    print("T2_OFF", T2_OFF, "PT_OFF", PT_OFF, "KS_OFF", KS_OFF, KS_OFF / 2**20)
```

```python
from asmlib import *
from layout import *
WS = 's[8:11]'
PEEK = WS
def common(a, endl):
    a('s_cmp_ge_u32 s2, 256')
    a(f's_cbranch_scc1 {endl}')
    a('s_load_dwordx2 s[6:7], s[0:1], 128')
    a('s_load_dwordx2 s[4:5], s[0:1], 112')
    a('v_lshrrev_b32 v1, 6, v0')
    a('v_readfirstlane_b32 s16, v1')
    a('v_and_b32 v1, 63, v0')
    a('v_lshlrev_b32 v2, 4, v1')
    a('v_lshrrev_b32 v3, 4, v1')
    a('v_and_b32 v4, 15, v1')
    a('s_waitcnt lgkmcnt(0)')
    a('s_mov_b32 s8, s6\ns_and_b32 s9, s7, 0xffff\ns_mov_b32 s10, 0x10000000\ns_mov_b32 s11, 0x20000')
    a(f's_mov_b32 s12, s4\ns_and_b32 s13, s5, 0xffff\ns_mov_b32 s14, {2048*896*2}\ns_mov_b32 s15, 0x20000')

WAIT_LIMIT = 2000000
SLEEP = 4
LONG = 127
NEAR = 56
FULLPOLL = 64
def backoff(a, P, sleep):
    a(f's_sleep {sleep}')
    a(f's_cmp_ge_u32 s17, {NEAR}')
    a(f's_cbranch_scc1 {P}_bo')
    a(f's_sleep {LONG}')
    a.label(P + '_bo')
def wait_eq(a, P, soff, target, abort, sleep=None, four=False):
    sleep = sleep or SLEEP
    if four: a('v_lshlrev_b32 v60, 2, v3')
    else: a('v_mov_b32 v60, 0')
    a('s_mov_b32 s30, 0')
    a.label(P)
    a(f'buffer_load_dword v61, v60, {WS}, {soff} offen sc1')
    a('s_waitcnt vmcnt(0)')
    a(f'v_cmp_ne_u32 vcc, {target}, v61')
    a(f's_cbranch_vccz {P}_ok')
    backoff(a, P, sleep)
    a('s_add_u32 s30, s30, 1')
    a(f's_cmp_lt_u32 s30, {WAIT_LIMIT}')
    a(f's_cbranch_scc1 {P}')
    a(f's_branch {abort}')
    a.label(P + '_ok')

TOKD = 0
OST = ''
def load_lin(a, base_s, n, areg, flags='', thr=0):
    for f in range(n):
        if thr and f >= thr and f % 2 == 0: a(f's_waitcnt vmcnt({thr-2})')
        if f % 4 == 0: a(f's_add_u32 s22, {base_s}, {f*1024}')
        a(f'buffer_load_dwordx4 a[{areg+4*f}:{areg+4*f+3}], v2, {WS}, s22 offen offset:{(f & 3)*1024} {flags}')

def tokp_body(a, seg_s, hq_s, ld='', st='', sync=None, ldx=''):
    a(f's_lshl_b32 s20, {hq_s}, 2')
    a('s_add_u32 s20, s20, s16')
    a(f's_lshl_b32 s21, {seg_s}, 4')
    a('s_add_u32 s21, s21, s20')
    a(f's_mul_i32 s21, s21, {GSH_B}')
    a(f's_add_u32 s21, s21, {F_OFF}')
    a(f's_mul_i32 s23, {seg_s}, {28*KB}')
    a(f's_add_u32 s23, s23, {XM_OFF}')
    FA, XA, MA = 0, 112, 224
    if sync:
        a(f's_mul_i32 s24, {seg_s}, {7*KB}')
        a(f's_add_u32 s24, s24, {MEMG_OFF}')
        a(f's_lshr_b32 s25, {seg_s}, 3')
        a('s_lshl_b32 s25, s25, 4')
        a('s_add_u32 s25, s25, s20')
        a('s_lshl_b32 s25, s25, 7')
        a(f's_add_u32 s25, s25, {CNT_OFF + FC}')
        wait_eq(a, sync + '_wf', 's25', 56, sync + '_abort')
    else:
        a(f's_mul_i32 s24, {seg_s}, {EXCH_B}')
        a(f's_add_u32 s24, s24, {EXCH_OFF}')
    load_lin(a, 's21', 28, FA, ld, TOKD)
    load_lin(a, 's23', 28, XA, ldx)
    if not sync: load_lin(a, 's24', 7, MA, ld)
    AX = {(0, 0): 8, (0, 1): 12, (1, 1): 16}
    AM = {(0, 0): 20, (1, 0): 24, (0, 1): 28, (1, 1): 32}
    for r in range(4):
        a(f'v_lshl_add_u32 v5, v3, 2, {r}')
        a(f'v_cmp_le_u32 s[{40+2*r}:{41+2*r}], v5, v4')
    a('v_cmp_gt_u32 s[48:49], 2, v3')
    a('v_mov_b32 v6, 0xff800000')
    a('s_waitcnt vmcnt(0)' if sync else 's_waitcnt vmcnt(7)')
    for f in range(14):
        for (tk, tt), d in AX.items():
            c = '0' if f == 0 else f'v[{d}:{d+3}]'
            xa = XA + 4 * (tk * 14 + f); fa = FA + 4 * (tt * 14 + f)
            a(f'v_mfma_f32_16x16x32_bf16 v[{d}:{d+3}], a[{xa}:{xa+3}], a[{fa}:{fa+3}], {c}')
    MV = 64
    if sync:
        a('s_mul_i32 s22, s20, 448')
        a('v_mov_b32 v62, s22')
        a('s_mov_b32 s30, 0')
        a.label(sync + '_pm')
        a(f's_cmp_ge_u32 s17, {FULLPOLL}')
        a(f's_cbranch_scc1 {sync}_pf')
        a(f'buffer_load_dword v61, v62, {WS}, s24 offen sc1')
        a('s_waitcnt vmcnt(0)')
        a('v_cmp_eq_u32 vcc, -1, v61')
        a(f's_cbranch_vccnz {sync}_pr')
        a.label(sync + '_pf')
        a('s_add_u32 s22, s24, 4096')
        for ks in range(7):
            a(f'buffer_load_dwordx4 v[{MV+4*ks}:{MV+4*ks+3}], v2, {WS}, {"s24" if ks < 4 else "s22"} offen offset:{(ks & 3)*1024} sc1')
        a('s_waitcnt vmcnt(0)')
        a(f'v_max_u32 v61, v{MV}, v{MV+1}')
        for r in range(MV + 2, MV + 28, 2): a(f'v_max3_u32 v61, v61, v{r}, v{r+1}')
        a('v_cmp_eq_u32 vcc, -1, v61')
        a(f's_cbranch_vccz {sync}_pk')
        a.label(sync + '_pr')
        backoff(a, sync + '_pm', SLEEP)
        a('s_add_u32 s30, s30, 1')
        a(f's_cmp_lt_u32 s30, {WAIT_LIMIT}')
        a(f's_cbranch_scc1 {sync}_pm')
        a(f's_branch {sync}_abort')
        a.label(sync + '_pk')
        a(f'buffer_load_dword v250, v251, {PEEK}, 0 offen sc1')
    else:
        a('s_waitcnt vmcnt(0)')
    for ks in range(7):
        for (half, tt), d in AM.items():
            c = '0' if ks == 0 else f'v[{d}:{d+3}]'
            fa = FA + 4 * (tt * 14 + ks * 2 + half)
            mop = f'v[{MV+4*ks}:{MV+4*ks+3}]' if sync else f'a[{MA+4*ks}:{MA+4*ks+3}]'
            a(f'v_mfma_f32_16x16x32_bf16 v[{d}:{d+3}], {mop}, a[{fa}:{fa+3}], {c}')
    a(f's_lshl_b32 s25, {seg_s}, 1')
    a(f's_mul_i32 s25, s25, {PT_B}')
    a(f's_add_u32 s25, s25, {PT_OFF}')
    a('s_lshl_b32 s26, s20, 10')
    a('s_add_u32 s26, s26, s25')
    a(f's_lshl_b32 s27, {hq_s}, 10')
    a('s_add_u32 s27, s27, s25')
    a('s_lshr_b32 s28, s16, 1')
    a('s_lshl_b32 s28, s28, 3')
    a('s_add_u32 s27, s27, s28')
    a(f's_add_u32 s27, s27, {16*KB}')
    a('s_and_b32 s28, s16, 1')
    a('s_cmp_eq_u32 s28, 0')
    a('s_cselect_b32 s50, -1, 0')
    a('s_cselect_b32 s51, 0, -1')
    for tt in range(2):
        xs = []
        for (tk, t2), d in AX.items():
            if t2 != tt: continue
            for r in range(4):
                if tk == tt: a(f'v_cndmask_b32 v{d+r}, v6, v{d+r}, s[{40+2*r}:{41+2*r}]')
                xs.append(d + r)
        z, t = AM[(0, tt)], AM[(1, tt)]
        for r in range(4): a(f'v_cndmask_b32 v{z+r}, v{t+r}, v{z+r}, s[48:49]')
        for r in range(4): a(f'v_mov_b32 v{t+r}, v{z+r}')
        for r in range(4): a(f'v_permlane32_swap_b32 v{z+r}, v{t+r}')
        for r in range(4): a(f'v_add_f32 v{z+r}, v{z+r}, v{t+r}')
        ms = [z + r for r in range(4)]
        al = xs + ms
        mx = 40
        a(f'v_max3_f32 v{mx}, v{al[0]}, v{al[1]}, v{al[2]}')
        rest = al[3:]
        while len(rest) >= 2:
            a(f'v_max3_f32 v{mx}, v{mx}, v{rest[0]}, v{rest[1]}'); rest = rest[2:]
        if rest: a(f'v_max_f32 v{mx}, v{mx}, v{rest[0]}')
        for sw in ('16', '32'):
            a(f'v_mov_b32 v41, v{mx}')
            a(f'v_permlane{sw}_swap_b32 v{mx}, v41')
            a(f'v_max_f32 v{mx}, v{mx}, v41')
        for r in al: a(f'v_sub_f32 v{r}, v{r}, v{mx}')
        for r in al: a(f'v_exp_f32 v{r}, v{r}')
        a(f'v_add_f32 v42, v{ms[0]}, v{ms[1]}')
        a(f'v_add_f32 v43, v{ms[2]}, v{ms[3]}')
        a('v_add_f32 v42, v42, v43')
        a('v_mul_f32 v42, 0.5, v42')
        for r in xs: a(f'v_add_f32 v42, v42, v{r}')
        for sw in ('16', '32'):
            a('v_mov_b32 v41, v42')
            a(f'v_permlane{sw}_swap_b32 v42, v41')
            a('v_add_f32 v42, v42, v41')
        a('v_rcp_f32 v42, v42')
        for r in al: a(f'v_mul_f32 v{r}, v{r}, v42')
        o = 44 + 8 * tt
        for k in range(4): a(f'v_cvt_pk_bf16_f32 v{o+k}, v{xs[k]}, ' + (f'v{xs[4+k]}' if tt else '0'))
        a(f'v_cvt_pk_bf16_f32 v{o+4}, v{ms[0]}, v{ms[1]}')
        a(f'v_cvt_pk_bf16_f32 v{o+5}, v{ms[2]}, v{ms[3]}')
        a(f'buffer_store_dwordx4 v[{o}:{o+3}], v2, {WS}, s26 offen {st}')
        a('s_mov_b64 exec, s[50:51]')
        a(f'buffer_store_dwordx2 v[{o+4}:{o+5}], v2, {WS}, s27 offen {st}')
        a('s_mov_b64 exec, -1')
        if tt == 0:
            a(f's_add_u32 s26, s26, {PT_B}')
            a(f's_add_u32 s27, s27, {PT_B}')
    if sync:
        a(f's_lshl_b32 s25, {seg_s}, 7')
        a(f's_add_u32 s25, s25, {CNT_OFF + PTC}')
        a('v_mov_b32 v5, 1')
        a('v_mov_b32 v6, 0')
        a('s_waitcnt vmcnt(0)')
        a('s_mov_b64 exec, 1')
        a(f'buffer_atomic_add v5, v6, {WS}, s25 offen')
        a('s_mov_b64 exec, -1')

def toko_body(a, seg_s, vq_s, ld='', sync=None, OUT='s[12:15]'):
    a(f's_lshl_b32 s20, {vq_s}, 2')
    a('s_add_u32 s20, s20, s16')
    a('s_mul_i32 s24, s20, 65')
    a(f's_add_u32 s24, s24, {seg_s}')
    a('s_lshl_b32 s24, s24, 13')
    a(f's_add_u32 s24, s24, {T2_OFF + 8*KB}')
    a(f's_mul_i32 s21, s20, {VO_SV}')
    a(f's_mul_i32 s22, {seg_s}, {VO_SS}')
    a('s_add_u32 s21, s21, s22')
    a(f's_add_u32 s21, s21, {VO_OFF}')
    a(f's_lshl_b32 s25, {seg_s}, 1')
    a(f's_mul_i32 s25, s25, {PT_B}')
    a(f's_add_u32 s25, s25, {PT_OFF}')
    a('v_mov_b32 v5, v2')
    a('v_min_u32 v6, 11, v4')
    a('v_mad_u32_u24 v6, v3, 12, v6')
    a('v_lshlrev_b32 v6, 4, v6')
    a('v_add_u32 v6, 1024, v6')
    a('v_lshrrev_b32 v8, 1, v3')
    a('v_lshl_add_u32 v8, v8, 4, v4')
    a('v_lshlrev_b32 v8, 4, v8')
    a('v_and_b32 v9, 1, v3')
    a('v_lshl_add_u32 v7, v9, 3, v8')
    VA, PA = 0, 128
    T2R, PMR = 28, 64
    if sync:
        a(f's_lshr_b32 s26, {seg_s}, 3')
        a('s_lshl_b32 s26, s26, 4')
        a('s_add_u32 s26, s26, s20')
        a('s_lshl_b32 s26, s26, 7')
        a(f's_add_u32 s26, s26, {CNT_OFF + VOC}')
        wait_eq(a, sync + '_wv', 's26', 56, sync + '_abort')
    for h in range(16):
        if TOKD and 2 * h >= TOKD: a(f's_waitcnt vmcnt({TOKD-2})')
        if h % 2 == 0: a(f's_add_u32 s22, s21, {h*1792}')
        for t in range(2):
            r = VA + 8 * h + 4 * t
            a(f'buffer_load_dwordx4 a[{r}:{r+3}], v{5+t}, {WS}, s22 offen offset:{(h & 1)*1792} {ld}')
    if sync:
        a('s_lshl_b32 s26, s20, 6')
        a(f's_add_u32 s26, s26, {seg_s}')
        a('s_lshl_b32 s26, s26, 4')
        a(f's_add_u32 s26, s26, {CNT_OFF + T2F}')
        wait_eq(a, sync + '_wt', 's26', 1, sync + '_abort', four=True)
    for hq in range(4):
        if hq % 2 == 0: a(f's_add_u32 s22, s24, {hq*2048}')
        for t in range(2):
            r = T2R + 8 * hq + 4 * t
            for pc in range(2):
                a(f'buffer_load_dwordx2 v[{r+2*pc}:{r+2*pc+1}], v7, {WS}, s22 offen offset:{(hq & 1)*2048 + t*1024 + pc*512} {ld}')
    if sync:
        a(f's_lshl_b32 s26, {seg_s}, 7')
        a(f's_add_u32 s26, s26, {CNT_OFF + PTC}')
        wait_eq(a, sync + '_wp', 's26', 16, sync + '_abort', sleep=2)
        a(f'buffer_load_dword v250, v251, {PEEK}, 0 offen sc1')
    else:
        a('s_waitcnt vmcnt(16)')
    for h in range(16):
        if h % 4 == 0:
            a(f's_add_u32 s26, s25, {h*1024}')
            a(f's_add_u32 s27, s25, {PT_B + h*1024}')
        for tt in range(2):
            r = PA + 8 * h + 4 * tt
            a(f'buffer_load_dwordx4 a[{r}:{r+3}], v2, {WS}, s{26+tt} offen offset:{(h & 3)*1024} {ld}')
    a(f's_add_u32 s26, s25, {16*KB}')
    a(f's_add_u32 s27, s25, {PT_B + 16*KB}')
    for hq in range(4):
        for tt in range(2):
            r = PMR + 8 * hq + 4 * tt
            a(f'buffer_load_dwordx4 v[{r}:{r+3}], v2, {WS}, s{26+tt} offen offset:{hq*1024} {ld}')
    ACC = 12
    def mm(A_, B_, t, tt, first):
        d = ACC + 8 * t + 4 * tt
        a(f'v_mfma_f32_16x16x32_bf16 v[{d}:{d+3}], {A_}, {B_}, ' + ('0' if first else f'v[{d}:{d+3}]'))
    for h in range(16):
        a(f's_waitcnt vmcnt({(15 - h) * 2 + 8})')
        for t in range(2):
            for tt in range(2):
                mm(f'a[{VA+8*h+4*t}:{VA+8*h+4*t+3}]', f'a[{PA+8*h+4*tt}:{PA+8*h+4*tt+3}]', t, tt, h == 0)
    a('s_waitcnt vmcnt(0)')
    for hq in range(4):
        for t in range(2):
            for tt in range(2):
                mm(f'v[{T2R+8*hq+4*t}:{T2R+8*hq+4*t+3}]', f'v[{PMR+8*hq+4*tt}:{PMR+8*hq+4*tt+3}]', t, tt, False)
    a('v_mul_u32_u24 v9, 1792, v4')
    a('v_lshl_add_u32 v9, v3, 3, v9')
    a('s_lshl_b32 s22, s20, 5')
    a('v_add_u32 v8, s22, v9')
    a('s_mul_i32 s22, s20, 24')
    a('s_add_u32 s22, s22, 512')
    a('v_add_u32 v9, s22, v9')
    a('v_mov_b32 v10, 0x40000000')
    a('v_cmp_eq_u32 vcc, 3, v3')
    a('v_cndmask_b32 v9, v9, v10, vcc')
    a(f's_mul_i32 s26, {seg_s}, {32*1792}')
    a('s_add_u32 s26, s26, 896')
    a(f's_add_u32 s27, s26, {16*1792}')
    for tt in range(2):
        for t_ in range(2):
            d = ACC + 8 * t_ + 4 * tt; o = 96 + 4 * tt + 2 * t_
            a(f'v_cvt_pk_bf16_f32 v{o}, v{d}, v{d+1}')
            a(f'v_cvt_pk_bf16_f32 v{o+1}, v{d+2}, v{d+3}')
            a(f'buffer_store_dwordx2 v[{o}:{o+1}], v{8+t_}, {OUT}, s{26+tt} offen {OST}')

def gen_tok(which):
    name = f'tok{which}_kernel'
    a = Asm(); a.raw(kernel_header(name))
    common(a, f't{which}_end')
    a('s_lshr_b32 s17, s2, 2')
    a('s_and_b32 s18, s2, 3')
    if which == 'p': tokp_body(a, 's17', 's18')
    else: toko_body(a, 's17', 's18')
    a.label(f't{which}_end')
    a('s_endpgm')
    return a
```

```python
import sys, os
for x in sys.argv[2:]:
    if x.startswith('VOL='): os.environ['VOL'] = x[4:]
from asmlib import *
import prep, chain2
import os
HDR = open(os.path.dirname(os.path.abspath(__file__)) + '/hdr.txt').read()
def build(path):
    prep.RING = 1
    ks = [(prep.gen_prep(), 'prep_kernel', 'grid=(256,1,1) block=(256,1,1) lds=163840', (272, 256)),
          (chain2.gen_chain_kernel('main_kernel'), 'main_kernel', 'grid=(256,1,1) block=(256,1,1) lds=163840', (512, 256))]
    if chain2.FUSE: ks = ks[1:]
    out = [HDR.rstrip('\n')]
    for a, n, l, _ in ks: out.append(f'; @launch kernel={n} {l}')
    out += ['.amdgcn_target "amdgcn-amd-amdhsa--gfx950"', '.text']
    for a, n, l, _ in ks: out.append(a.text())
    out.append('.section .rodata,"a"')
    for a, n, l, (v, ac) in ks: out.append(kernel_desc(n, v, ac))
    open(path, 'w').write('\n'.join(out) + '\n')
    print('instructions', sum(a.count for a, *_ in ks))
if __name__ == '__main__':
    for x in sys.argv[2:]:
        k, v = x.split('=')
        if k == 'VOL': continue
        if k in ('PST', 'TOUCH_B'):
            import prep2; setattr(prep2, k, int(v)); continue
        if k in ('TOKD', 'NEAR', 'LONG', 'SLEEP'):
            import tok; setattr(tok, k, int(v)); continue
        if k == 'SRV_SLEEP':
            import t2srv; t2srv.SRV_SLEEP = int(v); continue
        if k in ('LDFL', 'TFL'):
            import prep2; setattr(prep2, k, v); continue
        assert hasattr(chain2, k), k
        setattr(chain2, k, int(v))
    build(sys.argv[1])
```

```python
import sys, os
for x in sys.argv[2:]:
    if x.startswith('VOL='): os.environ['VOL'] = x[4:]
from asmlib import *
import prep, chain2
import os
HDR = open(os.path.dirname(os.path.abspath(__file__)) + '/hdr.txt').read()
def build(path):
    prep.RING = 1
    ks = [(prep.gen_prep(), 'prep_kernel', 'grid=(256,1,1) block=(256,1,1) lds=163840', (272, 256)),
          (chain2.gen_chain_kernel('main_kernel'), 'main_kernel', 'grid=(256,1,1) block=(256,1,1) lds=163840', (512, 256))]
    if chain2.FUSE: ks = ks[1:]
    if os.environ.get('TINY'):
        t = Asm(); t.raw(kernel_header('tiny_kernel')); t('s_endpgm')
        e = (t, 'tiny_kernel', 'grid=(1,1,1) block=(64,1,1) lds=0', (8, 8))
        ks = [e] + ks if os.environ['TINY'] == '1' else ks + [e]
    out = [HDR.rstrip('\n')]
    for a, n, l, _ in ks: out.append(f'; @launch kernel={n} {l}')
    out += ['.amdgcn_target "amdgcn-amd-amdhsa--gfx950"', '.text']
    for a, n, l, _ in ks: out.append(a.text())
    out.append('.section .rodata,"a"')
    for a, n, l, (v, ac) in ks: out.append(kernel_desc(n, v, ac))
    open(path, 'w').write('\n'.join(out) + '\n')
    print('instructions', sum(a.count for a, *_ in ks))
if __name__ == '__main__':
    for x in sys.argv[2:]:
        k, v = x.split('=')
        if k == 'VOL': continue
        if k in ('PST', 'TOUCH_B'):
            import prep2; setattr(prep2, k, int(v)); continue
        if k in ('TOKD', 'NEAR', 'LONG', 'SLEEP', 'FULLPOLL'):
            import tok; setattr(tok, k, int(v)); continue
        if k == 'SRV_SLEEP':
            import t2srv; t2srv.SRV_SLEEP = int(v); continue
        if k == 'OST':
            import tok, s4d; tok.OST = v; s4d.OST = v; continue
        if k in ('LDFL', 'TFL'):
            import prep2; setattr(prep2, k, v); continue
        assert hasattr(chain2, k), k
        setattr(chain2, k, int(v))
    build(sys.argv[1])
```

```python
from asmlib import *
from layout import *

SRD = 's[8:11]'; DBG = 's[12:15]'
SPIN_LIMIT = 400000
NSTEPS = 64
STAMPS = 0
STAMP_STEP = 42
STEPLOG = 0
STAMP_OFF = 100 * 1024 * 1024
NST = 10
POLL_DEPTH = 4
F1_DELAY = 36
F2_POS = 3
FILL_A = 2
FILL_B = 0
DIAG = 0
CODE_PF = 1
SYNC = 1
XCD_SEL = 0
HLP_EARLY = 1
P_MOV = 2
D = 'row_mask:0xf bank_mask:0xf'
XSEG_B = 28 * KB
FLG1 = EXCH_OFF + 2 * EXCH_B
FLG2 = FLG1 + 16 * 128
RING_B = 2 * EXCH_B + 48 * 128
SC_SLEEP = 6
X_EARLY = 0
R1 = 1
R2 = 1
VO_PRE = 5
VO_EVERY = 1
B1_POS = 4
TLB_WARM = 0
WARM = 0
PCHK = 1
NOX = 0
X_POS = 12
X_EVERY = 4
XFL = 'sc1'
TAIL = 0
SC_TOUCH = 0
TOUCH_AHEAD = 1
MG_LATE = 0
P_PRE = 10
F3_POS = 5
F2_DELAY = 4
P3_SLEEP = 3
H3_DELAY = 0
H2_DELAY = 0
X_LATE = 2

def stamp(a, k):
    if STAMPS: a(f's_memtime s[{40+2*k}:{41+2*k}]')
def stamp_flush(a, path, lbl, t):
    if not STAMPS: return
    a(f's_sub_u32 s22, s19, {STAMP_STEP}')
    a('s_cmp_gt_u32 s22, 1')
    a(f's_cbranch_scc1 {lbl}')
    a('s_waitcnt lgkmcnt(0)')
    a('s_lshl_b32 s22, s22, 14')
    a('s_lshl_b32 s63, s17, 9')
    a('s_add_u32 s22, s22, s63')
    a(f's_add_u32 s22, s22, {STAMP_OFF + path * 64}')
    a(f'v_mov_b32 v{t}, 0')
    for k in range(NST):
        a(f'v_mov_b32 v{t+1}, s{40+2*k}')
        a(f'buffer_store_dword v{t+1}, v{t}, {SRD}, s22 offen offset:{4*k}')
        a.nop(1)
    a.label(lbl)
def stamp_calib(a, P):
    if not STAMPS: return
    a('s_memrealtime s[64:65]')
    a('s_waitcnt lgkmcnt(0)')
    a('s_lshr_b32 s68, s64, 10')
    a.label(P)
    a('s_memrealtime s[64:65]')
    a('s_memtime s[66:67]')
    a('s_waitcnt lgkmcnt(0)')
    a('s_lshr_b32 s69, s64, 10')
    a('s_cmp_eq_u32 s68, s69')
    a(f's_cbranch_scc1 {P}')
    a('s_lshl_b32 s22, s17, 9')
    a('s_lshl_b32 s63, s89, 6')
    a('s_add_u32 s22, s22, s63')
    a(f's_add_u32 s22, s22, {STAMP_OFF}')
    a('v_mov_b32 v8, s64\nv_mov_b32 v9, s66\nv_mov_b32 v10, 0')
    a(f'buffer_store_dwordx2 v[8:9], v10, {SRD}, s22 offen offset:56')

EVLOG = 0
EV_OFF = 101 * 1024 * 1024
HDBG = 0
HMAP = {9000: 6, 9010: 7, 9011: 8, 9002: 9, 9003: 10, 9004: 11, 9020: 12, 9021: 13, 9022: 14}
def evlog(a, tag):
    if HDBG and tag in HMAP:
        lb = a.newlabel('hd')
        if tag in (9002, 9003, 9004):
            a('s_cmp_lg_u32 s17, 5')
            a(f's_cbranch_scc1 {lb}')
            a('s_cmp_lg_u32 s89, 3')
        else:
            a('s_cmp_lg_u32 s16, 0')
            a(f's_cbranch_scc1 {lb}')
            a(f's_cmp_lg_u32 s2, {HDBG}')
        a(f's_cbranch_scc1 {lb}')
        a('s_memrealtime s[98:99]')
        a('s_waitcnt lgkmcnt(0)')
        a('v_mov_b32 v37, s98')
        a(f'buffer_store_dword v37, off, {DBG}, 0 offset:{4*HMAP[tag]}')
        a.label(lb)
    if not EVLOG: return
    a('s_memrealtime s[98:99]')
    a('s_waitcnt lgkmcnt(0)')
    a(f'v_mov_b32 v36, {tag}')
    a('v_mov_b32 v37, s98')
    a('s_mov_b64 exec, 1')
    a(f'buffer_store_dwordx2 v[36:37], off, {SRD}, s100')
    a('s_mov_b64 exec, -1')
    a('s_add_u32 s100, s100, 8')

def spin(a, back, abort):
    a('s_add_u32 s30, s30, 1')
    a(f's_cmp_lt_u32 s30, {SPIN_LIMIT}')
    a(f's_cbranch_scc1 {back}')
    a(f's_branch {abort}')

def flagpoll(a, vaddr, tag, regs, lbl, abort, fast=0):
    Dp = POLL_DEPTH
    if fast:
        Dp = fast
        assert Dp % 2 == 0
        ld = lambda i: a(f'buffer_load_dword v{regs+i}, v{vaddr}, {SRD}, 0 offen sc1')
        a('s_mov_b64 s[72:73], -1')
        for i in range(Dp):
            ld(i)
            if i < Dp - 1: a('s_add_u32 s74, s74, 1\ns_add_u32 s74, s74, 1\ns_add_u32 s74, s74, 1')
        a.label(lbl + '_l')
        for i in range(Dp):
            p, q = (70, 72) if i % 2 == 0 else (72, 70)
            a(f's_waitcnt vmcnt({Dp-1})')
            a(f'v_cmp_gt_u32 s[{p}:{p+1}], {tag}, v{regs+i}')
            ld(i)
            a(f's_cmp_eq_u64 s[{q}:{q+1}], 0')
            a(f's_cbranch_scc1 {lbl}_d')
        spin(a, lbl + '_l', abort)
        a.label(lbl + '_d')
        return
    for i in range(Dp):
        a(f'buffer_load_dword v{regs+i}, v{vaddr}, {SRD}, 0 offen sc1')
    a.label(lbl + '_l')
    for i in range(Dp):
        a(f's_waitcnt vmcnt({Dp-1})')
        a(f'v_cmp_gt_u32 vcc, {tag}, v{regs+i}')
        a(f's_cbranch_vccz {lbl}_d')
        a(f'buffer_load_dword v{regs+i}, v{vaddr}, {SRD}, 0 offen sc1')
    spin(a, lbl + '_l', abort)
    a.label(lbl + '_d')

def load_units(a, units, base, tmp_s='s22', fl=''):
    cur = None; n = 0
    for off, reg in units:
        for hb in range(2):
            o = off + hb * 1024
            blk = o // 4096 * 4096
            if blk != cur:
                a(f's_add_u32 {tmp_s}, {base}, {blk}'); cur = blk
            a(f'buffer_load_dwordx4 {ureg(reg + 4 * hb, 4)}, v2, {SRD}, {tmp_s} offen offset:{o - blk} {fl}')
            n += 1
            if n % 32 == 0: a('s_waitcnt vmcnt(24)')

def wreg(ti, ks):
    u = ti * 7 + ks
    return 256 + 8 * u if u < 32 else 120 + 8 * (u - 32)

def lane_consts(a):
    a('v_and_b32 v1, 63, v0')
    a('v_lshlrev_b32 v2, 4, v1')
    a('v_lshrrev_b32 v116, 4, v1')
    a('v_and_b32 v117, 15, v1')
    a('v_mov_b32 v3, 0x4444')
    a('v_mov_b32 v118, 0xeeee')
    a('v_cmp_lt_u32 vcc, 7, v117')
    a('v_cndmask_b32 v3, v3, v118, vcc')

def next_step(a):
    a('s_mov_b32 s19, s18')
    a('s_add_u32 s18, s18, 1')
    a('s_mov_b32 s22, s20')
    a('s_mov_b32 s20, s21')
    a('s_mov_b32 s21, s22')
    a('s_add_u32 s23, s20, 4096')

def gap(a, ops):
    for o in ops:
        if not o.startswith('v_'): a(o)
    for o in ops:
        if o.startswith('v_'): a(o)

def poison_max(a, acc, regs):
    regs = list(regs)
    a(f'v_max3_u32 v{acc}, v{regs[0]}, v{regs[1]}, v{regs[2]}'); regs = regs[3:]
    while len(regs) >= 2:
        a(f'v_max3_u32 v{acc}, v{acc}, v{regs[0]}, v{regs[1]}'); regs = regs[2:]
    if regs: a(f'v_max_u32 v{acc}, v{acc}, v{regs[0]}')

def poison_max16(a, acc, regs):
    regs = list(regs)
    a(f'v_pk_max_u16 v{acc}, v{regs[0]}, v{regs[1]}')
    for r in regs[2:]: a(f'v_pk_max_u16 v{acc}, v{acc}, v{r}')
    a(f'v_lshlrev_b32 v{acc+1}, 16, v{acc}')
    a(f'v_max_u32 v{acc}, v{acc}, v{acc+1}')
    a(f'v_cmp_le_u32 vcc, 0xffff0000, v{acc}')

XP = 0
MP = 4 * KB
MJ = MP + 2304
XB = 8 * KB
def score_tiles(w):
    kb = 4 + (w >> 1); pP = w & 1
    return [(w, 0), (w, 1), (w, 2), (w, 3), (kb, 2 * pP), (kb, 2 * pP + 1), (6, 2 * (1 - pP) + (w >> 1))]
def score_mreg(w):
    kb = 4 + (w >> 1)
    m = {0: 8, 1: 12, 2: 16, 3: 20, 9 - kb: 24}
    if w & 1: m[kb] = 28; m[6] = 32
    else: m[6] = 28; m[kb] = 32
    return m

def gen_score(a, w, st, tag):
    L = lambda n: f'{tag}_sc{w}_{n}'
    ABORT = f'{tag}_abort'
    MR = score_mreg(w)
    ka = w; half6 = w >> 1
    AC = [36, 40, 44, 48, 52, 56, 60 + 2 * half6]
    TMP = 66; SX = 68; BOP2 = 76; XS = [80, 88, 96, 104]
    D0, D1, BOPA = [MR[k] for k in range(4) if k != ka]
    SACC = 52; W = 56
    pb, p6 = (0, 1) if w & 1 else (1, 0)
    def S(ti, ks):
        return f'v_smfmac_f32_16x16x64_bf16 v[{AC[ti]}:{AC[ti]+3}], v[{MR[ks]}:{MR[ks]+3}], {ureg(wreg(ti, ks), 8)}, v3'
    def cvt(dst, src):
        return [f'v_cvt_pk_bf16_f32 v{dst}, v{src}, v{src+1}', f'v_cvt_pk_bf16_f32 v{dst+1}, v{src+2}, v{src+3}']
    def cin(ti, hi):
        r = AC[ti]
        return cvt(r, r) if hi else cvt(r + 2, r)[::-1]
    def T(dst, src): return f'v_mfma_f32_16x16x32_bf16 v[{dst}:{dst+3}], v[{src}:{src+3}], v[4:7], 0'
    def xld(k):
        buf, hb = k >> 1, k & 1; r = XS[buf] + 4 * hb
        return f'buffer_load_dwordx4 v[{r}:{r+3}], v{117 if buf < 2 else 2}, {SRD}, {"s26" if buf & 1 else "s24"} offen offset:{hb*1024} {XFL}'
    a.xld = xld
    def Smm(m, b, first=False):
        c = '0' if first else f'v[{SACC}:{SACC+3}]'
        return f'v_mfma_f32_16x16x32_bf16 v[{SACC}:{SACC+3}], v[{m}:{m+3}], v[{b}:{b+3}], {c}'
    def Sx(tt, b, buf):
        return f'v_smfmac_f32_16x16x64_bf16 v[{SX+4*tt}:{SX+4*tt+3}], v[{b}:{b+3}], v[{XS[buf]}:{XS[buf]+7}], v3'
    ZR = list(range(36, 52)) + list(range(AC[6], AC[6] + 4)) + list(range(SX, SX + 8)) + list(range(52, 60))
    def zero(lo=0, hi=99):
        for r in ZR[lo:hi]: a(f'v_mov_b32 v{r}, 0')
    def mls(ks): return f'buffer_load_dwordx4 v[{MR[ks]}:{MR[ks]+3}], v2, {SRD}, {"s20" if ks < 4 else "s23"} offen offset:{(ks & 3) * 1024} sc1'
    def ml(ks): a(mls(ks))
    a.raw('.p2align 6')
    a.label(L('loop'))
    a('s_mov_b32 s30, 0')
    a('s_mov_b32 s62, 0')
    a('s_setprio 3')
    if w == 0:
        if SC_SLEEP: a(f's_sleep {SC_SLEEP}')
        flagpoll(a, 0, 's19', 24 if FP2 else BOP2, L('fp'), ABORT, FP2)
        ml(0)
        a('s_barrier')
    else:
        a('s_barrier')
        ml(0)
    stamp(a, 0)
    for k in (1, 2, 3):
        a(f's_setprio {3-k}')
        ml(k)
    for k in range(WARM if w == 3 else 0): a(f'v_mfma_f32_32x32x16_bf16 v[36:51], v[{SX}:{SX+3}], v[{SX}:{SX+3}], 0')
    a.flush()
    a.label(L('go'))
    chk = lambda k: f'v_cmp_eq_u32 vcc, -1, v{MR[k]}'
    ex1 = lambda k: [chk(k)]
    ex3 = [f'v_max3_u32 v{TMP}, v24, v27, v28', f'v_max3_u32 v{TMP}, v{TMP}, v31, v32', f'v_max_u32 v{TMP}, v{TMP}, v35', f'v_cmp_eq_u32 vcc, -1, v{TMP}']
    a('s_waitcnt vmcnt(3)')
    stamp(a, 1)
    xpos = [-1] * (X_LATE + X_W2) + [X_POS + X_EVERY * k for k in range(8 - X_LATE - X_W2)]
    nx = 0
    for ks in range(4):
        for ti in range(7):
            a(S(ti, ks))
            if ks == 0:
                if ti in (0, 2, 5): ml(4 + ti // 2)
                if ti == 2: a(f's_cbranch_vccnz {L("r0")}')
            if ti == 4 and ks < 3: a(f's_waitcnt vmcnt({[4, 4, 3][ks] + nx})')
            if ks == 3 and ti == 1: a(f's_waitcnt vmcnt({nx})')
            if 7 * ks + ti in xpos and not NOX:
                assert 7 * ks + ti > 5
                a(xld(X_LATE + X_W2 + nx)); nx += 1
            if ks == 0 and ti == 0: a(chk(0))
            if ti == 4 and ks < 3: a(chk(ks + 1))
            if ks == 3 and 1 <= ti <= 4: a(ex3[ti - 1])
            if ti == 6:
                a(f's_cbranch_vccnz {L(f"r{ks+1}")}')
                a.label(L(f'c{ks+1}'))
    stamp(a, 2)
    seq = []
    for ti in (6, 4, 5, 0, 1, 2, 3):
        for ks in (4, 5, 6): seq.append([S(ti, ks), []])
    def side(i, ops): seq[i][1] += ops
    def spread(i, ops):
        for k, o in enumerate(ops): side(i + k, [o])
    spread(5, cin(6, half6))
    seq.insert(8, [T(D0, 62 - 2 * half6), []])
    spread(8, cin(4, 0))
    spread(10, cvt(BOP2 + 2 * p6, D0))
    spread(12, cin(5, 1))
    seq.insert(15, [T(D1, 54), []])
    spread(15, cin(0, 0))
    spread(17, cvt(BOP2 + 2 * pb, D1))
    spread(19, cin(1, 1))
    c2 = cin(2, 0); c3 = cin(3, 1)
    for k in range(X_LATE + X_W2 + nx, 8):
        if not NOX: side(xpos[k] - 28, [xld(k)])
    side(22, ['s_waitcnt vmcnt(4)'] + c2[:1])
    seq.append([Sx(0, BOP2, 0), c2[1:]])
    seq.append([T(D0, 38), c3])
    seq.append([T(D1, 46), []])
    seq.append([Sx(1, BOP2, 1), cvt(BOPA, D0)[:1]])
    seq.append([Smm(30, BOP2, True), ['s_waitcnt vmcnt(0)'] + cvt(BOPA, D0)[1:] + cvt(BOPA + 2, D1)])
    wm = f'ds_write_b128 v113, v[{SACC}:{SACC+3}]'
    def foldx(t):
        b = SX + 4 * t
        a(f'v_permlane32_swap_b32 v{b}, v{b+2}')
        a(f'v_permlane32_swap_b32 v{b+1}, v{b+3}')
        a(f'v_add_f32 v{W+t}, v{b}, v{b+2}')
        a(f'v_add_f32 v{W+2+t}, v{b+1}, v{b+3}')
    last3 = [Sx(0, BOPA, 2), Sx(1, BOPA, 3), Smm(MR[ka], BOPA)]
    for k in [(2, 0, 1), (0, 1, 2), (0, 2, 1), (0, 1, 2)][TAIL]: seq.append([last3[k], []])
    for m, ops in seq:
        a(m)
        gap(a, ops)
    nz = 0
    if TAIL == 0:
        a(wm); foldx(0); foldx(1)
    elif TAIL == 1:
        foldx(0); foldx(1); a(wm)
    else:
        foldx(0); a(wm); foldx(1)
    a(f'ds_write_b128 v2, v[{W}:{W+3}] offset:{XP + w*1024}')
    a(f'v_cmp_u_f32 vcc, v{W+1}, v{W+3}')
    stamp(a, 3)
    ZP = 64 - 4 * half6
    zm = lambda d, z: a(f'v_mfma_f32_32x32x16_bf16 v[{d}:{d+15}], v[{SX}:{SX+3}], v[{SX}:{SX+3}], 0')
    for r in range(SX, SX + 4): a(f'v_mov_b32 v{r}, 0')
    a(f's_cbranch_vccnz {L("retry")}')
    a.label(L('cont'))
    a(f's_add_u32 s24, s24, {XSEG_B}')
    a(f's_add_u32 s26, s26, {XSEG_B}')
    for k in range(X_LATE): a(xld(k))
    for r in range(SX + 4, SX + 4 + FILL_A): a(f'v_mov_b32 v{r}, 0')
    if ZV == 3 and w == 3: a(f'v_mfma_f32_16x16x32_bf16 v[{AC[6]}:{AC[6]+3}], v[{SX}:{SX+3}], v[{SX}:{SX+3}], 0')
    else: zm(36, ZP)
    a('s_waitcnt lgkmcnt(0)')
    a('s_barrier')
    stamp(a, 4)
    def f1(pos):
        if w == F1_W and pos == F1_POS: a(f'buffer_store_dword v112, v116, {SRD}, 0 offen {st}')
    if w < 2:
        t = 8
        for k in range(4): a(f'ds_read_b64 v[{t+2*k}:{t+2*k+1}], v114 offset:{k*1024}')
        a(f'ds_read2_b32 v[{t+8}:{t+9}], v115 offset0:0 offset1:64')
        a(f'ds_read2_b32 v[{t+10}:{t+11}], v115 offset0:128 offset1:192')
        if ZV != 2: zm(52, SX)
        a('s_waitcnt lgkmcnt(0)')
        stamp(a, 5)
        X = t; Y = t + 4; Mm = t + 8; m = t + 12; mx = t + 14; l = t + 16
        a(f'v_pk_add_f32 v[{Mm}:{Mm+1}], v[{Mm}:{Mm+1}], v[{Mm+2}:{Mm+3}]')
        a(f'v_pk_add_f32 v[{X}:{X+1}], v[{X}:{X+1}], v[{X+2}:{X+3}]')
        a(f'v_pk_add_f32 v[{Y}:{Y+1}], v[{Y}:{Y+1}], v[{Y+2}:{Y+3}]')
        a(f'v_add_f32 v{m}, v{Mm}, v{Mm+1}')
        a(f'v_pk_add_f32 v[{X}:{X+1}], v[{X}:{X+1}], v[{Y}:{Y+1}]')
        a(f'v_max_f32 v{mx}, v{X}, v{X+1}')
        a(f'v_add_f32_dpp v{m}, v{m}, v{m} row_ror:8 {D}')
        f1(0)
        a(f'v_max_f32_dpp v{mx}, v{mx}, v{mx} row_ror:8 {D}')
        a(f'v_max_f32 v{mx}, v{mx}, v{m}')
        f1(1)
        a(f'v_max_f32_dpp v{mx}, v{mx}, v{mx} quad_perm:[1,0,3,2] {D}')
        f1(2)
        a(f'v_max_f32_dpp v{mx}, v{mx}, v{mx} quad_perm:[2,3,0,1] {D}')
        f1(3)
        a(f'v_max_f32_dpp v{mx}, v{mx}, v{mx} row_half_mirror {D}')
        a(f'v_pk_add_f32 v[{X}:{X+1}], v[{X}:{X+1}], v[{mx}:{mx+1}] op_sel_hi:[1,0] neg_lo:[0,1] neg_hi:[0,1]')
        a(f'v_sub_f32 v{m}, v{m}, v{mx}')
        f1(4)
        a(f'v_exp_f32 v{X}, v{X}')
        a(f'v_exp_f32 v{X+1}, v{X+1}')
        a(f'v_exp_f32 v{m}, v{m}')
        f1(5)
        a(f'v_add_f32 v{l}, v{X}, v{X+1}')
        a(f'v_fmac_f32 v{l}, 0.5, v{m}')
        a(f'v_mov_b32_dpp v{m+1}, v{m} quad_perm:[1,0,3,2] {D}')
        a(f'v_add_f32_dpp v{l}, v{l}, v{l} quad_perm:[1,0,3,2] {D}')
        f1(6)
        a(f'v_add_f32_dpp v{l}, v{l}, v{l} quad_perm:[2,3,0,1] {D}')
        a(f'v_add_f32_dpp v{l}, v{l}, v{l} row_half_mirror {D}')
        a(f'v_add_f32_dpp v{l}, v{l}, v{l} row_ror:8 {D}')
        a(f'v_rcp_f32 v{l}, v{l}')
        a(f'v_pk_mul_f32 v[{X}:{X+1}], v[{X}:{X+1}], v[{l}:{l+1}] op_sel_hi:[1,0]')
        a(f'v_pk_mul_f32 v[{m}:{m+1}], v[{m}:{m+1}], v[{l}:{l+1}] op_sel_hi:[1,0]')
        a(f'v_cvt_pk_bf16_f32 v{X}, v{X}, v{X+1}')
        a(f'v_cvt_pk_bf16_f32 v{m}, v{m}, v{m+1}')
        a(f'v_min_u32 v{X}, -2, v{X}')
        a(f'buffer_store_dword v{X}, v1, {SRD}, s20 offen {st}')
        a(f'v_min_u32 v{m}, -2, v{m}')
        a(f'buffer_store_dword v{m}, v118, {SRD}, s20 offen {st}')
        stamp(a, 6)
        a(f'buffer_store_dword v119, v1, {SRD}, s21 offen {st}')
        a(f'buffer_store_dword v119, v118, {SRD}, s21 offen {st}')
        if ZV == 2: zm(52, SX)
    else:
        if ZV == 0 or (ZV == 3 and w == 2):
            zm(52, SX)
            if STLB:
                a(f's_buffer_load_dword s70, {SRD}, s35')
                a(f's_add_u32 s22, s24, {4*XSEG_B}')
                a(f's_buffer_load_dword s71, {SRD}, s22')
                a(f's_mul_i32 s22, s18, {7*KB}')
                a(f's_add_u32 s22, s22, {MEMG_OFF + 3*7*KB}')
                a(f's_buffer_load_dword s72, {SRD}, s22')
                a(f's_add_u32 s35, s35, {VO_SS}')
        elif ZV == 3:
            for r in range(52, 52 + ZX): a(f'v_mov_b32 v{r}, 0')
            zm(36, SX)
        else:
            for r in list(range(52, 60)) + list(range(AC[6], AC[6] + 4)): a(f'v_mov_b32 v{r}, 0')
            for k in range(ZX if w == 2 else 0): a(f'v_mov_b32 v{TMP}, 0')
    for r in range(SX + 4 + FILL_A, SX + 8): a(f'v_mov_b32 v{r}, 0')
    if X_W2:
        sl = X_SLEEP + (5 if w >= 2 else 0)
        if sl: a(f's_sleep {sl}')
        for k in range(X_LATE, X_LATE + X_W2): a(xld(k))
    stamp_flush(a, w, L('sf'), BOP2)
    if STEPLOG and w in (1, 3):
        a('s_memtime s[40:41]' if w == 1 else 's_memrealtime s[40:41]')
        a('s_lshl_b32 s22, s17, 8')
        if w == 3: a('s_add_u32 s22, s22, 4096')
        a('s_lshl_b32 s42, s19, 2')
        a('s_add_u32 s22, s22, s42')
        a(f's_add_u32 s22, s22, {STAMP_OFF}')
        a(f'v_mov_b32 v{BOP2}, 0')
        a('s_waitcnt lgkmcnt(0)')
        a(f'v_mov_b32 v{BOP2+1}, s40')
        a(f'buffer_store_dword v{BOP2+1}, v{BOP2}, {SRD}, s22 offen')
    if DIAG and w == 3:
        a('s_cmp_lg_u32 s19, 1')
        a(f's_cbranch_scc1 {L("dg")}')
        a('s_memtime s[90:91]')
        a('s_memrealtime s[86:87]')
        a.label(L('dg'))
    next_step(a)
    if w == F1_W: a('v_mov_b32 v112, s18')
    a(f's_cmp_lt_u32 s19, {NSTEPS-1}')
    a.flush()
    a(f's_cbranch_scc1 {L("loop")}')
    a(f's_branch {tag}_done')
    for k in range(5):
        ks_ = [k] if k < 4 else [4, 5, 6]
        a.label(L(f'r{k}'))
        a('s_add_u32 s31, s31, 1')
        for ks in ks_: ml(ks)
        a('s_waitcnt vmcnt(0)')
        for x in (ex1(k) if k < 4 else ex3): a(x)
        if k == 0:
            for r in range(36, 52): a(f'v_mov_b32 v{r}, 0')
        a.flush()
        a(f's_cbranch_vccz {L("go" if k == 0 else f"c{k}")}')
        spin(a, L(f'r{k}'), ABORT)
    a.label(L('retry'))
    a('s_cmp_lg_u32 s62, 0')
    a(f's_cbranch_scc1 {L("cont")}')
    a('s_waitcnt vmcnt(0) lgkmcnt(0)')
    a.label(L('rv'))
    for ks in range(7): ml(ks)
    a('s_waitcnt vmcnt(0)')
    poison_max16(a, TMP, range(8, 36))
    a(f's_cbranch_vccz {L("rk")}')
    spin(a, L('rv'), ABORT)
    a.label(L('rk'))
    a('s_mov_b32 s62, 1')
    zero()
    a('s_add_u32 s31, s31, 0x100')
    a.flush()
    a(f's_branch {L("go")}')

def touch_ring(a, t):
    nl = RING_B // 128
    a(f's_mov_b32 s22, {EXCH_OFF}')
    for k in range((nl + 63) // 64):
        a(f'v_add_u32 v{t}, {64*k}, v1')
        a(f'v_min_u32 v{t}, {nl-1}, v{t}')
        a(f'v_lshlrev_b32 v{t}, 7, v{t}')
        a(f'buffer_load_dword v{t+1}, v{t}, {SRD}, s22 offen sc1')

def WFL(): return 'sc1' if FUSE else ''
HELP = 0
HFULL = 0
def mask_wait(a, P, vaddr, soff, smask, sleep=3):
    poll(a, P, [f'buffer_load_dword v65, {vaddr}, {SRD}, {soff} {"offen" if vaddr != "off" else ""} sc1'], [f'v_and_b32 v66, {smask}, v65', f'v_cmp_ne_u32 vcc, {smask}, v66'], sleep=sleep)
def b_wait(a, P, w):
    a('s_lshr_b32 s22, s17, 2')
    a('s_lshl_b32 s28, 0x81, s22')
    a('s_mul_i32 s27, s17, 12')
    for d in (256, 267):
        a(f's_add_u32 s22, s27, {d}')
        a('s_lshr_b32 s22, s22, 6')
        a('s_lshl_b32 s22, 0x81, s22')
        a('s_or_b32 s28, s28, s22')
    a('v_lshlrev_b32 v64, 7, v116')
    a(f's_mov_b32 s27, {PFL + w*512}')
    mask_wait(a, P, 'v64', 's27', 's28')
def a_wait(a, P, kaps):
    a('s_lshl_b32 s27, s17, 7')
    a(f's_add_u32 s27, s27, {PFL + 2048}')
    a(f's_mov_b32 s28, {sum(0x81 << k for k in kaps)}')
    mask_wait(a, P, 'off', 's27', 's28')
def touch_tiles(a, base, tiles):
    a('v_min_u32 v64, 55, v1')
    a('v_lshlrev_b32 v64, 7, v64')
    a(f's_mul_i32 s27, s17, {CUW_B}')
    for t in tiles:
        for hf in range(2):
            a(f's_add_u32 s22, s27, {base + t*TILE_B + hf*7168}')
            if HFULL:
                for k in range(7):
                    if k == 4: a('s_add_u32 s22, s22, 4096')
                    a(f'buffer_load_dwordx4 v[8:11], v2, {SRD}, s22 offen offset:{(k & 3)*1024} sc1')
            else: a(f'buffer_load_dword v67, v64, {SRD}, s22 offen sc1')
def r_wait(a, P, off):
    poll(a, P, [f'buffer_load_dword v65, off, {DBG}, 0 offset:{off} sc1'], ['v_cmp_ne_u32 vcc, 1, v65'], sleep=8)

def init_score(a, w):
    a(f's_mul_i32 s31, s17, {CUW_B}')
    a(f's_add_u32 s31, s31, {WF_A}')
    units = [((kap * 4 + q) * TILE_B + ks * UNIT, wreg(ti, ks)) for ti, (kap, q) in enumerate(score_tiles(w)) for ks in range(7)]
    if FUSE:
        r_wait(a, f'ch_wr{w}', D_R2)
        if HELP == 1:
            b_wait(a, f'ch_wh{w}', w)
            touch_tiles(a, WF_B, [7*w + 4, 7*w + 5, 7*w + 6])
        a_wait(a, f'ch_wa{w}', [w])
        evlog(a, 9002)
        a('v_readfirstlane_b32 s29, v65')
        load_units(a, units[:28], 's31', fl=WFL())
        m2 = (0x81 << (4 + (w >> 1))) | (0x81 << 6)
        a(f's_and_b32 s29, s29, {m2}')
        a(f's_cmp_eq_u32 s29, {m2}')
        a(f's_cbranch_scc1 ch_wb{w}_ok')
        a_wait(a, f'ch_wb{w}', [4 + (w >> 1), 6])
        a('s_waitcnt vmcnt(28)')
        load_units(a, units[28:], 's31', fl=WFL())
        if w == 3: touch_ring(a, 64)
        a(f's_mov_b32 s27, {PFL + 4096}')
        a('s_mov_b32 s28, 0xffff')
        mask_wait(a, f'ch_wx{w}', 'off', 's27', 's28', sleep=8)
    else:
        if w == 3: touch_ring(a, 64)
        load_units(a, units, 's31', fl=WFL())
    a(f's_mov_b32 s24, {XF_OFF + w*2048}')
    a(f's_mov_b32 s26, {XF_OFF + w*2048 + 14336}')
    a('v_and_b32 v64, 7, v117')
    a('v_and_b32 v65, 1, v116')
    a('v_lshlrev_b32 v65, 2, v65')
    a('v_sub_u32 v64, v64, v65')
    a('v_lshrrev_b32 v65, 3, v117')
    a('v_lshl_add_u32 v66, v65, 2, v64')
    a('v_cmp_gt_u32 vcc, 4, v64')
    a('v_mov_b32 v67, 99')
    a('v_cndmask_b32 v66, v67, v66, vcc')
    a('v_mov_b32 v68, 0x3f80')
    a('v_mov_b32 v69, 0x3f800000')
    for d in range(4):
        a(f'v_mov_b32 v{4+d}, 0')
        a(f'v_cmp_eq_u32 vcc, {2*d}, v66')
        a(f'v_cndmask_b32 v{4+d}, v{4+d}, v68, vcc')
        a(f'v_cmp_eq_u32 vcc, {2*d+1}, v66')
        a(f'v_cndmask_b32 v{4+d}, v{4+d}, v69, vcc')
    a('v_lshrrev_b32 v64, 1, v116')
    a('v_lshrrev_b32 v65, 3, v117')
    a('v_and_b32 v66, 1, v116')
    a('v_and_b32 v68, 7, v117')
    a('v_lshlrev_b32 v67, 8, v65')
    a('v_lshl_add_u32 v67, v68, 5, v67')
    a('v_lshl_add_u32 v67, v66, 4, v67')
    a(f'v_add_u32 v69, {MP + (w >> 1) * 1088 + (w & 1) * 512}, v67')
    a(f'v_add_u32 v70, {MJ}, v67')
    a('v_cmp_eq_u32 vcc, v64, v65')
    a('v_cndmask_b32 v113, v70, v69, vcc')
    if w < 2:
        a('v_lshlrev_b32 v67, 9, v64')
        a('v_lshl_add_u32 v67, v117, 4, v67')
        a('v_lshl_add_u32 v67, v66, 3, v67')
        a(f'v_add_u32 v114, {XP + w*256}, v67')
        a('v_mul_u32_u24 v67, 1088, v65')
        a('v_lshl_add_u32 v67, v116, 5, v67')
        a('v_lshl_add_u32 v67, v68, 2, v67')
        a(f'v_add_u32 v115, {MP + w*128}, v67')
        a('v_and_b32 v69, 1, v117')
        a('v_lshlrev_b32 v67, 7, v69')
        a('v_lshl_add_u32 v67, v116, 4, v67')
        a('v_lshl_add_u32 v67, v65, 8, v67')
        a('v_bfe_u32 v69, v117, 1, 2')
        a('v_lshl_add_u32 v67, v69, 2, v67')
        a('s_lshl_b32 s22, s17, 9')
        a(f's_add_u32 s22, s22, {PX + w*64}')
        a('v_add_u32 v72, s22, v67')
        a('v_bfe_u32 v69, v117, 1, 1')
        a('v_lshlrev_b32 v67, 7, v69')
        a('v_lshl_add_u32 v67, v116, 4, v67')
        a('v_and_b32 v69, 4, v117')
        a('v_add_u32 v67, v67, v69')
        a('s_lshr_b32 s22, s17, 1')
        a('s_lshl_b32 s22, s22, 8')
        a('s_and_b32 s27, s17, 1')
        a('s_lshl_b32 s27, s27, 3')
        a('s_add_u32 s22, s22, s27')
        a(f's_add_u32 s22, s22, {PM + w*64}')
        a('v_add_u32 v67, s22, v67')
        a('v_and_b32 v69, 9, v117')
        a('v_mov_b32 v70, 0x40000000')
        a('v_cmp_eq_u32 vcc, 0, v69')
        a('v_cndmask_b32 v118, v70, v67, vcc')
        a('v_mov_b32 v119, -1')
    if w == F1_W:
        a('s_lshl_b32 s22, s17, 2')
        a(f's_add_u32 s22, s22, {FLG1}')
        a('v_lshl_add_u32 v67, v1, 7, s22')
        a('v_mov_b32 v70, 0x40000000')
        a(f'v_cmp_gt_u32 vcc, {R1}, v1')
        a('v_cndmask_b32 v73, v70, v67, vcc')
        a('v_mov_b32 v112, 1')
    a('v_and_b32 v0, 15, v1')
    a(f's_and_b32 s22, s17, {R2-1}')
    a('s_lshl_b32 s22, s22, 7')
    a(f's_add_u32 s22, s22, {FLG2}')
    a('v_lshl_add_u32 v0, v0, 2, s22')
    kb = 4 + (w >> 1)
    k1, k2 = (kb, 6) if w & 1 else (6, kb)
    a('v_xor_b32 v69, 256, v2')
    a(f'v_mul_i32_i24 v70, {(k2 - k1) * 2048}, v66')
    a('v_add_u32 v69, v69, v70')
    a(f'v_add_u32 v117, {(k1 - w)*2048}, v69')
    a('v_mov_b32 v116, v73')
    a(f's_mul_i32 s35, s17, {VO_SV}')
    a(f's_add_u32 s35, s35, {VO_OFF + 4*VO_SS}')
    if w < 2: a('v_mov_b32 v1, v72')
    for r in range(36, 80): a(f'v_mov_b32 v{r}, 0')
    if NOX:
        for r in range(80, 112): a(f'v_mov_b32 v{r}, 0')
    for k in range(X_LATE + X_W2):
        r = 80 + 4 * k
        a(f'buffer_load_dwordx4 v[{r}:{r+3}], v{117 if k < 4 else 2}, {SRD}, {"s26" if k & 2 else "s24"} offen offset:{(k & 1)*1024} {XFL}')

YL = 0; ML = 8 * KB; WL = 16 * KB
def vwreg(w, ti, ks):
    u = ti * 7 + ks
    return 256 + 8 * u if u < 32 else (176 if w < 2 else 120) + 8 * (u - 32)

def vo_wait0(a, P):
    if FUSE: poll(a, P + 'i', [f'buffer_load_dword v9, off, {DBG}, 0 offset:{D_R2} sc1'], ['v_cmp_ne_u32 vcc, 1, v9'], sleep=8)
    a('s_lshl_b32 s27, s17, 7')
    a(f's_add_u32 s27, s27, {CNT_OFF + VOC}')
    a('s_mov_b32 s30, 0')
    a.label(P)
    a(f'buffer_load_dword v9, off, {SRD}, s27 sc1')
    a('s_waitcnt vmcnt(0)')
    a('v_cmp_ne_u32 vcc, 56, v9')
    a(f's_cbranch_vccz {P}_d')
    a('s_sleep 2')
    spin(a, P, 'cA_abort')
    a.label(P + '_d')

def resolve_waits(ins):
    out = []; pos = {}; n = 0
    for x in ins:
        if isinstance(x, tuple) and x[0] == 'tag':
            n += 1; pos[x[1]] = n; out.append(x[2])
        elif isinstance(x, tuple):
            out.append(f's_waitcnt lgkmcnt({min(15, n - pos[x[1]])})')
        else:
            if x.startswith('ds_'): n += 1
            out.append(x)
    return out

def gen_value(a, w, st, tag):
    L = lambda n: f'{tag}_va{w}_{n}'
    ABORT = f'{tag}_abort'
    fin = w < 2
    M = 8; ACC = 36
    YA = 152 if fin else 104
    YT = 64; VOR = 80; LO = 48; PL = 52; HI = 160
    STG = [64, 72, 144]
    own = [[4, 5], [5, 6], [0, 1], [2, 3]][w]
    wrt = own if w != 1 else [6]
    oth = [k for k in range(7) if k not in own]
    def S(ti, ks):
        b = f'v[{STG[ks % 3]}:{STG[ks % 3]+7}]' if fin and ti == 6 else ureg(vwreg(w, ti, ks), 8)
        return f'v_smfmac_f32_16x16x64_bf16 v[{ACC+4*ti}:{ACC+4*ti+3}], v[{M+4*ks}:{M+4*ks+3}], {b}, v3'
    def fold(t):
        r = ACC + 4 * t
        return [f'v_permlane32_swap_b32 v{r}, v{r+2}', f'v_permlane32_swap_b32 v{r+1}, v{r+3}', f'v_add_f32 v{r}, v{r}, v{r+2}', f'v_add_f32 v{r+1}, v{r+1}, v{r+3}',
                f'v_cvt_pk_bf16_f32 v{r+2}, v{r}, v{r+1}', f'ds_write_b32 v{YA+t}, v{r+2}']
    def wrd(ks):
        b = STG[ks % 3]
        return [f'ds_read_b128 v[{b}:{b+3}], v0 offset:{ks*UNIT}', ('tag', f'w{ks}', f'ds_read_b128 v[{b+4}:{b+7}], v0 offset:{ks*UNIT+1024}')]
    def mld(ks): return f'buffer_load_dwordx4 v[{M+4*ks}:{M+4*ks+3}], v2, {SRD}, {"s20" if ks < 4 else "s23"} offen offset:{(ks & 3) * 1024} sc1'
    def vol(h):
        if PROT: pre = [f's_add_u32 s22, s25, s{80 + h // 4}'] if h % 4 == 0 else ['s_add_u32 s22, s22, 3584'] if h % 2 == 0 else []
        else: pre = [f's_add_u32 s22, s25, {h*1792}'] if h % 2 == 0 else []
        return pre + [f'buffer_load_dwordx4 v[{VOR+4*h}:{VOR+4*h+3}], v6, {SRD}, s22 offen offset:{(h & 1)*1792} sc1']
    isv = lambda o: isinstance(o, str) and o.startswith('v_')
    pois = f'buffer_store_dword v162, v1, {SRD}, s21 offen {st}'
    mg = f'buffer_store_dword v{HI}, v1, {SRD}, s38 offen sc1'
    mgp = f'buffer_store_dword v{HI}, v1, {SRD}, s38 offen {st or ["sc1", "", "nt", "sc0"][MG_MODE]}'
    zr = list(range(ACC, ACC + 28))
    a.raw('.p2align 6')
    a.label(L('loop'))
    a('s_mov_b32 s30, 0')
    if w == 2:
        flagpoll(a, 119, 's19', 100, L('fp'), ABORT)
        for ks in own: a(mld(ks))
        a('s_barrier')
    else:
        a('s_barrier')
        for ks in own: a(mld(ks))
    stamp(a, 0)
    a('s_barrier')
    if STEPLOG and w == 1: a('s_memtime s[40:41]')
    ny = 0
    if fin:
        if st or not MG_MODE: a(mg)
        else:
            a(f's_cmp_lt_u32 s19, {MG_SW}')
            a(f's_cbranch_scc1 {L("m1")}')
            a(mg)
            a(f's_branch {L("m2")}')
            a.label(L('m1'))
            a(mgp)
            a.label(L('m2'))
        ny += 1
        for h in range(VO_PRE):
            for x in vol(h): a(x)
        ny += VO_PRE
        a(f's_mul_i32 s38, s18, {7*KB}')
        a(f's_add_u32 s38, s38, {MEMG_OFF}')
    if w == 3:
        a(f'buffer_load_dword v100, v116, {SRD}, {"s39" if not NOXT else "s20"} offen sc1')
        a('s_add_u32 s27, s19, 2')
        a('s_min_u32 s27, s27, 63')
        a('s_lshr_b32 s27, s27, 3')
        a('s_lshl_b32 s27, s27, 11')
        a('s_add_u32 s27, s27, s35')
        a('s_cmp_eq_u32 s27, s28')
        a(f's_cselect_b32 s29, {FLG1}, s27')
        a(f'buffer_load_dword v101, off, {SRD}, s29 sc1')
        a(f's_add_u32 s39, s39, {XSEG_B}')
        ny += 2
    if VPROBE >= 0 and w == 1:
        a(f's_waitcnt vmcnt({VPROBE})')
        a('s_memtime s[42:43]')
    a(f's_waitcnt vmcnt({ny})')
    stamp(a, 1)
    for ks in wrt: a(f'ds_write_b128 v2, v[{M+4*ks}:{M+4*ks+3}] offset:{ML + ks*1024}')
    nrt = 6 if fin else 7
    seq = [[t, S(t, ks), []] for ks in own for t in range(nrt)]
    seq[B1_POS][2] += ['s_waitcnt lgkmcnt(0)', 's_barrier'] + [('tag', f'm{ks}', f'ds_read_b128 v[{M+4*ks}:{M+4*ks+3}], v2 offset:{ML + ks*1024}') for ks in oth]
    n0 = len(seq)
    rest = [[t, S(t, ks), []] for t in range(nrt) for ks in oth]
    if fin:
        for j_ in range(7): rest.insert(3 + 4 * j_, [6, S(6, j_), []])
    seq += rest
    for k, ks in enumerate(oth):
        idx = next(i_ for i_ in range(n0, len(seq)) if seq[i_][1] == S(0, ks))
        seq[idx - 1][2].append(('wait', f'm{ks}'))
    if fin:
        for j_ in range(7):
            idx = n0 + 3 + 4 * j_
            seq[idx - (8 if j_ else 5)][2] += wrd(j_)
            seq[idx - 1][2].append(('wait', f'w{j_}'))
        for h in range(VO_PRE, 16): seq[(h - VO_PRE) * VO_EVERY][2] += vol(h)
        if TLB_WARM and w == 1:
            seq[(16 - VO_PRE) * VO_EVERY][2] += [f's_add_u32 s22, s25, {VO_SS + GSH_B - 128}', f'buffer_load_dword v164, off, {SRD}, s22 sc1']
    last = {}
    for i_, (t, m, sd) in enumerate(seq): last[t] = i_
    ins = []; pend = []; delay = 0; brk = None
    for i_, (t, m, sd) in enumerate(seq):
        ins.append(m)
        ops = list(sd)
        if pend and pend[0].startswith('ds_'): ops.insert(0, pend.pop(0))
        if brk == i_:
            ops.append(f's_cbranch_vccnz {L("slow")}')
            assert not fin or i_ > (16 - VO_PRE) * VO_EVERY
        if brk is not None and brk + 2 == i_ and fin: ops.append(pois)
        if delay: delay -= 1
        elif pend:
            x = pend.pop(0); ops.append(x)
            if x.startswith('v_cmp'): brk = i_ + 2
        ins += [o for o in ops if not isv(o)] + [o for o in ops if isv(o)]
        if i_ == last[t]:
            delay = max(delay, 2 - len(pend))
            f_ = fold(t)
            if t == 0: f_.insert(4, f'v_cmp_u_f32 vcc, v{ACC}, v{ACC+1}')
            pend += f_
    ins += pend
    for x in resolve_waits(ins): a(x)
    a.label(L('t2d'))
    stamp(a, 2)
    if fin:
        pr = lambda c: 8 + 4 * c
        def pld(c):
            so = ('s22', 's34', 's36')[c // 4]; o = (c & 3) * 1024
            if PROT and c < 8: so = f's{72 + c // 2}'; o = (c & 1) * 1024
            a(f'buffer_load_dwordx4 v[{pr(c)}:{pr(c)+3}], v2, {SRD}, {so} offen offset:{o} sc1')
        if PROT:
            for j_ in range(4): a(f's_add_u32 s{72+j_}, s20, s{76+j_}')
        a(f's_add_u32 s22, s20, {PX}')
        a(f's_add_u32 s34, s20, {PX + 4096}')
        a(f's_add_u32 s36, s20, {PM}')
        a('s_mov_b32 s37, 0')
        for r in range(LO, LO + 4): a(f'v_mov_b32 v{r}, 0')
        a('v_mov_b32 v163, s18')
        a('s_waitcnt lgkmcnt(0)')
        if STAMPS:
            a('s_waitcnt vmcnt(0)')
            stamp(a, 3)
        if STEPLOG and w == 1 and VPROBE < 0:
            a('s_waitcnt vmcnt(0)')
            a('s_memtime s[42:43]')
        if w == 0:
            a('s_setprio 3')
            flagpoll(a, 4, 's18', PL, L('fw'), ABORT, FP1)
            for c in range(B3_AT): pld(c)
        a('s_barrier')
        if w == 0:
            for c in range(B3_AT, 10): pld(c)
        elif B3_AT < 10:
            for k in range(2 * (10 - B3_AT) + 4): a(f'v_mov_b32 v{PL+4+(k & 7)}, 0')
        stamp(a, 4)
        if w == 1:
            for c in range(10): pld(c)
        for k in range(4): a(f'ds_read_b128 v[{YT+4*k}:{YT+4*k+3}], v2 offset:{YL + w*4096 + k*1024}')
        a.label(L('lp'))
        nst = 0
        ckc = list(range(min(F3_POS - 1, 8))) if PCHK and w == 1 else []
        for c in range(10):
            a(f's_waitcnt vmcnt({9-c+nst})' + (' lgkmcnt(0)' if c == 8 else ''))
            if c == 0: stamp(a, 5)
            B_ = VOR + 8 * c if c < 8 else YT + 8 * (c - 8)
            a(f'v_smfmac_f32_16x16x64_bf16 v[{LO}:{LO+3}], v[{pr(c)}:{pr(c)+3}], v[{B_}:{B_+7}], v3')
            if c == F3_POS and w == 1:
                if ckc: a(f's_cbranch_vccnz {L("rv")}')
                a(f'buffer_store_dword v163, v7, {SRD}, 0 offen {st}')
                nst = 1
            if c in ckc:
                if c % 2 == 0 and c > 0: a(f'v_max3_u32 v{PL+3}, v{PL+3 if c > 2 else pr(0)}, v{pr(c-1)}, v{pr(c)}')
                elif c == ckc[-1] and c > 0: a(f'v_max_u32 v{PL+3}, v{PL+3 if c > 2 else pr(0)}, v{pr(c)}')
                if c == ckc[-1]: a(f'v_cmp_eq_u32 vcc, -1, v{PL+3 if c > 0 else pr(0)}')
        stamp(a, 6)
        a(f'v_permlane32_swap_b32 v{LO}, v{LO+2}')
        a(f'v_permlane32_swap_b32 v{LO+1}, v{LO+3}')
        a(f'v_add_f32 v{LO}, v{LO}, v{LO+2}')
        a(f'v_add_f32 v{LO+1}, v{LO+1}, v{LO+3}')
        a(f'v_cvt_pk_bf16_f32 v{HI}, v{LO}, v{LO+1}')
        a(f'v_cmp_u_f32 vcc, v{LO}, v{LO+1}')
        a(f'v_mov_b32_dpp v{HI+1}, v{HI} quad_perm:[1,0,3,2] {D}')
        a(f'v_perm_b32 v{HI}, v{HI+1}, v{HI}, v5')
        a(f'v_min_u32 v{HI}, -2, v{HI}')
        a(f's_cbranch_vccnz {L("rp")}')
        a.label(L('cont'))
        a(f'buffer_store_dword v{HI}, v1, {SRD}, s21 offen {st}')
        stamp(a, 7)
        if w == 0: a('s_setprio 0')
        a(f's_cmp_lg_u32 s19, {NSTEPS-2}')
        a(f's_cbranch_scc1 {L("nl")}')
        a(mg)
        if MG_MODE:
            a('s_waitcnt vmcnt(0)')
            a('buffer_wbl2 sc1')
        a(f's_branch {tag}_done')
        a.label(L('nl'))
        if not NOVO: a(f's_add_u32 s25, s25, {VO_SS}')
        stamp_flush(a, 4 + w, L('sf'), PL)
        if STEPLOG and w == 1:
            a('s_sub_u32 s40, s42, s40')
            a('s_lshl_b32 s22, s17, 8')
            a('s_lshl_b32 s42, s19, 2')
            a('s_add_u32 s22, s22, s42')
            a(f's_add_u32 s22, s22, {STAMP_OFF + 8192}')
            a(f'v_mov_b32 v{PL+1}, s40')
            a(f'buffer_store_dword v{PL+1}, off, {SRD}, s22')
        for r in zr: a(f'v_mov_b32 v{r}, 0')
    else:
        a('v_mov_b32 v117, s18')
        if w == 3:
            a('s_cmp_eq_u32 s27, s28')
            a(f's_cbranch_scc1 {L("vok")}')
            a.label(L('vow'))
            a('s_waitcnt vmcnt(0)')
            a('v_cmp_ne_u32 vcc, 56, v101')
            a(f's_cbranch_vccnz {L("vor")}')
            a('s_mov_b32 s28, s27')
            a.label(L('vok'))
        a('s_waitcnt lgkmcnt(0)')
        stamp(a, 3)
        if w == 3 and F2_PRIO: a('s_setprio 3')
        a('s_barrier')
        nd = F2_DELAY if w == 3 else 0
        for r in zr[:nd]: a(f'v_mov_b32 v{r}, 0')
        if w == 3: a(f'buffer_store_dword v117, v118, {SRD}, 0 offen {st}')
        if w == 3 and F2_PRIO: a('s_setprio 0')
        a(f's_cmp_eq_u32 s19, {NSTEPS-2}')
        a(f's_cbranch_scc1 {tag}_done')
        if w == 2: a('s_sleep 1')
        for r in zr[nd:]: a(f'v_mov_b32 v{r}, 0')
        if w == 2 and P3_SLEEP: a(f's_sleep {P3_SLEEP}')
        stamp_flush(a, 4 + w, L('sf'), 76)
    next_step(a)
    a.flush()
    a(f's_branch {L("loop")}')
    a.label(L('slow'))
    a('s_waitcnt lgkmcnt(0)')
    a.label(L('sl1'))
    a('s_add_u32 s31, s31, 0x1000000')
    for ks in range(7): a(mld(ks))
    a('s_waitcnt vmcnt(0)')
    poison_max(a, ACC, range(M, M + 28))
    a(f'v_cmp_eq_u32 vcc, -1, v{ACC}')
    a(f's_cbranch_vccz {L("sl2")}')
    spin(a, L('sl1'), ABORT)
    a.label(L('sl2'))
    for r in zr: a(f'v_mov_b32 v{r}, 0')
    if fin: a(pois)
    for ks in range(7):
        if fin:
            for x in resolve_waits(wrd(ks)): a(x)
        for t in range(7):
            if fin and t == 6: a('s_waitcnt lgkmcnt(0)')
            a(S(t, ks))
    for t in range(7):
        for x in fold(t): a(x)
    a(f's_branch {L("t2d")}')
    if fin:
        a.label(L('rp'))
        a('s_cmp_lg_u32 s37, 0')
        a(f's_cbranch_scc1 {L("cont")}')
        a.label(L('rv'))
        a('s_add_u32 s31, s31, 0x10000')
        for c in range(10): pld(c)
        a('s_waitcnt vmcnt(0)')
        poison_max(a, PL, [pr(c) + r for c in range(10) for r in range(4)])
        a(f'v_cmp_eq_u32 vcc, -1, v{PL}')
        a('s_mov_b32 s37, 1')
        for r in range(LO, LO + 4): a(f'v_mov_b32 v{r}, 0')
        a.flush()
        a(f's_cbranch_vccz {L("lp")}')
        spin(a, L('rv'), ABORT)
    if w == 3:
        a.label(L('vor'))
        a('s_sleep 2')
        a(f'buffer_load_dword v101, off, {SRD}, s27 sc1')
        spin(a, L('vow'), ABORT)

def init_value(a, w):
    fin = w < 2
    YA = 152 if fin else 104
    a(f's_mul_i32 s31, s17, {CUW_B}')
    a(f's_add_u32 s31, s31, {WF_B + 7*w*TILE_B}')
    if FUSE:
        r_wait(a, f'ch_wr{4+w}', D_R1)
        b_wait(a, f'ch_ww{4+w}', w)
        evlog(a, 9002)
    units = [(ti * TILE_B + ks * UNIT, vwreg(w, ti, ks)) for ti in range(6 if fin else 7) for ks in range(7)]
    load_units(a, units, 's31', fl=WFL())
    if fin:
        for f in range(14):
            if f % 4 == 0:
                a(f's_mov_b32 m0, {WL + w*TILE_B + f*1024}')
                a(f's_add_u32 s22, s31, {6*TILE_B + f*1024}')
            a(f'buffer_load_dwordx4 v2, {SRD}, s22 offen offset:{(f & 3)*1024} {WFL()} lds')
    if FUSE and HELP:
        a_wait(a, f'ch_wh{4+w}', [4 + (w >> 1), 6])
        evlog(a, 9012)
        touch_tiles(a, WF_A, [kap * 4 + q for kap, q in score_tiles(w)[4:]])
        a('s_waitcnt vmcnt(0)')
    a('v_mov_b32 v72, v116')
    a('v_mov_b32 v73, v117')
    a('v_lshrrev_b32 v65, 1, v72')
    a('v_and_b32 v66, 1, v72')
    for r in range(36, 64): a(f'v_mov_b32 v{r}, 0')
    a('v_lshlrev_b32 v75, 2, v65')
    a('v_lshl_add_u32 v75, v66, 3, v75')
    for t in range(7):
        a(f'v_add_u32 v67, {16 * (7*w + t)}, v73')
        a('v_mul_u32_u24 v68, 2341, v67')
        a('v_lshrrev_b32 v68, 16, v68')
        a('v_mul_u32_u24 v69, 28, v68')
        a('v_sub_u32 v69, v67, v69')
        a('v_lshrrev_b32 v70, 4, v69')
        a('v_and_b32 v69, 15, v69')
        a('v_lshlrev_b32 v71, 12, v70')
        a('v_lshl_add_u32 v71, v68, 8, v71')
        a('v_lshl_add_u32 v71, v69, 4, v71')
        a(f'v_add_u32 v{YA+t}, v71, v75')
    a('v_mov_b32 v74, 0x40000000')
    if fin:
        a('v_mov_b32 v76, 0\nv_mov_b32 v77, 0\nv_mov_b32 v78, 0\nv_mov_b32 v79, 0')
        for k in range(4): a(f'ds_write_b128 v2, v[76:79] offset:{YL + w*4096 + k*1024}')
        a(f's_and_b32 s22, s17, {R1-1}')
        a('s_lshl_b32 s22, s22, 7')
        a(f's_add_u32 s22, s22, {FLG1}')
        a('v_lshl_add_u32 v4, v73, 2, s22')
        a('v_and_b32 v64, 1, v73')
        a('v_mov_b32 v5, 0x05040100')
        a('v_mov_b32 v65, 0x03020706')
        a('v_cmp_eq_u32 vcc, 1, v64')
        a('v_cndmask_b32 v5, v5, v65, vcc')
        a('s_lshl_b32 s22, s17, 2')
        a(f's_add_u32 s22, s22, {FLG2 + 16*128}')
        a('v_lshl_add_u32 v7, v1, 7, s22')
        a(f'v_cmp_gt_u32 vcc, {R2}, v1')
        a('v_cndmask_b32 v7, v74, v7, vcc')
        if w == 0: a('v_mov_b32 v6, v2')
        else:
            a('v_min_u32 v65, 11, v73')
            a('v_mad_u32_u24 v65, v72, 12, v65')
            a('v_lshlrev_b32 v6, 4, v65')
            a('v_add_u32 v6, 1024, v6')
        a('v_lshl_add_u32 v64, v66, 2, v64')
        a('v_and_b32 v65, 2, v72')
        a('v_add_u32 v64, v64, v65')
        a(f's_mul_i32 s22, s17, {12 if w else 16}')
        if w: a('s_add_u32 s22, s22, 256')
        a('v_add_u32 v75, s22, v73')
        a('v_lshrrev_b32 v68, 4, v75')
        a('v_lshlrev_b32 v68, 8, v68')
        a('v_bfe_u32 v69, v75, 1, 1')
        a('v_lshl_add_u32 v68, v69, 7, v68')
        a('v_lshl_add_u32 v68, v64, 4, v68')
        a('v_and_b32 v69, 12, v75')
        a('v_add_u32 v1, v68, v69')
        if w == 1:
            a('v_cmp_gt_u32 vcc, 12, v73')
            a('v_cndmask_b32 v1, v74, v1, vcc')
        a(f's_mul_i32 s22, s17, {VO_SV}')
        a(f's_add_u32 s25, s22, {VO_OFF}')
        a(f's_and_b32 s27, s17, {PROT}')
        for j_ in range(4):
            a(f's_xor_b32 s22, s27, {j_}')
            a(f's_mul_i32 s{80+j_}, s22, 7168')
            a('s_lshl_b32 s22, s22, 11')
            a(f's_add_u32 s{76+j_}, s22, {PX}')
        a('v_mov_b32 v162, -1')
        a('s_mov_b32 s38, 0x40000000')
        a(f'v_add_u32 v0, {WL + w*TILE_B}, v2')
    else:
        a('v_and_b32 v119, 15, v1')
        a(f's_and_b32 s22, s17, {R2-1}')
        a('s_lshl_b32 s22, s22, 7')
        a(f's_add_u32 s22, s22, {FLG2 + 16*128}')
        a('v_lshl_add_u32 v119, v119, 2, s22')
        a('s_lshl_b32 s22, s17, 2')
        a(f's_add_u32 s22, s22, {FLG2}')
        a('v_lshl_add_u32 v118, v1, 7, s22')
        a(f'v_cmp_gt_u32 vcc, {R2}, v1')
        a('v_cndmask_b32 v118, v74, v118, vcc')
        a('s_lshl_b32 s35, s17, 7')
        a(f's_add_u32 s35, s35, {CNT_OFF + VOC}')
        a('s_mov_b32 s28, s35')
        a('v_min_u32 v116, 13, v1')
        a('s_mul_i32 s22, s17, 14')
        a('v_add_u32 v116, s22, v116')
        a('v_lshlrev_b32 v116, 7, v116')
        a(f's_mov_b32 s39, {XF_OFF + XSEG_B}')
        if w == 3:
            vo_wait0(a, 'ch_vw7')
            a(f'buffer_load_dword v100, v116, {SRD}, s39 offen sc1')
        a(f's_mov_b32 s39, {XF_OFF + 2*XSEG_B}')

MERGE = 0
RB1_DELAY = 0
def wg_atomic(a, P, dst):
    a('v_mov_b32 v6, 160000')
    a('s_barrier')
    a('s_cmp_lg_u32 s16, 0')
    a(f's_cbranch_scc1 {P}1')
    a('s_mov_b64 exec, 1')
    a(f'buffer_atomic_add v4, v5, {DBG}, 0 offen sc0')
    a('s_waitcnt vmcnt(0)')
    a('ds_write_b32 v6, v4')
    a('s_waitcnt lgkmcnt(0)')
    a('s_mov_b64 exec, -1')
    a.label(f'{P}1')
    a('s_barrier')
    a('ds_read_b32 v4, v6')
    a('s_waitcnt lgkmcnt(0)')
    a(f'v_readfirstlane_b32 {dst}, v4')

def staff_check(a, okl, mode):
    a('s_mov_b32 s30, 0')
    a('v_mov_b32 v36, 0')
    a.label('ch_chk')
    a(f'buffer_load_dword v37, v36, {DBG}, 0 offen sc1')
    a('s_waitcnt vmcnt(0)')
    a('v_readfirstlane_b32 s22, v37')
    a('s_and_b32 s22, s22, 0xffff')
    a('s_cmp_ge_u32 s22, 32')
    a('s_cbranch_scc1 ch_go_end')
    a('s_sleep 16')
    a('s_add_u32 s30, s30, 1')
    a('s_cmp_lt_u32 s30, 64')
    a('s_cbranch_scc1 ch_chk')
    a.label('ch_go_end')
    a('v_mov_b32 v6, 160016')
    a('v_mov_b32 v4, s22')
    a('s_cmp_lg_u32 s16, 0')
    a('s_cbranch_scc1 ch_dec')
    a('ds_write_b32 v6, v4')
    a('s_waitcnt lgkmcnt(0)')
    a.label('ch_dec')
    a('s_barrier')
    a('ds_read_b32 v4, v6')
    a('s_waitcnt lgkmcnt(0)')
    a('v_readfirstlane_b32 s22, v4')
    a('s_cmp_ge_u32 s22, 32')
    a(f's_cbranch_scc1 {okl}')
    a('v_mov_b32 v4, 0x10001')
    a(f's_mov_b32 s18, {mode}')
    a('s_branch ch_take')

D_CLAIM = 4; D_CNT = 12; D_REP = 20; D_R1 = 128; D_R2 = 132; NINIT = 4
FUSE = 1
REP_WAIT = 60
def wg_signal(a, off, inc=1):
    lb = a.newlabel('sig')
    a('s_barrier')
    a('s_cmp_lg_u32 s16, 0')
    a(f's_cbranch_scc1 {lb}')
    a(f'v_mov_b32 v60, {inc}')
    a(f'v_mov_b32 v61, {off}')
    a('s_mov_b64 exec, 1')
    a(f'buffer_atomic_add v60, v61, {DBG}, 0 offen')
    a('s_mov_b64 exec, -1')
    a.label(lb)

def poll(a, P, loads, cond, sleep=2, lim=SPIN_LIMIT, fail='cA_abort'):
    a('s_mov_b32 s30, 0')
    a.label(P)
    for x in loads: a(x)
    a('s_waitcnt vmcnt(0)')
    for x in cond: a(x)
    a(f's_cbranch_vccz {P}_ok')
    a(f's_sleep {sleep}')
    a('s_add_u32 s30, s30, 1')
    a(f's_cmp_lt_u32 s30, {lim}')
    a(f's_cbranch_scc1 {P}')
    a(f's_branch {fail}')
    a.label(P + '_ok')

def uniform(a, sreg, lds=160032):
    lb = a.newlabel('uni')
    a(f'v_mov_b32 v6, {lds}')
    a(f'v_mov_b32 v7, {sreg}')
    a('s_barrier')
    a('s_cmp_lg_u32 s16, 0')
    a(f's_cbranch_scc1 {lb}')
    a('ds_write_b32 v6, v7')
    a('s_waitcnt lgkmcnt(0)')
    a.label(lb)
    a('s_barrier')
    a('ds_read_b32 v7, v6')
    a('s_waitcnt lgkmcnt(0)')
    a(f'v_readfirstlane_b32 {sreg}, v7')

def lanes(a):
    a('v_and_b32 v1, 63, v0')
    a('v_lshlrev_b32 v2, 4, v1')
    a('v_lshrrev_b32 v3, 4, v1')
    a('v_and_b32 v4, 15, v1')

def mem0_load(a):
    from prep import srd
    srd(a, 68, 50, 51, 8 * 448 * 2)
    a('v_lshrrev_b32 v6, 3, v0')
    a('v_min_u32 v6, 27, v6')
    a('v_and_b32 v7, 7, v0')
    a('v_mul_u32_u24 v9, 896, v7')
    a('v_lshl_add_u32 v9, v6, 5, v9')
    a('buffer_load_dwordx4 v[176:179], v9, s[68:71], 0 offen')
    a('buffer_load_dwordx4 v[180:183], v9, s[68:71], 0 offen offset:16')

def init_job(a, P, k_s):
    a('v_mov_b32 v10, 0x40000000')
    a('v_mov_b32 v5, 1')
    for r in range(148, 152): a(f'v_mov_b32 v{r}, 0')
    for r in range(152, 156): a(f'v_mov_b32 v{r}, -1')
    a('v_lshlrev_b32 v8, 4, v0')
    a(f's_cmp_lg_u32 {k_s}, 0')
    a(f's_cbranch_scc1 {P}_1')
    a(f's_mov_b32 s23, {PFL}')
    a(f'buffer_store_dwordx4 v[148:151], v8, {SRD}, s23 offen sc1')
    a(f's_mov_b32 s23, {PFL + 4096}')
    a(f'buffer_store_dwordx4 v[148:151], v8, {SRD}, s23 offen sc1')
    a('s_waitcnt vmcnt(0)')
    a('s_barrier')
    a(f'buffer_store_dword v5, v252, {DBG}, 0 offen offset:{D_R1} sc1')
    a.label(f'{P}_1')
    mem0_load(a)
    a(f's_lshl_b32 s20, {k_s}, 12')
    a('v_add_u32 v8, s20, v8')
    for base, n, r in ((CNT_OFF, AC, 148), (EXCH_OFF + 2 * EXCH_B, 48 * 128, 148), (EXCH_OFF + 7 * KB, 2 * EXCH_B - 7 * KB, 152), (MEMG_OFF + 7 * KB, 63 * 7 * KB, 152)):
        full, rem = divmod(n, 16384)
        a(f's_mov_b32 s23, {base}')
        if full:
            lb = a.newlabel(P + 'lp')
            a.label(lb)
            a(f'buffer_store_dwordx4 v[{r}:{r+3}], v8, {SRD}, s23 offen sc1')
            a('s_add_u32 s23, s23, 16384')
            a(f's_cmp_lt_u32 s23, {base + full * 16384}')
            a(f's_cbranch_scc1 {lb}')
        if rem:
            a(f'v_cmp_gt_u32 vcc, {rem}, v8')
            a('v_cndmask_b32 v9, v10, v8, vcc')
            a(f'buffer_store_dwordx4 v[{r}:{r+3}], v9, {SRD}, s23 offen sc1')
    a(f's_cmp_lg_u32 {k_s}, 1')
    a(f's_cbranch_scc1 {P}_nm')
    a('v_lshrrev_b32 v6, 3, v0')
    a('v_and_b32 v7, 7, v0')
    a('v_lshlrev_b32 v8, 8, v6')
    a('v_lshl_add_u32 v8, v7, 4, v8')
    a('v_cmp_gt_u32 vcc, 28, v6')
    a('v_cndmask_b32 v8, v10, v8, vcc')
    a('s_waitcnt vmcnt(8)')
    for j in range(4):
        a(f'v_mov_b32 v{184+j}, v{176+2*j}')
        a(f'v_mov_b32 v{188+j}, v{177+2*j}')
    for base in (EXCH_OFF, MEMG_OFF):
        a(f's_mov_b32 s23, {base}')
        a(f'buffer_store_dwordx4 v[184:187], v8, {SRD}, s23 offen sc1')
        a(f'buffer_store_dwordx4 v[188:191], v8, {SRD}, s23 offen offset:128 sc1')
    a.label(f'{P}_nm')
    a('s_waitcnt vmcnt(0)')
    a('s_barrier')
    a('s_cmp_lg_u32 s16, 0')
    a(f's_cbranch_scc1 {P}_e')
    a('v_mov_b32 v6, 1')
    a('s_mov_b64 exec, 1')
    a(f'buffer_atomic_add v6, v252, {DBG}, 0 offen offset:{D_CNT} sc0')
    a('s_waitcnt vmcnt(0)')
    a('v_readfirstlane_b32 s20, v6')
    a(f's_cmp_lg_u32 s20, {NINIT-1}')
    a(f's_cbranch_scc1 {P}_e0')
    a(f'buffer_store_dword v5, v252, {DBG}, 0 offen offset:{D_R2} sc1')
    a.label(f'{P}_e0')
    a('s_mov_b64 exec, -1')
    a.label(f'{P}_e')

FLAG_AT = 4
TA_LATE = 0
def worker_prep(a):
    import prep2
    ldi = [f'buffer_load_dwordx2 v[254:255], v252, {DBG}, 0 offen offset:{D_R1} sc1']
    def flag(P, mat):
        a('s_barrier')
        a('s_cmp_lg_u32 s16, 0')
        a(f's_cbranch_scc1 {P}_f')
        a('v_readfirstlane_b32 s20, v254')
        a('s_cmp_eq_u32 s20, 1')
        a(f's_cbranch_scc1 {P}_w_ok')
        poll(a, P + '_w', [f'buffer_load_dword v254, off, {DBG}, 0 offset:{D_R1} sc1'], ['v_cmp_ne_u32 vcc, 1, v254'], sleep=8, lim=16, fail=P + '_f')
        a('s_lshl_b32 s20, s17, 7')
        a(f's_add_u32 s20, s20, {PFL + (2048 if mat == "A" else 0)}')
        a('s_lshl_b32 s21, 1, s19')
        a('v_mov_b32 v248, s21')
        a('s_mov_b64 exec, 1')
        a(f'buffer_atomic_or v248, v252, {SRD}, s20 offen sc0')
        a('s_mov_b64 exec, -1')
        a(f's_mov_b32 s{38 if mat == "A" else 37}, s21')
        a.label(P + '_f')
    def flag2(P, mat):
        sr = f's{38 if mat == "A" else 37}'
        a('v_readfirstlane_b32 s20, v248')
        a(f's_xor_b32 s20, s20, {sr}')
        a('s_cmp_lg_u32 s20, 0x3fff')
        a(f's_cselect_b32 s20, 0, {sr}')
        a(f's_mov_b32 {sr}, 0')
        a('s_cmp_eq_u32 s20, 0')
        a(f's_cbranch_scc1 {P}')
        a(f's_lshl_b32 s21, {0x10000 if mat == "A" else 1}, s17')
        a('v_mov_b32 v248, s21')
        a(f's_mov_b32 s20, {PFL + 4096}')
        a('s_mov_b64 exec, 1')
        a(f'buffer_atomic_or v248, v252, {SRD}, s20 offen')
        a('s_mov_b64 exec, -1')
        a.label(P)
    def role():
        a('v_readfirstlane_b32 s91, v249')
        uniform(a, 's91')
        a('s_and_b32 s91, s91, 0xffff')
        a('s_cmp_lt_u32 s91, 32')
        a('s_cbranch_scc1 ch_role2')
        a('s_branch wp_all')
    prep2.pst(a)
    a(f's_sub_u32 s35, s3, {XCD_SEL}')
    a('s_and_b32 s35, s35, 7')
    a('s_lshr_b32 s36, s2, 3')
    a('s_mul_i32 s33, s35, 28')
    a('s_add_u32 s33, s33, s36')
    a('s_mov_b32 s97, 0')
    a('s_mov_b32 s96, 0')
    a('s_mov_b32 s37, 0\ns_mov_b32 s38, 0')
    a('s_mov_b32 s39, 0xffff0000')
    lanes(a)
    prep2.consts(a)
    a('s_cmp_lt_u32 s36, 28')
    a('s_cbranch_scc1 wp_B')
    a('s_cmp_eq_u32 s35, 0')
    a('s_cbranch_scc1 wp_ini')
    a('s_lshl_b32 s33, s35, 2')
    a('s_add_u32 s33, s33, s36')
    a('s_sub_u32 s33, s33, 32')
    prep2.decode(a, 's33')
    a('s_branch wp_A0')
    a.label('wp_ini')
    a('v_mov_b32 v4, 1')
    a(f'v_mov_b32 v5, {D_CLAIM}')
    wg_atomic(a, 'wp_ic', 's33')
    lanes(a)
    a(f's_cmp_ge_u32 s33, {NINIT}')
    a('s_cbranch_scc1 wp_ini2')
    init_job(a, 'wp_ij', 's33')
    a.label('wp_ini2')
    a('s_cmp_lg_u32 s97, 0')
    a('s_cbranch_scc1 wp_all')
    a(f's_cmp_lg_u32 s3, {XCD_SEL}')
    a('s_cbranch_scc1 wp_all')
    role()
    a.label('wp_B')
    prep2.decode(a, 's33')
    prep2.touch(a, 'B', 253)
    prep2.xunit_load(a, 's33')
    prep2.setup(a, 'AB')
    a('s_cmp_eq_u32 s35, 0')
    a('s_cselect_b32 s34, 1, s97')
    def tA(n=0):
        a('s_mov_b32 s55, s27')
        prep2.touch(a, 'A', 253, skip='s34')
        a('s_mov_b32 s27, s55')
    if TA_AT < 0: tA()
    if 0 <= TA_AT < 32: prep2.issue(a, 'B', tA, TA_AT)
    else: prep2.issue(a, 'B')
    if not TA_LATE and TA_AT >= 32: tA()
    if EARLY_A:
        prep2.compute(a, 'wpb', 'B', 1 if TA_AT >= 32 else 0, pre_epi=ldi, early=prep2.xunit_store(), nextA='s34')
        evlog(a, 9010)
        a('s_cmp_lg_u32 s34, 0')
        a('s_cbranch_scc1 wp_B2')
        a('s_waitcnt vmcnt(0)')
        flag('wp_f0', 'B')
        prep2.pst(a)
        a('s_branch wp_A')
    else:
        prep2.compute(a, 'wpb', 'B', 0 if TA_LATE or TA_AT < 32 else 1, pre_epi=ldi, early=prep2.xunit_store())
        evlog(a, 9010)
        a('s_cmp_lg_u32 s34, 0')
        a('s_cbranch_scc1 wp_B2')
    if TA_LATE: prep2.touch(a, 'A', 253)
    def hook(n):
        a(f's_waitcnt vmcnt({n + TA_LATE})')
        flag('wp_f1', 'B')
        prep2.pst(a)
    if not EARLY_A:
        prep2.issue(a, 'A', hook, FLAG_AT)
        a('s_branch wp_A')
    a.label('wp_B2')
    a('s_waitcnt vmcnt(0)')
    flag('wp_f2', 'B')
    a('s_waitcnt vmcnt(0)')
    flag2('wp_g2', 'B')
    prep2.pst(a, 4)
    prep2.pst_flush(a)
    a('s_cmp_lg_u32 s97, 0')
    a('s_cbranch_scc1 wp_rep')
    a('s_branch wp_ini2')
    a.label('wp_A0')
    prep2.issue(a, 'A')
    prep2.setup(a, 'A')
    if EARLY_A: a('s_waitcnt vmcnt(0)')
    a.label('wp_A')
    prep2.compute(a, 'wpa', 'A', 0, pre_epi=ldi + [f'buffer_load_dword v253, v252, {DBG}, 0 offen sc1'], early=[] if EARLY_A else [lambda: flag2('wp_g1', 'B')], late=[lambda: flag2('wp_g1', 'B')] if EARLY_A else [], nowait=EARLY_A)
    a('s_waitcnt vmcnt(0)')
    flag('wp_f3', 'A')
    prep2.pst(a)
    prep2.pst_flush(a)
    evlog(a, 9011)
    a('s_cmp_lg_u32 s97, 0')
    a('s_cbranch_scc1 wp_all')
    a('v_readfirstlane_b32 s20, v255')
    a('v_readfirstlane_b32 s21, v253')
    a('s_and_b32 s21, s21, 0xffe0')
    a('s_cselect_b32 s96, s20, 0')
    a('s_cmp_eq_u32 s96, 0')
    a('s_cbranch_scc1 wp_all')
    a('v_mov_b32 v250, 1')
    a(f's_mov_b32 s20, {CNT_OFF + JOBC}')
    a('s_mov_b64 exec, 1')
    a(f'buffer_atomic_add v250, v252, {SRD}, s20 offen sc0')
    a('s_mov_b64 exec, -1')
    a.label('wp_all')
    a('v_mov_b32 v252, 0x40000000')
    a('v_cmp_eq_u32 vcc, 0, v0')
    a('v_cndmask_b32 v252, v252, v0, vcc')
    a('s_mov_b32 s34, 0')
    a('s_cmp_lg_u32 s16, 0')
    a('s_cbranch_scc1 wp_w2')
    a(f's_mov_b32 s24, {PFL + 4096}')
    a(f'buffer_load_dword v66, off, {SRD}, s24 sc1')
    a('s_waitcnt vmcnt(0)')
    flag2('wp_g3', 'A')
    a('s_cmp_lg_u32 s96, 0')
    a('s_cbranch_scc1 wp_v2')
    poll(a, 'wp_v', [f'buffer_load_dwordx2 v[64:65], off, {DBG}, 0 sc1', f'buffer_load_dword v66, off, {DBG}, 0 offset:{D_R2} sc1'],
         ['v_and_b32 v68, 0xffe0, v64', 'v_min_u32 v68, v68, v66', 'v_cmp_ne_u32 vcc, 1, v68'], sleep=16, lim=REP_WAIT // 2, fail='wp_w1')
    a(f'buffer_load_dword v66, off, {SRD}, s24 sc1')
    a('s_waitcnt vmcnt(0)')
    a.label('wp_v2')
    a('v_mov_b32 v64, 32')
    a(f'v_mov_b32 v65, {NINIT}')
    a('v_or_b32 v66, s39, v66')
    a('v_cmp_ne_u32 vcc, -1, v66')
    a('s_cbranch_vccz wp_w2')
    a('s_cmp_eq_u32 s97, 2')
    a('s_cbranch_scc1 wp_w1')
    poll(a, 'wp_w', [f'buffer_load_dword v66, off, {SRD}, s24 sc1'], ['v_or_b32 v66, s39, v66', 'v_cmp_ne_u32 vcc, -1, v66'], sleep=8, lim=REP_WAIT, fail='wp_w1')
    a('s_branch wp_w2')
    a.label('wp_w1')
    a('v_readfirstlane_b32 s20, v64')
    a('v_readfirstlane_b32 s21, v65')
    a('s_and_b32 s20, s20, 0xffff')
    a('s_cmp_lt_u32 s20, 32')
    a('s_cselect_b32 s34, 2, 1')
    a(f's_cmp_lt_u32 s21, {NINIT}')
    a('s_cselect_b32 s34, 4, s34')
    a('s_add_u32 s32, s32, 1')
    a('s_cmp_lt_u32 s32, 4000')
    a('s_cselect_b32 s34, s34, 3')
    a.label('wp_w2')
    uniform(a, 's34')
    a('s_cmp_eq_u32 s34, 0')
    a('s_cbranch_scc1 wp_done')
    a('s_mov_b32 s97, 1')
    a('s_cmp_eq_u32 s34, 1')
    a('s_cbranch_scc1 wp_rep')
    a('s_cmp_eq_u32 s34, 3')
    a('s_cbranch_scc1 cA_abort')
    a('s_cmp_eq_u32 s34, 4')
    a('s_cbranch_scc1 wp_ini')
    a('v_mov_b32 v4, 0x10001')
    a('s_branch ch_take')
    a.label('wp_rep')
    a('s_load_dwordx8 s[40:47], s[0:1], 72')
    a('s_load_dwordx4 s[48:51], s[0:1], 56')
    a('s_waitcnt vmcnt(0) lgkmcnt(0)')
    a('v_mov_b32 v4, 1')
    a(f'v_mov_b32 v5, {D_REP}')
    wg_atomic(a, 'wp_el', 's33')
    lanes(a)
    prep2.consts(a)
    a('s_and_b32 s33, s33, 511')
    a('s_and_b32 s20, s33, 255')
    a('s_cmp_ge_u32 s20, 224')
    a('s_cselect_b32 s97, 1, 2')
    a('s_cbranch_scc1 wp_all')
    prep2.decode(a, 's20')
    a('s_lshl_b32 s20, s17, 7')
    a('s_lshr_b32 s21, s33, 8')
    a('s_lshl_b32 s21, s21, 11')
    a('s_add_u32 s20, s20, s21')
    a(f's_add_u32 s20, s20, {PFL}')
    a(f'buffer_load_dword v5, off, {SRD}, s20 sc1')
    a('s_waitcnt vmcnt(0)')
    a('v_readfirstlane_b32 s34, v5')
    uniform(a, 's34')
    a('s_bitcmp1_b32 s34, s19')
    a('s_cbranch_scc1 wp_rep')
    a('s_barrier')
    a('s_cmp_lt_u32 s33, 256')
    a('s_cbranch_scc1 wp_B')
    a('s_branch wp_A0')
    a.label('wp_done')

JOBS = None
NOS4D = 0
NOXT = 0
VPROBE = -1
MG_MODE = 2
MG_SW = 58
FP1 = 0
FP2 = 0
F2_PRIO = 1
B3_AT = 10
F1_W = 1
ZV = 3
ZX = 8
F1_POS = 5
STLB = 1
ENC = 0
EXIT_WB = 0
EARLY_A = 0
TA_AT = 32
X_W2 = 0
X_SLEEP = 0
NOVO = 0
PROT = 0
def worker_all(a):
    import s4d, gemm, tok, t2srv
    JS = SRD
    JO = CNT_OFF + JOBC
    LD = 'sc1' if FUSE else ''
    N0 = 224 if FUSE else 0
    NJ = 1248
    tok.PEEK = JS
    if FUSE: worker_prep(a)
    a('s_load_dwordx2 s[36:37], s[0:1], 112')
    a('s_waitcnt lgkmcnt(0)')
    a(f's_mov_b32 s92, s36\ns_and_b32 s93, s37, 0xffff\ns_mov_b32 s94, {2048*896*2}\ns_mov_b32 s95, 0x20000')
    def ask():
        lb = a.newlabel('ask')
        a('s_cmp_lg_u32 s16, 0')
        a(f's_cbranch_scc1 {lb}')
        a('v_mov_b32 v250, 1')
        a(f'v_mov_b32 v251, {JO}')
        a('s_mov_b64 exec, 1')
        a(f'buffer_atomic_add v250, v251, {JS}, 0 offen sc0')
        a('s_mov_b64 exec, -1')
        a.label(lb)
    if FUSE:
        a('s_mov_b32 s97, s39')
        a('s_cmp_lg_u32 s96, 0')
        a('s_cbranch_scc1 wk_next')
    else: a('s_mov_b32 s96, 0')
    ask()
    a('s_branch wk_next')
    a.label('wk_loop')
    a('s_waitcnt vmcnt(0) lgkmcnt(0)')
    if not FUSE:
        a('s_cmp_eq_u32 s96, 1')
        a('s_cbranch_scc1 wk_ask')
        a('s_mov_b32 s96, 1')
        staff_check(a, 'wk_ask', 0)
    a.label('wk_ask')
    a('v_readfirstlane_b32 s22, v250')
    a(f's_cmp_ge_u32 s22, {NJ}')
    a('s_cbranch_scc1 wk_next')
    ask()
    a.label('wk_next')
    evlog(a, 9005)
    a('v_mov_b32 v6, 160000')
    a('s_waitcnt vmcnt(0)')
    a('s_barrier')
    a('s_cmp_lg_u32 s16, 0')
    a('s_cbranch_scc1 wk_n1')
    a('s_mov_b64 exec, 1')
    a('ds_write_b32 v6, v250')
    a('s_mov_b64 exec, -1')
    a('s_waitcnt lgkmcnt(0)')
    a.label('wk_n1')
    a('s_barrier')
    a('ds_read_b32 v4, v6')
    a('s_waitcnt lgkmcnt(0)')
    a('v_readfirstlane_b32 s3, v4')
    evlog(a, 's3')
    a(f's_cmp_ge_u32 s3, {NJ}')
    a('s_cbranch_scc1 wk_done')
    a('v_mov_b32 v250, 0')
    a(f'v_mov_b32 v251, {JO}')
    lanes(a)
    if FUSE:
        a('s_cmp_ge_u32 s3, 224')
        a('s_cbranch_scc1 wk_n0')
        a('s_mov_b32 s18, 0')
        a('s_and_b32 s17, s3, 15')
        a('s_add_u32 s17, s17, 16')
        a('s_lshr_b32 s34, s3, 4')
        a('s_add_u32 s35, s34, 1')
        a('s_branch wk_gemm')
        a.label('wk_n0')
        a('s_cmp_eq_u32 s97, 0')
        a('s_cbranch_scc1 wk_n2')
        evlog(a, 9021)
        a('v_mov_b32 v250, s3')
        for x in ('s96, 1', 's97, 1', 's39, 0', 's37, 0', 's38, 0', 's32, 0'): a('s_mov_b32 ' + x)
        a('s_branch wp_all')
        a.label('wk_n2')
    a('s_cmp_ge_u32 s3, 736')
    a('s_cbranch_scc1 wk_tok')
    a('s_cmp_ge_u32 s3, 624')
    a('s_cbranch_scc1 wk_s4d')
    a('s_cmp_ge_u32 s3, 432')
    a('s_cbranch_scc1 wk_full')
    a('s_cmp_ge_u32 s3, 400')
    a('s_cbranch_scc1 wk_srv')
    a('s_and_b32 s17, s3, 15')
    a('s_add_u32 s17, s17, 16')
    a('s_cmp_ge_u32 s3, 336')
    a('s_cbranch_scc1 wk_half')
    a('s_mov_b32 s18, 1')
    a('s_sub_u32 s34, s3, 224')
    a('s_lshr_b32 s34, s34, 4')
    a('s_lshl_b32 s34, s34, 1')
    a('s_add_u32 s35, s34, 2')
    a('s_branch wk_gemm')
    a.label('wk_half')
    a('s_sub_u32 s20, s3, 336')
    a('s_lshr_b32 s18, s20, 5')
    a('s_add_u32 s18, s18, 2')
    a('s_bitcmp1_b32 s20, 4')
    a('s_cselect_b32 s34, 7, 0')
    a('s_add_u32 s35, s34, 7')
    a('s_branch wk_gemm')
    a.label('wk_full')
    a('s_sub_u32 s20, s3, 368')
    a('s_and_b32 s17, s20, 15')
    a('s_lshr_b32 s18, s20, 4')
    a('s_cmp_lt_u32 s18, 8')
    a('s_cselect_b32 s21, 16, 0')
    a('s_add_u32 s17, s17, s21')
    a('s_and_b32 s18, s18, 7')
    a('s_mov_b32 s34, 0')
    a('s_mov_b32 s35, 14')
    a.label('wk_gemm')
    gemm.gemm_body(a, 'wg', 's18', 's17', st='sc1', signal=True, ld=LD)
    a('s_branch wk_loop')
    a.label('wk_srv')
    a('s_and_b32 s18, s3, 15')
    a('s_lshr_b32 s19, s3, 4')
    a('s_and_b32 s19, s19, 1')
    t2srv.t2srv_body(a, 'ws', 's18', 's19', 'cA_abort', ld=LD)
    a('v_mov_b32 v250, 0')
    a('s_branch wk_loop')
    a.label('wk_s4d')
    a('s_sub_u32 s3, s3, 624')
    if not NOS4D:
        s4d.s4d_setup(a)
        s4d.s4d_item(a, 'wk', 's3')
    a('s_branch wk_loop')
    a.label('wk_tok')
    a('s_sub_u32 s3, s3, 736')
    a('s_cmp_ge_u32 s3, 512')
    a('s_cbranch_scc1 wk_done')
    a('s_lshr_b32 s17, s3, 3')
    a('s_and_b32 s18, s3, 3')
    a('s_bitcmp1_b32 s3, 2')
    a('s_cbranch_scc1 wk_toko')
    tok.tokp_body(a, 's17', 's18', ld='sc1', st='sc1', sync='wp', ldx=LD)
    a('s_branch wk_loop')
    a.label('wk_toko')
    tok.toko_body(a, 's17', 's18', ld='sc1', sync='wo', OUT='s[92:95]')
    a('s_branch wk_loop')
    a.label('wp_abort')
    a.label('wo_abort')
    a('s_branch cA_abort')
    a.label('wk_done')
    if EXIT_WB:
        a('s_cmp_lg_u32 s16, 0')
        a('s_cbranch_scc1 ch_end')
        a('buffer_wbl2 sc1')
    evlog(a, 9020)

def gen_chain_kernel(name='main_kernel', worker=None):
    a = Asm()
    a.raw(kernel_header(name))
    a('s_cmp_ge_u32 s2, 256')
    a('s_cbranch_scc1 ch_end')
    if DIAG: a('s_memrealtime s[94:95]')
    a('s_load_dwordx2 s[4:5], s[0:1], 120')
    a('s_load_dwordx2 s[6:7], s[0:1], 128')
    a('s_load_dwordx8 s[40:47], s[0:1], 72')
    a('s_load_dwordx4 s[48:51], s[0:1], 56')
    if CODE_PF == 1: code_prefetch(a, name, 'ch_end', 130000, 60)
    if CODE_PF == 2:
        a('s_cmp_lt_u32 s2, 224')
        a('s_cbranch_scc1 ch_npf')
        code_prefetch(a, name, 'ch_end', 130000, 60)
        a.label('ch_npf')
    a('s_mov_b32 s32, 0')
    a('s_getreg_b32 s3, hwreg(HW_REG_XCC_ID)')
    a('s_and_b32 s3, s3, 15')
    a('v_lshrrev_b32 v1, 6, v0')
    a('v_readfirstlane_b32 s16, v1')
    a('s_waitcnt lgkmcnt(0)')
    a('s_mov_b32 s8, s6\ns_and_b32 s9, s7, 0xffff\ns_mov_b32 s10, 0x10000000\ns_mov_b32 s11, 0x20000')
    a('s_mov_b32 s12, s4\ns_and_b32 s13, s5, 0xffff\ns_mov_b32 s14, 256\ns_mov_b32 s15, 0x20000')
    if EVLOG:
        a('s_lshl_b32 s100, s2, 2')
        a('s_add_u32 s100, s100, s16')
        a('s_lshl_b32 s100, s100, 8')
        a(f's_add_u32 s100, s100, {EV_OFF}')
    evlog(a, 9000)
    if FUSE:
        a('v_mov_b32 v252, 0x40000000')
        a('v_cmp_eq_u32 vcc, 0, v0')
        a('v_cndmask_b32 v252, v252, v0, vcc')
        a(f's_cmp_lg_u32 s3, {XCD_SEL}')
        a('s_cbranch_scc1 ch_worker')
        a('s_cmp_lg_u32 s16, 0')
        a('s_cbranch_scc1 ch_worker')
        a('v_mov_b32 v249, 1')
        a('s_mov_b64 exec, 1')
        a(f'buffer_atomic_add v249, v252, {DBG}, 0 offen sc0')
        a('s_mov_b64 exec, -1')
        a('s_branch ch_worker')
    a(f's_cmp_lg_u32 s3, {XCD_SEL}')
    a('s_cbranch_scc1 ch_worker')
    a('v_mov_b32 v4, 1')
    a('s_mov_b32 s18, 0')
    a.label('ch_take')
    a('v_mov_b32 v5, 0')
    wg_atomic(a, 'ch_el', 's17')
    a('s_and_b32 s17, s17, 0xffff')
    a('s_cmp_lt_u32 s17, 32')
    a('s_cbranch_scc1 ch_role')
    if FUSE:
        lanes(a)
        a('s_branch wp_all')
    a('s_cmp_eq_u32 s18, 0')
    a('s_cbranch_scc1 ch_worker')
    a('s_branch ch_end')
    a.label('ch_role')
    if FUSE:
        a('s_mov_b32 s91, s17')
        a.label('ch_role2')
        a('s_mov_b32 s17, s91')
        evlog(a, 9001)
    lane_consts(a)
    a('s_mov_b32 s19, 0')
    a('s_mov_b32 s18, 1')
    a(f's_mov_b32 s20, {EXCH_OFF}')
    a(f's_mov_b32 s21, {EXCH_OFF + EXCH_B}')
    a(f's_mov_b32 s23, {EXCH_OFF + 4096}')
    a('s_lshr_b32 s89, s17, 4')
    a('s_lshl_b32 s89, s89, 2')
    a('s_add_u32 s89, s89, s16')
    a('s_and_b32 s17, s17, 15')
    for p in range(8):
        a(f's_cmp_eq_u32 s89, {p}')
        a(f's_cbranch_scc1 ch_init{p}')
    a('s_branch ch_end')
    for p in range(8):
        a.label(f'ch_init{p}')
        if p < 4: init_score(a, p)
        else: init_value(a, p - 4)
        if p == 6 or (p == 3 and SC_TOUCH): vo_wait0(a, f'ch_vw{p}')
        a('s_mov_b32 s30, 0')
        a('v_mov_b32 v8, 0')
        a.label(f'ch_md{p}')
        a(f'buffer_load_dword v9, v8, {DBG}, 0 offen sc1')
        a('s_waitcnt vmcnt(0) lgkmcnt(0)')
        a('v_readfirstlane_b32 s22, v9')
        a('s_and_b32 s31, s22, 0xffff')
        a('s_cmp_ge_u32 s31, 32')
        a(f's_cbranch_scc1 ch_go{p}')
        a('s_sleep 2')
        a('s_add_u32 s30, s30, 1')
        a(f's_cmp_lt_u32 s30, {SPIN_LIMIT*8}')
        a(f's_cbranch_scc1 ch_md{p}')
        a('s_branch ch_end')
        a.label(f'ch_go{p}')
        evlog(a, 9003)
        if EVLOG or HDBG: a('v_mov_b32 v36, 0\nv_mov_b32 v37, 0')
        if DIAG: a('s_memtime s[90:91]')
        a('s_mov_b32 s31, 0')
        a('s_lshr_b32 s22, s22, 16')
        a('s_cmp_lg_u32 s22, 0')
        role = 'sc' if p < 4 else 'va'
        a(f's_cbranch_scc1 cB_{role}{p & 3}_loop')
        a(f's_branch cA_{role}{p & 3}_loop')
    for tag, st in (('cA', ''), ('cB', 'sc1')):
        for w in range(4): gen_score(a, w, st, tag)
        for w in range(4): gen_value(a, w, st, tag)
        a.label(f'{tag}_abort')
        a('v_mov_b32 v4, 0xdead')
        a('v_mov_b32 v5, 16')
        a(f'buffer_store_dword v4, v5, {DBG}, 0 offen')
        a('s_branch ch_end')
        a.label(f'{tag}_done')
        evlog(a, 9004)
        if DIAG:
            a('s_memtime s[60:61]')
            a('s_waitcnt lgkmcnt(0)')
            a('s_sub_u32 s60, s60, s90')
            a('v_mov_b32 v4, s60')
            a('s_cmp_eq_u32 s89, 3')
            a('s_cselect_b32 s22, 8, 0x1000')
            a('v_mov_b32 v5, s22')
            a(f'buffer_store_dword v4, v5, {DBG}, 0 offen')
            a('s_memrealtime s[60:61]')
            a('s_sub_u32 s86, s86, s94')
            a('s_waitcnt lgkmcnt(0)')
            a('s_sub_u32 s60, s60, s94')
            a('v_mov_b32 v6, s86')
            a('v_mov_b32 v7, s60')
            a(f'buffer_store_dwordx2 v[6:7], v5, {DBG}, 0 offen offset:16')
            a('s_cmp_eq_u32 s31, 0')
            a(f's_cbranch_scc1 {tag}_dz')
            a('s_mov_b64 exec, 1')
            for k in range(4):
                a(f's_bfe_u32 s22, s31, {(8 << 16) | (8 * k)}')
                a(f'v_mov_b32 v{4+k}, s22')
                a(f'v_mov_b32 v10, {32 + 4*k}')
                a(f'buffer_atomic_add v{4+k}, v10, {DBG}, 0 offen')
                a.nop(2)
            a('s_mov_b64 exec, -1')
            a.label(f'{tag}_dz')
        if ENC:
            a('s_cmp_lg_u32 s89, 3')
            a('s_cbranch_scc1 ch_end')
            a('s_cmp_lg_u32 s17, 5')
            a('s_cbranch_scc1 ch_end')
            a('s_add_u32 s62, s94, 20000')
            if ENC == 2: a('s_add_u32 s62, s62, s86')
            if ENC == 3: a('s_add_u32 s62, s62, s60')
            a.label(f'{tag}_enc')
            a('s_memrealtime s[64:65]')
            a('s_waitcnt lgkmcnt(0)')
            a('s_sub_u32 s64, s64, s62')
            a('s_cmp_lt_i32 s64, 0')
            a(f's_cbranch_scc1 {tag}_enc')
        stamp_calib(a, f'{tag}_cal')
        a('s_branch ch_end')
    a.label('ch_worker')
    worker_all(a)
    a.label('ch_end')
    a('s_endpgm')
    return a
```

```python
from asmlib import *
from layout import *
from prep import srd, SIGMA, W_BYTES
WS = 's[8:11]'
LDFL = ''
TFL = ''
SA = 's[60:63]'; SB = 's[56:59]'
CF = 256
RF = 384

PST = 0
_n = [0]
def pst(a, k=None):
    if PST and k is not None: a(f's_memrealtime s[{72+2*k}:{73+2*k}]')
    elif PST:
        a(f's_memrealtime s[{72+2*_n[0]}:{73+2*_n[0]}]'); _n[0] += 1
def pst_flush(a):
    if not PST: return
    a('s_waitcnt lgkmcnt(0)')
    a('s_lshl_b32 s20, s2, 2\ns_add_u32 s20, s20, s16\ns_lshl_b32 s20, s20, 6\ns_add_u32 s20, s20, 104857600')
    a('v_mov_b32 v7, 0')
    for k in range(9):
        a(f'v_mov_b32 v8, s{72+2*k}')
        a(f'buffer_store_dword v8, v7, {WS}, s20 offen offset:{4*k}')
        a.nop(2)

def decode(a, item_s):
    a(f's_mul_i32 s17, {item_s}, 4682')
    a('s_lshr_b32 s17, s17, 16')
    a('s_mul_i32 s23, s17, 14')
    a(f's_sub_u32 s19, {item_s}, s23')
    a('s_cmp_lt_u32 s19, 7')
    a('s_cselect_b32 s18, 0, 7')
    a('s_cselect_b32 s28, 0, 8')
    a('s_sub_u32 s18, s19, s18')
    a('s_add_u32 s28, s28, s16')
    a('s_lshl_b32 s25, s16, 15')
    a('s_add_u32 s25, s25, 32768')
    a('s_lshl_b32 s26, s17, 9')
assert all((i * 4682) >> 16 == i // 14 for i in range(224))

def consts(a):
    a('v_lshrrev_b32 v5, 5, v1')
    a('v_and_b32 v6, 31, v1')
    a('v_xor_b32 v8, v6, v5')
    a('v_lshlrev_b32 v8, 4, v8')
    a('v_lshl_add_u32 v16, v5, 13, v8')
    for c in range(1, 8): a(f'v_xor_b32 v{16+c}, {c*32}, v16')
    a('s_lshl_b32 s20, s16, 6')
    a('v_xor_b32 v26, s20, v16')
    a('v_xor_b32 v27, 32, v26')

def issue(a, mat, hook=None, hook_at=0):
    if mat == 'A':
        srd(a, 60, 40, 41, W_BYTES); srd(a, 56, 42, 43, W_BYTES)
        a('s_lshl_b32 s27, s18, 2')
        a('s_add_u32 s27, s27, s16')
        a('s_lshl_b32 s27, s27, 17')
        a('s_add_u32 s27, s27, s26')
        a('s_lshl_b32 s30, s16, 13')
        for i in range(8):
            a(f's_add_u32 m0, s30, {i*1024}')
            a(f'buffer_load_dwordx4 v{26 + ((i >> 1) & 1)}, {SB}, s27 offen {LDFL} lds')
            a('s_add_u32 s27, s27, 16384')
    else:
        srd(a, 60, 44, 45, W_BYTES); srd(a, 56, 46, 47, W_BYTES)
        a('s_mul_i32 s27, s17, 229376')
        a('s_lshl_b32 s30, s18, 7')
        a('s_add_u32 s27, s27, s30')
        a(f's_mul_i32 s30, s16, {64*896}')
        a('s_add_u32 s27, s27, s30')
        a('v_lshrrev_b32 v7, 3, v1')
        a('v_and_b32 v8, 7, v1')
        a('v_and_b32 v9, 2, v7')
        a('v_xor_b32 v8, v8, v9')
        a('v_mul_u32_u24 v7, 896, v7')
        a('v_lshl_add_u32 v24, v8, 4, v7')
        a('v_xor_b32 v25, 64, v24')
        a('s_lshl_b32 s30, s16, 13')
        for i in range(8):
            a(f's_add_u32 m0, s30, {i*1024}')
            a(f'buffer_load_dwordx4 v{24 + (i & 1)}, {SB}, s27 offen {LDFL} lds')
            a(f's_add_u32 s27, s27, {8*896}')
    for p in range(2):
        a(f's_add_u32 s27, s28, {4*p}')
        a('s_min_u32 s27, s27, 13')
        a('s_lshl_b32 s27, s27, 18')
        a('s_add_u32 s27, s27, s26')
        for i in range(16):
            if hook and p * 16 + i == hook_at: hook(8 + hook_at)
            a(f's_add_u32 m0, s25, {p*16384 + i*1024}')
            a(f'buffer_load_dwordx4 v{16 + 2*(i >> 2) + (i & 1)}, {SA}, s27 offen {LDFL} lds')
            a('s_add_u32 s27, s27, 16384')

TOUCH_B = 1
def touch(a, mat, dst, skip=None):
    if mat == 'B' and not TOUCH_B: return
    p = 40 if mat == 'A' else 44
    a('s_cmp_lt_u32 s19, 7')
    a(f's_cselect_b32 s64, s{p}, s{p+2}')
    a(f's_cselect_b32 s65, s{p+1}, s{p+3}')
    a('s_cselect_b32 s27, 0, 7')
    srd(a, 68, 64, 65, W_BYTES)
    a('s_sub_u32 s31, s19, s27')
    a('s_lshl_b32 s27, s31, 19')
    a('s_add_u32 s27, s27, s26')
    a('v_lshrrev_b32 v7, 2, v0')
    a('v_and_b32 v8, 3, v0')
    a('v_lshlrev_b32 v8, 7, v8')
    a('v_lshl_add_u32 v9, v7, 13, v8')
    if mat == 'B':
        a('s_mul_i32 s30, s17, 229376')
        a('s_lshl_b32 s31, s31, 15')
        a('s_add_u32 s30, s30, s31')
        a('s_cmp_lt_u32 s19, 7')
        a('s_cselect_b32 s27, s27, s30')
        a('s_cselect_b64 vcc, -1, 0')
        a('v_lshlrev_b32 v8, 7, v0')
        a('v_cndmask_b32 v9, v8, v9, vcc')
    if skip:
        a(f's_cmp_lg_u32 {skip}, 0')
        a('s_cselect_b32 s27, 0x40000000, s27')
    a(f'buffer_load_dword v{dst}, v9, s[68:71], s27 offen {TFL}')

def xunit_load(a, item_s):
    a(f's_lshl_b32 s20, {item_s}, 2')
    a('s_add_u32 s20, s20, s16')
    a('s_mul_i32 s21, s20, 9363')
    a('s_lshr_b32 s21, s21, 16')
    a('s_mul_i32 s22, s21, 7')
    a('s_sub_u32 s22, s20, s22')
    a(f's_mul_i32 s21, s21, {16*896}')
    a('s_lshl_b32 s20, s22, 7')
    a('s_add_u32 s20, s20, s21')
    a('s_lshl_b32 s22, s22, 11')
    a('s_add_u32 s52, s21, s22')
    srd(a, 68, 48, 49, 2048 * 448 * 2)
    a('v_mul_u32_u24 v7, 896, v4')
    a('v_lshl_add_u32 v7, v3, 5, v7')
    a('buffer_load_dwordx4 v[128:131], v7, s[68:71], s20 offen')
    a('buffer_load_dwordx4 v[132:135], v7, s[68:71], s20 offen offset:16')
assert all((i * 9363) >> 16 == i // 7 for i in range(896))
def xunit_store():
    o = ['v_lshlrev_b32 v144, 9, v3', 'v_lshl_add_u32 v144, v4, 4, v144', f's_add_u32 s53, s52, {XM_OFF}', f's_add_u32 s52, s52, {XF_OFF}']
    for j in range(4): o += [f'v_mov_b32 v{136+j}, v{128+2*j}', f'v_mov_b32 v{140+j}, v{129+2*j}']
    o += [f'buffer_store_dwordx4 v[128:131], v144, {WS}, s52 offen sc1', f'buffer_store_dwordx4 v[132:135], v144, {WS}, s52 offen offset:256 sc1',
          f'buffer_store_dwordx4 v[136:139], v2, {WS}, s53 offen sc1', f'buffer_store_dwordx4 v[140:143], v2, {WS}, s53 offen offset:1024 sc1']
    return o

def setup(a, mats):
    a('v_lshrrev_b32 v7, 2, v4')
    a('v_lshlrev_b32 v11, 4, v7')
    a('v_lshlrev_b32 v7, 3, v7')
    a('v_and_b32 v8, 3, v4')
    a('v_add_u32 v7, v7, v8')
    a('v_and_b32 v8, 2, v4')
    a('v_lshl_add_u32 v11, v8, 1, v11')
    a('v_and_b32 v8, 1, v4')
    a('v_add_u32 v11, v11, v8')
    for k3 in range(4):
        a(f'v_or_b32 v10, {k3*4}, v3')
        a('v_xor_b32 v10, v10, v4')
        a('v_lshlrev_b32 v10, 4, v10')
        a(f'v_lshl_add_u32 v{44+k3}, v11, 9, v10')
        a('v_lshl_add_u32 v10, v7, 9, v10')
        a(f'v_add_u32 v{32+k3}, s25, v10')
    a(f's_mul_i32 s30, s17, {CUW_B}')
    a(f's_mul_i32 s31, s18, {4*TILE_B}')
    a('s_add_u32 s30, s30, s31')
    a(f's_add_u32 s30, s30, {WF_A}')
    for q in range(4):
        a(f'v_add_u32 v{28+q}, s30, v2')
        a(f's_add_u32 s30, s30, {TILE_B}')
    a(f'v_mov_b32 v48, {SIGMA}')
    if 'B' in mats:
        a('v_lshrrev_b32 v7, 2, v4')
        a('v_lshl_add_u32 v7, v3, 3, v7')
        a('v_lshlrev_b32 v7, 7, v7')
        a('v_and_b32 v8, 3, v4')
        a('v_lshl_add_u32 v7, v8, 3, v7')
        a('v_lshrrev_b32 v8, 3, v4')
        a('v_and_b32 v9, 1, v3')
        a('v_lshl_add_u32 v8, v9, 1, v8')
        a('v_lshl_add_u32 v40, v8, 5, v7')
        a('s_mul_i32 s31, s17, 28')
        a(f's_mov_b32 s29, {CUW_B}')
        for q in range(4):
            if q: a(f'v_xor_b32 v{40+q}, {32*q}, v40')
            a('s_lshl_b32 s30, s18, 6')
            a(f's_add_u32 s30, s30, {16*q}')
            a('v_add_u32 v8, s30, v4')
            a('v_subrev_u32 v9, 256, v8')
            a('v_mul_u32_u24 v11, 171, v9')
            a('v_lshrrev_b32 v11, 11, v11')
            a('v_mul_u32_u24 v38, 12, v11')
            a('v_sub_u32 v38, v9, v38')
            a('v_add_u32 v38, 16, v38')
            a('v_lshrrev_b32 v10, 4, v8')
            a('v_cmp_gt_i32 vcc, 0, v9')
            a('v_cndmask_b32 v10, v11, v10, vcc')
            a('v_cndmask_b32 v39, v38, v4, vcc')
            a('v_add_u32 v39, s31, v39')
            a('v_lshrrev_b32 v38, 4, v39')
            a('v_and_b32 v39, 15, v39')
            a('v_mul_lo_u32 v10, v10, s29')
            a(f'v_mul_u32_u24 v38, {TILE_B}, v38')
            a('v_add_u32 v10, v10, v38')
            a('v_lshl_add_u32 v10, v3, 8, v10')
            a('v_lshl_add_u32 v10, v39, 4, v10')
            a(f'v_add_u32 v{12+q}, {WF_B}, v10')

def compute(a, P, mat, younger, pre_epi=(), early=(), nextA=None, late=(), nowait=0):
    rd = [[] for _ in range(8)]
    for q in range(4):
        for kk in range(8):
            if mat == 'A': rd[kk].append(f'ds_read_b128 {ureg(CF + (q * 8 + kk) * 4, 4)}, v{44 + (kk & 3)} offset:{(8 * (q >> 1) + 2 * (q & 1)) * 512 + (kk >> 2) * 256}')
            else: rd[kk] += [f'ds_read_b64_tr_b16 {ureg(CF + (q * 8 + kk) * 4 + 2 * hf, 2)}, v{40+q} offset:{(32*kk + 4*hf)*128}' for hf in range(2)]
    a('s_lshl_b32 s29, s28, 10')
    a('s_add_u32 s31, s29, 4096')
    a('s_cmp_lt_u32 s28, 10')
    a('s_cselect_b32 s31, s31, 0x40000000')
    pst(a)
    if not nowait: a(f's_waitcnt vmcnt({younger})')
    a('s_barrier')
    pst(a)
    for kk in range(8):
        rd[kk] += [f'ds_read_b128 {ureg(RF + (pt * 8 + kk) * 4, 4)}, v{32 + (kk & 3)} offset:{(pt >> 1)*16384 + (pt & 1)*2048 + (kk >> 2)*256}' for pt in range(4)]
    ACC = [64, 96]
    def epi(p, q):
        d = ACC[p] + 8 * q
        o = [f'v_pk_mul_f32 v[{d+r}:{d+r+1}], v[{d+r}:{d+r+1}], v[48:49] op_sel_hi:[1,0]' for r in range(0, 8, 2)] if mat == 'A' else []
        o += [f'v_cvt_pk_bf16_f32 v{d+r}, v{d+2*r}, v{d+2*r+1}' for r in range(4)]
        o.append(f'buffer_store_dwordx4 v[{d}:{d+3}], v{(28 if mat == "A" else 12)+q}, {WS}, {"s31" if p else "s29"} offen sc1')
        return o
    for x in rd[0]: a(x)
    for x in early:
        if callable(x): x()
        else: a(x)
    side = []
    dma = []
    if nextA:
        class Cap:
            def __init__(s_): s_.l = []
            def __call__(s_, x): s_.l += x.split('\n')
        c = Cap(); issue(c, 'A')
        pre = [f's_cmp_lg_u32 {nextA}, 0', f's_cselect_b32 s54, 0, {W_BYTES}']
        L_ = pre + [x.replace(f', {W_BYTES}', ', s54') for x in c.l]
        cur = []
        for x in L_:
            cur.append(x)
            if x.startswith('buffer'): dma.append(cur); cur = []
    allrd = [x for kk in range(1, 8) for x in rd[kk]]
    nrd = [len(rd[0])]
    for kk in range(1, 8): nrd.append(nrd[-1] + len(rd[kk]))
    issued = len(rd[0]); freed = False
    for kk in range(8):
        a(f's_waitcnt lgkmcnt({min(15, issued - nrd[kk])})')
        if kk == 7:
            for x in late:
                a('s_waitcnt vmcnt(0)'); x()
        if kk == 7:
            if not freed: a('s_barrier')
            for x in pre_epi: a(x)
        i = 0
        for p in range(2):
            for q in range(4):
                for tau in range(2):
                    d = ACC[p] + 8 * q + 4 * tau
                    a(f'v_mfma_f32_16x16x32_bf16 v[{d}:{d+3}], {ureg(RF + ((p * 2 + tau) * 8 + kk) * 4, 4)}, {ureg(CF + (q * 8 + kk) * 4, 4)}, ' + ('0' if kk == 0 else f'v[{d}:{d+3}]'))
                    lim = len(allrd) + len(rd[0]) if nextA else nrd[min(kk + 1, 7)]
                    for _ in range(2):
                        if issued < lim:
                            a(allrd[issued - len(rd[0])]); issued += 1
                    if nextA and issued == lim and not freed and i == 15:
                        a('s_waitcnt lgkmcnt(0)'); a('s_barrier'); freed = True
                    elif freed and dma and kk < 7:
                        for x in dma.pop(0): a(x)
                    if kk == 7:
                        if i >= 4:
                            for _ in range(2):
                                if side: a(side.pop(0))
                        if tau: side += epi(p, q)
                    i += 1
    assert not dma
    for x in side: a(x)
    pst(a)
```

```python
from asmlib import *
from layout import *
import tok
WS = 's[8:11]'
SRV_SLEEP = 6
def wreg(ti, ks):
    u = ti * 7 + ks
    return 256 + 8 * u if u < 32 else 120 + 8 * (u - 32)
def t2srv_body(a, P, v_s, par_s, abort, ld=''):
    M = 8; ACC = 36; YT = 64; YA = 72
    a(f's_mul_i32 s20, {v_s}, {CUW_B}')
    a(f's_mul_i32 s21, s16, {7*TILE_B}')
    a('s_add_u32 s20, s20, s21')
    a(f's_add_u32 s20, s20, {WF_B}')
    for f in range(98):
        if f % 4 == 0: a(f's_add_u32 s22, s20, {f*1024}')
        r = wreg(0, f // 2) + 4 * (f & 1)
        a(f'buffer_load_dwordx4 {ureg(r, 4)}, v2, {WS}, s22 offen offset:{(f & 3)*1024} {ld}')
        if f % 32 == 31: a('s_waitcnt vmcnt(24)')
    a('v_mov_b32 v5, 0x4444')
    a('v_mov_b32 v6, 0xeeee')
    a('v_cmp_lt_u32 vcc, 7, v4')
    a('v_cndmask_b32 v5, v5, v6, vcc')
    a('s_lshl_b32 s23, s16, 11')
    a('v_lshrrev_b32 v80, 1, v3')
    a('v_and_b32 v81, 1, v3')
    for p in range(4):
        if p < 3: a(f'v_add_u32 v82, {2*p}, v80')
        else: a('v_mov_b32 v82, 6')
        a('v_lshl_add_u32 v82, v82, 4, v4')
        a('v_mul_u32_u24 v83, 2341, v82')
        a('v_lshrrev_b32 v83, 16, v83')
        a('v_mul_u32_u24 v84, 28, v83')
        a('v_sub_u32 v84, v82, v84')
        a('v_lshrrev_b32 v85, 4, v84')
        a('v_and_b32 v84, 15, v84')
        a('v_lshlrev_b32 v86, 10, v85')
        a('v_lshl_add_u32 v86, v83, 8, v86')
        a('v_lshl_add_u32 v86, v84, 4, v86')
        a('v_lshl_add_u32 v86, v81, 3, v86')
        a(f'v_add_u32 v{YA+p}, s23, v86')
    a('v_add_u32 v76, s23, v2')
    a(f's_mul_i32 s27, {v_s}, 448')
    a('v_mov_b32 v77, s27')
    a('v_mov_b32 v78, 1')
    a(f's_mov_b32 s17, {par_s}')
    a(f's_mul_i32 s24, {par_s}, {7*KB}')
    a(f's_add_u32 s24, s24, {MEMG_OFF}')
    a(f's_mul_i32 s25, {v_s}, 65')
    a(f's_add_u32 s25, s25, {par_s}')
    a('s_lshl_b32 s25, s25, 13')
    a('s_add_u32 s25, s25, s23')
    a(f's_add_u32 s25, s25, {T2_OFF + 8*KB}')
    a(f's_lshl_b32 s26, {v_s}, 6')
    a(f's_add_u32 s26, s26, {par_s}')
    a('s_lshl_b32 s26, s26, 4')
    a('s_lshl_b32 s27, s16, 2')
    a('s_add_u32 s26, s26, s27')
    a(f's_add_u32 s26, s26, {CNT_OFF + T2F}')
    for r in range(88, 92): a(f'v_mov_b32 v{r}, 0')
    for r in range(92, 96): a(f'v_mov_b32 v{r}, -1')
    a('ds_write_b128 v76, v[88:91]')
    a('ds_write_b128 v76, v[88:91] offset:1024')
    a(f's_branch {P}_arm')
    a.label(f'{P}_loop')
    for r in range(ACC, ACC + 28): a(f'v_mov_b32 v{r}, 0')
    a('s_mov_b32 s30, 0')
    a(f's_branch {P}_fl')
    a.label(f'{P}_pm')
    a(f's_cmp_ge_u32 s17, {tok.FULLPOLL}')
    a(f's_cbranch_scc1 {P}_fl')
    a(f'buffer_load_dword v79, v77, {WS}, s24 offen sc1')
    a('s_waitcnt vmcnt(0)')
    a('v_cmp_eq_u32 vcc, -1, v79')
    a(f's_cbranch_vccnz {P}_pr')
    a.label(f'{P}_fl')
    a('s_add_u32 s22, s24, 4096')
    for ks in range(7):
        a(f'buffer_load_dwordx4 v[{M+4*ks}:{M+4*ks+3}], v2, {WS}, {"s24" if ks < 4 else "s22"} offen offset:{(ks & 3)*1024} sc1')
    a('s_waitcnt vmcnt(0)')
    a(f'v_max_u32 v79, v{M}, v{M+1}')
    for r in range(M + 2, M + 28, 2): a(f'v_max3_u32 v79, v79, v{r}, v{r+1}')
    a('v_cmp_eq_u32 vcc, -1, v79')
    a(f's_cbranch_vccz {P}_pk')
    a.label(f'{P}_pr')
    a(f's_sleep {SRV_SLEEP}')
    a('s_add_u32 s30, s30, 1')
    a(f's_cmp_lt_u32 s30, {tok.WAIT_LIMIT}')
    a(f's_cbranch_scc1 {P}_pm')
    a(f's_branch {abort}')
    a.label(f'{P}_pk')
    for ti in range(7):
        for ks in range(7):
            a(f'v_smfmac_f32_16x16x64_bf16 v[{ACC+4*ti}:{ACC+4*ti+3}], v[{M+4*ks}:{M+4*ks+3}], {ureg(wreg(ti, ks), 8)}, v5')
    for p in range(4):
        A_ = ACC + 8 * p; B_ = A_ + 4 if p < 3 else YT
        if p == 3:
            for r in range(4): a(f'v_mov_b32 v{B_+r}, v{A_+r}')
        for r in range(4): a(f'v_permlane32_swap_b32 v{A_+r}, v{B_+r}')
        for r in range(4): a(f'v_add_f32 v{A_+r}, v{A_+r}, v{B_+r}')
        a(f'v_cvt_pk_bf16_f32 v{B_}, v{A_}, v{A_+1}')
        a(f'v_cvt_pk_bf16_f32 v{B_+1}, v{A_+2}, v{A_+3}')
        a(f'v_min_u32 v{B_}, -2, v{B_}')
        a(f'v_min_u32 v{B_+1}, -2, v{B_+1}')
        a(f'ds_write_b64 v{YA+p}, v[{B_}:{B_+1}]')
    a('s_waitcnt lgkmcnt(0)')
    a(f'ds_read_b128 v[{YT}:{YT+3}], v76')
    a(f'ds_read_b128 v[{YT+4}:{YT+7}], v76 offset:1024')
    a('s_waitcnt lgkmcnt(0)')
    a(f'buffer_store_dwordx4 v[{YT}:{YT+3}], v2, {WS}, s25 offen sc1')
    a(f'buffer_store_dwordx4 v[{YT+4}:{YT+7}], v2, {WS}, s25 offen offset:1024 sc1')
    a(f's_add_u32 s24, s24, {14*KB}')
    a(f's_add_u32 s25, s25, {16*KB}')
    a('s_add_u32 s26, s26, 32')
    a('s_add_u32 s17, s17, 2')
    a('s_cmp_ge_u32 s17, 64')
    a(f's_cbranch_scc1 {P}_end')
    a.label(f'{P}_arm')
    a(f'buffer_store_dwordx4 v[92:95], v2, {WS}, s25 offen sc1')
    a(f'buffer_store_dwordx4 v[92:95], v2, {WS}, s25 offen offset:1024 sc1')
    a('s_waitcnt vmcnt(0)')
    a('s_mov_b64 exec, 1')
    a(f'buffer_store_dword v78, v2, {WS}, s26 offen sc1')
    a('s_mov_b64 exec, -1')
    a(f's_branch {P}_loop')
    a.label(f'{P}_end')
```

```python
from asmlib import *
from layout import *
WS = 's[8:11]'
PEEK = WS
def common(a, endl):
    a('s_cmp_ge_u32 s2, 256')
    a(f's_cbranch_scc1 {endl}')
    a('s_load_dwordx2 s[6:7], s[0:1], 128')
    a('s_load_dwordx2 s[4:5], s[0:1], 112')
    a('v_lshrrev_b32 v1, 6, v0')
    a('v_readfirstlane_b32 s16, v1')
    a('v_and_b32 v1, 63, v0')
    a('v_lshlrev_b32 v2, 4, v1')
    a('v_lshrrev_b32 v3, 4, v1')
    a('v_and_b32 v4, 15, v1')
    a('s_waitcnt lgkmcnt(0)')
    a('s_mov_b32 s8, s6\ns_and_b32 s9, s7, 0xffff\ns_mov_b32 s10, 0x10000000\ns_mov_b32 s11, 0x20000')
    a(f's_mov_b32 s12, s4\ns_and_b32 s13, s5, 0xffff\ns_mov_b32 s14, {2048*896*2}\ns_mov_b32 s15, 0x20000')

WAIT_LIMIT = 2000000
SLEEP = 4
LONG = 127
NEAR = 56
FULLPOLL = 64
def backoff(a, P, sleep):
    a(f's_sleep {sleep}')
    a(f's_cmp_ge_u32 s17, {NEAR}')
    a(f's_cbranch_scc1 {P}_bo')
    a(f's_sleep {LONG}')
    a.label(P + '_bo')
def wait_eq(a, P, soff, target, abort, sleep=None, four=False):
    sleep = sleep or SLEEP
    if four: a('v_lshlrev_b32 v60, 2, v3')
    else: a('v_mov_b32 v60, 0')
    a('s_mov_b32 s30, 0')
    a.label(P)
    a(f'buffer_load_dword v61, v60, {WS}, {soff} offen sc1')
    a('s_waitcnt vmcnt(0)')
    a(f'v_cmp_ne_u32 vcc, {target}, v61')
    a(f's_cbranch_vccz {P}_ok')
    backoff(a, P, sleep)
    a('s_add_u32 s30, s30, 1')
    a(f's_cmp_lt_u32 s30, {WAIT_LIMIT}')
    a(f's_cbranch_scc1 {P}')
    a(f's_branch {abort}')
    a.label(P + '_ok')

TOKD = 0
OST = ''
def load_lin(a, base_s, n, areg, flags='', thr=0):
    for f in range(n):
        if thr and f >= thr and f % 2 == 0: a(f's_waitcnt vmcnt({thr-2})')
        if f % 4 == 0: a(f's_add_u32 s22, {base_s}, {f*1024}')
        a(f'buffer_load_dwordx4 a[{areg+4*f}:{areg+4*f+3}], v2, {WS}, s22 offen offset:{(f & 3)*1024} {flags}')

def tokp_body(a, seg_s, hq_s, ld='', st='', sync=None, ldx=''):
    a(f's_lshl_b32 s20, {hq_s}, 2')
    a('s_add_u32 s20, s20, s16')
    a(f's_lshl_b32 s21, {seg_s}, 4')
    a('s_add_u32 s21, s21, s20')
    a(f's_mul_i32 s21, s21, {GSH_B}')
    a(f's_add_u32 s21, s21, {F_OFF}')
    a(f's_mul_i32 s23, {seg_s}, {28*KB}')
    a(f's_add_u32 s23, s23, {XM_OFF}')
    FA, XA, MA = 0, 112, 224
    if sync:
        a(f's_mul_i32 s24, {seg_s}, {7*KB}')
        a(f's_add_u32 s24, s24, {MEMG_OFF}')
        a(f's_lshr_b32 s25, {seg_s}, 3')
        a('s_lshl_b32 s25, s25, 4')
        a('s_add_u32 s25, s25, s20')
        a('s_lshl_b32 s25, s25, 7')
        a(f's_add_u32 s25, s25, {CNT_OFF + FC}')
        wait_eq(a, sync + '_wf', 's25', 56, sync + '_abort')
    else:
        a(f's_mul_i32 s24, {seg_s}, {EXCH_B}')
        a(f's_add_u32 s24, s24, {EXCH_OFF}')
    a(f's_lshl_b32 s25, {seg_s}, 1')
    a(f's_mul_i32 s25, s25, {PT_B}')
    a(f's_add_u32 s25, s25, {PT_OFF}')
    a('s_lshl_b32 s26, s20, 10')
    a('s_add_u32 s26, s26, s25')
    a(f's_lshl_b32 s27, {hq_s}, 10')
    a('s_add_u32 s27, s27, s25')
    a('s_lshr_b32 s28, s16, 1')
    a('s_lshl_b32 s28, s28, 3')
    a('s_add_u32 s27, s27, s28')
    a(f's_add_u32 s27, s27, {16*KB}')
    a('s_and_b32 s28, s16, 1')
    a('s_cmp_eq_u32 s28, 0')
    a('s_cselect_b32 s50, -1, 0')
    a('s_cselect_b32 s51, 0, -1')
    if sync:
        for r in range(44, 48): a(f'v_mov_b32 v{r}, -1')
        for tt in range(2):
            a(f's_add_u32 s28, s26, {tt*PT_B}')
            a(f's_add_u32 s29, s27, {tt*PT_B}')
            a(f'buffer_store_dwordx4 v[44:47], v2, {WS}, s28 offen {st}')
            a('s_mov_b64 exec, s[50:51]')
            a(f'buffer_store_dwordx2 v[44:45], v2, {WS}, s29 offen {st}')
            a('s_mov_b64 exec, -1')
    load_lin(a, 's21', 28, FA, ld, TOKD)
    load_lin(a, 's23', 28, XA, ldx)
    if not sync: load_lin(a, 's24', 7, MA, ld)
    AX = {(0, 0): 8, (0, 1): 12, (1, 1): 16}
    AM = {(0, 0): 20, (1, 0): 24, (0, 1): 28, (1, 1): 32}
    for r in range(4):
        a(f'v_lshl_add_u32 v5, v3, 2, {r}')
        a(f'v_cmp_le_u32 s[{40+2*r}:{41+2*r}], v5, v4')
    a('v_cmp_gt_u32 s[48:49], 2, v3')
    a('v_mov_b32 v6, 0xff800000')
    a('s_waitcnt vmcnt(0)' if sync else 's_waitcnt vmcnt(7)')
    if sync:
        a(f's_lshl_b32 s25, {seg_s}, 7')
        a(f's_add_u32 s25, s25, {CNT_OFF + PTC}')
        a('v_mov_b32 v5, 1')
        a('v_mov_b32 v7, 0')
        a('s_waitcnt vmcnt(0)')
        a('s_mov_b64 exec, 1')
        a(f'buffer_atomic_add v5, v7, {WS}, s25 offen')
        a('s_mov_b64 exec, -1')
    for f in range(14):
        for (tk, tt), d in AX.items():
            c = '0' if f == 0 else f'v[{d}:{d+3}]'
            xa = XA + 4 * (tk * 14 + f); fa = FA + 4 * (tt * 14 + f)
            a(f'v_mfma_f32_16x16x32_bf16 v[{d}:{d+3}], a[{xa}:{xa+3}], a[{fa}:{fa+3}], {c}')
    MV = 64
    if sync:
        a('s_mul_i32 s22, s20, 448')
        a('v_mov_b32 v62, s22')
        a('s_mov_b32 s30, 0')
        a.label(sync + '_pm')
        a(f's_cmp_ge_u32 s17, {FULLPOLL}')
        a(f's_cbranch_scc1 {sync}_pf')
        a(f'buffer_load_dword v61, v62, {WS}, s24 offen sc1')
        a('s_waitcnt vmcnt(0)')
        a('v_cmp_eq_u32 vcc, -1, v61')
        a(f's_cbranch_vccnz {sync}_pr')
        a.label(sync + '_pf')
        a('s_add_u32 s22, s24, 4096')
        for ks in range(7):
            a(f'buffer_load_dwordx4 v[{MV+4*ks}:{MV+4*ks+3}], v2, {WS}, {"s24" if ks < 4 else "s22"} offen offset:{(ks & 3)*1024} sc1')
        a('s_waitcnt vmcnt(0)')
        a(f'v_max_u32 v61, v{MV}, v{MV+1}')
        for r in range(MV + 2, MV + 28, 2): a(f'v_max3_u32 v61, v61, v{r}, v{r+1}')
        a('v_cmp_eq_u32 vcc, -1, v61')
        a(f's_cbranch_vccz {sync}_pk')
        a.label(sync + '_pr')
        backoff(a, sync + '_pm', SLEEP)
        a('s_add_u32 s30, s30, 1')
        a(f's_cmp_lt_u32 s30, {WAIT_LIMIT}')
        a(f's_cbranch_scc1 {sync}_pm')
        a(f's_branch {sync}_abort')
        a.label(sync + '_pk')
        a(f'buffer_load_dword v250, v251, {PEEK}, 0 offen sc1')
    else:
        a('s_waitcnt vmcnt(0)')
    for ks in range(7):
        for (half, tt), d in AM.items():
            c = '0' if ks == 0 else f'v[{d}:{d+3}]'
            fa = FA + 4 * (tt * 14 + ks * 2 + half)
            mop = f'v[{MV+4*ks}:{MV+4*ks+3}]' if sync else f'a[{MA+4*ks}:{MA+4*ks+3}]'
            a(f'v_mfma_f32_16x16x32_bf16 v[{d}:{d+3}], {mop}, a[{fa}:{fa+3}], {c}')
    for tt in range(2):
        xs = []
        for (tk, t2), d in AX.items():
            if t2 != tt: continue
            for r in range(4):
                if tk == tt: a(f'v_cndmask_b32 v{d+r}, v6, v{d+r}, s[{40+2*r}:{41+2*r}]')
                xs.append(d + r)
        z, t = AM[(0, tt)], AM[(1, tt)]
        for r in range(4): a(f'v_cndmask_b32 v{z+r}, v{t+r}, v{z+r}, s[48:49]')
        for r in range(4): a(f'v_mov_b32 v{t+r}, v{z+r}')
        for r in range(4): a(f'v_permlane32_swap_b32 v{z+r}, v{t+r}')
        for r in range(4): a(f'v_add_f32 v{z+r}, v{z+r}, v{t+r}')
        ms = [z + r for r in range(4)]
        al = xs + ms
        mx = 40
        a(f'v_max3_f32 v{mx}, v{al[0]}, v{al[1]}, v{al[2]}')
        rest = al[3:]
        while len(rest) >= 2:
            a(f'v_max3_f32 v{mx}, v{mx}, v{rest[0]}, v{rest[1]}'); rest = rest[2:]
        if rest: a(f'v_max_f32 v{mx}, v{mx}, v{rest[0]}')
        for sw in ('16', '32'):
            a(f'v_mov_b32 v41, v{mx}')
            a(f'v_permlane{sw}_swap_b32 v{mx}, v41')
            a(f'v_max_f32 v{mx}, v{mx}, v41')
        for r in al: a(f'v_sub_f32 v{r}, v{r}, v{mx}')
        for r in al: a(f'v_exp_f32 v{r}, v{r}')
        a(f'v_add_f32 v42, v{ms[0]}, v{ms[1]}')
        a(f'v_add_f32 v43, v{ms[2]}, v{ms[3]}')
        a('v_add_f32 v42, v42, v43')
        a('v_mul_f32 v42, 0.5, v42')
        for r in xs: a(f'v_add_f32 v42, v42, v{r}')
        for sw in ('16', '32'):
            a('v_mov_b32 v41, v42')
            a(f'v_permlane{sw}_swap_b32 v42, v41')
            a('v_add_f32 v42, v42, v41')
        a('v_rcp_f32 v42, v42')
        for r in al: a(f'v_mul_f32 v{r}, v{r}, v42')
        o = 44 + 8 * tt
        for k in range(4): a(f'v_cvt_pk_bf16_f32 v{o+k}, v{xs[k]}, ' + (f'v{xs[4+k]}' if tt else '0'))
        a(f'v_cvt_pk_bf16_f32 v{o+4}, v{ms[0]}, v{ms[1]}')
        a(f'v_cvt_pk_bf16_f32 v{o+5}, v{ms[2]}, v{ms[3]}')
        for k in range(6): a(f'v_min_u32 v{o+k}, -2, v{o+k}')
        a(f'buffer_store_dwordx4 v[{o}:{o+3}], v2, {WS}, s26 offen {st}')
        a('s_mov_b64 exec, s[50:51]')
        a(f'buffer_store_dwordx2 v[{o+4}:{o+5}], v2, {WS}, s27 offen {st}')
        a('s_mov_b64 exec, -1')
        if tt == 0:
            a(f's_add_u32 s26, s26, {PT_B}')
            a(f's_add_u32 s27, s27, {PT_B}')

def toko_body(a, seg_s, vq_s, ld='', sync=None, OUT='s[12:15]'):
    a(f's_lshl_b32 s20, {vq_s}, 2')
    a('s_add_u32 s20, s20, s16')
    a('s_mul_i32 s24, s20, 65')
    a(f's_add_u32 s24, s24, {seg_s}')
    a('s_lshl_b32 s24, s24, 13')
    a(f's_add_u32 s24, s24, {T2_OFF + 8*KB}')
    a(f's_mul_i32 s21, s20, {VO_SV}')
    a(f's_mul_i32 s22, {seg_s}, {VO_SS}')
    a('s_add_u32 s21, s21, s22')
    a(f's_add_u32 s21, s21, {VO_OFF}')
    a(f's_lshl_b32 s25, {seg_s}, 1')
    a(f's_mul_i32 s25, s25, {PT_B}')
    a(f's_add_u32 s25, s25, {PT_OFF}')
    a('v_mov_b32 v5, v2')
    a('v_min_u32 v6, 11, v4')
    a('v_mad_u32_u24 v6, v3, 12, v6')
    a('v_lshlrev_b32 v6, 4, v6')
    a('v_add_u32 v6, 1024, v6')
    a('v_lshrrev_b32 v8, 1, v3')
    a('v_lshl_add_u32 v8, v8, 4, v4')
    a('v_lshlrev_b32 v8, 4, v8')
    a('v_and_b32 v9, 1, v3')
    a('v_lshl_add_u32 v7, v9, 3, v8')
    VA, PA = 0, 128
    T2R, PMR = 28, 64
    if sync:
        a(f's_lshr_b32 s26, {seg_s}, 3')
        a('s_lshl_b32 s26, s26, 4')
        a('s_add_u32 s26, s26, s20')
        a('s_lshl_b32 s26, s26, 7')
        a(f's_add_u32 s26, s26, {CNT_OFF + VOC}')
        wait_eq(a, sync + '_wv', 's26', 56, sync + '_abort')
    for h in range(16):
        if TOKD and 2 * h >= TOKD: a(f's_waitcnt vmcnt({TOKD-2})')
        if h % 2 == 0: a(f's_add_u32 s22, s21, {h*1792}')
        for t in range(2):
            r = VA + 8 * h + 4 * t
            a(f'buffer_load_dwordx4 a[{r}:{r+3}], v{5+t}, {WS}, s22 offen offset:{(h & 1)*1792} {ld}')
    if sync:
        a('s_lshl_b32 s26, s20, 6')
        a(f's_add_u32 s26, s26, {seg_s}')
        a('s_lshl_b32 s26, s26, 4')
        a(f's_add_u32 s26, s26, {CNT_OFF + T2F}')
        wait_eq(a, sync + '_wt', 's26', 1, sync + '_abort', four=True)
    a(f's_lshl_b32 s26, {seg_s}, 7')
    a(f's_add_u32 s26, s26, {CNT_OFF + PTC}')
    wait_eq(a, sync + '_wp', 's26', 16, sync + '_abort')
    PQ = 64
    a('s_lshl_b32 s28, s16, 12')
    a('s_add_u32 s26, s25, s28')
    a(f's_add_u32 s27, s26, {PT_B}')
    a('s_lshl_b32 s28, s16, 10')
    a('s_add_u32 s28, s28, s25')
    a(f's_add_u32 s28, s28, {16*KB}')
    a(f's_add_u32 s29, s28, {PT_B}')
    a('s_add_u32 s23, s24, 4096')
    a('s_mov_b32 s30, 0')
    a.label(sync + '_pl')
    for tt in range(2):
        for hh in range(4):
            r = PQ + 20 * tt + 4 * hh
            a(f'buffer_load_dwordx4 v[{r}:{r+3}], v2, {WS}, s{26+tt} offen offset:{hh*1024} {ld}')
        r = PQ + 20 * tt + 16
        a(f'buffer_load_dwordx4 v[{r}:{r+3}], v2, {WS}, s{28+tt} offen {ld}')
    for hq in range(4):
        for t_ in range(2):
            r = T2R + 8 * hq + 4 * t_
            for pc in range(2):
                a(f'buffer_load_dwordx2 v[{r+2*pc}:{r+2*pc+1}], v7, {WS}, {"s24" if hq < 2 else "s23"} offen offset:{(hq & 1)*2048 + t_*1024 + pc*512} {ld}')
    a('s_waitcnt vmcnt(16)')
    a(f'v_max_u32 v61, v{PQ}, v{PQ+1}')
    for r in range(PQ + 2, PQ + 40, 2): a(f'v_max3_u32 v61, v61, v{r}, v{r+1}')
    a('s_mul_i32 s22, s16, 10240')
    a('v_add_u32 v62, s22, v2')
    for k in range(10): a(f'ds_write_b128 v62, v[{PQ+4*k}:{PQ+4*k+3}] offset:{k*1024}')
    a('s_waitcnt vmcnt(0)')
    for r in range(T2R, T2R + 32, 2): a(f'v_max3_u32 v61, v61, v{r}, v{r+1}')
    a('v_cmp_eq_u32 vcc, -1, v61')
    a(f's_cbranch_vccz {sync}_pk')
    a('s_waitcnt lgkmcnt(0)')
    backoff(a, sync + '_pl', 1)
    a('s_add_u32 s30, s30, 1')
    a(f's_cmp_lt_u32 s30, {WAIT_LIMIT}')
    a(f's_cbranch_scc1 {sync}_pl')
    a(f's_branch {sync}_abort')
    a.label(sync + '_pk')
    a(f'buffer_load_dword v250, v251, {PEEK}, 0 offen sc1')
    a('s_waitcnt lgkmcnt(0)')
    a('s_barrier')
    ACC = 12
    def mm(A_, B_, t, tt, first):
        d = ACC + 8 * t + 4 * tt
        a(f'v_mfma_f32_16x16x32_bf16 v[{d}:{d+3}], {A_}, {B_}, ' + ('0' if first else f'v[{d}:{d+3}]'))
    fr = [(q, k, tt) for q in range(4) for k in range(5) for tt in range(2)]
    NB = 10
    def rd(i):
        q, k, tt = fr[i]; r = PQ + 4 * (i % NB)
        a(f'ds_read_b128 v[{r}:{r+3}], v2 offset:{q*10240 + (tt*5 + k)*1024}')
    for i in range(8): rd(i)
    for i, (q, k, tt) in enumerate(fr):
        a(f's_waitcnt lgkmcnt({min(7, 39 - i)})')
        r = PQ + 4 * (i % NB)
        for t_ in range(2):
            A_ = f'a[{VA+8*(4*q+k)+4*t_}:{VA+8*(4*q+k)+4*t_+3}]' if k < 4 else f'v[{T2R+8*q+4*t_}:{T2R+8*q+4*t_+3}]'
            mm(A_, f'v[{r}:{r+3}]', t_, tt, i < 2)
            if t_ == 0 and i + 8 < 40: rd(i + 8)
    a('v_mul_u32_u24 v9, 1792, v4')
    a('v_lshl_add_u32 v9, v3, 3, v9')
    a('s_lshl_b32 s22, s20, 5')
    a('v_add_u32 v8, s22, v9')
    a('s_mul_i32 s22, s20, 24')
    a('s_add_u32 s22, s22, 512')
    a('v_add_u32 v9, s22, v9')
    a('v_mov_b32 v10, 0x40000000')
    a('v_cmp_eq_u32 vcc, 3, v3')
    a('v_cndmask_b32 v9, v9, v10, vcc')
    a(f's_mul_i32 s26, {seg_s}, {32*1792}')
    a('s_add_u32 s26, s26, 896')
    a(f's_add_u32 s27, s26, {16*1792}')
    for tt in range(2):
        for t_ in range(2):
            d = ACC + 8 * t_ + 4 * tt; o = 108 + 4 * tt + 2 * t_
            a(f'v_cvt_pk_bf16_f32 v{o}, v{d}, v{d+1}')
            a(f'v_cvt_pk_bf16_f32 v{o+1}, v{d+2}, v{d+3}')
            a(f'buffer_store_dwordx2 v[{o}:{o+1}], v{8+t_}, {OUT}, s{26+tt} offen {OST}')

def gen_tok(which):
    name = f'tok{which}_kernel'
    a = Asm(); a.raw(kernel_header(name))
    common(a, f't{which}_end')
    a('s_lshr_b32 s17, s2, 2')
    a('s_and_b32 s18, s2, 3')
    if which == 'p': tokp_body(a, 's17', 's18')
    else: toko_body(a, 's17', 's18')
    a.label(f't{which}_end')
    a('s_endpgm')
    return a
```

```python
import re
_REG = re.compile(r'^(-?)(?:abs\()?([vas])(?:(\d+)|\[(\d+):(\d+)\])\)?$')
TRANS = ('v_exp_f32','v_log_f32','v_rcp_f32','v_rsq_f32','v_sqrt_f32','v_sin_f32','v_cos_f32','v_rcp_iflag_f32')
def regs_of(op):
    op = op.strip()
    if op == 'vcc': return {('s', 106), ('s', 107)}
    if op == 'vcc_lo': return {('s', 106)}
    if op == 'vcc_hi': return {('s', 107)}
    if op == 'exec': return {('s', 126), ('s', 127)}
    if op == 'm0': return {('s', 124)}
    m = _REG.match(op)
    if not m: return set()
    k = m.group(2)
    if m.group(3) is not None: return {(k, int(m.group(3)))}
    return {(k, i) for i in range(int(m.group(4)), int(m.group(5)) + 1)}
def split_ops(s):
    ops, depth, cur = [], 0, ''
    for ch in s:
        if ch in '[(': depth += 1
        if ch in '])': depth -= 1
        if ch == ',' and depth == 0:
            ops.append(cur.strip()); cur = ''
        else: cur += ch
    if cur.strip(): ops.append(cur.strip())
    return ops
def mfma_passes(mn):
    if '16x16x4_f32' in mn: return 8
    if '32x32x2_f32' in mn: return 16
    if '32x32' in mn: return 8
    if '16x16' in mn: return 4
    if '4x4' in mn: return 2
    raise ValueError(mn)
class Ins:
    __slots__ = ('mn','kind','w','r','rA','rC','passes','ws','dpp','sgemm','storedata')
class Asm:
    def __init__(self):
        self.lines = []; self.hist = []; self.nlabel = 0; self.count = 0
    def raw(self, s): self.lines.append(s)
    def comment(self, s): self.lines.append('  ; ' + s)
    def label(self, l):
        self.lines.append(l + ':')
    def newlabel(self, p='L'):
        self.nlabel += 1; return f'{p}_{self.nlabel}'
    def flush(self, n=None):
        need = 0; dist = 0
        for p in reversed(self.hist):
            if p.kind == 'mfma': need = max(need, self._xdl(p) - dist)
            elif p.kind in ('valu',): need = max(need, 5 - dist if any(k == 's' for k, _ in p.w) else 2 - dist)
            dist += p.ws
            if dist > 24: break
        self.nop(need)
    def nop(self, n):
        while n > 0:
            k = min(n, 16)
            self.lines.append(f'  s_nop {k-1}'); self.count += 1
            i = Ins(); i.mn = 's_nop'; i.kind = 'salu'; i.w = set(); i.r = set(); i.rA = set(); i.rC = set(); i.passes = 0; i.ws = k; i.dpp = False; i.sgemm = False; i.storedata = set()
            self.hist.append(i); n -= k
    @staticmethod
    def _xdl(p):
        if p.sgemm: return {2: 4, 4: 6, 8: 10, 16: 18}[p.passes]
        return {2: 5, 4: 8, 8: 12, 16: 20}[p.passes]
    def parse(self, s):
        s = s.split(';')[0].strip()
        parts = s.split(None, 1)
        mn = parts[0]; rest = parts[1] if len(parts) > 1 else ''
        i = Ins(); i.mn = mn; i.w = set(); i.r = set(); i.rA = set(); i.rC = set(); i.passes = 0; i.ws = 1; i.sgemm = False; i.storedata = set()
        i.dpp = ('_dpp' in mn) or ('quad_perm' in rest) or ('row_' in rest)
        ops = split_ops(rest)
        if ops:
            last = ops[-1].split()
            ops[-1] = last[0] if last else ''
            mods = ' '.join(last[1:])
        else: mods = ''
        R = [regs_of(o) for o in ops]
        if mn.startswith('v_mfma') or mn.startswith('v_smfmac'):
            i.kind = 'mfma'; i.passes = mfma_passes(mn); i.sgemm = mn.endswith('_f32') and ('x4_f32' in mn or 'x2_f32' in mn or 'x1_' in mn)
            i.w = R[0]
            if mn.startswith('v_smfmac'):
                i.rA = R[1] | R[2] | R[3]; i.rC = R[0]
            else:
                i.rA = R[1] | R[2]; i.rC = R[3]
            i.r = i.rA | i.rC
        elif mn.startswith('v_'):
            i.kind = 'valu'
            if mn.startswith('v_cmp'):
                i.w = R[0]; i.r = set().union(*R[1:])
            elif mn.startswith('v_permlane') and 'swap' in mn:
                i.w = R[0] | R[1]; i.r = R[0] | R[1]
            elif mn.startswith(('v_add_co','v_sub_co','v_addc_co','v_subb_co','v_mad_u64','v_div_scale')):
                i.w = R[0] | R[1]; i.r = set().union(*R[2:])
            else:
                i.w = R[0]; i.r = set().union(*R[1:]) if len(R) > 1 else set()
                if mn.startswith(('v_fmac','v_pk_fmac','v_dot2c','v_writelane')) or i.dpp: i.r |= R[0]
                if mn.startswith('v_cndmask') and len(ops) == 3: i.r |= regs_of('vcc')
        elif mn.startswith(('buffer_','global_','flat_')):
            i.kind = 'vmem'
            if mn.startswith(('buffer_inv','buffer_wbl2')): pass
            elif 'load' in mn and ('lds' in mods.split() or 'load_lds' in mn):
                i.r = set().union(*R) | regs_of('m0'); i.kind = 'vmem_lds'
            elif 'load' in mn:
                i.w = R[0]; i.r = set().union(*R[1:])
            elif 'atomic' in mn:
                i.r = set().union(*R)
                if 'sc0' in mods.split(): i.w = R[0] if mn.startswith('buffer') else R[0]
            else:
                i.r = set().union(*R)
                if 'x4' in mn or 'x3' in mn: i.storedata = R[0] if mn.startswith('buffer') else R[1]
        elif mn.startswith('ds_'):
            i.kind = 'ds'
            if 'read' in mn or 'permute' in mn or 'swizzle' in mn or '_rtn' in mn:
                i.w = R[0]; i.r = set().union(*R[1:])
            else: i.r = set().union(*R)
        else:
            i.kind = 'salu'
            if mn.startswith(('s_cmp','s_cbranch','s_branch','s_waitcnt','s_barrier','s_nop','s_sleep','s_setprio','s_endpgm','s_bitcmp')):
                i.r = set().union(*R) if R else set()
                if mn == 's_nop': i.ws = int(ops[0], 0) + 1
            else:
                i.w = R[0] if R else set(); i.r = set().union(*R[1:]) if len(R) > 1 else set()
                if 'saveexec' in mn: i.w |= regs_of('exec')
        return i
    def need(self, c):
        need = 0
        H = self.hist[-30:]
        n = len(H)
        for pi in range(n - 1, -1, -1):
            p = H[pi]
            req = self.req(p, c)
            if req <= 0: continue
            d = 0; lastm = (0, p.passes) if p.kind == 'mfma' else None
            prev = p
            for q in H[pi + 1:] + [c]:
                d = d + prev.ws
                if q.kind == 'mfma' and lastm is not None:
                    d = max(d, lastm[0] + lastm[1] - 1)
                if q.kind == 'mfma': lastm = (d, q.passes)
                prev = q
            need = max(need, req - (d - 1))
        return need
    def req(self, p, c):
        req = 0
        if p.kind == 'mfma':
            x = self._xdl(p)
            if c.kind == 'mfma':
                if p.w & c.rA: req = max(req, x)
                if p.w & c.rC:
                    if p.w == c.rC and p.passes == c.passes and p.sgemm == c.sgemm: req = max(req, 2 if p.passes == 2 else 0)
                    else: req = max(req, {2: 4, 4: 6, 8: 10, 16: 18}[p.passes])
                elif p.w & c.w: req = max(req, x)
            else:
                if p.w & (c.r | c.w): req = max(req, x)
                if c.kind == 'valu' and (p.rC & c.w) and not p.sgemm: req = max(req, {2: 1, 4: 3, 8: 7, 16: 15}[p.passes])
        elif p.kind == 'valu':
            vw = {x for x in p.w if x[0] != 's'}; sw = {x for x in p.w if x[0] == 's'}
            if c.kind == 'mfma' and (vw & c.r): req = max(req, 2)
            if c.kind == 'valu':
                if c.dpp and (vw & c.r): req = max(req, 2)
                if c.mn.startswith('v_permlane') and (vw & c.r): req = max(req, 2)
                if c.mn.startswith(('v_readlane','v_readfirstlane')) and (vw & c.r): req = max(req, 1)
                if p.mn.replace('_e32','').replace('_e64','') in TRANS and (vw & c.r): req = max(req, 1)
                if sw & c.r:
                    req = max(req, 4 if c.mn.startswith(('v_readlane','v_writelane')) else 2)
            if c.kind.startswith('vmem') and (sw & c.r): req = max(req, 5)
            if p.mn.replace('_e32','').replace('_e64','') in TRANS and c.kind in ('vmem','ds','mfma') and (vw & c.r): req = max(req, 2 if c.kind == 'mfma' else 1)
        elif p.kind == 'vmem':
            if p.storedata & c.w: req = max(req, 2)
        elif p.kind == 'salu':
            if c.kind == 'vmem_lds' and (('s', 124) in p.w): req = max(req, 1)
        return req
    def __call__(self, s):
        for line in s.split('\n'):
            line = line.strip()
            if not line: continue
            if line.endswith(':'): self.label(line[:-1]); continue
            c = self.parse(line)
            n = self.need(c)
            if n > 0: self.nop(n)
            self.lines.append('  ' + line); self.count += 1
            self.hist.append(c)
            if len(self.hist) > 64: self.hist = self.hist[-40:]
    def text(self): return '\n'.join(self.lines) + '\n'
def vr(b, n=1, k='v'):
    return f'{k}{b}' if n == 1 else f'{k}[{b}:{b+n-1}]'
def ureg(idx, n):
    if idx >= 256: return vr(idx - 256, n, 'a')
    assert idx + n <= 256
    return vr(idx, n, 'v')
def kernel_header(name):
    return f'.globl {name}\n.p2align 8\n.type {name},@function\n{name}:'
def kernel_desc(name, vgpr=512, accum=256, sgpr=102):
    return f""".p2align 6
.amdhsa_kernel {name}
  .amdhsa_next_free_vgpr {vgpr}
  .amdhsa_next_free_sgpr {sgpr}
  .amdhsa_accum_offset {accum}
  .amdhsa_group_segment_fixed_size 0
  .amdhsa_kernarg_size 136
  .amdhsa_user_sgpr_count 2
  .amdhsa_user_sgpr_kernarg_segment_ptr 1
  .amdhsa_system_sgpr_workgroup_id_x 1
.end_amdhsa_kernel"""

def code_prefetch(a, start, end, maxbytes, vt=10, nthreads=256):
    lbl = a.newlabel('pf_' + start)
    a.raw(f'  s_getpc_b64 s[98:99]')
    a.raw(f'{lbl}:')
    a.raw(f'  s_sub_u32 s98, s98, {lbl}-{start}')
    a.raw(f'  s_subb_u32 s99, s99, 0')
    a(f'v_lshlrev_b32 v{vt}, 7, v0')
    for k in range((maxbytes + nthreads * 128 - 1) // (nthreads * 128)):
        a.raw(f'  v_min_u32 v{vt+1}, {end}-{start}-4, v{vt}')
        a(f'global_load_dword v{vt+2}, v{vt+1}, s[98:99]')
        a(f'v_add_u32 v{vt}, {nthreads*128}, v{vt}')

def code_touch(a, vaddr, dst, ahead=0):
    a.raw('  s_getpc_b64 s[98:99]')
    if ahead:
        a.raw(f'  s_add_u32 s98, s98, {ahead}')
        a.raw('  s_addc_u32 s99, s99, 0')
    a(f'global_load_dword v{dst}, v{vaddr}, s[98:99]')

def code_touch_at(a, label, vaddr, dst):
    lb = a.newlabel('ct')
    a.raw('  s_getpc_b64 s[98:99]')
    a.raw(f'{lb}:')
    a.raw(f'  s_add_u32 s98, s98, {label}-{lb}')
    a.raw('  s_addc_u32 s99, s99, 0')
    a(f'global_load_dword v{dst}, v{vaddr}, s[98:99]')
```

```python
from asmlib import *
from layout import *

SRD = 's[8:11]'; DBG = 's[12:15]'
SPIN_LIMIT = 400000
NSTEPS = 64
STAMPS = 0
STAMP_STEP = 42
STEPLOG = 0
STAMP_OFF = 100 * 1024 * 1024
NST = 10
POLL_DEPTH = 4
F1_DELAY = 36
F2_POS = 3
FILL_A = 2
FILL_B = 0
DIAG = 0
CODE_PF = 1
SYNC = 1
XCD_SEL = 0
HLP_EARLY = 1
P_MOV = 2
D = 'row_mask:0xf bank_mask:0xf'
XSEG_B = 28 * KB
FLG1 = EXCH_OFF + 2 * EXCH_B
FLG2 = FLG1 + 16 * 128
RING_B = 2 * EXCH_B + 48 * 128
SC_SLEEP = 6
X_EARLY = 0
R1 = 1
R2 = 1
VO_PRE = 5
VO_EVERY = 1
B1_POS = 4
TLB_WARM = 0
WARM = 0
PCHK = 1
NOX = 0
X_POS = 12
X_EVERY = 4
XFL = 'sc1'
TAIL = 0
SC_TOUCH = 0
TOUCH_AHEAD = 1
MG_LATE = 0
P_PRE = 10
F3_POS = 5
F2_DELAY = 4
P3_SLEEP = 3
H3_DELAY = 0
H2_DELAY = 0
X_LATE = 2

def stamp(a, k):
    if STAMPS: a(f's_memtime s[{40+2*k}:{41+2*k}]')
def stamp_flush(a, path, lbl, t):
    if not STAMPS: return
    a(f's_sub_u32 s22, s19, {STAMP_STEP}')
    a('s_cmp_gt_u32 s22, 1')
    a(f's_cbranch_scc1 {lbl}')
    a('s_waitcnt lgkmcnt(0)')
    a('s_lshl_b32 s22, s22, 14')
    a('s_lshl_b32 s63, s17, 9')
    a('s_add_u32 s22, s22, s63')
    a(f's_add_u32 s22, s22, {STAMP_OFF + path * 64}')
    a(f'v_mov_b32 v{t}, 0')
    for k in range(NST):
        a(f'v_mov_b32 v{t+1}, s{40+2*k}')
        a(f'buffer_store_dword v{t+1}, v{t}, {SRD}, s22 offen offset:{4*k}')
        a.nop(1)
    a.label(lbl)
def stamp_calib(a, P):
    if not STAMPS: return
    a('s_memrealtime s[64:65]')
    a('s_waitcnt lgkmcnt(0)')
    a('s_lshr_b32 s68, s64, 10')
    a.label(P)
    a('s_memrealtime s[64:65]')
    a('s_memtime s[66:67]')
    a('s_waitcnt lgkmcnt(0)')
    a('s_lshr_b32 s69, s64, 10')
    a('s_cmp_eq_u32 s68, s69')
    a(f's_cbranch_scc1 {P}')
    a('s_lshl_b32 s22, s17, 9')
    a('s_lshl_b32 s63, s89, 6')
    a('s_add_u32 s22, s22, s63')
    a(f's_add_u32 s22, s22, {STAMP_OFF}')
    a('v_mov_b32 v8, s64\nv_mov_b32 v9, s66\nv_mov_b32 v10, 0')
    a(f'buffer_store_dwordx2 v[8:9], v10, {SRD}, s22 offen offset:56')

EVLOG = 0
EV_OFF = 101 * 1024 * 1024
HDBG = 0
HMAP = {9000: 6, 9010: 7, 9011: 8, 9002: 9, 9003: 10, 9004: 11, 9020: 12, 9021: 13, 9022: 14}
def evlog(a, tag):
    if HDBG and tag in HMAP:
        lb = a.newlabel('hd')
        if tag in (9002, 9003, 9004):
            a('s_cmp_lg_u32 s17, 5')
            a(f's_cbranch_scc1 {lb}')
            a('s_cmp_lg_u32 s89, 3')
        else:
            a('s_cmp_lg_u32 s16, 0')
            a(f's_cbranch_scc1 {lb}')
            a(f's_cmp_lg_u32 s2, {HDBG}')
        a(f's_cbranch_scc1 {lb}')
        a('s_memrealtime s[98:99]')
        a('s_waitcnt lgkmcnt(0)')
        a('v_mov_b32 v37, s98')
        a(f'buffer_store_dword v37, off, {DBG}, 0 offset:{4*HMAP[tag]}')
        a.label(lb)
    if not EVLOG: return
    a('s_memrealtime s[98:99]')
    a('s_waitcnt lgkmcnt(0)')
    a(f'v_mov_b32 v36, {tag}')
    a('v_mov_b32 v37, s98')
    a('s_mov_b64 exec, 1')
    a(f'buffer_store_dwordx2 v[36:37], off, {SRD}, s100')
    a('s_mov_b64 exec, -1')
    a('s_add_u32 s100, s100, 8')

def spin(a, back, abort):
    a('s_add_u32 s30, s30, 1')
    a(f's_cmp_lt_u32 s30, {SPIN_LIMIT}')
    a(f's_cbranch_scc1 {back}')
    a(f's_branch {abort}')

def flagpoll(a, vaddr, tag, regs, lbl, abort, fast=0):
    Dp = POLL_DEPTH
    if fast:
        Dp = fast
        assert Dp % 2 == 0
        ld = lambda i: a(f'buffer_load_dword v{regs+i}, v{vaddr}, {SRD}, 0 offen sc1')
        a('s_mov_b64 s[72:73], -1')
        for i in range(Dp):
            ld(i)
            if i < Dp - 1: a('s_add_u32 s74, s74, 1\ns_add_u32 s74, s74, 1\ns_add_u32 s74, s74, 1')
        a.label(lbl + '_l')
        for i in range(Dp):
            p, q = (70, 72) if i % 2 == 0 else (72, 70)
            a(f's_waitcnt vmcnt({Dp-1})')
            a(f'v_cmp_gt_u32 s[{p}:{p+1}], {tag}, v{regs+i}')
            ld(i)
            a(f's_cmp_eq_u64 s[{q}:{q+1}], 0')
            a(f's_cbranch_scc1 {lbl}_d')
        spin(a, lbl + '_l', abort)
        a.label(lbl + '_d')
        return
    for i in range(Dp):
        a(f'buffer_load_dword v{regs+i}, v{vaddr}, {SRD}, 0 offen sc1')
    a.label(lbl + '_l')
    for i in range(Dp):
        a(f's_waitcnt vmcnt({Dp-1})')
        a(f'v_cmp_gt_u32 vcc, {tag}, v{regs+i}')
        a(f's_cbranch_vccz {lbl}_d')
        a(f'buffer_load_dword v{regs+i}, v{vaddr}, {SRD}, 0 offen sc1')
    spin(a, lbl + '_l', abort)
    a.label(lbl + '_d')

def load_units(a, units, base, tmp_s='s22', fl=''):
    cur = None; n = 0
    for off, reg in units:
        for hb in range(2):
            o = off + hb * 1024
            blk = o // 4096 * 4096
            if blk != cur:
                a(f's_add_u32 {tmp_s}, {base}, {blk}'); cur = blk
            a(f'buffer_load_dwordx4 {ureg(reg + 4 * hb, 4)}, v2, {SRD}, {tmp_s} offen offset:{o - blk} {fl}')
            n += 1
            if n % 32 == 0: a('s_waitcnt vmcnt(24)')

def wreg(ti, ks):
    u = ti * 7 + ks
    return 256 + 8 * u if u < 32 else 120 + 8 * (u - 32)

def lane_consts(a):
    a('v_and_b32 v1, 63, v0')
    a('v_lshlrev_b32 v2, 4, v1')
    a('v_lshrrev_b32 v116, 4, v1')
    a('v_and_b32 v117, 15, v1')
    a('v_mov_b32 v3, 0x4444')
    a('v_mov_b32 v118, 0xeeee')
    a('v_cmp_lt_u32 vcc, 7, v117')
    a('v_cndmask_b32 v3, v3, v118, vcc')

def next_step(a):
    a('s_mov_b32 s19, s18')
    a('s_add_u32 s18, s18, 1')
    a('s_mov_b32 s22, s20')
    a('s_mov_b32 s20, s21')
    a('s_mov_b32 s21, s22')
    a('s_add_u32 s23, s20, 4096')

def gap(a, ops):
    for o in ops:
        if not o.startswith('v_'): a(o)
    for o in ops:
        if o.startswith('v_'): a(o)

def poison_max(a, acc, regs):
    regs = list(regs)
    a(f'v_max3_u32 v{acc}, v{regs[0]}, v{regs[1]}, v{regs[2]}'); regs = regs[3:]
    while len(regs) >= 2:
        a(f'v_max3_u32 v{acc}, v{acc}, v{regs[0]}, v{regs[1]}'); regs = regs[2:]
    if regs: a(f'v_max_u32 v{acc}, v{acc}, v{regs[0]}')

def poison_max16(a, acc, regs):
    regs = list(regs)
    a(f'v_pk_max_u16 v{acc}, v{regs[0]}, v{regs[1]}')
    for r in regs[2:]: a(f'v_pk_max_u16 v{acc}, v{acc}, v{r}')
    a(f'v_lshlrev_b32 v{acc+1}, 16, v{acc}')
    a(f'v_max_u32 v{acc}, v{acc}, v{acc+1}')
    a(f'v_cmp_le_u32 vcc, 0xffff0000, v{acc}')

XP = 0
MP = 4 * KB
MJ = MP + 2304
XB = 8 * KB
def score_tiles(w):
    kb = 4 + (w >> 1); pP = w & 1
    return [(w, 0), (w, 1), (w, 2), (w, 3), (kb, 2 * pP), (kb, 2 * pP + 1), (6, 2 * (1 - pP) + (w >> 1))]
def score_mreg(w):
    kb = 4 + (w >> 1)
    m = {0: 8, 1: 12, 2: 16, 3: 20, 9 - kb: 24}
    if w & 1: m[kb] = 28; m[6] = 32
    else: m[6] = 28; m[kb] = 32
    return m

def gen_score(a, w, st, tag):
    L = lambda n: f'{tag}_sc{w}_{n}'
    ABORT = f'{tag}_abort'
    MR = score_mreg(w)
    ka = w; half6 = w >> 1
    AC = [36, 40, 44, 48, 52, 56, 60 + 2 * half6]
    TMP = 66; SX = 68; BOP2 = 76; XS = [80, 88, 96, 104]
    D0, D1, BOPA = [MR[k] for k in range(4) if k != ka]
    SACC = 52; W = 56
    pb, p6 = (0, 1) if w & 1 else (1, 0)
    def S(ti, ks):
        return f'v_smfmac_f32_16x16x64_bf16 v[{AC[ti]}:{AC[ti]+3}], v[{MR[ks]}:{MR[ks]+3}], {ureg(wreg(ti, ks), 8)}, v3'
    def cvt(dst, src):
        return [f'v_cvt_pk_bf16_f32 v{dst}, v{src}, v{src+1}', f'v_cvt_pk_bf16_f32 v{dst+1}, v{src+2}, v{src+3}']
    def cin(ti, hi):
        r = AC[ti]
        return cvt(r, r) if hi else cvt(r + 2, r)[::-1]
    def T(dst, src): return f'v_mfma_f32_16x16x32_bf16 v[{dst}:{dst+3}], v[{src}:{src+3}], v[4:7], 0'
    def xld(k):
        buf, hb = k >> 1, k & 1; r = XS[buf] + 4 * hb
        return f'buffer_load_dwordx4 v[{r}:{r+3}], v{117 if buf < 2 else 2}, {SRD}, {"s26" if buf & 1 else "s24"} offen offset:{hb*1024} {XFL}'
    a.xld = xld
    def Smm(m, b, first=False):
        c = '0' if first else f'v[{SACC}:{SACC+3}]'
        return f'v_mfma_f32_16x16x32_bf16 v[{SACC}:{SACC+3}], v[{m}:{m+3}], v[{b}:{b+3}], {c}'
    def Sx(tt, b, buf):
        return f'v_smfmac_f32_16x16x64_bf16 v[{SX+4*tt}:{SX+4*tt+3}], v[{b}:{b+3}], v[{XS[buf]}:{XS[buf]+7}], v3'
    ZR = list(range(36, 52)) + list(range(AC[6], AC[6] + 4)) + list(range(SX, SX + 8)) + list(range(52, 60))
    def zero(lo=0, hi=99):
        for r in ZR[lo:hi]: a(f'v_mov_b32 v{r}, 0')
    def mls(ks): return f'buffer_load_dwordx4 v[{MR[ks]}:{MR[ks]+3}], v2, {SRD}, {"s20" if ks < 4 else "s23"} offen offset:{(ks & 3) * 1024} sc1'
    def ml(ks): a(mls(ks))
    a.raw('.p2align 6')
    a.label(L('loop'))
    a('s_mov_b32 s30, 0')
    a('s_mov_b32 s62, 0')
    a('s_setprio 3')
    if w == 0:
        if SC_SLEEP: a(f's_sleep {SC_SLEEP}')
        flagpoll(a, 0, 's19', 24 if FP2 else BOP2, L('fp'), ABORT, FP2)
        ml(0)
        a('s_barrier')
    else:
        a('s_barrier')
        ml(0)
    stamp(a, 0)
    for k in (1, 2, 3):
        a(f's_setprio {3-k}')
        ml(k)
    for k in range(WARM if w == 3 else 0): a(f'v_mfma_f32_32x32x16_bf16 v[36:51], v[{SX}:{SX+3}], v[{SX}:{SX+3}], 0')
    a.flush()
    a.label(L('go'))
    chk = lambda k: f'v_cmp_eq_u32 vcc, -1, v{MR[k]}'
    ex1 = lambda k: [chk(k)]
    ex3 = [f'v_max3_u32 v{TMP}, v24, v27, v28', f'v_max3_u32 v{TMP}, v{TMP}, v31, v32', f'v_max_u32 v{TMP}, v{TMP}, v35', f'v_cmp_eq_u32 vcc, -1, v{TMP}']
    a('s_waitcnt vmcnt(3)')
    stamp(a, 1)
    xpos = [-1] * (X_LATE + X_W2) + [X_POS + X_EVERY * k for k in range(8 - X_LATE - X_W2)]
    nx = 0
    for ks in range(4):
        for ti in range(7):
            a(S(ti, ks))
            if ks == 0:
                if ti in (0, 2, 5): ml(4 + ti // 2)
                if ti == 2: a(f's_cbranch_vccnz {L("r0")}')
            if ti == 4 and ks < 3: a(f's_waitcnt vmcnt({[4, 4, 3][ks] + nx})')
            if ks == 3 and ti == 1: a(f's_waitcnt vmcnt({nx})')
            if 7 * ks + ti in xpos and not NOX:
                assert 7 * ks + ti > 5
                a(xld(X_LATE + X_W2 + nx)); nx += 1
            if ks == 0 and ti == 0: a(chk(0))
            if ti == 4 and ks < 3: a(chk(ks + 1))
            if ks == 3 and 1 <= ti <= 4: a(ex3[ti - 1])
            if ti == 6:
                a(f's_cbranch_vccnz {L(f"r{ks+1}")}')
                a.label(L(f'c{ks+1}'))
    stamp(a, 2)
    seq = []
    for ti in (6, 4, 5, 0, 1, 2, 3):
        for ks in (4, 5, 6): seq.append([S(ti, ks), []])
    def side(i, ops): seq[i][1] += ops
    def spread(i, ops):
        for k, o in enumerate(ops): side(i + k, [o])
    spread(5, cin(6, half6))
    seq.insert(8, [T(D0, 62 - 2 * half6), []])
    spread(8, cin(4, 0))
    spread(10, cvt(BOP2 + 2 * p6, D0))
    spread(12, cin(5, 1))
    seq.insert(15, [T(D1, 54), []])
    spread(15, cin(0, 0))
    spread(17, cvt(BOP2 + 2 * pb, D1))
    spread(19, cin(1, 1))
    c2 = cin(2, 0); c3 = cin(3, 1)
    for k in range(X_LATE + X_W2 + nx, 8):
        if not NOX: side(xpos[k] - 28, [xld(k)])
    side(22, ['s_waitcnt vmcnt(4)'] + c2[:1])
    seq.append([Sx(0, BOP2, 0), c2[1:]])
    seq.append([T(D0, 38), c3])
    seq.append([T(D1, 46), []])
    seq.append([Sx(1, BOP2, 1), cvt(BOPA, D0)[:1]])
    seq.append([Smm(30, BOP2, True), ['s_waitcnt vmcnt(0)'] + cvt(BOPA, D0)[1:] + cvt(BOPA + 2, D1)])
    wm = f'ds_write_b128 v113, v[{SACC}:{SACC+3}]'
    def foldx(t):
        b = SX + 4 * t
        a(f'v_permlane32_swap_b32 v{b}, v{b+2}')
        a(f'v_permlane32_swap_b32 v{b+1}, v{b+3}')
        a(f'v_add_f32 v{W+t}, v{b}, v{b+2}')
        a(f'v_add_f32 v{W+2+t}, v{b+1}, v{b+3}')
    last3 = [Sx(0, BOPA, 2), Sx(1, BOPA, 3), Smm(MR[ka], BOPA)]
    for k in [(2, 0, 1), (0, 1, 2), (0, 2, 1), (0, 1, 2)][TAIL]: seq.append([last3[k], []])
    for m, ops in seq:
        a(m)
        gap(a, ops)
    nz = 0
    if TAIL == 0:
        a(wm); foldx(0); foldx(1)
    elif TAIL == 1:
        foldx(0); foldx(1); a(wm)
    else:
        foldx(0); a(wm); foldx(1)
    a(f'ds_write_b128 v2, v[{W}:{W+3}] offset:{XP + w*1024}')
    a(f'v_cmp_u_f32 vcc, v{W+1}, v{W+3}')
    stamp(a, 3)
    ZP = 64 - 4 * half6
    zm = lambda d, z: a(f'v_mfma_f32_32x32x16_bf16 v[{d}:{d+15}], v[{SX}:{SX+3}], v[{SX}:{SX+3}], 0')
    for r in range(SX, SX + 4): a(f'v_mov_b32 v{r}, 0')
    a(f's_cbranch_vccnz {L("retry")}')
    a.label(L('cont'))
    a(f's_add_u32 s24, s24, {XSEG_B}')
    a(f's_add_u32 s26, s26, {XSEG_B}')
    for k in range(X_LATE): a(xld(k))
    for r in range(SX + 4, SX + 4 + FILL_A): a(f'v_mov_b32 v{r}, 0')
    if ZV == 3 and w == 3: a(f'v_mfma_f32_16x16x32_bf16 v[{AC[6]}:{AC[6]+3}], v[{SX}:{SX+3}], v[{SX}:{SX+3}], 0')
    else: zm(36, ZP)
    a('s_waitcnt lgkmcnt(0)')
    a('s_barrier')
    stamp(a, 4)
    def f1(pos):
        if w == F1_W and pos == F1_POS: a(f'buffer_store_dword v112, v116, {SRD}, 0 offen {st}')
    if w < 2:
        t = 8
        for k in range(4): a(f'ds_read_b64 v[{t+2*k}:{t+2*k+1}], v114 offset:{k*1024}')
        a(f'ds_read2_b32 v[{t+8}:{t+9}], v115 offset0:0 offset1:64')
        a(f'ds_read2_b32 v[{t+10}:{t+11}], v115 offset0:128 offset1:192')
        if ZV != 2: zm(52, SX)
        a('s_waitcnt lgkmcnt(0)')
        stamp(a, 5)
        X = t; Y = t + 4; Mm = t + 8; m = t + 12; mx = t + 14; l = t + 16
        a(f'v_pk_add_f32 v[{Mm}:{Mm+1}], v[{Mm}:{Mm+1}], v[{Mm+2}:{Mm+3}]')
        a(f'v_pk_add_f32 v[{X}:{X+1}], v[{X}:{X+1}], v[{X+2}:{X+3}]')
        a(f'v_pk_add_f32 v[{Y}:{Y+1}], v[{Y}:{Y+1}], v[{Y+2}:{Y+3}]')
        a(f'v_add_f32 v{m}, v{Mm}, v{Mm+1}')
        a(f'v_pk_add_f32 v[{X}:{X+1}], v[{X}:{X+1}], v[{Y}:{Y+1}]')
        a(f'v_max_f32 v{mx}, v{X}, v{X+1}')
        a(f'v_add_f32_dpp v{m}, v{m}, v{m} row_ror:8 {D}')
        f1(0)
        a(f'v_max_f32_dpp v{mx}, v{mx}, v{mx} row_ror:8 {D}')
        a(f'v_max_f32 v{mx}, v{mx}, v{m}')
        f1(1)
        a(f'v_max_f32_dpp v{mx}, v{mx}, v{mx} quad_perm:[1,0,3,2] {D}')
        f1(2)
        a(f'v_max_f32_dpp v{mx}, v{mx}, v{mx} quad_perm:[2,3,0,1] {D}')
        f1(3)
        a(f'v_max_f32_dpp v{mx}, v{mx}, v{mx} row_half_mirror {D}')
        a(f'v_pk_add_f32 v[{X}:{X+1}], v[{X}:{X+1}], v[{mx}:{mx+1}] op_sel_hi:[1,0] neg_lo:[0,1] neg_hi:[0,1]')
        a(f'v_sub_f32 v{m}, v{m}, v{mx}')
        f1(4)
        a(f'v_exp_f32 v{X}, v{X}')
        a(f'v_exp_f32 v{X+1}, v{X+1}')
        a(f'v_exp_f32 v{m}, v{m}')
        f1(5)
        a(f'v_add_f32 v{l}, v{X}, v{X+1}')
        a(f'v_fmac_f32 v{l}, 0.5, v{m}')
        a(f'v_mov_b32_dpp v{m+1}, v{m} quad_perm:[1,0,3,2] {D}')
        a(f'v_add_f32_dpp v{l}, v{l}, v{l} quad_perm:[1,0,3,2] {D}')
        f1(6)
        a(f'v_add_f32_dpp v{l}, v{l}, v{l} quad_perm:[2,3,0,1] {D}')
        a(f'v_add_f32_dpp v{l}, v{l}, v{l} row_half_mirror {D}')
        a(f'v_add_f32_dpp v{l}, v{l}, v{l} row_ror:8 {D}')
        a(f'v_rcp_f32 v{l}, v{l}')
        a(f'v_pk_mul_f32 v[{X}:{X+1}], v[{X}:{X+1}], v[{l}:{l+1}] op_sel_hi:[1,0]')
        a(f'v_pk_mul_f32 v[{m}:{m+1}], v[{m}:{m+1}], v[{l}:{l+1}] op_sel_hi:[1,0]')
        a(f'v_cvt_pk_bf16_f32 v{X}, v{X}, v{X+1}')
        a(f'v_cvt_pk_bf16_f32 v{m}, v{m}, v{m+1}')
        a(f'v_min_u32 v{X}, -2, v{X}')
        a(f'buffer_store_dword v{X}, v1, {SRD}, s20 offen {st}')
        a(f'v_min_u32 v{m}, -2, v{m}')
        a(f'buffer_store_dword v{m}, v118, {SRD}, s20 offen {st}')
        stamp(a, 6)
        a(f'buffer_store_dword v119, v1, {SRD}, s21 offen {st}')
        a(f'buffer_store_dword v119, v118, {SRD}, s21 offen {st}')
        if ZV == 2: zm(52, SX)
    else:
        if ZV == 0 or (ZV == 3 and w == 2):
            zm(52, SX)
            if STLB:
                a(f's_buffer_load_dword s70, {SRD}, s35')
                a(f's_add_u32 s22, s24, {4*XSEG_B}')
                a(f's_buffer_load_dword s71, {SRD}, s22')
                a(f's_mul_i32 s22, s18, {7*KB}')
                a(f's_add_u32 s22, s22, {MEMG_OFF + 3*7*KB}')
                a(f's_buffer_load_dword s72, {SRD}, s22')
                a(f's_add_u32 s35, s35, {VO_SS}')
        elif ZV == 3:
            for r in range(52, 52 + ZX): a(f'v_mov_b32 v{r}, 0')
            zm(36, SX)
        else:
            for r in list(range(52, 60)) + list(range(AC[6], AC[6] + 4)): a(f'v_mov_b32 v{r}, 0')
            for k in range(ZX if w == 2 else 0): a(f'v_mov_b32 v{TMP}, 0')
    for r in range(SX + 4 + FILL_A, SX + 8): a(f'v_mov_b32 v{r}, 0')
    if X_W2:
        sl = X_SLEEP + (5 if w >= 2 else 0)
        if sl: a(f's_sleep {sl}')
        for k in range(X_LATE, X_LATE + X_W2): a(xld(k))
    stamp_flush(a, w, L('sf'), BOP2)
    if STEPLOG and w in (1, 3):
        a('s_memtime s[40:41]' if w == 1 else 's_memrealtime s[40:41]')
        a('s_lshl_b32 s22, s17, 8')
        if w == 3: a('s_add_u32 s22, s22, 4096')
        a('s_lshl_b32 s42, s19, 2')
        a('s_add_u32 s22, s22, s42')
        a(f's_add_u32 s22, s22, {STAMP_OFF}')
        a(f'v_mov_b32 v{BOP2}, 0')
        a('s_waitcnt lgkmcnt(0)')
        a(f'v_mov_b32 v{BOP2+1}, s40')
        a(f'buffer_store_dword v{BOP2+1}, v{BOP2}, {SRD}, s22 offen')
    if DIAG and w == 3:
        a('s_cmp_lg_u32 s19, 1')
        a(f's_cbranch_scc1 {L("dg")}')
        a('s_memtime s[90:91]')
        a('s_memrealtime s[86:87]')
        a.label(L('dg'))
    next_step(a)
    if w == F1_W: a('v_mov_b32 v112, s18')
    a(f's_cmp_lt_u32 s19, {NSTEPS-1}')
    a.flush()
    a(f's_cbranch_scc1 {L("loop")}')
    a(f's_branch {tag}_done')
    for k in range(5):
        ks_ = [k] if k < 4 else [4, 5, 6]
        a.label(L(f'r{k}'))
        a('s_add_u32 s31, s31, 1')
        for ks in ks_: ml(ks)
        a('s_waitcnt vmcnt(0)')
        for x in (ex1(k) if k < 4 else ex3): a(x)
        if k == 0:
            for r in range(36, 52): a(f'v_mov_b32 v{r}, 0')
        a.flush()
        a(f's_cbranch_vccz {L("go" if k == 0 else f"c{k}")}')
        spin(a, L(f'r{k}'), ABORT)
    a.label(L('retry'))
    a('s_cmp_lg_u32 s62, 0')
    a(f's_cbranch_scc1 {L("cont")}')
    a('s_waitcnt vmcnt(0) lgkmcnt(0)')
    a.label(L('rv'))
    for ks in range(7): ml(ks)
    a('s_waitcnt vmcnt(0)')
    poison_max16(a, TMP, range(8, 36))
    a(f's_cbranch_vccz {L("rk")}')
    spin(a, L('rv'), ABORT)
    a.label(L('rk'))
    a('s_mov_b32 s62, 1')
    zero()
    a('s_add_u32 s31, s31, 0x100')
    a.flush()
    a(f's_branch {L("go")}')

def touch_ring(a, t, w):
    nl = (2 * EXCH_B) // 128 + 33
    a(f's_mov_b32 s22, {EXCH_OFF}')
    for k in range(w, (nl + 63) // 64, 4):
        a(f'v_lshrrev_b32 v{t}, 4, v2')
        a(f'v_add_u32 v{t}, {64*k}, v{t}')
        a(f'v_min_u32 v{t}, {nl-1}, v{t}')
        a(f'v_lshlrev_b32 v{t}, 7, v{t}')
        a(f'buffer_load_dword v{t+1}, v{t}, {SRD}, s22 offen sc1')

def WFL(): return 'sc1' if FUSE else ''
HELP = 0
HFULL = 0
def mask_wait(a, P, vaddr, soff, smask, sleep=3):
    poll(a, P, [f'buffer_load_dword v9, {vaddr}, {SRD}, {soff} {"offen" if vaddr != "off" else ""} sc1'], [f'v_and_b32 v10, {smask}, v9', f'v_cmp_ne_u32 vcc, {smask}, v10'], sleep=sleep)
def b_wait(a, P, w):
    a('s_lshr_b32 s22, s17, 2')
    a('s_lshl_b32 s28, 0x81, s22')
    a('s_mul_i32 s27, s17, 12')
    for d in (256, 267):
        a(f's_add_u32 s22, s27, {d}')
        a('s_lshr_b32 s22, s22, 6')
        a('s_lshl_b32 s22, 0x81, s22')
        a('s_or_b32 s28, s28, s22')
    a('v_lshrrev_b32 v12, 8, v2')
    a('v_lshlrev_b32 v12, 7, v12')
    a(f's_mov_b32 s27, {PFL + w*512}')
    mask_wait(a, P, 'v12', 's27', 's28')
def a_wait(a, P, kaps):
    a('s_lshl_b32 s27, s17, 7')
    a(f's_add_u32 s27, s27, {PFL + 2048}')
    a(f's_mov_b32 s28, {sum(0x81 << k for k in kaps)}')
    mask_wait(a, P, 'off', 's27', 's28')
def touch_tiles(a, base, tiles):
    a('v_min_u32 v64, 55, v1')
    a('v_lshlrev_b32 v64, 7, v64')
    a(f's_mul_i32 s27, s17, {CUW_B}')
    for t in tiles:
        for hf in range(2):
            a(f's_add_u32 s22, s27, {base + t*TILE_B + hf*7168}')
            if HFULL:
                for k in range(7):
                    if k == 4: a('s_add_u32 s22, s22, 4096')
                    a(f'buffer_load_dwordx4 v[8:11], v2, {SRD}, s22 offen offset:{(k & 3)*1024} sc1')
            else: a(f'buffer_load_dword v67, v64, {SRD}, s22 offen sc1')
def r_wait(a, P, off):
    poll(a, P, [f'buffer_load_dword v9, off, {DBG}, 0 offset:{off} sc1'], ['v_cmp_ne_u32 vcc, 1, v9'], sleep=8)

def init_score(a, w):
    a(f's_mul_i32 s31, s17, {CUW_B}')
    a(f's_add_u32 s31, s31, {WF_A}')
    units = [((kap * 4 + q) * TILE_B + ks * UNIT, wreg(ti, ks)) for ti, (kap, q) in enumerate(score_tiles(w)) for ks in range(7)]
    m2 = (0x81 << (4 + (w >> 1))) | (0x81 << 6)
    a(f's_and_b32 s28, s84, {m2}')
    a('s_lshl_b32 s22, s85, 16')
    a('s_or_b32 s28, s28, s22')
    a(f's_cmp_eq_u32 s28, {0xffff0000 | m2}')
    a(f's_cbranch_scc1 ch_wx{w}_ok')
    r_wait(a, f'ch_wr{w}', D_R2)
    a_wait(a, f'ch_wb{w}', [4 + (w >> 1), 6])
    a(f's_mov_b32 s29, {PFL + 4096}')
    a('s_mov_b32 s28, 0xffff')
    mask_wait(a, f'ch_wx{w}', 'off', 's29', 's28', sleep=8)
    evlog(a, 9002)
    load_units(a, units[28:40], 's31', fl='sc1')
    a(f's_mov_b32 s24, {XF_OFF + w*2048}')
    a(f's_mov_b32 s26, {XF_OFF + w*2048 + 14336}')
    a('v_and_b32 v64, 7, v117')
    a('v_and_b32 v65, 1, v116')
    a('v_lshlrev_b32 v65, 2, v65')
    a('v_sub_u32 v64, v64, v65')
    a('v_lshrrev_b32 v65, 3, v117')
    a('v_lshl_add_u32 v66, v65, 2, v64')
    a('v_cmp_gt_u32 vcc, 4, v64')
    a('v_mov_b32 v67, 99')
    a('v_cndmask_b32 v66, v67, v66, vcc')
    a('v_mov_b32 v68, 0x3f80')
    a('v_mov_b32 v69, 0x3f800000')
    for d in range(4):
        a(f'v_mov_b32 v{4+d}, 0')
        a(f'v_cmp_eq_u32 vcc, {2*d}, v66')
        a(f'v_cndmask_b32 v{4+d}, v{4+d}, v68, vcc')
        a(f'v_cmp_eq_u32 vcc, {2*d+1}, v66')
        a(f'v_cndmask_b32 v{4+d}, v{4+d}, v69, vcc')
    a('v_lshrrev_b32 v64, 1, v116')
    a('v_lshrrev_b32 v65, 3, v117')
    a('v_and_b32 v66, 1, v116')
    a('v_and_b32 v68, 7, v117')
    a('v_lshlrev_b32 v67, 8, v65')
    a('v_lshl_add_u32 v67, v68, 5, v67')
    a('v_lshl_add_u32 v67, v66, 4, v67')
    a(f'v_add_u32 v69, {MP + (w >> 1) * 1088 + (w & 1) * 512}, v67')
    a(f'v_add_u32 v70, {MJ}, v67')
    a('v_cmp_eq_u32 vcc, v64, v65')
    a('v_cndmask_b32 v113, v70, v69, vcc')
    if w < 2:
        a('v_lshlrev_b32 v67, 9, v64')
        a('v_lshl_add_u32 v67, v117, 4, v67')
        a('v_lshl_add_u32 v67, v66, 3, v67')
        a(f'v_add_u32 v114, {XP + w*256}, v67')
        a('v_mul_u32_u24 v67, 1088, v65')
        a('v_lshl_add_u32 v67, v116, 5, v67')
        a('v_lshl_add_u32 v67, v68, 2, v67')
        a(f'v_add_u32 v115, {MP + w*128}, v67')
        a('v_and_b32 v69, 1, v117')
        a('v_lshlrev_b32 v67, 7, v69')
        a('v_lshl_add_u32 v67, v116, 4, v67')
        a('v_lshl_add_u32 v67, v65, 8, v67')
        a('v_bfe_u32 v69, v117, 1, 2')
        a('v_lshl_add_u32 v67, v69, 2, v67')
        a('s_lshl_b32 s22, s17, 9')
        a(f's_add_u32 s22, s22, {PX + w*64}')
        a('v_add_u32 v72, s22, v67')
        a('v_bfe_u32 v69, v117, 1, 1')
        a('v_lshlrev_b32 v67, 7, v69')
        a('v_lshl_add_u32 v67, v116, 4, v67')
        a('v_and_b32 v69, 4, v117')
        a('v_add_u32 v67, v67, v69')
        a('s_lshr_b32 s22, s17, 1')
        a('s_lshl_b32 s22, s22, 8')
        a('s_and_b32 s27, s17, 1')
        a('s_lshl_b32 s27, s27, 3')
        a('s_add_u32 s22, s22, s27')
        a(f's_add_u32 s22, s22, {PM + w*64}')
        a('v_add_u32 v67, s22, v67')
        a('v_and_b32 v69, 9, v117')
        a('v_mov_b32 v70, 0x40000000')
        a('v_cmp_eq_u32 vcc, 0, v69')
        a('v_cndmask_b32 v118, v70, v67, vcc')
        a('v_mov_b32 v119, -1')
    if w == F1_W:
        a('s_lshl_b32 s22, s17, 2')
        a(f's_add_u32 s22, s22, {FLG1}')
        a('v_lshl_add_u32 v67, v1, 7, s22')
        a('v_mov_b32 v70, 0x40000000')
        a(f'v_cmp_gt_u32 vcc, {R1}, v1')
        a('v_cndmask_b32 v73, v70, v67, vcc')
        a('v_mov_b32 v112, 1')
    a('v_and_b32 v0, 15, v1')
    a(f's_and_b32 s22, s17, {R2-1}')
    a('s_lshl_b32 s22, s22, 7')
    a(f's_add_u32 s22, s22, {FLG2}')
    a('v_lshl_add_u32 v0, v0, 2, s22')
    kb = 4 + (w >> 1)
    k1, k2 = (kb, 6) if w & 1 else (6, kb)
    a('v_xor_b32 v69, 256, v2')
    a(f'v_mul_i32_i24 v70, {(k2 - k1) * 2048}, v66')
    a('v_add_u32 v69, v69, v70')
    a(f'v_add_u32 v117, {(k1 - w)*2048}, v69')
    a('v_mov_b32 v116, v73')
    a(f's_mul_i32 s35, s17, {VO_SV}')
    a(f's_add_u32 s35, s35, {VO_OFF + 4*VO_SS}')
    if w < 2: a('v_mov_b32 v1, v72')
    for r in range(36, 80): a(f'v_mov_b32 v{r}, 0')
    if NOX:
        for r in range(80, 112): a(f'v_mov_b32 v{r}, 0')
    touch_ring(a, 14, w)
    for k in range(8):
        r = 80 + 4 * k
        if not NOX: a(f'buffer_load_dwordx4 v[{r}:{r+3}], v{117 if k < 4 else 2}, {SRD}, {"s26" if k & 2 else "s24"} offen offset:{(k & 1)*1024} {XFL}')
    load_units(a, units[40:], 's31', fl='sc1')

YL = 0; ML = 8 * KB; WL = 16 * KB
def vwreg(w, ti, ks):
    u = ti * 7 + ks
    return 256 + 8 * u if u < 32 else (176 if w < 2 else 120) + 8 * (u - 32)

def vo_wait0(a, P):
    a('s_lshl_b32 s27, s17, 7')
    a(f's_add_u32 s27, s27, {CNT_OFF + VOC}')
    a('s_mov_b32 s30, 0')
    a.label(P)
    a(f'buffer_load_dword v9, off, {SRD}, s27 sc1')
    a('s_waitcnt vmcnt(0)')
    a('v_cmp_ne_u32 vcc, 56, v9')
    a(f's_cbranch_vccz {P}_d')
    a('s_sleep 2')
    spin(a, P, 'cA_abort')
    a.label(P + '_d')

def resolve_waits(ins):
    out = []; pos = {}; n = 0
    for x in ins:
        if isinstance(x, tuple) and x[0] == 'tag':
            n += 1; pos[x[1]] = n; out.append(x[2])
        elif isinstance(x, tuple):
            out.append(f's_waitcnt lgkmcnt({min(15, n - pos[x[1]])})')
        else:
            if x.startswith('ds_'): n += 1
            out.append(x)
    return out

def gen_value(a, w, st, tag):
    L = lambda n: f'{tag}_va{w}_{n}'
    ABORT = f'{tag}_abort'
    fin = w < 2
    M = 8; ACC = 36
    YA = 152 if fin else 104
    YT = 64; VOR = 80; LO = 48; PL = 52; HI = 160
    STG = [64, 72, 144]
    own = [[4, 5], [5, 6], [0, 1], [2, 3]][w]
    wrt = own if w != 1 else [6]
    oth = [k for k in range(7) if k not in own]
    def S(ti, ks):
        b = f'v[{STG[ks % 3]}:{STG[ks % 3]+7}]' if fin and ti == 6 else ureg(vwreg(w, ti, ks), 8)
        return f'v_smfmac_f32_16x16x64_bf16 v[{ACC+4*ti}:{ACC+4*ti+3}], v[{M+4*ks}:{M+4*ks+3}], {b}, v3'
    def fold(t):
        r = ACC + 4 * t
        return [f'v_permlane32_swap_b32 v{r}, v{r+2}', f'v_permlane32_swap_b32 v{r+1}, v{r+3}', f'v_add_f32 v{r}, v{r}, v{r+2}', f'v_add_f32 v{r+1}, v{r+1}, v{r+3}',
                f'v_cvt_pk_bf16_f32 v{r+2}, v{r}, v{r+1}', f'ds_write_b32 v{YA+t}, v{r+2}']
    def wrd(ks):
        b = STG[ks % 3]
        return [f'ds_read_b128 v[{b}:{b+3}], v0 offset:{ks*UNIT}', ('tag', f'w{ks}', f'ds_read_b128 v[{b+4}:{b+7}], v0 offset:{ks*UNIT+1024}')]
    def mld(ks): return f'buffer_load_dwordx4 v[{M+4*ks}:{M+4*ks+3}], v2, {SRD}, {"s20" if ks < 4 else "s23"} offen offset:{(ks & 3) * 1024} sc1'
    def vol(h):
        if PROT: pre = [f's_add_u32 s22, s25, s{80 + h // 4}'] if h % 4 == 0 else ['s_add_u32 s22, s22, 3584'] if h % 2 == 0 else []
        else: pre = [f's_add_u32 s22, s25, {h*1792}'] if h % 2 == 0 else []
        return pre + [f'buffer_load_dwordx4 v[{VOR+4*h}:{VOR+4*h+3}], v6, {SRD}, s22 offen offset:{(h & 1)*1792} sc1']
    isv = lambda o: isinstance(o, str) and o.startswith('v_')
    pois = f'buffer_store_dword v162, v1, {SRD}, s21 offen {st}'
    mg = f'buffer_store_dword v{HI}, v1, {SRD}, s38 offen sc1'
    mgp = f'buffer_store_dword v{HI}, v1, {SRD}, s38 offen {st or ["sc1", "", "nt", "sc0"][MG_MODE]}'
    zr = list(range(ACC, ACC + 28))
    a.raw('.p2align 6')
    a.label(L('loop'))
    a('s_mov_b32 s30, 0')
    if w == 2:
        flagpoll(a, 119, 's19', 100, L('fp'), ABORT)
        for ks in own: a(mld(ks))
        a('s_barrier')
    else:
        a('s_barrier')
        for ks in own: a(mld(ks))
    stamp(a, 0)
    a('s_barrier')
    if STEPLOG and w == 1: a('s_memtime s[40:41]')
    ny = 0
    if fin:
        if st or not MG_MODE: a(mg)
        else:
            a(f's_cmp_lt_u32 s19, {MG_SW}')
            a(f's_cbranch_scc1 {L("m1")}')
            a(mg)
            a(f's_branch {L("m2")}')
            a.label(L('m1'))
            a(mgp)
            a.label(L('m2'))
        ny += 1
        for h in range(VO_PRE):
            for x in vol(h): a(x)
        ny += VO_PRE
        a(f's_mul_i32 s38, s18, {7*KB}')
        a(f's_add_u32 s38, s38, {MEMG_OFF}')
    if w == 3:
        a(f'buffer_load_dword v100, v116, {SRD}, {"s39" if not NOXT else "s20"} offen sc1')
        a('s_add_u32 s27, s19, 2')
        a('s_min_u32 s27, s27, 63')
        a('s_lshr_b32 s27, s27, 3')
        a('s_lshl_b32 s27, s27, 11')
        a('s_add_u32 s27, s27, s35')
        a('s_cmp_eq_u32 s27, s28')
        a(f's_cselect_b32 s29, {FLG1}, s27')
        a(f'buffer_load_dword v101, off, {SRD}, s29 sc1')
        a(f's_add_u32 s39, s39, {XSEG_B}')
        ny += 2
    if VPROBE >= 0 and w == 1:
        a(f's_waitcnt vmcnt({VPROBE})')
        a('s_memtime s[42:43]')
    a(f's_waitcnt vmcnt({ny})')
    stamp(a, 1)
    for ks in wrt: a(f'ds_write_b128 v2, v[{M+4*ks}:{M+4*ks+3}] offset:{ML + ks*1024}')
    nrt = 6 if fin else 7
    seq = [[t, S(t, ks), []] for ks in own for t in range(nrt)]
    seq[B1_POS][2] += ['s_waitcnt lgkmcnt(0)', 's_barrier'] + [('tag', f'm{ks}', f'ds_read_b128 v[{M+4*ks}:{M+4*ks+3}], v2 offset:{ML + ks*1024}') for ks in oth]
    n0 = len(seq)
    rest = [[t, S(t, ks), []] for t in range(nrt) for ks in oth]
    if fin:
        for j_ in range(7): rest.insert(3 + 4 * j_, [6, S(6, j_), []])
    seq += rest
    for k, ks in enumerate(oth):
        idx = next(i_ for i_ in range(n0, len(seq)) if seq[i_][1] == S(0, ks))
        seq[idx - 1][2].append(('wait', f'm{ks}'))
    if fin:
        for j_ in range(7):
            idx = n0 + 3 + 4 * j_
            seq[idx - (8 if j_ else 5)][2] += wrd(j_)
            seq[idx - 1][2].append(('wait', f'w{j_}'))
        for h in range(VO_PRE, 16): seq[(h - VO_PRE) * VO_EVERY][2] += vol(h)
        if TLB_WARM and w == 1:
            seq[(16 - VO_PRE) * VO_EVERY][2] += [f's_add_u32 s22, s25, {VO_SS + GSH_B - 128}', f'buffer_load_dword v164, off, {SRD}, s22 sc1']
    last = {}
    for i_, (t, m, sd) in enumerate(seq): last[t] = i_
    ins = []; pend = []; delay = 0; brk = None
    for i_, (t, m, sd) in enumerate(seq):
        ins.append(m)
        ops = list(sd)
        if pend and pend[0].startswith('ds_'): ops.insert(0, pend.pop(0))
        if brk == i_:
            ops.append(f's_cbranch_vccnz {L("slow")}')
            assert not fin or i_ > (16 - VO_PRE) * VO_EVERY
        if brk is not None and brk + 2 == i_ and fin: ops.append(pois)
        if delay: delay -= 1
        elif pend:
            x = pend.pop(0); ops.append(x)
            if x.startswith('v_cmp'): brk = i_ + 2
        ins += [o for o in ops if not isv(o)] + [o for o in ops if isv(o)]
        if i_ == last[t]:
            delay = max(delay, 2 - len(pend))
            f_ = fold(t)
            if t == 0: f_.insert(4, f'v_cmp_u_f32 vcc, v{ACC}, v{ACC+1}')
            pend += f_
    ins += pend
    for x in resolve_waits(ins): a(x)
    a.label(L('t2d'))
    stamp(a, 2)
    if fin:
        pr = lambda c: 8 + 4 * c
        def pld(c):
            so = ('s22', 's34', 's36')[c // 4]; o = (c & 3) * 1024
            if PROT and c < 8: so = f's{72 + c // 2}'; o = (c & 1) * 1024
            a(f'buffer_load_dwordx4 v[{pr(c)}:{pr(c)+3}], v2, {SRD}, {so} offen offset:{o} sc1')
        if PROT:
            for j_ in range(4): a(f's_add_u32 s{72+j_}, s20, s{76+j_}')
        a(f's_add_u32 s22, s20, {PX}')
        a(f's_add_u32 s34, s20, {PX + 4096}')
        a(f's_add_u32 s36, s20, {PM}')
        a('s_mov_b32 s37, 0')
        for r in range(LO, LO + 4): a(f'v_mov_b32 v{r}, 0')
        a('v_mov_b32 v163, s18')
        a('s_waitcnt lgkmcnt(0)')
        if STAMPS:
            a('s_waitcnt vmcnt(0)')
            stamp(a, 3)
        if STEPLOG and w == 1 and VPROBE < 0:
            a('s_waitcnt vmcnt(0)')
            a('s_memtime s[42:43]')
        if w == 0:
            a('s_setprio 3')
            flagpoll(a, 4, 's18', PL, L('fw'), ABORT, FP1)
            for c in range(B3_AT): pld(c)
        a('s_barrier')
        if w == 0:
            for c in range(B3_AT, 10): pld(c)
        elif B3_AT < 10:
            for k in range(2 * (10 - B3_AT) + 4): a(f'v_mov_b32 v{PL+4+(k & 7)}, 0')
        stamp(a, 4)
        if w == 1:
            for c in range(10): pld(c)
        for k in range(4): a(f'ds_read_b128 v[{YT+4*k}:{YT+4*k+3}], v2 offset:{YL + w*4096 + k*1024}')
        a.label(L('lp'))
        nst = 0
        ckc = list(range(min(F3_POS - 1, 8))) if PCHK and w == 1 else []
        for c in range(10):
            a(f's_waitcnt vmcnt({9-c+nst})' + (' lgkmcnt(0)' if c == 8 else ''))
            if c == 0: stamp(a, 5)
            B_ = VOR + 8 * c if c < 8 else YT + 8 * (c - 8)
            a(f'v_smfmac_f32_16x16x64_bf16 v[{LO}:{LO+3}], v[{pr(c)}:{pr(c)+3}], v[{B_}:{B_+7}], v3')
            if c == F3_POS and w == 1:
                if ckc: a(f's_cbranch_vccnz {L("rv")}')
                a(f'buffer_store_dword v163, v7, {SRD}, 0 offen {st}')
                nst = 1
            if c in ckc:
                if c % 2 == 0 and c > 0: a(f'v_max3_u32 v{PL+3}, v{PL+3 if c > 2 else pr(0)}, v{pr(c-1)}, v{pr(c)}')
                elif c == ckc[-1] and c > 0: a(f'v_max_u32 v{PL+3}, v{PL+3 if c > 2 else pr(0)}, v{pr(c)}')
                if c == ckc[-1]: a(f'v_cmp_eq_u32 vcc, -1, v{PL+3 if c > 0 else pr(0)}')
        stamp(a, 6)
        a(f'v_permlane32_swap_b32 v{LO}, v{LO+2}')
        a(f'v_permlane32_swap_b32 v{LO+1}, v{LO+3}')
        a(f'v_add_f32 v{LO}, v{LO}, v{LO+2}')
        a(f'v_add_f32 v{LO+1}, v{LO+1}, v{LO+3}')
        a(f'v_cvt_pk_bf16_f32 v{HI}, v{LO}, v{LO+1}')
        a(f'v_cmp_u_f32 vcc, v{LO}, v{LO+1}')
        a(f'v_mov_b32_dpp v{HI+1}, v{HI} quad_perm:[1,0,3,2] {D}')
        a(f'v_perm_b32 v{HI}, v{HI+1}, v{HI}, v5')
        a(f'v_min_u32 v{HI}, -2, v{HI}')
        a(f's_cbranch_vccnz {L("rp")}')
        a.label(L('cont'))
        a(f'buffer_store_dword v{HI}, v1, {SRD}, s21 offen {st}')
        stamp(a, 7)
        if w == 0: a('s_setprio 0')
        a(f's_cmp_lg_u32 s19, {NSTEPS-2}')
        a(f's_cbranch_scc1 {L("nl")}')
        a(mg)
        if MG_MODE:
            a('s_waitcnt vmcnt(0)')
            a('buffer_wbl2 sc1')
        a(f's_branch {tag}_done')
        a.label(L('nl'))
        if not NOVO: a(f's_add_u32 s25, s25, {VO_SS}')
        stamp_flush(a, 4 + w, L('sf'), PL)
        if STEPLOG and w == 1:
            a('s_sub_u32 s40, s42, s40')
            a('s_lshl_b32 s22, s17, 8')
            a('s_lshl_b32 s42, s19, 2')
            a('s_add_u32 s22, s22, s42')
            a(f's_add_u32 s22, s22, {STAMP_OFF + 8192}')
            a(f'v_mov_b32 v{PL+1}, s40')
            a(f'buffer_store_dword v{PL+1}, off, {SRD}, s22')
        for r in zr: a(f'v_mov_b32 v{r}, 0')
    else:
        a('v_mov_b32 v117, s18')
        if w == 3:
            a('s_cmp_eq_u32 s27, s28')
            a(f's_cbranch_scc1 {L("vok")}')
            a.label(L('vow'))
            a('s_waitcnt vmcnt(0)')
            a('v_cmp_ne_u32 vcc, 56, v101')
            a(f's_cbranch_vccnz {L("vor")}')
            a('s_mov_b32 s28, s27')
            a.label(L('vok'))
        a('s_waitcnt lgkmcnt(0)')
        stamp(a, 3)
        if w == 3 and F2_PRIO: a('s_setprio 3')
        a('s_barrier')
        nd = F2_DELAY if w == 3 else 0
        for r in zr[:nd]: a(f'v_mov_b32 v{r}, 0')
        if w == 3: a(f'buffer_store_dword v117, v118, {SRD}, 0 offen {st}')
        if w == 3 and F2_PRIO: a('s_setprio 0')
        a(f's_cmp_eq_u32 s19, {NSTEPS-2}')
        a(f's_cbranch_scc1 {tag}_done')
        if w == 2: a('s_sleep 1')
        for r in zr[nd:]: a(f'v_mov_b32 v{r}, 0')
        if w == 2 and P3_SLEEP: a(f's_sleep {P3_SLEEP}')
        stamp_flush(a, 4 + w, L('sf'), 76)
    next_step(a)
    a.flush()
    a(f's_branch {L("loop")}')
    a.label(L('slow'))
    a('s_waitcnt lgkmcnt(0)')
    a.label(L('sl1'))
    a('s_add_u32 s31, s31, 0x1000000')
    for ks in range(7): a(mld(ks))
    a('s_waitcnt vmcnt(0)')
    poison_max(a, ACC, range(M, M + 28))
    a(f'v_cmp_eq_u32 vcc, -1, v{ACC}')
    a(f's_cbranch_vccz {L("sl2")}')
    spin(a, L('sl1'), ABORT)
    a.label(L('sl2'))
    for r in zr: a(f'v_mov_b32 v{r}, 0')
    if fin: a(pois)
    for ks in range(7):
        if fin:
            for x in resolve_waits(wrd(ks)): a(x)
        for t in range(7):
            if fin and t == 6: a('s_waitcnt lgkmcnt(0)')
            a(S(t, ks))
    for t in range(7):
        for x in fold(t): a(x)
    a(f's_branch {L("t2d")}')
    if fin:
        a.label(L('rp'))
        a('s_cmp_lg_u32 s37, 0')
        a(f's_cbranch_scc1 {L("cont")}')
        a.label(L('rv'))
        a('s_add_u32 s31, s31, 0x10000')
        for c in range(10): pld(c)
        a('s_waitcnt vmcnt(0)')
        poison_max(a, PL, [pr(c) + r for c in range(10) for r in range(4)])
        a(f'v_cmp_eq_u32 vcc, -1, v{PL}')
        a('s_mov_b32 s37, 1')
        for r in range(LO, LO + 4): a(f'v_mov_b32 v{r}, 0')
        a.flush()
        a(f's_cbranch_vccz {L("lp")}')
        spin(a, L('rv'), ABORT)
    if w == 3:
        a.label(L('vor'))
        a('s_sleep 2')
        a(f'buffer_load_dword v101, off, {SRD}, s27 sc1')
        spin(a, L('vow'), ABORT)

def init_value(a, w):
    fin = w < 2
    YA = 152 if fin else 104
    a('v_mov_b32 v72, v116')
    a('v_mov_b32 v73, v117')
    a('v_lshrrev_b32 v65, 1, v72')
    a('v_and_b32 v66, 1, v72')
    for r in range(36, 64): a(f'v_mov_b32 v{r}, 0')
    a('v_lshlrev_b32 v75, 2, v65')
    a('v_lshl_add_u32 v75, v66, 3, v75')
    for t in range(7):
        a(f'v_add_u32 v67, {16 * (7*w + t)}, v73')
        a('v_mul_u32_u24 v68, 2341, v67')
        a('v_lshrrev_b32 v68, 16, v68')
        a('v_mul_u32_u24 v69, 28, v68')
        a('v_sub_u32 v69, v67, v69')
        a('v_lshrrev_b32 v70, 4, v69')
        a('v_and_b32 v69, 15, v69')
        a('v_lshlrev_b32 v71, 12, v70')
        a('v_lshl_add_u32 v71, v68, 8, v71')
        a('v_lshl_add_u32 v71, v69, 4, v71')
        a(f'v_add_u32 v{YA+t}, v71, v75')
    a('v_mov_b32 v74, 0x40000000')
    if fin:
        a('v_mov_b32 v76, 0\nv_mov_b32 v77, 0\nv_mov_b32 v78, 0\nv_mov_b32 v79, 0')
        for k in range(4): a(f'ds_write_b128 v2, v[76:79] offset:{YL + w*4096 + k*1024}')
        a(f's_and_b32 s22, s17, {R1-1}')
        a('s_lshl_b32 s22, s22, 7')
        a(f's_add_u32 s22, s22, {FLG1}')
        a('v_lshl_add_u32 v4, v73, 2, s22')
        a('v_and_b32 v64, 1, v73')
        a('v_mov_b32 v5, 0x05040100')
        a('v_mov_b32 v65, 0x03020706')
        a('v_cmp_eq_u32 vcc, 1, v64')
        a('v_cndmask_b32 v5, v5, v65, vcc')
        a('s_lshl_b32 s22, s17, 2')
        a(f's_add_u32 s22, s22, {FLG2 + 16*128}')
        a('v_lshl_add_u32 v7, v1, 7, s22')
        a(f'v_cmp_gt_u32 vcc, {R2}, v1')
        a('v_cndmask_b32 v7, v74, v7, vcc')
        if w == 0: a('v_mov_b32 v6, v2')
        else:
            a('v_min_u32 v65, 11, v73')
            a('v_mad_u32_u24 v65, v72, 12, v65')
            a('v_lshlrev_b32 v6, 4, v65')
            a('v_add_u32 v6, 1024, v6')
        a('v_lshl_add_u32 v64, v66, 2, v64')
        a('v_and_b32 v65, 2, v72')
        a('v_add_u32 v64, v64, v65')
        a(f's_mul_i32 s22, s17, {12 if w else 16}')
        if w: a('s_add_u32 s22, s22, 256')
        a('v_add_u32 v75, s22, v73')
        a('v_lshrrev_b32 v68, 4, v75')
        a('v_lshlrev_b32 v68, 8, v68')
        a('v_bfe_u32 v69, v75, 1, 1')
        a('v_lshl_add_u32 v68, v69, 7, v68')
        a('v_lshl_add_u32 v68, v64, 4, v68')
        a('v_and_b32 v69, 12, v75')
        a('v_add_u32 v1, v68, v69')
        if w == 1:
            a('v_cmp_gt_u32 vcc, 12, v73')
            a('v_cndmask_b32 v1, v74, v1, vcc')
        a(f's_mul_i32 s22, s17, {VO_SV}')
        a(f's_add_u32 s25, s22, {VO_OFF}')
        a(f's_and_b32 s27, s17, {PROT}')
        for j_ in range(4):
            a(f's_xor_b32 s22, s27, {j_}')
            a(f's_mul_i32 s{80+j_}, s22, 7168')
            a('s_lshl_b32 s22, s22, 11')
            a(f's_add_u32 s{76+j_}, s22, {PX}')
        a('v_mov_b32 v162, -1')
        a('s_mov_b32 s38, 0x40000000')
        a(f'v_add_u32 v0, {WL + w*TILE_B}, v2')
    else:
        a('v_and_b32 v119, 15, v1')
        a(f's_and_b32 s22, s17, {R2-1}')
        a('s_lshl_b32 s22, s22, 7')
        a(f's_add_u32 s22, s22, {FLG2 + 16*128}')
        a('v_lshl_add_u32 v119, v119, 2, s22')
        a('s_lshl_b32 s22, s17, 2')
        a(f's_add_u32 s22, s22, {FLG2}')
        a('v_lshl_add_u32 v118, v1, 7, s22')
        a(f'v_cmp_gt_u32 vcc, {R2}, v1')
        a('v_cndmask_b32 v118, v74, v118, vcc')
        a('s_lshl_b32 s35, s17, 7')
        a(f's_add_u32 s35, s35, {CNT_OFF + VOC}')
        a('v_min_u32 v116, 13, v1')
        a('s_mul_i32 s22, s17, 14')
        a('v_add_u32 v116, s22, v116')
        a('v_lshlrev_b32 v116, 7, v116')
    a(f's_mul_i32 s31, s17, {CUW_B}')
    a(f's_add_u32 s31, s31, {WF_B + 7*w*TILE_B}')
    if FUSE:
        r_wait(a, f'ch_wr{4+w}', D_R2 if w >= 2 else D_R1)
        b_wait(a, f'ch_ww{4+w}', w)
        evlog(a, 9002)
    units = [(ti * TILE_B + ks * UNIT, vwreg(w, ti, ks)) for ti in range(6 if fin else 7) for ks in range(7)]
    load_units(a, units, 's31', fl=WFL())
    if fin:
        for f in range(14):
            if f % 4 == 0:
                a(f's_mov_b32 m0, {WL + w*TILE_B + f*1024}')
                a(f's_add_u32 s22, s31, {6*TILE_B + f*1024}')
            a(f'buffer_load_dwordx4 v2, {SRD}, s22 offen offset:{(f & 3)*1024} {WFL()} lds')
    if w >= 2: vo_wait0(a, f'ch_vw{w}')
    a('s_mov_b32 s28, s35')
    if w == 3:
        a(f's_mov_b32 s39, {XF_OFF + XSEG_B}')
        a(f'buffer_load_dword v100, v116, {SRD}, s39 offen sc1')
        a(f's_mov_b32 s39, {XF_OFF + 2*XSEG_B}')

MERGE = 0
RB1_DELAY = 0
def wg_atomic(a, P, dst):
    a('v_mov_b32 v6, 160000')
    a('s_barrier')
    a('s_cmp_lg_u32 s16, 0')
    a(f's_cbranch_scc1 {P}1')
    a('s_mov_b64 exec, 1')
    a(f'buffer_atomic_add v4, v5, {DBG}, 0 offen sc0')
    a('s_waitcnt vmcnt(0)')
    a('ds_write_b32 v6, v4')
    a('s_waitcnt lgkmcnt(0)')
    a('s_mov_b64 exec, -1')
    a.label(f'{P}1')
    a('s_barrier')
    a('ds_read_b32 v4, v6')
    a('s_waitcnt lgkmcnt(0)')
    a(f'v_readfirstlane_b32 {dst}, v4')

def staff_check(a, okl, mode):
    a('s_mov_b32 s30, 0')
    a('v_mov_b32 v36, 0')
    a.label('ch_chk')
    a(f'buffer_load_dword v37, v36, {DBG}, 0 offen sc1')
    a('s_waitcnt vmcnt(0)')
    a('v_readfirstlane_b32 s22, v37')
    a('s_and_b32 s22, s22, 0xffff')
    a('s_cmp_ge_u32 s22, 32')
    a('s_cbranch_scc1 ch_go_end')
    a('s_sleep 16')
    a('s_add_u32 s30, s30, 1')
    a('s_cmp_lt_u32 s30, 64')
    a('s_cbranch_scc1 ch_chk')
    a.label('ch_go_end')
    a('v_mov_b32 v6, 160016')
    a('v_mov_b32 v4, s22')
    a('s_cmp_lg_u32 s16, 0')
    a('s_cbranch_scc1 ch_dec')
    a('ds_write_b32 v6, v4')
    a('s_waitcnt lgkmcnt(0)')
    a.label('ch_dec')
    a('s_barrier')
    a('ds_read_b32 v4, v6')
    a('s_waitcnt lgkmcnt(0)')
    a('v_readfirstlane_b32 s22, v4')
    a('s_cmp_ge_u32 s22, 32')
    a(f's_cbranch_scc1 {okl}')
    a('v_mov_b32 v4, 0x10001')
    a(f's_mov_b32 s18, {mode}')
    a('s_branch ch_take')

D_CLAIM = 4; D_CNT = 12; D_REP = 20; D_R1 = 128; D_R2 = 132; NINIT = 4; UM = 0x3870
FUSE = 1
REP_WAIT = 60
def wg_signal(a, off, inc=1):
    lb = a.newlabel('sig')
    a('s_barrier')
    a('s_cmp_lg_u32 s16, 0')
    a(f's_cbranch_scc1 {lb}')
    a(f'v_mov_b32 v60, {inc}')
    a(f'v_mov_b32 v61, {off}')
    a('s_mov_b64 exec, 1')
    a(f'buffer_atomic_add v60, v61, {DBG}, 0 offen')
    a('s_mov_b64 exec, -1')
    a.label(lb)

def poll(a, P, loads, cond, sleep=2, lim=SPIN_LIMIT, fail='cA_abort'):
    a('s_mov_b32 s30, 0')
    a.label(P)
    for x in loads: a(x)
    a('s_waitcnt vmcnt(0)')
    for x in cond: a(x)
    a(f's_cbranch_vccz {P}_ok')
    a(f's_sleep {sleep}')
    a('s_add_u32 s30, s30, 1')
    a(f's_cmp_lt_u32 s30, {lim}')
    a(f's_cbranch_scc1 {P}')
    a(f's_branch {fail}')
    a.label(P + '_ok')

def uniform(a, sreg, lds=160032):
    lb = a.newlabel('uni')
    a(f'v_mov_b32 v6, {lds}')
    a(f'v_mov_b32 v7, {sreg}')
    a('s_barrier')
    a('s_cmp_lg_u32 s16, 0')
    a(f's_cbranch_scc1 {lb}')
    a('ds_write_b32 v6, v7')
    a('s_waitcnt lgkmcnt(0)')
    a.label(lb)
    a('s_barrier')
    a('ds_read_b32 v7, v6')
    a('s_waitcnt lgkmcnt(0)')
    a(f'v_readfirstlane_b32 {sreg}, v7')

def lanes(a):
    a('v_and_b32 v1, 63, v0')
    a('v_lshlrev_b32 v2, 4, v1')
    a('v_lshrrev_b32 v3, 4, v1')
    a('v_and_b32 v4, 15, v1')

def mem0_load(a):
    from prep import srd
    srd(a, 68, 50, 51, 8 * 448 * 2)
    a('v_lshrrev_b32 v6, 3, v0')
    a('v_min_u32 v6, 27, v6')
    a('v_and_b32 v7, 7, v0')
    a('v_mul_u32_u24 v9, 896, v7')
    a('v_lshl_add_u32 v9, v6, 5, v9')
    a('buffer_load_dwordx4 v[176:179], v9, s[68:71], 0 offen')
    a('buffer_load_dwordx4 v[180:183], v9, s[68:71], 0 offen offset:16')

def init_job(a, P, k_s, mid=None, nmid=0):
    a('v_mov_b32 v10, 0x40000000')
    a('v_mov_b32 v5, 1')
    for r in range(148, 152): a(f'v_mov_b32 v{r}, 0')
    for r in range(152, 156): a(f'v_mov_b32 v{r}, -1')
    a('v_lshlrev_b32 v8, 4, v0')
    a(f's_cmp_lg_u32 {k_s}, 0')
    a(f's_cbranch_scc1 {P}_1')
    a(f's_mov_b32 s23, {PFL}')
    a(f'buffer_store_dwordx4 v[148:151], v8, {SRD}, s23 offen sc1')
    a(f's_mov_b32 s23, {PFL + 4096}')
    a(f'buffer_store_dwordx4 v[148:151], v8, {SRD}, s23 offen sc1')
    a('s_waitcnt vmcnt(0)')
    a('s_barrier')
    a(f'buffer_store_dword v5, v252, {DBG}, 0 offen offset:{D_R1} sc1')
    a.label(f'{P}_1')
    mem0_load(a)
    a(f's_lshl_b32 s20, {k_s}, 12')
    a('v_add_u32 v8, s20, v8')
    for base, n, r in ((CNT_OFF, AC, 148), (EXCH_OFF + 2 * EXCH_B, 48 * 128, 148), (EXCH_OFF + 7 * KB, 2 * EXCH_B - 7 * KB, 152), (MEMG_OFF + 7 * KB, 63 * 7 * KB, 152)):
        RB = 4096 * NINIT
        full, rem = divmod(n, RB)
        a(f's_mov_b32 s23, {base}')
        if full:
            lb = a.newlabel(P + 'lp')
            a.label(lb)
            a(f'buffer_store_dwordx4 v[{r}:{r+3}], v8, {SRD}, s23 offen sc1')
            a(f's_add_u32 s23, s23, {RB}')
            a(f's_cmp_lt_u32 s23, {base + full * RB}')
            a(f's_cbranch_scc1 {lb}')
        if rem:
            a(f'v_cmp_gt_u32 vcc, {rem}, v8')
            a('v_cndmask_b32 v9, v10, v8, vcc')
            a(f'buffer_store_dwordx4 v[{r}:{r+3}], v9, {SRD}, s23 offen sc1')
    a(f's_cmp_lg_u32 {k_s}, 1')
    a(f's_cbranch_scc1 {P}_nm')
    a('v_lshrrev_b32 v6, 3, v0')
    a('v_and_b32 v7, 7, v0')
    a('v_lshlrev_b32 v8, 8, v6')
    a('v_lshl_add_u32 v8, v7, 4, v8')
    a('v_cmp_gt_u32 vcc, 28, v6')
    a('v_cndmask_b32 v8, v10, v8, vcc')
    a('s_waitcnt vmcnt(4)')
    for j in range(4):
        a(f'v_mov_b32 v{184+j}, v{176+2*j}')
        a(f'v_mov_b32 v{188+j}, v{177+2*j}')
    for base in (EXCH_OFF, MEMG_OFF):
        a(f's_mov_b32 s23, {base}')
        a(f'buffer_store_dwordx4 v[184:187], v8, {SRD}, s23 offen sc1')
        a(f'buffer_store_dwordx4 v[188:191], v8, {SRD}, s23 offen offset:128 sc1')
    a.label(f'{P}_nm')
    a('s_waitcnt vmcnt(0)')
    a('s_barrier')
    a('s_cmp_lg_u32 s16, 0')
    a(f's_cbranch_scc1 {P}_e')
    a('v_mov_b32 v6, 1')
    a('s_mov_b64 exec, 1')
    a(f'buffer_atomic_add v6, v252, {DBG}, 0 offen offset:{D_CNT} sc0')
    a('s_waitcnt vmcnt(0)')
    a('v_readfirstlane_b32 s20, v6')
    a(f's_cmp_lg_u32 s20, {NINIT-1}')
    a(f's_cbranch_scc1 {P}_e0')
    a(f'buffer_store_dword v5, v252, {DBG}, 0 offen offset:{D_R2} sc1')
    a('s_mov_b64 exec, 0xff')
    a('v_lshlrev_b32 v6, 7, v0')
    a(f's_mov_b32 s20, {PFL + 4096}')
    a(f'buffer_store_dword v5, v6, {SRD}, s20 offen offset:4 sc1')
    a.label(f'{P}_e0')
    a('s_mov_b64 exec, -1')
    a.label(f'{P}_e')

FLAG_AT = 4
FLAG2_AT = 16
WP_SLEEP = 8
CT2 = 1
XPRE = 1
GST = 0
TA_LATE = 0
def worker_prep(a):
    import prep2
    ldi = [f'buffer_load_dwordx2 v[254:255], v252, {DBG}, 0 offen offset:{D_R1} sc1']
    def flag(P, mat):
        a('s_barrier')
        a('s_cmp_lg_u32 s16, 0')
        a(f's_cbranch_scc1 {P}_f')
        a('v_readfirstlane_b32 s20, v254')
        a('s_cmp_eq_u32 s20, 1')
        a(f's_cbranch_scc1 {P}_w_ok')
        poll(a, P + '_w', [f'buffer_load_dword v254, off, {DBG}, 0 offset:{D_R1} sc1'], ['v_cmp_ne_u32 vcc, 1, v254'], sleep=8, lim=16, fail=P + '_f')
        a('s_lshl_b32 s20, s17, 7')
        a(f's_add_u32 s20, s20, {PFL + (2048 if mat == "A" else 0)}')
        a('s_lshl_b32 s21, 1, s19')
        a('v_mov_b32 v248, s21')
        a('s_mov_b64 exec, 1')
        a(f'buffer_atomic_or v248, v252, {SRD}, s20 offen sc0')
        a('s_mov_b64 exec, -1')
        a(f's_mov_b32 s{38 if mat == "A" else 37}, s21')
        a.label(P + '_f')
    def flag2(P, mat):
        sr = f's{38 if mat == "A" else 37}'
        full = UM if mat == 'A' else 0x3fff
        a('v_readfirstlane_b32 s20, v248')
        a(f's_and_b32 s20, s20, {full}')
        a(f's_xor_b32 s20, s20, {sr}')
        a(f's_cmp_lg_u32 s20, {full}')
        a(f's_cselect_b32 s20, 0, {sr}')
        a(f's_mov_b32 {sr}, 0')
        a('s_cmp_eq_u32 s20, 0')
        a(f's_cbranch_scc1 {P}')
        a(f's_lshl_b32 s21, {0x10000 if mat == "A" else 1}, s17')
        a('v_mov_b32 v248, s21')
        a(f's_mov_b32 s20, {PFL + 4096}')
        a('v_lshlrev_b32 v247, 7, v0')
        a('s_mov_b64 exec, 0xff')
        a(f'buffer_atomic_or v248, v247, {SRD}, s20 offen')
        a('s_mov_b64 exec, -1')
        a.label(P)
    ldr = ldi + [f'buffer_load_dword v253, v252, {DBG}, 0 offen sc1']
    prep2.pst(a)
    a(f's_sub_u32 s35, s3, {XCD_SEL + 1}')
    a('s_and_b32 s35, s35, 7')
    a('s_lshr_b32 s36, s2, 3')
    a('s_lshl_b32 s33, s35, 5')
    a('s_add_u32 s33, s33, s36')
    a('s_mov_b32 s97, 0')
    a('s_mov_b32 s96, 0')
    a('s_mov_b32 s37, 0')
    a('s_mov_b32 s38, 0')
    a('s_mov_b32 s39, 0xffff0000')
    a('s_mov_b32 s101, -1')
    lanes(a)
    a('s_cmp_ge_u32 s33, 224')
    a('s_cbranch_scc1 wp_all')
    prep2.touch_rows(a, 'B', 's33', 253)
    prep2.consts(a)
    a.label('wp_B')
    prep2.decode(a, 's33')
    prep2.xunit_load(a, 's33')
    prep2.issue(a, 'B', lambda n: (a('s_mov_b32 s55, s27'), prep2.setup(a, 'AB'), a('s_mov_b32 s27, s55')), 0)
    a('s_cmp_lt_u32 s18, 4')
    a('s_cselect_b32 s34, 1, s97')
    prep2.touch_rows(a, 'A', 's33', 253)
    prep2.touch_cols(a, 253, 's34')
    prep2.compute(a, 'wpb', 'B', 2, pre_epi=ldr, early=prep2.xunit_store())
    evlog(a, 9010)
    a('s_cmp_lg_u32 s34, 0')
    a('s_cbranch_scc1 wp_B2')
    def hook(n):
        if n == 8 + FLAG_AT:
            a(f's_waitcnt vmcnt({n})')
            flag('wp_f1', 'B')
            prep2.pst(a)
        else:
            a(f's_waitcnt vmcnt({n - 8 - FLAG_AT})')
            flag2('wp_g1', 'B')
    prep2.issue(a, 'A', hook, (FLAG_AT, FLAG2_AT))
    a('s_branch wp_A')
    a.label('wp_B2')
    if CT2:
        a('v_lshlrev_b32 v6, 7, v1')
        code_touch_at(a, 'wp_fin', 6, 7)
        code_touch_at(a, 'wg_vo', 6, 7)
    a(f's_waitcnt vmcnt({2 * CT2})')
    flag('wp_f2', 'B')
    prep2.pst(a, 4)
    prep2.pst_flush(a)
    if XPRE:
        a('s_cmp_eq_u32 s97, 0')
        a('s_cselect_b32 s39, -4, s39')
    a('s_branch wp_fin')
    a.label('wp_A0')
    prep2.issue(a, 'A')
    prep2.setup(a, 'A')
    a.label('wp_A')
    prep2.compute(a, 'wpa', 'A', 0, pre_epi=ldr)
    a('s_waitcnt vmcnt(0)')
    flag('wp_f3', 'A')
    prep2.pst(a)
    prep2.pst_flush(a)
    evlog(a, 9011)
    a('s_cmp_eq_u32 s97, 3')
    a('s_cbranch_scc1 wk_adone')
    a.label('wp_fin')
    a('s_cmp_lg_u32 s97, 0')
    a('s_cbranch_scc1 wp_all')
    a('v_readfirstlane_b32 s20, v254')
    a('v_readfirstlane_b32 s21, v253')
    a('s_and_b32 s21, s21, 0xffe0')
    a('s_cselect_b32 s96, s20, 0')
    a('s_cmp_eq_u32 s96, 0')
    a('s_cbranch_scc1 wp_all')
    a('v_mov_b32 v250, 1')
    a(f's_mov_b32 s20, {CNT_OFF + JOBC}')
    a('s_mov_b64 exec, 1')
    a(f'buffer_atomic_add v250, v252, {SRD}, s20 offen sc0')
    a('s_mov_b64 exec, -1')
    a.label('wp_all')
    a('v_mov_b32 v252, 0x40000000')
    a('v_cmp_eq_u32 vcc, 0, v0')
    a('v_cndmask_b32 v252, v252, v0, vcc')
    a('s_mov_b32 s34, 0')
    a('s_cmp_lg_u32 s16, 0')
    a('s_cbranch_scc1 wp_w2')
    a('s_getreg_b32 s24, hwreg(HW_REG_XCC_ID)')
    a(f's_sub_u32 s24, s24, {XCD_SEL}')
    a('s_and_b32 s24, s24, 7')
    a('s_lshl_b32 s24, s24, 7')
    a(f's_add_u32 s24, s24, {PFL + 4096}')
    a('s_cmp_lg_u32 s96, 0')
    a('s_cbranch_scc1 wp_v0')
    a('s_waitcnt vmcnt(0)')
    a.label('wp_v0')
    a('s_cmp_eq_u32 s97, 0')
    a('s_cbranch_scc1 wp_v1')
    a('s_waitcnt vmcnt(0)')
    a.label('wp_v1')
    a('s_waitcnt vmcnt(1)')
    flag2('wp_g3', 'A')
    flag2('wp_g2', 'B')
    a('s_cmp_lg_u32 s96, 0')
    a('s_cbranch_scc1 wp_v_ok')
    poll(a, 'wp_v', [f'buffer_load_dwordx2 v[64:65], off, {DBG}, 0 sc1', f'buffer_load_dword v66, off, {DBG}, 0 offset:{D_R1} sc1'],
         ['v_and_b32 v68, 0xffe0, v64', 'v_min_u32 v68, v68, v66', 'v_cmp_ne_u32 vcc, 1, v68'], sleep=16, lim=REP_WAIT // 2, fail='wp_w1')
    a('v_mov_b32 v64, 32')
    a('s_cmp_eq_u32 s97, 2')
    a(f's_cselect_b32 s31, 1, {REP_WAIT}')
    poll(a, 'wp_w', [f'buffer_load_dwordx2 v[66:67], off, {SRD}, s24 sc1'], ['v_or_b32 v66, s39, v66', 'v_add_u32 v66, v66, v67', 'v_cmp_ne_u32 vcc, 0, v66'], sleep=WP_SLEEP, lim='s31', fail='wp_w1')
    a('s_branch wp_w2')
    a.label('wp_w1')
    a('v_readfirstlane_b32 s20, v64')
    a('v_readfirstlane_b32 s21, v65')
    a('s_and_b32 s20, s20, 0xffff')
    a('s_cmp_lt_u32 s20, 32')
    a('s_cselect_b32 s34, 2, 1')
    a('s_add_u32 s32, s32, 1')
    a('s_cmp_lt_u32 s32, 4000')
    a('s_cselect_b32 s34, s34, 3')
    a.label('wp_w2')
    uniform(a, 's34')
    a('s_cmp_lg_u32 s34, 0')
    a('s_cbranch_scc1 wp_bad')
    a('s_cmp_lg_u32 s39, -4')
    a('s_cbranch_scc1 wp_done')
    import gemm
    a('s_mov_b32 s101, 0')
    gemm.xbase(a, 's101')
    gemm.xload(a, 'sc1')
    a('s_mov_b32 s39, 0xffff0000')
    a('s_branch wp_all')
    a.label('wp_bad')
    a('s_and_b32 s39, s39, 0xffff0000')
    a('s_mov_b32 s97, 1')
    a('s_cmp_eq_u32 s34, 1')
    a('s_cbranch_scc1 wp_rep')
    a('s_cmp_eq_u32 s34, 3')
    a('s_cbranch_scc1 cA_abort')
    a('s_load_dwordx8 s[40:47], s[0:1], 72')
    a('s_load_dwordx4 s[48:51], s[0:1], 56')
    a('s_waitcnt lgkmcnt(0)')
    a('v_mov_b32 v4, 0x10001')
    a('s_mov_b32 s18, 1')
    a('s_branch ch_take')
    a.label('wp_rep')
    a('s_mov_b32 s101, -1')
    a('s_load_dwordx8 s[40:47], s[0:1], 72')
    a('s_load_dwordx4 s[48:51], s[0:1], 56')
    a('s_waitcnt vmcnt(0) lgkmcnt(0)')
    a('v_mov_b32 v4, 1')
    a(f'v_mov_b32 v5, {D_REP}')
    wg_atomic(a, 'wp_el', 's33')
    lanes(a)
    prep2.consts(a)
    a('s_and_b32 s33, s33, 511')
    a('s_and_b32 s20, s33, 255')
    a('s_cmp_ge_u32 s20, 224')
    a('s_cselect_b32 s97, 1, 2')
    a('s_cbranch_scc1 wp_all')
    prep2.decode(a, 's20')
    a('s_lshl_b32 s20, s17, 7')
    a('s_lshr_b32 s21, s33, 8')
    a('s_lshl_b32 s21, s21, 11')
    a('s_add_u32 s20, s20, s21')
    a(f's_add_u32 s20, s20, {PFL}')
    a(f'buffer_load_dword v5, off, {SRD}, s20 sc1')
    a('s_waitcnt vmcnt(0)')
    a('v_readfirstlane_b32 s34, v5')
    uniform(a, 's34')
    a('s_cmp_lt_u32 s33, 256')
    a(f's_cselect_b32 s20, 0, {0x3fff ^ UM}')
    a('s_or_b32 s34, s34, s20')
    a('s_bitcmp1_b32 s34, s19')
    a('s_cbranch_scc1 wp_rep')
    a('s_barrier')
    a('s_cmp_lt_u32 s33, 256')
    a('s_cbranch_scc1 wp_B')
    a('s_branch wp_A0')
    a.label('wp_done')

JOBS = None
NOS4D = 0
NOXT = 0
VPROBE = -1
MG_MODE = 2
MG_SW = 58
FP1 = 0
FP2 = 0
F2_PRIO = 1
B3_AT = 10
F1_W = 1
ZV = 3
ZX = 8
F1_POS = 5
STLB = 1
ENC = 0
EXIT_WB = 0
EARLY_A = 0
TA_AT = 32
X_W2 = 0
X_SLEEP = 0
NOVO = 0
PROT = 0
SELF_TOUCH = 1
def worker_all(a):
    import s4d, gemm, tok, t2srv, prep2
    JS = SRD
    JO = CNT_OFF + JOBC
    LD = 'sc1' if FUSE else ''
    N0 = 224 if FUSE else 0
    NJ = 1264
    tok.PEEK = JS
    if FUSE: worker_prep(a)
    def ask():
        lb = a.newlabel('ask')
        a('s_cmp_lg_u32 s16, 0')
        a(f's_cbranch_scc1 {lb}')
        a('v_mov_b32 v250, 1')
        a(f'v_mov_b32 v251, {JO}')
        a('s_mov_b64 exec, 1')
        a(f'buffer_atomic_add v250, v251, {JS}, 0 offen sc0')
        a('s_mov_b64 exec, -1')
        a.label(lb)
    if FUSE:
        a('s_mov_b32 s97, s39')
        a('s_cmp_lg_u32 s96, 0')
        a('s_cbranch_scc1 wk_next')
    else: a('s_mov_b32 s96, 0')
    ask()
    a('s_branch wk_next')
    a.label('wk_loop')
    a('s_waitcnt vmcnt(0) lgkmcnt(0)')
    if not FUSE:
        a('s_cmp_eq_u32 s96, 1')
        a('s_cbranch_scc1 wk_ask')
        a('s_mov_b32 s96, 1')
        staff_check(a, 'wk_ask', 0)
    a.label('wk_ask')
    a('v_readfirstlane_b32 s22, v250')
    a(f's_cmp_ge_u32 s22, {NJ}')
    a('s_cbranch_scc1 wk_next')
    ask()
    a.label('wk_next')
    evlog(a, 9005)
    a('v_mov_b32 v6, 160000')
    a('s_waitcnt vmcnt(0)')
    a('s_barrier')
    a('s_cmp_lg_u32 s16, 0')
    a('s_cbranch_scc1 wk_n1')
    a('s_mov_b64 exec, 1')
    a('ds_write_b32 v6, v250')
    a('s_mov_b64 exec, -1')
    a('s_waitcnt lgkmcnt(0)')
    a.label('wk_n1')
    a('s_barrier')
    a('ds_read_b32 v4, v6')
    a('s_waitcnt lgkmcnt(0)')
    a('v_readfirstlane_b32 s3, v4')
    evlog(a, 's3')
    a(f's_cmp_ge_u32 s3, {NJ}')
    a('s_cbranch_scc1 wk_done')
    a('v_mov_b32 v250, 0')
    a(f'v_mov_b32 v251, {JO}')
    lanes(a)
    if FUSE:
        a('s_cmp_lt_u32 s3, 112')
        a('s_cbranch_scc1 wk_n2')
        a('s_cmp_eq_u32 s97, 0')
        a('s_cbranch_scc1 wk_n2')
        evlog(a, 9021)
        a('v_mov_b32 v250, s3')
        for x in ('s96, 1', 's97, 1', 's39, 0', 's37, 0', 's38, 0', 's32, 0'): a('s_mov_b32 ' + x)
        a('s_branch wp_all')
        a.label('wk_n2')
    a('s_cmp_ge_u32 s3, 752')
    a('s_cbranch_scc1 wk_tok')
    a('s_cmp_ge_u32 s3, 640')
    a('s_cbranch_scc1 wk_s4d')
    a('s_cmp_ge_u32 s3, 448')
    a('s_cbranch_scc1 wk_full')
    a('s_cmp_ge_u32 s3, 320')
    a('s_cbranch_scc1 wk_adef')
    a('s_cmp_ge_u32 s3, 288')
    a('s_cbranch_scc1 wk_srv')
    a('s_and_b32 s17, s3, 15')
    a('s_add_u32 s17, s17, 16')
    a('s_cmp_ge_u32 s3, 224')
    a('s_cbranch_scc1 wk_half')
    a('s_cmp_ge_u32 s3, 112')
    a('s_cselect_b32 s18, 1, 0')
    a('s_cselect_b32 s20, 112, 0')
    a('s_sub_u32 s34, s3, s20')
    a('s_lshr_b32 s34, s34, 4')
    a('s_lshl_b32 s34, s34, 1')
    a('s_add_u32 s35, s34, 2')
    a('s_branch wk_gemm')
    a.label('wk_adef')
    a('s_mov_b32 s101, -1')
    a('s_load_dwordx8 s[40:47], s[0:1], 72')
    a('s_sub_u32 s20, s3, 320')
    a('s_lshr_b32 s33, s20, 2')
    a('s_mul_i32 s33, s33, 7')
    a('s_and_b32 s20, s20, 3')
    a('s_add_u32 s33, s33, s20')
    a('s_mov_b32 s97, 3')
    a('v_mov_b32 v252, 0x40000000')
    a('v_cmp_eq_u32 vcc, 0, v0')
    a('v_cndmask_b32 v252, v252, v0, vcc')
    prep2.consts(a)
    prep2.decode(a, 's33')
    a('s_waitcnt lgkmcnt(0)')
    a('s_barrier')
    a('s_branch wp_A0')
    a.label('wk_adone')
    a('s_mov_b32 s97, 0')
    a('s_branch wk_loop')
    a.label('wk_half')
    a('s_sub_u32 s20, s3, 224')
    a('s_lshr_b32 s18, s20, 5')
    a('s_add_u32 s18, s18, 2')
    a('s_bitcmp1_b32 s20, 4')
    a('s_cselect_b32 s34, 7, 0')
    a('s_add_u32 s35, s34, 7')
    a('s_branch wk_gemm')
    a.label('wk_full')
    a('s_sub_u32 s20, s3, 384')
    a('s_and_b32 s17, s20, 15')
    a('s_lshr_b32 s18, s20, 4')
    a('s_mov_b32 s34, 0')
    a('s_mov_b32 s35, 14')
    a('s_cmp_lt_u32 s18, 8')
    a('s_cselect_b32 s21, 16, 0')
    a('s_add_u32 s17, s17, s21')
    a('s_and_b32 s18, s18, 7')
    a('s_cmp_ge_u32 s17, 16')
    a('s_cbranch_scc1 wk_gemm')
    a_wait(a, 'wk_aw', range(7))
    a.label('wk_gemm')
    gemm.gemm_body(a, 'wg', 's18', 's17', st='sc1', signal=True, ld=LD, ev=(lambda t: evlog(a, t)) if GST else None)
    a('s_branch wk_loop')
    a.label('wk_srv')
    a('s_and_b32 s18, s3, 15')
    a('s_lshr_b32 s19, s3, 4')
    a('s_and_b32 s19, s19, 1')
    t2srv.t2srv_body(a, 'ws', 's18', 's19', 'cA_abort', ld=LD)
    a('v_mov_b32 v250, 0')
    a('s_branch wk_loop')
    a.label('wk_s4d')
    a('s_sub_u32 s3, s3, 640')
    if not NOS4D:
        s4d.s4d_setup(a)
        s4d.s4d_item(a, 'wk', 's3')
    a('s_branch wk_loop')
    a.label('wk_tok')
    a('s_sub_u32 s3, s3, 752')
    a('s_cmp_ge_u32 s3, 512')
    a('s_cbranch_scc1 wk_done')
    a('s_lshr_b32 s17, s3, 3')
    a('s_and_b32 s18, s3, 3')
    a('s_bitcmp1_b32 s3, 2')
    a('s_cbranch_scc1 wk_toko')
    tok.tokp_body(a, 's17', 's18', ld='sc1', st='sc1', sync='wp', ldx=LD)
    a('s_branch wk_loop')
    a.label('wk_toko')
    a('s_load_dwordx2 s[36:37], s[0:1], 112')
    a('s_waitcnt lgkmcnt(0)')
    a(f's_mov_b32 s92, s36\ns_and_b32 s93, s37, 0xffff\ns_mov_b32 s94, {2048*896*2}\ns_mov_b32 s95, 0x20000')
    tok.toko_body(a, 's17', 's18', ld='sc1', sync='wo', OUT='s[92:95]')
    a('s_branch wk_loop')
    a.label('wp_abort')
    a.label('wo_abort')
    a('s_branch cA_abort')
    a.label('wk_done')
    if EXIT_WB:
        a('s_cmp_lg_u32 s16, 0')
        a('s_cbranch_scc1 ch_end')
        a('buffer_wbl2 sc1')
    evlog(a, 9020)

def gen_chain_kernel(name='main_kernel', worker=None):
    a = Asm()
    a.raw(kernel_header(name))
    a('s_cmp_ge_u32 s2, 256')
    a('s_cbranch_scc1 ch_end')
    if DIAG: a('s_memrealtime s[94:95]')
    a('s_load_dwordx2 s[4:5], s[0:1], 120')
    a('s_load_dwordx2 s[6:7], s[0:1], 128')
    a('s_load_dwordx8 s[40:47], s[0:1], 72')
    a('s_load_dwordx4 s[48:51], s[0:1], 56')
    a('s_mov_b32 s32, 0')
    a('s_getreg_b32 s3, hwreg(HW_REG_XCC_ID)')
    a('s_and_b32 s3, s3, 15')
    a(f's_cmp_lg_u32 s3, {XCD_SEL}')
    a('s_cbranch_scc1 ch_pf')
    a('s_cmp_lt_u32 s2, 224')
    a('s_cbranch_scc1 ch_npf')
    a.label('ch_pf')
    code_prefetch(a, name, 'ch_end', 150000, 60)
    a.label('ch_npf')
    a('v_lshrrev_b32 v1, 6, v0')
    a('v_readfirstlane_b32 s16, v1')
    a('s_waitcnt lgkmcnt(0)')
    a('s_mov_b32 s8, s6\ns_and_b32 s9, s7, 0xffff\ns_mov_b32 s10, 0x10000000\ns_mov_b32 s11, 0x20000')
    a('s_mov_b32 s12, s4\ns_and_b32 s13, s5, 0xffff\ns_mov_b32 s14, 256\ns_mov_b32 s15, 0x20000')
    if EVLOG:
        a('s_lshl_b32 s100, s2, 2')
        a('s_add_u32 s100, s100, s16')
        a('s_lshl_b32 s100, s100, 8')
        a(f's_add_u32 s100, s100, {EV_OFF}')
    evlog(a, 9000)
    if FUSE:
        a('v_mov_b32 v252, 0x40000000')
        a('v_cmp_eq_u32 vcc, 0, v0')
        a('v_cndmask_b32 v252, v252, v0, vcc')
    a(f's_cmp_lg_u32 s3, {XCD_SEL}')
    a('s_cbranch_scc1 ch_worker')
    import prep2
    a('s_mov_b32 s18, 0')
    a('v_mov_b32 v249, 1')
    a('s_mov_b64 exec, 1')
    a(f'buffer_atomic_add v249, v252, {DBG}, 0 offen sc0')
    a('s_mov_b64 exec, -1')
    lanes(a)
    a('s_lshr_b32 s33, s2, 3')
    prep2.touch_w(a, 's33', 32, ((42, 256),))
    a('s_waitcnt vmcnt(2)')
    a('v_readfirstlane_b32 s17, v249')
    uniform(a, 's17')
    a('s_branch ch_got')
    a.label('ch_take')
    a('v_mov_b32 v5, 0')
    wg_atomic(a, 'ch_el', 's17')
    a.label('ch_got')
    a('s_and_b32 s17, s17, 0xffff')
    a('s_cmp_lt_u32 s17, 32')
    a('s_cbranch_scc1 ch_role')
    a('s_cmp_eq_u32 s18, 0')
    a('s_cbranch_scc1 ch_worker')
    lanes(a)
    a('s_branch wp_all')
    a.label('ch_role')
    if FUSE:
        import prep2
        lanes(a)
        a('s_cmp_lt_u32 s17, 16')
        a('s_cbranch_scc1 ch_self')
        a(f's_cmp_lt_u32 s17, {32 - NINIT}')
        a('s_cbranch_scc1 ch_tch')
        a(f's_sub_u32 s33, s17, {32 - NINIT}')
        init_job(a, 'ch_ij', 's33')
        a('s_branch ch_role2')
        a.label('ch_tch')
        a('s_sub_u32 s33, s17, 16')
        if SELF_TOUCH: prep2.touch_w(a, 's33', 16 - NINIT, ((40, 448),))
        a('s_branch ch_role2')
        a.label('ch_self')
        st1 = [f'buffer_load_dword v13, off, {DBG}, 0 offset:{D_R2} sc1']
        st2 = ['v_readfirstlane_b32 s86, v13', 's_lshl_b32 s22, s17, 7', f's_add_u32 s22, s22, {PFL + 2048}', f's_mov_b32 s23, {PFL + 4096}',
               f'buffer_load_dword v13, off, {SRD}, s22 sc1', f'buffer_load_dword v5, off, {SRD}, s23 sc1', f'buffer_load_dword v9, off, {DBG}, 0 sc1']
        prep2.selfprep(a, (lambda t: evlog(a, t)) if EVLOG else None, st1, st2)
        a('v_readfirstlane_b32 s84, v13')
        a('v_readfirstlane_b32 s85, v5')
        a('s_cmp_eq_u32 s86, 1')
        a('s_cselect_b32 s84, s84, 0')
        evlog(a, 9001)
        a('v_and_b32 v10, 0xffe0, v9')
        a('v_cmp_eq_u32 vcc, 0, v10')
        a('s_cbranch_vccz ch_md_ok')
        a.label('ch_role2')
    poll(a, 'ch_md', [f'buffer_load_dword v9, off, {DBG}, 0 sc1'], ['v_and_b32 v10, 0xffe0, v9', 'v_cmp_eq_u32 vcc, 0, v10'], sleep=4, lim=SPIN_LIMIT * 4, fail='ch_end')
    a('v_readfirstlane_b32 s88, v9')
    a('s_lshr_b32 s88, s88, 16')
    lane_consts(a)
    a('s_mov_b32 s19, 0')
    a('s_mov_b32 s18, 1')
    a(f's_mov_b32 s20, {EXCH_OFF}')
    a(f's_mov_b32 s21, {EXCH_OFF + EXCH_B}')
    a(f's_mov_b32 s23, {EXCH_OFF + 4096}')
    a('s_lshr_b32 s89, s17, 4')
    a('s_lshl_b32 s89, s89, 2')
    a('s_add_u32 s89, s89, s16')
    a('s_and_b32 s17, s17, 15')
    for p in range(8):
        a(f's_cmp_eq_u32 s89, {p}')
        a(f's_cbranch_scc1 ch_init{p}')
    a('s_branch ch_end')
    for p in range(8):
        a.label(f'ch_init{p}')
        if p < 4: init_score(a, p)
        else: init_value(a, p - 4)
        a('s_waitcnt vmcnt(1) lgkmcnt(0)' if p == 7 else 's_waitcnt vmcnt(0) lgkmcnt(0)')
        evlog(a, 9003)
        if EVLOG or HDBG: a('v_mov_b32 v36, 0\nv_mov_b32 v37, 0')
        if DIAG: a('s_memtime s[90:91]')
        a('s_mov_b32 s31, 0')
        a('s_cmp_lg_u32 s88, 0')
        role = 'sc' if p < 4 else 'va'
        a(f's_cbranch_scc1 cB_{role}{p & 3}_loop')
        a(f's_branch cA_{role}{p & 3}_loop')
    for tag, st in (('cA', ''), ('cB', 'sc1')):
        for w in range(4): gen_score(a, w, st, tag)
        for w in range(4): gen_value(a, w, st, tag)
        a.label(f'{tag}_abort')
        a('v_mov_b32 v4, 0xdead')
        a('v_mov_b32 v5, 16')
        a(f'buffer_store_dword v4, v5, {DBG}, 0 offen')
        a('s_branch ch_end')
        a.label(f'{tag}_done')
        evlog(a, 9004)
        if DIAG:
            a('s_memtime s[60:61]')
            a('s_waitcnt lgkmcnt(0)')
            a('s_sub_u32 s60, s60, s90')
            a('v_mov_b32 v4, s60')
            a('s_cmp_eq_u32 s89, 3')
            a('s_cselect_b32 s22, 8, 0x1000')
            a('v_mov_b32 v5, s22')
            a(f'buffer_store_dword v4, v5, {DBG}, 0 offen')
            a('s_memrealtime s[60:61]')
            a('s_sub_u32 s86, s86, s94')
            a('s_waitcnt lgkmcnt(0)')
            a('s_sub_u32 s60, s60, s94')
            a('v_mov_b32 v6, s86')
            a('v_mov_b32 v7, s60')
            a(f'buffer_store_dwordx2 v[6:7], v5, {DBG}, 0 offen offset:16')
            a('s_cmp_eq_u32 s31, 0')
            a(f's_cbranch_scc1 {tag}_dz')
            a('s_mov_b64 exec, 1')
            for k in range(4):
                a(f's_bfe_u32 s22, s31, {(8 << 16) | (8 * k)}')
                a(f'v_mov_b32 v{4+k}, s22')
                a(f'v_mov_b32 v10, {32 + 4*k}')
                a(f'buffer_atomic_add v{4+k}, v10, {DBG}, 0 offen')
                a.nop(2)
            a('s_mov_b64 exec, -1')
            a.label(f'{tag}_dz')
        if ENC:
            a('s_cmp_lg_u32 s89, 3')
            a('s_cbranch_scc1 ch_end')
            a('s_cmp_lg_u32 s17, 5')
            a('s_cbranch_scc1 ch_end')
            a('s_add_u32 s62, s94, 20000')
            if ENC == 4:
                a('s_mov_b32 s22, 0x7000000')
                a(f'buffer_load_dword v8, off, {SRD}, s22 sc1')
                a('s_waitcnt vmcnt(0)')
                a('v_readfirstlane_b32 s62, v8')
                a('s_sub_u32 s63, s94, s62')
                a('s_min_u32 s63, s63, 5000')
                a('s_sub_u32 s62, s94, s63')
                a('s_add_u32 s62, s62, 20000')
            if ENC == 2: a('s_add_u32 s62, s62, s86')
            if ENC == 3: a('s_add_u32 s62, s62, s60')
            a.label(f'{tag}_enc')
            a('s_memrealtime s[64:65]')
            a('s_waitcnt lgkmcnt(0)')
            a('s_sub_u32 s64, s64, s62')
            a('s_cmp_lt_i32 s64, 0')
            a(f's_cbranch_scc1 {tag}_enc')
        stamp_calib(a, f'{tag}_cal')
        a('s_branch ch_end')
    a.label('ch_worker')
    worker_all(a)
    a.label('ch_end')
    a('s_endpgm')
    return a
```

```python
from asmlib import *
from layout import *
WS = 's[8:11]'
PB = 28 * KB

def xbase(a, rb_s):
    a(f's_lshl_b32 s20, {rb_s}, 4')
    a('s_lshr_b32 s21, s2, 3')
    a('s_add_u32 s21, s21, s16')
    a('s_and_b32 s21, s21, 3')
    a('s_lshl_b32 s21, s21, 2')
    a('s_add_u32 s20, s20, s21')
    a(f's_mul_i32 s21, s20, {14*KB}')
    a(f's_add_u32 s21, s21, {XF_OFF}')

def xload(a, ld):
    for f in range(56):
        if f % 4 == 0: a(f's_add_u32 s22, s21, {f*1024}')
        if f == 40: a('s_waitcnt vmcnt(40)')
        a(f'buffer_load_dwordx4 a[{4*f}:{4*f+3}], v2, {WS}, s22 offen offset:{(f & 3)*1024} {ld}')

def gemm_body(a, P, rb_s, cg_s, st='', signal=False, ld='', ev=None):
    xbase(a, rb_s)
    a(f's_mul_i32 s23, {cg_s}, {CUW_B}')
    a('s_and_b32 s22, s16, 1')
    a('s_mul_i32 s22, s22, 7168')
    a('s_add_u32 s23, s23, s22')
    a(f's_add_u32 s23, s23, {WF_A}')
    a('s_lshr_b32 s22, s16, 1')
    a(f's_mul_i32 s22, s22, {TILE_B}')
    a('s_add_u32 s23, s23, s22')
    a('s_mul_i32 s27, s16, 7168')
    a('s_lshr_b32 s28, s20, 1')
    a(f's_cmp_lt_u32 {cg_s}, 16')
    a(f's_cbranch_scc0 {P}_vo')
    for path in ('f', 'vo'):
        isF = path == 'f'
        L = lambda n: f'{P}_{path}_{n}'
        if not isF: a.label(f'{P}_vo')
        if isF: a('s_add_u32 s23, s23, s22')
        def dma(jreg, bufreg):
            if isF:
                a(f's_lshr_b32 s24, {jreg}, 1')
                a('s_lshl_b32 s24, s24, 2')
                a(f's_and_b32 s25, {jreg}, 1')
                a('s_add_u32 s24, s24, s25')
            else:
                a(f's_lshl_b32 s24, {jreg}, 1')
            a(f's_mul_i32 s24, s24, {TILE_B}')
            a('s_add_u32 s24, s24, s23')
            a(f's_add_u32 m0, {bufreg}, s27')
            for f in range(7):
                if f == 4:
                    a('s_add_u32 m0, m0, 4096')
                    a('s_add_u32 s24, s24, 4096')
                a(f'buffer_load_dwordx4 v2, {WS}, s24 offen offset:{(f & 3)*1024} {ld} lds')
        if isF:
            a('s_lshl_b32 s29, s28, 4')
            a(f's_add_u32 s29, s29, {cg_s}')
            a(f's_mul_i32 s29, s29, {GSH_B}')
            a(f's_add_u32 s29, s29, {F_OFF}')
        else:
            a(f's_sub_u32 s29, {cg_s}, 16')
            a(f's_mul_i32 s29, s29, {VO_SV}')
            a(f's_mul_i32 s24, s28, {VO_SS}')
            a('s_add_u32 s29, s29, s24')
            a(f's_add_u32 s29, s29, {VO_OFF}')
            a('v_lshlrev_b32 v6, 4, v3')
            a('v_mul_u32_u24 v7, 12, v3')
            a('v_add_u32 v7, 48, v7')
        a('s_mov_b32 s31, 0')
        dma('s34', 's31')
        a('s_sub_u32 s36, s35, 1'); a('s_add_u32 s30, s34, 1'); a('s_min_u32 s30, s30, s36'); a(f's_mov_b32 s31, {PB}')
        dma('s30', 's31')
        a('s_mov_b32 s19, s34')
        a('s_mov_b32 s32, 0')
        a(f's_mov_b32 s33, {2*PB}')
        if ev: ev(9015)
        a(f's_cmp_eq_u32 {rb_s}, s101')
        a(f's_cbranch_scc1 {L("hx")}')
        xload(a, ld)
        a.label(L('hx'))
        a('s_mov_b32 s101, -1')
        a('s_waitcnt vmcnt(0)')
        if ev: ev(9016)
        a(f's_branch {L("in")}')
        a.label(L('loop'))
        a('s_waitcnt vmcnt(11)')
        a.label(L('in'))
        a('s_barrier')
        a('s_add_u32 s30, s19, 2')
        a('s_min_u32 s30, s30, s36')
        dma('s30', 's33')
        a('v_add_u32 v5, s32, v2')
        FR = 8; NF = 8; ACC = 40
        order = [(kk, tau) for kk in range(14) for tau in range(2)]
        def rd(i):
            kk, tau = order[i]; r = FR + 4 * (i % NF)
            a(f'ds_read_b128 v[{r}:{r+3}], v5 offset:{(tau*14 + kk)*1024}')
        PF = 6
        for i in range(PF): rd(i)
        for i, (kk, tau) in enumerate(order):
            if i + PF < 28: rd(i + PF)
            a(f's_waitcnt lgkmcnt({min(PF, 27 - i)})')
            r = FR + 4 * (i % NF)
            for j in range(4):
                d = ACC + 16 * tau + 4 * j; x = (j * 14 + kk) * 4
                c = '0' if kk == 0 else f'v[{d}:{d+3}]'
                if isF: a(f'v_mfma_f32_16x16x32_bf16 v[{d}:{d+3}], v[{r}:{r+3}], a[{x}:{x+3}], {c}')
                else: a(f'v_mfma_f32_16x16x32_bf16 v[{d}:{d+3}], a[{x}:{x+3}], v[{r}:{r+3}], {c}')
        O = 72
        if isF:
            a('s_lshl_b32 s24, s19, 10')
            a('s_add_u32 s24, s24, s29')
            for j in range(4):
                o = O + 4 * j
                for tau in range(2):
                    d = ACC + 16 * tau + 4 * j
                    a(f'v_cvt_pk_bf16_f32 v{o+2*tau}, v{d}, v{d+1}')
                    a(f'v_cvt_pk_bf16_f32 v{o+2*tau+1}, v{d+2}, v{d+3}')
                a(f's_add_u32 s25, s24, {(j >> 1) * 16 * GSH_B + (j & 1) * 14 * 1024}')
                a(f'buffer_store_dwordx4 v[{o}:{o+3}], v2, {WS}, s25 offen {st}')
        else:
            a(f's_add_u32 s25, s29, {VO_SS}')
            for tau in range(2):
                a('s_lshl_b32 s24, s19, 5')
                a(f's_add_u32 s24, s24, {16*tau}')
                a('v_add_u32 v88, s24, v4')
                a('v_mul_u32_u24 v89, 2341, v88')
                a('v_lshrrev_b32 v89, 16, v89')
                a('v_mul_u32_u24 v92, 28, v89')
                a('v_sub_u32 v92, v88, v92')
                a('v_cmp_gt_u32 vcc, 16, v92')
                a('v_mul_u32_u24 v89, 84, v89')
                a('v_cndmask_b32 v92, v7, v6, vcc')
                a('v_add3_u32 v88, v88, v89, v92')
                a(f'v_lshlrev_b32 v{90+tau}, 4, v88')
                for sg in range(2):
                    o = O + 8 * tau + 4 * sg
                    d = ACC + 16 * tau + 8 * sg
                    for c in range(4): a(f'v_cvt_pk_bf16_f32 v{o+c}, v{d+c}, v{d+4+c}')
                    a(f'buffer_store_dwordx4 v[{o}:{o+3}], v{90+tau}, {WS}, {"s25" if sg else "s29"} offen {st}')
        a('s_mov_b32 s33, s32')
        a(f's_add_u32 s32, s32, {PB}')
        a(f's_cmp_eq_u32 s32, {3*PB}')
        a('s_cselect_b32 s32, 0, s32')
        a('s_add_u32 s19, s19, 1')
        a('s_cmp_lt_u32 s19, s35')
        a(f's_cbranch_scc1 {L("loop")}')
        a(f's_branch {P}_done')
    a.label(f'{P}_done')
    if ev: ev(9017)
    if signal:
        a(f's_lshl_b32 s20, {rb_s}, 4')
        a(f's_and_b32 s21, {cg_s}, 15')
        a('s_add_u32 s20, s20, s21')
        a('s_lshl_b32 s20, s20, 7')
        a(f's_cmp_lt_u32 {cg_s}, 16')
        a(f's_cselect_b32 s21, {FC}, {VOC}')
        a('s_add_u32 s20, s20, s21')
        a(f's_add_u32 s20, s20, {CNT_OFF}')
        a('s_sub_u32 s21, s35, s34')
        a('s_lshl_b32 s21, s21, 2')
        a('v_mov_b32 v5, s21')
        a('v_mov_b32 v6, 0')
        a('s_waitcnt vmcnt(0)')
        a('s_barrier')
        a('s_cmp_lg_u32 s16, 0')
        a(f's_cbranch_scc1 {P}_sg')
        a('s_mov_b64 exec, 1')
        a(f'buffer_atomic_add v5, v6, {WS}, s20 offen')
        a('s_mov_b64 exec, -1')
        a.label(f'{P}_sg')

def gen_gemm(name='gemm_kernel'):
    a = Asm(); a.raw(kernel_header(name))
    a('s_cmp_ge_u32 s2, 256')
    a('s_cbranch_scc1 gm_end')
    a('s_load_dwordx2 s[6:7], s[0:1], 128')
    a('v_lshrrev_b32 v1, 6, v0')
    a('v_readfirstlane_b32 s16, v1')
    a('v_and_b32 v1, 63, v0')
    a('v_lshlrev_b32 v2, 4, v1')
    a('v_lshrrev_b32 v3, 4, v1')
    a('v_and_b32 v4, 15, v1')
    a('s_waitcnt lgkmcnt(0)')
    a('s_mov_b32 s8, s6\ns_and_b32 s9, s7, 0xffff\ns_mov_b32 s10, 0x10000000\ns_mov_b32 s11, 0x20000')
    a('s_and_b32 s17, s2, 7')
    a('s_lshl_b32 s17, s17, 2')
    a('s_lshr_b32 s18, s2, 6')
    a('s_add_u32 s17, s17, s18')
    a('s_lshr_b32 s18, s2, 3')
    a('s_and_b32 s18, s18, 7')
    a('s_mov_b32 s34, 0\ns_mov_b32 s35, 14')
    gemm_body(a, 'gm', 's18', 's17')
    a.label('gm_end')
    a('s_endpgm')
    return a

if __name__ == '__main__':
    import sys
    a = gen_gemm()
    out = ['; @launch kernel=gemm_kernel grid=(256,1,1) block=(256,1,1) lds=86016',
           '.amdgcn_target "amdgcn-amd-amdhsa--gfx950"', '.text', a.text(), '.section .rodata,"a"', kernel_desc('gemm_kernel', 352, 128)]
    open(sys.argv[1], 'w').write('\n'.join(out) + '\n')
    print('instructions', a.count)
```

```python
from asmlib import *
from layout import *
from prep import srd, SIGMA, W_BYTES
WS = 's[8:11]'
LDFL = ''
TFL = ''
SA = 's[60:63]'; SB = 's[56:59]'
CF = 256
RF = 384

PST = 0
CT = 1
_n = [0]
def pst(a, k=None):
    if PST and k is not None: a(f's_memrealtime s[{72+2*k}:{73+2*k}]')
    elif PST:
        a(f's_memrealtime s[{72+2*_n[0]}:{73+2*_n[0]}]'); _n[0] += 1
def pst_flush(a):
    if not PST: return
    a('s_waitcnt lgkmcnt(0)')
    a('s_lshl_b32 s20, s2, 2\ns_add_u32 s20, s20, s16\ns_lshl_b32 s20, s20, 6\ns_add_u32 s20, s20, 104857600')
    a('v_mov_b32 v7, 0')
    for k in range(9):
        a(f'v_mov_b32 v8, s{72+2*k}')
        a(f'buffer_store_dword v8, v7, {WS}, s20 offen offset:{4*k}')
        a.nop(2)

def decode(a, item_s):
    a(f's_mul_i32 s17, {item_s}, 4682')
    a('s_lshr_b32 s17, s17, 16')
    a('s_mul_i32 s23, s17, 14')
    a(f's_sub_u32 s19, {item_s}, s23')
    a('s_cmp_lt_u32 s19, 7')
    a('s_cselect_b32 s18, 0, 7')
    a('s_cselect_b32 s28, 0, 8')
    a('s_sub_u32 s18, s19, s18')
    a('s_add_u32 s28, s28, s16')
    a('s_lshl_b32 s25, s16, 15')
    a('s_add_u32 s25, s25, 32768')
    a('s_lshl_b32 s26, s17, 9')
assert all((i * 4682) >> 16 == i // 14 for i in range(224))

def consts(a):
    a('v_lshrrev_b32 v5, 5, v1')
    a('v_and_b32 v6, 31, v1')
    a('v_xor_b32 v8, v6, v5')
    a('v_lshlrev_b32 v8, 4, v8')
    a('v_lshl_add_u32 v16, v5, 13, v8')
    for c in range(1, 8): a(f'v_xor_b32 v{16+c}, {c*32}, v16')
    a('s_lshl_b32 s20, s16, 6')
    a('v_xor_b32 v26, s20, v16')
    a('v_xor_b32 v27, 32, v26')

def issue(a, mat, hook=None, hook_at=0):
    if mat == 'A':
        srd(a, 60, 40, 41, W_BYTES); srd(a, 56, 42, 43, W_BYTES)
        a('s_lshl_b32 s27, s18, 2')
        a('s_add_u32 s27, s27, s16')
        a('s_lshl_b32 s27, s27, 17')
        a('s_add_u32 s27, s27, s26')
        a('s_lshl_b32 s30, s16, 13')
        for i in range(8):
            a(f's_add_u32 m0, s30, {i*1024}')
            a(f'buffer_load_dwordx4 v{26 + ((i >> 1) & 1)}, {SB}, s27 offen {LDFL} lds')
            a('s_add_u32 s27, s27, 16384')
    else:
        srd(a, 60, 44, 45, W_BYTES); srd(a, 56, 46, 47, W_BYTES)
        a('s_mul_i32 s27, s17, 229376')
        a('s_lshl_b32 s30, s18, 7')
        a('s_add_u32 s27, s27, s30')
        a(f's_mul_i32 s30, s16, {64*896}')
        a('s_add_u32 s27, s27, s30')
        a('v_lshrrev_b32 v7, 3, v1')
        a('v_and_b32 v8, 7, v1')
        a('v_and_b32 v9, 2, v7')
        a('v_xor_b32 v8, v8, v9')
        a('v_mul_u32_u24 v7, 896, v7')
        a('v_lshl_add_u32 v24, v8, 4, v7')
        a('v_xor_b32 v25, 64, v24')
        a('s_lshl_b32 s30, s16, 13')
        for i in range(8):
            a(f's_add_u32 m0, s30, {i*1024}')
            a(f'buffer_load_dwordx4 v{24 + (i & 1)}, {SB}, s27 offen {LDFL} lds')
            a(f's_add_u32 s27, s27, {8*896}')
    for p in range(2):
        a(f's_add_u32 s27, s28, {4*p}')
        a('s_min_u32 s27, s27, 13')
        a('s_lshl_b32 s27, s27, 18')
        a('s_add_u32 s27, s27, s26')
        for i in range(16):
            if hook and p * 16 + i in (hook_at if isinstance(hook_at, tuple) else (hook_at,)): hook(8 + p * 16 + i)
            a(f's_add_u32 m0, s25, {p*16384 + i*1024}')
            a(f'buffer_load_dwordx4 v{16 + 2*(i >> 2) + (i & 1)}, {SA}, s27 offen {LDFL} lds')
            a('s_add_u32 s27, s27, 16384')

TOUCH_B = 1
def touch(a, mat, dst, skip=None):
    if mat == 'B' and not TOUCH_B: return
    p = 40 if mat == 'A' else 44
    a('s_cmp_lt_u32 s19, 7')
    a(f's_cselect_b32 s64, s{p}, s{p+2}')
    a(f's_cselect_b32 s65, s{p+1}, s{p+3}')
    a('s_cselect_b32 s27, 0, 7')
    srd(a, 68, 64, 65, W_BYTES)
    a('s_sub_u32 s31, s19, s27')
    a('s_lshl_b32 s27, s31, 19')
    a('s_add_u32 s27, s27, s26')
    a('v_lshrrev_b32 v7, 2, v0')
    a('v_and_b32 v8, 3, v0')
    a('v_lshlrev_b32 v8, 7, v8')
    a('v_lshl_add_u32 v9, v7, 13, v8')
    if mat == 'B':
        a('s_mul_i32 s30, s17, 229376')
        a('s_lshl_b32 s31, s31, 15')
        a('s_add_u32 s30, s30, s31')
        a('s_cmp_lt_u32 s19, 7')
        a('s_cselect_b32 s27, s27, s30')
        a('s_cselect_b64 vcc, -1, 0')
        a('v_lshlrev_b32 v8, 7, v0')
        a('v_cndmask_b32 v9, v8, v9, vcc')
    if skip:
        a(f's_cmp_lg_u32 {skip}, 0')
        a('s_cselect_b32 s27, 0x40000000, s27')
    a(f'buffer_load_dword v{dst}, v9, s[68:71], s27 offen {TFL}')

def xunit_load(a, item_s):
    a(f's_lshl_b32 s20, {item_s}, 2')
    a('s_add_u32 s20, s20, s16')
    a('s_mul_i32 s21, s20, 9363')
    a('s_lshr_b32 s21, s21, 16')
    a('s_mul_i32 s22, s21, 7')
    a('s_sub_u32 s22, s20, s22')
    a(f's_mul_i32 s21, s21, {16*896}')
    a('s_lshl_b32 s20, s22, 7')
    a('s_add_u32 s20, s20, s21')
    a('s_lshl_b32 s22, s22, 11')
    a('s_add_u32 s52, s21, s22')
    srd(a, 68, 48, 49, 2048 * 448 * 2)
    a('v_mul_u32_u24 v7, 896, v4')
    a('v_lshl_add_u32 v7, v3, 5, v7')
    a('buffer_load_dwordx4 v[128:131], v7, s[68:71], s20 offen')
    a('buffer_load_dwordx4 v[132:135], v7, s[68:71], s20 offen offset:16')
assert all((i * 9363) >> 16 == i // 7 for i in range(896))
def xunit_store():
    o = ['v_lshlrev_b32 v144, 9, v3', 'v_lshl_add_u32 v144, v4, 4, v144', f's_add_u32 s53, s52, {XM_OFF}', f's_add_u32 s52, s52, {XF_OFF}']
    for j in range(4): o += [f'v_mov_b32 v{136+j}, v{128+2*j}', f'v_mov_b32 v{140+j}, v{129+2*j}']
    o += [f'buffer_store_dwordx4 v[128:131], v144, {WS}, s52 offen sc1', f'buffer_store_dwordx4 v[132:135], v144, {WS}, s52 offen offset:256 sc1',
          f'buffer_store_dwordx4 v[136:139], v2, {WS}, s53 offen sc1', f'buffer_store_dwordx4 v[140:143], v2, {WS}, s53 offen offset:1024 sc1']
    return o

def setup(a, mats):
    a('v_lshrrev_b32 v7, 2, v4')
    a('v_lshlrev_b32 v11, 4, v7')
    a('v_lshlrev_b32 v7, 3, v7')
    a('v_and_b32 v8, 3, v4')
    a('v_add_u32 v7, v7, v8')
    a('v_and_b32 v8, 2, v4')
    a('v_lshl_add_u32 v11, v8, 1, v11')
    a('v_and_b32 v8, 1, v4')
    a('v_add_u32 v11, v11, v8')
    for k3 in range(4):
        a(f'v_or_b32 v10, {k3*4}, v3')
        a('v_xor_b32 v10, v10, v4')
        a('v_lshlrev_b32 v10, 4, v10')
        a(f'v_lshl_add_u32 v{44+k3}, v11, 9, v10')
        a('v_lshl_add_u32 v10, v7, 9, v10')
        a(f'v_add_u32 v{32+k3}, s25, v10')
    a(f's_mul_i32 s30, s17, {CUW_B}')
    a(f's_mul_i32 s31, s18, {4*TILE_B}')
    a('s_add_u32 s30, s30, s31')
    a(f's_add_u32 s30, s30, {WF_A}')
    for q in range(4):
        a(f'v_add_u32 v{28+q}, s30, v2')
        a(f's_add_u32 s30, s30, {TILE_B}')
    a(f'v_mov_b32 v48, {SIGMA}')
    if 'B' in mats:
        a('v_lshrrev_b32 v7, 2, v4')
        a('v_lshl_add_u32 v7, v3, 3, v7')
        a('v_lshlrev_b32 v7, 7, v7')
        a('v_and_b32 v8, 3, v4')
        a('v_lshl_add_u32 v7, v8, 3, v7')
        a('v_lshrrev_b32 v8, 3, v4')
        a('v_and_b32 v9, 1, v3')
        a('v_lshl_add_u32 v8, v9, 1, v8')
        a('v_lshl_add_u32 v40, v8, 5, v7')
        a('s_mul_i32 s31, s17, 28')
        a(f's_mov_b32 s29, {CUW_B}')
        for q in range(4):
            if q: a(f'v_xor_b32 v{40+q}, {32*q}, v40')
            a('s_lshl_b32 s30, s18, 6')
            a(f's_add_u32 s30, s30, {16*q}')
            a('v_add_u32 v8, s30, v4')
            a('v_subrev_u32 v9, 256, v8')
            a('v_mul_u32_u24 v11, 171, v9')
            a('v_lshrrev_b32 v11, 11, v11')
            a('v_mul_u32_u24 v38, 12, v11')
            a('v_sub_u32 v38, v9, v38')
            a('v_add_u32 v38, 16, v38')
            a('v_lshrrev_b32 v10, 4, v8')
            a('v_cmp_gt_i32 vcc, 0, v9')
            a('v_cndmask_b32 v10, v11, v10, vcc')
            a('v_cndmask_b32 v39, v38, v4, vcc')
            a('v_add_u32 v39, s31, v39')
            a('v_lshrrev_b32 v38, 4, v39')
            a('v_and_b32 v39, 15, v39')
            a('v_mul_lo_u32 v10, v10, s29')
            a(f'v_mul_u32_u24 v38, {TILE_B}, v38')
            a('v_add_u32 v10, v10, v38')
            a('v_lshl_add_u32 v10, v3, 8, v10')
            a('v_lshl_add_u32 v10, v39, 4, v10')
            a(f'v_add_u32 v{12+q}, {WF_B}, v10')

def compute(a, P, mat, younger, pre_epi=(), early=(), nextA=None, late=(), nowait=0):
    rd = [[] for _ in range(8)]
    for q in range(4):
        for kk in range(8):
            if mat == 'A': rd[kk].append(f'ds_read_b128 {ureg(CF + (q * 8 + kk) * 4, 4)}, v{44 + (kk & 3)} offset:{(8 * (q >> 1) + 2 * (q & 1)) * 512 + (kk >> 2) * 256}')
            else: rd[kk] += [f'ds_read_b64_tr_b16 {ureg(CF + (q * 8 + kk) * 4 + 2 * hf, 2)}, v{40+q} offset:{(32*kk + 4*hf)*128}' for hf in range(2)]
    a('s_lshl_b32 s29, s28, 10')
    a('s_add_u32 s31, s29, 4096')
    a('s_cmp_lt_u32 s28, 10')
    a('s_cselect_b32 s31, s31, 0x40000000')
    pst(a)
    if not nowait: a(f's_waitcnt vmcnt({younger})')
    a('s_barrier')
    pst(a)
    for kk in range(8):
        rd[kk] += [f'ds_read_b128 {ureg(RF + (pt * 8 + kk) * 4, 4)}, v{32 + (kk & 3)} offset:{(pt >> 1)*16384 + (pt & 1)*2048 + (kk >> 2)*256}' for pt in range(4)]
    ACC = [64, 96]
    def epi(p, q):
        d = ACC[p] + 8 * q
        o = [f'v_pk_mul_f32 v[{d+r}:{d+r+1}], v[{d+r}:{d+r+1}], v[48:49] op_sel_hi:[1,0]' for r in range(0, 8, 2)] if mat == 'A' else []
        o += [f'v_cvt_pk_bf16_f32 v{d+r}, v{d+2*r}, v{d+2*r+1}' for r in range(4)]
        o.append(f'buffer_store_dwordx4 v[{d}:{d+3}], v{(28 if mat == "A" else 12)+q}, {WS}, {"s31" if p else "s29"} offen sc1')
        return o
    for x in rd[0]: a(x)
    for x in early:
        if callable(x): x()
        else: a(x)
    side = []
    dma = []
    if nextA:
        class Cap:
            def __init__(s_): s_.l = []
            def __call__(s_, x): s_.l += x.split('\n')
        c = Cap(); issue(c, 'A')
        pre = [f's_cmp_lg_u32 {nextA}, 0', f's_cselect_b32 s54, 0, {W_BYTES}']
        L_ = pre + [x.replace(f', {W_BYTES}', ', s54') for x in c.l]
        cur = []
        for x in L_:
            cur.append(x)
            if x.startswith('buffer'): dma.append(cur); cur = []
    allrd = [x for kk in range(1, 8) for x in rd[kk]]
    nrd = [len(rd[0])]
    for kk in range(1, 8): nrd.append(nrd[-1] + len(rd[kk]))
    issued = len(rd[0]); freed = False
    for kk in range(8):
        a(f's_waitcnt lgkmcnt({min(15, issued - nrd[kk])})')
        if kk == 7:
            for x in late:
                a('s_waitcnt vmcnt(0)'); x()
        if kk == 7:
            if not freed: a('s_barrier')
            for x in pre_epi: a(x)
        i = 0
        for p in range(2):
            for q in range(4):
                for tau in range(2):
                    d = ACC[p] + 8 * q + 4 * tau
                    a(f'v_mfma_f32_16x16x32_bf16 v[{d}:{d+3}], {ureg(RF + ((p * 2 + tau) * 8 + kk) * 4, 4)}, {ureg(CF + (q * 8 + kk) * 4, 4)}, ' + ('0' if kk == 0 else f'v[{d}:{d+3}]'))
                    lim = len(allrd) + len(rd[0]) if nextA else nrd[min(kk + 1, 7)]
                    for _ in range(2):
                        if issued < lim:
                            a(allrd[issued - len(rd[0])]); issued += 1
                    if nextA and issued == lim and not freed and i == 15:
                        a('s_waitcnt lgkmcnt(0)'); a('s_barrier'); freed = True
                    elif freed and dma and kk < 7:
                        for x in dma.pop(0): a(x)
                    if kk == 7:
                        if i >= 4:
                            for _ in range(2):
                                if side: a(side.pop(0))
                        if tau: side += epi(p, q)
                    i += 1
    assert not dma
    for x in side: a(x)
    pst(a)

def touch_rows(a, mat, item_s, dst):
    p = 40 if mat == 'A' else 44
    srd(a, 68, p, p + 1, W_BYTES)
    a(f's_and_b32 s20, {item_s}, 0xe0')
    a('s_mul_i32 s20, s20, 9363')
    a('s_lshr_b32 s20, s20, 16')
    a('s_lshl_b32 s20, s20, 10')
    a(f's_and_b32 s21, {item_s}, 31')
    a('s_mul_i32 s21, s21, 192')
    a('s_add_u32 s20, s20, s21')
    a('v_min_u32 v7, 191, v0')
    a('v_add_u32 v7, s20, v7')
    a('v_lshrrev_b32 v8, 11, v7')
    a('v_min_u32 v8, 15, v8')
    a('v_bfe_u32 v9, v7, 2, 9')
    a('v_lshlrev_b32 v9, 13, v9')
    a('v_lshl_add_u32 v9, v8, 9, v9')
    a('v_and_b32 v7, 3, v7')
    a('v_lshl_add_u32 v9, v7, 7, v9')
    a(f'buffer_load_dword v{dst}, v9, s[68:71], 0 offen {TFL}')

def touch_cols(a, dst, skip):
    srd(a, 68, 42, 43, W_BYTES)
    a('s_lshl_b32 s27, s18, 19')
    a('s_add_u32 s27, s27, s26')
    a(f's_cmp_lg_u32 {skip}, 0')
    a('s_cselect_b32 s27, 0x40000000, s27')
    a('v_lshrrev_b32 v7, 2, v0')
    a('v_and_b32 v8, 3, v0')
    a('v_lshlrev_b32 v8, 7, v8')
    a('v_lshl_add_u32 v9, v7, 13, v8')
    a(f'buffer_load_dword v{dst}, v9, s[68:71], s27 offen {TFL}')

def touch_w(a, k_s, n, what):
    a(f's_lshl_b32 s27, {k_s}, 2')
    a('s_add_u32 s27, s27, s16')
    a('s_lshl_b32 s27, s27, 13')
    a('v_lshlrev_b32 v12, 7, v1')
    for p, rows in what:
        srd(a, 64, p, p + 1, rows * 8192)
        a('s_mov_b32 s28, s27')
        for k in range((rows + 4 * n - 1) // (4 * n)):
            a('buffer_load_dword v13, v12, s[64:67], s28 offen')
            a(f's_add_u32 s28, s28, {4*n*8192}')

def selfprep(a, ev=None, st1=(), st2=()):
    CFV = 120; FR = 24; ACC = [56, 88]; NS = 10
    if ev: ev(9014)
    consts(a)
    srd(a, 60, 40, 41, W_BYTES); srd(a, 56, 42, 43, W_BYTES)
    a('s_lshl_b32 s26, s17, 9')
    a('s_lshl_b32 s27, s16, 19')
    a('s_add_u32 s27, s27, s26')
    a('s_lshl_b32 s25, s16, 15')
    a('s_add_u32 s25, s25, 32768')
    a('s_barrier')
    for i in range(32):
        a(f's_add_u32 m0, s25, {i*1024}')
        a(f'buffer_load_dwordx4 v{16 + 2*(i >> 3) + ((i >> 1) & 1)}, {SB}, s27 offen lds')
        a('s_add_u32 s27, s27, 16384')
    a('v_mov_b32 v14, v26')
    a('v_mov_b32 v15, v27')
    a('s_lshl_b32 s28, s16, 16')
    a('s_add_u32 s28, s28, s26')
    a('s_lshl_b32 s29, s16, 12')
    def dma(hu):
        o = []
        for i in range(4):
            o.append([f's_add_u32 m0, s29, {(hu % NS)*16384 + i*1024}', f's_add_u32 s27, s28, {hu*32*8192 + i*16384}',
                      f'buffer_load_dwordx4 v{14 + (i & 1)}, {SA}, s27 offen lds'])
        return o
    for hu in range(2):
        for g_ in dma(hu):
            for x in g_: a(x)
    a('v_lshrrev_b32 v7, 2, v4')
    a('v_lshlrev_b32 v11, 4, v7')
    a('v_lshlrev_b32 v7, 3, v7')
    a('v_and_b32 v8, 3, v4')
    a('v_add_u32 v7, v7, v8')
    a('v_and_b32 v8, 2, v4')
    a('v_lshl_add_u32 v11, v8, 1, v11')
    a('v_and_b32 v8, 1, v4')
    a('v_add_u32 v11, v11, v8')
    for k3 in range(4):
        a(f'v_or_b32 v10, {k3*4}, v3')
        a('v_xor_b32 v10, v10, v4')
        a('v_lshlrev_b32 v10, 4, v10')
        a(f'v_lshl_add_u32 v{248+k3}, v7, 9, v10')
        a(f'v_add_u32 v{252+k3}, 65536, v{248+k3}')
        a(f'v_add_u32 v{16+k3}, 131072, v{248+k3}')
        a('v_lshl_add_u32 v10, v11, 9, v10')
        a(f'v_add_u32 v{20+k3}, s25, v10')
    a(f'v_mov_b32 v12, {SIGMA}')
    a('v_lshlrev_b32 v6, 7, v1')
    if CT: code_touch(a, 6, 7)
    a(f's_waitcnt vmcnt({8 + CT})')
    if ev: ev(9013)
    for q in range(4):
        for kk in range(8):
            r = CFV + (q * 8 + kk) * 4
            a(f'ds_read_b128 v[{r}:{r+3}], v{20 + (kk & 3)} offset:{(8 * (q >> 1) + 2 * (q & 1)) * 512 + (kk >> 2) * 256}')
        a('s_waitcnt lgkmcnt(8)')
    a('s_waitcnt vmcnt(0) lgkmcnt(0)' if ev else 's_waitcnt vmcnt(4) lgkmcnt(0)')
    a('s_barrier')
    PF = 3
    for g_ in dma(2):
        for x in g_: a(x)
    def rd(hu, f):
        kk, tau = f >> 1, f & 1; sl = hu % NS; r = FR + 4 * (f & 7)
        return f'ds_read_b128 v[{r}:{r+3}], v{[248, 252, 16][sl >> 2] + (kk & 3)} offset:{(sl & 3)*16384 + tau*2048 + (kk >> 2)*256}'
    def epi(hu):
        o = []
        for q in range(4):
            d = ACC[hu & 1] + 8 * q
            o += [f'v_mul_f32 v{d+r}, v12, v{d+r}' for r in range(8)]
            o += [f'v_cvt_pk_bf16_f32 v{d+r}, v{d+2*r}, v{d+2*r+1}' for r in range(4)]
            o += [f'v_accvgpr_write_b32 a{8 * (q * 7 + (hu >> 1)) + 4 * (hu & 1) + r}, v{d+r}' for r in range(4)]
        return o
    for f in range(6): a(rd(0, f))
    side = []
    a('s_waitcnt lgkmcnt(5)')
    for hu in range(14):
        dm = dma(hu + PF) if hu + PF < 14 else []
        if CT and hu % 3 == 0: code_touch(a, 6, 7, 4096)
        if hu == 11: dm = [list(st1)]
        if hu == 13: dm = [list(st2)]
        for f in range(16):
            kk, tau = f >> 1, f & 1
            for q in range(4):
                d = ACC[hu & 1] + 8 * q + 4 * tau; r = FR + 4 * (f & 7); c = CFV + (q * 8 + kk) * 4
                a(f'v_mfma_f32_16x16x32_bf16 v[{d}:{d+3}], v[{r}:{r+3}], v[{c}:{c+3}], ' + ('0' if kk == 0 else f'v[{d}:{d+3}]'))
                nv = 1
                if q == 0:
                    if f == 10 and hu < 13:
                        a(f's_waitcnt vmcnt({4 * min(PF - 1, 12 - hu) + (1 if hu == 11 else 0)})')
                        a('s_barrier')
                    if f + 6 < 16: a(rd(hu, f + 6))
                    elif hu < 13: a(rd(hu + 1, f + 6 - 16))
                if q == 1: nv = 2
                if q == 2 and dm and f % 2 == 0:
                    for x in dm.pop(0): a(x)
                    nv = 0
                if q == 3 and not (hu == 13 and f == 15): a(f's_waitcnt lgkmcnt({min(5, 14 - f) if hu == 13 else 5})')
                if f > 0 or q == 3:
                    for _ in range(nv):
                        if side: a(side.pop(0))
        for x in side: a(x)
        side = epi(hu)
    for x in side: a(x)
    a('s_waitcnt vmcnt(0)')
    a('s_barrier')
```

```python
import sys, os
for x in sys.argv[2:]:
    if x.startswith('VOL='): os.environ['VOL'] = x[4:]
from asmlib import *
import prep, chain2
import os
HDR = open(os.path.dirname(os.path.abspath(__file__)) + '/hdr.txt').read()
def build(path):
    prep.RING = 1
    ks = [(prep.gen_prep(), 'prep_kernel', 'grid=(256,1,1) block=(256,1,1) lds=163840', (272, 256)),
          (chain2.gen_chain_kernel('main_kernel'), 'main_kernel', 'grid=(256,1,1) block=(256,1,1) lds=163840', (512, 256))]
    if chain2.FUSE: ks = ks[1:]
    if os.environ.get('TINY'):
        t = Asm(); t.raw(kernel_header('tiny_kernel'))
        t('s_memrealtime s[4:5]\ns_load_dwordx2 s[6:7], s[0:1], 128\ns_cmp_lg_u32 s2, 0\ns_cbranch_scc1 tk_end\ns_waitcnt lgkmcnt(0)')
        t('s_mov_b32 s8, s6\ns_and_b32 s9, s7, 0xffff\ns_mov_b32 s10, 0x10000000\ns_mov_b32 s11, 0x20000\ns_mov_b32 s12, 0x7000000\nv_mov_b32 v1, s4')
        t('buffer_store_dword v1, off, s[8:11], s12 sc1\ntk_end:\ns_endpgm')
        e = (t, 'tiny_kernel', 'grid=(1,1,1) block=(64,1,1) lds=0', (8, 8))
        ks = [e] + ks if os.environ['TINY'] == '1' else ks + [e]
    out = [HDR.rstrip('\n')]
    for a, n, l, _ in ks: out.append(f'; @launch kernel={n} {l}')
    out += ['.amdgcn_target "amdgcn-amd-amdhsa--gfx950"', '.text']
    for a, n, l, _ in ks: out.append(a.text())
    out.append('.section .rodata,"a"')
    for a, n, l, (v, ac) in ks: out.append(kernel_desc(n, v, ac))
    open(path, 'w').write('\n'.join(out) + '\n')
    print('instructions', sum(a.count for a, *_ in ks))
if __name__ == '__main__':
    for x in sys.argv[2:]:
        k, v = x.split('=')
        if k == 'VOL': continue
        if k in ('PST', 'TOUCH_B', 'CT'):
            import prep2; setattr(prep2, k, int(v)); continue
        if k in ('TOKD', 'NEAR', 'LONG', 'SLEEP', 'FULLPOLL'):
            import tok; setattr(tok, k, int(v)); continue
        if k == 'SRV_SLEEP':
            import t2srv; t2srv.SRV_SLEEP = int(v); continue
        if k == 'OST':
            import tok, s4d; tok.OST = v; s4d.OST = v; continue
        if k in ('LDFL', 'TFL'):
            import prep2; setattr(prep2, k, v); continue
        assert hasattr(chain2, k), k
        setattr(chain2, k, int(v))
    build(sys.argv[1])
```

```python
import re
_REG = re.compile(r'^(-?)(?:abs\()?([vas])(?:(\d+)|\[(\d+):(\d+)\])\)?$')
TRANS = ('v_exp_f32','v_log_f32','v_rcp_f32','v_rsq_f32','v_sqrt_f32','v_sin_f32','v_cos_f32','v_rcp_iflag_f32')
def regs_of(op):
    op = op.strip()
    if op == 'vcc': return {('s', 106), ('s', 107)}
    if op == 'vcc_lo': return {('s', 106)}
    if op == 'vcc_hi': return {('s', 107)}
    if op == 'exec': return {('s', 126), ('s', 127)}
    if op == 'm0': return {('s', 124)}
    m = _REG.match(op)
    if not m: return set()
    k = m.group(2)
    if m.group(3) is not None: return {(k, int(m.group(3)))}
    return {(k, i) for i in range(int(m.group(4)), int(m.group(5)) + 1)}
def split_ops(s):
    ops, depth, cur = [], 0, ''
    for ch in s:
        if ch in '[(': depth += 1
        if ch in '])': depth -= 1
        if ch == ',' and depth == 0:
            ops.append(cur.strip()); cur = ''
        else: cur += ch
    if cur.strip(): ops.append(cur.strip())
    return ops
def mfma_passes(mn):
    if '16x16x4_f32' in mn: return 8
    if '32x32x2_f32' in mn: return 16
    if '32x32' in mn: return 8
    if '16x16' in mn: return 4
    if '4x4' in mn: return 2
    raise ValueError(mn)
class Ins:
    __slots__ = ('mn','kind','w','r','rA','rC','passes','ws','dpp','sgemm','storedata')
class Asm:
    def __init__(self):
        self.lines = []; self.hist = []; self.nlabel = 0; self.count = 0
    def raw(self, s): self.lines.append(s)
    def comment(self, s): self.lines.append('  ; ' + s)
    def label(self, l):
        self.lines.append(l + ':')
    def newlabel(self, p='L'):
        self.nlabel += 1; return f'{p}_{self.nlabel}'
    def flush(self, n=None):
        need = 0; dist = 0
        for p in reversed(self.hist):
            if p.kind == 'mfma': need = max(need, self._xdl(p) - dist)
            elif p.kind in ('valu',): need = max(need, 5 - dist if any(k == 's' for k, _ in p.w) else 2 - dist)
            dist += p.ws
            if dist > 24: break
        self.nop(need)
    def nop(self, n):
        while n > 0:
            k = min(n, 16)
            self.lines.append(f'  s_nop {k-1}'); self.count += 1
            i = Ins(); i.mn = 's_nop'; i.kind = 'salu'; i.w = set(); i.r = set(); i.rA = set(); i.rC = set(); i.passes = 0; i.ws = k; i.dpp = False; i.sgemm = False; i.storedata = set()
            self.hist.append(i); n -= k
    @staticmethod
    def _xdl(p):
        if p.sgemm: return {2: 4, 4: 6, 8: 10, 16: 18}[p.passes]
        return {2: 5, 4: 8, 8: 12, 16: 20}[p.passes]
    def parse(self, s):
        s = s.split(';')[0].strip()
        parts = s.split(None, 1)
        mn = parts[0]; rest = parts[1] if len(parts) > 1 else ''
        i = Ins(); i.mn = mn; i.w = set(); i.r = set(); i.rA = set(); i.rC = set(); i.passes = 0; i.ws = 1; i.sgemm = False; i.storedata = set()
        i.dpp = ('_dpp' in mn) or ('quad_perm' in rest) or ('row_' in rest)
        ops = split_ops(rest)
        if ops:
            last = ops[-1].split()
            ops[-1] = last[0] if last else ''
            mods = ' '.join(last[1:])
        else: mods = ''
        R = [regs_of(o) for o in ops]
        if mn.startswith('v_mfma') or mn.startswith('v_smfmac'):
            i.kind = 'mfma'; i.passes = mfma_passes(mn); i.sgemm = mn.endswith('_f32') and ('x4_f32' in mn or 'x2_f32' in mn or 'x1_' in mn)
            i.w = R[0]
            if mn.startswith('v_smfmac'):
                i.rA = R[1] | R[2] | R[3]; i.rC = R[0]
            else:
                i.rA = R[1] | R[2]; i.rC = R[3]
            i.r = i.rA | i.rC
        elif mn.startswith('v_'):
            i.kind = 'valu'
            if mn.startswith('v_cmp'):
                i.w = R[0]; i.r = set().union(*R[1:])
            elif mn.startswith('v_permlane') and 'swap' in mn:
                i.w = R[0] | R[1]; i.r = R[0] | R[1]
            elif mn.startswith(('v_add_co','v_sub_co','v_addc_co','v_subb_co','v_mad_u64','v_div_scale')):
                i.w = R[0] | R[1]; i.r = set().union(*R[2:])
            else:
                i.w = R[0]; i.r = set().union(*R[1:]) if len(R) > 1 else set()
                if mn.startswith(('v_fmac','v_pk_fmac','v_dot2c','v_writelane')) or i.dpp: i.r |= R[0]
                if mn.startswith('v_cndmask') and len(ops) == 3: i.r |= regs_of('vcc')
        elif mn.startswith(('buffer_','global_','flat_')):
            i.kind = 'vmem'
            if mn.startswith(('buffer_inv','buffer_wbl2')): pass
            elif 'load' in mn and ('lds' in mods.split() or 'load_lds' in mn):
                i.r = set().union(*R) | regs_of('m0'); i.kind = 'vmem_lds'
            elif 'load' in mn:
                i.w = R[0]; i.r = set().union(*R[1:])
            elif 'atomic' in mn:
                i.r = set().union(*R)
                if 'sc0' in mods.split(): i.w = R[0] if mn.startswith('buffer') else R[0]
            else:
                i.r = set().union(*R)
                if 'x4' in mn or 'x3' in mn: i.storedata = R[0] if mn.startswith('buffer') else R[1]
        elif mn.startswith('ds_'):
            i.kind = 'ds'
            if 'read' in mn or 'permute' in mn or 'swizzle' in mn or '_rtn' in mn:
                i.w = R[0]; i.r = set().union(*R[1:])
            else: i.r = set().union(*R)
        else:
            i.kind = 'salu'
            if mn.startswith(('s_cmp','s_cbranch','s_branch','s_waitcnt','s_barrier','s_nop','s_sleep','s_setprio','s_endpgm','s_bitcmp')):
                i.r = set().union(*R) if R else set()
                if mn == 's_nop': i.ws = int(ops[0], 0) + 1
            else:
                i.w = R[0] if R else set(); i.r = set().union(*R[1:]) if len(R) > 1 else set()
                if 'saveexec' in mn: i.w |= regs_of('exec')
        return i
    def need(self, c):
        need = 0
        H = self.hist[-30:]
        n = len(H)
        for pi in range(n - 1, -1, -1):
            p = H[pi]
            req = self.req(p, c)
            if req <= 0: continue
            d = 0; lastm = (0, p.passes) if p.kind == 'mfma' else None
            prev = p
            for q in H[pi + 1:] + [c]:
                d = d + prev.ws
                if q.kind == 'mfma' and lastm is not None:
                    d = max(d, lastm[0] + lastm[1] - 1)
                if q.kind == 'mfma': lastm = (d, q.passes)
                prev = q
            need = max(need, req - (d - 1))
        return need
    def req(self, p, c):
        req = 0
        if p.kind == 'mfma':
            x = self._xdl(p)
            if c.kind == 'mfma':
                if p.w & c.rA: req = max(req, x)
                if p.w & c.rC:
                    if p.w == c.rC and p.passes == c.passes and p.sgemm == c.sgemm: req = max(req, 2 if p.passes == 2 else 0)
                    else: req = max(req, {2: 4, 4: 6, 8: 10, 16: 18}[p.passes])
                elif p.w & c.w: req = max(req, x)
            else:
                if p.w & (c.r | c.w): req = max(req, x)
                if c.kind == 'valu' and (p.rC & c.w) and not p.sgemm: req = max(req, {2: 1, 4: 3, 8: 7, 16: 15}[p.passes])
        elif p.kind == 'valu':
            vw = {x for x in p.w if x[0] != 's'}; sw = {x for x in p.w if x[0] == 's'}
            if c.kind == 'mfma' and (vw & c.r): req = max(req, 2)
            if c.kind == 'valu':
                if c.dpp and (vw & c.r): req = max(req, 2)
                if c.mn.startswith('v_permlane') and (vw & c.r): req = max(req, 2)
                if c.mn.startswith(('v_readlane','v_readfirstlane')) and (vw & c.r): req = max(req, 1)
                if p.mn.replace('_e32','').replace('_e64','') in TRANS and (vw & c.r): req = max(req, 1)
                if sw & c.r:
                    req = max(req, 4 if c.mn.startswith(('v_readlane','v_writelane')) else 2)
            if c.kind.startswith('vmem') and (sw & c.r): req = max(req, 5)
            if p.mn.replace('_e32','').replace('_e64','') in TRANS and c.kind in ('vmem','ds','mfma') and (vw & c.r): req = max(req, 2 if c.kind == 'mfma' else 1)
        elif p.kind == 'vmem':
            if p.storedata & c.w: req = max(req, 2)
        elif p.kind == 'salu':
            if c.kind == 'vmem_lds' and (('s', 124) in p.w): req = max(req, 1)
        return req
    def __call__(self, s):
        for line in s.split('\n'):
            line = line.strip()
            if not line: continue
            if line.endswith(':'): self.label(line[:-1]); continue
            c = self.parse(line)
            n = self.need(c)
            if n > 0: self.nop(n)
            self.lines.append('  ' + line); self.count += 1
            self.hist.append(c)
            if len(self.hist) > 64: self.hist = self.hist[-40:]
    def text(self): return '\n'.join(self.lines) + '\n'
def vr(b, n=1, k='v'):
    return f'{k}{b}' if n == 1 else f'{k}[{b}:{b+n-1}]'
def ureg(idx, n):
    if idx >= 256: return vr(idx - 256, n, 'a')
    assert idx + n <= 256
    return vr(idx, n, 'v')
def kernel_header(name):
    return f'.globl {name}\n.p2align 8\n.type {name},@function\n{name}:'
def kernel_desc(name, vgpr=512, accum=256, sgpr=102):
    return f""".p2align 6
.amdhsa_kernel {name}
  .amdhsa_next_free_vgpr {vgpr}
  .amdhsa_next_free_sgpr {sgpr}
  .amdhsa_accum_offset {accum}
  .amdhsa_group_segment_fixed_size 0
  .amdhsa_kernarg_size 136
  .amdhsa_user_sgpr_count 2
  .amdhsa_user_sgpr_kernarg_segment_ptr 1
  .amdhsa_system_sgpr_workgroup_id_x 1
.end_amdhsa_kernel"""

def code_prefetch(a, start, end, maxbytes, vt=10, nthreads=256):
    lbl = a.newlabel('pf_' + start)
    a.raw(f'  s_getpc_b64 s[98:99]')
    a.raw(f'{lbl}:')
    a.raw(f'  s_sub_u32 s98, s98, {lbl}-{start}')
    a.raw(f'  s_subb_u32 s99, s99, 0')
    a(f'v_lshlrev_b32 v{vt}, 7, v0')
    for k in range((maxbytes + nthreads * 128 - 1) // (nthreads * 128)):
        a.raw(f'  v_min_u32 v{vt+1}, {end}-{start}-4, v{vt}')
        a(f'global_load_dword v{vt+2}, v{vt+1}, s[98:99]')
        a(f'v_add_u32 v{vt}, {nthreads*128}, v{vt}')

def code_touch(a, vaddr, dst, ahead=0):
    a.raw('  s_getpc_b64 s[98:99]')
    if ahead:
        a.raw(f'  s_add_u32 s98, s98, {ahead}')
        a.raw('  s_addc_u32 s99, s99, 0')
    a(f'global_load_dword v{dst}, v{vaddr}, s[98:99]')

def code_touch_at(a, label, vaddr, dst):
    lb = a.newlabel('ct')
    a.raw('  s_getpc_b64 s[98:99]')
    a.raw(f'{lb}:')
    a.raw(f'  s_add_u32 s98, s98, {label}-{lb}')
    a.raw('  s_addc_u32 s99, s99, 0')
    a(f'global_load_dword v{dst}, v{vaddr}, s[98:99]')

def pos16(a, dst, c, t1, t2):
    a(f'v_bfe_u32 v{t1}, v{c}, 2, 2')
    a(f'v_and_b32 v{t2}, 1, v{c}')
    a(f'v_mul_u32_u24 v{t2}, 7, v{t2}')
    a(f'v_xor_b32 v{t1}, v{t1}, v{t2}')
    a(f'v_and_b32 v{t2}, 2, v{c}')
    a(f'v_lshl_add_u32 v{dst}, v{t2}, 2, v{t1}')
```

```python
import os
from asmlib import *
from layout import *

SRD = 's[8:11]'; DBG = 's[12:15]'
SPIN_LIMIT = 400000
NSTEPS = 64
STAMPS = 0
STAMP_STEP = 42
STEPLOG = 0
STAMP_OFF = 100 * 1024 * 1024
NST = 10
POLL_DEPTH = 5
F1_DELAY = 36
F2_POS = 3
FILL_A = 2
FILL_B = 0
DIAG = 0
CODE_PF = 1
SYNC = 1
XCD_SEL = 1
HLP_EARLY = 1
P_MOV = 2
D = 'row_mask:0xf bank_mask:0xf'
XSEG_B = 28 * KB
FLG1 = EXCH_OFF + 2 * EXCH_B
FLG2 = FLG1 + 16 * 128
RING_B = 2 * EXCH_B + 48 * 128
SC_SLEEP = 6
X_EARLY = 0
R1 = 1
R2 = 1
VO_PRE = 5
VO_EVERY = 1
B1_POS = 4
TLB_WARM = 0
WARM = 0
PCHK = 1
NOX = 0
X_POS = 12
X_EVERY = 4
XFL = 'sc1'
TAIL = 0
SC_TOUCH = 0
TOUCH_AHEAD = 1
MG_LATE = 0
P_PRE = 10
F3_POS = 5
F2_DELAY = 2
P3_SLEEP = 5
H3_DELAY = 0
H2_DELAY = 0
X_LATE = 2

def stamp(a, k):
    if STAMPS: a(f's_memtime s[{40+2*k}:{41+2*k}]')
def stamp_flush(a, path, lbl, t):
    if not STAMPS: return
    a(f's_sub_u32 s22, s19, {STAMP_STEP}')
    a('s_cmp_gt_u32 s22, 1')
    a(f's_cbranch_scc1 {lbl}')
    a('s_waitcnt lgkmcnt(0)')
    a('s_lshl_b32 s22, s22, 14')
    a('s_lshl_b32 s63, s17, 9')
    a('s_add_u32 s22, s22, s63')
    a(f's_add_u32 s22, s22, {STAMP_OFF + path * 64}')
    a(f'v_mov_b32 v{t}, 0')
    for k in range(NST):
        a(f'v_mov_b32 v{t+1}, s{40+2*k}')
        a(f'buffer_store_dword v{t+1}, v{t}, {SRD}, s22 offen offset:{4*k}')
        a.nop(1)
    a.label(lbl)
def stamp_calib(a, P):
    if not STAMPS: return
    a('s_memrealtime s[64:65]')
    a('s_waitcnt lgkmcnt(0)')
    a('s_lshr_b32 s68, s64, 10')
    a.label(P)
    a('s_memrealtime s[64:65]')
    a('s_memtime s[66:67]')
    a('s_waitcnt lgkmcnt(0)')
    a('s_lshr_b32 s69, s64, 10')
    a('s_cmp_eq_u32 s68, s69')
    a(f's_cbranch_scc1 {P}')
    a('s_lshl_b32 s22, s17, 9')
    a('s_lshl_b32 s63, s89, 6')
    a('s_add_u32 s22, s22, s63')
    a(f's_add_u32 s22, s22, {STAMP_OFF}')
    a('v_mov_b32 v8, s64\nv_mov_b32 v9, s66\nv_mov_b32 v10, 0')
    a(f'buffer_store_dwordx2 v[8:9], v10, {SRD}, s22 offen offset:56')

EVLOG = 0
EV_OFF = 101 * 1024 * 1024
HDBG = 0
HMAP = {9000: 6, 9010: 7, 9011: 8, 9002: 9, 9003: 10, 9004: 11, 9020: 12, 9021: 13, 9022: 14}
ENCT = 0
ENCP = 3
def evlog(a, tag):
    if ENCT and tag == ENCT: a('s_memrealtime s[92:93]')
    if HDBG and tag in HMAP:
        lb = a.newlabel('hd')
        if tag in (9002, 9003, 9004):
            a('s_cmp_lg_u32 s17, 5')
            a(f's_cbranch_scc1 {lb}')
            a('s_cmp_lg_u32 s89, 3')
        else:
            a('s_cmp_lg_u32 s16, 0')
            a(f's_cbranch_scc1 {lb}')
            a(f's_cmp_lg_u32 s2, {HDBG}')
        a(f's_cbranch_scc1 {lb}')
        a('s_memrealtime s[98:99]')
        a('s_waitcnt lgkmcnt(0)')
        a('v_mov_b32 v37, s98')
        a(f'buffer_store_dword v37, off, {DBG}, 0 offset:{4*HMAP[tag]}')
        a.label(lb)
    if not EVLOG: return
    a('s_memrealtime s[98:99]')
    a('s_waitcnt lgkmcnt(0)')
    a(f'v_mov_b32 v36, {tag}')
    a('v_mov_b32 v37, s98')
    a('s_mov_b64 exec, 1')
    a(f'buffer_store_dwordx2 v[36:37], off, {SRD}, s100')
    a('s_mov_b64 exec, -1')
    a('s_add_u32 s100, s100, 8')

def spin(a, back, abort):
    a('s_add_u32 s30, s30, 1')
    a(f's_cmp_lt_u32 s30, {SPIN_LIMIT}')
    a(f's_cbranch_scc1 {back}')
    a(f's_branch {abort}')

def flagpoll(a, vaddr, tag, regs, lbl, abort, fast=0, primed=False):
    Dp = POLL_DEPTH
    if NBPOLL:
        if NBPOLL == 2: a('s_mov_b64 s[66:67], -1')
        a.label(lbl + '_l')
        for i in range(NB_UNROLL):
            if NBPOLL == 2:
                p, q = (64, 66) if i % 2 == 0 else (66, 64)
                a(f'buffer_load_dword v{regs}, v{vaddr}, {SRD}, 0 offen sc1')
                a(f'v_cmp_gt_u32 s[{p}:{p+1}], {tag}, v{regs}')
                a(f's_cmp_eq_u32 s{q}, 0')
                a(f's_cbranch_scc1 {lbl}_d')
            elif NBPOLL == 3:
                a(f'buffer_load_dword v{regs}, v{vaddr}, {SRD}, 0 offen sc1')
                a(f'v_cmp_gt_u32 vcc, {tag}, v{regs}')
                a(f's_cbranch_vccz {lbl}_d')
            else:
                a(f'v_cmp_gt_u32 vcc, {tag}, v{regs}')
                a(f'buffer_load_dword v{regs}, v{vaddr}, {SRD}, 0 offen sc1')
                a(f's_cbranch_vccz {lbl}_d')
        a('s_waitcnt vmcnt(24)')
        spin(a, lbl + '_l', abort)
        a.label(lbl + '_d')
        return
    if fast:
        Dp = fast
        assert Dp % 2 == 0
        ld = lambda i: a(f'buffer_load_dword v{regs+i}, v{vaddr}, {SRD}, 0 offen sc1')
        a('s_mov_b64 s[72:73], -1')
        for i in range(Dp):
            ld(i)
            if i < Dp - 1: a('s_add_u32 s74, s74, 1\ns_add_u32 s74, s74, 1\ns_add_u32 s74, s74, 1')
        a.label(lbl + '_l')
        for i in range(Dp):
            p, q = (70, 72) if i % 2 == 0 else (72, 70)
            a(f's_waitcnt vmcnt({Dp-1})')
            a(f'v_cmp_gt_u32 s[{p}:{p+1}], {tag}, v{regs+i}')
            ld(i)
            a(f's_cmp_eq_u64 s[{q}:{q+1}], 0')
            a(f's_cbranch_scc1 {lbl}_d')
        spin(a, lbl + '_l', abort)
        a.label(lbl + '_d')
        return
    for i in range(0 if primed else Dp):
        a(f'buffer_load_dword v{regs+i}, v{vaddr}, {SRD}, 0 offen sc1')
    a.label(lbl + '_l')
    for i in list(range(Dp)) * POLL_UNROLL:
        a(f's_waitcnt vmcnt({Dp-1})')
        a(f'v_cmp_gt_u32 vcc, {tag}, v{regs+i}')
        if POLL_EARLY: a(f'buffer_load_dword v{regs+i}, v{vaddr}, {SRD}, 0 offen sc1')
        a(f's_cbranch_vccz {lbl}_d')
        if not POLL_EARLY: a(f'buffer_load_dword v{regs+i}, v{vaddr}, {SRD}, 0 offen sc1')
    spin(a, lbl + '_l', abort)
    a.label(lbl + '_d')

def load_units(a, units, base, tmp_s='s22', fl=''):
    cur = None; n = 0
    for off, reg in units:
        for hb in range(2):
            o = off + hb * 1024
            blk = o // 4096 * 4096
            if blk != cur:
                a(f's_add_u32 {tmp_s}, {base}, {blk}'); cur = blk
            a(f'buffer_load_dwordx4 {ureg(reg + 4 * hb, 4)}, v2, {SRD}, {tmp_s} offen offset:{o - blk} {fl}')
            n += 1
            if n % 32 == 0: a('s_waitcnt vmcnt(24)')

def wreg(ti, ks):
    u = ti * 7 + ks
    return 256 + 8 * u if u < 32 else 120 + 8 * (u - 32)

def lane_consts(a):
    a('v_and_b32 v1, 63, v0')
    a('v_lshlrev_b32 v2, 4, v1')
    a('v_lshrrev_b32 v116, 4, v1')
    a('v_and_b32 v117, 15, v1')
    a('v_mov_b32 v3, 0x4444')
    a('v_mov_b32 v118, 0xeeee')
    a('v_cmp_lt_u32 vcc, 7, v117')
    a('v_cndmask_b32 v3, v3, v118, vcc')

def next_step(a):
    a('s_mov_b32 s19, s18')
    a('s_add_u32 s18, s18, 1')
    a('s_mov_b32 s22, s20')
    a('s_mov_b32 s20, s21')
    a('s_mov_b32 s21, s22')
    a('s_add_u32 s23, s20, 4096')

def gap(a, ops):
    for o in ops:
        if not o.startswith('v_'): a(o)
    for o in ops:
        if o.startswith('v_'): a(o)

def poison_max(a, acc, regs):
    regs = list(regs)
    a(f'v_max3_u32 v{acc}, v{regs[0]}, v{regs[1]}, v{regs[2]}'); regs = regs[3:]
    while len(regs) >= 2:
        a(f'v_max3_u32 v{acc}, v{acc}, v{regs[0]}, v{regs[1]}'); regs = regs[2:]
    if regs: a(f'v_max_u32 v{acc}, v{acc}, v{regs[0]}')

def poison_max16(a, acc, regs):
    regs = list(regs)
    a(f'v_pk_max_u16 v{acc}, v{regs[0]}, v{regs[1]}')
    for r in regs[2:]: a(f'v_pk_max_u16 v{acc}, v{acc}, v{r}')
    a(f'v_lshlrev_b32 v{acc+1}, 16, v{acc}')
    a(f'v_max_u32 v{acc}, v{acc}, v{acc+1}')
    a(f'v_cmp_le_u32 vcc, 0xffff0000, v{acc}')

XP = 0
MP = 4 * KB
MJ = MP + 2304
XB = 8 * KB
def score_tiles(w):
    kb = 4 + (w >> 1); pP = w & 1
    return [(w, 0), (w, 1), (w, 2), (w, 3), (kb, 2 * pP), (kb, 2 * pP + 1), (6, 2 * (1 - pP) + (w >> 1))]
def score_mreg(w):
    kb = 4 + (w >> 1)
    m = {0: 8, 1: 12, 2: 16, 3: 20, 9 - kb: 24}
    if w & 1: m[kb] = 28; m[6] = 32
    else: m[6] = 28; m[kb] = 32
    return m

def gen_score(a, w, st, tag):
    L = lambda n: f'{tag}_sc{w}_{n}'
    ABORT = f'{tag}_abort'
    MR = score_mreg(w)
    ka = w; half6 = w >> 1
    AC = [36, 40, 44, 48, 52, 56, 60 + 2 * half6]
    TMP = 66; SX = 68; BOP2 = 76; XS = [80, 88, 96, 104]
    D0, D1, BOPA = [MR[k] for k in range(4) if k != ka]
    SACC = 52; W = 56
    pb, p6 = (0, 1) if w & 1 else (1, 0)
    def S(ti, ks):
        return f'v_smfmac_f32_16x16x64_bf16 v[{AC[ti]}:{AC[ti]+3}], v[{MR[ks]}:{MR[ks]+3}], {ureg(wreg(ti, ks), 8)}, v3'
    def cvt(dst, src):
        return [f'v_cvt_pk_bf16_f32 v{dst}, v{src}, v{src+1}', f'v_cvt_pk_bf16_f32 v{dst+1}, v{src+2}, v{src+3}']
    def cin(ti, hi):
        r = AC[ti]
        return cvt(r, r) if hi else cvt(r + 2, r)[::-1]
    def T(dst, src): return f'v_mfma_f32_16x16x32_bf16 v[{dst}:{dst+3}], v[{src}:{src+3}], v[4:7], 0'
    def xld(k):
        buf, hb = k >> 1, k & 1; r = XS[buf] + 4 * hb
        return f'buffer_load_dwordx4 v[{r}:{r+3}], v{117 if buf < 2 else 2}, {SRD}, {"s26" if buf & 1 else "s24"} offen offset:{hb*1024} {XFL}'
    a.xld = xld
    def Smm(m, b, first=False):
        c = '0' if first else f'v[{SACC}:{SACC+3}]'
        return f'v_mfma_f32_16x16x32_bf16 v[{SACC}:{SACC+3}], v[{m}:{m+3}], v[{b}:{b+3}], {c}'
    def Sx(tt, b, buf):
        return f'v_smfmac_f32_16x16x64_bf16 v[{SX+4*tt}:{SX+4*tt+3}], v[{b}:{b+3}], v[{XS[buf]}:{XS[buf]+7}], v3'
    ZR = list(range(36, 52)) + list(range(AC[6], AC[6] + 4)) + list(range(SX, SX + 8)) + list(range(52, 60))
    def zero(lo=0, hi=99):
        for r in ZR[lo:hi]: a(f'v_mov_b32 v{r}, 0')
    def mls(ks): return f'buffer_load_dwordx4 v[{MR[ks]}:{MR[ks]+3}], v2, {SRD}, {"s20" if ks < 4 else "s23"} offen offset:{(ks & 3) * 1024} sc1'
    def ml(ks): a(mls(ks))
    a.raw('.p2align 6')
    a.label(L('loop'))
    a('s_mov_b32 s30, 0')
    a('s_mov_b32 s62, 0')
    a('s_setprio 3')
    if w == 0:
        if SC_SLEEP: a(f's_sleep {SC_SLEEP}')
        flagpoll(a, 0, 's19', 112 if NBPOLL else 24, L('fp'), ABORT, FP2)
        if not W0_LATE: ml(0)
        a('s_barrier')
        if W0_LATE: ml(0)
    else:
        a('s_barrier')
        ml(0)
    stamp(a, 0)
    for k in (1, 2, 3):
        a(f's_setprio {3-k}')
        ml(k)
    for k in range(WARM if w == 3 else 0): a(f'v_mfma_f32_32x32x16_bf16 v[36:51], v[{SX}:{SX+3}], v[{SX}:{SX+3}], 0')
    a.flush()
    a.label(L('go'))
    chk = lambda k: f'v_cmp_eq_u32 vcc, -1, v{MR[k]}'
    ex1 = lambda k: [chk(k)]
    ex3 = [f'v_max3_u32 v{TMP}, v24, v27, v28', f'v_max3_u32 v{TMP}, v{TMP}, v31, v32', f'v_max_u32 v{TMP}, v{TMP}, v35', f'v_cmp_eq_u32 vcc, -1, v{TMP}']
    a('s_waitcnt vmcnt(3)')
    stamp(a, 1)
    xpos = [-1] * (X_LATE + X_W2) + [X_POS + X_EVERY * k for k in range(8 - X_LATE - X_W2)]
    nx = 0
    if LATECHK:
        for ks in range(4):
            for ti in range(7):
                a(S(ti, ks))
                if ks == 0 and ti in (0, 2, 5): ml(4 + ti // 2)
                if ti == 2: a(f's_cbranch_vccnz {L(f"r{ks}")}')
                if ti == 6 and ks < 3: a(f's_waitcnt vmcnt({5 - ks + nx})')
                if ks == 3 and ti == 1: a(f's_waitcnt vmcnt({nx})')
                if 7 * ks + ti in xpos and not NOX:
                    a(xld(X_LATE + X_W2 + nx)); nx += 1
                if ti == 0: a(chk(ks))
                if ks == 3 and 1 <= ti <= 4: a(ex3[ti - 1])
                if ks == 3 and ti == 6:
                    a(f's_cbranch_vccnz {L("r4")}')
                    a.label(L('c4'))
    else:
        for ks in range(4):
            for ti in range(7):
                a(S(ti, ks))
                if ks == 0:
                    if ti in (0, 2, 5): ml(4 + ti // 2)
                    if ti == 2: a(f's_cbranch_vccnz {L("r0")}')
                if ti == 4 and ks < 3: a(f's_waitcnt vmcnt({[4, 4, 3][ks] + nx})')
                if ks == 3 and ti == 1: a(f's_waitcnt vmcnt({nx})')
                if 7 * ks + ti in xpos and not NOX:
                    assert 7 * ks + ti > 5
                    a(xld(X_LATE + X_W2 + nx)); nx += 1
                if ks == 0 and ti == 0: a(chk(0))
                if ti == 4 and ks < 3: a(chk(ks + 1))
                if ks == 3 and 1 <= ti <= 4: a(ex3[ti - 1])
                if ti == 6:
                    a(f's_cbranch_vccnz {L(f"r{ks+1}")}')
                    a.label(L(f'c{ks+1}'))
    stamp(a, 2)
    seq = []
    for ti in (6, 4, 5, 0, 1, 2, 3):
        for ks in (4, 5, 6): seq.append([S(ti, ks), []])
    def side(i, ops): seq[i][1] += ops
    def spread(i, ops):
        for k, o in enumerate(ops): side(i + k, [o])
    spread(5, cin(6, half6))
    seq.insert(8, [T(D0, 62 - 2 * half6), []])
    spread(8, cin(4, 0))
    spread(10, cvt(BOP2 + 2 * p6, D0))
    spread(12, cin(5, 1))
    seq.insert(15, [T(D1, 54), []])
    spread(15, cin(0, 0))
    spread(17, cvt(BOP2 + 2 * pb, D1))
    spread(19, cin(1, 1))
    c2 = cin(2, 0); c3 = cin(3, 1)
    for k in range(X_LATE + X_W2 + nx, 8):
        if not NOX: side(xpos[k] - 28, [xld(k)])
    side(22, ['s_waitcnt vmcnt(4)'] + c2[:1])
    seq.append([Sx(0, BOP2, 0), c2[1:]])
    seq.append([T(D0, 38), c3])
    seq.append([T(D1, 46), []])
    seq.append([Sx(1, BOP2, 1), cvt(BOPA, D0)[:1]])
    seq.append([Smm(30, BOP2, True), ['s_waitcnt vmcnt(0)'] + cvt(BOPA, D0)[1:] + cvt(BOPA + 2, D1)])
    wm = f'ds_write_b128 v113, v[{SACC}:{SACC+3}]'
    def foldx(t):
        b = SX + 4 * t
        a(f'v_permlane32_swap_b32 v{b}, v{b+2}')
        a(f'v_permlane32_swap_b32 v{b+1}, v{b+3}')
        a(f'v_add_f32 v{W+t}, v{b}, v{b+2}')
        a(f'v_add_f32 v{W+2+t}, v{b+1}, v{b+3}')
    last3 = [Sx(0, BOPA, 2), Sx(1, BOPA, 3), Smm(MR[ka], BOPA)]
    for k in [(2, 0, 1), (0, 1, 2), (0, 2, 1), (0, 1, 2)][TAIL]: seq.append([last3[k], []])
    for m, ops in seq:
        a(m)
        gap(a, ops)
    nz = 0
    if TAIL == 0:
        a(wm); foldx(0); foldx(1)
    elif TAIL == 1:
        foldx(0); foldx(1); a(wm)
    else:
        foldx(0); a(wm); foldx(1)
    a(f'ds_write_b128 v2, v[{W}:{W+3}] offset:{XP + w*1024}')
    a(f'v_cmp_u_f32 vcc, v{W+1}, v{W+3}')
    stamp(a, 3)
    ZP = 64 - 4 * half6
    zm = lambda d, z: a(f'v_mfma_f32_32x32x16_bf16 v[{d}:{d+15}], v[{SX}:{SX+3}], v[{SX}:{SX+3}], 0')
    for r in range(SX, SX + 4): a(f'v_mov_b32 v{r}, 0')
    a(f's_cbranch_vccnz {L("retry")}')
    a.label(L('cont'))
    a(f's_add_u32 s24, s24, {XSEG_B}')
    a(f's_add_u32 s26, s26, {XSEG_B}')
    for k in range(X_LATE): a(xld(k))
    for r in range(SX + 4, SX + 4 + FILL_A): a(f'v_mov_b32 v{r}, 0')
    if ZV == 3 and w == 3: a(f'v_mfma_f32_16x16x32_bf16 v[{AC[6]}:{AC[6]+3}], v[{SX}:{SX+3}], v[{SX}:{SX+3}], 0')
    else: zm(36, ZP)
    a('s_waitcnt lgkmcnt(0)')
    a('s_barrier')
    stamp(a, 4)
    def f1(pos):
        if w == F1_W and pos == F1_POS: a(f'buffer_store_dword v112, v116, {SRD}, 0 offen {st}')
    if w < 2:
        t = 8
        for k in range(4): a(f'ds_read_b64 v[{t+2*k}:{t+2*k+1}], v114 offset:{k*1024}')
        a(f'ds_read2_b32 v[{t+8}:{t+9}], v115 offset0:0 offset1:64')
        a(f'ds_read2_b32 v[{t+10}:{t+11}], v115 offset0:128 offset1:192')
        if ZV != 2: zm(52, SX)
        a('s_waitcnt lgkmcnt(0)')
        stamp(a, 5)
        X = t; Y = t + 4; Mm = t + 8; m = t + 12; mx = t + 14; l = t + 16
        a(f'v_pk_add_f32 v[{Mm}:{Mm+1}], v[{Mm}:{Mm+1}], v[{Mm+2}:{Mm+3}]')
        a(f'v_pk_add_f32 v[{X}:{X+1}], v[{X}:{X+1}], v[{X+2}:{X+3}]')
        a(f'v_pk_add_f32 v[{Y}:{Y+1}], v[{Y}:{Y+1}], v[{Y+2}:{Y+3}]')
        a(f'v_add_f32 v{m}, v{Mm}, v{Mm+1}')
        a(f'v_pk_add_f32 v[{X}:{X+1}], v[{X}:{X+1}], v[{Y}:{Y+1}]')
        a(f'v_max_f32 v{mx}, v{X}, v{X+1}')
        a(f'v_add_f32_dpp v{m}, v{m}, v{m} row_ror:8 {D}')
        f1(0)
        a(f'v_max_f32_dpp v{mx}, v{mx}, v{mx} row_ror:8 {D}')
        a(f'v_max_f32 v{mx}, v{mx}, v{m}')
        f1(1)
        a(f'v_max_f32_dpp v{mx}, v{mx}, v{mx} quad_perm:[1,0,3,2] {D}')
        f1(2)
        a(f'v_max_f32_dpp v{mx}, v{mx}, v{mx} quad_perm:[2,3,0,1] {D}')
        f1(3)
        a(f'v_max_f32_dpp v{mx}, v{mx}, v{mx} row_half_mirror {D}')
        a(f'v_pk_add_f32 v[{X}:{X+1}], v[{X}:{X+1}], v[{mx}:{mx+1}] op_sel_hi:[1,0] neg_lo:[0,1] neg_hi:[0,1]')
        a(f'v_sub_f32 v{m}, v{m}, v{mx}')
        f1(4)
        a(f'v_exp_f32 v{X}, v{X}')
        a(f'v_exp_f32 v{X+1}, v{X+1}')
        a(f'v_exp_f32 v{m}, v{m}')
        f1(5)
        a(f'v_add_f32 v{l}, v{X}, v{X+1}')
        a(f'v_fmac_f32 v{l}, 0.5, v{m}')
        a(f'v_mov_b32_dpp v{m+1}, v{m} quad_perm:[1,0,3,2] {D}')
        a(f'v_add_f32_dpp v{l}, v{l}, v{l} quad_perm:[1,0,3,2] {D}')
        f1(6)
        a(f'v_add_f32_dpp v{l}, v{l}, v{l} quad_perm:[2,3,0,1] {D}')
        a(f'v_add_f32_dpp v{l}, v{l}, v{l} row_half_mirror {D}')
        a(f'v_add_f32_dpp v{l}, v{l}, v{l} row_ror:8 {D}')
        a(f'v_rcp_f32 v{l}, v{l}')
        a(f'v_pk_mul_f32 v[{X}:{X+1}], v[{X}:{X+1}], v[{l}:{l+1}] op_sel_hi:[1,0]')
        a(f'v_cvt_pk_bf16_f32 v{X}, abs(v{X}), abs(v{X+1})')
        a(f'buffer_store_dword v{X}, v1, {SRD}, s20 offen {st}')
        a(f'v_pk_mul_f32 v[{m}:{m+1}], v[{m}:{m+1}], v[{l}:{l+1}] op_sel_hi:[1,0]')
        a(f'v_cvt_pk_bf16_f32 v{m}, abs(v{m}), abs(v{m+1})')
        a(f'buffer_store_dword v{m}, v118, {SRD}, s20 offen {st}')
        stamp(a, 6)
        if WB_EVERY and w == 1 and not st:
            a('s_lshl_b32 s22, s17, 8')
            a('s_or_b32 s22, s22, s18')
            a(f's_and_b32 s22, s22, {0xf00 + WB_EVERY - 1}')
            a(f's_cbranch_scc1 {L("nwb")}')
            a('buffer_wbl2 sc1')
            a.label(L('nwb'))
        if ZV == 2: zm(52, SX)
    else:
        if ZV == 0 or (ZV == 3 and w == 2):
            zm(52, SX)
            a(f'buffer_store_dwordx2 v[118:119], v114, {SRD}, s21 offen {st}')
            a(f'buffer_store_dwordx2 v[118:119], v115, {SRD}, s21 offen {st}')
            if STLB:
                a(f's_buffer_load_dword s70, {SRD}, s35')
                a(f's_add_u32 s22, s24, {4*XSEG_B}')
                a(f's_buffer_load_dword s71, {SRD}, s22')
                a(f's_mul_i32 s22, s18, {7*KB}')
                a(f's_add_u32 s22, s22, {MEMG_OFF + 3*7*KB}')
                a(f's_buffer_load_dword s72, {SRD}, s22')
                a(f's_add_u32 s35, s35, {VO_SS}')
        elif ZV == 3:
            for r in range(52, 52 + ZX): a(f'v_mov_b32 v{r}, 0')
            zm(36, SX)
        else:
            for r in list(range(52, 60)) + list(range(AC[6], AC[6] + 4)): a(f'v_mov_b32 v{r}, 0')
            for k in range(ZX if w == 2 else 0): a(f'v_mov_b32 v{TMP}, 0')
    for r in range(SX + 4 + FILL_A, SX + 8): a(f'v_mov_b32 v{r}, 0')
    if X_W2:
        sl = X_SLEEP + (5 if w >= 2 else 0)
        if sl: a(f's_sleep {sl}')
        for k in range(X_LATE, X_LATE + X_W2): a(xld(k))
    stamp_flush(a, w, L('sf'), BOP2)
    if STEPLOG and w in (1, 3):
        a('s_memtime s[40:41]' if w == 1 else 's_memrealtime s[40:41]')
        a('s_lshl_b32 s22, s17, 8')
        if w == 3: a('s_add_u32 s22, s22, 4096')
        a('s_lshl_b32 s42, s19, 2')
        a('s_add_u32 s22, s22, s42')
        a(f's_add_u32 s22, s22, {STAMP_OFF}')
        a(f'v_mov_b32 v{BOP2}, 0')
        a('s_waitcnt lgkmcnt(0)')
        a(f'v_mov_b32 v{BOP2+1}, s40')
        a(f'buffer_store_dword v{BOP2+1}, v{BOP2}, {SRD}, s22 offen')
    if DIAG and w == 3:
        a('s_cmp_lg_u32 s19, 1')
        a(f's_cbranch_scc1 {L("dg")}')
        a('s_memtime s[90:91]')
        a('s_memrealtime s[86:87]')
        a.label(L('dg'))
    next_step(a)
    if w == F1_W: a('v_mov_b32 v112, s18')
    a(f's_cmp_lt_u32 s19, {NSTEPS-1}')
    a.flush()
    a(f's_cbranch_scc1 {L("loop")}')
    if w == HU_W:
        a('s_lshl_b32 s22, s17, 2')
        a(f's_add_u32 s22, s22, {CNT_OFF + PTC + 63*128 + 64}')
        a('v_mov_b32 v8, 1')
        a('s_mov_b64 exec, 1')
        a(f'buffer_store_dword v8, off, {SRD}, s22 sc1')
        a('s_mov_b64 exec, -1')
    a(f's_branch {tag}_done')
    for k in range(5):
        ks_ = [k] if k < 4 else [4, 5, 6]
        a.label(L(f'r{k}'))
        a(f's_add_u32 s31, s31, {[1, 0x100, 0x100, 0x100, 0x1000000][k] if RCLS else 1}')
        for ks in ks_: ml(ks)
        a('s_waitcnt vmcnt(0)')
        for x in (ex1(k) if k < 4 else ex3): a(x)
        if k == 0:
            for r in range(36, 52): a(f'v_mov_b32 v{r}, 0')
        elif LATECHK and k < 4: zero()
        a.flush()
        a(f's_cbranch_vccz {L("go" if k == 0 or (LATECHK and k < 4) else f"c{k}")}')
        spin(a, L(f'r{k}'), ABORT)
    a.label(L('retry'))
    a('s_cmp_lg_u32 s62, 0')
    a(f's_cbranch_scc1 {L("cont")}')
    a('s_waitcnt vmcnt(0) lgkmcnt(0)')
    a.label(L('rv'))
    for ks in range(7): ml(ks)
    a('s_waitcnt vmcnt(0)')
    poison_max(a, TMP, range(8, 36))
    a(f'v_cmp_eq_u32 vcc, -1, v{TMP}')
    a(f's_cbranch_vccz {L("rk")}')
    spin(a, L('rv'), ABORT)
    a.label(L('rk'))
    a('s_mov_b32 s62, 1')
    zero()
    a('s_add_u32 s31, s31, 0x100')
    a.flush()
    a(f's_branch {L("go")}')

def touch_ring(a, t, w):
    nl = (2 * EXCH_B) // 128 + 33
    a(f's_mov_b32 s22, {EXCH_OFF}')
    for k in range(w, (nl + 63) // 64, 4):
        a(f'v_lshrrev_b32 v{t}, 4, v2')
        a(f'v_add_u32 v{t}, {64*k}, v{t}')
        a(f'v_min_u32 v{t}, {nl-1}, v{t}')
        a(f'v_lshlrev_b32 v{t}, 7, v{t}')
        a(f'buffer_load_dword v{t+1}, v{t}, {SRD}, s22 offen sc1')

def WFL(): return 'sc1' if FUSE else ''
HELP = 0
HFULL = 0
def mask_wait(a, P, vaddr, soff, smask, sleep=3):
    poll(a, P, [f'buffer_load_dword v9, {vaddr}, {SRD}, {soff} {"offen" if vaddr != "off" else ""} sc1'], [f'v_and_b32 v10, {smask}, v9', f'v_cmp_ne_u32 vcc, {smask}, v10'], sleep=sleep)
def b_wait(a, P, w):
    a('s_lshr_b32 s22, s17, 2')
    a('s_lshl_b32 s28, 0x81, s22')
    a('s_mul_i32 s27, s17, 12')
    for d in (256, 267):
        a(f's_add_u32 s22, s27, {d}')
        a('s_lshr_b32 s22, s22, 6')
        a('s_lshl_b32 s22, 0x81, s22')
        a('s_or_b32 s28, s28, s22')
    a('v_lshrrev_b32 v12, 8, v2')
    a('v_lshlrev_b32 v12, 7, v12')
    a(f's_mov_b32 s27, {PFL + w*512}')
    mask_wait(a, P, 'v12', 's27', 's28')
def a_wait(a, P, kaps):
    a('s_lshl_b32 s27, s17, 7')
    a(f's_add_u32 s27, s27, {PFL + 2048}')
    a(f's_mov_b32 s28, {sum(0x81 << k for k in kaps)}')
    mask_wait(a, P, 'off', 's27', 's28')
def touch_tiles(a, base, tiles):
    a('v_min_u32 v64, 55, v1')
    a('v_lshlrev_b32 v64, 7, v64')
    a(f's_mul_i32 s27, s17, {CUW_B}')
    for t in tiles:
        for hf in range(2):
            a(f's_add_u32 s22, s27, {base + t*TILE_B + hf*7168}')
            if HFULL:
                for k in range(7):
                    if k == 4: a('s_add_u32 s22, s22, 4096')
                    a(f'buffer_load_dwordx4 v[8:11], v2, {SRD}, s22 offen offset:{(k & 3)*1024} sc1')
            else: a(f'buffer_load_dword v67, v64, {SRD}, s22 offen sc1')
def r_wait(a, P, off):
    poll(a, P, [f'buffer_load_dword v9, off, {DBG}, 0 offset:{off} sc1'], ['v_cmp_ne_u32 vcc, 1, v9'], sleep=8)

def init_score(a, w):
    a(f's_mul_i32 s31, s17, {CUW_B}')
    a(f's_add_u32 s31, s31, {WF_A}')
    units = [((kap * 4 + q) * TILE_B + ks * UNIT, wreg(ti, ks)) for ti, (kap, q) in enumerate(score_tiles(w)) for ks in range(7)]
    m2 = (0x81 << (4 + (w >> 1))) | (0x81 << 6)
    a(f's_and_b32 s28, s84, {m2}')
    a('s_lshl_b32 s22, s85, 16')
    a('s_or_b32 s28, s28, s22')
    a(f's_cmp_eq_u32 s28, {0xffff0000 | m2}')
    a(f's_cbranch_scc1 ch_wx{w}_ok')
    r_wait(a, f'ch_wr{w}', D_R2)
    a_wait(a, f'ch_wb{w}', [4 + (w >> 1), 6])
    a(f's_mov_b32 s29, {PFL + 4096}')
    a('s_mov_b32 s28, 0xffff')
    mask_wait(a, f'ch_wx{w}', 'off', 's29', 's28', sleep=8)
    evlog(a, 9002)
    load_units(a, units[28:40], 's31', fl='sc1')
    a(f's_mov_b32 s24, {XF_OFF + w*2048}')
    a(f's_mov_b32 s26, {XF_OFF + w*2048 + 14336}')
    a('v_and_b32 v64, 7, v117')
    a('v_and_b32 v65, 1, v116')
    a('v_lshlrev_b32 v65, 2, v65')
    a('v_sub_u32 v64, v64, v65')
    a('v_lshrrev_b32 v65, 3, v117')
    a('v_lshl_add_u32 v66, v65, 2, v64')
    a('v_cmp_gt_u32 vcc, 4, v64')
    a('v_mov_b32 v67, 99')
    a('v_cndmask_b32 v66, v67, v66, vcc')
    a('v_mov_b32 v68, 0x3f80')
    a('v_mov_b32 v69, 0x3f800000')
    for d in range(4):
        a(f'v_mov_b32 v{4+d}, 0')
        a(f'v_cmp_eq_u32 vcc, {2*d}, v66')
        a(f'v_cndmask_b32 v{4+d}, v{4+d}, v68, vcc')
        a(f'v_cmp_eq_u32 vcc, {2*d+1}, v66')
        a(f'v_cndmask_b32 v{4+d}, v{4+d}, v69, vcc')
    a('v_lshrrev_b32 v64, 1, v116')
    a('v_lshrrev_b32 v65, 3, v117')
    a('v_and_b32 v66, 1, v116')
    a('v_and_b32 v68, 7, v117')
    a('v_lshlrev_b32 v67, 8, v65')
    a('v_lshl_add_u32 v67, v68, 5, v67')
    a('v_lshl_add_u32 v67, v66, 4, v67')
    a(f'v_add_u32 v69, {MP + (w >> 1) * 1088 + (w & 1) * 512}, v67')
    a(f'v_add_u32 v70, {MJ}, v67')
    a('v_cmp_eq_u32 vcc, v64, v65')
    a('v_cndmask_b32 v113, v70, v69, vcc')
    if w < 2:
        if PPERM:
            a('v_and_b32 v74, 3, v117')
            a('v_lshlrev_b32 v74, 1, v74')
            a('v_bfe_u32 v75, v117, 2, 1')
            a('v_or_b32 v74, v74, v75')
            a('v_and_b32 v75, 8, v117')
            a('v_or_b32 v74, v74, v75')
        else: a('v_mov_b32 v74, v117')
        a('v_lshlrev_b32 v67, 9, v64')
        a('v_lshl_add_u32 v67, v74, 4, v67')
        a('v_lshl_add_u32 v67, v66, 3, v67')
        a(f'v_add_u32 v114, {XP + w*256}, v67')
        a('v_mul_u32_u24 v67, 1088, v65')
        a('v_lshl_add_u32 v67, v116, 5, v67')
        a('v_and_b32 v75, 1, v117')
        a('v_and_b32 v76, 2, v117')
        a('v_lshl_add_u32 v75, v76, 1, v75')
        a('v_bfe_u32 v76, v117, 2, 1')
        a('v_lshl_add_u32 v75, v76, 1, v75')
        a('v_lshl_add_u32 v67, v75, 2, v67')
        a(f'v_add_u32 v115, {MP + w*128}, v67')
        a('v_and_b32 v69, 1, v74')
        a('v_lshlrev_b32 v67, 7, v69')
        a('v_lshl_add_u32 v67, v116, 4, v67')
        a('v_lshl_add_u32 v67, v65, 8, v67')
        a('v_bfe_u32 v69, v74, 1, 2')
        a('v_lshl_add_u32 v67, v69, 2, v67')
        a('s_lshl_b32 s22, s17, 9')
        a(f's_add_u32 s22, s22, {PX + w*64}')
        a('v_add_u32 v72, s22, v67')
        a('v_bfe_u32 v69, v75, 1, 1')
        a('v_lshlrev_b32 v67, 7, v69')
        a('v_lshl_add_u32 v67, v116, 4, v67')
        a('v_and_b32 v69, 4, v75')
        a('v_add_u32 v67, v67, v69')
        a('s_lshr_b32 s22, s17, 1')
        a('s_lshl_b32 s22, s22, 8')
        a('s_and_b32 s27, s17, 1')
        a('s_lshl_b32 s27, s27, 3')
        a('s_add_u32 s22, s22, s27')
        a(f's_add_u32 s22, s22, {PM + w*64}')
        a('v_add_u32 v67, s22, v67')
        a('v_and_b32 v69, 9, v117')
        a('v_mov_b32 v70, 0x40000000')
        a('v_cmp_eq_u32 vcc, 0, v69')
        a('v_cndmask_b32 v118, v70, v67, vcc')
        a('v_mov_b32 v119, -1')
    if w == 2:
        a('s_lshl_b32 s22, s17, 9')
        a(f's_add_u32 s22, s22, {PX}')
        a('v_lshl_add_u32 v114, v1, 3, s22')
        a('s_lshr_b32 s22, s17, 1')
        a('s_lshl_b32 s22, s22, 8')
        a('s_and_b32 s27, s17, 1')
        a('s_lshl_b32 s27, s27, 3')
        a('s_add_u32 s22, s22, s27')
        a(f's_add_u32 s22, s22, {PM}')
        a('v_add_u32 v115, s22, v2')
        a('v_mov_b32 v70, 0x40000000')
        a('v_cmp_gt_u32 vcc, 16, v1')
        a('v_cndmask_b32 v115, v70, v115, vcc')
        a('v_mov_b32 v118, -1')
        a('v_mov_b32 v119, -1')
    if w == F1_W:
        a('s_lshl_b32 s22, s17, 2')
        a(f's_add_u32 s22, s22, {FLG1}')
        a('v_lshl_add_u32 v67, v1, 7, s22')
        a('v_mov_b32 v70, 0x40000000')
        a(f'v_cmp_gt_u32 vcc, {R1}, v1')
        a('v_cndmask_b32 v73, v70, v67, vcc')
        a('v_mov_b32 v112, 1')
    a('v_and_b32 v0, 15, v1')
    a(f's_and_b32 s22, s17, {R2-1}')
    a('s_lshl_b32 s22, s22, 7')
    a(f's_add_u32 s22, s22, {FLG2}')
    a('v_lshl_add_u32 v0, v0, 2, s22')
    kb = 4 + (w >> 1)
    k1, k2 = (kb, 6) if w & 1 else (6, kb)
    a('v_xor_b32 v69, 256, v2')
    a(f'v_mul_i32_i24 v70, {(k2 - k1) * 2048}, v66')
    a('v_add_u32 v69, v69, v70')
    a(f'v_add_u32 v117, {(k1 - w)*2048}, v69')
    a('v_mov_b32 v116, v73')
    if w == 0: a('v_mov_b32 v112, 0')
    a(f's_mul_i32 s35, s17, {VO_SV}')
    a(f's_add_u32 s35, s35, {VO_OFF + 4*VO_SS}')
    if w < 2: a('v_mov_b32 v1, v72')
    for r in range(36, 80): a(f'v_mov_b32 v{r}, 0')
    if NOX:
        for r in range(80, 112): a(f'v_mov_b32 v{r}, 0')
    touch_ring(a, 14, w)
    if CT3:
        a('v_lshlrev_b32 v16, 2, v2')
        a('v_lshlrev_b32 v16, 1, v16') if False else None
        code_touch_at(a, f'cA_sc{w}_loop', 16, 15)
    for k in range(8):
        r = 80 + 4 * k
        if not NOX: a(f'buffer_load_dwordx4 v[{r}:{r+3}], v{117 if k < 4 else 2}, {SRD}, {"s26" if k & 2 else "s24"} offen offset:{(k & 1)*1024} {XFL}')
    load_units(a, units[40:], 's31', fl='sc1')

YL = 0; ML = 8 * KB; WL = 16 * KB
def vlds(w):
    return [[0, 1, None, None], [None, 1, 0, None], [None, None, 0, 1]][REBAL][w]
def vwreg(w, ti, ks):
    u = ti * 7 + ks
    return 256 + 8 * u if u < 32 else (176 if w < 2 else 120) + 8 * (u - 32)

def vo_wait0(a, P):
    a('s_lshl_b32 s27, s17, 7')
    a(f's_add_u32 s27, s27, {CNT_OFF + VOC}')
    a('s_mov_b32 s30, 0')
    a.label(P)
    a(f'buffer_load_dword v9, off, {SRD}, s27 sc1')
    a('s_waitcnt vmcnt(0)')
    a('v_cmp_ne_u32 vcc, 56, v9')
    a(f's_cbranch_vccz {P}_d')
    a('s_sleep 2')
    spin(a, P, 'cA_abort')
    a.label(P + '_d')

def resolve_waits(ins):
    out = []; pos = {}; n = 0
    for x in ins:
        if isinstance(x, tuple) and x[0] == 'tag':
            n += 1; pos[x[1]] = n; out.append(x[2])
        elif isinstance(x, tuple):
            out.append(f's_waitcnt lgkmcnt({min(15, n - pos[x[1]])})')
        else:
            if x.startswith('ds_'): n += 1
            out.append(x)
    return out

def gen_value(a, w, st, tag):
    L = lambda n: f'{tag}_va{w}_{n}'
    ABORT = f'{tag}_abort'
    fin = w < 2
    M = 8; ACC = 36
    YA = 152 if fin else 104
    YT = 64; VOR = 80; LO = 48; PL = 52; HI = 160
    STG = [64, 72, 144] if fin else [68, 76, 84]
    nrt = 6 if fin else 7
    lt = vlds(w) is not None
    nt = nrt + lt
    own = [[4, 5], [5, 6], [0, 1], [2, 3]][w]
    wrt = own if w != 1 else [6]
    late = []
    if V2:
        own = wrt = [[2], [3], [0], [1]][w]
        late = [[], [], [4, 5], [6]][w]
    oth = [k for k in range(7) if k not in own]
    def S(ti, ks):
        b = f'v[{STG[ks % 3]}:{STG[ks % 3]+7}]' if ti == nrt else ureg(vwreg(w, ti, ks), 8)
        return f'v_smfmac_f32_16x16x64_bf16 v[{ACC+4*ti}:{ACC+4*ti+3}], v[{M+4*ks}:{M+4*ks+3}], {b}, v3'
    def fold(t):
        r = ACC + 4 * t
        return [f'v_permlane32_swap_b32 v{r}, v{r+2}', f'v_permlane32_swap_b32 v{r+1}, v{r+3}', f'v_add_f32 v{r}, v{r}, v{r+2}', f'v_add_f32 v{r+1}, v{r+1}, v{r+3}',
                f'v_cvt_pk_bf16_f32 v{r+2}, v{r}, v{r+1}', f'ds_write_b32 v{YA+t}, v{r+2}']
    def wrd(ks):
        b = STG[ks % 3]
        return [f'ds_read_b128 v[{b}:{b+3}], v0 offset:{ks*UNIT}', ('tag', f'w{ks}', f'ds_read_b128 v[{b+4}:{b+7}], v0 offset:{ks*UNIT+1024}')]
    def mld(ks): return f'buffer_load_dwordx4 v[{M+4*ks}:{M+4*ks+3}], v2, {SRD}, {"s20" if ks < 4 else "s23"} offen offset:{(ks & 3) * 1024} sc1'
    def vol(h):
        if PROT: pre = [f's_add_u32 s22, s25, s{80 + h // 4}'] if h % 4 == 0 else ['s_add_u32 s22, s22, 3584'] if h % 2 == 0 else []
        else: pre = [f's_add_u32 s22, s25, {h*1792}'] if h % 2 == 0 else []
        return pre + [f'buffer_load_dwordx4 v[{VOR+4*h}:{VOR+4*h+3}], v6, {SRD}, s22 offen offset:{(h & 1)*1792} sc1']
    isv = lambda o: isinstance(o, str) and o.startswith('v_')
    pois = f'buffer_store_dword v162, v1, {SRD}, s21 offen {st}'
    mg = f'buffer_store_dword v{HI}, v1, {SRD}, s38 offen sc1'
    mgp = f'buffer_store_dword v{HI}, v1, {SRD}, s38 offen {st or ["sc1", "", "nt", "sc0"][MG_MODE]}'
    zr = list(range(ACC, ACC + max(28, 4 * nt)))
    a.raw('.p2align 6')
    a.label(L('loop'))
    a('s_mov_b32 s30, 0')
    if w == 2:
        flagpoll(a, 119, 's19', 96, L('fp'), ABORT)
        if not V2:
            for ks in own: a(mld(ks))
        a('s_barrier')
        if V2:
            for ks in own: a(mld(ks))
    else:
        a('s_barrier')
        for ks in own: a(mld(ks))
    stamp(a, 0)
    a('s_barrier')
    if STEPLOG and w == 1: a('s_memtime s[40:41]')
    ny = 0
    def t2pub():
        for r in range(YT, YT + 16): a(f'v_min_u32 v{r}, -2, v{r}')
        for k in range(4):
            if k == 2: a('s_add_u32 s33, s33, 4096')
            a(f'buffer_store_dwordx4 v[{YT+4*k}:{YT+4*k+3}], v2, {SRD}, s33 offen offset:{(k & 1)*2048} sc1')
        a('s_add_u32 s33, s33, 4096')
    if fin:
        a(f's_cmp_lt_u32 s19, {MG_SW}')
        a(f's_cbranch_scc1 {L("m1")}')
        a(mg)
        a(f's_cmp_lg_u32 s19, {NSTEPS-1}')
        a(f's_cbranch_scc1 {L("m2")}')
        t2pub()
        if V2 and w == 1:
            for r in zr: a(f'v_mov_b32 v{r}, 0')
        a('s_waitcnt vmcnt(5)')
        a(f's_branch {L("m3")}')
        a.label(L('m1'))
        a(mgp)
        a.label(L('m2'))
        ny += 1
        for h in range(VO_PRE):
            for x in vol(h): a(x)
        ny += VO_PRE
        a(f's_mul_i32 s38, s18, {7*KB}')
        a(f's_add_u32 s38, s38, {MEMG_OFF}')
        if V2 and w == 1:
            for r in zr: a(f'v_mov_b32 v{r}, 0')
    if w == 3:
        a(f'buffer_load_dword v100, v116, {SRD}, {"s39" if not NOXT else "s20"} offen sc1')
        a('s_add_u32 s27, s19, 2')
        a('s_min_u32 s27, s27, 63')
        a('s_lshr_b32 s27, s27, 3')
        a('s_lshl_b32 s27, s27, 11')
        a('s_add_u32 s27, s27, s35')
        a('s_cmp_eq_u32 s27, s28')
        a(f's_cselect_b32 s29, {FLG1}, s27')
        a(f'buffer_load_dword v101, off, {SRD}, s29 sc1')
        a(f's_add_u32 s39, s39, {XSEG_B}')
        ny += 2
    if VPROBE >= 0 and w == 1:
        a(f's_waitcnt vmcnt({VPROBE})')
        a('s_memtime s[42:43]')
    a(f's_waitcnt vmcnt({ny})')
    if fin: a.label(L('m3'))
    stamp(a, 1)
    mw = lambda ks: f'ds_write_b128 v2, v[{M+4*ks}:{M+4*ks+3}] offset:{ML + ks*1024}'
    mr = lambda ks: ('tag', f'm{ks}', f'ds_read_b128 v[{M+4*ks}:{M+4*ks+3}], v2 offset:{ML + ks*1024}')
    if V2:
        for ks in wrt: a(mw(ks))
        e1 = [k for k in range(4) if k not in own]
        seq = [[t, S(t, ks), []] for ks in own + e1 for t in range(nrt)]
        for k, ks in enumerate(late): seq[LATE_POS + k][2].append(mld(ks))
        seq[B1_POS][2] += ['s_waitcnt lgkmcnt(0)', 's_barrier'] + [mr(ks) for ks in e1]
        for k, ks in enumerate(e1): seq[nrt * (k + 1) - 1][2].append(('wait', f'm{ks}'))
        if fin:
            for h in range(VO_PRE, 16): seq[B1_POS + 1 + (h - VO_PRE) * VO_EVERY][2] += vol(h)
        if lt:
            for j_ in range(4):
                seq.insert(len(seq) - 3 * (3 - j_) - 1, [nrt, S(nrt, j_), []])
            pos = [i_ for i_, x in enumerate(seq) if x[0] == nrt]
            for j_, idx in enumerate(pos):
                seq[idx - 7][2] += wrd(j_)
                seq[idx - 1][2].append(('wait', f'w{j_}'))
            for j_ in (4, 5): seq[pos[j_ - 2]][2] += wrd(j_)
        seq[-1][2] += (['s_waitcnt vmcnt(0)'] + [mw(ks) for ks in late] if late else []) + ['s_waitcnt lgkmcnt(0)', 's_barrier'] + [mr(ks) for ks in (4, 5, 6) if ks not in late]
        if lt: seq[-1][2] += wrd(6)
        seq[-1][2].append('s_waitcnt lgkmcnt(0)')
        seq += [[t, S(t, ks), []] for t in range(nt) for ks in (4, 5, 6)]
    else:
        for ks in wrt: a(f'ds_write_b128 v2, v[{M+4*ks}:{M+4*ks+3}] offset:{ML + ks*1024}')
        seq = [[t, S(t, ks), []] for ks in own for t in range(nrt)]
        seq[B1_POS][2] += ['s_waitcnt lgkmcnt(0)', 's_barrier'] + [('tag', f'm{ks}', f'ds_read_b128 v[{M+4*ks}:{M+4*ks+3}], v2 offset:{ML + ks*1024}') for ks in oth]
        n0 = len(seq)
        rest = [[t, S(t, ks), []] for t in range(nrt) for ks in oth]
        if lt:
            for j_ in range(7): rest.insert(3 + 4 * j_, [nrt, S(nrt, j_), []])
        seq += rest
        for k, ks in enumerate(oth):
            idx = next(i_ for i_ in range(n0, len(seq)) if seq[i_][1] == S(0, ks))
            seq[idx - 1][2].append(('wait', f'm{ks}'))
        if lt:
            for j_ in range(7):
                idx = n0 + 3 + 4 * j_
                seq[idx - (8 if j_ else 5)][2] += wrd(j_)
                seq[idx - 1][2].append(('wait', f'w{j_}'))
        if fin:
            for h in range(VO_PRE, 16): seq[(h - VO_PRE) * VO_EVERY][2] += vol(h)
            if TLB_WARM and w == 1:
                seq[(16 - VO_PRE) * VO_EVERY][2] += [f's_add_u32 s22, s25, {VO_SS + GSH_B - 128}', f'buffer_load_dword v164, off, {SRD}, s22 sc1']
    prime = [f'buffer_load_dword v{164+(0 if NBPOLL else k)}, v4, {SRD}, 0 offen sc1' for k in range(POLL_DEPTH)] if w == 0 and PRIME else []
    for k, x in enumerate(prime): seq[len(seq) - 1 - PRIME * (POLL_DEPTH - 1 - k)][2].append(x)
    last = {}
    for i_, (t, m, sd) in enumerate(seq): last[t] = i_
    ins = []; pend = []; delay = 0; brk = None
    for i_, (t, m, sd) in enumerate(seq):
        ins.append(m)
        ops = list(sd)
        if pend and pend[0].startswith('ds_'): ops.insert(0, pend.pop(0))
        if brk == i_:
            ops.append(f's_cbranch_vccnz {L("slow")}')
            assert not fin or i_ > (16 - VO_PRE) * VO_EVERY + (B1_POS + 1 if V2 else 0)
        if brk is not None and brk + 2 == i_ and fin: ops.append(pois)
        if delay: delay -= 1
        elif pend:
            for _ in range(2 if V2 and len(pend) > V2_DBL else 1):
                if pend and not pend[0].startswith('ds_'):
                    x = pend.pop(0); ops.append(x)
                    if x.startswith('v_cmp'): brk = i_ + 2
        ins += [o for o in ops if not isv(o)] + [o for o in ops if isv(o)]
        if i_ == last[t]:
            delay = max(delay, 2 - len(pend))
            f_ = fold(t)
            if t == 0: f_.insert(4, f'v_cmp_u_f32 vcc, v{ACC}, v{ACC+1}')
            pend += f_
    ins += pend
    nm = 0
    for x in resolve_waits(ins):
        if 'smfmac' in x:
            nm += 1
            if NOT2 and 24 < nm <= 24 + NOT2: continue
        a(x)
    a.label(L('t2d'))
    stamp(a, 2)
    if fin:
        pr = lambda c: 8 + 4 * c
        def pld(c):
            so = ('s22', 's34', 's36')[c // 4]; o = (c & 3) * 1024
            if PROT and c < 8: so = f's{72 + c // 2}'; o = (c & 1) * 1024
            a(f'buffer_load_dwordx4 v[{pr(c)}:{pr(c)+3}], v2, {SRD}, {so} offen offset:{o} sc1')
        if PROT:
            for j_ in range(4): a(f's_add_u32 s{72+j_}, s20, s{76+j_}')
        a(f's_add_u32 s22, s20, {PX}')
        a(f's_add_u32 s34, s20, {PX + 4096}')
        a(f's_add_u32 s36, s20, {PM}')
        a('s_mov_b32 s37, 0')
        for r in range(LO, LO + 4): a(f'v_mov_b32 v{r}, 0')
        a('v_mov_b32 v163, s18')
        a(f's_cmp_eq_u32 s19, {NSTEPS-1}')
        a('s_waitcnt lgkmcnt(0)')
        a(f's_cbranch_scc1 {L("last")}')
        if STAMPS:
            a('s_waitcnt vmcnt(0)')
            stamp(a, 3)
        if STEPLOG and w == 1 and VPROBE < 0:
            a('s_waitcnt vmcnt(0)')
            a('s_memtime s[42:43]')
        if w == 0:
            a('s_setprio 3')
            if FIN_SLEEP: a(f's_sleep {FIN_SLEEP}')
            flagpoll(a, 4, 's18', 164, L('fw'), ABORT, FP1, primed=PRIME > 0)
            for c in range(B3_AT): pld(c)
            if F2_W0: a(f'buffer_store_dword v163, v7, {SRD}, 0 offen {st}')
        a('s_barrier')
        if w == 0:
            for c in range(B3_AT, 10): pld(c)
        elif B3_AT < 10:
            for k in range(2 * (10 - B3_AT) + 4): a(f'v_mov_b32 v{PL+4+(k & 7)}, 0')
        stamp(a, 4)
        if w == 1:
            if W1_DELAY: a(f's_sleep {W1_DELAY}')
            for c in range(10): pld(c)
        for k in range(4): a(f'ds_read_b128 v[{YT+4*k}:{YT+4*k+3}], v2 offset:{YL + w*4096 + k*1024}')
        a.label(L('lp'))
        nst = 1 if F2_W0 and w == 0 else 0
        ckc = list(range(min(F3_POS - 1, 8))) if PCHK and w == 1 and not V2 else []
        for c in range(10):
            a(f's_waitcnt vmcnt({9-c+nst})' + (' lgkmcnt(0)' if c == 8 else ''))
            if c == 0: stamp(a, 5)
            B_ = VOR + 8 * c if c < 8 else YT + 8 * (c - 8)
            a(f'v_smfmac_f32_16x16x64_bf16 v[{LO}:{LO+3}], v[{pr(c)}:{pr(c)+3}], v[{B_}:{B_+7}], v3')
            if c == F3_POS and w == 1 and not V2:
                if ckc: a(f's_cbranch_vccnz {L("rv")}')
                a(f'buffer_store_dword v163, v7, {SRD}, 0 offen {st}')
                nst = 1
            if c in ckc:
                if c % 2 == 0 and c > 0: a(f'v_max3_u32 v{PL+3}, v{PL+3 if c > 2 else pr(0)}, v{pr(c-1)}, v{pr(c)}')
                elif c == ckc[-1] and c > 0: a(f'v_max_u32 v{PL+3}, v{PL+3 if c > 2 else pr(0)}, v{pr(c)}')
                if c == ckc[-1]: a(f'v_cmp_eq_u32 vcc, -1, v{PL+3 if c > 0 else pr(0)}')
        stamp(a, 6)
        a(f'v_permlane32_swap_b32 v{LO}, v{LO+2}')
        a(f'v_permlane32_swap_b32 v{LO+1}, v{LO+3}')
        a(f'v_pk_add_f32 v[{LO}:{LO+1}], v[{LO}:{LO+1}], v[{LO+2}:{LO+3}]')
        a(f'v_cvt_pk_bf16_f32 v{HI}, v{LO}, v{LO+1}')
        a(f'v_cmp_u_f32 vcc, v{LO}, v{LO+1}')
        a(f'v_mov_b32_dpp v{HI+1}, v{HI} quad_perm:[1,0,3,2] {D}')
        a(f'v_perm_b32 v{HI}, v{HI+1}, v{HI}, v5')
        a(f'v_cndmask_b32 v{HI+1}, v{HI}, v162, vcc')
        a(f'buffer_store_dword v{HI+1}, v1, {SRD}, s21 offen {st}')
        a(f's_cbranch_vccnz {L("rp")}')
        a.label(L('cont'))
        stamp(a, 7)
        if w == 0: a('s_setprio 0')
        a(f's_cmp_lg_u32 s19, {NSTEPS-2}')
        a(f's_cbranch_scc1 {L("nl")}')
        if LAST_DIRECT:
            if w == 0: a('s_sleep 4')
            a(mg)
        if LAST_DIRECT: a('s_mov_b32 s38, 0x40000000')
        a('s_mov_b32 s25, 0x40000000')
        a.label(L('nl'))
        if not NOVO: a(f's_add_u32 s25, s25, {VO_SS}')
        stamp_flush(a, 4 + w, L('sf'), PL)
        if STEPLOG and w == 1:
            a('s_sub_u32 s40, s42, s40')
            a('s_lshl_b32 s22, s17, 8')
            a('s_lshl_b32 s42, s19, 2')
            a('s_add_u32 s22, s22, s42')
            a(f's_add_u32 s22, s22, {STAMP_OFF + 8192}')
            a(f'v_mov_b32 v{PL+1}, s40')
            a(f'buffer_store_dword v{PL+1}, off, {SRD}, s22')
        if not (V2 and w == 1):
            for r in zr: a(f'v_mov_b32 v{r}, 0')
    else:
        a('v_mov_b32 v117, s18')
        if w == 3:
            a('s_cmp_eq_u32 s27, s28')
            a(f's_cbranch_scc1 {L("vok")}')
            a.label(L('vow'))
            a('s_waitcnt vmcnt(0)')
            a('v_cmp_ne_u32 vcc, 56, v101')
            a(f's_cbranch_vccnz {L("vor")}')
            a('s_mov_b32 s28, s27')
            a.label(L('vok'))
        a('s_waitcnt lgkmcnt(0)')
        stamp(a, 3)
        if w == 3 and F2_PRIO: a('s_setprio 3')
        a('s_barrier')
        nd = F2_DELAY if w == 3 else 0
        for r in zr[:nd]: a(f'v_mov_b32 v{r}, 0')
        if w == 3 and not F2_W0: a(f'buffer_store_dword v117, v118, {SRD}, 0 offen {st}')
        if w == 3 and F2_PRIO: a('s_setprio 0')
        a(f's_cmp_eq_u32 s19, {NSTEPS-1}')
        a(f's_cbranch_scc1 {tag}_done')
        if w == 2: a('s_sleep 1')
        for r in zr[nd:]: a(f'v_mov_b32 v{r}, 0')
        if w == 2 and P3_SLEEP: a(f's_sleep {P3_SLEEP}')
        stamp_flush(a, 4 + w, L('sf'), 92)
    next_step(a)
    a.flush()
    a(f's_branch {L("loop")}')
    a.label(L('slow'))
    a('s_waitcnt lgkmcnt(0)')
    a.label(L('sl1'))
    a('s_add_u32 s31, s31, 0x1000000')
    for ks in range(7): a(mld(ks))
    a('s_waitcnt vmcnt(0)')
    poison_max(a, ACC, range(M, M + 28))
    a(f'v_cmp_eq_u32 vcc, -1, v{ACC}')
    a(f's_cbranch_vccz {L("sl2")}')
    spin(a, L('sl1'), ABORT)
    a.label(L('sl2'))
    for r in zr: a(f'v_mov_b32 v{r}, 0')
    if fin: a(pois)
    for ks in range(7):
        if lt:
            for x in resolve_waits(wrd(ks)): a(x)
        for t in range(nt):
            if t == nrt: a('s_waitcnt lgkmcnt(0)')
            a(S(t, ks))
    for t in range(nt):
        for x in fold(t): a(x)
    for x in prime: a(x)
    a(f's_branch {L("t2d")}')
    if fin:
        a.label(L('last'))
        a('s_barrier')
        for k in range(4): a(f'ds_read_b128 v[{YT+4*k}:{YT+4*k+3}], v2 offset:{YL + w*4096 + k*1024}')
        a('s_waitcnt lgkmcnt(0)')
        t2pub()
        a('s_waitcnt vmcnt(0)')
        a('buffer_wbl2 sc1')
        a(f's_branch {tag}_done')
        a.label(L('rp'))
        a('s_cmp_eq_u32 s37, 0')
        a(f's_cbranch_scc1 {L("rv")}')
        a(f'v_min_u32 v{HI}, -2, v{HI}')
        a(f'buffer_store_dword v{HI}, v1, {SRD}, s21 offen {st}')
        a(f's_branch {L("cont")}')
        a.label(L('rv'))
        a('s_add_u32 s31, s31, 0x10000')
        for c in range(10): pld(c)
        a('s_waitcnt vmcnt(0)')
        poison_max(a, PL, [pr(c) + r for c in range(10) for r in range(4)])
        a(f'v_cmp_eq_u32 vcc, -1, v{PL}')
        a('s_mov_b32 s37, 1')
        for r in range(LO, LO + 4): a(f'v_mov_b32 v{r}, 0')
        a.flush()
        a(f's_cbranch_vccz {L("lp")}')
        spin(a, L('rv'), ABORT)
    if w == 3:
        a.label(L('vor'))
        a('s_sleep 2')
        a(f'buffer_load_dword v101, off, {SRD}, s27 sc1')
        spin(a, L('vow'), ABORT)

def init_value(a, w):
    fin = w < 2
    YA = 152 if fin else 104
    a('v_mov_b32 v72, v116')
    a('v_mov_b32 v73, v117')
    a('v_lshrrev_b32 v65, 1, v72')
    a('v_and_b32 v66, 1, v72')
    for r in range(36, 64): a(f'v_mov_b32 v{r}, 0')
    a('v_lshlrev_b32 v75, 2, v65')
    a('v_lshl_add_u32 v75, v66, 3, v75')
    tl = [7 * w + t for t in range(6 if fin else 7)] + ([7 * vlds(w) + 6] if vlds(w) is not None else [])
    for t, gt in enumerate(tl):
        a(f'v_add_u32 v67, {16 * gt}, v73')
        a('v_mul_u32_u24 v68, 2341, v67')
        a('v_lshrrev_b32 v68, 16, v68')
        a('v_mul_u32_u24 v69, 28, v68')
        a('v_sub_u32 v69, v67, v69')
        a('v_lshrrev_b32 v70, 4, v69')
        a('v_and_b32 v69, 15, v69')
        a('v_lshlrev_b32 v71, 12, v70')
        a('v_lshl_add_u32 v71, v68, 8, v71')
        a('v_lshl_add_u32 v71, v69, 4, v71')
        a(f'v_add_u32 v{YA+t}, v71, v75')
    a('v_mov_b32 v74, 0x40000000')
    a(f'v_mov_b32 v{164 if fin else 96}, 0')
    if vlds(w) is not None: a(f'v_add_u32 v0, {WL + vlds(w)*TILE_B}, v2')
    if fin:
        a('v_mov_b32 v76, 0\nv_mov_b32 v77, 0\nv_mov_b32 v78, 0\nv_mov_b32 v79, 0')
        for k in range(4): a(f'ds_write_b128 v2, v[76:79] offset:{YL + w*4096 + k*1024}')
        a(f's_and_b32 s22, s17, {R1-1}')
        a('s_lshl_b32 s22, s22, 7')
        a(f's_add_u32 s22, s22, {FLG1}')
        a('v_lshl_add_u32 v4, v73, 2, s22')
        a('v_and_b32 v64, 1, v73')
        a('v_mov_b32 v5, 0x05040100')
        a('v_mov_b32 v65, 0x03020706')
        a('v_cmp_eq_u32 vcc, 1, v64')
        a('v_cndmask_b32 v5, v5, v65, vcc')
        a('s_lshl_b32 s22, s17, 2')
        a(f's_add_u32 s22, s22, {FLG2 + 16*128*w}')
        a('v_lshl_add_u32 v7, v1, 7, s22')
        a(f'v_cmp_gt_u32 vcc, {R2}, v1')
        a('v_cndmask_b32 v7, v74, v7, vcc')
        if w == 0: a('v_mov_b32 v6, v2')
        else:
            a('v_min_u32 v65, 11, v73')
            a('v_mad_u32_u24 v65, v72, 12, v65')
            a('v_lshlrev_b32 v6, 4, v65')
            a('v_add_u32 v6, 1024, v6')
        a('v_lshl_add_u32 v64, v66, 2, v64')
        a('v_and_b32 v65, 2, v72')
        a('v_add_u32 v64, v64, v65')
        a(f's_mul_i32 s22, s17, {12 if w else 16}')
        if w: a('s_add_u32 s22, s22, 256')
        a('v_add_u32 v75, s22, v73')
        a('v_lshrrev_b32 v68, 4, v75')
        a('v_lshlrev_b32 v68, 8, v68')
        a('v_bfe_u32 v69, v75, 1, 1')
        a('v_lshl_add_u32 v68, v69, 7, v68')
        a('v_lshl_add_u32 v68, v64, 4, v68')
        a('v_and_b32 v69, 12, v75')
        a('v_add_u32 v1, v68, v69')
        if MLIN and w == 0:
            a('s_lshl_b32 s22, s17, 8')
            a('v_lshrrev_b32 v1, 2, v2')
            a('v_add_u32 v1, s22, v1')
        if w == 1:
            a('v_cmp_gt_u32 vcc, 12, v73')
            a('v_cndmask_b32 v1, v74, v1, vcc')
        a(f's_mul_i32 s22, s17, {VO_SV}')
        a(f's_add_u32 s25, s22, {VO_OFF}')
        a(f's_and_b32 s27, s17, {PROT}')
        for j_ in range(4):
            a(f's_xor_b32 s22, s27, {j_}')
            a(f's_mul_i32 s{80+j_}, s22, 7168')
            a('s_lshl_b32 s22, s22, 11')
            a(f's_add_u32 s{76+j_}, s22, {PX}')
        a('v_mov_b32 v162, -1')
        a('s_mov_b32 s38, 0x40000000')
    else:
        a('v_and_b32 v119, 15, v1')
        a(f's_and_b32 s22, s17, {R2-1}')
        a('s_lshl_b32 s22, s22, 7')
        a(f's_add_u32 s22, s22, {FLG2 + (0 if V2 else 16*128)}')
        a('v_lshl_add_u32 v119, v119, 2, s22')
        a('s_lshl_b32 s22, s17, 2')
        a(f's_add_u32 s22, s22, {FLG2}')
        a('v_lshl_add_u32 v118, v1, 7, s22')
        a(f'v_cmp_gt_u32 vcc, {R2}, v1')
        a('v_cndmask_b32 v118, v74, v118, vcc')
        a('s_lshl_b32 s35, s17, 7')
        a(f's_add_u32 s35, s35, {CNT_OFF + VOC}')
        for r in range(64, 68): a(f'v_mov_b32 v{r}, 0')
        a('v_min_u32 v116, 13, v1')
        a('s_mul_i32 s22, s17, 14')
        a('v_add_u32 v116, s22, v116')
        a('v_lshlrev_b32 v116, 7, v116')
    a(f's_mul_i32 s31, s17, {CUW_B}')
    a(f's_add_u32 s31, s31, {WF_B + 7*w*TILE_B}')
    if FUSE:
        r_wait(a, f'ch_wr{4+w}', D_R1)
        b_wait(a, f'ch_ww{4+w}', w)
        evlog(a, 9002)
    units = [(ti * TILE_B + ks * UNIT, vwreg(w, ti, ks)) for ti in range(6 if fin else 7) for ks in range(7)]
    load_units(a, units, 's31', fl=WFL())
    if fin:
        for f in range(14):
            if f % 4 == 0:
                a(f's_mov_b32 m0, {WL + w*TILE_B + f*1024}')
                a(f's_add_u32 s22, s31, {6*TILE_B + f*1024}')
            a(f'buffer_load_dwordx4 v2, {SRD}, s22 offen offset:{(f & 3)*1024} {WFL()} lds')
    if CT3:
        a('v_lshlrev_b32 v16, 2, v2')
        code_touch_at(a, f'cA_va{w}_loop', 16, 15)
    r_wait(a, f'ch_ws{4+w}', D_R2)
    evlog(a, 9012)
    if fin:
        a(f's_mul_i32 s33, s17, {65*8*KB}')
        a(f's_add_u32 s33, s33, {T2_OFF + 63*8*KB + w*1024}')
        for r in range(12, 16): a(f'v_mov_b32 v{r}, -1')
        for k in range(8):
            a(f's_add_u32 s22, s33, {k*2048}')
            a(f'buffer_store_dwordx4 v[12:15], v2, {SRD}, s22 offen sc1')
        a('v_mov_b32 v16, 1')
        a('v_mov_b32 v17, 1')
        a('s_lshl_b32 s22, s17, 10')
        a(f's_add_u32 s22, s22, {CNT_OFF + T2F + 62*16 + 8*w}')
        a('s_waitcnt vmcnt(0)')
        a('s_mov_b64 exec, 3')
        a(f'buffer_store_dwordx2 v[16:17], v2, {SRD}, s22 offen sc1')
        a('s_mov_b64 exec, -1')
    if w >= 2: vo_wait0(a, f'ch_vw{w}')
    a('s_mov_b32 s28, s35')
    if w == 3:
        a(f's_mov_b32 s39, {XF_OFF + XSEG_B}')
        a(f'buffer_load_dword v100, v116, {SRD}, s39 offen sc1')
        a(f's_mov_b32 s39, {XF_OFF + 2*XSEG_B}')

MERGE = 0
RB1_DELAY = 0
def wg_atomic(a, P, dst, srd=DBG):
    a('v_mov_b32 v6, 160000')
    a('s_barrier')
    a('s_cmp_lg_u32 s16, 0')
    a(f's_cbranch_scc1 {P}1')
    a('s_mov_b64 exec, 1')
    a(f'buffer_atomic_add v4, v5, {srd}, 0 offen sc0')
    a('s_waitcnt vmcnt(0)')
    a('ds_write_b32 v6, v4')
    a('s_waitcnt lgkmcnt(0)')
    a('s_mov_b64 exec, -1')
    a.label(f'{P}1')
    a('s_barrier')
    a('ds_read_b32 v4, v6')
    a('s_waitcnt lgkmcnt(0)')
    a(f'v_readfirstlane_b32 {dst}, v4')

def staff_check(a, okl, mode):
    a('s_mov_b32 s30, 0')
    a('v_mov_b32 v36, 0')
    a.label('ch_chk')
    a(f'buffer_load_dword v37, v36, {DBG}, 0 offen sc1')
    a('s_waitcnt vmcnt(0)')
    a('v_readfirstlane_b32 s22, v37')
    a('s_and_b32 s22, s22, 0xffff')
    a('s_cmp_ge_u32 s22, 32')
    a('s_cbranch_scc1 ch_go_end')
    a('s_sleep 16')
    a('s_add_u32 s30, s30, 1')
    a('s_cmp_lt_u32 s30, 64')
    a('s_cbranch_scc1 ch_chk')
    a.label('ch_go_end')
    a('v_mov_b32 v6, 160016')
    a('v_mov_b32 v4, s22')
    a('s_cmp_lg_u32 s16, 0')
    a('s_cbranch_scc1 ch_dec')
    a('ds_write_b32 v6, v4')
    a('s_waitcnt lgkmcnt(0)')
    a.label('ch_dec')
    a('s_barrier')
    a('ds_read_b32 v4, v6')
    a('s_waitcnt lgkmcnt(0)')
    a('v_readfirstlane_b32 s22, v4')
    a('s_cmp_ge_u32 s22, 32')
    a(f's_cbranch_scc1 {okl}')
    a('v_mov_b32 v4, 0x10001')
    a(f's_mov_b32 s18, {mode}')
    a('s_branch ch_take')

D_CLAIM = 4; D_CNT = 12; D_REP = 20; D_R1 = 128; D_R2 = 132; NINIT = int(os.environ.get('NINIT', '8')); UM = 0x3870
FUSE = 1
REP_WAIT = 60
def wg_signal(a, off, inc=1):
    lb = a.newlabel('sig')
    a('s_barrier')
    a('s_cmp_lg_u32 s16, 0')
    a(f's_cbranch_scc1 {lb}')
    a(f'v_mov_b32 v60, {inc}')
    a(f'v_mov_b32 v61, {off}')
    a('s_mov_b64 exec, 1')
    a(f'buffer_atomic_add v60, v61, {DBG}, 0 offen')
    a('s_mov_b64 exec, -1')
    a.label(lb)

def poll(a, P, loads, cond, sleep=2, lim=SPIN_LIMIT, fail='cA_abort'):
    a('s_mov_b32 s30, 0')
    a.label(P)
    for x in loads: a(x)
    a('s_waitcnt vmcnt(0)')
    for x in cond: a(x)
    a(f's_cbranch_vccz {P}_ok')
    a(f's_sleep {sleep}')
    a('s_add_u32 s30, s30, 1')
    a(f's_cmp_lt_u32 s30, {lim}')
    a(f's_cbranch_scc1 {P}')
    a(f's_branch {fail}')
    a.label(P + '_ok')

def uniform(a, sreg, lds=160032):
    lb = a.newlabel('uni')
    a(f'v_mov_b32 v6, {lds}')
    a(f'v_mov_b32 v7, {sreg}')
    a('s_barrier')
    a('s_cmp_lg_u32 s16, 0')
    a(f's_cbranch_scc1 {lb}')
    a('ds_write_b32 v6, v7')
    a('s_waitcnt lgkmcnt(0)')
    a.label(lb)
    a('s_barrier')
    a('ds_read_b32 v7, v6')
    a('s_waitcnt lgkmcnt(0)')
    a(f'v_readfirstlane_b32 {sreg}, v7')

def lanes(a):
    a('v_and_b32 v1, 63, v0')
    a('v_lshlrev_b32 v2, 4, v1')
    a('v_lshrrev_b32 v3, 4, v1')
    a('v_and_b32 v4, 15, v1')

def mem0_load(a):
    from prep import srd
    srd(a, 68, 50, 51, 8 * 448 * 2)
    a('v_lshrrev_b32 v6, 3, v0')
    a('v_min_u32 v6, 27, v6')
    a('v_and_b32 v7, 7, v0')
    a('v_mul_u32_u24 v9, 896, v7')
    a('v_lshl_add_u32 v9, v6, 5, v9')
    a('buffer_load_dwordx4 v[176:179], v9, s[68:71], 0 offen')
    a('buffer_load_dwordx4 v[180:183], v9, s[68:71], 0 offen offset:16')

def init_job(a, P, k_s, mid=None, nmid=0):
    a('v_mov_b32 v10, 0x40000000')
    a('v_mov_b32 v5, 1')
    for r in range(148, 152): a(f'v_mov_b32 v{r}, 0')
    for r in range(152, 156): a(f'v_mov_b32 v{r}, -1')
    a('v_lshlrev_b32 v8, 4, v0')
    def count(Q, off, inc, roff, doff=None):
        a('s_waitcnt vmcnt(0)')
        a('s_barrier')
        a('s_cmp_lg_u32 s16, 0')
        a(f's_cbranch_scc1 {Q}_e')
        a('v_mov_b32 v6, 1')
        a('s_mov_b64 exec, 1')
        a(f'buffer_atomic_add v6, v252, {DBG}, 0 offen offset:{off} sc0')
        a('s_waitcnt vmcnt(0)')
        a('v_readfirstlane_b32 s20, v6')
        a(f's_cmp_lg_u32 s20, {NINIT-1}')
        a(f's_cbranch_scc1 {Q}_e0')
        if doff: a(f'buffer_store_dword v5, v252, {DBG}, 0 offen offset:{doff} sc1')
        a('s_mov_b64 exec, 0xff')
        a('v_lshlrev_b32 v6, 7, v0')
        a(f's_mov_b32 s20, {PFL + 4096}')
        a(f'buffer_store_dword v5, v6, {SRD}, s20 offen offset:{roff} sc1')
        a.label(f'{Q}_e0')
        a('s_mov_b64 exec, -1')
        a.label(f'{Q}_e')
    from prep import srd
    NK = 56 // NINIT
    srd(a, 64, 48, 49, 2048 * 448 * 2)
    a(f's_lshl_b32 s21, {k_s}, 2')
    a('s_add_u32 s21, s21, s16')
    a(f's_lshr_b32 s22, s21, {(NINIT // 4).bit_length() - 1}')
    a(f's_mul_i32 s22, s22, {14*KB}')
    a(f's_and_b32 s24, s21, {NINIT // 4 - 1}')
    a(f's_mul_i32 s24, s24, {64*NK}')
    a('s_add_u32 s22, s22, s24')
    a(f's_mul_i32 s21, s21, {NK*KB}')
    a('v_mul_u32_u24 v7, 896, v4')
    a('v_lshl_add_u32 v7, v3, 4, v7')
    for kk in range(NK): a(f'buffer_load_dwordx4 v[{64+4*kk}:{67+4*kk}], v7, s[64:67], s22 offen offset:{64*kk}')
    mem0_load(a)
    a(f's_cmp_lg_u32 {k_s}, 0')
    a(f's_cbranch_scc1 {P}_1')
    a(f's_mov_b32 s23, {PFL}')
    a(f'buffer_store_dwordx4 v[148:151], v8, {SRD}, s23 offen sc1')
    a(f's_mov_b32 s23, {PFL + 4096}')
    a(f'buffer_store_dwordx4 v[148:151], v8, {SRD}, s23 offen sc1')
    a('s_waitcnt vmcnt(0)')
    a('s_barrier')
    a(f'buffer_store_dword v5, v252, {DBG}, 0 offen offset:{D_R1} sc1')
    a.label(f'{P}_1')
    a('s_waitcnt vmcnt(1)')
    for kk in range(NK):
        if kk % 4 == 0: a(f's_add_u32 s23, s21, {XF_OFF + kk*1024}')
        a(f'buffer_store_dwordx4 v[{64+4*kk}:{67+4*kk}], v2, {SRD}, s23 offen offset:{(kk & 3)*1024} sc1')
    count(P + '_x', D_CLAIM, 1, 8)
    a(f's_lshl_b32 s20, {k_s}, 12')
    a('v_add_u32 v8, s20, v8')
    for base, n, r in ((CNT_OFF, AC, 148), (EXCH_OFF + 2 * EXCH_B, 48 * 128, 148), (EXCH_OFF + 7 * KB, 2 * EXCH_B - 7 * KB, 152), (MEMG_OFF + 7 * KB, 63 * 7 * KB, 152)):
        RB = 4096 * NINIT
        full, rem = divmod(n, RB)
        a(f's_mov_b32 s23, {base}')
        if full:
            lb = a.newlabel(P + 'lp')
            a.label(lb)
            a(f'buffer_store_dwordx4 v[{r}:{r+3}], v8, {SRD}, s23 offen sc1')
            a(f's_add_u32 s23, s23, {RB}')
            a(f's_cmp_lt_u32 s23, {base + full * RB}')
            a(f's_cbranch_scc1 {lb}')
        if rem:
            a(f'v_cmp_gt_u32 vcc, {rem}, v8')
            a('v_cndmask_b32 v9, v10, v8, vcc')
            a(f'buffer_store_dwordx4 v[{r}:{r+3}], v9, {SRD}, s23 offen sc1')
    a(f's_cmp_lg_u32 {k_s}, 1')
    a(f's_cbranch_scc1 {P}_nm')
    a('v_lshrrev_b32 v6, 3, v0')
    a('v_and_b32 v7, 7, v0')
    a('v_lshlrev_b32 v8, 8, v6')
    a('v_lshl_add_u32 v8, v7, 4, v8')
    a('v_cmp_gt_u32 vcc, 28, v6')
    a('v_cndmask_b32 v8, v10, v8, vcc')
    a('s_waitcnt vmcnt(4)')
    for j in range(4):
        a(f'v_min_u32 v{184+j}, -2, v{176+2*j}')
        a(f'v_min_u32 v{188+j}, -2, v{177+2*j}')
    for base in (EXCH_OFF, MEMG_OFF):
        a(f's_mov_b32 s23, {base}')
        a(f'buffer_store_dwordx4 v[184:187], v8, {SRD}, s23 offen sc1')
        a(f'buffer_store_dwordx4 v[188:191], v8, {SRD}, s23 offen offset:128 sc1')
    a.label(f'{P}_nm')
    count(P, D_CNT, 1, 4, D_R2)

FLAG_AT = 4
FLAG2_AT = 16
WP_SLEEP = 8
CT2 = 1
XPRE = 1
POLL_UNROLL = 3
POLL_EARLY = 1
PPERM = 1
CT3 = 0
FIN_SLEEP = 0
PRIME = 3
LATECHK = 0
NOT2 = 0
NBPOLL = 1
F2_W0 = 0
MLIN = 0
RCLS = 0
REBAL = 1
LAST_DIRECT = 1
V2 = 0
TA_FIRST = 1
WB_EVERY = 0
S4X = 1
UPRE = 1
ADX = 1
SRVX = 15
TLAG = 8
HU_W = -1
IDLEX = 0
NIDLE = 32
IDLEM = 0
LATE_POS = 1
V2_DBL = 3
W0_LATE = 0
W1_DELAY = 0
NB_UNROLL = 16
GST = 0
TA_LATE = 0
def worker_prep(a):
    import prep2
    ldi = [f'buffer_load_dwordx2 v[254:255], v252, {DBG}, 0 offen offset:{D_R1} sc1']
    def flag(P, mat):
        a('s_barrier')
        a('s_cmp_lg_u32 s16, 0')
        a(f's_cbranch_scc1 {P}_f')
        a('v_readfirstlane_b32 s20, v254')
        a('s_cmp_eq_u32 s20, 1')
        a(f's_cbranch_scc1 {P}_w_ok')
        poll(a, P + '_w', [f'buffer_load_dword v254, off, {DBG}, 0 offset:{D_R1} sc1'], ['v_cmp_ne_u32 vcc, 1, v254'], sleep=8, lim=16, fail=P + '_f')
        a('s_lshl_b32 s20, s17, 7')
        a(f's_add_u32 s20, s20, {PFL + (2048 if mat == "A" else 0)}')
        a('s_lshl_b32 s21, 1, s19')
        a('v_mov_b32 v248, s21')
        a('s_mov_b64 exec, 1')
        a(f'buffer_atomic_or v248, v252, {SRD}, s20 offen sc0')
        a('s_mov_b64 exec, -1')
        a(f's_mov_b32 s{38 if mat == "A" else 37}, s21')
        a.label(P + '_f')
    def flag2(P, mat):
        sr = f's{38 if mat == "A" else 37}'
        full = UM if mat == 'A' else 0x3fff
        a('v_readfirstlane_b32 s20, v248')
        a(f's_and_b32 s20, s20, {full}')
        a(f's_xor_b32 s20, s20, {sr}')
        a(f's_cmp_lg_u32 s20, {full}')
        a(f's_cselect_b32 s20, 0, {sr}')
        a(f's_mov_b32 {sr}, 0')
        a('s_cmp_eq_u32 s20, 0')
        a(f's_cbranch_scc1 {P}')
        a(f's_lshl_b32 s21, {0x10000 if mat == "A" else 1}, s17')
        a('v_mov_b32 v248, s21')
        a(f's_mov_b32 s20, {PFL + 4096}')
        a('v_lshlrev_b32 v247, 7, v0')
        a('s_mov_b64 exec, 0xff')
        a(f'buffer_atomic_or v248, v247, {SRD}, s20 offen')
        a('s_mov_b64 exec, -1')
        a.label(P)
    ldr = ldi + [f'buffer_load_dword v253, v252, {DBG}, 0 offen sc1']
    prep2.pst(a)
    a(f's_sub_u32 s35, s3, {XCD_SEL + 1}')
    a('s_and_b32 s35, s35, 7')
    a('s_lshr_b32 s36, s2, 3')
    a('s_lshl_b32 s33, s35, 5')
    a('s_add_u32 s33, s33, s36')
    a('s_mov_b32 s97, 0')
    a('s_mov_b32 s96, 0')
    a('s_mov_b32 s37, 0')
    a('s_mov_b32 s38, 0')
    a('s_mov_b32 s39, 0xffff0000')
    a('s_mov_b32 s101, -1')
    lanes(a)
    a('s_cmp_ge_u32 s33, 224')
    a('s_cbranch_scc1 wp_all')
    if TA_FIRST == 2: prep2.touch_rows(a, 'A', 's33', 253)
    prep2.touch_rows(a, 'B', 's33', 253)
    if TA_FIRST == 1: prep2.touch_rows(a, 'A', 's33', 253)
    prep2.consts(a)
    a.label('wp_B')
    prep2.decode(a, 's33')
    prep2.xunit_load(a, 's33')
    prep2.issue(a, 'B', lambda n: (a('s_mov_b32 s55, s27'), prep2.setup(a, 'AB'), a('s_mov_b32 s27, s55')), 0)
    a('s_cmp_lt_u32 s18, 4')
    a('s_cselect_b32 s34, 1, s97')
    if not TA_FIRST: prep2.touch_rows(a, 'A', 's33', 253)
    prep2.touch_cols(a, 253, 's34')
    prep2.compute(a, 'wpb', 'B', 1 if TA_FIRST else 2, pre_epi=ldr, early=prep2.xunit_store())
    evlog(a, 9010)
    a('s_cmp_lg_u32 s34, 0')
    a('s_cbranch_scc1 wp_B2')
    def hook(n):
        if n == 8 + FLAG_AT:
            a(f's_waitcnt vmcnt({n})')
            flag('wp_f1', 'B')
            prep2.pst(a)
        else:
            a(f's_waitcnt vmcnt({n - 8 - FLAG_AT})')
            flag2('wp_g1', 'B')
    prep2.issue(a, 'A', hook, (FLAG_AT, FLAG2_AT))
    a('s_branch wp_A')
    a.label('wp_B2')
    if CT2:
        a('v_lshlrev_b32 v6, 7, v1')
        code_touch_at(a, 'wp_fin', 6, 7)
        code_touch_at(a, 'wg_vo', 6, 7)
    a(f's_waitcnt vmcnt({2 * CT2})')
    flag('wp_f2', 'B')
    prep2.pst(a, 4)
    prep2.pst_flush(a)
    if XPRE:
        a('s_cmp_eq_u32 s97, 0')
        a('s_cselect_b32 s39, -1, s39')
    a('s_branch wp_fin')
    a.label('wp_A0')
    prep2.issue(a, 'A')
    prep2.setup(a, 'A')
    a.label('wp_A')
    prep2.compute(a, 'wpa', 'A', 0, pre_epi=ldr)
    a('s_waitcnt vmcnt(0)')
    flag('wp_f3', 'A')
    prep2.pst(a)
    prep2.pst_flush(a)
    evlog(a, 9011)
    a('s_cmp_eq_u32 s97, 3')
    a('s_cbranch_scc1 wk_adone')
    a.label('wp_fin')
    a('s_cmp_lg_u32 s97, 0')
    a('s_cbranch_scc1 wp_all')
    a('v_readfirstlane_b32 s20, v254')
    a('v_readfirstlane_b32 s21, v253')
    a('s_and_b32 s21, s21, 0xffe0')
    a('s_cselect_b32 s96, s20, 0')
    a('s_cmp_eq_u32 s96, 0')
    a('s_cbranch_scc1 wp_all')
    a('v_mov_b32 v250, 1')
    a(f's_mov_b32 s20, {CNT_OFF + JOBC}')
    a('s_mov_b64 exec, 1')
    a(f'buffer_atomic_add v250, v252, {SRD}, s20 offen sc0')
    a('s_mov_b64 exec, -1')
    a.label('wp_all')
    a('v_mov_b32 v252, 0x40000000')
    a('v_cmp_eq_u32 vcc, 0, v0')
    a('v_cndmask_b32 v252, v252, v0, vcc')
    a('s_mov_b32 s34, 0')
    a('s_cmp_lg_u32 s16, 0')
    a('s_cbranch_scc1 wp_w2')
    a('s_getreg_b32 s24, hwreg(HW_REG_XCC_ID)')
    a(f's_sub_u32 s24, s24, {XCD_SEL}')
    a('s_and_b32 s24, s24, 7')
    a('s_lshl_b32 s24, s24, 7')
    a(f's_add_u32 s24, s24, {PFL + 4096}')
    a('s_cmp_lg_u32 s96, 0')
    a('s_cbranch_scc1 wp_v0')
    a('s_waitcnt vmcnt(0)')
    a.label('wp_v0')
    a('s_cmp_eq_u32 s97, 0')
    a('s_cbranch_scc1 wp_v1')
    a('s_waitcnt vmcnt(0)')
    a.label('wp_v1')
    a('s_waitcnt vmcnt(1)')
    flag2('wp_g3', 'A')
    flag2('wp_g2', 'B')
    a('s_cmp_lg_u32 s96, 0')
    a('s_cbranch_scc1 wp_v_ok')
    poll(a, 'wp_v', [f'buffer_load_dwordx2 v[64:65], off, {DBG}, 0 sc1', f'buffer_load_dword v66, off, {DBG}, 0 offset:{D_R1} sc1'],
         ['v_and_b32 v68, 0xffe0, v64', 'v_min_u32 v68, v68, v66', 'v_cmp_ne_u32 vcc, 1, v68'], sleep=16, lim=REP_WAIT // 2, fail='wp_w1')
    a('v_mov_b32 v64, 32')
    a('s_cmp_eq_u32 s97, 2')
    a(f's_cselect_b32 s31, 1, {REP_WAIT}')
    a('s_cmp_eq_u32 s39, -1')
    a('s_cselect_b32 s20, 4, 0')
    a('s_add_u32 s24, s24, s20')
    poll(a, 'wp_w', [f'buffer_load_dword v66, off, {SRD}, s24 sc1', f'buffer_load_dword v67, off, {SRD}, s24 offset:4 sc1'], ['v_or_b32 v66, s39, v66', 'v_add_u32 v66, v66, v67', 'v_cmp_ne_u32 vcc, 0, v66'], sleep=WP_SLEEP, lim='s31', fail='wp_w1')
    a('s_branch wp_w2')
    a.label('wp_w1')
    a('v_readfirstlane_b32 s20, v64')
    a('v_readfirstlane_b32 s21, v65')
    a('s_and_b32 s20, s20, 0xffff')
    a('s_cmp_lt_u32 s20, 32')
    a('s_cselect_b32 s34, 2, 1')
    a('s_add_u32 s32, s32, 1')
    a('s_cmp_lt_u32 s32, 4000')
    a('s_cselect_b32 s34, s34, 3')
    a.label('wp_w2')
    uniform(a, 's34')
    a('s_cmp_lg_u32 s34, 0')
    a('s_cbranch_scc1 wp_bad')
    a('s_cmp_lg_u32 s39, -1')
    a('s_cbranch_scc1 wp_done')
    import gemm
    a('s_mov_b32 s101, 0')
    gemm.xbase(a, 's101')
    gemm.xload(a, 'sc1')
    a('s_mov_b32 s39, 0xffff0000')
    a('s_branch wp_all')
    a.label('wp_bad')
    a('s_and_b32 s39, s39, 0xffff0000')
    a('s_mov_b32 s97, 1')
    a('s_cmp_eq_u32 s34, 1')
    a('s_cbranch_scc1 wp_rep')
    a('s_cmp_eq_u32 s34, 3')
    a('s_cbranch_scc1 cA_abort')
    a('s_load_dwordx8 s[40:47], s[0:1], 72')
    a('s_load_dwordx4 s[48:51], s[0:1], 56')
    a('s_waitcnt lgkmcnt(0)')
    a('v_mov_b32 v4, 0x10001')
    a('s_mov_b32 s18, 1')
    a('s_branch ch_take')
    a.label('wp_rep')
    a('s_mov_b32 s101, -1')
    a('s_load_dwordx8 s[40:47], s[0:1], 72')
    a('s_load_dwordx4 s[48:51], s[0:1], 56')
    a('s_waitcnt vmcnt(0) lgkmcnt(0)')
    a('v_mov_b32 v4, 1')
    a(f'v_mov_b32 v5, {D_REP}')
    wg_atomic(a, 'wp_el', 's33')
    lanes(a)
    prep2.consts(a)
    a('s_and_b32 s33, s33, 511')
    a('s_and_b32 s20, s33, 255')
    a('s_cmp_ge_u32 s20, 224')
    a('s_cselect_b32 s97, 1, 2')
    a('s_cbranch_scc1 wp_all')
    prep2.decode(a, 's20')
    a('s_lshl_b32 s20, s17, 7')
    a('s_lshr_b32 s21, s33, 8')
    a('s_lshl_b32 s21, s21, 11')
    a('s_add_u32 s20, s20, s21')
    a(f's_add_u32 s20, s20, {PFL}')
    a(f'buffer_load_dword v5, off, {SRD}, s20 sc1')
    a('s_waitcnt vmcnt(0)')
    a('v_readfirstlane_b32 s34, v5')
    uniform(a, 's34')
    a('s_cmp_lt_u32 s33, 256')
    a(f's_cselect_b32 s20, 0, {0x3fff ^ UM}')
    a('s_or_b32 s34, s34, s20')
    a('s_bitcmp1_b32 s34, s19')
    a('s_cbranch_scc1 wp_rep')
    a('s_barrier')
    a('s_cmp_lt_u32 s33, 256')
    a('s_cbranch_scc1 wp_B')
    a('s_branch wp_A0')
    a.label('wp_done')

JOBS = None
NOS4D = 0
NOXT = 0
VPROBE = -1
MG_MODE = 2
MG_SW = 60
FP1 = 0
FP2 = 0
F2_PRIO = 1
B3_AT = 10
F1_W = 1
ZV = 3
ZX = 8
F1_POS = 1
STLB = 1
ENC = 0
EXIT_WB = 0
EARLY_A = 0
TA_AT = 32
X_W2 = 0
X_SLEEP = 0
NOVO = 0
PROT = 0
SELF_TOUCH = 256
def local_pick(a, P, dst, ng, base):
    a('s_getreg_b32 s33, hwreg(HW_REG_XCC_ID)')
    a(f's_sub_u32 s33, s33, {XCD_SEL + 1}')
    a('s_and_b32 s33, s33, 7')
    a(f's_min_u32 s33, s33, {ng-1}')
    a(f's_mov_b32 s35, {ng-1}')
    a.label(P + 'c')
    a('s_lshl_b32 s34, s33, 7')
    a(f's_add_u32 s34, s34, {base}')
    a('v_mov_b32 v4, 1')
    a('v_mov_b32 v5, s34')
    wg_atomic(a, P + 'e', dst, SRD)
    a(f's_cmp_lt_u32 {dst}, 16')
    a(f's_cbranch_scc1 {P}g')
    a('s_mov_b32 s33, s35')
    a('s_sub_u32 s35, s35, 1')
    a('s_max_i32 s35, s35, 0')
    a(f's_branch {P}c')
    a.label(P + 'g')
    a('s_lshl_b32 s33, s33, 4')
    a(f's_add_u32 {dst}, {dst}, s33')

def worker_all(a):
    import s4d, gemm, tok, t2srv, prep2
    JS = SRD
    JO = CNT_OFF + JOBC
    LD = 'sc1' if FUSE else ''
    N0 = 224 if FUSE else 0
    NJ = 1264
    tok.PEEK = JS
    tok.EV = EVLOG == 2
    if FUSE: worker_prep(a)
    def ask():
        lb = a.newlabel('ask')
        a('s_cmp_lg_u32 s16, 0')
        a(f's_cbranch_scc1 {lb}')
        a('v_mov_b32 v250, 1')
        a(f'v_mov_b32 v251, {JO}')
        a('s_mov_b64 exec, 1')
        a(f'buffer_atomic_add v250, v251, {JS}, 0 offen sc0')
        a('s_mov_b64 exec, -1')
        a.label(lb)
    if FUSE:
        a('s_mov_b32 s97, s39')
        a('s_cmp_lg_u32 s96, 0')
        a('s_cbranch_scc1 wk_next')
    else: a('s_mov_b32 s96, 0')
    ask()
    a('s_branch wk_next')
    a.label('wk_loop')
    a('s_waitcnt vmcnt(0) lgkmcnt(0)')
    if not FUSE:
        a('s_cmp_eq_u32 s96, 1')
        a('s_cbranch_scc1 wk_ask')
        a('s_mov_b32 s96, 1')
        staff_check(a, 'wk_ask', 0)
    if IDLEX >= 0:
        a('s_getreg_b32 s22, hwreg(HW_REG_XCC_ID)')
        a('s_and_b32 s22, s22, 15')
        a(f's_bitcmp0_b32 {(1 << IDLEX) | IDLEM}, s22')
        a('s_cbranch_scc1 wk_ni')
        a('s_cmp_ge_u32 s96, 6')
        a('s_cbranch_scc1 wk_ni')
        a('s_mov_b32 s96, 6')
        a('v_mov_b32 v4, 1')
        a(f'v_mov_b32 v5, {PFL + 4096 + 1280}')
        wg_atomic(a, 'wk_ide', 's3', SRD)
        a(f's_cmp_lt_u32 s3, {NIDLE}')
        a('s_cbranch_scc1 wk_done')
        a.label('wk_ni')
    if SRVX >= 0:
        a('s_getreg_b32 s22, hwreg(HW_REG_XCC_ID)')
        a('s_and_b32 s22, s22, 15')
        a(f's_cmp_lg_u32 s22, {SRVX}')
        a('s_cbranch_scc1 wk_ask')
        a('s_cmp_eq_u32 s96, 7')
        a('s_cbranch_scc0 wk_srv')
    a.label('wk_ask')
    a('v_readfirstlane_b32 s22, v250')
    a(f's_cmp_ge_u32 s22, {NJ}')
    a('s_cbranch_scc1 wk_next')
    ask()
    a.label('wk_next')
    evlog(a, 9005)
    a('v_mov_b32 v6, 160000')
    a('s_waitcnt vmcnt(0)')
    a('s_barrier')
    a('s_cmp_lg_u32 s16, 0')
    a('s_cbranch_scc1 wk_n1')
    a('s_mov_b64 exec, 1')
    a('ds_write_b32 v6, v250')
    a('s_mov_b64 exec, -1')
    a('s_waitcnt lgkmcnt(0)')
    a.label('wk_n1')
    a('s_barrier')
    a('ds_read_b32 v4, v6')
    a('s_waitcnt lgkmcnt(0)')
    a('v_readfirstlane_b32 s3, v4')
    evlog(a, 's3')
    a(f's_cmp_ge_u32 s3, {NJ}')
    a('s_cbranch_scc1 wk_done')
    a('v_mov_b32 v250, 0')
    a(f'v_mov_b32 v251, {PFL + 4096 + 1024}')
    a(f's_cmp_lg_u32 s3, {NJ-1}')
    a('s_cbranch_scc1 wk_nl')
    a(f'v_mov_b32 v5, {NJ}')
    a('s_mov_b64 exec, 1')
    a(f'buffer_store_dword v5, v251, {SRD}, 0 offen sc1')
    a('s_mov_b64 exec, -1')
    a.label('wk_nl')
    lanes(a)
    if FUSE:
        a('s_cmp_lt_u32 s3, 112')
        a('s_cbranch_scc1 wk_n2')
        a('s_cmp_eq_u32 s97, 0')
        a('s_cbranch_scc1 wk_n2')
        evlog(a, 9021)
        a('v_mov_b32 v250, s3')
        for x in ('s96, 1', 's97, 1', 's39, 0', 's37, 0', 's38, 0', 's32, 0'): a('s_mov_b32 ' + x)
        a('s_branch wp_all')
        a.label('wk_n2')
    if SRVX >= 0:
        a('s_sub_u32 s20, s3, 288')
        a('s_cmp_ge_u32 s20, 352')
        a('s_cbranch_scc1 wk_nr')
        a('s_cmp_ge_u32 s20, 320')
        a('s_cbranch_scc1 wk_srv')
        a('s_add_u32 s3, s3, 32')
        a.label('wk_nr')
    a('s_cmp_ge_u32 s3, 752')
    a('s_cbranch_scc1 wk_tok')
    a('s_cmp_ge_u32 s3, 640')
    a('s_cbranch_scc1 wk_s4d')
    a('s_cmp_ge_u32 s3, 448')
    a('s_cbranch_scc1 wk_full')
    a('s_cmp_ge_u32 s3, 320')
    a('s_cbranch_scc1 wk_adef')
    a('s_cmp_ge_u32 s3, 288')
    a('s_cbranch_scc1 wk_srv')
    a('s_and_b32 s17, s3, 15')
    a('s_add_u32 s17, s17, 16')
    a('s_cmp_ge_u32 s3, 224')
    a('s_cbranch_scc1 wk_half')
    a('s_cmp_ge_u32 s3, 112')
    a('s_cselect_b32 s18, 1, 0')
    a('s_cselect_b32 s20, 112, 0')
    a('s_sub_u32 s34, s3, s20')
    a('s_lshr_b32 s34, s34, 4')
    a('s_lshl_b32 s34, s34, 1')
    a('s_add_u32 s35, s34, 2')
    a('s_branch wk_gemm')
    a.label('wk_adef')
    a('s_mov_b32 s101, -1')
    a('s_load_dwordx8 s[40:47], s[0:1], 72')
    a('s_sub_u32 s20, s3, 320')
    if ADX:
        local_pick(a, 'wk_ad', 's20', 8, CNT_OFF + JOBC + 1024)
        lanes(a)
    a('s_lshr_b32 s33, s20, 2')
    a('s_mul_i32 s33, s33, 7')
    a('s_and_b32 s20, s20, 3')
    a('s_add_u32 s33, s33, s20')
    a('s_mov_b32 s97, 3')
    a('v_mov_b32 v252, 0x40000000')
    a('v_cmp_eq_u32 vcc, 0, v0')
    a('v_cndmask_b32 v252, v252, v0, vcc')
    prep2.consts(a)
    prep2.decode(a, 's33')
    a('s_waitcnt lgkmcnt(0)')
    a('s_barrier')
    a('s_branch wp_A0')
    a.label('wk_adone')
    a('s_mov_b32 s97, 0')
    a('s_branch wk_loop')
    a.label('wk_half')
    a('s_sub_u32 s20, s3, 224')
    a('s_lshr_b32 s18, s20, 5')
    a('s_add_u32 s18, s18, 2')
    a('s_bitcmp1_b32 s20, 4')
    a('s_cselect_b32 s34, 7, 0')
    a('s_add_u32 s35, s34, 7')
    a('s_branch wk_gemm')
    a.label('wk_full')
    a('s_sub_u32 s20, s3, 384')
    a('s_and_b32 s17, s20, 15')
    a('s_lshr_b32 s18, s20, 4')
    a('s_mov_b32 s34, 0')
    a('s_mov_b32 s35, 14')
    a('s_cmp_lt_u32 s18, 8')
    a('s_cselect_b32 s21, 16, 0')
    a('s_add_u32 s17, s17, s21')
    a('s_and_b32 s18, s18, 7')
    a('s_cmp_ge_u32 s17, 16')
    a('s_cbranch_scc1 wk_gemm')
    if UPRE:
        from prep import srd
        a('s_load_dwordx8 s[40:47], s[0:1], 0')
        a('s_load_dwordx2 s[48:49], s[0:1], 32')
        a('s_sub_u32 s21, s3, 512')
        a('v_min_u32 v12, 111, v0')
        a('v_lshlrev_b32 v12, 7, v12')
        a('v_min_u32 v13, 13, v0')
        a('v_lshlrev_b32 v13, 7, v13')
        a('s_mul_i32 s22, s21, 14336')
        a('s_mul_i32 s21, s21, 1792')
        a('s_waitcnt lgkmcnt(0)')
        a('s_cmp_ge_u32 s16, 2')
        a('s_cbranch_scc1 wk_up')
        srd(a, 60, 40, 41, 2048 * 448 * 2)
        a('buffer_load_dword v14, v12, s[60:63], s22 offen')
        for k in range(4):
            srd(a, 60, 42 + 2 * k, 43 + 2 * k, 448 * 256 * 2)
            a('buffer_load_dword v14, v13, s[60:63], s21 offen')
        a.label('wk_up')
    a_wait(a, 'wk_aw', range(7))
    a.label('wk_gemm')
    gemm.gemm_body(a, 'wg', 's18', 's17', st='sc1', signal=True, ld=LD, ev=(lambda t: evlog(a, t)) if GST else None)
    a('s_branch wk_loop')
    a.label('wk_srv')
    if SRVX >= 0:
        a('s_mov_b32 s96, 7')
        a('v_mov_b32 v4, 1')
        a(f'v_mov_b32 v5, {PFL + 4096 + 1152}')
        wg_atomic(a, 'wk_sve', 's3', SRD)
        lanes(a)
        a('v_mov_b32 v250, 0')
        a('s_cmp_ge_u32 s3, 32')
        a('s_cbranch_scc1 wk_ask')
    a('s_and_b32 s18, s3, 15')
    a('s_lshr_b32 s19, s3, 4')
    a('s_and_b32 s19, s19, 1')
    t2srv.t2srv_body(a, 'ws', 's18', 's19', 'cA_abort', ld=LD)
    a('v_mov_b32 v250, 0')
    a('s_branch wk_loop')
    a.label('wk_s4d')
    a('s_sub_u32 s3, s3, 640')
    if S4X:
        local_pick(a, 'wk_s4', 's3', 7, CNT_OFF + JOBC + 128)
    if not NOS4D:
        s4d.s4d_setup(a)
        s4d.s4d_item(a, 'wk', 's3')
    a('s_branch wk_loop')
    a.label('wk_tok')
    a('s_sub_u32 s3, s3, 752')
    a('s_cmp_ge_u32 s3, 512')
    a('s_cbranch_scc1 wk_done')
    a('s_and_b32 s18, s3, 3')
    if TLAG:
        a('s_lshr_b32 s17, s3, 2')
        a(f's_cmp_lt_u32 s17, {TLAG}')
        a('s_cbranch_scc1 wk_tokp')
        a(f's_sub_u32 s20, s17, {TLAG}')
        a('s_sub_u32 s17, s17, 64')
        a(f's_cmp_ge_u32 s20, {2 * (64 - TLAG)}')
        a('s_cbranch_scc1 wk_toko')
        a('s_lshr_b32 s17, s20, 1')
        a('s_bitcmp0_b32 s20, 0')
        a('s_cbranch_scc1 wk_toko')
        a(f's_add_u32 s17, s17, {TLAG}')
        a.label('wk_tokp')
    else:
        a('s_lshr_b32 s17, s3, 3')
        a('s_bitcmp1_b32 s3, 2')
        a('s_cbranch_scc1 wk_toko')
    tok.tokp_body(a, 's17', 's18', ld='sc1', st='sc1', sync='wp', ldx=LD)
    a('s_branch wk_loop')
    a.label('wk_toko')
    a('s_load_dwordx2 s[36:37], s[0:1], 112')
    a('s_waitcnt lgkmcnt(0)')
    a(f's_mov_b32 s92, s36\ns_and_b32 s93, s37, 0xffff\ns_mov_b32 s94, {2048*896*2}\ns_mov_b32 s95, 0x20000')
    tok.toko_body(a, 's17', 's18', ld='sc1', sync='wo', OUT='s[92:95]')
    a('v_readfirstlane_b32 s22, v250')
    a(f's_cmp_ge_u32 s22, {NJ}')
    a('s_cbranch_scc1 wk_done')
    a('s_branch wk_loop')
    a.label('wp_abort')
    a.label('wo_abort')
    a('s_branch cA_abort')
    a.label('wk_done')
    if DIAG:
        a('s_cmp_lg_u32 s16, 0')
        a('s_cbranch_scc1 ch_end')
        a('s_waitcnt vmcnt(0)')
        a('s_memrealtime s[98:99]')
        a('s_waitcnt lgkmcnt(0)')
        a('v_mov_b32 v37, s98')
        a('s_mov_b64 exec, 1')
        a(f'buffer_atomic_umax v37, off, {DBG}, 0 offset:192')
        a('s_mov_b64 exec, -1')
    if EXIT_WB:
        a('s_cmp_lg_u32 s16, 0')
        a('s_cbranch_scc1 ch_end')
        a('buffer_wbl2 sc1')
    evlog(a, 9020)

def gen_chain_kernel(name='main_kernel', worker=None):
    a = Asm()
    a.raw(kernel_header(name))
    a('s_cmp_ge_u32 s2, 256')
    a('s_cbranch_scc1 ch_end')
    if DIAG: a('s_memrealtime s[94:95]')
    a('s_load_dwordx2 s[4:5], s[0:1], 120')
    a('s_load_dwordx2 s[6:7], s[0:1], 128')
    a('s_load_dwordx8 s[40:47], s[0:1], 72')
    a('s_load_dwordx4 s[48:51], s[0:1], 56')
    a('s_mov_b32 s32, 0')
    a('s_getreg_b32 s3, hwreg(HW_REG_XCC_ID)')
    a('s_and_b32 s3, s3, 15')
    a(f's_cmp_lg_u32 s3, {XCD_SEL}')
    a('s_cbranch_scc1 ch_pf')
    a('s_cmp_lt_u32 s2, 224')
    a('s_cbranch_scc1 ch_npf')
    a.label('ch_pf')
    code_prefetch(a, name, 'ch_end', 150000, 60)
    a.label('ch_npf')
    a('v_lshrrev_b32 v1, 6, v0')
    a('v_readfirstlane_b32 s16, v1')
    a('s_waitcnt lgkmcnt(0)')
    a('s_mov_b32 s8, s6\ns_and_b32 s9, s7, 0xffff\ns_mov_b32 s10, 0x10000000\ns_mov_b32 s11, 0x20000')
    a('s_mov_b32 s12, s4\ns_and_b32 s13, s5, 0xffff\ns_mov_b32 s14, 256\ns_mov_b32 s15, 0x20000')
    if EVLOG:
        a('s_lshl_b32 s100, s2, 2')
        a('s_add_u32 s100, s100, s16')
        a(f's_lshl_b32 s100, s100, {8 if EVLOG == 1 else 9}')
        a(f's_add_u32 s100, s100, {EV_OFF}')
    evlog(a, 9000)
    if FUSE:
        a('v_mov_b32 v252, 0x40000000')
        a('v_cmp_eq_u32 vcc, 0, v0')
        a('v_cndmask_b32 v252, v252, v0, vcc')
    a(f's_cmp_lg_u32 s3, {XCD_SEL}')
    a('s_cbranch_scc1 ch_worker')
    import prep2
    a('s_mov_b32 s18, 0')
    a('v_mov_b32 v249, 1')
    a('s_mov_b64 exec, 1')
    a(f'buffer_atomic_add v249, v252, {DBG}, 0 offen sc0')
    a('s_mov_b64 exec, -1')
    lanes(a)
    a('s_lshr_b32 s33, s2, 3')
    prep2.touch_w(a, 's33', 32, ((42, 256),))
    a('s_waitcnt vmcnt(2)')
    a('v_readfirstlane_b32 s17, v249')
    uniform(a, 's17')
    a('s_branch ch_got')
    a.label('ch_take')
    a('v_mov_b32 v5, 0')
    wg_atomic(a, 'ch_el', 's17')
    a.label('ch_got')
    a('s_and_b32 s17, s17, 0xffff')
    a('s_cmp_lt_u32 s17, 32')
    a('s_cbranch_scc1 ch_role')
    a('s_cmp_eq_u32 s18, 0')
    a('s_cbranch_scc1 ch_worker')
    lanes(a)
    a('s_branch wp_all')
    a.label('ch_role')
    if FUSE:
        import prep2
        lanes(a)
        a('s_cmp_lt_u32 s17, 16')
        a('s_cbranch_scc1 ch_self')
        a(f's_cmp_lt_u32 s17, {32 - NINIT}')
        a('s_cbranch_scc1 ch_tch')
        a(f's_sub_u32 s33, s17, {32 - NINIT}')
        init_job(a, 'ch_ij', 's33')
        a('s_branch ch_role2')
        a.label('ch_tch')
        a('s_sub_u32 s33, s17, 16')
        if SELF_TOUCH: prep2.touch_w(a, 's33', 16 - NINIT, ((40, SELF_TOUCH),))
        a('s_branch ch_role2')
        a.label('ch_self')
        st1 = [f'buffer_load_dword v13, off, {DBG}, 0 offset:{D_R1} sc1', f'buffer_load_dword v9, off, {DBG}, 0 sc1']
        st2 = ['v_readfirstlane_b32 s86, v13', 's_lshl_b32 s22, s17, 7', f's_add_u32 s22, s22, {PFL + 2048}', f's_mov_b32 s23, {PFL + 4096}',
               f'buffer_load_dword v13, off, {SRD}, s22 sc1', f'buffer_load_dwordx2 v[10:11], off, {SRD}, s23 sc1']
        pf1 = st2[:3] + [f'buffer_load_dword v5, off, {SRD}, s22 sc1']
        pf2 = [['s_waitcnt vmcnt(0)', 'v_readfirstlane_b32 s22, v5', 'v_min_u32 v8, 7040, v6', f's_mul_i32 s24, s17, {CUW_B}', f's_mul_i32 s23, s16, {3*TILE_B}', 's_add_u32 s24, s24, s23',
                f's_add_u32 s24, s24, {WF_A + 16*TILE_B}', f's_and_b32 s22, s22, {UM}', 's_mul_i32 s22, s22, s86', f's_cmp_eq_u32 s22, {UM}', 's_cselect_b32 s24, s24, 0x40000000']]
        pf2 += [[f'buffer_load_dword v5, v8, {SRD}, s24 offen sc1', 's_add_u32 s24, s24, 7168'] for k in range(6)]
        prep2.selfprep(a, (lambda t: evlog(a, t)) if EVLOG else None, st1, st2, pf1, pf2)
        a('v_readfirstlane_b32 s84, v13')
        a('v_readfirstlane_b32 s85, v10')
        a('v_readfirstlane_b32 s22, v11')
        a('s_and_b32 s86, s86, s22')
        a('s_cmp_eq_u32 s86, 1')
        a('s_cselect_b32 s84, s84, 0')
        evlog(a, 9001)
        a('v_and_b32 v10, 0xffe0, v9')
        a('v_cmp_eq_u32 vcc, 0, v10')
        a('s_cbranch_vccz ch_md_ok')
        a.label('ch_role2')
    poll(a, 'ch_md', [f'buffer_load_dword v9, off, {DBG}, 0 sc1'], ['v_and_b32 v10, 0xffe0, v9', 'v_cmp_eq_u32 vcc, 0, v10'], sleep=4, lim=SPIN_LIMIT * 4, fail='ch_end')
    a('v_readfirstlane_b32 s88, v9')
    a('s_lshr_b32 s88, s88, 16')
    lane_consts(a)
    a('s_mov_b32 s19, 0')
    a('s_mov_b32 s18, 1')
    a(f's_mov_b32 s20, {EXCH_OFF}')
    a(f's_mov_b32 s21, {EXCH_OFF + EXCH_B}')
    a(f's_mov_b32 s23, {EXCH_OFF + 4096}')
    a('s_lshr_b32 s89, s17, 4')
    a('s_lshl_b32 s89, s89, 2')
    a('s_add_u32 s89, s89, s16')
    a('s_and_b32 s17, s17, 15')
    for p in range(8):
        a(f's_cmp_eq_u32 s89, {p}')
        a(f's_cbranch_scc1 ch_init{p}')
    a('s_branch ch_end')
    for p in range(8):
        a.label(f'ch_init{p}')
        if p < 4: init_score(a, p)
        else: init_value(a, p - 4)
        a('s_waitcnt vmcnt(1) lgkmcnt(0)' if p == 7 else 's_waitcnt vmcnt(0) lgkmcnt(0)')
        evlog(a, 9003)
        if EVLOG or HDBG: a('v_mov_b32 v36, 0\nv_mov_b32 v37, 0')
        if DIAG: a('s_memtime s[90:91]')
        a('s_mov_b32 s31, 0')
        a('s_cmp_lg_u32 s88, 0')
        role = 'sc' if p < 4 else 'va'
        a(f's_cbranch_scc1 cB_{role}{p & 3}_loop')
        a(f's_branch cA_{role}{p & 3}_loop')
    for tag, st in (('cA', ''), ('cB', 'sc1')):
        for w in range(4): gen_score(a, w, st, tag)
        for w in range(4): gen_value(a, w, st, tag)
        a.label(f'{tag}_abort')
        a('v_mov_b32 v4, 0xdead')
        a('v_mov_b32 v5, 16')
        a(f'buffer_store_dword v4, v5, {DBG}, 0 offen')
        a('s_branch ch_end')
        a.label(f'{tag}_done')
        evlog(a, 9004)
        if DIAG:
            a('s_memtime s[60:61]')
            a('s_waitcnt lgkmcnt(0)')
            a('s_sub_u32 s60, s60, s90')
            a('v_mov_b32 v4, s60')
            a('s_cmp_eq_u32 s89, 3')
            a('s_cselect_b32 s22, 8, 0x1000')
            a('v_mov_b32 v5, s22')
            a(f'buffer_store_dword v4, v5, {DBG}, 0 offen')
            a('s_memrealtime s[60:61]')
            a('s_sub_u32 s86, s86, s94')
            a('s_waitcnt lgkmcnt(0)')
            a('s_sub_u32 s60, s60, s94')
            a('v_mov_b32 v6, s86')
            a('v_mov_b32 v7, s60')
            a(f'buffer_store_dwordx2 v[6:7], v5, {DBG}, 0 offen offset:16')
            a('v_mov_b32 v8, s94')
            a(f'buffer_store_dword v8, v5, {DBG}, 0 offen offset:44')
            a('s_cmp_eq_u32 s31, 0')
            a(f's_cbranch_scc1 {tag}_dz')
            a('s_mov_b64 exec, 1')
            for k in range(4):
                a(f's_bfe_u32 s22, s31, {(8 << 16) | (8 * k)}')
                a(f'v_mov_b32 v{4+k}, s22')
                a(f'v_mov_b32 v10, {32 + 4*k}')
                a(f'buffer_atomic_add v{4+k}, v10, {DBG}, 0 offen')
                a.nop(2)
            a('s_mov_b64 exec, -1')
            a.label(f'{tag}_dz')
        if ENC:
            a(f's_cmp_lg_u32 s89, {ENCP}')
            a('s_cbranch_scc1 ch_end')
            a('s_cmp_lg_u32 s17, 5')
            a('s_cbranch_scc1 ch_end')
            a('s_add_u32 s62, s94, 20000')
            if ENC == 6:
                if ENCT: a('s_sub_u32 s86, s92, s94')
                a('s_mul_i32 s86, s86, 10')
                a('s_add_u32 s62, s62, s86')
            if ENC == 4:
                a('s_mov_b32 s22, 0x7000000')
                a(f'buffer_load_dword v8, off, {SRD}, s22 sc1')
                a('s_waitcnt vmcnt(0)')
                a('v_readfirstlane_b32 s62, v8')
                a('s_sub_u32 s63, s94, s62')
                a('s_min_u32 s63, s63, 5000')
                a('s_sub_u32 s62, s94, s63')
                a('s_add_u32 s62, s62, 20000')
            if ENC == 5:
                for _ in range(14): a('s_sleep 127')
                a(f'buffer_load_dword v8, off, {DBG}, 0 offset:192 sc1')
                a('s_waitcnt vmcnt(0)')
                a('v_readfirstlane_b32 s62, v8')
                a('s_add_u32 s62, s62, 20000')
            if ENC == 2: a('s_add_u32 s62, s62, s86')
            if ENC == 3: a('s_add_u32 s62, s62, s60')
            a.label(f'{tag}_enc')
            a('s_memrealtime s[64:65]')
            a('s_waitcnt lgkmcnt(0)')
            a('s_sub_u32 s64, s64, s62')
            a('s_cmp_lt_i32 s64, 0')
            a(f's_cbranch_scc1 {tag}_enc')
        stamp_calib(a, f'{tag}_cal')
        a('s_branch ch_end')
    a.label('ch_worker')
    worker_all(a)
    a.label('ch_end')
    a('s_endpgm')
    return a
```

```python
from asmlib import *
from layout import *
WS = 's[8:11]'
PB = 28 * KB

def xbase(a, rb_s):
    a(f's_lshl_b32 s20, {rb_s}, 4')
    a('s_lshr_b32 s21, s2, 3')
    a('s_add_u32 s21, s21, s16')
    a('s_and_b32 s21, s21, 3')
    a('s_lshl_b32 s21, s21, 2')
    a('s_add_u32 s20, s20, s21')
    a(f's_mul_i32 s21, s20, {14*KB}')
    a(f's_add_u32 s21, s21, {XF_OFF}')

def xload(a, ld):
    for f in range(56):
        if f % 4 == 0: a(f's_add_u32 s22, s21, {f*1024}')
        if f == 40: a('s_waitcnt vmcnt(40)')
        a(f'buffer_load_dwordx4 a[{4*f}:{4*f+3}], v2, {WS}, s22 offen offset:{(f & 3)*1024} {ld}')

def gemm_body(a, P, rb_s, cg_s, st='', signal=False, ld='', ev=None):
    xbase(a, rb_s)
    a(f's_mul_i32 s23, {cg_s}, {CUW_B}')
    a('s_and_b32 s22, s16, 1')
    a('s_mul_i32 s22, s22, 7168')
    a('s_add_u32 s23, s23, s22')
    a(f's_add_u32 s23, s23, {WF_A}')
    a('s_lshr_b32 s22, s16, 1')
    a(f's_mul_i32 s22, s22, {TILE_B}')
    a('s_add_u32 s23, s23, s22')
    a('s_mul_i32 s27, s16, 7168')
    a('s_lshr_b32 s28, s20, 1')
    a(f's_cmp_lt_u32 {cg_s}, 16')
    a(f's_cbranch_scc0 {P}_vo')
    for path in ('f', 'vo'):
        isF = path == 'f'
        L = lambda n: f'{P}_{path}_{n}'
        if not isF: a.label(f'{P}_vo')
        if isF: a('s_add_u32 s23, s23, s22')
        def dma(jreg, bufreg, a=a):
            if isF:
                a(f's_lshr_b32 s24, {jreg}, 1')
                a('s_lshl_b32 s24, s24, 2')
                a(f's_and_b32 s25, {jreg}, 1')
                a('s_add_u32 s24, s24, s25')
            else:
                a(f's_lshl_b32 s24, {jreg}, 1')
            a(f's_mul_i32 s24, s24, {TILE_B}')
            a('s_add_u32 s24, s24, s23')
            a(f's_add_u32 m0, {bufreg}, s27')
            for f in range(7):
                if f == 4:
                    a('s_add_u32 m0, m0, 4096')
                    a('s_add_u32 s24, s24, 4096')
                a(f'buffer_load_dwordx4 v2, {WS}, s24 offen offset:{(f & 3)*1024} {ld} lds')
        if isF:
            a('s_lshl_b32 s29, s28, 4')
            a(f's_add_u32 s29, s29, {cg_s}')
            a(f's_mul_i32 s29, s29, {GSH_B}')
            a(f's_add_u32 s29, s29, {F_OFF}')
        else:
            a(f's_sub_u32 s29, {cg_s}, 16')
            a(f's_mul_i32 s29, s29, {VO_SV}')
            a(f's_mul_i32 s24, s28, {VO_SS}')
            a('s_add_u32 s29, s29, s24')
            a(f's_add_u32 s29, s29, {VO_OFF}')
            a('v_lshlrev_b32 v6, 4, v3')
            a('v_mul_u32_u24 v7, 12, v3')
            a('v_add_u32 v7, 48, v7')
        a('s_mov_b32 s31, 0')
        dma('s34', 's31')
        a('s_sub_u32 s36, s35, 1'); a('s_add_u32 s30, s34, 1'); a('s_min_u32 s30, s30, s36'); a(f's_mov_b32 s31, {PB}')
        dma('s30', 's31')
        a('s_mov_b32 s19, s34')
        a('s_mov_b32 s32, 0')
        a(f's_mov_b32 s33, {2*PB}')
        if ev: ev(9015)
        a(f's_cmp_eq_u32 {rb_s}, s101')
        a(f's_cbranch_scc1 {L("hx")}')
        xload(a, ld)
        a.label(L('hx'))
        a('s_mov_b32 s101, -1')
        a('s_waitcnt vmcnt(0)')
        if ev: ev(9016)
        a('s_barrier')
        FR = 8; NF = 7; PF = 5; ACCS = [40, 96]; O = 72
        order = [(kk, tau) for kk in range(14) for tau in range(2)]
        def rd(i, va):
            kk, tau = order[i]; r = FR + 4 * (i % NF)
            return f'ds_read_b128 v[{r}:{r+3}], v{va} offset:{(tau*14 + kk)*1024}'
        class Cap:
            def __init__(s_): s_.l = []
            def __call__(s_, x): s_.l.append(x)
        def epi(ACC):
            o_ = []
            if isF:
                o_ += ['s_lshl_b32 s42, s40, 10', 's_add_u32 s42, s42, s41']
                for j in range(4):
                    o = O + 4 * j
                    for tau in range(2):
                        d = ACC + 16 * tau + 4 * j
                        o_ += [f'v_cvt_pk_bf16_f32 v{o+2*tau}, v{d}, v{d+1}', f'v_cvt_pk_bf16_f32 v{o+2*tau+1}, v{d+2}, v{d+3}']
                    o_ += [f's_add_u32 s43, s42, {(j >> 1) * 16 * GSH_B + (j & 1) * 14 * 1024}', f'buffer_store_dwordx4 v[{o}:{o+3}], v2, {WS}, s43 offen {st}']
            else:
                o_ += [f's_add_u32 s43, s41, {VO_SS}']
                for tau in range(2):
                    o_ += ['s_lshl_b32 s42, s40, 5', f's_add_u32 s42, s42, {16*tau}', 'v_add_u32 v88, s42, v4', 'v_mul_u32_u24 v89, 2341, v88', 'v_lshrrev_b32 v89, 16, v89',
                           'v_mul_u32_u24 v92, 28, v89', 'v_sub_u32 v92, v88, v92', 'v_cmp_gt_u32 vcc, 16, v92', 'v_mul_u32_u24 v89, 84, v89',
                           'v_cndmask_b32 v92, v7, v6, vcc', 'v_add3_u32 v88, v88, v89, v92', f'v_lshlrev_b32 v{90+tau}, 4, v88']
                    for sg in range(2):
                        o = O + 8 * tau + 4 * sg; d = ACC + 16 * tau + 8 * sg
                        o_ += [f'v_cvt_pk_bf16_f32 v{o+c}, v{d+c}, v{d+4+c}' for c in range(4)]
                        o_.append(f'buffer_store_dwordx4 v[{o}:{o+3}], v{90+tau}, {WS}, {"s43" if sg else "s41"} offen {st}')
            return o_
        a('s_mov_b32 s40, 0')
        a('s_mov_b32 s41, 0x40000000')
        a('v_mov_b32 v5, v2')
        for i in range(PF): a(rd(i, 5))
        a(f's_waitcnt lgkmcnt({PF-1})')
        a.raw('.p2align 6')
        a.label(L('loop'))
        for half in range(2):
            ACC = ACCS[half]; cur, nxt = (5, 128) if half == 0 else (128, 5)
            side = epi(ACCS[1 - half])
            c = Cap(); dma('s30', 's33', c)
            k0 = next(k for k, x in enumerate(c.l) if 'm0' in x)
            dl = ['s_add_u32 s30, s19, 2'] + c.l[:k0] + ['s_cmp_lt_u32 s30, s35', 's_cselect_b32 s24, s24, 0x40000000'] + c.l[k0:]
            dl += [f's_add_u32 s33, s33, {PB}', f's_cmp_eq_u32 s33, {4*PB}', 's_cselect_b32 s33, 0, s33',
                   f's_add_u32 s32, s32, {PB}', f's_cmp_eq_u32 s32, {4*PB}', 's_cselect_b32 s32, 0, s32', f'v_add_u32 v{nxt}, s32, v2']
            n = 0; gapd = 0
            for i, (kk, tau) in enumerate(order):
                r = FR + 4 * (i % NF)
                for j in range(4):
                    d = ACC + 16 * tau + 4 * j; x = (j * 14 + kk) * 4
                    cc = '0' if kk == 0 else f'v[{d}:{d+3}]'
                    if isF: a(f'v_mfma_f32_16x16x32_bf16 v[{d}:{d+3}], v[{r}:{r+3}], a[{x}:{x+3}], {cc}')
                    else: a(f'v_mfma_f32_16x16x32_bf16 v[{d}:{d+3}], a[{x}:{x+3}], v[{r}:{r+3}], {cc}')
                    if j == 0:
                        if i + PF == 28:
                            assert not side and not dl
                            a('s_waitcnt vmcnt(11)')
                            a('s_barrier')
                        a(rd(i + PF, cur) if i + PF < 28 else rd(i + PF - 28, nxt))
                    if j == 3: a(f's_waitcnt lgkmcnt({PF-1})')
                    if n >= 3 and j != 0:
                        if side:
                            a(side.pop(0))
                            if side and j in (1, 2) and not side[0].startswith('buffer'): a(side.pop(0))
                        elif dl:
                            if gapd: gapd -= 1
                            else:
                                while dl:
                                    x_ = dl.pop(0); a(x_)
                                    if x_.startswith('buffer'):
                                        gapd = 3; break
                                    if dl and dl[0].startswith('buffer') is False and x_.startswith(('s_mul', 's_cselect')): break
                    n += 1
            a('s_mov_b32 s40, s19')
            a('s_mov_b32 s41, s29')
            a('s_add_u32 s19, s19, 1')
            a('s_cmp_lt_u32 s19, s35')
            if half == 0: a(f's_cbranch_scc0 {L("e0")}')
            else: a(f's_cbranch_scc1 {L("loop")}')
        a.nop(4)
        for x in epi(ACCS[1]): a(x)
        a(f's_branch {P}_done')
        a.label(L('e0'))
        a.nop(8)
        for x in epi(ACCS[0]): a(x)
        a(f's_branch {P}_done')
    a.label(f'{P}_done')
    if ev: ev(9017)
    if signal:
        a(f's_lshl_b32 s20, {rb_s}, 4')
        a(f's_and_b32 s21, {cg_s}, 15')
        a('s_add_u32 s20, s20, s21')
        a('s_lshl_b32 s20, s20, 7')
        a(f's_cmp_lt_u32 {cg_s}, 16')
        a(f's_cselect_b32 s21, {FC}, {VOC}')
        a('s_add_u32 s20, s20, s21')
        a(f's_add_u32 s20, s20, {CNT_OFF}')
        a('s_sub_u32 s21, s35, s34')
        a('s_lshl_b32 s21, s21, 2')
        a('v_mov_b32 v5, s21')
        a('v_mov_b32 v6, 0')
        a('s_waitcnt vmcnt(0) lgkmcnt(0)')
        a('s_barrier')
        a('s_cmp_lg_u32 s16, 0')
        a(f's_cbranch_scc1 {P}_sg')
        a('s_mov_b64 exec, 1')
        a(f'buffer_atomic_add v5, v6, {WS}, s20 offen')
        a('s_mov_b64 exec, -1')
        a.label(f'{P}_sg')

def gen_gemm(name='gemm_kernel'):
    a = Asm(); a.raw(kernel_header(name))
    a('s_cmp_ge_u32 s2, 256')
    a('s_cbranch_scc1 gm_end')
    a('s_load_dwordx2 s[6:7], s[0:1], 128')
    a('v_lshrrev_b32 v1, 6, v0')
    a('v_readfirstlane_b32 s16, v1')
    a('v_and_b32 v1, 63, v0')
    a('v_lshlrev_b32 v2, 4, v1')
    a('v_lshrrev_b32 v3, 4, v1')
    a('v_and_b32 v4, 15, v1')
    a('s_waitcnt lgkmcnt(0)')
    a('s_mov_b32 s8, s6\ns_and_b32 s9, s7, 0xffff\ns_mov_b32 s10, 0x10000000\ns_mov_b32 s11, 0x20000')
    a('s_and_b32 s17, s2, 7')
    a('s_lshl_b32 s17, s17, 2')
    a('s_lshr_b32 s18, s2, 6')
    a('s_add_u32 s17, s17, s18')
    a('s_lshr_b32 s18, s2, 3')
    a('s_and_b32 s18, s18, 7')
    a('s_mov_b32 s34, 0\ns_mov_b32 s35, 14')
    gemm_body(a, 'gm', 's18', 's17')
    a.label('gm_end')
    a('s_endpgm')
    return a

if __name__ == '__main__':
    import sys
    a = gen_gemm()
    out = ['; @launch kernel=gemm_kernel grid=(256,1,1) block=(256,1,1) lds=86016',
           '.amdgcn_target "amdgcn-amd-amdhsa--gfx950"', '.text', a.text(), '.section .rodata,"a"', kernel_desc('gemm_kernel', 352, 128)]
    open(sys.argv[1], 'w').write('\n'.join(out) + '\n')
    print('instructions', a.count)
```

```python
import numpy as np
KB = 1024
UNIT = 2048
TILE_B = 7 * UNIT
CUW_B = 28 * TILE_B
GSH_B = 28 * KB
EXCH_OFF = 0
EXCH_B = 17 * KB + 256
MEMX = 0
PM = 7 * KB
PX = 9 * KB
F1 = 17 * KB
F2 = 17 * KB + 128
MEMG_OFF = 64 * KB
CNT_OFF = MEMG_OFF + 64 * 7 * KB
VOC = 0; FC = 16 * KB; PTC = 32 * KB; T2F = 40 * KB; AC = 56 * KB + 512; JOBC = AC + 6144; CNT_B = AC + 8192
PFL = CNT_OFF + AC
XF_OFF = CNT_OFF + 128 * KB
VO_OFF = XF_OFF + 128 * 14 * KB
VO_SV, VO_SS = GSH_B, 16 * GSH_B
assert VO_OFF + 64 * VO_SS <= 32 * KB * KB
WF_A = 32 * KB * KB
WF_B = WF_A + 16 * CUW_B
F_OFF = G_OFF = WF_B + 16 * CUW_B
XM_OFF = F_OFF + 64 * 16 * GSH_B
T2_OFF = XM_OFF + 128 * 14 * KB
PT_OFF = T2_OFF + 65 * 16 * 8 * KB
PT_B = 20 * KB
KS_OFF = EXCH_END = PT_OFF + 128 * PT_B
POISON = 0xFFFFFFFF

def memcol(ks, gA, half, s):
    return 64 * ks + 16 * gA + 4 * (s >> 1) + 2 * half + (s & 1)
def acol(kappa, q, n):
    g, r = n >> 2, n & 3
    return memcol(kappa, g, q & 1, 4 * (q >> 1) + r)
def vcol(v, cl):
    return 16 * v + cl if cl < 16 else 256 + 12 * v + cl - 16
def tokslot(g, s):
    return 16 * (s & 1) + 4 * g + (s >> 1)

def f2bf_bits(f):
    u = np.ascontiguousarray(f, dtype=np.float32).view(np.uint32)
    return ((u + 0x7FFF + ((u >> 16) & 1)) >> 16).astype(np.uint16)

def build_wfrag(W, ncols):
    out = np.zeros((28, 7, 2, 64, 8), np.uint16)
    lane = np.arange(64); g = lane >> 4; n = lane & 15
    for t in range(28):
        cols = np.asarray(ncols[t])[n]
        for ks in range(7):
            for hb in range(2):
                k = 64 * ks + 32 * hb + 8 * g[:, None] + np.arange(8)[None, :]
                out[t, ks, hb] = W[k, cols[:, None]]
    return out
def build_WFA(ATb):
    ncols = [[acol(t >> 2, t & 3, n) for n in range(16)] for t in range(28)]
    return np.stack([build_wfrag(ATb[h], ncols) for h in range(16)])
def build_WFB(Bb):
    Ball = np.concatenate([Bb[h] for h in range(16)], 1)
    res = []
    for v in range(16):
        ncols = [[((16 * t + n) // 28) * 448 + vcol(v, (16 * t + n) % 28) for n in range(16)] for t in range(28)]
        res.append(build_wfrag(Ball, ncols))
    return np.stack(res)
_Xcols = np.array([[[[memcol(ks, g, half, s) for s in range(8)] for g in range(4)] for half in range(2)] for ks in range(7)])
def build_M_order(rows):
    R = rows.shape[0] // 16
    r3 = rows.reshape(R, 16, 448)
    o = r3[:, :, _Xcols]
    return np.ascontiguousarray(o.transpose(0, 2, 3, 4, 1, 5)).reshape(R, 7, 2, 64, 8)
def build_G(Gb):
    o = np.stack([build_M_order(Gb[h]) for h in range(16)])
    o = o.reshape(16, 64, 2, 7, 2, 64, 8).transpose(1, 0, 2, 3, 4, 5, 6)
    return np.ascontiguousarray(o)
def build_VO(VOb):
    ts = np.array([[tokslot(g, s) for s in range(8)] for g in range(4)])
    vc = np.array([[vcol(v, cl) for cl in range(28)] for v in range(16)])
    V = VOb.reshape(16, 64, 32, 448)
    o = V[:, :, ts, :]
    o = o[..., vc]
    return np.ascontiguousarray(o.transpose(4, 1, 0, 2, 5, 3))
def build_xfrag(xb):
    x4 = xb.reshape(128, 16, 14, 4, 8)
    return np.ascontiguousarray(x4.transpose(0, 2, 3, 1, 4)).reshape(128, 14, 64, 8)
def build_memx(memb):
    o = memb[:, _Xcols]
    return np.ascontiguousarray(o.transpose(1, 3, 2, 0, 4)).reshape(7, 64, 8)
def decode_memx(mx):
    o = mx.reshape(7, 4, 2, 8, 8)
    res = np.zeros((8, 448), np.uint16)
    for ks in range(7):
        for g in range(4):
            for half in range(2):
                res[:, _Xcols[ks, half, g]] = o[ks, g, half]
    return res
if __name__ == "__main__":
    print("EXCH_OFF", EXCH_OFF, "END", EXCH_END, EXCH_END / 2**20)
    assert sorted(vcol(v, cl) for v in range(16) for cl in range(28)) == list(range(448))
    assert sorted(acol(k, q, n) for k in range(7) for q in range(4) for n in range(16)) == list(range(448))
    m = np.arange(8 * 448).reshape(8, 448).astype(np.uint16)
    assert (decode_memx(build_memx(m)) == m).all()
    print("T2_OFF", T2_OFF, "PT_OFF", PT_OFF, "KS_OFF", KS_OFF, KS_OFF / 2**20)
```

```python
from asmlib import *
from layout import *
from prep import srd, SIGMA, W_BYTES
WS = 's[8:11]'
LDFL = ''
TFL = ''
SA = 's[60:63]'; SB = 's[56:59]'
CF = 256
RF = 384

PST = 0
CT = 1
SP_PF = 6
ST2_AT = 12
RT_AT = 0
_n = [0]
def pst(a, k=None):
    if PST and k is not None: a(f's_memrealtime s[{72+2*k}:{73+2*k}]')
    elif PST:
        a(f's_memrealtime s[{72+2*_n[0]}:{73+2*_n[0]}]'); _n[0] += 1
def pst_flush(a):
    if not PST: return
    a('s_waitcnt lgkmcnt(0)')
    a('s_lshl_b32 s20, s2, 2\ns_add_u32 s20, s20, s16\ns_lshl_b32 s20, s20, 6\ns_add_u32 s20, s20, 104857600')
    a('v_mov_b32 v7, 0')
    for k in range(9):
        a(f'v_mov_b32 v8, s{72+2*k}')
        a(f'buffer_store_dword v8, v7, {WS}, s20 offen offset:{4*k}')
        a.nop(2)

def decode(a, item_s):
    a(f's_mul_i32 s17, {item_s}, 4682')
    a('s_lshr_b32 s17, s17, 16')
    a('s_mul_i32 s23, s17, 14')
    a(f's_sub_u32 s19, {item_s}, s23')
    a('s_cmp_lt_u32 s19, 7')
    a('s_cselect_b32 s18, 0, 7')
    a('s_cselect_b32 s28, 0, 8')
    a('s_sub_u32 s18, s19, s18')
    a('s_add_u32 s28, s28, s16')
    a('s_lshl_b32 s25, s16, 15')
    a('s_add_u32 s25, s25, 32768')
    a('s_lshl_b32 s26, s17, 9')
assert all((i * 4682) >> 16 == i // 14 for i in range(224))

def consts(a):
    a('v_lshrrev_b32 v5, 5, v1')
    a('v_and_b32 v6, 31, v1')
    a('v_xor_b32 v8, v6, v5')
    a('v_lshlrev_b32 v8, 4, v8')
    a('v_lshl_add_u32 v16, v5, 13, v8')
    for c in range(1, 8): a(f'v_xor_b32 v{16+c}, {c*32}, v16')
    a('s_lshl_b32 s20, s16, 6')
    a('v_xor_b32 v26, s20, v16')
    a('v_xor_b32 v27, 32, v26')

def issue(a, mat, hook=None, hook_at=0):
    if mat == 'A':
        srd(a, 60, 40, 41, W_BYTES); srd(a, 56, 42, 43, W_BYTES)
        a('s_lshl_b32 s27, s18, 2')
        a('s_add_u32 s27, s27, s16')
        a('s_lshl_b32 s27, s27, 17')
        a('s_add_u32 s27, s27, s26')
        a('s_lshl_b32 s30, s16, 13')
        for i in range(8):
            a(f's_add_u32 m0, s30, {i*1024}')
            a(f'buffer_load_dwordx4 v{26 + ((i >> 1) & 1)}, {SB}, s27 offen {LDFL} lds')
            a('s_add_u32 s27, s27, 16384')
    else:
        srd(a, 60, 44, 45, W_BYTES); srd(a, 56, 46, 47, W_BYTES)
        a('s_mul_i32 s27, s17, 229376')
        a('s_lshl_b32 s30, s18, 7')
        a('s_add_u32 s27, s27, s30')
        a(f's_mul_i32 s30, s16, {64*896}')
        a('s_add_u32 s27, s27, s30')
        a('v_lshrrev_b32 v7, 3, v1')
        a('v_and_b32 v8, 7, v1')
        a('v_and_b32 v9, 2, v7')
        a('v_xor_b32 v8, v8, v9')
        a('v_mul_u32_u24 v7, 896, v7')
        a('v_lshl_add_u32 v24, v8, 4, v7')
        a('v_xor_b32 v25, 64, v24')
        a('s_lshl_b32 s30, s16, 13')
        for i in range(8):
            a(f's_add_u32 m0, s30, {i*1024}')
            a(f'buffer_load_dwordx4 v{24 + (i & 1)}, {SB}, s27 offen {LDFL} lds')
            a(f's_add_u32 s27, s27, {8*896}')
    for p in range(2):
        a(f's_add_u32 s27, s28, {4*p}')
        a('s_min_u32 s27, s27, 13')
        a('s_lshl_b32 s27, s27, 18')
        a('s_add_u32 s27, s27, s26')
        for i in range(16):
            if hook and p * 16 + i in (hook_at if isinstance(hook_at, tuple) else (hook_at,)): hook(8 + p * 16 + i)
            a(f's_add_u32 m0, s25, {p*16384 + i*1024}')
            a(f'buffer_load_dwordx4 v{16 + 2*(i >> 2) + (i & 1)}, {SA}, s27 offen {LDFL} lds')
            a('s_add_u32 s27, s27, 16384')

TOUCH_B = 1
def touch(a, mat, dst, skip=None):
    if mat == 'B' and not TOUCH_B: return
    p = 40 if mat == 'A' else 44
    a('s_cmp_lt_u32 s19, 7')
    a(f's_cselect_b32 s64, s{p}, s{p+2}')
    a(f's_cselect_b32 s65, s{p+1}, s{p+3}')
    a('s_cselect_b32 s27, 0, 7')
    srd(a, 68, 64, 65, W_BYTES)
    a('s_sub_u32 s31, s19, s27')
    a('s_lshl_b32 s27, s31, 19')
    a('s_add_u32 s27, s27, s26')
    a('v_lshrrev_b32 v7, 2, v0')
    a('v_and_b32 v8, 3, v0')
    a('v_lshlrev_b32 v8, 7, v8')
    a('v_lshl_add_u32 v9, v7, 13, v8')
    if mat == 'B':
        a('s_mul_i32 s30, s17, 229376')
        a('s_lshl_b32 s31, s31, 15')
        a('s_add_u32 s30, s30, s31')
        a('s_cmp_lt_u32 s19, 7')
        a('s_cselect_b32 s27, s27, s30')
        a('s_cselect_b64 vcc, -1, 0')
        a('v_lshlrev_b32 v8, 7, v0')
        a('v_cndmask_b32 v9, v8, v9, vcc')
    if skip:
        a(f's_cmp_lg_u32 {skip}, 0')
        a('s_cselect_b32 s27, 0x40000000, s27')
    a(f'buffer_load_dword v{dst}, v9, s[68:71], s27 offen {TFL}')

def xunit_load(a, item_s):
    a(f's_lshl_b32 s20, {item_s}, 2')
    a('s_add_u32 s20, s20, s16')
    a('s_mul_i32 s21, s20, 9363')
    a('s_lshr_b32 s21, s21, 16')
    a('s_mul_i32 s22, s21, 7')
    a('s_sub_u32 s22, s20, s22')
    a(f's_mul_i32 s21, s21, {16*896}')
    a('s_lshl_b32 s20, s22, 7')
    a('s_add_u32 s20, s20, s21')
    a('s_lshl_b32 s22, s22, 11')
    a('s_add_u32 s52, s21, s22')
    srd(a, 68, 48, 49, 2048 * 448 * 2)
    a('v_mul_u32_u24 v7, 896, v4')
    a('v_lshl_add_u32 v7, v3, 5, v7')
    a('buffer_load_dwordx4 v[128:131], v7, s[68:71], s20 offen')
    a('buffer_load_dwordx4 v[132:135], v7, s[68:71], s20 offen offset:16')
assert all((i * 9363) >> 16 == i // 7 for i in range(896))
def xunit_store():
    o = ['v_lshlrev_b32 v144, 9, v3', 'v_lshl_add_u32 v144, v4, 4, v144', f's_add_u32 s53, s52, {XM_OFF}', f's_add_u32 s52, s52, {XF_OFF}']
    for j in range(4): o += [f'v_mov_b32 v{136+j}, v{128+2*j}', f'v_mov_b32 v{140+j}, v{129+2*j}']
    o += [f'buffer_store_dwordx4 v[128:131], v144, {WS}, s52 offen sc1', f'buffer_store_dwordx4 v[132:135], v144, {WS}, s52 offen offset:256 sc1',
          f'buffer_store_dwordx4 v[136:139], v2, {WS}, s53 offen sc1', f'buffer_store_dwordx4 v[140:143], v2, {WS}, s53 offen offset:1024 sc1']
    return o

def setup(a, mats):
    a('v_lshrrev_b32 v7, 2, v4')
    a('v_lshlrev_b32 v11, 4, v7')
    a('v_lshlrev_b32 v7, 3, v7')
    a('v_and_b32 v8, 3, v4')
    a('v_add_u32 v7, v7, v8')
    a('v_and_b32 v8, 2, v4')
    a('v_lshl_add_u32 v11, v8, 1, v11')
    a('v_and_b32 v8, 1, v4')
    a('v_add_u32 v11, v11, v8')
    for k3 in range(4):
        a(f'v_or_b32 v10, {k3*4}, v3')
        a('v_xor_b32 v10, v10, v4')
        a('v_lshlrev_b32 v10, 4, v10')
        a(f'v_lshl_add_u32 v{44+k3}, v11, 9, v10')
        a('v_lshl_add_u32 v10, v7, 9, v10')
        a(f'v_add_u32 v{32+k3}, s25, v10')
    a(f's_mul_i32 s30, s17, {CUW_B}')
    a(f's_mul_i32 s31, s18, {4*TILE_B}')
    a('s_add_u32 s30, s30, s31')
    a(f's_add_u32 s30, s30, {WF_A}')
    for q in range(4):
        a(f'v_add_u32 v{28+q}, s30, v2')
        a(f's_add_u32 s30, s30, {TILE_B}')
    a(f'v_mov_b32 v48, {SIGMA}')
    if 'B' in mats:
        a('v_lshrrev_b32 v7, 2, v4')
        a('v_lshl_add_u32 v7, v3, 3, v7')
        a('v_lshlrev_b32 v7, 7, v7')
        a('v_and_b32 v8, 3, v4')
        a('v_lshl_add_u32 v7, v8, 3, v7')
        a('v_lshrrev_b32 v8, 3, v4')
        a('v_and_b32 v9, 1, v3')
        a('v_lshl_add_u32 v8, v9, 1, v8')
        a('v_lshl_add_u32 v40, v8, 5, v7')
        a('s_mul_i32 s31, s17, 28')
        a(f's_mov_b32 s29, {CUW_B}')
        for q in range(4):
            if q: a(f'v_xor_b32 v{40+q}, {32*q}, v40')
            a('s_lshl_b32 s30, s18, 6')
            a(f's_add_u32 s30, s30, {16*q}')
            a('v_add_u32 v8, s30, v4')
            a('v_subrev_u32 v9, 256, v8')
            a('v_mul_u32_u24 v11, 171, v9')
            a('v_lshrrev_b32 v11, 11, v11')
            a('v_mul_u32_u24 v38, 12, v11')
            a('v_sub_u32 v38, v9, v38')
            a('v_add_u32 v38, 16, v38')
            a('v_lshrrev_b32 v10, 4, v8')
            a('v_cmp_gt_i32 vcc, 0, v9')
            a('v_cndmask_b32 v10, v11, v10, vcc')
            a('v_cndmask_b32 v39, v38, v4, vcc')
            a('v_add_u32 v39, s31, v39')
            a('v_lshrrev_b32 v38, 4, v39')
            a('v_and_b32 v39, 15, v39')
            a('v_mul_lo_u32 v10, v10, s29')
            a(f'v_mul_u32_u24 v38, {TILE_B}, v38')
            a('v_add_u32 v10, v10, v38')
            a('v_lshl_add_u32 v10, v3, 8, v10')
            a('v_lshl_add_u32 v10, v39, 4, v10')
            a(f'v_add_u32 v{12+q}, {WF_B}, v10')

def compute(a, P, mat, younger, pre_epi=(), early=(), nextA=None, late=(), nowait=0):
    rd = [[] for _ in range(8)]
    for q in range(4):
        for kk in range(8):
            if mat == 'A': rd[kk].append(f'ds_read_b128 {ureg(CF + (q * 8 + kk) * 4, 4)}, v{44 + (kk & 3)} offset:{(8 * (q >> 1) + 2 * (q & 1)) * 512 + (kk >> 2) * 256}')
            else: rd[kk] += [f'ds_read_b64_tr_b16 {ureg(CF + (q * 8 + kk) * 4 + 2 * hf, 2)}, v{40+q} offset:{(32*kk + 4*hf)*128}' for hf in range(2)]
    a('s_lshl_b32 s29, s28, 10')
    a('s_add_u32 s31, s29, 4096')
    a('s_cmp_lt_u32 s28, 10')
    a('s_cselect_b32 s31, s31, 0x40000000')
    pst(a)
    if not nowait: a(f's_waitcnt vmcnt({younger})')
    a('s_barrier')
    pst(a)
    for kk in range(8):
        rd[kk] += [f'ds_read_b128 {ureg(RF + (pt * 8 + kk) * 4, 4)}, v{32 + (kk & 3)} offset:{(pt >> 1)*16384 + (pt & 1)*2048 + (kk >> 2)*256}' for pt in range(4)]
    ACC = [64, 96]
    def epi(p, q):
        d = ACC[p] + 8 * q
        o = [f'v_pk_mul_f32 v[{d+r}:{d+r+1}], v[{d+r}:{d+r+1}], v[48:49] op_sel_hi:[1,0]' for r in range(0, 8, 2)] if mat == 'A' else []
        o += [f'v_cvt_pk_bf16_f32 v{d+r}, v{d+2*r}, v{d+2*r+1}' for r in range(4)]
        o.append(f'buffer_store_dwordx4 v[{d}:{d+3}], v{(28 if mat == "A" else 12)+q}, {WS}, {"s31" if p else "s29"} offen sc1')
        return o
    for x in rd[0]: a(x)
    for x in early:
        if callable(x): x()
        else: a(x)
    side = []
    dma = []
    if nextA:
        class Cap:
            def __init__(s_): s_.l = []
            def __call__(s_, x): s_.l += x.split('\n')
        c = Cap(); issue(c, 'A')
        pre = [f's_cmp_lg_u32 {nextA}, 0', f's_cselect_b32 s54, 0, {W_BYTES}']
        L_ = pre + [x.replace(f', {W_BYTES}', ', s54') for x in c.l]
        cur = []
        for x in L_:
            cur.append(x)
            if x.startswith('buffer'): dma.append(cur); cur = []
    allrd = [x for kk in range(1, 8) for x in rd[kk]]
    nrd = [len(rd[0])]
    for kk in range(1, 8): nrd.append(nrd[-1] + len(rd[kk]))
    issued = len(rd[0]); freed = False
    for kk in range(8):
        a(f's_waitcnt lgkmcnt({min(15, issued - nrd[kk])})')
        if kk == 7:
            for x in late:
                a('s_waitcnt vmcnt(0)'); x()
        if kk == 7:
            if not freed: a('s_barrier')
            for x in pre_epi: a(x)
        i = 0
        for p in range(2):
            for q in range(4):
                for tau in range(2):
                    d = ACC[p] + 8 * q + 4 * tau
                    a(f'v_mfma_f32_16x16x32_bf16 v[{d}:{d+3}], {ureg(RF + ((p * 2 + tau) * 8 + kk) * 4, 4)}, {ureg(CF + (q * 8 + kk) * 4, 4)}, ' + ('0' if kk == 0 else f'v[{d}:{d+3}]'))
                    lim = len(allrd) + len(rd[0]) if nextA else nrd[min(kk + 1, 7)]
                    for _ in range(2):
                        if issued < lim:
                            a(allrd[issued - len(rd[0])]); issued += 1
                    if nextA and issued == lim and not freed and i == 15:
                        a('s_waitcnt lgkmcnt(0)'); a('s_barrier'); freed = True
                    elif freed and dma and kk < 7:
                        for x in dma.pop(0): a(x)
                    if kk == 7:
                        if i >= 4:
                            for _ in range(2):
                                if side: a(side.pop(0))
                        if tau: side += epi(p, q)
                    i += 1
    assert not dma
    for x in side: a(x)
    pst(a)

def touch_rows(a, mat, item_s, dst):
    p = 40 if mat == 'A' else 44
    srd(a, 68, p, p + 1, W_BYTES)
    a(f's_and_b32 s20, {item_s}, 0xe0')
    a('s_mul_i32 s20, s20, 9363')
    a('s_lshr_b32 s20, s20, 16')
    a('s_lshl_b32 s20, s20, 10')
    a(f's_and_b32 s21, {item_s}, 31')
    a('s_mul_i32 s21, s21, 192')
    a('s_add_u32 s20, s20, s21')
    a('v_min_u32 v7, 191, v0')
    a('v_add_u32 v7, s20, v7')
    a('v_lshrrev_b32 v8, 11, v7')
    a('v_min_u32 v8, 15, v8')
    a('v_bfe_u32 v9, v7, 2, 9')
    a('v_lshlrev_b32 v9, 13, v9')
    a('v_lshl_add_u32 v9, v8, 9, v9')
    a('v_and_b32 v7, 3, v7')
    a('v_lshl_add_u32 v9, v7, 7, v9')
    a(f'buffer_load_dword v{dst}, v9, s[68:71], 0 offen {TFL}')

def touch_cols(a, dst, skip):
    srd(a, 68, 42, 43, W_BYTES)
    a('s_lshl_b32 s27, s18, 19')
    a('s_add_u32 s27, s27, s26')
    a(f's_cmp_lg_u32 {skip}, 0')
    a('s_cselect_b32 s27, 0x40000000, s27')
    a('v_lshrrev_b32 v7, 2, v0')
    a('v_and_b32 v8, 3, v0')
    a('v_lshlrev_b32 v8, 7, v8')
    a('v_lshl_add_u32 v9, v7, 13, v8')
    a(f'buffer_load_dword v{dst}, v9, s[68:71], s27 offen {TFL}')

def touch_w(a, k_s, n, what):
    a(f's_lshl_b32 s27, {k_s}, 2')
    a('s_add_u32 s27, s27, s16')
    a('s_lshl_b32 s27, s27, 13')
    a('v_lshlrev_b32 v12, 7, v1')
    for p, rows in what:
        srd(a, 64, p, p + 1, rows * 8192)
        a('s_mov_b32 s28, s27')
        for k in range((rows + 4 * n - 1) // (4 * n)):
            a('buffer_load_dword v13, v12, s[64:67], s28 offen')
            a(f's_add_u32 s28, s28, {4*n*8192}')

def selfprep(a, ev=None, st1=(), st2=(), pf1=(), pf2=()):
    CFV = 120; FR = 24; ACC = [56, 88]; NS = 10
    if ev: ev(9014)
    consts(a)
    srd(a, 60, 40, 41, W_BYTES); srd(a, 56, 42, 43, W_BYTES)
    a('s_lshl_b32 s26, s17, 9')
    a('s_lshl_b32 s27, s16, 19')
    a('s_add_u32 s27, s27, s26')
    a('s_lshl_b32 s25, s16, 15')
    a('s_add_u32 s25, s25, 32768')
    a('s_barrier')
    for i in range(32):
        a(f's_add_u32 m0, s25, {i*1024}')
        a(f'buffer_load_dwordx4 v{16 + 2*(i >> 3) + ((i >> 1) & 1)}, {SB}, s27 offen lds')
        a('s_add_u32 s27, s27, 16384')
    a('v_mov_b32 v14, v26')
    a('v_mov_b32 v15, v27')
    a('s_lshl_b32 s28, s16, 16')
    a('s_add_u32 s28, s28, s26')
    a('s_lshl_b32 s29, s16, 12')
    def dma(hu):
        o = []
        for i in range(4):
            o.append([f's_add_u32 m0, s29, {(hu % NS)*16384 + i*1024}', f's_add_u32 s27, s28, {hu*32*8192 + i*16384}',
                      f'buffer_load_dwordx4 v{14 + (i & 1)}, {SA}, s27 offen lds'])
        return o
    for hu in range(2):
        for g_ in dma(hu):
            for x in g_: a(x)
    a('v_lshrrev_b32 v7, 2, v4')
    a('v_lshlrev_b32 v11, 4, v7')
    a('v_lshlrev_b32 v7, 3, v7')
    a('v_and_b32 v8, 3, v4')
    a('v_add_u32 v7, v7, v8')
    a('v_and_b32 v8, 2, v4')
    a('v_lshl_add_u32 v11, v8, 1, v11')
    a('v_and_b32 v8, 1, v4')
    a('v_add_u32 v11, v11, v8')
    for k3 in range(4):
        a(f'v_or_b32 v10, {k3*4}, v3')
        a('v_xor_b32 v10, v10, v4')
        a('v_lshlrev_b32 v10, 4, v10')
        a(f'v_lshl_add_u32 v{248+k3}, v7, 9, v10')
        a(f'v_add_u32 v{252+k3}, 65536, v{248+k3}')
        a(f'v_add_u32 v{16+k3}, 131072, v{248+k3}')
        a('v_lshl_add_u32 v10, v11, 9, v10')
        a(f'v_add_u32 v{20+k3}, s25, v10')
    a(f'v_mov_b32 v12, {SIGMA}')
    a('v_lshlrev_b32 v6, 7, v1')
    if CT: code_touch(a, 6, 7)
    a(f's_waitcnt vmcnt({8 + CT})')
    if ev: ev(9013)
    for q in range(4):
        for kk in range(8):
            r = CFV + (q * 8 + kk) * 4
            a(f'ds_read_b128 v[{r}:{r+3}], v{20 + (kk & 3)} offset:{(8 * (q >> 1) + 2 * (q & 1)) * 512 + (kk >> 2) * 256}')
        a('s_waitcnt lgkmcnt(8)')
    a('s_waitcnt vmcnt(0) lgkmcnt(0)' if ev else 's_waitcnt vmcnt(4) lgkmcnt(0)')
    a('s_barrier')
    PF = SP_PF
    for hu in range(2, PF):
        for g_ in dma(hu):
            for x in g_: a(x)
    def rd(hu, f):
        kk, tau = f >> 1, f & 1; sl = hu % NS; r = FR + 4 * (f & 7)
        return f'ds_read_b128 v[{r}:{r+3}], v{[248, 252, 16][sl >> 2] + (kk & 3)} offset:{(sl & 3)*16384 + tau*2048 + (kk >> 2)*256}'
    def epi(hu):
        o = []
        for q in range(4):
            d = ACC[hu & 1] + 8 * q
            o += [f'v_mul_f32 v{d+r}, v12, v{d+r}' for r in range(8)]
            o += [f'v_cvt_pk_bf16_f32 v{d+r}, v{d+2*r}, v{d+2*r+1}' for r in range(4)]
            o += [f'v_accvgpr_write_b32 a{8 * (q * 7 + (hu >> 1)) + 4 * (hu & 1) + r}, v{d+r}' for r in range(4)]
        return o
    for f in range(6): a(rd(0, f))
    side = []
    a('s_waitcnt lgkmcnt(5)')
    for hu in range(14):
        dm = dma(hu + PF) if hu + PF < 14 else []
        if CT and hu % 3 == 0 and hu < 12: code_touch(a, 6, 7, 4096)
        if ev and hu in (1, 4, 8): a(f's_memrealtime s[{70+2*[1,4,8].index(hu)}:{71+2*[1,4,8].index(hu)}]')
        if hu == 3: dm[0] = list(st1) + dm[0]
        if RT_AT and hu == RT_AT - 1: dm = dm + [list(pf1)]
        if RT_AT and hu == RT_AT:
            assert not dm
            dm = [list(x) for x in pf2]
        if hu == ST2_AT: dm = [[], [], [], [], [], [], list(st2)] if hu < 13 else [list(st2)]
        for f in range(16):
            kk, tau = f >> 1, f & 1
            for q in range(4):
                d = ACC[hu & 1] + 8 * q + 4 * tau; r = FR + 4 * (f & 7); c = CFV + (q * 8 + kk) * 4
                a(f'v_mfma_f32_16x16x32_bf16 v[{d}:{d+3}], v[{r}:{r+3}], v[{c}:{c+3}], ' + ('0' if kk == 0 else f'v[{d}:{d+3}]'))
                nv = 1
                if q == 0:
                    if f == 10 and hu < 13:
                        if not (RT_AT and hu >= RT_AT): a(f's_waitcnt vmcnt({4 * min(PF - 1, 12 - hu)})')
                        a('s_barrier')
                    if f + 6 < 16: a(rd(hu, f + 6))
                    elif hu < 13: a(rd(hu + 1, f + 6 - 16))
                if q == 1: nv = 2
                if q == 2 and dm and f % 2 == 0:
                    for x in dm.pop(0): a(x)
                    nv = 0
                if q == 3 and not (hu == 13 and f == 15): a(f's_waitcnt lgkmcnt({min(5, 14 - f) if hu == 13 else 5})')
                if f > 0 or q == 3:
                    for _ in range(nv):
                        if side: a(side.pop(0))
        for x in side: a(x)
        side = epi(hu)
    for x in side: a(x)
    if ev:
        ev(9018)
        for k in range(3):
            a(f'v_mov_b32 v36, {9007+k}')
            a(f'v_mov_b32 v37, s{70+2*k}')
            a('s_mov_b64 exec, 1')
            a(f'buffer_store_dwordx2 v[36:37], off, {WS}, s100')
            a('s_mov_b64 exec, -1')
            a('s_add_u32 s100, s100, 8')
            a.nop(2)
    a('s_waitcnt vmcnt(0)')
    a('s_barrier')
```

```python
from asmlib import *
from layout import *
import tok
WS = 's[8:11]'
SRV_SLEEP = 20
SRV_D = 8
def wreg(ti, ks):
    u = ti * 7 + ks
    return 256 + 8 * u if u < 32 else 120 + 8 * (u - 32)
def t2srv_body(a, P, v_s, par_s, abort, ld=''):
    M = 8; ACC = 36; YT = 64; YA = 72
    a(f's_mul_i32 s20, {v_s}, {CUW_B}')
    a(f's_mul_i32 s21, s16, {7*TILE_B}')
    a('s_add_u32 s20, s20, s21')
    a(f's_add_u32 s20, s20, {WF_B}')
    for f in range(98):
        if f % 4 == 0: a(f's_add_u32 s22, s20, {f*1024}')
        r = wreg(0, f // 2) + 4 * (f & 1)
        a(f'buffer_load_dwordx4 {ureg(r, 4)}, v2, {WS}, s22 offen offset:{(f & 3)*1024} {ld}')
        if f >= SRV_D and f % 2 == 1: a(f's_waitcnt vmcnt({SRV_D})')
    a('v_mov_b32 v5, 0x4444')
    a('v_mov_b32 v6, 0xeeee')
    a('v_cmp_lt_u32 vcc, 7, v4')
    a('v_cndmask_b32 v5, v5, v6, vcc')
    a('s_lshl_b32 s23, s16, 11')
    a('v_lshrrev_b32 v80, 1, v3')
    a('v_and_b32 v81, 1, v3')
    for p in range(4):
        if p < 3: a(f'v_add_u32 v82, {2*p}, v80')
        else: a('v_mov_b32 v82, 6')
        a('v_lshl_add_u32 v82, v82, 4, v4')
        a('v_mul_u32_u24 v83, 2341, v82')
        a('v_lshrrev_b32 v83, 16, v83')
        a('v_mul_u32_u24 v84, 28, v83')
        a('v_sub_u32 v84, v82, v84')
        a('v_lshrrev_b32 v85, 4, v84')
        a('v_and_b32 v84, 15, v84')
        a('v_lshlrev_b32 v86, 10, v85')
        a('v_lshl_add_u32 v86, v83, 8, v86')
        a('v_lshl_add_u32 v86, v84, 4, v86')
        a('v_lshl_add_u32 v86, v81, 3, v86')
        a(f'v_add_u32 v{YA+p}, s23, v86')
    a('v_add_u32 v76, s23, v2')
    a(f's_mul_i32 s27, {v_s}, 448')
    a('v_mov_b32 v77, s27')
    a('v_mov_b32 v78, 1')
    a(f's_mov_b32 s17, {par_s}')
    a(f's_mul_i32 s24, {par_s}, {7*KB}')
    a(f's_add_u32 s24, s24, {MEMG_OFF}')
    a(f's_mul_i32 s25, {v_s}, 65')
    a(f's_add_u32 s25, s25, {par_s}')
    a('s_lshl_b32 s25, s25, 13')
    a('s_add_u32 s25, s25, s23')
    a(f's_add_u32 s25, s25, {T2_OFF + 8*KB}')
    a(f's_lshl_b32 s26, {v_s}, 6')
    a(f's_add_u32 s26, s26, {par_s}')
    a('s_lshl_b32 s26, s26, 4')
    a('s_lshl_b32 s27, s16, 2')
    a('s_add_u32 s26, s26, s27')
    a(f's_add_u32 s26, s26, {CNT_OFF + T2F}')
    for r in range(88, 92): a(f'v_mov_b32 v{r}, 0')
    for r in range(92, 96): a(f'v_mov_b32 v{r}, -1')
    a('ds_write_b128 v76, v[88:91]')
    a('ds_write_b128 v76, v[88:91] offset:1024')
    a('s_mov_b32 s28, s25')
    a('s_mov_b32 s29, 0')
    a.label(f'{P}_arm')
    a(f'buffer_store_dwordx4 v[92:95], v2, {WS}, s28 offen sc1')
    a(f'buffer_store_dwordx4 v[92:95], v2, {WS}, s28 offen offset:1024 sc1')
    a('s_waitcnt vmcnt(8)')
    a(f's_add_u32 s28, s28, {16*KB}')
    a('s_add_u32 s29, s29, 1')
    a('s_cmp_lt_u32 s29, 31')
    a(f's_cbranch_scc1 {P}_arm')
    a('s_waitcnt vmcnt(0)')
    a('s_mov_b64 exec, 1')
    a(f'buffer_store_dword v78, v2, {WS}, s26 offen sc1')
    a('s_mov_b64 exec, -1')
    a.label(f'{P}_loop')
    for r in range(ACC, ACC + 28): a(f'v_mov_b32 v{r}, 0')
    a('s_mov_b32 s30, 0')
    a(f's_branch {P}_fl')
    a.label(f'{P}_pm')
    a(f's_cmp_ge_u32 s17, {tok.FULLPOLL}')
    a(f's_cbranch_scc1 {P}_fl')
    a(f'buffer_load_dword v79, v77, {WS}, s24 offen sc1')
    a('s_waitcnt vmcnt(0)')
    a('v_cmp_eq_u32 vcc, -1, v79')
    a(f's_cbranch_vccnz {P}_pr')
    a.label(f'{P}_fl')
    a('s_add_u32 s22, s24, 4096')
    for ks in range(7):
        a(f'buffer_load_dwordx4 v[{M+4*ks}:{M+4*ks+3}], v2, {WS}, {"s24" if ks < 4 else "s22"} offen offset:{(ks & 3)*1024} sc1')
    a('s_waitcnt vmcnt(0)')
    a(f'v_max_u32 v79, v{M}, v{M+1}')
    for r in range(M + 2, M + 28, 2): a(f'v_max3_u32 v79, v79, v{r}, v{r+1}')
    a('v_cmp_eq_u32 vcc, -1, v79')
    a(f's_cbranch_vccz {P}_pk')
    a.label(f'{P}_pr')
    a(f's_sleep {SRV_SLEEP}')
    a('s_add_u32 s30, s30, 1')
    a(f's_cmp_lt_u32 s30, {tok.WAIT_LIMIT}')
    a(f's_cbranch_scc1 {P}_pm')
    a(f's_branch {abort}')
    a.label(f'{P}_pk')
    for ti in range(7):
        for ks in range(7):
            a(f'v_smfmac_f32_16x16x64_bf16 v[{ACC+4*ti}:{ACC+4*ti+3}], v[{M+4*ks}:{M+4*ks+3}], {ureg(wreg(ti, ks), 8)}, v5')
    for p in range(4):
        A_ = ACC + 8 * p; B_ = A_ + 4 if p < 3 else YT
        if p == 3:
            for r in range(4): a(f'v_mov_b32 v{B_+r}, v{A_+r}')
        for r in range(4): a(f'v_permlane32_swap_b32 v{A_+r}, v{B_+r}')
        for r in range(4): a(f'v_add_f32 v{A_+r}, v{A_+r}, v{B_+r}')
        a(f'v_cvt_pk_bf16_f32 v{B_}, v{A_}, v{A_+1}')
        a(f'v_cvt_pk_bf16_f32 v{B_+1}, v{A_+2}, v{A_+3}')
        a(f'v_min_u32 v{B_}, -2, v{B_}')
        a(f'v_min_u32 v{B_+1}, -2, v{B_+1}')
        a(f'ds_write_b64 v{YA+p}, v[{B_}:{B_+1}]')
    a('s_waitcnt lgkmcnt(0)')
    a(f'ds_read_b128 v[{YT}:{YT+3}], v76')
    a(f'ds_read_b128 v[{YT+4}:{YT+7}], v76 offset:1024')
    a('s_waitcnt lgkmcnt(0)')
    a(f'buffer_store_dwordx4 v[{YT}:{YT+3}], v2, {WS}, s25 offen sc1')
    a(f'buffer_store_dwordx4 v[{YT+4}:{YT+7}], v2, {WS}, s25 offen offset:1024 sc1')
    a(f's_add_u32 s24, s24, {14*KB}')
    a(f's_add_u32 s25, s25, {16*KB}')
    a('s_add_u32 s17, s17, 2')
    a('s_cmp_lt_u32 s17, 62')
    a(f's_cbranch_scc1 {P}_loop')
```

```python
from asmlib import *
from layout import *
WS = 's[8:11]'
PEEK = WS
def common(a, endl):
    a('s_cmp_ge_u32 s2, 256')
    a(f's_cbranch_scc1 {endl}')
    a('s_load_dwordx2 s[6:7], s[0:1], 128')
    a('s_load_dwordx2 s[4:5], s[0:1], 112')
    a('v_lshrrev_b32 v1, 6, v0')
    a('v_readfirstlane_b32 s16, v1')
    a('v_and_b32 v1, 63, v0')
    a('v_lshlrev_b32 v2, 4, v1')
    a('v_lshrrev_b32 v3, 4, v1')
    a('v_and_b32 v4, 15, v1')
    a('s_waitcnt lgkmcnt(0)')
    a('s_mov_b32 s8, s6\ns_and_b32 s9, s7, 0xffff\ns_mov_b32 s10, 0x10000000\ns_mov_b32 s11, 0x20000')
    a(f's_mov_b32 s12, s4\ns_and_b32 s13, s5, 0xffff\ns_mov_b32 s14, {2048*896*2}\ns_mov_b32 s15, 0x20000')

WAIT_LIMIT = 2000000
SLEEP = 4
LONG = 64
NEAR = 50
FULLPOLL = 64
def backoff(a, P, sleep):
    a(f's_sleep {sleep}')
    a(f's_cmp_ge_u32 s17, {NEAR}')
    a(f's_cbranch_scc1 {P}_bo')
    a(f's_sleep {LONG}')
    a.label(P + '_bo')
def wait_eq(a, P, soff, target, abort, sleep=None, four=False):
    sleep = sleep or SLEEP
    if four: a('v_lshlrev_b32 v60, 2, v3')
    else: a('v_mov_b32 v60, 0')
    a('s_mov_b32 s30, 0')
    a.label(P)
    a(f'buffer_load_dword v61, v60, {WS}, {soff} offen sc1')
    a('s_waitcnt vmcnt(0)')
    a(f'v_cmp_ne_u32 vcc, {target}, v61')
    a(f's_cbranch_vccz {P}_ok')
    backoff(a, P, sleep)
    a('s_add_u32 s30, s30, 1')
    a(f's_cmp_lt_u32 s30, {WAIT_LIMIT}')
    a(f's_cbranch_scc1 {P}')
    a(f's_branch {abort}')
    a.label(P + '_ok')

TOKD = 0
SAMPLE0 = 1
HEADS = 0
EV = None
def ev(a, n):
    if EV: a(f's_memrealtime s[{72+2*n}:{73+2*n}]')
def evflush(a, n, base):
    if not EV: return
    a('s_waitcnt lgkmcnt(0)')
    for i in range(n):
        a(f'v_mov_b32 v36, {base+i}')
        a(f'v_mov_b32 v37, s{72+2*i}')
        a('s_mov_b64 exec, 1')
        a(f'buffer_store_dwordx2 v[36:37], off, {WS}, s100')
        a('s_mov_b64 exec, -1')
        a('s_add_u32 s100, s100, 8')
        a.nop(2)
SLEEP2 = 2
OST = ''
def load_lin(a, base_s, n, areg, flags='', thr=0):
    for f in range(n):
        if thr and f >= thr and f % 2 == 0: a(f's_waitcnt vmcnt({thr-2})')
        if f % 4 == 0: a(f's_add_u32 s22, {base_s}, {f*1024}')
        a(f'buffer_load_dwordx4 a[{areg+4*f}:{areg+4*f+3}], v2, {WS}, s22 offen offset:{(f & 3)*1024} {flags}')

def tokp_body(a, seg_s, hq_s, ld='', st='', sync=None, ldx=''):
    a(f's_lshl_b32 s20, {hq_s}, 2')
    a('s_add_u32 s20, s20, s16')
    a(f's_lshl_b32 s21, {seg_s}, 4')
    a('s_add_u32 s21, s21, s20')
    a(f's_mul_i32 s21, s21, {GSH_B}')
    a(f's_add_u32 s21, s21, {F_OFF}')
    a(f's_mul_i32 s23, {seg_s}, {28*KB}')
    a(f's_add_u32 s23, s23, {XM_OFF}')
    FA, XA, MA = 0, 112, 224
    if sync:
        a(f's_mul_i32 s24, {seg_s}, {7*KB}')
        a(f's_add_u32 s24, s24, {MEMG_OFF}')
        a(f's_lshr_b32 s25, {seg_s}, 3')
        a('s_lshl_b32 s25, s25, 4')
        a('s_add_u32 s25, s25, s20')
        a('s_lshl_b32 s25, s25, 7')
        a(f's_add_u32 s25, s25, {CNT_OFF + FC}')
        wait_eq(a, sync + '_wf', 's25', 56, sync + '_abort')
    else:
        a(f's_mul_i32 s24, {seg_s}, {EXCH_B}')
        a(f's_add_u32 s24, s24, {EXCH_OFF}')
    a(f's_lshl_b32 s25, {seg_s}, 1')
    a(f's_mul_i32 s25, s25, {PT_B}')
    a(f's_add_u32 s25, s25, {PT_OFF}')
    a('s_lshl_b32 s26, s20, 10')
    a('s_add_u32 s26, s26, s25')
    a(f's_lshl_b32 s27, {hq_s}, 10')
    a('s_add_u32 s27, s27, s25')
    a('s_lshr_b32 s28, s16, 1')
    a('s_lshl_b32 s28, s28, 3')
    a('s_add_u32 s27, s27, s28')
    a(f's_add_u32 s27, s27, {16*KB}')
    a('s_and_b32 s28, s16, 1')
    a('s_cmp_eq_u32 s28, 0')
    a('s_cselect_b32 s50, -1, 0')
    a('s_cselect_b32 s51, 0, -1')
    if sync:
        for r in range(44, 48): a(f'v_mov_b32 v{r}, -1')
        for tt in range(2):
            a(f's_add_u32 s28, s26, {tt*PT_B}')
            a(f's_add_u32 s29, s27, {tt*PT_B}')
            a(f'buffer_store_dwordx4 v[44:47], v2, {WS}, s28 offen {st}')
            a('s_mov_b64 exec, s[50:51]')
            a(f'buffer_store_dwordx2 v[44:45], v2, {WS}, s29 offen {st}')
            a('s_mov_b64 exec, -1')
    load_lin(a, 's21', 28, FA, ld, TOKD)
    load_lin(a, 's23', 28, XA, ldx)
    if not sync: load_lin(a, 's24', 7, MA, ld)
    AX = {(0, 0): 8, (0, 1): 12, (1, 1): 16}
    AM = {(0, 0): 20, (1, 0): 24, (0, 1): 28, (1, 1): 32}
    for r in range(4):
        a(f'v_lshl_add_u32 v5, v3, 2, {r}')
        a(f'v_cmp_le_u32 s[{40+2*r}:{41+2*r}], v5, v4')
    a('v_cmp_gt_u32 s[48:49], 2, v3')
    a('v_mov_b32 v6, 0xff800000')
    a('s_waitcnt vmcnt(0)' if sync else 's_waitcnt vmcnt(7)')
    if sync:
        a(f's_lshl_b32 s25, {seg_s}, 7')
        a(f's_add_u32 s25, s25, {CNT_OFF + PTC}')
        a('v_mov_b32 v5, 1')
        a('v_mov_b32 v7, 0')
        a('s_waitcnt vmcnt(0)')
        a('s_mov_b64 exec, 1')
        a(f'buffer_atomic_add v5, v7, {WS}, s25 offen')
        a('s_mov_b64 exec, -1')
    for f in range(14):
        for (tk, tt), d in AX.items():
            c = '0' if f == 0 else f'v[{d}:{d+3}]'
            xa = XA + 4 * (tk * 14 + f); fa = FA + 4 * (tt * 14 + f)
            a(f'v_mfma_f32_16x16x32_bf16 v[{d}:{d+3}], a[{xa}:{xa+3}], a[{fa}:{fa+3}], {c}')
    MV = 64
    if sync:
        a('s_mul_i32 s22, s20, 448')
        a('s_add_u32 s22, s22, s24')
        a('s_mov_b32 s31, 0')
        if HEADS:
            a('s_lshl_b32 s23, s20, 2')
            a(f's_add_u32 s23, s23, {CNT_OFF + PTC + 63*128 + 64}')
            a('s_cmp_eq_u32 s17, 63')
            a('s_cselect_b32 s22, s23, s22')
            a('s_cselect_b32 s31, 1, 0')
        a('v_mov_b32 v62, s22')
        a('s_mov_b32 s30, 0')
        a.label(sync + '_pm')
        a(f's_cmp_ge_u32 s17, {FULLPOLL}')
        a(f's_cbranch_scc1 {sync}_pf')
        a(f'buffer_load_dword v61, v62, {WS}, 0 offen sc1')
        a('s_waitcnt vmcnt(0)')
        a('v_subrev_u32 v61, s31, v61')
        a('v_cmp_eq_u32 vcc, -1, v61')
        a(f's_cbranch_vccnz {sync}_pr')
        a.label(sync + '_pf')
        ev(a, 0)
        a('s_add_u32 s22, s24, 4096')
        for ks in range(7):
            a(f'buffer_load_dwordx4 v[{MV+4*ks}:{MV+4*ks+3}], v2, {WS}, {"s24" if ks < 4 else "s22"} offen offset:{(ks & 3)*1024} sc1')
        a('s_waitcnt vmcnt(0)')
        a(f'v_max_u32 v61, v{MV}, v{MV+1}')
        for r in range(MV + 2, MV + 28, 2): a(f'v_max3_u32 v61, v61, v{r}, v{r+1}')
        a('v_cmp_eq_u32 vcc, -1, v61')
        a(f's_cbranch_vccz {sync}_pk')
        a('s_add_u32 s30, s30, 1')
        a('s_cmp_lt_u32 s30, s31') if False else None
        a('s_cmp_eq_u32 s31, 0')
        a(f's_cbranch_scc1 {sync}_pr')
        a(f's_cmp_lt_u32 s30, {WAIT_LIMIT}')
        a(f's_cbranch_scc1 {sync}_pf')
        a.label(sync + '_pr')
        backoff(a, sync + '_pm', SLEEP)
        a('s_add_u32 s30, s30, 1')
        a(f's_cmp_lt_u32 s30, {WAIT_LIMIT}')
        a(f's_cbranch_scc1 {sync}_pm')
        a(f's_branch {sync}_abort')
        a.label(sync + '_pk')
        ev(a, 1)
        if HEADS:
            a(f's_lshl_b32 s22, {hq_s}, 2')
            a('s_add_u32 s22, s22, s25')
            a('v_mov_b32 v5, 1')
            a('s_mov_b64 exec, 1')
            a(f'buffer_store_dword v5, off, {WS}, s22 offset:4 sc1')
            a('s_mov_b64 exec, -1')
        a(f'buffer_load_dword v250, v251, {PEEK}, 0 offen sc1')
    else:
        a('s_waitcnt vmcnt(0)')
    for ks in range(7):
        for (half, tt), d in AM.items():
            c = '0' if ks == 0 else f'v[{d}:{d+3}]'
            fa = FA + 4 * (tt * 14 + ks * 2 + half)
            mop = f'v[{MV+4*ks}:{MV+4*ks+3}]' if sync else f'a[{MA+4*ks}:{MA+4*ks+3}]'
            a(f'v_mfma_f32_16x16x32_bf16 v[{d}:{d+3}], {mop}, a[{fa}:{fa+3}], {c}')
    for tt in range(2):
        xs = []
        for (tk, t2), d in AX.items():
            if t2 != tt: continue
            for r in range(4):
                if tk == tt: a(f'v_cndmask_b32 v{d+r}, v6, v{d+r}, s[{40+2*r}:{41+2*r}]')
                xs.append(d + r)
        z, t = AM[(0, tt)], AM[(1, tt)]
        for r in range(4): a(f'v_cndmask_b32 v{z+r}, v{t+r}, v{z+r}, s[48:49]')
        for r in range(4): a(f'v_mov_b32 v{t+r}, v{z+r}')
        for r in range(4): a(f'v_permlane32_swap_b32 v{z+r}, v{t+r}')
        for r in range(4): a(f'v_add_f32 v{z+r}, v{z+r}, v{t+r}')
        ms = [z + r for r in range(4)]
        al = xs + ms
        mx = 40
        a(f'v_max3_f32 v{mx}, v{al[0]}, v{al[1]}, v{al[2]}')
        rest = al[3:]
        while len(rest) >= 2:
            a(f'v_max3_f32 v{mx}, v{mx}, v{rest[0]}, v{rest[1]}'); rest = rest[2:]
        if rest: a(f'v_max_f32 v{mx}, v{mx}, v{rest[0]}')
        for sw in ('16', '32'):
            a(f'v_mov_b32 v41, v{mx}')
            a(f'v_permlane{sw}_swap_b32 v{mx}, v41')
            a(f'v_max_f32 v{mx}, v{mx}, v41')
        for r in al: a(f'v_sub_f32 v{r}, v{r}, v{mx}')
        for r in al: a(f'v_exp_f32 v{r}, v{r}')
        a(f'v_add_f32 v42, v{ms[0]}, v{ms[1]}')
        a(f'v_add_f32 v43, v{ms[2]}, v{ms[3]}')
        a('v_add_f32 v42, v42, v43')
        a('v_mul_f32 v42, 0.5, v42')
        for r in xs: a(f'v_add_f32 v42, v42, v{r}')
        for sw in ('16', '32'):
            a('v_mov_b32 v41, v42')
            a(f'v_permlane{sw}_swap_b32 v42, v41')
            a('v_add_f32 v42, v42, v41')
        a('v_rcp_f32 v42, v42')
        for r in al: a(f'v_mul_f32 v{r}, v{r}, v42')
        o = 44 + 8 * tt
        for k in range(4): a(f'v_cvt_pk_bf16_f32 v{o+k}, v{xs[k]}, ' + (f'v{xs[4+k]}' if tt else '0'))
        a(f'v_cvt_pk_bf16_f32 v{o+4}, v{ms[0]}, v{ms[1]}')
        a(f'v_cvt_pk_bf16_f32 v{o+5}, v{ms[2]}, v{ms[3]}')
        for k in range(6): a(f'v_min_u32 v{o+k}, -2, v{o+k}')
        a(f'buffer_store_dwordx4 v[{o}:{o+3}], v2, {WS}, s26 offen {st}')
        a('s_mov_b64 exec, s[50:51]')
        a(f'buffer_store_dwordx2 v[{o+4}:{o+5}], v2, {WS}, s27 offen {st}')
        a('s_mov_b64 exec, -1')
        if tt == 0:
            a(f's_add_u32 s26, s26, {PT_B}')
            a(f's_add_u32 s27, s27, {PT_B}')
    ev(a, 2)
    evflush(a, 3, 9030)

def toko_body(a, seg_s, vq_s, ld='', sync=None, OUT='s[12:15]'):
    a(f's_lshl_b32 s20, {vq_s}, 2')
    a('s_add_u32 s20, s20, s16')
    a('s_mul_i32 s24, s20, 65')
    a(f's_add_u32 s24, s24, {seg_s}')
    a('s_lshl_b32 s24, s24, 13')
    a(f's_add_u32 s24, s24, {T2_OFF + 8*KB}')
    a(f's_mul_i32 s21, s20, {VO_SV}')
    a(f's_mul_i32 s22, {seg_s}, {VO_SS}')
    a('s_add_u32 s21, s21, s22')
    a(f's_add_u32 s21, s21, {VO_OFF}')
    a(f's_lshl_b32 s25, {seg_s}, 1')
    a(f's_mul_i32 s25, s25, {PT_B}')
    a(f's_add_u32 s25, s25, {PT_OFF}')
    a('v_mov_b32 v5, v2')
    a('v_min_u32 v6, 11, v4')
    a('v_mad_u32_u24 v6, v3, 12, v6')
    a('v_lshlrev_b32 v6, 4, v6')
    a('v_add_u32 v6, 1024, v6')
    a('v_lshrrev_b32 v8, 1, v3')
    a('v_lshl_add_u32 v8, v8, 4, v4')
    a('v_lshlrev_b32 v8, 4, v8')
    a('v_and_b32 v9, 1, v3')
    a('v_lshl_add_u32 v7, v9, 3, v8')
    VA, PA = 0, 128
    T2R, PMR = 28, 64
    if sync:
        a(f's_lshr_b32 s26, {seg_s}, 3')
        a('s_lshl_b32 s26, s26, 4')
        a('s_add_u32 s26, s26, s20')
        a('s_lshl_b32 s26, s26, 7')
        a(f's_add_u32 s26, s26, {CNT_OFF + VOC}')
        wait_eq(a, sync + '_wv', 's26', 56, sync + '_abort')
    for h in range(16):
        if TOKD and 2 * h >= TOKD: a(f's_waitcnt vmcnt({TOKD-2})')
        if h % 2 == 0: a(f's_add_u32 s22, s21, {h*1792}')
        for t in range(2):
            r = VA + 8 * h + 4 * t
            a(f'buffer_load_dwordx4 a[{r}:{r+3}], v{5+t}, {WS}, s22 offen offset:{(h & 1)*1792} {ld}')
    if sync:
        a(f's_and_b32 s27, {seg_s}, 1')
        a(f's_cmp_ge_u32 {seg_s}, 62')
        a(f's_cselect_b32 s27, {seg_s}, s27')
        a('s_lshl_b32 s26, s20, 6')
        a('s_add_u32 s26, s26, s27')
        a('s_lshl_b32 s26, s26, 4')
        a(f's_add_u32 s26, s26, {CNT_OFF + T2F}')
        wait_eq(a, sync + '_wt', 's26', 1, sync + '_abort', four=True)
    a('v_mul_u32_u24 v9, 1792, v4')
    a('v_lshl_add_u32 v9, v3, 3, v9')
    a('s_lshl_b32 s22, s20, 5')
    a('v_add_u32 v8, s22, v9')
    a('s_mul_i32 s22, s20, 24')
    a('s_add_u32 s22, s22, 512')
    a('v_add_u32 v9, s22, v9')
    a('v_mov_b32 v10, 0x40000000')
    a('v_cmp_eq_u32 vcc, 3, v3')
    a('v_cndmask_b32 v9, v9, v10, vcc')
    a(f's_mul_i32 s44, {seg_s}, {32*1792}')
    a('s_add_u32 s44, s44, 896')
    a(f's_add_u32 s45, s44, {16*1792}')
    a(f's_lshl_b32 s26, {seg_s}, 7')
    a(f's_add_u32 s26, s26, {CNT_OFF + PTC}')
    wait_eq(a, sync + '_wp', 's26', 16, sync + '_abort')
    PQ = 64
    a('s_lshl_b32 s31, s16, 2')
    a('s_add_u32 s31, s31, s26')
    a('s_lshl_b32 s28, s16, 12')
    a('s_add_u32 s26, s25, s28')
    a(f's_add_u32 s27, s26, {PT_B}')
    a('s_lshl_b32 s28, s16, 10')
    a('s_add_u32 s28, s28, s25')
    a(f's_add_u32 s28, s28, {16*KB}')
    a(f's_add_u32 s29, s28, {PT_B}')
    a('s_add_u32 s23, s24, 4096')
    a('s_mov_b32 s30, 0')
    a.label(sync + '_ps')
    a(f'buffer_load_dword v61, off, {WS}, s24 sc1')
    if HEADS: a(f'buffer_load_dword v62, off, {WS}, s31 offset:4 sc1')
    else: a(f'buffer_load_dword v62, off, {WS}, s{26 if SAMPLE0 else 29} sc1')
    a('s_waitcnt vmcnt(0)')
    if HEADS: a('v_add_u32 v62, -1, v62')
    a('v_max_u32 v61, v61, v62')
    a('v_cmp_eq_u32 vcc, -1, v61')
    a(f's_cbranch_vccz {sync}_pl')
    backoff(a, sync + '_ps', SLEEP2)
    a('s_add_u32 s30, s30, 1')
    a(f's_cmp_lt_u32 s30, {WAIT_LIMIT}')
    a(f's_cbranch_scc1 {sync}_ps')
    a(f's_branch {sync}_abort')
    a.label(sync + '_pl')
    ev(a, 0)
    a(f'buffer_load_dword v250, v251, {PEEK}, 0 offen sc1')
    for tt in range(2):
        for hh in range(4):
            r = PQ + 20 * tt + 4 * hh
            a(f'buffer_load_dwordx4 v[{r}:{r+3}], v2, {WS}, s{26+tt} offen offset:{hh*1024} {ld}')
        r = PQ + 20 * tt + 16
        a(f'buffer_load_dwordx4 v[{r}:{r+3}], v2, {WS}, s{28+tt} offen {ld}')
    for hq in range(4):
        for t_ in range(2):
            r = T2R + 8 * hq + 4 * t_
            for pc in range(2):
                a(f'buffer_load_dwordx2 v[{r+2*pc}:{r+2*pc+1}], v7, {WS}, {"s24" if hq < 2 else "s23"} offen offset:{(hq & 1)*2048 + t_*1024 + pc*512} {ld}')
    a('s_waitcnt vmcnt(16)')
    a(f'v_max_u32 v61, v{PQ}, v{PQ+1}')
    for r in range(PQ + 2, PQ + 40, 2): a(f'v_max3_u32 v61, v61, v{r}, v{r+1}')
    a('s_mul_i32 s22, s16, 10240')
    a('v_add_u32 v62, s22, v2')
    for k in range(10): a(f'ds_write_b128 v62, v[{PQ+4*k}:{PQ+4*k+3}] offset:{k*1024}')
    a('s_waitcnt vmcnt(0)')
    for r in range(T2R, T2R + 32, 2): a(f'v_max3_u32 v61, v61, v{r}, v{r+1}')
    a('v_cmp_eq_u32 vcc, -1, v61')
    a(f's_cbranch_vccz {sync}_pk')
    a('s_waitcnt lgkmcnt(0)')
    a('s_sleep 1')
    a('s_add_u32 s30, s30, 1')
    a(f's_cmp_lt_u32 s30, {WAIT_LIMIT}')
    a(f's_cbranch_scc1 {sync}_pl')
    a(f's_branch {sync}_abort')
    a.label(sync + '_pk')
    ev(a, 1)
    a('s_lshl_b32 s22, s16, 2')
    a('s_add_u32 s22, s22, 49152')
    a('v_mov_b32 v63, s22')
    a('ds_write_b32 v63, v250')
    a('s_waitcnt lgkmcnt(0)')
    a('s_barrier')
    a('v_mov_b32 v63, 49152')
    a('ds_read_b32 v250, v63')
    ev(a, 2)
    ACC = 12
    def mm(A_, B_, t, tt, first):
        d = ACC + 8 * t + 4 * tt
        a(f'v_mfma_f32_16x16x32_bf16 v[{d}:{d+3}], {A_}, {B_}, ' + ('0' if first else f'v[{d}:{d+3}]'))
    fr = [(q, k, tt) for q in range(4) for k in range(5) for tt in range(2)]
    NB = 10
    def rd(i):
        q, k, tt = fr[i]; r = PQ + 4 * (i % NB)
        a(f'ds_read_b128 v[{r}:{r+3}], v2 offset:{q*10240 + (tt*5 + k)*1024}')
    for i in range(8): rd(i)
    for i, (q, k, tt) in enumerate(fr):
        a(f's_waitcnt lgkmcnt({min(7, 39 - i)})')
        r = PQ + 4 * (i % NB)
        for t_ in range(2):
            A_ = f'a[{VA+8*(4*q+k)+4*t_}:{VA+8*(4*q+k)+4*t_+3}]' if k < 4 else f'v[{T2R+8*q+4*t_}:{T2R+8*q+4*t_+3}]'
            mm(A_, f'v[{r}:{r+3}]', t_, tt, i < 2)
            if t_ == 0 and i + 8 < 40: rd(i + 8)
    for tt in range(2):
        for t_ in range(2):
            d = ACC + 8 * t_ + 4 * tt; o = 108 + 4 * tt + 2 * t_
            a(f'v_cvt_pk_bf16_f32 v{o}, v{d}, v{d+1}')
            a(f'v_cvt_pk_bf16_f32 v{o+1}, v{d+2}, v{d+3}')
            a(f'buffer_store_dwordx2 v[{o}:{o+1}], v{8+t_}, {OUT}, s{44+tt} offen {OST}')
    ev(a, 3)
    evflush(a, 4, 9040)

def gen_tok(which):
    name = f'tok{which}_kernel'
    a = Asm(); a.raw(kernel_header(name))
    common(a, f't{which}_end')
    a('s_lshr_b32 s17, s2, 2')
    a('s_and_b32 s18, s2, 3')
    if which == 'p': tokp_body(a, 's17', 's18')
    else: toko_body(a, 's17', 's18')
    a.label(f't{which}_end')
    a('s_endpgm')
    return a
```

```python
import sys, os
for x in sys.argv[2:]:
    if x.startswith('VOL='): os.environ['VOL'] = x[4:]
    if x.startswith('NINIT='): os.environ['NINIT'] = x[6:]
from asmlib import *
import prep, chain2
import os
HDR = open(os.path.dirname(os.path.abspath(__file__)) + '/hdr.txt').read()
def build(path):
    prep.RING = 1
    ks = [(prep.gen_prep(), 'prep_kernel', 'grid=(256,1,1) block=(256,1,1) lds=163840', (272, 256)),
          (chain2.gen_chain_kernel('main_kernel'), 'main_kernel', 'grid=(256,1,1) block=(256,1,1) lds=163840', (512, 256))]
    if chain2.FUSE: ks = ks[1:]
    if os.environ.get('TINY'):
        t = Asm(); t.raw(kernel_header('tiny_kernel'))
        t('s_memrealtime s[4:5]\ns_load_dwordx2 s[6:7], s[0:1], 128\ns_cmp_lg_u32 s2, 0\ns_cbranch_scc1 tk_end\ns_waitcnt lgkmcnt(0)')
        t('s_mov_b32 s8, s6\ns_and_b32 s9, s7, 0xffff\ns_mov_b32 s10, 0x10000000\ns_mov_b32 s11, 0x20000\ns_mov_b32 s12, 0x7000000\nv_mov_b32 v1, s4')
        t('buffer_store_dword v1, off, s[8:11], s12 sc1\ntk_end:\ns_endpgm')
        e = (t, 'tiny_kernel', 'grid=(1,1,1) block=(64,1,1) lds=0', (8, 8))
        ks = [e] + ks if os.environ['TINY'] == '1' else ks + [e]
    out = [HDR.rstrip('\n')]
    for a, n, l, _ in ks: out.append(f'; @launch kernel={n} {l}')
    out += ['.amdgcn_target "amdgcn-amd-amdhsa--gfx950"', '.text']
    for a, n, l, _ in ks: out.append(a.text())
    out.append('.section .rodata,"a"')
    for a, n, l, (v, ac) in ks: out.append(kernel_desc(n, v, ac))
    open(path, 'w').write('\n'.join(out) + '\n')
    print('instructions', sum(a.count for a, *_ in ks))
if __name__ == '__main__':
    for x in sys.argv[2:]:
        k, v = x.split('=')
        if k in ('VOL', 'NINIT'): continue
        if k in ('PST', 'TOUCH_B', 'CT', 'SP_PF', 'ST2_AT', 'RT_AT'):
            import prep2; setattr(prep2, k, int(v)); continue
        if k in ('TOKD', 'NEAR', 'LONG', 'SLEEP', 'FULLPOLL', 'SAMPLE0', 'SLEEP2', 'HEADS'):
            import tok; setattr(tok, k, int(v)); continue
        if k in ('SRV_SLEEP', 'SRV_D'):
            import t2srv; setattr(t2srv, k, int(v)); continue
        if k == 'OST':
            import tok, s4d; tok.OST = v; s4d.OST = v; continue
        if k in ('LDFL', 'TFL'):
            import prep2; setattr(prep2, k, v); continue
        assert hasattr(chain2, k), k
        setattr(chain2, k, int(v))
    build(sys.argv[1])
```

```python
import os
from asmlib import *
from layout import *

SRD = 's[8:11]'; DBG = 's[12:15]'
SPIN_LIMIT = 400000
NSTEPS = 64
STAMPS = 0
STAMP_STEP = 42
STEPLOG = 0
STAMP_OFF = 100 * 1024 * 1024
NST = 10
POLL_DEPTH = 5
F1_DELAY = 36
F2_POS = 3
FILL_A = 0
FILL_B = 0
DIAG = 0
CODE_PF = 1
SYNC = 1
XCD_SEL = 3
HLP_EARLY = 1
P_MOV = 2
D = 'row_mask:0xf bank_mask:0xf'
XSEG_B = 28 * KB
FLG1 = EXCH_OFF + 2 * EXCH_B
FOFF = int(os.environ.get('FOFF', '128'))
FLG2 = FLG1 + 16 * 128 - FOFF
RING_B = 2 * EXCH_B + 48 * 128
SC_SLEEP = 7
X_EARLY = 0
R1 = 1
R2 = 1
VO_PRE = 5
VO_EVERY = 1
B1_POS = 4
TLB_WARM = 0
WARM = 0
PCHK = 1
NOX = 0
X_POS = 12
X_EVERY = 4
XFL = 'sc1'
TAIL = 0
SC_TOUCH = 0
TOUCH_AHEAD = 1
MG_LATE = 0
P_PRE = 10
F3_POS = 7
F2_DELAY = 18
P3_SLEEP = 5
H3_DELAY = 0
H2_DELAY = 0
X_LATE = 2

def stamp(a, k):
    if STAMPS: a(f's_memtime s[{40+2*k}:{41+2*k}]')
def stamp_flush(a, path, lbl, t):
    if not STAMPS: return
    a(f's_sub_u32 s22, s19, {STAMP_STEP}')
    a('s_cmp_gt_u32 s22, 1')
    a(f's_cbranch_scc1 {lbl}')
    a('s_waitcnt lgkmcnt(0)')
    a('s_lshl_b32 s22, s22, 14')
    a('s_lshl_b32 s63, s17, 9')
    a('s_add_u32 s22, s22, s63')
    a(f's_add_u32 s22, s22, {STAMP_OFF + path * 64}')
    a(f'v_mov_b32 v{t}, 0')
    for k in range(NST):
        a(f'v_mov_b32 v{t+1}, s{40+2*k}')
        a(f'buffer_store_dword v{t+1}, v{t}, {SRD}, s22 offen offset:{4*k}')
        a.nop(1)
    a.label(lbl)
def stamp_calib(a, P):
    if not STAMPS: return
    a('s_memrealtime s[64:65]')
    a('s_waitcnt lgkmcnt(0)')
    a('s_lshr_b32 s68, s64, 10')
    a.label(P)
    a('s_memrealtime s[64:65]')
    a('s_memtime s[66:67]')
    a('s_waitcnt lgkmcnt(0)')
    a('s_lshr_b32 s69, s64, 10')
    a('s_cmp_eq_u32 s68, s69')
    a(f's_cbranch_scc1 {P}')
    a('s_lshl_b32 s22, s17, 9')
    a('s_lshl_b32 s63, s89, 6')
    a('s_add_u32 s22, s22, s63')
    a(f's_add_u32 s22, s22, {STAMP_OFF}')
    a('v_mov_b32 v8, s64\nv_mov_b32 v9, s66\nv_mov_b32 v10, 0')
    a(f'buffer_store_dwordx2 v[8:9], v10, {SRD}, s22 offen offset:56')

EVLOG = 0
EV_OFF = 101 * 1024 * 1024
HDBG = 0
HMAP = {9000: 6, 9010: 7, 9011: 8, 9002: 9, 9003: 10, 9004: 11, 9020: 12, 9021: 13, 9022: 14}
ENCT = 0
ENCP = 3
def evlog(a, tag):
    if ENCT and tag == ENCT: a('s_memrealtime s[92:93]')
    if HDBG and tag in HMAP:
        lb = a.newlabel('hd')
        if tag in (9002, 9003, 9004):
            a('s_cmp_lg_u32 s17, 5')
            a(f's_cbranch_scc1 {lb}')
            a('s_cmp_lg_u32 s89, 3')
        else:
            a('s_cmp_lg_u32 s16, 0')
            a(f's_cbranch_scc1 {lb}')
            a(f's_cmp_lg_u32 s2, {HDBG}')
        a(f's_cbranch_scc1 {lb}')
        a('s_memrealtime s[98:99]')
        a('s_waitcnt lgkmcnt(0)')
        a('v_mov_b32 v37, s98')
        a(f'buffer_store_dword v37, off, {DBG}, 0 offset:{4*HMAP[tag]}')
        a.label(lb)
    if not EVLOG: return
    a('s_memrealtime s[98:99]')
    a('s_waitcnt lgkmcnt(0)')
    a(f'v_mov_b32 v36, {tag}')
    a('v_mov_b32 v37, s98')
    a('s_mov_b64 exec, 1')
    a(f'buffer_store_dwordx2 v[36:37], off, {SRD}, s100')
    a('s_mov_b64 exec, -1')
    a('s_add_u32 s100, s100, 8')

def spin(a, back, abort):
    a('s_add_u32 s30, s30, 1')
    a(f's_cmp_lt_u32 s30, {SPIN_LIMIT}')
    a(f's_cbranch_scc1 {back}')
    a(f's_branch {abort}')

def flagpoll(a, vaddr, tag, regs, lbl, abort, fast=0, primed=False):
    Dp = POLL_DEPTH
    if NBPOLL:
        if NBPOLL == 2: a('s_mov_b64 s[66:67], -1')
        a.label(lbl + '_l')
        for i in range(NB_UNROLL):
            if NBPOLL == 2:
                p, q = (64, 66) if i % 2 == 0 else (66, 64)
                a(f'buffer_load_dword v{regs}, v{vaddr}, {SRD}, 0 offen sc1')
                a(f'v_cmp_gt_u32 s[{p}:{p+1}], {tag}, v{regs}')
                a(f's_cmp_eq_u32 s{q}, 0')
                a(f's_cbranch_scc1 {lbl}_d')
            elif NBPOLL == 3:
                a(f'buffer_load_dword v{regs}, v{vaddr}, {SRD}, 0 offen sc1')
                a(f'v_cmp_gt_u32 vcc, {tag}, v{regs}')
                a(f's_cbranch_vccz {lbl}_d')
            else:
                a(f'v_cmp_gt_u32 vcc, {tag}, v{regs}')
                a(f'buffer_load_dword v{regs}, v{vaddr}, {SRD}, 0 offen sc1')
                a(f's_cbranch_vccz {lbl}_d')
        a('s_waitcnt vmcnt(24)')
        spin(a, lbl + '_l', abort)
        a.label(lbl + '_d')
        return
    if fast:
        Dp = fast
        assert Dp % 2 == 0
        ld = lambda i: a(f'buffer_load_dword v{regs+i}, v{vaddr}, {SRD}, 0 offen sc1')
        a('s_mov_b64 s[72:73], -1')
        for i in range(Dp):
            ld(i)
            if i < Dp - 1: a('s_add_u32 s74, s74, 1\ns_add_u32 s74, s74, 1\ns_add_u32 s74, s74, 1')
        a.label(lbl + '_l')
        for i in range(Dp):
            p, q = (70, 72) if i % 2 == 0 else (72, 70)
            a(f's_waitcnt vmcnt({Dp-1})')
            a(f'v_cmp_gt_u32 s[{p}:{p+1}], {tag}, v{regs+i}')
            ld(i)
            a(f's_cmp_eq_u64 s[{q}:{q+1}], 0')
            a(f's_cbranch_scc1 {lbl}_d')
        spin(a, lbl + '_l', abort)
        a.label(lbl + '_d')
        return
    for i in range(0 if primed else Dp):
        a(f'buffer_load_dword v{regs+i}, v{vaddr}, {SRD}, 0 offen sc1')
    a.label(lbl + '_l')
    for i in list(range(Dp)) * POLL_UNROLL:
        a(f's_waitcnt vmcnt({Dp-1})')
        a(f'v_cmp_gt_u32 vcc, {tag}, v{regs+i}')
        if POLL_EARLY: a(f'buffer_load_dword v{regs+i}, v{vaddr}, {SRD}, 0 offen sc1')
        a(f's_cbranch_vccz {lbl}_d')
        if not POLL_EARLY: a(f'buffer_load_dword v{regs+i}, v{vaddr}, {SRD}, 0 offen sc1')
    spin(a, lbl + '_l', abort)
    a.label(lbl + '_d')

def load_units(a, units, base, tmp_s='s22', fl=''):
    cur = None; n = 0
    for off, reg in units:
        for hb in range(2):
            o = off + hb * 1024
            blk = o // 4096 * 4096
            if blk != cur:
                a(f's_add_u32 {tmp_s}, {base}, {blk}'); cur = blk
            a(f'buffer_load_dwordx4 {ureg(reg + 4 * hb, 4)}, v2, {SRD}, {tmp_s} offen offset:{o - blk} {fl}')
            n += 1
            if n % 32 == 0: a('s_waitcnt vmcnt(24)')

def wreg(ti, ks):
    u = ti * 7 + ks
    return 256 + 8 * u if u < 32 else 120 + 8 * (u - 32)

def lane_consts(a):
    a('v_and_b32 v1, 63, v0')
    a('v_lshlrev_b32 v2, 4, v1')
    a('v_lshrrev_b32 v116, 4, v1')
    a('v_and_b32 v117, 15, v1')
    a('v_mov_b32 v3, 0x4444')
    a('v_mov_b32 v118, 0xeeee')
    a('v_cmp_lt_u32 vcc, 7, v117')
    a('v_cndmask_b32 v3, v3, v118, vcc')

def next_step(a):
    a('s_mov_b32 s19, s18')
    a('s_add_u32 s18, s18, 1')
    a('s_mov_b32 s22, s20')
    a('s_mov_b32 s20, s21')
    a('s_mov_b32 s21, s22')
    a('s_add_u32 s23, s20, 4096')

def gap(a, ops):
    for o in ops:
        if not o.startswith('v_'): a(o)
    for o in ops:
        if o.startswith('v_'): a(o)

def poison_max(a, acc, regs):
    regs = list(regs)
    a(f'v_max3_u32 v{acc}, v{regs[0]}, v{regs[1]}, v{regs[2]}'); regs = regs[3:]
    while len(regs) >= 2:
        a(f'v_max3_u32 v{acc}, v{acc}, v{regs[0]}, v{regs[1]}'); regs = regs[2:]
    if regs: a(f'v_max_u32 v{acc}, v{acc}, v{regs[0]}')

def poison_max16(a, acc, regs):
    regs = list(regs)
    a(f'v_pk_max_u16 v{acc}, v{regs[0]}, v{regs[1]}')
    for r in regs[2:]: a(f'v_pk_max_u16 v{acc}, v{acc}, v{r}')
    a(f'v_lshlrev_b32 v{acc+1}, 16, v{acc}')
    a(f'v_max_u32 v{acc}, v{acc}, v{acc+1}')
    a(f'v_cmp_le_u32 vcc, 0xffff0000, v{acc}')

XP = 0
MP = 4 * KB
MJ = MP + 2304
XB = 8 * KB
def score_tiles(w):
    kb = 4 + (w >> 1); pP = w & 1
    return [(w, 0), (w, 1), (w, 2), (w, 3), (kb, 2 * pP), (kb, 2 * pP + 1), (6, 2 * (1 - pP) + (w >> 1))]
def score_mreg(w):
    kb = 4 + (w >> 1)
    m = {0: 8, 1: 12, 2: 16, 3: 20, 9 - kb: 24}
    if w & 1: m[kb] = 28; m[6] = 32
    else: m[6] = 28; m[kb] = 32
    return m

def gen_score(a, w, st, tag):
    L = lambda n: f'{tag}_sc{w}_{n}'
    ABORT = f'{tag}_abort'
    MR = score_mreg(w)
    ka = w; half6 = w >> 1
    AC = [36, 40, 44, 48, 52, 56, 60 + 2 * half6]
    TMP = 66; SX = 68; BOP2 = 76; XS = [80, 88, 96, 104]
    D0, D1, BOPA = [MR[k] for k in range(4) if k != ka]
    SACC = 52; W = 56
    pb, p6 = (0, 1) if w & 1 else (1, 0)
    def S(ti, ks):
        return f'v_smfmac_f32_16x16x64_bf16 v[{AC[ti]}:{AC[ti]+3}], v[{MR[ks]}:{MR[ks]+3}], {ureg(wreg(ti, ks), 8)}, v3'
    def cvt(dst, src):
        return [f'v_cvt_pk_bf16_f32 v{dst}, v{src}, v{src+1}', f'v_cvt_pk_bf16_f32 v{dst+1}, v{src+2}, v{src+3}']
    def cin(ti, hi):
        r = AC[ti]
        return cvt(r, r) if hi else cvt(r + 2, r)[::-1]
    def T(dst, src): return f'v_mfma_f32_16x16x32_bf16 v[{dst}:{dst+3}], v[{src}:{src+3}], v[4:7], 0'
    def xld(k):
        buf, hb = k >> 1, k & 1; r = XS[buf] + 4 * hb
        return f'buffer_load_dwordx4 v[{r}:{r+3}], v{117 if buf < 2 else 2}, {SRD}, {"s26" if buf & 1 else "s24"} offen offset:{hb*1024} {XFL}'
    a.xld = xld
    def Smm(m, b, first=False):
        c = '0' if first else f'v[{SACC}:{SACC+3}]'
        return f'v_mfma_f32_16x16x32_bf16 v[{SACC}:{SACC+3}], v[{m}:{m+3}], v[{b}:{b+3}], {c}'
    def Sx(tt, b, buf):
        return f'v_smfmac_f32_16x16x64_bf16 v[{SX+4*tt}:{SX+4*tt+3}], v[{b}:{b+3}], v[{XS[buf]}:{XS[buf]+7}], v3'
    ZR = list(range(36, 52)) + list(range(AC[6], AC[6] + 4)) + list(range(SX, SX + 8)) + list(range(52, 60))
    def zero(lo=0, hi=99):
        for r in ZR[lo:hi]: a(f'v_mov_b32 v{r}, 0')
    def mls(ks): return f'buffer_load_dwordx4 v[{MR[ks]}:{MR[ks]+3}], v2, {SRD}, {"s20" if ks < 4 else "s23"} offen offset:{(ks & 3) * 1024} sc1'
    def ml(ks): a(mls(ks))
    a.raw('.p2align 6')
    a.label(L('loop'))
    a('s_mov_b32 s30, 0')
    a('s_mov_b32 s62, 0')
    a('s_setprio 3')
    spf_n = [SPF0, SPF1W, SPF + SPF3, SPF + SPF3]
    RO = [[0, 1, 2, 3], [(k + w) % 4 for k in range(4)], [(k ^ (w & 1)) for k in range(4)]][MROT]
    if w == 0:
        flagpoll(a, 0, 's19', 112 if NBPOLL else 24, L('fp'), ABORT, FP2)
        if not W0_LATE: ml(RO[0])
        a('s_barrier')
        if W0_LATE: ml(RO[0])
    else:
        a('s_barrier')
        ml(RO[0])
    stamp(a, 0)
    for k in (1, 2, 3):
        a(f's_setprio {3-k}')
        ml(RO[k])
    for k in range(WARM if w == 3 else 0): a(f'v_mfma_f32_32x32x16_bf16 v[36:51], v[{SX}:{SX+3}], v[{SX}:{SX+3}], 0')
    a.flush()
    a.label(L('go'))
    chk = lambda k: f'v_cmp_eq_u32 vcc, -1, v{MR[RO[k]]}'
    ex1 = lambda k: [chk(k)]
    ex3 = [f'v_max3_u32 v{TMP}, v24, v27, v28', f'v_max3_u32 v{TMP}, v{TMP}, v31, v32', f'v_max_u32 v{TMP}, v{TMP}, v35', f'v_cmp_eq_u32 vcc, -1, v{TMP}']
    if LATECHK == 3:
        ex3 = [f'v_max3_u32 v{TMP}, v{MR[RO[1]]}, v{MR[RO[2]]}, v{MR[RO[3]]}', f'v_max3_u32 v{TMP}, v{TMP}, v24, v27', f'v_max3_u32 v{TMP}, v{TMP}, v28, v31',
               f'v_max3_u32 v{TMP}, v{TMP}, v32, v35', f'v_cmp_eq_u32 vcc, -1, v{TMP}']
    a('s_waitcnt vmcnt(3)')
    stamp(a, 1)
    xpos = [-1] * (X_LATE + X_W2) + [X_POS + X_EVERY * k for k in range(8 - X_LATE - X_W2)]
    nx = 0
    if LATECHK:
        for ks in range(4):
            for ti in range(7):
                a(S(ti, RO[ks]))
                if ks == 0 and ti in (0, 2, 5): ml(4 + (ti // 2 + (w if MROT else 0)) % 3)
                if ti == 2 and (ks == 0 or LATECHK < 3): a(f's_cbranch_vccnz {L(f"r{ks}")}')
                if ti == 6 and ks < 3: a(f's_waitcnt vmcnt({5 - ks + nx})')
                if ks == 3 and ti == (6 if LATECHK >= 2 else 1): a(f's_waitcnt vmcnt({nx})')
                if 7 * ks + ti in xpos and not NOX:
                    a(xld(X_LATE + X_W2 + nx)); nx += 1
                if 0 <= 7 * ks + ti - SPF1_POS < SPF1: a(f's_buffer_load_dword s{64 + (ti & 3)}, {SRD}, s34 offset:{(sum(spf_n) + w * SPF1 + 7 * ks + ti - SPF1_POS) * 64}')
                if ti == 0 and (ks == 0 or LATECHK < 3): a(chk(ks))
                if LATECHK == 3 and ks == 3 and ti == 1: a(ex3[0])
                if ks == 3 and 1 <= ti <= 4 and LATECHK == 1: a(ex3[ti - 1])
                if ks == 3 and ti == 6 and LATECHK == 1:
                    a(f's_cbranch_vccnz {L("r4")}')
                    a.label(L('c4'))
    else:
        for ks in range(4):
            for ti in range(7):
                a(S(ti, RO[ks]))
                if ks == 0:
                    if ti in (0, 2, 5): ml(4 + (ti // 2 + (w if MROT else 0)) % 3)
                    if ti == 2: a(f's_cbranch_vccnz {L("r0")}')
                if ti == 4 and ks < 3: a(f's_waitcnt vmcnt({[4, 4, 3][ks] + nx})')
                if ks == 3 and ti == 1: a(f's_waitcnt vmcnt({nx})')
                if 7 * ks + ti in xpos and not NOX:
                    assert 7 * ks + ti > 5
                    a(xld(X_LATE + X_W2 + nx)); nx += 1
                if ks == 0 and ti == 0: a(chk(0))
                if ti == 4 and ks < 3: a(chk(ks + 1))
                if ks == 3 and 1 <= ti <= 4: a(ex3[ti - 1])
                if ti == 6:
                    a(f's_cbranch_vccnz {L(f"r{ks+1}")}')
                    a.label(L(f'c{ks+1}'))
    stamp(a, 2)
    seq = []
    for ti in (6, 4, 5, 0, 1, 2, 3):
        for ks in (4, 5, 6): seq.append([S(ti, ks), []])
    def side(i, ops): seq[i][1] += ops
    def spread(i, ops):
        for k, o in enumerate(ops): side(i + k, [o])
    if LATECHK >= 2:
        spread(0, ex3[-4:])
        side(5, [f's_cbranch_vccnz {L("r4")}'])
    spread(5, cin(6, half6))
    seq.insert(8, [T(D0, 62 - 2 * half6), []])
    spread(8, cin(4, 0))
    spread(10, cvt(BOP2 + 2 * p6, D0))
    spread(12, cin(5, 1))
    seq.insert(15, [T(D1, 54), []])
    spread(15, cin(0, 0))
    spread(17, cvt(BOP2 + 2 * pb, D1))
    spread(19, cin(1, 1))
    c2 = cin(2, 0); c3 = cin(3, 1)
    for k in range(X_LATE + X_W2 + nx, 8):
        if not NOX: side(xpos[k] - 28, [xld(k)])
    side(22, ['s_waitcnt vmcnt(4)'] + c2[:1])
    seq.append([Sx(0, BOP2, 0), c2[1:]])
    seq.append([T(D0, 38), c3])
    seq.append([T(D1, 46), []])
    seq.append([Sx(1, BOP2, 1), cvt(BOPA, D0)[:1]])
    seq.append([Smm(30, BOP2, True), ['s_waitcnt vmcnt(0)'] + cvt(BOPA, D0)[1:] + cvt(BOPA + 2, D1)])
    wm = f'ds_write_b128 v113, v[{SACC}:{SACC+3}]'
    def foldx(t):
        b = SX + 4 * t
        a(f'v_permlane32_swap_b32 v{b}, v{b+2}')
        a(f'v_permlane32_swap_b32 v{b+1}, v{b+3}')
        a(f'v_add_f32 v{W+t}, v{b}, v{b+2}')
        a(f'v_add_f32 v{W+2+t}, v{b+1}, v{b+3}')
    last3 = [Sx(0, BOPA, 2), Sx(1, BOPA, 3), Smm(MR[ka], BOPA)]
    for k in [(2, 0, 1), (0, 1, 2), (0, 2, 1), (0, 1, 2)][TAIL]: seq.append([last3[k], []])
    for m, ops in seq:
        a(m)
        gap(a, ops)
    nz = 0
    if TAIL == 0:
        a(wm); foldx(0); foldx(1)
    elif TAIL == 1:
        foldx(0); foldx(1); a(wm)
    else:
        foldx(0); a(wm); foldx(1)
    a(f'ds_write_b128 v2, v[{W}:{W+3}] offset:{XP + w*1024}')
    a(f'v_cmp_u_f32 vcc, v{W+1}, v{W+3}')
    stamp(a, 3)
    ZP = 64 - 4 * half6
    zm = lambda d, z: a(f'v_mfma_f32_32x32x16_bf16 v[{d}:{d+15}], v[{SX}:{SX+3}], v[{SX}:{SX+3}], 0')
    for r in range(SX, SX + 4): a(f'v_mov_b32 v{r}, 0')
    a(f's_cbranch_vccnz {L("retry")}')
    a.label(L('cont'))
    a(f's_add_u32 s24, s24, {XSEG_B}')
    a(f's_add_u32 s26, s26, {XSEG_B}')
    for k in range(X_LATE): a(xld(k))
    for r in range(SX + 4, SX + 4 + FILL_A): a(f'v_mov_b32 v{r}, 0')
    if ZV == 3 and w == 3: a(f'v_mfma_f32_16x16x32_bf16 v[{AC[6]}:{AC[6]+3}], v[{SX}:{SX+3}], v[{SX}:{SX+3}], 0')
    else: zm(36, ZP)
    a('s_waitcnt lgkmcnt(0)')
    a('s_barrier')
    stamp(a, 4)
    def f1(pos):
        if w == F1_W and pos == F1_POS: a(f'buffer_store_dword v112, v116, {SRD}, 0 offen {st}')
    if w < 2:
        t = 8
        for k in range(4): a(f'ds_read_b64 v[{t+2*k}:{t+2*k+1}], v114 offset:{k*1024}')
        a(f'ds_read2_b32 v[{t+8}:{t+9}], v115 offset0:0 offset1:64')
        a(f'ds_read2_b32 v[{t+10}:{t+11}], v115 offset0:128 offset1:192')
        if ZV != 2: zm(52, SX)
        a('s_waitcnt lgkmcnt(0)')
        stamp(a, 5)
        X = t; Y = t + 4; Mm = t + 8; m = t + 12; mx = t + 14; l = t + 16
        a(f'v_pk_add_f32 v[{Mm}:{Mm+1}], v[{Mm}:{Mm+1}], v[{Mm+2}:{Mm+3}]')
        a(f'v_pk_add_f32 v[{X}:{X+1}], v[{X}:{X+1}], v[{X+2}:{X+3}]')
        a(f'v_pk_add_f32 v[{Y}:{Y+1}], v[{Y}:{Y+1}], v[{Y+2}:{Y+3}]')
        a(f'v_add_f32 v{m}, v{Mm}, v{Mm+1}')
        a(f'v_pk_add_f32 v[{X}:{X+1}], v[{X}:{X+1}], v[{Y}:{Y+1}]')
        a(f'v_max_f32 v{mx}, v{X}, v{X+1}')
        a(f'v_add_f32_dpp v{m}, v{m}, v{m} row_ror:8 {D}')
        f1(0)
        a(f'v_max_f32_dpp v{mx}, v{mx}, v{mx} row_ror:8 {D}')
        a(f'v_max_f32 v{mx}, v{mx}, v{m}')
        f1(1)
        a(f'v_max_f32_dpp v{mx}, v{mx}, v{mx} quad_perm:[1,0,3,2] {D}')
        f1(2)
        a(f'v_max_f32_dpp v{mx}, v{mx}, v{mx} quad_perm:[2,3,0,1] {D}')
        f1(3)
        a(f'v_max_f32_dpp v{mx}, v{mx}, v{mx} row_half_mirror {D}')
        a(f'v_pk_add_f32 v[{X}:{X+1}], v[{X}:{X+1}], v[{mx}:{mx+1}] op_sel_hi:[1,0] neg_lo:[0,1] neg_hi:[0,1]')
        a(f'v_sub_f32 v{m}, v{m}, v{mx}')
        f1(4)
        a(f'v_exp_f32 v{X}, v{X}')
        a(f'v_exp_f32 v{X+1}, v{X+1}')
        a(f'v_exp_f32 v{m}, v{m}')
        f1(5)
        a(f'v_add_f32 v{l}, v{X}, v{X+1}')
        a(f'v_fmac_f32 v{l}, 0.5, v{m}')
        a(f'v_mov_b32_dpp v{m+1}, v{m} quad_perm:[1,0,3,2] {D}')
        a(f'v_add_f32_dpp v{l}, v{l}, v{l} quad_perm:[1,0,3,2] {D}')
        f1(6)
        a(f'v_add_f32_dpp v{l}, v{l}, v{l} quad_perm:[2,3,0,1] {D}')
        a(f'v_add_f32_dpp v{l}, v{l}, v{l} row_half_mirror {D}')
        a(f'v_add_f32_dpp v{l}, v{l}, v{l} row_ror:8 {D}')
        a(f'v_rcp_f32 v{l}, v{l}')
        a(f'v_pk_mul_f32 v[{X}:{X+1}], v[{X}:{X+1}], v[{l}:{l+1}] op_sel_hi:[1,0]')
        a(f'v_cvt_pk_bf16_f32 v{X}, abs(v{X}), abs(v{X+1})')
        a(f'buffer_store_dword v{X}, v1, {SRD}, s20 offen {st}')
        a(f'v_pk_mul_f32 v[{m}:{m+1}], v[{m}:{m+1}], v[{l}:{l+1}] op_sel_hi:[1,0]')
        a(f'v_cvt_pk_bf16_f32 v{m}, abs(v{m}), abs(v{m+1})')
        a(f'buffer_store_dword v{m}, v118, {SRD}, s20 offen {st}')
        stamp(a, 6)
        if WB_EVERY and w == 1 and not st:
            a('s_lshl_b32 s22, s17, 8')
            a('s_or_b32 s22, s22, s18')
            a(f's_and_b32 s22, s22, {0xf00 + WB_EVERY - 1}')
            a(f's_cbranch_scc1 {L("nwb")}')
            a('buffer_wbl2 sc1')
            a.label(L('nwb'))
        if ZV == 2: zm(52, SX)
    else:
        if ZV == 0 or (ZV == 3 and w == 2):
            zm(52, SX)
            a(f'buffer_store_dwordx2 v[118:119], v114, {SRD}, s21 offen {st}')
            a(f'buffer_store_dwordx2 v[118:119], v115, {SRD}, s21 offen {st}')
            if STLB:
                a(f's_buffer_load_dword s70, {SRD}, s35')
                a(f's_add_u32 s22, s24, {4*XSEG_B}')
                a(f's_buffer_load_dword s71, {SRD}, s22')
                a(f's_mul_i32 s22, s18, {7*KB}')
                a(f's_add_u32 s22, s22, {MEMG_OFF + 3*7*KB}')
                a(f's_buffer_load_dword s72, {SRD}, s22')
                a(f's_add_u32 s35, s35, {VO_SS}')
        elif ZV == 3:
            for r in range(52, 52 + ZX): a(f'v_mov_b32 v{r}, 0')
            zm(36, SX)
        else:
            for r in list(range(52, 60)) + list(range(AC[6], AC[6] + 4)): a(f'v_mov_b32 v{r}, 0')
            for k in range(ZX if w == 2 else 0): a(f'v_mov_b32 v{TMP}, 0')
    for r in range(SX + 4 + FILL_A, SX + 8): a(f'v_mov_b32 v{r}, 0')
    if SPF:
        for k in range(spf_n[w]):
            if k == SPF and SPF_SL: a(f's_sleep {SPF_SL}')
            a(f's_buffer_load_dword s{64 + (k & 3)}, {SRD}, s34 offset:{(sum(spf_n[:w]) + k) * 64}')
    a('s_mov_b32 s36, s34')
    a(f's_add_u32 s34, s33, {VO_SS}')
    a('s_mov_b32 s33, s34')
    if X_W2:
        sl = X_SLEEP + (5 if w >= 2 else 0)
        if sl: a(f's_sleep {sl}')
        for k in range(X_LATE, X_LATE + X_W2): a(xld(k))
    stamp_flush(a, w, L('sf'), BOP2)
    if STEPLOG and w in (1, 3):
        a('s_memtime s[40:41]' if w == 1 else 's_memrealtime s[40:41]')
        a('s_lshl_b32 s22, s17, 8')
        if w == 3: a('s_add_u32 s22, s22, 4096')
        a('s_lshl_b32 s42, s19, 2')
        a('s_add_u32 s22, s22, s42')
        a(f's_add_u32 s22, s22, {STAMP_OFF}')
        a(f'v_mov_b32 v{BOP2}, 0')
        a('s_waitcnt lgkmcnt(0)')
        a(f'v_mov_b32 v{BOP2+1}, s40')
        a(f'buffer_store_dword v{BOP2+1}, v{BOP2}, {SRD}, s22 offen')
    if DIAG and w == 3:
        a('s_cmp_lg_u32 s19, 1')
        a(f's_cbranch_scc1 {L("dg")}')
        a('s_memtime s[90:91]')
        a('s_memrealtime s[86:87]')
        a.label(L('dg'))
    next_step(a)
    if w == F1_W: a('v_mov_b32 v112, s18')
    if w == 0 and SC_SLEEP: a(f's_sleep {SC_SLEEP}')
    a(f's_cmp_lt_u32 s19, {NSTEPS-1}')
    a.flush()
    a(f's_cbranch_scc1 {L("loop")}')
    if w == HU_W:
        a('s_lshl_b32 s22, s17, 2')
        a(f's_add_u32 s22, s22, {CNT_OFF + PTC + 63*128 + 64}')
        a('v_mov_b32 v8, 1')
        a('s_mov_b64 exec, 1')
        a(f'buffer_store_dword v8, off, {SRD}, s22 sc1')
        a('s_mov_b64 exec, -1')
    a(f's_branch {tag}_done')
    for k in range(5):
        if LATECHK == 3 and 0 < k < 4: continue
        ks_ = [RO[k]] if k < 4 else (RO[1:] if LATECHK == 3 else []) + [4, 5, 6]
        a.label(L(f'r{k}'))
        a(f's_add_u32 s31, s31, {[1, 0x100, 0x100, 0x100, 0x1000000][k] if RCLS else 1}')
        for ks in ks_: ml(ks)
        a('s_waitcnt vmcnt(0)')
        for x in (ex1(k) if k < 4 else ex3): a(x)
        if k == 0:
            for r in range(36, 52): a(f'v_mov_b32 v{r}, 0')
        a.flush()
        a(f's_cbranch_vccz {L("go" if k == 0 else "rz" if (LATECHK and k < 3 + LATECHK) else f"c{k}")}')
        spin(a, L(f'r{k}'), ABORT)
    a.label(L('retry'))
    a('s_cmp_lg_u32 s62, 0')
    a(f's_cbranch_scc1 {L("cont")}')
    a('s_waitcnt vmcnt(0) lgkmcnt(0)')
    a.label(L('rv'))
    for ks in range(7): ml(ks)
    a('s_waitcnt vmcnt(0)')
    poison_max(a, TMP, range(8, 36))
    a(f'v_cmp_eq_u32 vcc, -1, v{TMP}')
    a(f's_cbranch_vccz {L("rk")}')
    spin(a, L('rv'), ABORT)
    a.label(L('rk'))
    a('s_mov_b32 s62, 1')
    a('s_add_u32 s31, s31, 0x100')
    a.label(L('rz'))
    zero()
    a.flush()
    a(f's_branch {L("go")}')

def touch_ring(a, t, w):
    nl = (2 * EXCH_B) // 128 + 33
    a(f's_mov_b32 s22, {EXCH_OFF}')
    for k in range(w, (nl + 63) // 64, 4):
        a(f'v_lshrrev_b32 v{t}, 4, v2')
        a(f'v_add_u32 v{t}, {64*k}, v{t}')
        a(f'v_min_u32 v{t}, {nl-1}, v{t}')
        a(f'v_lshlrev_b32 v{t}, 7, v{t}')
        a(f'buffer_load_dword v{t+1}, v{t}, {SRD}, s22 offen sc1')

def WFL(): return 'sc1' if FUSE else ''
HELP = 0
HFULL = 0
def mask_wait(a, P, vaddr, soff, smask, sleep=3):
    poll(a, P, [f'buffer_load_dword v9, {vaddr}, {SRD}, {soff} {"offen" if vaddr != "off" else ""} sc1'], [f'v_and_b32 v10, {smask}, v9', f'v_cmp_ne_u32 vcc, {smask}, v10'], sleep=sleep)
def b_wait(a, P, w):
    a('s_lshr_b32 s22, s17, 2')
    a('s_lshl_b32 s28, 0x81, s22')
    a('s_mul_i32 s27, s17, 12')
    for d in (256, 267):
        a(f's_add_u32 s22, s27, {d}')
        a('s_lshr_b32 s22, s22, 6')
        a('s_lshl_b32 s22, 0x81, s22')
        a('s_or_b32 s28, s28, s22')
    a('v_lshrrev_b32 v12, 8, v2')
    a('v_lshlrev_b32 v12, 7, v12')
    a(f's_mov_b32 s27, {PFL + w*512}')
    mask_wait(a, P, 'v12', 's27', 's28')
def a_wait(a, P, kaps):
    a('s_lshl_b32 s27, s17, 7')
    a(f's_add_u32 s27, s27, {PFL + 2048}')
    a(f's_mov_b32 s28, {sum(0x81 << k for k in kaps)}')
    mask_wait(a, P, 'off', 's27', 's28')
def touch_tiles(a, base, tiles):
    a('v_min_u32 v64, 55, v1')
    a('v_lshlrev_b32 v64, 7, v64')
    a(f's_mul_i32 s27, s17, {CUW_B}')
    for t in tiles:
        for hf in range(2):
            a(f's_add_u32 s22, s27, {base + t*TILE_B + hf*7168}')
            if HFULL:
                for k in range(7):
                    if k == 4: a('s_add_u32 s22, s22, 4096')
                    a(f'buffer_load_dwordx4 v[8:11], v2, {SRD}, s22 offen offset:{(k & 3)*1024} sc1')
            else: a(f'buffer_load_dword v67, v64, {SRD}, s22 offen sc1')
def r_wait(a, P, off):
    poll(a, P, [f'buffer_load_dword v9, off, {DBG}, 0 offset:{off} sc1'], ['v_cmp_ne_u32 vcc, 1, v9'], sleep=8)

def init_score(a, w):
    a(f's_mul_i32 s31, s17, {CUW_B}')
    a(f's_add_u32 s31, s31, {WF_A}')
    units = [((kap * 4 + q) * TILE_B + ks * UNIT, wreg(ti, ks)) for ti, (kap, q) in enumerate(score_tiles(w)) for ks in range(7)]
    m2 = (0x81 << (4 + (w >> 1))) | (0x81 << 6)
    a(f's_and_b32 s28, s84, {m2}')
    a('s_lshl_b32 s22, s85, 16')
    a('s_or_b32 s28, s28, s22')
    a(f's_cmp_eq_u32 s28, {0xffff0000 | m2}')
    a(f's_cbranch_scc1 ch_wx{w}_ok')
    r_wait(a, f'ch_wr{w}', D_R2)
    a_wait(a, f'ch_wb{w}', [4 + (w >> 1), 6])
    a(f's_mov_b32 s29, {PFL + 4096}')
    a('s_mov_b32 s28, 0xffff')
    mask_wait(a, f'ch_wx{w}', 'off', 's29', 's28', sleep=8)
    evlog(a, 9002)
    load_units(a, units[28:40], 's31', fl='sc1')
    a(f's_mov_b32 s24, {XF_OFF + w*2048}')
    a(f's_mov_b32 s26, {XF_OFF + w*2048 + 14336}')
    a('v_and_b32 v64, 7, v117')
    a('v_and_b32 v65, 1, v116')
    a('v_lshlrev_b32 v65, 2, v65')
    a('v_sub_u32 v64, v64, v65')
    a('v_lshrrev_b32 v65, 3, v117')
    a('v_lshl_add_u32 v66, v65, 2, v64')
    a('v_cmp_gt_u32 vcc, 4, v64')
    a('v_mov_b32 v67, 99')
    a('v_cndmask_b32 v66, v67, v66, vcc')
    a('v_mov_b32 v68, 0x3f80')
    a('v_mov_b32 v69, 0x3f800000')
    for d in range(4):
        a(f'v_mov_b32 v{4+d}, 0')
        a(f'v_cmp_eq_u32 vcc, {2*d}, v66')
        a(f'v_cndmask_b32 v{4+d}, v{4+d}, v68, vcc')
        a(f'v_cmp_eq_u32 vcc, {2*d+1}, v66')
        a(f'v_cndmask_b32 v{4+d}, v{4+d}, v69, vcc')
    a('v_lshrrev_b32 v64, 1, v116')
    a('v_lshrrev_b32 v65, 3, v117')
    a('v_and_b32 v66, 1, v116')
    a('v_and_b32 v68, 7, v117')
    a('v_lshlrev_b32 v67, 8, v65')
    a('v_lshl_add_u32 v67, v68, 5, v67')
    a('v_lshl_add_u32 v67, v66, 4, v67')
    a(f'v_add_u32 v69, {MP + (w >> 1) * 1088 + (w & 1) * 512}, v67')
    a(f'v_add_u32 v70, {MJ}, v67')
    a('v_cmp_eq_u32 vcc, v64, v65')
    a('v_cndmask_b32 v113, v70, v69, vcc')
    if w < 2:
        if PPERM:
            a('v_and_b32 v74, 3, v117')
            a('v_lshlrev_b32 v74, 1, v74')
            a('v_bfe_u32 v75, v117, 2, 1')
            a('v_or_b32 v74, v74, v75')
            a('v_and_b32 v75, 8, v117')
            a('v_or_b32 v74, v74, v75')
        else: a('v_mov_b32 v74, v117')
        a('v_lshlrev_b32 v67, 9, v64')
        a('v_lshl_add_u32 v67, v74, 4, v67')
        a('v_lshl_add_u32 v67, v66, 3, v67')
        a(f'v_add_u32 v114, {XP + w*256}, v67')
        a('v_mul_u32_u24 v67, 1088, v65')
        a('v_lshl_add_u32 v67, v116, 5, v67')
        a('v_and_b32 v75, 1, v117')
        a('v_and_b32 v76, 2, v117')
        a('v_lshl_add_u32 v75, v76, 1, v75')
        a('v_bfe_u32 v76, v117, 2, 1')
        a('v_lshl_add_u32 v75, v76, 1, v75')
        a('v_lshl_add_u32 v67, v75, 2, v67')
        a(f'v_add_u32 v115, {MP + w*128}, v67')
        a('v_and_b32 v69, 1, v74')
        a('v_lshlrev_b32 v67, 7, v69')
        a('v_lshl_add_u32 v67, v116, 4, v67')
        a('v_lshl_add_u32 v67, v65, 8, v67')
        a('v_bfe_u32 v69, v74, 1, 2')
        a('v_lshl_add_u32 v67, v69, 2, v67')
        a('s_lshl_b32 s22, s17, 9')
        a(f's_add_u32 s22, s22, {PX + w*64}')
        a('v_add_u32 v72, s22, v67')
        a('v_bfe_u32 v69, v75, 1, 1')
        a('v_lshlrev_b32 v67, 7, v69')
        a('v_lshl_add_u32 v67, v116, 4, v67')
        a('v_and_b32 v69, 4, v75')
        a('v_add_u32 v67, v67, v69')
        a('s_lshr_b32 s22, s17, 1')
        a('s_lshl_b32 s22, s22, 8')
        a('s_and_b32 s27, s17, 1')
        a('s_lshl_b32 s27, s27, 3')
        a('s_add_u32 s22, s22, s27')
        a(f's_add_u32 s22, s22, {PM + w*64}')
        a('v_add_u32 v67, s22, v67')
        a('v_and_b32 v69, 9, v117')
        a('v_mov_b32 v70, 0x40000000')
        a('v_cmp_eq_u32 vcc, 0, v69')
        a('v_cndmask_b32 v118, v70, v67, vcc')
        a('v_mov_b32 v119, -1')
    if w == 2:
        a('s_lshl_b32 s22, s17, 9')
        a(f's_add_u32 s22, s22, {PX}')
        a('v_lshl_add_u32 v114, v1, 3, s22')
        a('s_lshr_b32 s22, s17, 1')
        a('s_lshl_b32 s22, s22, 8')
        a('s_and_b32 s27, s17, 1')
        a('s_lshl_b32 s27, s27, 3')
        a('s_add_u32 s22, s22, s27')
        a(f's_add_u32 s22, s22, {PM}')
        a('v_add_u32 v115, s22, v2')
        a('v_mov_b32 v70, 0x40000000')
        a('v_cmp_gt_u32 vcc, 16, v1')
        a('v_cndmask_b32 v115, v70, v115, vcc')
        a('v_mov_b32 v118, -1')
        a('v_mov_b32 v119, -1')
    if w == F1_W:
        a('s_lshl_b32 s22, s17, 2')
        a(f's_add_u32 s22, s22, {FLG1}')
        a('v_lshl_add_u32 v67, v1, 7, s22')
        a('v_mov_b32 v70, 0x40000000')
        a(f'v_cmp_gt_u32 vcc, {R1}, v1')
        a('v_cndmask_b32 v73, v70, v67, vcc')
        a('v_mov_b32 v112, 1')
    a('v_and_b32 v0, 15, v1')
    a(f's_and_b32 s22, s17, {R2-1}')
    a('s_lshl_b32 s22, s22, 7')
    a(f's_add_u32 s22, s22, {FLG2}')
    a('v_lshl_add_u32 v0, v0, 2, s22')
    kb = 4 + (w >> 1)
    k1, k2 = (kb, 6) if w & 1 else (6, kb)
    a('v_xor_b32 v69, 256, v2')
    a(f'v_mul_i32_i24 v70, {(k2 - k1) * 2048}, v66')
    a('v_add_u32 v69, v69, v70')
    a(f'v_add_u32 v117, {(k1 - w)*2048}, v69')
    a('v_mov_b32 v116, v73')
    if w == 0: a('v_mov_b32 v112, 0')
    a(f's_mul_i32 s35, s17, {VO_SV}')
    a(f's_add_u32 s33, s35, {VO_OFF + VO_SS}')
    a('s_mov_b32 s34, 0')
    a(f's_add_u32 s35, s35, {VO_OFF + 4*VO_SS}')
    if w < 2: a('v_mov_b32 v1, v72')
    for r in range(36, 80): a(f'v_mov_b32 v{r}, 0')
    if NOX:
        for r in range(80, 112): a(f'v_mov_b32 v{r}, 0')
    touch_ring(a, 14, w)
    if CT3:
        a('v_lshlrev_b32 v16, 2, v2')
        a('v_lshlrev_b32 v16, 1, v16') if False else None
        code_touch_at(a, f'cA_sc{w}_loop', 16, 15)
    for k in range(8):
        r = 80 + 4 * k
        if not NOX: a(f'buffer_load_dwordx4 v[{r}:{r+3}], v{117 if k < 4 else 2}, {SRD}, {"s26" if k & 2 else "s24"} offen offset:{(k & 1)*1024} {XFL}')
    load_units(a, units[40:], 's31', fl='sc1')

YL = 0; ML = 8 * KB; WL = 16 * KB
def vlds(w):
    return [[0, 1, None, None], [None, 1, 0, None], [None, None, 0, 1]][REBAL][w]
def vwreg(w, ti, ks):
    u = ti * 7 + ks
    return 256 + 8 * u if u < 32 else (176 if w < 2 else 120) + 8 * (u - 32)

def vo_wait0(a, P):
    a('s_lshl_b32 s27, s17, 7')
    a(f's_add_u32 s27, s27, {CNT_OFF + VOC}')
    a('s_mov_b32 s30, 0')
    a.label(P)
    a(f'buffer_load_dword v9, off, {SRD}, s27 sc1')
    a('s_waitcnt vmcnt(0)')
    a('v_cmp_ne_u32 vcc, 56, v9')
    a(f's_cbranch_vccz {P}_d')
    a('s_sleep 2')
    spin(a, P, 'cA_abort')
    a.label(P + '_d')

def resolve_waits(ins):
    out = []; pos = {}; n = 0
    for x in ins:
        if isinstance(x, tuple) and x[0] == 'tag':
            n += 1; pos[x[1]] = n; out.append(x[2])
        elif isinstance(x, tuple):
            out.append(f's_waitcnt lgkmcnt({min(15, n - pos[x[1]])})')
        else:
            if x.startswith('ds_'): n += 1
            out.append(x)
    return out

def gen_value(a, w, st, tag):
    L = lambda n: f'{tag}_va{w}_{n}'
    ABORT = f'{tag}_abort'
    fin = w < 2
    M = 8; ACC = 36
    YA = 152 if fin else 104
    YT = 64; VOR = 80; LO = 48; PL = 52; HI = 160
    STG = [64, 72, 144] if fin else [68, 76, 84]
    nrt = 6 if fin else 7
    lt = vlds(w) is not None
    nt = nrt + lt
    own = [[4, 5], [5, 6], [0, 1], [2, 3]][w]
    wrt = own if w != 1 else [6]
    late = []
    if V2:
        own = wrt = [[2], [3], [0], [1]][w]
        late = [[], [], [4, 5], [6]][w]
    oth = [k for k in range(7) if k not in own]
    def S(ti, ks):
        b = f'v[{STG[ks % 3]}:{STG[ks % 3]+7}]' if ti == nrt else ureg(vwreg(w, ti, ks), 8)
        return f'v_smfmac_f32_16x16x64_bf16 v[{ACC+4*ti}:{ACC+4*ti+3}], v[{M+4*ks}:{M+4*ks+3}], {b}, v3'
    def fold(t):
        r = ACC + 4 * t
        return [f'v_permlane32_swap_b32 v{r}, v{r+2}', f'v_permlane32_swap_b32 v{r+1}, v{r+3}', f'v_add_f32 v{r}, v{r}, v{r+2}', f'v_add_f32 v{r+1}, v{r+1}, v{r+3}',
                f'v_cvt_pk_bf16_f32 v{r+2}, v{r}, v{r+1}', f'ds_write_b32 v{YA+t}, v{r+2}']
    def wrd(ks):
        b = STG[ks % 3]
        return [f'ds_read_b128 v[{b}:{b+3}], v0 offset:{ks*UNIT}', ('tag', f'w{ks}', f'ds_read_b128 v[{b+4}:{b+7}], v0 offset:{ks*UNIT+1024}')]
    def mld(ks): return f'buffer_load_dwordx4 v[{M+4*ks}:{M+4*ks+3}], v2, {SRD}, {"s20" if ks < 4 else "s23"} offen offset:{(ks & 3) * 1024} sc1'
    def vol(h):
        if PROT: pre = [f's_add_u32 s22, s25, s{80 + h // 4}'] if h % 4 == 0 else ['s_add_u32 s22, s22, 3584'] if h % 2 == 0 else []
        else: pre = [f's_add_u32 s22, s25, {h*1792}'] if h % 2 == 0 else []
        return pre + [f'buffer_load_dwordx4 v[{VOR+4*h}:{VOR+4*h+3}], v6, {SRD}, s22 offen offset:{(h & 1)*1792} sc1']
    isv = lambda o: isinstance(o, str) and o.startswith('v_')
    pois = f'buffer_store_dword v162, v1, {SRD}, s21 offen {st}'
    mg = f'buffer_store_dword v{HI}, v1, {SRD}, s38 offen sc1'
    mgp = f'buffer_store_dword v{HI}, v1, {SRD}, s38 offen {st or ["sc1", "", "nt", "sc0"][MG_MODE]}'
    zr = list(range(ACC, ACC + max(28, 4 * nt)))
    a.raw('.p2align 6')
    a.label(L('loop'))
    a('s_mov_b32 s30, 0')
    if w == 2:
        flagpoll(a, 119, 's19', 96, L('fp'), ABORT)
        if not V2:
            for ks in own: a(mld(ks))
        a('s_barrier')
        if V2:
            for ks in own: a(mld(ks))
    else:
        a('s_barrier')
        for ks in own: a(mld(ks))
    stamp(a, 0)
    a('s_barrier')
    if STEPLOG and w == 1: a('s_memtime s[40:41]')
    ny = 0
    def t2pub():
        for r in range(YT, YT + 16): a(f'v_min_u32 v{r}, -2, v{r}')
        for k in range(4):
            if k == 2: a('s_add_u32 s33, s33, 4096')
            a(f'buffer_store_dwordx4 v[{YT+4*k}:{YT+4*k+3}], v2, {SRD}, s33 offen offset:{(k & 1)*2048} sc1')
        a('s_add_u32 s33, s33, 4096')
    if fin:
        a(f's_cmp_lt_u32 s19, {MG_SW}')
        a(f's_cbranch_scc1 {L("m1")}')
        a(mg)
        a(f's_cmp_lg_u32 s19, {NSTEPS-1}')
        a(f's_cbranch_scc1 {L("m2")}')
        t2pub()
        if V2 and w == 1:
            for r in zr: a(f'v_mov_b32 v{r}, 0')
        if V2 == 2: a('s_barrier')
        a('s_waitcnt vmcnt(5)')
        a(f's_branch {L("m3")}')
        a.label(L('m1'))
        a(mgp)
        a.label(L('m2'))
        ny += 1
        for h in range(VO_PRE):
            for x in vol(h): a(x)
        ny += VO_PRE
        a(f's_mul_i32 s38, s18, {7*KB}')
        a(f's_add_u32 s38, s38, {MEMG_OFF}')
        if V2 and w == 1:
            for r in zr: a(f'v_mov_b32 v{r}, 0')
    if V2 == 2:
        if not fin:
            a(f's_sleep {LATE_SL}')
            for ks in late: a(mld(ks))
            ny += len(late)
        a('s_barrier')
        if fin:
            for h in range(VO_PRE, VO_PRE2):
                for x in vol(h): a(x)
            ny += VO_PRE2 - VO_PRE
    if w == 3:
        a(f'buffer_load_dword v100, v116, {SRD}, {"s39" if not NOXT else "s20"} offen sc1')
        a('s_add_u32 s27, s19, 2')
        a('s_min_u32 s27, s27, 63')
        a('s_lshr_b32 s27, s27, 3')
        a('s_lshl_b32 s27, s27, 11')
        a('s_add_u32 s27, s27, s35')
        a('s_cmp_eq_u32 s27, s28')
        a(f's_cselect_b32 s29, {FLG1}, s27')
        a(f'buffer_load_dword v101, off, {SRD}, s29 sc1')
        a(f's_add_u32 s39, s39, {XSEG_B}')
        ny += 2
    if VPROBE >= 0 and w == 1:
        a(f's_waitcnt vmcnt({VPROBE})')
        a('s_memtime s[42:43]')
    a(f's_waitcnt vmcnt({ny})')
    if fin: a.label(L('m3'))
    stamp(a, 1)
    mw = lambda ks: f'ds_write_b128 v2, v[{M+4*ks}:{M+4*ks+3}] offset:{ML + ks*1024}'
    mr = lambda ks: ('tag', f'm{ks}', f'ds_read_b128 v[{M+4*ks}:{M+4*ks+3}], v2 offset:{ML + ks*1024}')
    if V2:
        for ks in wrt: a(mw(ks))
        e1 = [k for k in range(4) if k not in own]
        seq = [[t, S(t, ks), []] for ks in own + e1 for t in range(nrt)]
        if V2 == 1:
            for k, ks in enumerate(late): seq[LATE_POS + k][2].append(mld(ks))
        seq[B1_POS][2] += ['s_waitcnt lgkmcnt(0)', 's_barrier'] + [mr(ks) for ks in e1]
        for k, ks in enumerate(e1): seq[nrt * (k + 1) - 1][2].append(('wait', f'm{ks}'))
        if fin:
            if V2 == 1:
                for h in range(VO_PRE, 16): seq[B1_POS + 1 + (h - VO_PRE) * VO_EVERY][2] += vol(h)
            else:
                for h in range(VO_PRE2, 16): seq[(h - VO_PRE2) * VO_EVERY][2] += vol(h)
        if lt:
            for j_ in range(4):
                seq.insert(len(seq) - 3 * (3 - j_) - 1, [nrt, S(nrt, j_), []])
            pos = [i_ for i_, x in enumerate(seq) if x[0] == nrt]
            for j_, idx in enumerate(pos):
                seq[idx - 7][2] += wrd(j_)
                seq[idx - 1][2].append(('wait', f'w{j_}'))
            for j_ in (4, 5): seq[pos[j_ - 2]][2] += wrd(j_)
        seq[-1][2] += ([f's_waitcnt vmcnt({2 if V2 == 2 and w == 3 else 0})'] + [mw(ks) for ks in late] if late else []) + ['s_waitcnt lgkmcnt(0)', 's_barrier'] + [mr(ks) for ks in (4, 5, 6) if ks not in late]
        if lt: seq[-1][2] += wrd(6)
        seq[-1][2].append('s_waitcnt lgkmcnt(0)')
        seq += [[t, S(t, ks), []] for t in range(nt) for ks in (4, 5, 6)]
    else:
        for ks in wrt: a(f'ds_write_b128 v2, v[{M+4*ks}:{M+4*ks+3}] offset:{ML + ks*1024}')
        seq = [[t, S(t, ks), []] for ks in own for t in range(nrt)]
        seq[B1_POS][2] += ['s_waitcnt lgkmcnt(0)', 's_barrier'] + [('tag', f'm{ks}', f'ds_read_b128 v[{M+4*ks}:{M+4*ks+3}], v2 offset:{ML + ks*1024}') for ks in oth]
        n0 = len(seq)
        rest = [[t, S(t, ks), []] for t in range(nrt) for ks in oth]
        if lt:
            for j_ in range(7): rest.insert(3 + 4 * j_, [nrt, S(nrt, j_), []])
        seq += rest
        for k, ks in enumerate(oth):
            idx = next(i_ for i_ in range(n0, len(seq)) if seq[i_][1] == S(0, ks))
            seq[idx - 1][2].append(('wait', f'm{ks}'))
        if lt:
            for j_ in range(7):
                idx = n0 + 3 + 4 * j_
                seq[idx - (8 if j_ else 5)][2] += wrd(j_)
                seq[idx - 1][2].append(('wait', f'w{j_}'))
        if fin:
            for h in range(VO_PRE, 16): seq[(h - VO_PRE) * VO_EVERY][2] += vol(h)
            if TLB_WARM and w == 1:
                seq[(16 - VO_PRE) * VO_EVERY][2] += [f's_add_u32 s22, s25, {VO_SS + GSH_B - 128}', f'buffer_load_dword v164, off, {SRD}, s22 sc1']
    prime = [f'buffer_load_dword v{164+(0 if NBPOLL else k)}, v4, {SRD}, 0 offen sc1' for k in range(POLL_DEPTH)] if w == 0 and PRIME else []
    for k, x in enumerate(prime): seq[len(seq) - 1 - PRIME * (POLL_DEPTH - 1 - k)][2].append(x)
    last = {}
    for i_, (t, m, sd) in enumerate(seq): last[t] = i_
    ins = []; pend = []; delay = 0; brk = None
    for i_, (t, m, sd) in enumerate(seq):
        ins.append(m)
        ops = list(sd)
        if pend and pend[0].startswith('ds_'): ops.insert(0, pend.pop(0))
        if brk == i_:
            ops.append(f's_cbranch_vccnz {L("slow")}')
            assert not fin or i_ > (16 - VO_PRE) * VO_EVERY + (B1_POS + 1 if V2 else 0)
        if brk is not None and brk + 2 == i_ and fin: ops.append(pois)
        if delay: delay -= 1
        elif pend:
            for _ in range(2 if V2 and len(pend) > V2_DBL else 1):
                if pend and not pend[0].startswith('ds_'):
                    x = pend.pop(0); ops.append(x)
                    if x.startswith('v_cmp'): brk = i_ + 2
        ins += [o for o in ops if not isv(o)] + [o for o in ops if isv(o)]
        if i_ == last[t]:
            delay = max(delay, 2 - len(pend))
            f_ = fold(t)
            if t == 0: f_.insert(4, f'v_cmp_u_f32 vcc, v{ACC}, v{ACC+1}')
            pend += f_
    ins += pend
    nm = 0
    for x in resolve_waits(ins):
        if 'smfmac' in x:
            nm += 1
            if NOT2 and 24 < nm <= 24 + NOT2: continue
        a(x)
    a.label(L('t2d'))
    stamp(a, 2)
    if fin:
        pr = lambda c: 8 + 4 * c
        def pld(c):
            so = ('s22', 's34', 's36')[c // 4]; o = (c & 3) * 1024
            if PROT and c < 8: so = f's{72 + c // 2}'; o = (c & 1) * 1024
            a(f'buffer_load_dwordx4 v[{pr(c)}:{pr(c)+3}], v2, {SRD}, {so} offen offset:{o} sc1')
        if PROT:
            for j_ in range(4): a(f's_add_u32 s{72+j_}, s20, s{76+j_}')
        a(f's_add_u32 s22, s20, {PX}')
        a(f's_add_u32 s34, s20, {PX + 4096}')
        a(f's_add_u32 s36, s20, {PM}')
        a('s_mov_b32 s37, 0')
        for r in range(LO, LO + 4): a(f'v_mov_b32 v{r}, 0')
        a('v_mov_b32 v163, s18')
        a(f's_cmp_eq_u32 s19, {NSTEPS-1}')
        a('s_waitcnt lgkmcnt(0)')
        a(f's_cbranch_scc1 {L("last")}')
        if STAMPS:
            a('s_waitcnt vmcnt(0)')
            stamp(a, 3)
        if STEPLOG and w == 1 and VPROBE < 0:
            a('s_waitcnt vmcnt(0)')
            a('s_memtime s[42:43]')
        if w == 0:
            a('s_setprio 3')
            if FIN_SLEEP: a(f's_sleep {FIN_SLEEP}')
            flagpoll(a, 4, 's18', 164, L('fw'), ABORT, FP1, primed=PRIME > 0)
            for c in range(B3_AT): pld(c)
            if F2_W0: a(f'buffer_store_dword v163, v7, {SRD}, 0 offen {st}')
        a('s_barrier')
        if w == 0:
            for c in range(B3_AT, 10): pld(c)
        elif B3_AT < 10:
            for k in range(2 * (10 - B3_AT) + 4): a(f'v_mov_b32 v{PL+4+(k & 7)}, 0')
        stamp(a, 4)
        if w == 1:
            if W1_DELAY: a(f's_sleep {W1_DELAY}')
            for c in range(10):
                pld(c)
                if c == F2_W1: a(f'buffer_store_dword v163, v165, {SRD}, 0 offen {st}')
        for k in range(4): a(f'ds_read_b128 v[{YT+4*k}:{YT+4*k+3}], v2 offset:{YL + w*4096 + k*1024}')
        a.label(L('lp'))
        nst = 1 if F2_W0 and w == 0 else 0
        ckc = list(range(min(F3_POS - 1, 8))) if PCHK and w == 1 and not V2 else []
        for c in range(10):
            a(f's_waitcnt vmcnt({9-c+nst+(1 if w == 1 and c <= F2_W1 else 0)})' + (' lgkmcnt(0)' if c == 8 else ''))
            if c == 0: stamp(a, 5)
            B_ = VOR + 8 * c if c < 8 else YT + 8 * (c - 8)
            a(f'v_smfmac_f32_16x16x64_bf16 v[{LO}:{LO+3}], v[{pr(c)}:{pr(c)+3}], v[{B_}:{B_+7}], v3')
            if c == F3_POS and w == 1 and not V2:
                if ckc: a(f's_cbranch_vccnz {L("rv")}')
                a(f'buffer_store_dword v163, v7, {SRD}, 0 offen {st}')
                nst = 1
            if c in ckc:
                if c % 2 == 0 and c > 0: a(f'v_max3_u32 v{PL+3}, v{PL+3 if c > 2 else pr(0)}, v{pr(c-1)}, v{pr(c)}')
                elif c == ckc[-1] and c > 0: a(f'v_max_u32 v{PL+3}, v{PL+3 if c > 2 else pr(0)}, v{pr(c)}')
                if c == ckc[-1]: a(f'v_cmp_eq_u32 vcc, -1, v{PL+3 if c > 0 else pr(0)}')
        stamp(a, 6)
        a(f'v_permlane32_swap_b32 v{LO}, v{LO+2}')
        a(f'v_permlane32_swap_b32 v{LO+1}, v{LO+3}')
        a(f'v_pk_add_f32 v[{LO}:{LO+1}], v[{LO}:{LO+1}], v[{LO+2}:{LO+3}]')
        a(f'v_cvt_pk_bf16_f32 v{HI}, v{LO}, v{LO+1}')
        a(f'v_cmp_u_f32 vcc, v{LO}, v{LO+1}')
        a(f'v_mov_b32_dpp v{HI+1}, v{HI} quad_perm:[1,0,3,2] {D}')
        a(f'v_perm_b32 v{HI}, v{HI+1}, v{HI}, v5')
        a(f'v_cndmask_b32 v{HI+1}, v{HI}, v162, vcc')
        a(f'buffer_store_dword v{HI+1}, v1, {SRD}, s21 offen {st}')
        a(f's_cbranch_vccnz {L("rp")}')
        a.label(L('cont'))
        stamp(a, 7)
        if w == 0: a('s_setprio 0')
        a(f's_cmp_lg_u32 s19, {NSTEPS-2}')
        a(f's_cbranch_scc1 {L("nl")}')
        if LAST_DIRECT:
            if w == 0: a('s_sleep 4')
            a(mg)
        if LAST_DIRECT: a('s_mov_b32 s38, 0x40000000')
        a('s_mov_b32 s25, 0x40000000')
        a.label(L('nl'))
        if not NOVO: a(f's_add_u32 s25, s25, {VO_SS}')
        stamp_flush(a, 4 + w, L('sf'), PL)
        if STEPLOG and w == 1:
            a('s_sub_u32 s40, s42, s40')
            a('s_lshl_b32 s22, s17, 8')
            a('s_lshl_b32 s42, s19, 2')
            a('s_add_u32 s22, s22, s42')
            a(f's_add_u32 s22, s22, {STAMP_OFF + 8192}')
            a(f'v_mov_b32 v{PL+1}, s40')
            a(f'buffer_store_dword v{PL+1}, off, {SRD}, s22')
        if not (V2 and w == 1):
            for r in zr: a(f'v_mov_b32 v{r}, 0')
    else:
        a('v_mov_b32 v117, s18')
        if w == 3:
            a('s_cmp_eq_u32 s27, s28')
            a(f's_cbranch_scc1 {L("vok")}')
            a.label(L('vow'))
            a('s_waitcnt vmcnt(0)')
            a('v_cmp_ne_u32 vcc, 56, v101')
            a(f's_cbranch_vccnz {L("vor")}')
            a('s_mov_b32 s28, s27')
            a.label(L('vok'))
        a('s_waitcnt lgkmcnt(0)')
        stamp(a, 3)
        if w == 3 and F2_PRIO: a('s_setprio 3')
        if w == 3 and FIRST_SL: a('s_cmp_eq_u32 s19, 0')
        a('s_barrier')
        if w == 3 and FIRST_SL:
            a(f's_cbranch_scc1 {L("f0")}')
            a.label(L('f1'))
        nd = F2_DELAY if w == 3 else 0
        for r in zr[:nd]: a(f'v_mov_b32 v{r}, 0')
        if w == 3 and not F2_W0 and F2_W1 < 0: a(f'buffer_store_dword v117, v118, {SRD}, 0 offen {st}')
        if w == 3 and F2_PRIO: a('s_setprio 0')
        a(f's_cmp_eq_u32 s19, {NSTEPS-1}')
        a(f's_cbranch_scc1 {tag}_done')
        if w == 2: a('s_sleep 1')
        if VSPF:
            a(f's_add_u32 s25, s25, {VO_SS}')
            for k in range(VSPF): a(f's_buffer_load_dword s{64 + (k & 3)}, {SRD}, s25 offset:{GSH_B - ((w - 1) * VSPF - k) * 64}')
        for r in zr[nd:]: a(f'v_mov_b32 v{r}, 0')
        if w == 2 and P3_SLEEP: a(f's_sleep {P3_SLEEP}')
        stamp_flush(a, 4 + w, L('sf'), 92)
    next_step(a)
    a.flush()
    a(f's_branch {L("loop")}')
    a.label(L('slow'))
    a('s_waitcnt lgkmcnt(0)')
    a.label(L('sl1'))
    a('s_add_u32 s31, s31, 0x1000000')
    for ks in range(7): a(mld(ks))
    a('s_waitcnt vmcnt(0)')
    poison_max(a, ACC, range(M, M + 28))
    a(f'v_cmp_eq_u32 vcc, -1, v{ACC}')
    a(f's_cbranch_vccz {L("sl2")}')
    spin(a, L('sl1'), ABORT)
    a.label(L('sl2'))
    for r in zr: a(f'v_mov_b32 v{r}, 0')
    if fin: a(pois)
    for ks in range(7):
        if lt:
            for x in resolve_waits(wrd(ks)): a(x)
        for t in range(nt):
            if t == nrt: a('s_waitcnt lgkmcnt(0)')
            a(S(t, ks))
    for t in range(nt):
        for x in fold(t): a(x)
    for x in prime: a(x)
    a(f's_branch {L("t2d")}')
    if fin:
        a.label(L('last'))
        a('s_barrier')
        for k in range(4): a(f'ds_read_b128 v[{YT+4*k}:{YT+4*k+3}], v2 offset:{YL + w*4096 + k*1024}')
        a('s_waitcnt lgkmcnt(0)')
        t2pub()
        if w == 0 or not WB1:
            if WB1:
                a('s_cmp_lg_u32 s17, 0')
                a(f's_cbranch_scc1 {tag}_done')
            a('s_waitcnt vmcnt(0)')
            a('buffer_wbl2 sc1')
        a(f's_branch {tag}_done')
        a.label(L('rp'))
        a('s_cmp_eq_u32 s37, 0')
        a(f's_cbranch_scc1 {L("rv")}')
        a(f'v_min_u32 v{HI}, -2, v{HI}')
        a(f'buffer_store_dword v{HI}, v1, {SRD}, s21 offen {st}')
        a(f's_branch {L("cont")}')
        a.label(L('rv'))
        a('s_add_u32 s31, s31, 0x10000')
        for c in range(10): pld(c)
        a('s_waitcnt vmcnt(0)')
        poison_max(a, PL, [pr(c) + r for c in range(10) for r in range(4)])
        a(f'v_cmp_eq_u32 vcc, -1, v{PL}')
        a('s_mov_b32 s37, 1')
        for r in range(LO, LO + 4): a(f'v_mov_b32 v{r}, 0')
        a.flush()
        a(f's_cbranch_vccz {L("lp")}')
        spin(a, L('rv'), ABORT)
    if w == 3 and FIRST_SL:
        a.label(L('f0'))
        a(f's_sleep {FIRST_SL}')
        a(f's_branch {L("f1")}')
    if w == 3:
        a.label(L('vor'))
        a('s_sleep 2')
        a(f'buffer_load_dword v101, off, {SRD}, s27 sc1')
        spin(a, L('vow'), ABORT)

def init_value(a, w):
    fin = w < 2
    YA = 152 if fin else 104
    a('v_mov_b32 v72, v116')
    a('v_mov_b32 v73, v117')
    a('v_lshrrev_b32 v65, 1, v72')
    a('v_and_b32 v66, 1, v72')
    for r in range(36, 64): a(f'v_mov_b32 v{r}, 0')
    a('v_lshlrev_b32 v75, 2, v65')
    a('v_lshl_add_u32 v75, v66, 3, v75')
    tl = [7 * w + t for t in range(6 if fin else 7)] + ([7 * vlds(w) + 6] if vlds(w) is not None else [])
    for t, gt in enumerate(tl):
        a(f'v_add_u32 v67, {16 * gt}, v73')
        a('v_mul_u32_u24 v68, 2341, v67')
        a('v_lshrrev_b32 v68, 16, v68')
        a('v_mul_u32_u24 v69, 28, v68')
        a('v_sub_u32 v69, v67, v69')
        a('v_lshrrev_b32 v70, 4, v69')
        a('v_and_b32 v69, 15, v69')
        a('v_lshlrev_b32 v71, 12, v70')
        a('v_lshl_add_u32 v71, v68, 8, v71')
        a('v_lshl_add_u32 v71, v69, 4, v71')
        a(f'v_add_u32 v{YA+t}, v71, v75')
    a('v_mov_b32 v74, 0x40000000')
    a(f'v_mov_b32 v{164 if fin else 96}, 0')
    if vlds(w) is not None: a(f'v_add_u32 v0, {WL + vlds(w)*TILE_B}, v2')
    if fin:
        a('v_mov_b32 v76, 0\nv_mov_b32 v77, 0\nv_mov_b32 v78, 0\nv_mov_b32 v79, 0')
        for k in range(4): a(f'ds_write_b128 v2, v[76:79] offset:{YL + w*4096 + k*1024}')
        a(f's_and_b32 s22, s17, {R1-1}')
        a('s_lshl_b32 s22, s22, 7')
        a(f's_add_u32 s22, s22, {FLG1}')
        a('v_lshl_add_u32 v4, v73, 2, s22')
        a('v_and_b32 v64, 1, v73')
        a('v_mov_b32 v5, 0x05040100')
        a('v_mov_b32 v65, 0x03020706')
        a('v_cmp_eq_u32 vcc, 1, v64')
        a('v_cndmask_b32 v5, v5, v65, vcc')
        a('s_lshl_b32 s22, s17, 2')
        a(f's_add_u32 s22, s22, {FLG2 + (16*128 - FOFF)*w}')
        a('v_lshl_add_u32 v7, v1, 7, s22')
        a(f'v_cmp_gt_u32 vcc, {R2}, v1')
        a('v_cndmask_b32 v7, v74, v7, vcc')
        a(f'v_subrev_u32 v165, {2048 - FOFF}, v7')
        if w == 0: a('v_mov_b32 v6, v2')
        else:
            a('v_min_u32 v65, 11, v73')
            a('v_mad_u32_u24 v65, v72, 12, v65')
            a('v_lshlrev_b32 v6, 4, v65')
            a('v_add_u32 v6, 1024, v6')
        a('v_lshl_add_u32 v64, v66, 2, v64')
        a('v_and_b32 v65, 2, v72')
        a('v_add_u32 v64, v64, v65')
        a(f's_mul_i32 s22, s17, {12 if w else 16}')
        if w: a('s_add_u32 s22, s22, 256')
        a('v_add_u32 v75, s22, v73')
        a('v_lshrrev_b32 v68, 4, v75')
        a('v_lshlrev_b32 v68, 8, v68')
        a('v_bfe_u32 v69, v75, 1, 1')
        a('v_lshl_add_u32 v68, v69, 7, v68')
        a('v_lshl_add_u32 v68, v64, 4, v68')
        a('v_and_b32 v69, 12, v75')
        a('v_add_u32 v1, v68, v69')
        if MLIN and w == 0:
            a('s_lshl_b32 s22, s17, 8')
            a('v_lshrrev_b32 v1, 2, v2')
            a('v_add_u32 v1, s22, v1')
        if w == 1:
            a('v_cmp_gt_u32 vcc, 12, v73')
            a('v_cndmask_b32 v1, v74, v1, vcc')
        a(f's_mul_i32 s22, s17, {VO_SV}')
        a(f's_add_u32 s25, s22, {VO_OFF}')
        a(f's_and_b32 s27, s17, {PROT}')
        for j_ in range(4):
            a(f's_xor_b32 s22, s27, {j_}')
            a(f's_mul_i32 s{80+j_}, s22, 7168')
            a('s_lshl_b32 s22, s22, 11')
            a(f's_add_u32 s{76+j_}, s22, {PX}')
        a('v_mov_b32 v162, -1')
        a('s_mov_b32 s38, 0x40000000')
    else:
        a(f's_mul_i32 s22, s17, {VO_SV}')
        a(f's_add_u32 s25, s22, {VO_OFF}')
        a('v_and_b32 v119, 15, v1')
        a(f's_and_b32 s22, s17, {R2-1}')
        a('s_lshl_b32 s22, s22, 7')
        a(f's_add_u32 s22, s22, {FLG2 + (0 if V2 else 16*128 - FOFF)}')
        a('v_lshl_add_u32 v119, v119, 2, s22')
        a('s_lshl_b32 s22, s17, 2')
        a(f's_add_u32 s22, s22, {FLG2}')
        a('v_lshl_add_u32 v118, v1, 7, s22')
        a(f'v_cmp_gt_u32 vcc, {R2}, v1')
        a('v_cndmask_b32 v118, v74, v118, vcc')
        a('s_lshl_b32 s35, s17, 7')
        a(f's_add_u32 s35, s35, {CNT_OFF + VOC}')
        for r in range(64, 68): a(f'v_mov_b32 v{r}, 0')
        a('v_min_u32 v116, 13, v1')
        a('s_mul_i32 s22, s17, 14')
        a('v_add_u32 v116, s22, v116')
        a('v_lshlrev_b32 v116, 7, v116')
    a(f's_mul_i32 s31, s17, {CUW_B}')
    a(f's_add_u32 s31, s31, {WF_B + 7*w*TILE_B}')
    if FUSE:
        r_wait(a, f'ch_wr{4+w}', D_R1)
        b_wait(a, f'ch_ww{4+w}', w)
        evlog(a, 9002)
    units = [(ti * TILE_B + ks * UNIT, vwreg(w, ti, ks)) for ti in range(6 if fin else 7) for ks in range(7)]
    load_units(a, units, 's31', fl=WFL())
    if fin:
        for f in range(14):
            if f % 4 == 0:
                a(f's_mov_b32 m0, {WL + w*TILE_B + f*1024}')
                a(f's_add_u32 s22, s31, {6*TILE_B + f*1024}')
            a(f'buffer_load_dwordx4 v2, {SRD}, s22 offen offset:{(f & 3)*1024} {WFL()} lds')
    if CT3:
        a('v_lshlrev_b32 v16, 2, v2')
        code_touch_at(a, f'cA_va{w}_loop', 16, 15)
    r_wait(a, f'ch_ws{4+w}', D_R2)
    if HELP:
        a_wait(a, f'ch_wh{4+w}', [4 + (w >> 1), 6])
        a(f's_mul_i32 s27, s17, {CUW_B}')
        for kap, q in score_tiles(w)[7 - HELP:]:
            for k in range(14):
                if k % 4 == 0: a(f's_add_u32 s22, s27, {WF_A + (kap*4 + q)*TILE_B + k*1024}')
                a(f'buffer_load_dwordx4 v[20:23], v2, {SRD}, s22 offen offset:{(k & 3)*1024} sc1')
    evlog(a, 9012)
    if fin:
        a(f's_mul_i32 s33, s17, {65*8*KB}')
        a(f's_add_u32 s33, s33, {T2_OFF + 63*8*KB + w*1024}')
        for r in range(12, 16): a(f'v_mov_b32 v{r}, -1')
        for k in range(8):
            a(f's_add_u32 s22, s33, {k*2048}')
            a(f'buffer_store_dwordx4 v[12:15], v2, {SRD}, s22 offen sc1')
        a('v_mov_b32 v16, 1')
        a('v_mov_b32 v17, 1')
        a('s_lshl_b32 s22, s17, 10')
        a(f's_add_u32 s22, s22, {CNT_OFF + T2F + 62*16 + 8*w}')
        a('s_waitcnt vmcnt(0)')
        a('s_mov_b64 exec, 3')
        a(f'buffer_store_dwordx2 v[16:17], v2, {SRD}, s22 offen sc1')
        a('s_mov_b64 exec, -1')
    if w >= 2: vo_wait0(a, f'ch_vw{w}')
    a('s_mov_b32 s28, s35')
    if w == 3:
        a(f's_mov_b32 s39, {XF_OFF + XSEG_B}')
        a(f'buffer_load_dword v100, v116, {SRD}, s39 offen sc1')
        a(f's_mov_b32 s39, {XF_OFF + 2*XSEG_B}')

MERGE = 0
RB1_DELAY = 0
def wg_atomic(a, P, dst, srd=DBG):
    a('v_mov_b32 v6, 160000')
    a('s_barrier')
    a('s_cmp_lg_u32 s16, 0')
    a(f's_cbranch_scc1 {P}1')
    a('s_mov_b64 exec, 1')
    a(f'buffer_atomic_add v4, v5, {srd}, 0 offen sc0')
    a('s_waitcnt vmcnt(0)')
    a('ds_write_b32 v6, v4')
    a('s_waitcnt lgkmcnt(0)')
    a('s_mov_b64 exec, -1')
    a.label(f'{P}1')
    a('s_barrier')
    a('ds_read_b32 v4, v6')
    a('s_waitcnt lgkmcnt(0)')
    a(f'v_readfirstlane_b32 {dst}, v4')

def staff_check(a, okl, mode):
    a('s_mov_b32 s30, 0')
    a('v_mov_b32 v36, 0')
    a.label('ch_chk')
    a(f'buffer_load_dword v37, v36, {DBG}, 0 offen sc1')
    a('s_waitcnt vmcnt(0)')
    a('v_readfirstlane_b32 s22, v37')
    a('s_and_b32 s22, s22, 0xffff')
    a('s_cmp_ge_u32 s22, 32')
    a('s_cbranch_scc1 ch_go_end')
    a('s_sleep 16')
    a('s_add_u32 s30, s30, 1')
    a('s_cmp_lt_u32 s30, 64')
    a('s_cbranch_scc1 ch_chk')
    a.label('ch_go_end')
    a('v_mov_b32 v6, 160016')
    a('v_mov_b32 v4, s22')
    a('s_cmp_lg_u32 s16, 0')
    a('s_cbranch_scc1 ch_dec')
    a('ds_write_b32 v6, v4')
    a('s_waitcnt lgkmcnt(0)')
    a.label('ch_dec')
    a('s_barrier')
    a('ds_read_b32 v4, v6')
    a('s_waitcnt lgkmcnt(0)')
    a('v_readfirstlane_b32 s22, v4')
    a('s_cmp_ge_u32 s22, 32')
    a(f's_cbranch_scc1 {okl}')
    a('v_mov_b32 v4, 0x10001')
    a(f's_mov_b32 s18, {mode}')
    a('s_branch ch_take')

D_CLAIM = 4; D_CNT = 12; D_REP = 20; D_R1 = 128; D_R2 = 132; NINIT = int(os.environ.get('NINIT', '8')); UM = 0x3870
FUSE = 1
REP_WAIT = 60
def wg_signal(a, off, inc=1):
    lb = a.newlabel('sig')
    a('s_barrier')
    a('s_cmp_lg_u32 s16, 0')
    a(f's_cbranch_scc1 {lb}')
    a(f'v_mov_b32 v60, {inc}')
    a(f'v_mov_b32 v61, {off}')
    a('s_mov_b64 exec, 1')
    a(f'buffer_atomic_add v60, v61, {DBG}, 0 offen')
    a('s_mov_b64 exec, -1')
    a.label(lb)

def poll(a, P, loads, cond, sleep=2, lim=SPIN_LIMIT, fail='cA_abort'):
    a('s_mov_b32 s30, 0')
    a.label(P)
    for x in loads: a(x)
    a('s_waitcnt vmcnt(0)')
    for x in cond: a(x)
    a(f's_cbranch_vccz {P}_ok')
    a(f's_sleep {sleep}')
    a('s_add_u32 s30, s30, 1')
    a(f's_cmp_lt_u32 s30, {lim}')
    a(f's_cbranch_scc1 {P}')
    a(f's_branch {fail}')
    a.label(P + '_ok')

def uniform(a, sreg, lds=160032):
    lb = a.newlabel('uni')
    a(f'v_mov_b32 v6, {lds}')
    a(f'v_mov_b32 v7, {sreg}')
    a('s_barrier')
    a('s_cmp_lg_u32 s16, 0')
    a(f's_cbranch_scc1 {lb}')
    a('ds_write_b32 v6, v7')
    a('s_waitcnt lgkmcnt(0)')
    a.label(lb)
    a('s_barrier')
    a('ds_read_b32 v7, v6')
    a('s_waitcnt lgkmcnt(0)')
    a(f'v_readfirstlane_b32 {sreg}, v7')

def lanes(a):
    a('v_and_b32 v1, 63, v0')
    a('v_lshlrev_b32 v2, 4, v1')
    a('v_lshrrev_b32 v3, 4, v1')
    a('v_and_b32 v4, 15, v1')

def mem0_load(a):
    from prep import srd
    srd(a, 68, 50, 51, 8 * 448 * 2)
    a('v_lshrrev_b32 v6, 3, v0')
    a('v_min_u32 v6, 27, v6')
    a('v_and_b32 v7, 7, v0')
    a('v_mul_u32_u24 v9, 896, v7')
    a('v_lshl_add_u32 v9, v6, 5, v9')
    a('buffer_load_dwordx4 v[176:179], v9, s[68:71], 0 offen')
    a('buffer_load_dwordx4 v[180:183], v9, s[68:71], 0 offen offset:16')

def init_job(a, P, k_s, mid=None, nmid=0):
    a('v_mov_b32 v10, 0x40000000')
    a('v_mov_b32 v5, 1')
    for r in range(148, 152): a(f'v_mov_b32 v{r}, 0')
    for r in range(152, 156): a(f'v_mov_b32 v{r}, -1')
    a('v_lshlrev_b32 v8, 4, v0')
    def count(Q, off, inc, roff, doff=None):
        a('s_waitcnt vmcnt(0)')
        a('s_barrier')
        a('s_cmp_lg_u32 s16, 0')
        a(f's_cbranch_scc1 {Q}_e')
        a('v_mov_b32 v6, 1')
        a('s_mov_b64 exec, 1')
        a(f'buffer_atomic_add v6, v252, {DBG}, 0 offen offset:{off} sc0')
        a('s_waitcnt vmcnt(0)')
        a('v_readfirstlane_b32 s20, v6')
        a(f's_cmp_lg_u32 s20, {NINIT-1}')
        a(f's_cbranch_scc1 {Q}_e0')
        if doff: a(f'buffer_store_dword v5, v252, {DBG}, 0 offen offset:{doff} sc1')
        a('s_mov_b64 exec, 0xff')
        a('v_lshlrev_b32 v6, 7, v0')
        a(f's_mov_b32 s20, {PFL + 4096}')
        a(f'buffer_store_dword v5, v6, {SRD}, s20 offen offset:{roff} sc1')
        a.label(f'{Q}_e0')
        a('s_mov_b64 exec, -1')
        a.label(f'{Q}_e')
    from prep import srd
    NK = 56 // NINIT
    srd(a, 64, 48, 49, 2048 * 448 * 2)
    a(f's_lshl_b32 s21, {k_s}, 2')
    a('s_add_u32 s21, s21, s16')
    a(f's_lshr_b32 s22, s21, {(NINIT // 4).bit_length() - 1}')
    a(f's_mul_i32 s22, s22, {14*KB}')
    a(f's_and_b32 s24, s21, {NINIT // 4 - 1}')
    a(f's_mul_i32 s24, s24, {64*NK}')
    a('s_add_u32 s22, s22, s24')
    a(f's_mul_i32 s21, s21, {NK*KB}')
    a('v_mul_u32_u24 v7, 896, v4')
    a('v_lshl_add_u32 v7, v3, 4, v7')
    for kk in range(NK): a(f'buffer_load_dwordx4 v[{64+4*kk}:{67+4*kk}], v7, s[64:67], s22 offen offset:{64*kk}')
    mem0_load(a)
    a(f's_cmp_lg_u32 {k_s}, 0')
    a(f's_cbranch_scc1 {P}_1')
    a(f's_mov_b32 s23, {PFL}')
    a(f'buffer_store_dwordx4 v[148:151], v8, {SRD}, s23 offen sc1')
    a(f's_mov_b32 s23, {PFL + 4096}')
    a(f'buffer_store_dwordx4 v[148:151], v8, {SRD}, s23 offen sc1')
    a('s_waitcnt vmcnt(0)')
    a('s_barrier')
    a(f'buffer_store_dword v5, v252, {DBG}, 0 offen offset:{D_R1} sc1')
    a.label(f'{P}_1')
    a('s_waitcnt vmcnt(1)')
    for kk in range(NK):
        if kk % 4 == 0: a(f's_add_u32 s23, s21, {XF_OFF + kk*1024}')
        a(f'buffer_store_dwordx4 v[{64+4*kk}:{67+4*kk}], v2, {SRD}, s23 offen offset:{(kk & 3)*1024} sc1')
    count(P + '_x', D_CLAIM, 1, 8)
    a(f's_lshl_b32 s20, {k_s}, 12')
    a('v_add_u32 v8, s20, v8')
    for base, n, r in ((CNT_OFF, AC, 148), (EXCH_OFF + 2 * EXCH_B, 48 * 128, 148), (EXCH_OFF + 7 * KB, 2 * EXCH_B - 7 * KB, 152), (MEMG_OFF + 7 * KB, 63 * 7 * KB, 152)):
        RB = 4096 * NINIT
        full, rem = divmod(n, RB)
        a(f's_mov_b32 s23, {base}')
        if full:
            lb = a.newlabel(P + 'lp')
            a.label(lb)
            a(f'buffer_store_dwordx4 v[{r}:{r+3}], v8, {SRD}, s23 offen sc1')
            a(f's_add_u32 s23, s23, {RB}')
            a(f's_cmp_lt_u32 s23, {base + full * RB}')
            a(f's_cbranch_scc1 {lb}')
        if rem:
            a(f'v_cmp_gt_u32 vcc, {rem}, v8')
            a('v_cndmask_b32 v9, v10, v8, vcc')
            a(f'buffer_store_dwordx4 v[{r}:{r+3}], v9, {SRD}, s23 offen sc1')
    a(f's_cmp_lg_u32 {k_s}, 1')
    a(f's_cbranch_scc1 {P}_nm')
    a('v_lshrrev_b32 v6, 3, v0')
    a('v_and_b32 v7, 7, v0')
    a('v_lshlrev_b32 v8, 8, v6')
    a('v_lshl_add_u32 v8, v7, 4, v8')
    a('v_cmp_gt_u32 vcc, 28, v6')
    a('v_cndmask_b32 v8, v10, v8, vcc')
    a('s_waitcnt vmcnt(4)')
    for j in range(4):
        a(f'v_min_u32 v{184+j}, -2, v{176+2*j}')
        a(f'v_min_u32 v{188+j}, -2, v{177+2*j}')
    for base in (EXCH_OFF, MEMG_OFF):
        a(f's_mov_b32 s23, {base}')
        a(f'buffer_store_dwordx4 v[184:187], v8, {SRD}, s23 offen sc1')
        a(f'buffer_store_dwordx4 v[188:191], v8, {SRD}, s23 offen offset:128 sc1')
    a.label(f'{P}_nm')
    count(P, D_CNT, 1, 4, D_R2)

FLAG_AT = 4
FLAG2_AT = 16
WP_SLEEP = 8
CT2 = 1
XPRE = 1
POLL_UNROLL = 3
POLL_EARLY = 1
PPERM = 1
CT3 = 1
FIN_SLEEP = 0
PRIME = 3
LATECHK = 3
NOT2 = 0
NBPOLL = 1
F2_W0 = 0
MLIN = 0
RCLS = 0
REBAL = 1
LAST_DIRECT = 0
V2 = 0
TA_FIRST = 1
WB_EVERY = 0
S4X = 1
UPRE = 1
ADX = 1
SRVX = 15
TLAG = 8
HU_W = -1
IDLEX = 2
NIDLE = 32
IDLEM = 0
FX = 1
S4WB = 0
WB1 = 1
MROT = 1
SPF = 14
SPF3 = 0
SPF0 = 14
SPF1W = 14
SPF_SL = 0
VSPF = 0
SPF1 = 0
TWO = 0
TC = 2
FIRST_SL = 3
F2_W1 = -1
SPF1_POS = 3
LATE_POS = 1
LATE_SL = 2
VO_PRE2 = 6
V2_DBL = 3
W0_LATE = 0
W1_DELAY = 0
NB_UNROLL = 16
GST = 0
TA_LATE = 0
def worker_prep(a):
    import prep2
    ldi = [f'buffer_load_dwordx2 v[254:255], v252, {DBG}, 0 offen offset:{D_R1} sc1']
    def flag(P, mat):
        a('s_barrier')
        a('s_cmp_lg_u32 s16, 0')
        a(f's_cbranch_scc1 {P}_f')
        a('v_readfirstlane_b32 s20, v254')
        a('s_cmp_eq_u32 s20, 1')
        a(f's_cbranch_scc1 {P}_w_ok')
        poll(a, P + '_w', [f'buffer_load_dword v254, off, {DBG}, 0 offset:{D_R1} sc1'], ['v_cmp_ne_u32 vcc, 1, v254'], sleep=8, lim=16, fail=P + '_f')
        a('s_lshl_b32 s20, s17, 7')
        a(f's_add_u32 s20, s20, {PFL + (2048 if mat == "A" else 0)}')
        a('s_lshl_b32 s21, 1, s19')
        a('v_mov_b32 v248, s21')
        a('s_mov_b64 exec, 1')
        a(f'buffer_atomic_or v248, v252, {SRD}, s20 offen sc0')
        a('s_mov_b64 exec, -1')
        a(f's_mov_b32 s{38 if mat == "A" else 37}, s21')
        a.label(P + '_f')
    def flag2(P, mat):
        sr = f's{38 if mat == "A" else 37}'
        full = UM if mat == 'A' else 0x3fff
        a('v_readfirstlane_b32 s20, v248')
        a(f's_and_b32 s20, s20, {full}')
        a(f's_xor_b32 s20, s20, {sr}')
        a(f's_cmp_lg_u32 s20, {full}')
        a(f's_cselect_b32 s20, 0, {sr}')
        a(f's_mov_b32 {sr}, 0')
        a('s_cmp_eq_u32 s20, 0')
        a(f's_cbranch_scc1 {P}')
        a(f's_lshl_b32 s21, {0x10000 if mat == "A" else 1}, s17')
        a('v_mov_b32 v248, s21')
        a(f's_mov_b32 s20, {PFL + 4096}')
        a('v_lshlrev_b32 v247, 7, v0')
        a('s_mov_b64 exec, 0xff')
        a(f'buffer_atomic_or v248, v247, {SRD}, s20 offen')
        a('s_mov_b64 exec, -1')
        a.label(P)
    ldr = ldi + [f'buffer_load_dword v253, v252, {DBG}, 0 offen sc1']
    prep2.pst(a)
    a(f's_sub_u32 s35, s3, {XCD_SEL + 1}')
    a('s_and_b32 s35, s35, 7')
    a('s_lshr_b32 s36, s2, 3')
    a('s_lshl_b32 s33, s35, 5')
    a('s_add_u32 s33, s33, s36')
    a('s_mov_b32 s97, 0')
    a('s_mov_b32 s96, 0')
    a('s_mov_b32 s37, 0')
    a('s_mov_b32 s38, 0')
    a('s_mov_b32 s39, 0xffff0000')
    a('s_mov_b32 s101, -1')
    lanes(a)
    a('s_cmp_ge_u32 s33, 224')
    a('s_cbranch_scc1 wp_all')
    if TWO:
        prep2.decode(a, 's33')
        prep2.touch_wo(a, 253)
    if TA_FIRST == 2: prep2.touch_rows(a, 'A', 's33', 253)
    prep2.touch_rows(a, 'B', 's33', 253)
    if TA_FIRST == 1: prep2.touch_rows(a, 'A', 's33', 253)
    if TC == 1:
        prep2.decode(a, 's33')
        a('s_cmp_lt_u32 s18, 4')
        a('s_cselect_b32 s34, 1, 0')
        prep2.touch_cols(a, 253, 's34')
    prep2.consts(a)
    a.label('wp_B')
    prep2.decode(a, 's33')
    prep2.xunit_load(a, 's33')
    def hk(n):
        a('s_mov_b32 s55, s27')
        if n == 8: prep2.setup(a, 'AB')
        else: prep2.touch_rows(a, 'A', 's33', 253)
        a('s_mov_b32 s27, s55')
    prep2.issue(a, 'B', hk, (0, TA_FIRST) if TA_FIRST > 2 else 0)
    a('s_cmp_lt_u32 s18, 4')
    a('s_cselect_b32 s34, 1, s97')
    if not TA_FIRST: prep2.touch_rows(a, 'A', 's33', 253)
    if TC == 0: prep2.touch_cols(a, 253, 's34')
    prep2.compute(a, 'wpb', 'B', (0 if TA_FIRST else 1) + (1 if TC == 0 else 0), pre_epi=ldr, early=prep2.xunit_store())
    evlog(a, 9010)
    a('s_cmp_lg_u32 s34, 0')
    a('s_cbranch_scc1 wp_B2')
    def hook(n):
        if n == 8 + FLAG_AT:
            a(f's_waitcnt vmcnt({n})')
            flag('wp_f1', 'B')
            prep2.pst(a)
        else:
            a(f's_waitcnt vmcnt({n - 8 - FLAG_AT})')
            flag2('wp_g1', 'B')
    prep2.issue(a, 'A', hook, (FLAG_AT, FLAG2_AT))
    a('s_branch wp_A')
    a.label('wp_B2')
    if CT2:
        a('v_lshlrev_b32 v6, 7, v1')
        code_touch_at(a, 'wp_fin', 6, 7)
        code_touch_at(a, 'wg_vo', 6, 7)
    a(f's_waitcnt vmcnt({2 * CT2})')
    flag('wp_f2', 'B')
    prep2.pst(a, 4)
    prep2.pst_flush(a)
    if XPRE:
        a('s_cmp_eq_u32 s97, 0')
        a('s_cselect_b32 s39, -1, s39')
    a('s_branch wp_fin')
    a.label('wp_A0')
    prep2.issue(a, 'A')
    prep2.setup(a, 'A')
    a.label('wp_A')
    prep2.compute(a, 'wpa', 'A', 0, pre_epi=ldr)
    a('s_waitcnt vmcnt(0)')
    flag('wp_f3', 'A')
    prep2.pst(a)
    prep2.pst_flush(a)
    evlog(a, 9011)
    a('s_cmp_eq_u32 s97, 3')
    a('s_cbranch_scc1 wk_adone')
    a.label('wp_fin')
    a('s_cmp_lg_u32 s97, 0')
    a('s_cbranch_scc1 wp_all')
    a('v_readfirstlane_b32 s20, v254')
    a('v_readfirstlane_b32 s21, v253')
    a('s_and_b32 s21, s21, 0xffe0')
    a('s_cselect_b32 s96, s20, 0')
    a('s_cmp_eq_u32 s96, 0')
    a('s_cbranch_scc1 wp_all')
    a('v_mov_b32 v250, 1')
    a(f's_mov_b32 s20, {CNT_OFF + JOBC}')
    a('s_mov_b64 exec, 1')
    a(f'buffer_atomic_add v250, v252, {SRD}, s20 offen sc0')
    a('s_mov_b64 exec, -1')
    a.label('wp_all')
    a('v_mov_b32 v252, 0x40000000')
    a('v_cmp_eq_u32 vcc, 0, v0')
    a('v_cndmask_b32 v252, v252, v0, vcc')
    a('s_mov_b32 s34, 0')
    a('s_cmp_lg_u32 s16, 0')
    a('s_cbranch_scc1 wp_w2')
    a('s_getreg_b32 s24, hwreg(HW_REG_XCC_ID)')
    a(f's_sub_u32 s24, s24, {XCD_SEL}')
    a('s_and_b32 s24, s24, 7')
    a('s_lshl_b32 s24, s24, 7')
    a(f's_add_u32 s24, s24, {PFL + 4096}')
    a('s_cmp_lg_u32 s96, 0')
    a('s_cbranch_scc1 wp_v0')
    a('s_waitcnt vmcnt(0)')
    a.label('wp_v0')
    a('s_cmp_eq_u32 s97, 0')
    a('s_cbranch_scc1 wp_v1')
    a('s_waitcnt vmcnt(0)')
    a.label('wp_v1')
    a('s_waitcnt vmcnt(1)')
    flag2('wp_g3', 'A')
    flag2('wp_g2', 'B')
    a('s_cmp_lg_u32 s96, 0')
    a('s_cbranch_scc1 wp_v_ok')
    poll(a, 'wp_v', [f'buffer_load_dwordx2 v[64:65], off, {DBG}, 0 sc1', f'buffer_load_dword v66, off, {DBG}, 0 offset:{D_R1} sc1'],
         ['v_and_b32 v68, 0xffe0, v64', 'v_min_u32 v68, v68, v66', 'v_cmp_ne_u32 vcc, 1, v68'], sleep=16, lim=REP_WAIT // 2, fail='wp_w1')
    a('v_mov_b32 v64, 32')
    a('s_cmp_eq_u32 s97, 2')
    a(f's_cselect_b32 s31, 1, {REP_WAIT}')
    a('s_cmp_eq_u32 s39, -1')
    a('s_cselect_b32 s20, 4, 0')
    a('s_add_u32 s24, s24, s20')
    poll(a, 'wp_w', [f'buffer_load_dword v66, off, {SRD}, s24 sc1', f'buffer_load_dword v67, off, {SRD}, s24 offset:4 sc1'], ['v_or_b32 v66, s39, v66', 'v_add_u32 v66, v66, v67', 'v_cmp_ne_u32 vcc, 0, v66'], sleep=WP_SLEEP, lim='s31', fail='wp_w1')
    a('s_branch wp_w2')
    a.label('wp_w1')
    a('v_readfirstlane_b32 s20, v64')
    a('v_readfirstlane_b32 s21, v65')
    a('s_and_b32 s20, s20, 0xffff')
    a('s_cmp_lt_u32 s20, 32')
    a('s_cselect_b32 s34, 2, 1')
    a('s_add_u32 s32, s32, 1')
    a('s_cmp_lt_u32 s32, 4000')
    a('s_cselect_b32 s34, s34, 3')
    a.label('wp_w2')
    uniform(a, 's34')
    a('s_cmp_lg_u32 s34, 0')
    a('s_cbranch_scc1 wp_bad')
    a('s_cmp_lg_u32 s39, -1')
    a('s_cbranch_scc1 wp_done')
    import gemm
    a('s_mov_b32 s101, 0')
    gemm.xbase(a, 's101')
    gemm.xload(a, 'sc1')
    a('s_mov_b32 s39, 0xffff0000')
    a('s_branch wp_all')
    a.label('wp_bad')
    a('s_and_b32 s39, s39, 0xffff0000')
    a('s_mov_b32 s97, 1')
    a('s_cmp_eq_u32 s34, 1')
    a('s_cbranch_scc1 wp_rep')
    a('s_cmp_eq_u32 s34, 3')
    a('s_cbranch_scc1 cA_abort')
    a('s_load_dwordx8 s[40:47], s[0:1], 72')
    a('s_load_dwordx4 s[48:51], s[0:1], 56')
    a('s_waitcnt lgkmcnt(0)')
    a('v_mov_b32 v4, 0x10001')
    a('s_mov_b32 s18, 1')
    a('s_branch ch_take')
    a.label('wp_rep')
    a('s_mov_b32 s101, -1')
    a('s_load_dwordx8 s[40:47], s[0:1], 72')
    a('s_load_dwordx4 s[48:51], s[0:1], 56')
    a('s_waitcnt vmcnt(0) lgkmcnt(0)')
    a('v_mov_b32 v4, 1')
    a(f'v_mov_b32 v5, {D_REP}')
    wg_atomic(a, 'wp_el', 's33')
    lanes(a)
    prep2.consts(a)
    a('s_and_b32 s33, s33, 511')
    a('s_and_b32 s20, s33, 255')
    a('s_cmp_ge_u32 s20, 224')
    a('s_cselect_b32 s97, 1, 2')
    a('s_cbranch_scc1 wp_all')
    prep2.decode(a, 's20')
    a('s_lshl_b32 s20, s17, 7')
    a('s_lshr_b32 s21, s33, 8')
    a('s_lshl_b32 s21, s21, 11')
    a('s_add_u32 s20, s20, s21')
    a(f's_add_u32 s20, s20, {PFL}')
    a(f'buffer_load_dword v5, off, {SRD}, s20 sc1')
    a('s_waitcnt vmcnt(0)')
    a('v_readfirstlane_b32 s34, v5')
    uniform(a, 's34')
    a('s_cmp_lt_u32 s33, 256')
    a(f's_cselect_b32 s20, 0, {0x3fff ^ UM}')
    a('s_or_b32 s34, s34, s20')
    a('s_bitcmp1_b32 s34, s19')
    a('s_cbranch_scc1 wp_rep')
    a('s_barrier')
    a('s_cmp_lt_u32 s33, 256')
    a('s_cbranch_scc1 wp_B')
    a('s_branch wp_A0')
    a.label('wp_done')

JOBS = None
NOS4D = 0
NOXT = 0
VPROBE = -1
MG_MODE = 2
MG_SW = 60
FP1 = 0
FP2 = 0
F2_PRIO = 1
B3_AT = 10
F1_W = 1
ZV = 3
ZX = 8
F1_POS = 3
STLB = 1
ENC = 0
EXIT_WB = 0
EARLY_A = 0
TA_AT = 32
X_W2 = 0
X_SLEEP = 0
NOVO = 0
PROT = 3
SELF_TOUCH = 256
def local_pick(a, P, dst, ng, base):
    a('s_getreg_b32 s33, hwreg(HW_REG_XCC_ID)')
    a(f's_sub_u32 s33, s33, {XCD_SEL + 1}')
    a('s_and_b32 s33, s33, 7')
    a(f's_min_u32 s33, s33, {ng-1}')
    a(f's_mov_b32 s35, {ng-1}')
    a.label(P + 'c')
    a('s_lshl_b32 s34, s33, 7')
    a(f's_add_u32 s34, s34, {base}')
    a('v_mov_b32 v4, 1')
    a('v_mov_b32 v5, s34')
    wg_atomic(a, P + 'e', dst, SRD)
    a(f's_cmp_lt_u32 {dst}, 16')
    a(f's_cbranch_scc1 {P}g')
    a('s_mov_b32 s33, s35')
    a('s_sub_u32 s35, s35, 1')
    a('s_max_i32 s35, s35, 0')
    a(f's_branch {P}c')
    a.label(P + 'g')
    a('s_lshl_b32 s33, s33, 4')
    a(f's_add_u32 {dst}, {dst}, s33')

def worker_all(a):
    import s4d, gemm, tok, t2srv, prep2
    JS = SRD
    JO = CNT_OFF + JOBC
    LD = 'sc1' if FUSE else ''
    N0 = 224 if FUSE else 0
    NJ = 1264
    tok.PEEK = JS
    tok.EV = EVLOG == 2
    if FUSE: worker_prep(a)
    def ask():
        lb = a.newlabel('ask')
        a('s_cmp_lg_u32 s16, 0')
        a(f's_cbranch_scc1 {lb}')
        a('v_mov_b32 v250, 1')
        a(f'v_mov_b32 v251, {JO}')
        a('s_mov_b64 exec, 1')
        a(f'buffer_atomic_add v250, v251, {JS}, 0 offen sc0')
        a('s_mov_b64 exec, -1')
        a.label(lb)
    if FUSE:
        a('s_mov_b32 s97, s39')
        a('s_cmp_lg_u32 s96, 0')
        a('s_cbranch_scc1 wk_next')
    else: a('s_mov_b32 s96, 0')
    ask()
    a('s_branch wk_next')
    a.label('wk_loop')
    a('s_waitcnt vmcnt(0) lgkmcnt(0)')
    if not FUSE:
        a('s_cmp_eq_u32 s96, 1')
        a('s_cbranch_scc1 wk_ask')
        a('s_mov_b32 s96, 1')
        staff_check(a, 'wk_ask', 0)
    if IDLEX >= 0:
        a('s_getreg_b32 s22, hwreg(HW_REG_XCC_ID)')
        a('s_and_b32 s22, s22, 15')
        a(f's_bitcmp0_b32 {(1 << IDLEX) | IDLEM}, s22')
        a('s_cbranch_scc1 wk_ni')
        a('s_cmp_ge_u32 s96, 6')
        a('s_cbranch_scc1 wk_ni')
        a('s_mov_b32 s96, 6')
        a('v_mov_b32 v4, 1')
        a(f'v_mov_b32 v5, {PFL + 4096 + 1280}')
        wg_atomic(a, 'wk_ide', 's3', SRD)
        a(f's_cmp_lt_u32 s3, {NIDLE}')
        a('s_cbranch_scc1 wk_done')
        a.label('wk_ni')
    if SRVX >= 0:
        a('s_getreg_b32 s22, hwreg(HW_REG_XCC_ID)')
        a('s_and_b32 s22, s22, 15')
        a(f's_cmp_lg_u32 s22, {SRVX}')
        a('s_cbranch_scc1 wk_ask')
        a('s_cmp_eq_u32 s96, 7')
        a('s_cbranch_scc0 wk_srv')
    a.label('wk_ask')
    a('v_readfirstlane_b32 s22, v250')
    a(f's_cmp_ge_u32 s22, {NJ}')
    a('s_cbranch_scc1 wk_next')
    ask()
    a.label('wk_next')
    evlog(a, 9005)
    a('v_mov_b32 v6, 160000')
    a('s_waitcnt vmcnt(0)')
    a('s_barrier')
    a('s_cmp_lg_u32 s16, 0')
    a('s_cbranch_scc1 wk_n1')
    a('s_mov_b64 exec, 1')
    a('ds_write_b32 v6, v250')
    a('s_mov_b64 exec, -1')
    a('s_waitcnt lgkmcnt(0)')
    a.label('wk_n1')
    a('s_barrier')
    a('ds_read_b32 v4, v6')
    a('s_waitcnt lgkmcnt(0)')
    a('v_readfirstlane_b32 s3, v4')
    evlog(a, 's3')
    a(f's_cmp_ge_u32 s3, {NJ}')
    a('s_cbranch_scc1 wk_done')
    a('v_mov_b32 v250, 0')
    a(f'v_mov_b32 v251, {PFL + 4096 + 1024}')
    a(f's_cmp_lg_u32 s3, {NJ-1}')
    a('s_cbranch_scc1 wk_nl')
    a(f'v_mov_b32 v5, {NJ}')
    a('s_mov_b64 exec, 1')
    a(f'buffer_store_dword v5, v251, {SRD}, 0 offen sc1')
    a('s_mov_b64 exec, -1')
    a.label('wk_nl')
    lanes(a)
    if FUSE:
        a('s_cmp_lt_u32 s3, 112')
        a('s_cbranch_scc1 wk_n2')
        a('s_cmp_eq_u32 s97, 0')
        a('s_cbranch_scc1 wk_n2')
        evlog(a, 9021)
        a('v_mov_b32 v250, s3')
        for x in ('s96, 1', 's97, 1', 's39, 0', 's37, 0', 's38, 0', 's32, 0'): a('s_mov_b32 ' + x)
        a('s_branch wp_all')
        a.label('wk_n2')
    if SRVX >= 0:
        a('s_sub_u32 s20, s3, 288')
        a('s_cmp_ge_u32 s20, 352')
        a('s_cbranch_scc1 wk_nr')
        a('s_cmp_ge_u32 s20, 320')
        a('s_cbranch_scc1 wk_srv')
        a('s_add_u32 s3, s3, 32')
        a.label('wk_nr')
    a('s_cmp_ge_u32 s3, 752')
    a('s_cbranch_scc1 wk_tok')
    a('s_cmp_ge_u32 s3, 640')
    a('s_cbranch_scc1 wk_s4d')
    a('s_cmp_ge_u32 s3, 448')
    a('s_cbranch_scc1 wk_full')
    a('s_cmp_ge_u32 s3, 320')
    a('s_cbranch_scc1 wk_adef')
    a('s_cmp_ge_u32 s3, 288')
    a('s_cbranch_scc1 wk_srv')
    a('s_and_b32 s17, s3, 15')
    a('s_add_u32 s17, s17, 16')
    a('s_cmp_ge_u32 s3, 224')
    a('s_cbranch_scc1 wk_half')
    a('s_cmp_ge_u32 s3, 112')
    a('s_cselect_b32 s18, 1, 0')
    a('s_cselect_b32 s20, 112, 0')
    a('s_sub_u32 s34, s3, s20')
    a('s_lshr_b32 s34, s34, 4')
    a('s_lshl_b32 s34, s34, 1')
    a('s_add_u32 s35, s34, 2')
    a('s_branch wk_gemm')
    a.label('wk_adef')
    a('s_mov_b32 s101, -1')
    a('s_load_dwordx8 s[40:47], s[0:1], 72')
    a('s_sub_u32 s20, s3, 320')
    if ADX:
        local_pick(a, 'wk_ad', 's20', 8, CNT_OFF + JOBC + 1024)
        lanes(a)
    a('s_lshr_b32 s33, s20, 2')
    a('s_mul_i32 s33, s33, 7')
    a('s_and_b32 s20, s20, 3')
    a('s_add_u32 s33, s33, s20')
    a('s_mov_b32 s97, 3')
    a('v_mov_b32 v252, 0x40000000')
    a('v_cmp_eq_u32 vcc, 0, v0')
    a('v_cndmask_b32 v252, v252, v0, vcc')
    prep2.consts(a)
    prep2.decode(a, 's33')
    a('s_waitcnt lgkmcnt(0)')
    a('s_barrier')
    a('s_branch wp_A0')
    a.label('wk_adone')
    a('s_mov_b32 s97, 0')
    a('s_branch wk_loop')
    a.label('wk_half')
    a('s_sub_u32 s20, s3, 224')
    a('s_lshr_b32 s18, s20, 5')
    a('s_add_u32 s18, s18, 2')
    a('s_bitcmp1_b32 s20, 4')
    a('s_cselect_b32 s34, 7, 0')
    a('s_add_u32 s35, s34, 7')
    a('s_branch wk_gemm')
    a.label('wk_full')
    a('s_sub_u32 s20, s3, 384')
    a('s_and_b32 s17, s20, 15')
    a('s_lshr_b32 s18, s20, 4')
    a('s_mov_b32 s34, 0')
    a('s_mov_b32 s35, 14')
    a('s_cmp_lt_u32 s18, 8')
    a('s_cselect_b32 s21, 16, 0')
    a('s_add_u32 s17, s17, s21')
    a('s_and_b32 s18, s18, 7')
    a('s_cmp_ge_u32 s17, 16')
    a('s_cbranch_scc1 wk_gemm')
    if FX:
        local_pick(a, 'wk_fx', 's20', 8, CNT_OFF + T2F + 64)
        lanes(a)
        a('s_lshr_b32 s17, s20, 4')
        a('s_lshl_b32 s17, s17, 1')
        a('s_and_b32 s21, s20, 1')
        a('s_add_u32 s17, s17, s21')
        a('s_bfe_u32 s18, s20, 0x30001')
        a('s_mov_b32 s34, 0')
        a('s_mov_b32 s35, 14')
    if UPRE:
        from prep import srd
        a('s_load_dwordx8 s[40:47], s[0:1], 0')
        a('s_load_dwordx2 s[48:49], s[0:1], 32')
        a('s_sub_u32 s21, s3, 512')
        a('v_min_u32 v12, 111, v0')
        a('v_lshlrev_b32 v12, 7, v12')
        a('v_min_u32 v13, 13, v0')
        a('v_lshlrev_b32 v13, 7, v13')
        a('s_mul_i32 s22, s21, 14336')
        a('s_mul_i32 s21, s21, 1792')
        a('s_waitcnt lgkmcnt(0)')
        a('s_cmp_ge_u32 s16, 2')
        a('s_cbranch_scc1 wk_up')
        srd(a, 60, 40, 41, 2048 * 448 * 2)
        a('buffer_load_dword v14, v12, s[60:63], s22 offen')
        for k in range(4):
            srd(a, 60, 42 + 2 * k, 43 + 2 * k, 448 * 256 * 2)
            a('buffer_load_dword v14, v13, s[60:63], s21 offen')
        a.label('wk_up')
    a_wait(a, 'wk_aw', range(7))
    a.label('wk_gemm')
    gemm.gemm_body(a, 'wg', 's18', 's17', st='sc1', signal=True, ld=LD, ev=(lambda t: evlog(a, t)) if GST else None)
    a('s_branch wk_loop')
    a.label('wk_srv')
    if SRVX >= 0:
        a('s_mov_b32 s96, 7')
        a('v_mov_b32 v4, 1')
        a(f'v_mov_b32 v5, {PFL + 4096 + 1152}')
        wg_atomic(a, 'wk_sve', 's3', SRD)
        lanes(a)
        a('v_mov_b32 v250, 0')
        a('s_cmp_ge_u32 s3, 32')
        a('s_cbranch_scc1 wk_ask')
    a('s_and_b32 s18, s3, 15')
    a('s_lshr_b32 s19, s3, 4')
    a('s_and_b32 s19, s19, 1')
    t2srv.t2srv_body(a, 'ws', 's18', 's19', 'cA_abort', ld=LD)
    a('v_mov_b32 v250, 0')
    a('s_branch wk_loop')
    a.label('wk_s4d')
    a('s_sub_u32 s3, s3, 640')
    if S4X:
        local_pick(a, 'wk_s4', 's3', 7, CNT_OFF + JOBC + 128)
    if not NOS4D:
        s4d.s4d_setup(a)
        s4d.s4d_item(a, 'wk', 's3')
        if S4WB:
            a('s_waitcnt vmcnt(0)')
            a('s_barrier')
            a('s_and_b32 s20, s3, 15')
            a('s_lshl_b32 s20, s20, 2')
            a('s_add_u32 s20, s20, s16')
            a('s_cmp_lg_u32 s20, 60')
            a('s_cbranch_scc1 wk_loop')
            a('s_sleep 127')
            a('buffer_wbl2 sc1')
    a('s_branch wk_loop')
    a.label('wk_tok')
    a('s_sub_u32 s3, s3, 752')
    a('s_cmp_ge_u32 s3, 512')
    a('s_cbranch_scc1 wk_done')
    a('s_and_b32 s18, s3, 3')
    if TLAG:
        a('s_lshr_b32 s17, s3, 2')
        a(f's_cmp_lt_u32 s17, {TLAG}')
        a('s_cbranch_scc1 wk_tokp')
        a(f's_sub_u32 s20, s17, {TLAG}')
        a('s_sub_u32 s17, s17, 64')
        a(f's_cmp_ge_u32 s20, {2 * (64 - TLAG)}')
        a('s_cbranch_scc1 wk_toko')
        a('s_lshr_b32 s17, s20, 1')
        a('s_bitcmp0_b32 s20, 0')
        a('s_cbranch_scc1 wk_toko')
        a(f's_add_u32 s17, s17, {TLAG}')
        a.label('wk_tokp')
    else:
        a('s_lshr_b32 s17, s3, 3')
        a('s_bitcmp1_b32 s3, 2')
        a('s_cbranch_scc1 wk_toko')
    tok.tokp_body(a, 's17', 's18', ld='sc1', st='sc1', sync='wp', ldx=LD)
    a('s_branch wk_loop')
    a.label('wk_toko')
    a('s_load_dwordx2 s[36:37], s[0:1], 112')
    a('s_waitcnt lgkmcnt(0)')
    a(f's_mov_b32 s92, s36\ns_and_b32 s93, s37, 0xffff\ns_mov_b32 s94, {2048*896*2}\ns_mov_b32 s95, 0x20000')
    tok.toko_body(a, 's17', 's18', ld='sc1', sync='wo', OUT='s[92:95]')
    a('v_readfirstlane_b32 s22, v250')
    a(f's_cmp_ge_u32 s22, {NJ}')
    a('s_cbranch_scc1 wk_done')
    a('s_branch wk_loop')
    a.label('wp_abort')
    a.label('wo_abort')
    a('s_branch cA_abort')
    a.label('wk_done')
    if DIAG:
        a('s_cmp_lg_u32 s16, 0')
        a('s_cbranch_scc1 ch_end')
        a('s_waitcnt vmcnt(0)')
        a('s_memrealtime s[98:99]')
        a('s_waitcnt lgkmcnt(0)')
        a('v_mov_b32 v37, s98')
        a('s_mov_b64 exec, 1')
        a(f'buffer_atomic_umax v37, off, {DBG}, 0 offset:192')
        a('s_mov_b64 exec, -1')
    if EXIT_WB:
        a('s_cmp_lg_u32 s16, 0')
        a('s_cbranch_scc1 ch_end')
        a('buffer_wbl2 sc1')
    evlog(a, 9020)

def gen_chain_kernel(name='main_kernel', worker=None):
    a = Asm()
    a.raw(kernel_header(name))
    a('s_cmp_ge_u32 s2, 256')
    a('s_cbranch_scc1 ch_end')
    if DIAG: a('s_memrealtime s[94:95]')
    a('s_load_dwordx2 s[4:5], s[0:1], 120')
    a('s_load_dwordx2 s[6:7], s[0:1], 128')
    a('s_load_dwordx8 s[40:47], s[0:1], 72')
    a('s_load_dwordx4 s[48:51], s[0:1], 56')
    a('s_mov_b32 s32, 0')
    a('s_getreg_b32 s3, hwreg(HW_REG_XCC_ID)')
    a('s_and_b32 s3, s3, 15')
    a(f's_cmp_lg_u32 s3, {XCD_SEL}')
    a('s_cbranch_scc1 ch_pf')
    a('s_cmp_lt_u32 s2, 224')
    a('s_cbranch_scc1 ch_npf')
    a.label('ch_pf')
    code_prefetch(a, name, 'ch_end', 150000, 60)
    a.label('ch_npf')
    a('v_lshrrev_b32 v1, 6, v0')
    a('v_readfirstlane_b32 s16, v1')
    a('s_waitcnt lgkmcnt(0)')
    a('s_mov_b32 s8, s6\ns_and_b32 s9, s7, 0xffff\ns_mov_b32 s10, 0x10000000\ns_mov_b32 s11, 0x20000')
    a('s_mov_b32 s12, s4\ns_and_b32 s13, s5, 0xffff\ns_mov_b32 s14, 256\ns_mov_b32 s15, 0x20000')
    if EVLOG:
        a('s_lshl_b32 s100, s2, 2')
        a('s_add_u32 s100, s100, s16')
        a(f's_lshl_b32 s100, s100, {8 if EVLOG == 1 else 9}')
        a(f's_add_u32 s100, s100, {EV_OFF}')
    evlog(a, 9000)
    if FUSE:
        a('v_mov_b32 v252, 0x40000000')
        a('v_cmp_eq_u32 vcc, 0, v0')
        a('v_cndmask_b32 v252, v252, v0, vcc')
    a(f's_cmp_lg_u32 s3, {XCD_SEL}')
    a('s_cbranch_scc1 ch_worker')
    import prep2
    a('s_mov_b32 s18, 0')
    a('v_mov_b32 v249, 1')
    a('s_mov_b64 exec, 1')
    a(f'buffer_atomic_add v249, v252, {DBG}, 0 offen sc0')
    a('s_mov_b64 exec, -1')
    lanes(a)
    a('s_lshr_b32 s33, s2, 3')
    prep2.touch_w(a, 's33', 32, ((42, 256),))
    a('s_waitcnt vmcnt(2)')
    a('v_readfirstlane_b32 s17, v249')
    uniform(a, 's17')
    a('s_branch ch_got')
    a.label('ch_take')
    a('v_mov_b32 v5, 0')
    wg_atomic(a, 'ch_el', 's17')
    a.label('ch_got')
    a('s_and_b32 s17, s17, 0xffff')
    a('s_cmp_lt_u32 s17, 32')
    a('s_cbranch_scc1 ch_role')
    a('s_cmp_eq_u32 s18, 0')
    a('s_cbranch_scc1 ch_worker')
    lanes(a)
    a('s_branch wp_all')
    a.label('ch_role')
    if FUSE:
        import prep2
        lanes(a)
        a('s_cmp_lt_u32 s17, 16')
        a('s_cbranch_scc1 ch_self')
        a(f's_cmp_lt_u32 s17, {32 - NINIT}')
        a('s_cbranch_scc1 ch_tch')
        a(f's_sub_u32 s33, s17, {32 - NINIT}')
        init_job(a, 'ch_ij', 's33')
        a('s_branch ch_role2')
        a.label('ch_tch')
        a('s_sub_u32 s33, s17, 16')
        if SELF_TOUCH: prep2.touch_w(a, 's33', 16 - NINIT, ((40, SELF_TOUCH),))
        a('s_branch ch_role2')
        a.label('ch_self')
        st1 = [f'buffer_load_dword v13, off, {DBG}, 0 offset:{D_R1} sc1', f'buffer_load_dword v9, off, {DBG}, 0 sc1']
        st2 = ['v_readfirstlane_b32 s86, v13', 's_lshl_b32 s22, s17, 7', f's_add_u32 s22, s22, {PFL + 2048}', f's_mov_b32 s23, {PFL + 4096}',
               f'buffer_load_dword v13, off, {SRD}, s22 sc1', f'buffer_load_dwordx2 v[10:11], off, {SRD}, s23 sc1']
        pf1 = st2[:3] + [f'buffer_load_dword v5, off, {SRD}, s22 sc1']
        pf2 = [['s_waitcnt vmcnt(0)', 'v_readfirstlane_b32 s22, v5', 'v_min_u32 v8, 7040, v6', f's_mul_i32 s24, s17, {CUW_B}', f's_mul_i32 s23, s16, {3*TILE_B}', 's_add_u32 s24, s24, s23',
                f's_add_u32 s24, s24, {WF_A + 16*TILE_B}', f's_and_b32 s22, s22, {UM}', 's_mul_i32 s22, s22, s86', f's_cmp_eq_u32 s22, {UM}', 's_cselect_b32 s24, s24, 0x40000000']]
        pf2 += [[f'buffer_load_dword v5, v8, {SRD}, s24 offen sc1', 's_add_u32 s24, s24, 7168'] for k in range(6)]
        prep2.selfprep(a, (lambda t: evlog(a, t)) if EVLOG else None, st1, st2, pf1, pf2)
        a('v_readfirstlane_b32 s84, v13')
        a('v_readfirstlane_b32 s85, v10')
        a('v_readfirstlane_b32 s22, v11')
        a('s_and_b32 s86, s86, s22')
        a('s_cmp_eq_u32 s86, 1')
        a('s_cselect_b32 s84, s84, 0')
        evlog(a, 9001)
        a('v_and_b32 v10, 0xffe0, v9')
        a('v_cmp_eq_u32 vcc, 0, v10')
        a('s_cbranch_vccz ch_md_ok')
        a.label('ch_role2')
    poll(a, 'ch_md', [f'buffer_load_dword v9, off, {DBG}, 0 sc1'], ['v_and_b32 v10, 0xffe0, v9', 'v_cmp_eq_u32 vcc, 0, v10'], sleep=4, lim=SPIN_LIMIT * 4, fail='ch_end')
    a('v_readfirstlane_b32 s88, v9')
    a('s_lshr_b32 s88, s88, 16')
    lane_consts(a)
    a('s_mov_b32 s19, 0')
    a('s_mov_b32 s18, 1')
    a(f's_mov_b32 s20, {EXCH_OFF}')
    a(f's_mov_b32 s21, {EXCH_OFF + EXCH_B}')
    a(f's_mov_b32 s23, {EXCH_OFF + 4096}')
    a('s_lshr_b32 s89, s17, 4')
    a('s_lshl_b32 s89, s89, 2')
    a('s_add_u32 s89, s89, s16')
    a('s_and_b32 s17, s17, 15')
    for p in range(8):
        a(f's_cmp_eq_u32 s89, {p}')
        a(f's_cbranch_scc1 ch_init{p}')
    a('s_branch ch_end')
    for p in range(8):
        a.label(f'ch_init{p}')
        if p < 4: init_score(a, p)
        else: init_value(a, p - 4)
        a('s_waitcnt vmcnt(1) lgkmcnt(0)' if p == 7 else 's_waitcnt vmcnt(0) lgkmcnt(0)')
        evlog(a, 9003)
        if EVLOG or HDBG: a('v_mov_b32 v36, 0\nv_mov_b32 v37, 0')
        if DIAG: a('s_memtime s[90:91]')
        a('s_mov_b32 s31, 0')
        a('s_cmp_lg_u32 s88, 0')
        role = 'sc' if p < 4 else 'va'
        a(f's_cbranch_scc1 cB_{role}{p & 3}_loop')
        a(f's_branch cA_{role}{p & 3}_loop')
    for tag, st in (('cA', ''), ('cB', 'sc1')):
        for w in range(4): gen_score(a, w, st, tag)
        for w in range(4): gen_value(a, w, st, tag)
        a.label(f'{tag}_abort')
        a('v_mov_b32 v4, 0xdead')
        a('v_mov_b32 v5, 16')
        a(f'buffer_store_dword v4, v5, {DBG}, 0 offen')
        a('s_branch ch_end')
        a.label(f'{tag}_done')
        evlog(a, 9004)
        if DIAG:
            a('s_memtime s[60:61]')
            a('s_waitcnt lgkmcnt(0)')
            a('s_sub_u32 s60, s60, s90')
            a('v_mov_b32 v4, s60')
            a('s_cmp_eq_u32 s89, 3')
            a('s_cselect_b32 s22, 8, 0x1000')
            a('v_mov_b32 v5, s22')
            a(f'buffer_store_dword v4, v5, {DBG}, 0 offen')
            a('s_memrealtime s[60:61]')
            a('s_sub_u32 s86, s86, s94')
            a('s_waitcnt lgkmcnt(0)')
            a('s_sub_u32 s60, s60, s94')
            a('v_mov_b32 v6, s86')
            a('v_mov_b32 v7, s60')
            a(f'buffer_store_dwordx2 v[6:7], v5, {DBG}, 0 offen offset:16')
            a('v_mov_b32 v8, s94')
            a(f'buffer_store_dword v8, v5, {DBG}, 0 offen offset:44')
            a('s_cmp_eq_u32 s31, 0')
            a(f's_cbranch_scc1 {tag}_dz')
            a('s_mov_b64 exec, 1')
            for k in range(4):
                a(f's_bfe_u32 s22, s31, {(8 << 16) | (8 * k)}')
                a(f'v_mov_b32 v{4+k}, s22')
                a(f'v_mov_b32 v10, {32 + 4*k}')
                a(f'buffer_atomic_add v{4+k}, v10, {DBG}, 0 offen')
                a.nop(2)
            a('s_mov_b64 exec, -1')
            a.label(f'{tag}_dz')
        if ENC:
            a(f's_cmp_lg_u32 s89, {ENCP}')
            a('s_cbranch_scc1 ch_end')
            a('s_cmp_lg_u32 s17, 5')
            a('s_cbranch_scc1 ch_end')
            a('s_add_u32 s62, s94, 20000')
            if ENC == 6:
                if ENCT: a('s_sub_u32 s86, s92, s94')
                a('s_mul_i32 s86, s86, 10')
                a('s_add_u32 s62, s62, s86')
            if ENC == 4:
                a('s_mov_b32 s22, 0x7000000')
                a(f'buffer_load_dword v8, off, {SRD}, s22 sc1')
                a('s_waitcnt vmcnt(0)')
                a('v_readfirstlane_b32 s62, v8')
                a('s_sub_u32 s63, s94, s62')
                a('s_min_u32 s63, s63, 5000')
                a('s_sub_u32 s62, s94, s63')
                a('s_add_u32 s62, s62, 20000')
            if ENC == 5:
                for _ in range(14): a('s_sleep 127')
                a(f'buffer_load_dword v8, off, {DBG}, 0 offset:192 sc1')
                a('s_waitcnt vmcnt(0)')
                a('v_readfirstlane_b32 s62, v8')
                a('s_add_u32 s62, s62, 20000')
            if ENC == 2: a('s_add_u32 s62, s62, s86')
            if ENC == 3: a('s_add_u32 s62, s62, s60')
            a.label(f'{tag}_enc')
            a('s_memrealtime s[64:65]')
            a('s_waitcnt lgkmcnt(0)')
            a('s_sub_u32 s64, s64, s62')
            a('s_cmp_lt_i32 s64, 0')
            a(f's_cbranch_scc1 {tag}_enc')
        stamp_calib(a, f'{tag}_cal')
        a('s_branch ch_end')
    a.label('ch_worker')
    worker_all(a)
    a.label('ch_end')
    a('s_endpgm')
    return a
```

```python
from asmlib import *
from layout import *
from prep import srd, SIGMA, W_BYTES
WS = 's[8:11]'
LDFL = ''
TFL = ''
SA = 's[60:63]'; SB = 's[56:59]'
CF = 256
RF = 384

PST = 0
CT = 1
SP_PF = 6
ST2_AT = 12
RT_AT = 0
ST1_AT = 7
RAMP = 1
_n = [0]
def pst(a, k=None):
    if PST and k is not None: a(f's_memrealtime s[{72+2*k}:{73+2*k}]')
    elif PST:
        a(f's_memrealtime s[{72+2*_n[0]}:{73+2*_n[0]}]'); _n[0] += 1
def pst_flush(a):
    if not PST: return
    a('s_waitcnt lgkmcnt(0)')
    a('s_lshl_b32 s20, s2, 2\ns_add_u32 s20, s20, s16\ns_lshl_b32 s20, s20, 6\ns_add_u32 s20, s20, 104857600')
    a('v_mov_b32 v7, 0')
    for k in range(9):
        a(f'v_mov_b32 v8, s{72+2*k}')
        a(f'buffer_store_dword v8, v7, {WS}, s20 offen offset:{4*k}')
        a.nop(2)

def decode(a, item_s):
    a(f's_mul_i32 s17, {item_s}, 4682')
    a('s_lshr_b32 s17, s17, 16')
    a('s_mul_i32 s23, s17, 14')
    a(f's_sub_u32 s19, {item_s}, s23')
    a('s_cmp_lt_u32 s19, 7')
    a('s_cselect_b32 s18, 0, 7')
    a('s_cselect_b32 s28, 0, 8')
    a('s_sub_u32 s18, s19, s18')
    a('s_add_u32 s28, s28, s16')
    a('s_lshl_b32 s25, s16, 15')
    a('s_add_u32 s25, s25, 32768')
    a('s_lshl_b32 s26, s17, 9')
assert all((i * 4682) >> 16 == i // 14 for i in range(224))

def consts(a):
    a('v_lshrrev_b32 v5, 5, v1')
    a('v_and_b32 v6, 31, v1')
    a('v_xor_b32 v8, v6, v5')
    a('v_lshlrev_b32 v8, 4, v8')
    a('v_lshl_add_u32 v16, v5, 13, v8')
    for c in range(1, 8): a(f'v_xor_b32 v{16+c}, {c*32}, v16')
    a('s_lshl_b32 s20, s16, 6')
    a('v_xor_b32 v26, s20, v16')
    a('v_xor_b32 v27, 32, v26')

def issue(a, mat, hook=None, hook_at=0):
    if mat == 'A':
        srd(a, 60, 40, 41, W_BYTES); srd(a, 56, 42, 43, W_BYTES)
        a('s_lshl_b32 s27, s18, 2')
        a('s_add_u32 s27, s27, s16')
        a('s_lshl_b32 s27, s27, 17')
        a('s_add_u32 s27, s27, s26')
        a('s_lshl_b32 s30, s16, 13')
        for i in range(8):
            a(f's_add_u32 m0, s30, {i*1024}')
            a(f'buffer_load_dwordx4 v{26 + ((i >> 1) & 1)}, {SB}, s27 offen {LDFL} lds')
            a('s_add_u32 s27, s27, 16384')
    else:
        srd(a, 60, 44, 45, W_BYTES); srd(a, 56, 46, 47, W_BYTES)
        a('s_mul_i32 s27, s17, 229376')
        a('s_lshl_b32 s30, s18, 7')
        a('s_add_u32 s27, s27, s30')
        a(f's_mul_i32 s30, s16, {64*896}')
        a('s_add_u32 s27, s27, s30')
        a('v_lshrrev_b32 v7, 3, v1')
        a('v_and_b32 v8, 7, v1')
        a('v_and_b32 v9, 2, v7')
        a('v_xor_b32 v8, v8, v9')
        a('v_mul_u32_u24 v7, 896, v7')
        a('v_lshl_add_u32 v24, v8, 4, v7')
        a('v_xor_b32 v25, 64, v24')
        a('s_lshl_b32 s30, s16, 13')
        for i in range(8):
            a(f's_add_u32 m0, s30, {i*1024}')
            a(f'buffer_load_dwordx4 v{24 + (i & 1)}, {SB}, s27 offen {LDFL} lds')
            a(f's_add_u32 s27, s27, {8*896}')
    for p in range(2):
        a(f's_add_u32 s27, s28, {4*p}')
        a('s_min_u32 s27, s27, 13')
        a('s_lshl_b32 s27, s27, 18')
        a('s_add_u32 s27, s27, s26')
        for i in range(16):
            if hook and p * 16 + i in (hook_at if isinstance(hook_at, tuple) else (hook_at,)): hook(8 + p * 16 + i)
            a(f's_add_u32 m0, s25, {p*16384 + i*1024}')
            a(f'buffer_load_dwordx4 v{16 + 2*(i >> 2) + (i & 1)}, {SA}, s27 offen {LDFL} lds')
            a('s_add_u32 s27, s27, 16384')

TOUCH_B = 1
def touch(a, mat, dst, skip=None):
    if mat == 'B' and not TOUCH_B: return
    p = 40 if mat == 'A' else 44
    a('s_cmp_lt_u32 s19, 7')
    a(f's_cselect_b32 s64, s{p}, s{p+2}')
    a(f's_cselect_b32 s65, s{p+1}, s{p+3}')
    a('s_cselect_b32 s27, 0, 7')
    srd(a, 68, 64, 65, W_BYTES)
    a('s_sub_u32 s31, s19, s27')
    a('s_lshl_b32 s27, s31, 19')
    a('s_add_u32 s27, s27, s26')
    a('v_lshrrev_b32 v7, 2, v0')
    a('v_and_b32 v8, 3, v0')
    a('v_lshlrev_b32 v8, 7, v8')
    a('v_lshl_add_u32 v9, v7, 13, v8')
    if mat == 'B':
        a('s_mul_i32 s30, s17, 229376')
        a('s_lshl_b32 s31, s31, 15')
        a('s_add_u32 s30, s30, s31')
        a('s_cmp_lt_u32 s19, 7')
        a('s_cselect_b32 s27, s27, s30')
        a('s_cselect_b64 vcc, -1, 0')
        a('v_lshlrev_b32 v8, 7, v0')
        a('v_cndmask_b32 v9, v8, v9, vcc')
    if skip:
        a(f's_cmp_lg_u32 {skip}, 0')
        a('s_cselect_b32 s27, 0x40000000, s27')
    a(f'buffer_load_dword v{dst}, v9, s[68:71], s27 offen {TFL}')

def xunit_load(a, item_s):
    a(f's_lshl_b32 s20, {item_s}, 2')
    a('s_add_u32 s20, s20, s16')
    a('s_mul_i32 s21, s20, 9363')
    a('s_lshr_b32 s21, s21, 16')
    a('s_mul_i32 s22, s21, 7')
    a('s_sub_u32 s22, s20, s22')
    a(f's_mul_i32 s21, s21, {16*896}')
    a('s_lshl_b32 s20, s22, 7')
    a('s_add_u32 s20, s20, s21')
    a('s_lshl_b32 s22, s22, 11')
    a('s_add_u32 s52, s21, s22')
    srd(a, 68, 48, 49, 2048 * 448 * 2)
    a('v_mul_u32_u24 v7, 896, v4')
    a('v_lshl_add_u32 v7, v3, 5, v7')
    a('buffer_load_dwordx4 v[128:131], v7, s[68:71], s20 offen')
    a('buffer_load_dwordx4 v[132:135], v7, s[68:71], s20 offen offset:16')
assert all((i * 9363) >> 16 == i // 7 for i in range(896))
def xunit_store():
    o = ['v_lshlrev_b32 v144, 9, v3', 'v_lshl_add_u32 v144, v4, 4, v144', f's_add_u32 s53, s52, {XM_OFF}', f's_add_u32 s52, s52, {XF_OFF}']
    for j in range(4): o += [f'v_mov_b32 v{136+j}, v{128+2*j}', f'v_mov_b32 v{140+j}, v{129+2*j}']
    o += [f'buffer_store_dwordx4 v[128:131], v144, {WS}, s52 offen sc1', f'buffer_store_dwordx4 v[132:135], v144, {WS}, s52 offen offset:256 sc1',
          f'buffer_store_dwordx4 v[136:139], v2, {WS}, s53 offen sc1', f'buffer_store_dwordx4 v[140:143], v2, {WS}, s53 offen offset:1024 sc1']
    return o

def setup(a, mats):
    a('v_lshrrev_b32 v7, 2, v4')
    a('v_lshlrev_b32 v11, 4, v7')
    a('v_lshlrev_b32 v7, 3, v7')
    a('v_and_b32 v8, 3, v4')
    a('v_add_u32 v7, v7, v8')
    a('v_and_b32 v8, 2, v4')
    a('v_lshl_add_u32 v11, v8, 1, v11')
    a('v_and_b32 v8, 1, v4')
    a('v_add_u32 v11, v11, v8')
    for k3 in range(4):
        a(f'v_or_b32 v10, {k3*4}, v3')
        a('v_xor_b32 v10, v10, v4')
        a('v_lshlrev_b32 v10, 4, v10')
        a(f'v_lshl_add_u32 v{44+k3}, v11, 9, v10')
        a('v_lshl_add_u32 v10, v7, 9, v10')
        a(f'v_add_u32 v{32+k3}, s25, v10')
    a(f's_mul_i32 s30, s17, {CUW_B}')
    a(f's_mul_i32 s31, s18, {4*TILE_B}')
    a('s_add_u32 s30, s30, s31')
    a(f's_add_u32 s30, s30, {WF_A}')
    for q in range(4):
        a(f'v_add_u32 v{28+q}, s30, v2')
        a(f's_add_u32 s30, s30, {TILE_B}')
    a(f'v_mov_b32 v48, {SIGMA}')
    if 'B' in mats:
        a('v_lshrrev_b32 v7, 2, v4')
        a('v_lshl_add_u32 v7, v3, 3, v7')
        a('v_lshlrev_b32 v7, 7, v7')
        a('v_and_b32 v8, 3, v4')
        a('v_lshl_add_u32 v7, v8, 3, v7')
        a('v_lshrrev_b32 v8, 3, v4')
        a('v_and_b32 v9, 1, v3')
        a('v_lshl_add_u32 v8, v9, 1, v8')
        a('v_lshl_add_u32 v40, v8, 5, v7')
        a('s_mul_i32 s31, s17, 28')
        a(f's_mov_b32 s29, {CUW_B}')
        for q in range(4):
            if q: a(f'v_xor_b32 v{40+q}, {32*q}, v40')
            a('s_lshl_b32 s30, s18, 6')
            a(f's_add_u32 s30, s30, {16*q}')
            a('v_add_u32 v8, s30, v4')
            a('v_subrev_u32 v9, 256, v8')
            a('v_mul_u32_u24 v11, 171, v9')
            a('v_lshrrev_b32 v11, 11, v11')
            a('v_mul_u32_u24 v38, 12, v11')
            a('v_sub_u32 v38, v9, v38')
            a('v_add_u32 v38, 16, v38')
            a('v_lshrrev_b32 v10, 4, v8')
            a('v_cmp_gt_i32 vcc, 0, v9')
            a('v_cndmask_b32 v10, v11, v10, vcc')
            a('v_cndmask_b32 v39, v38, v4, vcc')
            a('v_add_u32 v39, s31, v39')
            a('v_lshrrev_b32 v38, 4, v39')
            a('v_and_b32 v39, 15, v39')
            a('v_mul_lo_u32 v10, v10, s29')
            a(f'v_mul_u32_u24 v38, {TILE_B}, v38')
            a('v_add_u32 v10, v10, v38')
            a('v_lshl_add_u32 v10, v3, 8, v10')
            a('v_lshl_add_u32 v10, v39, 4, v10')
            a(f'v_add_u32 v{12+q}, {WF_B}, v10')

def compute(a, P, mat, younger, pre_epi=(), early=(), nextA=None, late=(), nowait=0):
    rd = [[] for _ in range(8)]
    for q in range(4):
        for kk in range(8):
            if mat == 'A': rd[kk].append(f'ds_read_b128 {ureg(CF + (q * 8 + kk) * 4, 4)}, v{44 + (kk & 3)} offset:{(8 * (q >> 1) + 2 * (q & 1)) * 512 + (kk >> 2) * 256}')
            else: rd[kk] += [f'ds_read_b64_tr_b16 {ureg(CF + (q * 8 + kk) * 4 + 2 * hf, 2)}, v{40+q} offset:{(32*kk + 4*hf)*128}' for hf in range(2)]
    a('s_lshl_b32 s29, s28, 10')
    a('s_add_u32 s31, s29, 4096')
    a('s_cmp_lt_u32 s28, 10')
    a('s_cselect_b32 s31, s31, 0x40000000')
    pst(a)
    if not nowait: a(f's_waitcnt vmcnt({younger})')
    a('s_barrier')
    pst(a)
    for kk in range(8):
        rd[kk] += [f'ds_read_b128 {ureg(RF + (pt * 8 + kk) * 4, 4)}, v{32 + (kk & 3)} offset:{(pt >> 1)*16384 + (pt & 1)*2048 + (kk >> 2)*256}' for pt in range(4)]
    ACC = [64, 96]
    def epi(p, q):
        d = ACC[p] + 8 * q
        o = [f'v_pk_mul_f32 v[{d+r}:{d+r+1}], v[{d+r}:{d+r+1}], v[48:49] op_sel_hi:[1,0]' for r in range(0, 8, 2)] if mat == 'A' else []
        o += [f'v_cvt_pk_bf16_f32 v{d+r}, v{d+2*r}, v{d+2*r+1}' for r in range(4)]
        o.append(f'buffer_store_dwordx4 v[{d}:{d+3}], v{(28 if mat == "A" else 12)+q}, {WS}, {"s31" if p else "s29"} offen sc1')
        return o
    for x in rd[0]: a(x)
    for x in early:
        if callable(x): x()
        else: a(x)
    side = []
    dma = []
    if nextA:
        class Cap:
            def __init__(s_): s_.l = []
            def __call__(s_, x): s_.l += x.split('\n')
        c = Cap(); issue(c, 'A')
        pre = [f's_cmp_lg_u32 {nextA}, 0', f's_cselect_b32 s54, 0, {W_BYTES}']
        L_ = pre + [x.replace(f', {W_BYTES}', ', s54') for x in c.l]
        cur = []
        for x in L_:
            cur.append(x)
            if x.startswith('buffer'): dma.append(cur); cur = []
    allrd = [x for kk in range(1, 8) for x in rd[kk]]
    nrd = [len(rd[0])]
    for kk in range(1, 8): nrd.append(nrd[-1] + len(rd[kk]))
    issued = len(rd[0]); freed = False
    for kk in range(8):
        a(f's_waitcnt lgkmcnt({min(15, issued - nrd[kk])})')
        if kk == 7:
            for x in late:
                a('s_waitcnt vmcnt(0)'); x()
        if kk == 7:
            if not freed: a('s_barrier')
            for x in pre_epi: a(x)
        i = 0
        for p in range(2):
            for q in range(4):
                for tau in range(2):
                    d = ACC[p] + 8 * q + 4 * tau
                    a(f'v_mfma_f32_16x16x32_bf16 v[{d}:{d+3}], {ureg(RF + ((p * 2 + tau) * 8 + kk) * 4, 4)}, {ureg(CF + (q * 8 + kk) * 4, 4)}, ' + ('0' if kk == 0 else f'v[{d}:{d+3}]'))
                    lim = len(allrd) + len(rd[0]) if nextA else nrd[min(kk + 1, 7)]
                    for _ in range(2):
                        if issued < lim:
                            a(allrd[issued - len(rd[0])]); issued += 1
                    if nextA and issued == lim and not freed and i == 15:
                        a('s_waitcnt lgkmcnt(0)'); a('s_barrier'); freed = True
                    elif freed and dma and kk < 7:
                        for x in dma.pop(0): a(x)
                    if kk == 7:
                        if i >= 4:
                            for _ in range(2):
                                if side: a(side.pop(0))
                        if tau: side += epi(p, q)
                    i += 1
    assert not dma
    for x in side: a(x)
    pst(a)

def touch_rows(a, mat, item_s, dst):
    p = 40 if mat == 'A' else 44
    srd(a, 68, p, p + 1, W_BYTES)
    a(f's_and_b32 s20, {item_s}, 0xe0')
    a('s_mul_i32 s20, s20, 9363')
    a('s_lshr_b32 s20, s20, 16')
    a('s_lshl_b32 s20, s20, 10')
    a(f's_and_b32 s21, {item_s}, 31')
    a('s_mul_i32 s21, s21, 192')
    a('s_add_u32 s20, s20, s21')
    a('v_min_u32 v7, 191, v0')
    a('v_add_u32 v7, s20, v7')
    a('v_lshrrev_b32 v8, 11, v7')
    a('v_min_u32 v8, 15, v8')
    a('v_bfe_u32 v9, v7, 2, 9')
    a('v_lshlrev_b32 v9, 13, v9')
    a('v_lshl_add_u32 v9, v8, 9, v9')
    a('v_and_b32 v7, 3, v7')
    a('v_lshl_add_u32 v9, v7, 7, v9')
    a(f'buffer_load_dword v{dst}, v9, s[68:71], 0 offen {TFL}')

def touch_cols(a, dst, skip):
    srd(a, 68, 42, 43, W_BYTES)
    a('s_lshl_b32 s27, s18, 19')
    a('s_add_u32 s27, s27, s26')
    a(f's_cmp_lg_u32 {skip}, 0')
    a('s_cselect_b32 s27, 0x40000000, s27')
    a('v_lshrrev_b32 v7, 2, v0')
    a('v_and_b32 v8, 3, v0')
    a('v_lshlrev_b32 v8, 7, v8')
    a('v_lshl_add_u32 v9, v7, 13, v8')
    a(f'buffer_load_dword v{dst}, v9, s[68:71], s27 offen {TFL}')

def touch_w(a, k_s, n, what):
    a(f's_lshl_b32 s27, {k_s}, 2')
    a('s_add_u32 s27, s27, s16')
    a('s_lshl_b32 s27, s27, 13')
    a('v_lshlrev_b32 v12, 7, v1')
    for p, rows in what:
        srd(a, 64, p, p + 1, rows * 8192)
        a('s_mov_b32 s28, s27')
        for k in range((rows + 4 * n - 1) // (4 * n)):
            a('buffer_load_dword v13, v12, s[64:67], s28 offen')
            a(f's_add_u32 s28, s28, {4*n*8192}')

def selfprep(a, ev=None, st1=(), st2=(), pf1=(), pf2=()):
    CFV = 120; FR = 24; ACC = [56, 88]; NS = 10
    if ev: ev(9014)
    consts(a)
    srd(a, 60, 40, 41, W_BYTES); srd(a, 56, 42, 43, W_BYTES)
    a('s_lshl_b32 s26, s17, 9')
    a('s_lshl_b32 s27, s16, 19')
    a('s_add_u32 s27, s27, s26')
    a('s_lshl_b32 s25, s16, 15')
    a('s_add_u32 s25, s25, 32768')
    a('s_barrier')
    for i in range(32):
        a(f's_add_u32 m0, s25, {i*1024}')
        a(f'buffer_load_dwordx4 v{16 + 2*(i >> 3) + ((i >> 1) & 1)}, {SB}, s27 offen lds')
        a('s_add_u32 s27, s27, 16384')
    a('v_mov_b32 v14, v26')
    a('v_mov_b32 v15, v27')
    a('s_lshl_b32 s28, s16, 16')
    a('s_add_u32 s28, s28, s26')
    a('s_lshl_b32 s29, s16, 12')
    def dma(hu):
        o = []
        for i in range(4):
            o.append([f's_add_u32 m0, s29, {(hu % NS)*16384 + i*1024}', f's_add_u32 s27, s28, {hu*32*8192 + i*16384}',
                      f'buffer_load_dwordx4 v{14 + (i & 1)}, {SA}, s27 offen lds'])
        return o
    for hu in range(2):
        for g_ in dma(hu):
            for x in g_: a(x)
    a('v_lshrrev_b32 v7, 2, v4')
    a('v_lshlrev_b32 v11, 4, v7')
    a('v_lshlrev_b32 v7, 3, v7')
    a('v_and_b32 v8, 3, v4')
    a('v_add_u32 v7, v7, v8')
    a('v_and_b32 v8, 2, v4')
    a('v_lshl_add_u32 v11, v8, 1, v11')
    a('v_and_b32 v8, 1, v4')
    a('v_add_u32 v11, v11, v8')
    for k3 in range(4):
        a(f'v_or_b32 v10, {k3*4}, v3')
        a('v_xor_b32 v10, v10, v4')
        a('v_lshlrev_b32 v10, 4, v10')
        a(f'v_lshl_add_u32 v{248+k3}, v7, 9, v10')
        a(f'v_add_u32 v{252+k3}, 65536, v{248+k3}')
        a(f'v_add_u32 v{16+k3}, 131072, v{248+k3}')
        a('v_lshl_add_u32 v10, v11, 9, v10')
        a(f'v_add_u32 v{20+k3}, s25, v10')
    a(f'v_mov_b32 v12, {SIGMA}')
    a('v_lshlrev_b32 v6, 7, v1')
    if CT: code_touch(a, 6, 7)
    a(f's_waitcnt vmcnt({8 + CT})')
    if ev: ev(9013)
    for q in range(4):
        for kk in range(8):
            r = CFV + (q * 8 + kk) * 4
            a(f'ds_read_b128 v[{r}:{r+3}], v{20 + (kk & 3)} offset:{(8 * (q >> 1) + 2 * (q & 1)) * 512 + (kk >> 2) * 256}')
        a('s_waitcnt lgkmcnt(8)')
    a('s_waitcnt vmcnt(0) lgkmcnt(0)' if ev else 's_waitcnt vmcnt(4) lgkmcnt(0)')
    a('s_barrier')
    PF = SP_PF
    nxt = 2
    if not RAMP:
        for hu in range(2, PF):
            for g_ in dma(hu):
                for x in g_: a(x)
        nxt = PF
    def rd(hu, f):
        kk, tau = f >> 1, f & 1; sl = hu % NS; r = FR + 4 * (f & 7)
        return f'ds_read_b128 v[{r}:{r+3}], v{[248, 252, 16][sl >> 2] + (kk & 3)} offset:{(sl & 3)*16384 + tau*2048 + (kk >> 2)*256}'
    def epi(hu):
        o = []
        for q in range(4):
            d = ACC[hu & 1] + 8 * q
            o += [f'v_mul_f32 v{d+r}, v12, v{d+r}' for r in range(8)]
            o += [f'v_cvt_pk_bf16_f32 v{d+r}, v{d+2*r}, v{d+2*r+1}' for r in range(4)]
            o += [f'v_accvgpr_write_b32 a{8 * (q * 7 + (hu >> 1)) + 4 * (hu & 1) + r}, v{d+r}' for r in range(4)]
        return o
    for f in range(6): a(rd(0, f))
    side = []
    a('s_waitcnt lgkmcnt(5)')
    for hu in range(14):
        dm = []
        for _ in range(2):
            if nxt <= hu + PF and nxt < 14:
                dm += dma(nxt); nxt += 1
        step = 1 if len(dm) > 4 else 2
        if CT and hu % 3 == 0 and hu < 12: code_touch(a, 6, 7, 4096)
        if ev and hu in (1, 4, 8): a(f's_memrealtime s[{70+2*[1,4,8].index(hu)}:{71+2*[1,4,8].index(hu)}]')
        if hu == ST1_AT: dm = [list(st1) + (dm[0] if dm else [])] + dm[1:]
        if RT_AT and hu == RT_AT - 1: dm = dm + [list(pf1)]
        if RT_AT and hu == RT_AT:
            assert not dm
            dm = [list(x) for x in pf2]
        if hu == ST2_AT: dm = [[], [], [], [], [], [], list(st2)] if hu < 13 else [list(st2)]
        for f in range(16):
            kk, tau = f >> 1, f & 1
            for q in range(4):
                d = ACC[hu & 1] + 8 * q + 4 * tau; r = FR + 4 * (f & 7); c = CFV + (q * 8 + kk) * 4
                a(f'v_mfma_f32_16x16x32_bf16 v[{d}:{d+3}], v[{r}:{r+3}], v[{c}:{c+3}], ' + ('0' if kk == 0 else f'v[{d}:{d+3}]'))
                nv = 1
                if q == 0:
                    if f == 10 and hu < 13:
                        if not (RT_AT and hu >= RT_AT): a(f's_waitcnt vmcnt({4 * (nxt - hu - 2)})')
                        a('s_barrier')
                    if f + 6 < 16: a(rd(hu, f + 6))
                    elif hu < 13: a(rd(hu + 1, f + 6 - 16))
                if q == 1: nv = 2
                if q == 2 and dm and f % step == 0:
                    for x in dm.pop(0): a(x)
                    nv = 0
                if q == 3 and not (hu == 13 and f == 15): a(f's_waitcnt lgkmcnt({min(5, 14 - f) if hu == 13 else 5})')
                if f > 0 or q == 3:
                    for _ in range(nv):
                        if side: a(side.pop(0))
        for x in side: a(x)
        side = epi(hu)
    for x in side: a(x)
    if ev:
        ev(9018)
        for k in range(3):
            a(f'v_mov_b32 v36, {9007+k}')
            a(f'v_mov_b32 v37, s{70+2*k}')
            a('s_mov_b64 exec, 1')
            a(f'buffer_store_dwordx2 v[36:37], off, {WS}, s100')
            a('s_mov_b64 exec, -1')
            a('s_add_u32 s100, s100, 8')
            a.nop(2)
    a('s_waitcnt vmcnt(0)')
    a('s_barrier')

def touch_wo(a, dst):
    srd(a, 68, 46, 47, W_BYTES)
    a('s_mul_i32 s27, s17, 229376')
    a('s_lshl_b32 s30, s18, 7')
    a('s_add_u32 s27, s27, s30')
    a('v_mul_u32_u24 v9, 896, v0')
    a(f'buffer_load_dword v{dst}, v9, s[68:71], s27 offen')
```

```python
from asmlib import *
from layout import *
WS = 's[8:11]'
PEEK = WS
def common(a, endl):
    a('s_cmp_ge_u32 s2, 256')
    a(f's_cbranch_scc1 {endl}')
    a('s_load_dwordx2 s[6:7], s[0:1], 128')
    a('s_load_dwordx2 s[4:5], s[0:1], 112')
    a('v_lshrrev_b32 v1, 6, v0')
    a('v_readfirstlane_b32 s16, v1')
    a('v_and_b32 v1, 63, v0')
    a('v_lshlrev_b32 v2, 4, v1')
    a('v_lshrrev_b32 v3, 4, v1')
    a('v_and_b32 v4, 15, v1')
    a('s_waitcnt lgkmcnt(0)')
    a('s_mov_b32 s8, s6\ns_and_b32 s9, s7, 0xffff\ns_mov_b32 s10, 0x10000000\ns_mov_b32 s11, 0x20000')
    a(f's_mov_b32 s12, s4\ns_and_b32 s13, s5, 0xffff\ns_mov_b32 s14, {2048*896*2}\ns_mov_b32 s15, 0x20000')

WAIT_LIMIT = 2000000
SLEEP = 4
LONG = 64
NEAR = 50
FULLPOLL = 64
def backoff(a, P, sleep):
    a(f's_sleep {sleep}')
    a(f's_cmp_ge_u32 s17, {NEAR}')
    a(f's_cbranch_scc1 {P}_bo')
    a(f's_sleep {LONG}')
    a.label(P + '_bo')
def wait_eq(a, P, soff, target, abort, sleep=None, four=False):
    sleep = sleep or SLEEP
    if four: a('v_lshlrev_b32 v60, 2, v3')
    else: a('v_mov_b32 v60, 0')
    a('s_mov_b32 s30, 0')
    a.label(P)
    a(f'buffer_load_dword v61, v60, {WS}, {soff} offen sc1')
    a('s_waitcnt vmcnt(0)')
    a(f'v_cmp_ne_u32 vcc, {target}, v61')
    a(f's_cbranch_vccz {P}_ok')
    backoff(a, P, sleep)
    a('s_add_u32 s30, s30, 1')
    a(f's_cmp_lt_u32 s30, {WAIT_LIMIT}')
    a(f's_cbranch_scc1 {P}')
    a(f's_branch {abort}')
    a.label(P + '_ok')

TOKD = 0
SAMPLE0 = 1
GATE = 63
GATE2 = 0
HEADS = 0
EV = None
def ev(a, n):
    if EV: a(f's_memrealtime s[{72+2*n}:{73+2*n}]')
def evflush(a, n, base):
    if not EV: return
    a('s_waitcnt lgkmcnt(0)')
    for i in range(n):
        a(f'v_mov_b32 v36, {base+i}')
        a(f'v_mov_b32 v37, s{72+2*i}')
        a('s_mov_b64 exec, 1')
        a(f'buffer_store_dwordx2 v[36:37], off, {WS}, s100')
        a('s_mov_b64 exec, -1')
        a('s_add_u32 s100, s100, 8')
        a.nop(2)
SLEEP2 = 2
OST = ''
def load_lin(a, base_s, n, areg, flags='', thr=0):
    for f in range(n):
        if thr and f >= thr and f % 2 == 0: a(f's_waitcnt vmcnt({thr-2})')
        if f % 4 == 0: a(f's_add_u32 s22, {base_s}, {f*1024}')
        a(f'buffer_load_dwordx4 a[{areg+4*f}:{areg+4*f+3}], v2, {WS}, s22 offen offset:{(f & 3)*1024} {flags}')

def tokp_body(a, seg_s, hq_s, ld='', st='', sync=None, ldx=''):
    a(f's_lshl_b32 s20, {hq_s}, 2')
    a('s_add_u32 s20, s20, s16')
    a(f's_lshl_b32 s21, {seg_s}, 4')
    a('s_add_u32 s21, s21, s20')
    a(f's_mul_i32 s21, s21, {GSH_B}')
    a(f's_add_u32 s21, s21, {F_OFF}')
    a(f's_mul_i32 s23, {seg_s}, {28*KB}')
    a(f's_add_u32 s23, s23, {XM_OFF}')
    FA, XA, MA = 0, 112, 224
    if sync:
        a(f's_mul_i32 s24, {seg_s}, {7*KB}')
        a(f's_add_u32 s24, s24, {MEMG_OFF}')
        a(f's_lshr_b32 s25, {seg_s}, 3')
        a('s_lshl_b32 s25, s25, 4')
        a('s_add_u32 s25, s25, s20')
        a('s_lshl_b32 s25, s25, 7')
        a(f's_add_u32 s25, s25, {CNT_OFF + FC}')
        wait_eq(a, sync + '_wf', 's25', 56, sync + '_abort')
    else:
        a(f's_mul_i32 s24, {seg_s}, {EXCH_B}')
        a(f's_add_u32 s24, s24, {EXCH_OFF}')
    a(f's_lshl_b32 s25, {seg_s}, 1')
    a(f's_mul_i32 s25, s25, {PT_B}')
    a(f's_add_u32 s25, s25, {PT_OFF}')
    a('s_lshl_b32 s26, s20, 10')
    a('s_add_u32 s26, s26, s25')
    a(f's_lshl_b32 s27, {hq_s}, 10')
    a('s_add_u32 s27, s27, s25')
    a('s_lshl_b32 s28, s16, 8')
    a('s_add_u32 s27, s27, s28')
    a(f's_add_u32 s27, s27, {16*KB}')
    a('s_mov_b32 s50, -1')
    a('s_mov_b32 s51, 0')
    a('v_lshlrev_b32 v63, 4, v4')
    a('v_lshl_add_u32 v63, v3, 3, v63')
    if sync:
        for r in range(44, 48): a(f'v_mov_b32 v{r}, -1')
        for tt in range(2):
            a(f's_add_u32 s28, s26, {tt*PT_B}')
            a(f's_add_u32 s29, s27, {tt*PT_B}')
            a(f'buffer_store_dwordx4 v[44:47], v2, {WS}, s28 offen {st}')
            a('s_mov_b64 exec, s[50:51]')
            a(f'buffer_store_dwordx2 v[44:45], v63, {WS}, s29 offen {st}')
            a('s_mov_b64 exec, -1')
    load_lin(a, 's21', 28, FA, ld, TOKD)
    load_lin(a, 's23', 28, XA, ldx)
    if not sync: load_lin(a, 's24', 7, MA, ld)
    AX = {(0, 0): 8, (0, 1): 12, (1, 1): 16}
    AM = {(0, 0): 20, (1, 0): 24, (0, 1): 28, (1, 1): 32}
    for r in range(4):
        a(f'v_lshl_add_u32 v5, v3, 2, {r}')
        a(f'v_cmp_le_u32 s[{40+2*r}:{41+2*r}], v5, v4')
    a('v_cmp_gt_u32 s[48:49], 2, v3')
    a('v_mov_b32 v6, 0xff800000')
    a('s_waitcnt vmcnt(0)' if sync else 's_waitcnt vmcnt(7)')
    if sync:
        a(f's_lshl_b32 s25, {seg_s}, 7')
        a(f's_add_u32 s25, s25, {CNT_OFF + PTC}')
        a('v_mov_b32 v5, 1')
        a('v_mov_b32 v7, 0')
        a('s_waitcnt vmcnt(0)')
        a('s_mov_b64 exec, 1')
        a(f'buffer_atomic_add v5, v7, {WS}, s25 offen')
        a('s_mov_b64 exec, -1')
    for f in range(14):
        for (tk, tt), d in AX.items():
            c = '0' if f == 0 else f'v[{d}:{d+3}]'
            xa = XA + 4 * (tk * 14 + f); fa = FA + 4 * (tt * 14 + f)
            a(f'v_mfma_f32_16x16x32_bf16 v[{d}:{d+3}], a[{xa}:{xa+3}], a[{fa}:{fa+3}], {c}')
    MV = 64
    if sync:
        a('s_mul_i32 s22, s20, 448')
        a('s_add_u32 s22, s22, s24')
        a('s_mov_b32 s31, 0')
        if GATE:
            a(f's_cmp_ge_u32 s17, {GATE}')
            a(f's_cselect_b32 s23, {7*KB}, 0')
            a('s_cselect_b32 s29, 1, 0')
            a('s_sub_u32 s22, s22, s23')
        if HEADS:
            a('s_lshl_b32 s23, s20, 2')
            a(f's_add_u32 s23, s23, {CNT_OFF + PTC + 63*128 + 64}')
            a('s_cmp_eq_u32 s17, 63')
            a('s_cselect_b32 s22, s23, s22')
            a('s_cselect_b32 s31, 1, 0')
        a('v_mov_b32 v62, s22')
        a('s_mov_b32 s30, 0')
        a.label(sync + '_pm')
        a(f's_cmp_ge_u32 s17, {FULLPOLL}')
        a(f's_cbranch_scc1 {sync}_pf')
        a(f'buffer_load_dword v61, v62, {WS}, 0 offen sc1')
        a('s_waitcnt vmcnt(0)')
        a('v_subrev_u32 v61, s31, v61')
        a('v_cmp_eq_u32 vcc, -1, v61')
        a(f's_cbranch_vccnz {sync}_pr')
        a.label(sync + '_pf')
        ev(a, 0)
        a('s_add_u32 s22, s24, 4096')
        for ks in range(7):
            a(f'buffer_load_dwordx4 v[{MV+4*ks}:{MV+4*ks+3}], v2, {WS}, {"s24" if ks < 4 else "s22"} offen offset:{(ks & 3)*1024} sc1')
        a('s_waitcnt vmcnt(0)')
        a(f'v_max_u32 v61, v{MV}, v{MV+1}')
        for r in range(MV + 2, MV + 28, 2): a(f'v_max3_u32 v61, v61, v{r}, v{r+1}')
        a('v_cmp_eq_u32 vcc, -1, v61')
        a(f's_cbranch_vccz {sync}_pk')
        a('s_add_u32 s30, s30, 1')
        a('s_cmp_lt_u32 s30, s31') if False else None
        a('s_cmp_eq_u32 s29, 0' if GATE else 's_cmp_eq_u32 s31, 0')
        a(f's_cbranch_scc1 {sync}_pr')
        a(f's_cmp_lt_u32 s30, {WAIT_LIMIT}')
        a(f's_cbranch_scc1 {sync}_pf')
        a.label(sync + '_pr')
        backoff(a, sync + '_pm', SLEEP)
        a('s_add_u32 s30, s30, 1')
        a(f's_cmp_lt_u32 s30, {WAIT_LIMIT}')
        a(f's_cbranch_scc1 {sync}_pm')
        a(f's_branch {sync}_abort')
        a.label(sync + '_pk')
        ev(a, 1)
        if HEADS:
            a(f's_lshl_b32 s22, {hq_s}, 2')
            a('s_add_u32 s22, s22, s25')
            a('v_mov_b32 v5, 1')
            a('s_mov_b64 exec, 1')
            a(f'buffer_store_dword v5, off, {WS}, s22 offset:4 sc1')
            a('s_mov_b64 exec, -1')
        a(f'buffer_load_dword v250, v251, {PEEK}, 0 offen sc1')
    else:
        a('s_waitcnt vmcnt(0)')
    for ks in range(7):
        for (half, tt), d in AM.items():
            c = '0' if ks == 0 else f'v[{d}:{d+3}]'
            fa = FA + 4 * (tt * 14 + ks * 2 + half)
            mop = f'v[{MV+4*ks}:{MV+4*ks+3}]' if sync else f'a[{MA+4*ks}:{MA+4*ks+3}]'
            a(f'v_mfma_f32_16x16x32_bf16 v[{d}:{d+3}], {mop}, a[{fa}:{fa+3}], {c}')
    for tt in range(2):
        xs = []
        for (tk, t2), d in AX.items():
            if t2 != tt: continue
            for r in range(4):
                if tk == tt: a(f'v_cndmask_b32 v{d+r}, v6, v{d+r}, s[{40+2*r}:{41+2*r}]')
                xs.append(d + r)
        z, t = AM[(0, tt)], AM[(1, tt)]
        for r in range(4): a(f'v_cndmask_b32 v{z+r}, v{t+r}, v{z+r}, s[48:49]')
        for r in range(4): a(f'v_mov_b32 v{t+r}, v{z+r}')
        for r in range(4): a(f'v_permlane32_swap_b32 v{z+r}, v{t+r}')
        for r in range(4): a(f'v_add_f32 v{z+r}, v{z+r}, v{t+r}')
        ms = [z + r for r in range(4)]
        al = xs + ms
        mx = 40
        a(f'v_max3_f32 v{mx}, v{al[0]}, v{al[1]}, v{al[2]}')
        rest = al[3:]
        while len(rest) >= 2:
            a(f'v_max3_f32 v{mx}, v{mx}, v{rest[0]}, v{rest[1]}'); rest = rest[2:]
        if rest: a(f'v_max_f32 v{mx}, v{mx}, v{rest[0]}')
        for sw in ('16', '32'):
            a(f'v_mov_b32 v41, v{mx}')
            a(f'v_permlane{sw}_swap_b32 v{mx}, v41')
            a(f'v_max_f32 v{mx}, v{mx}, v41')
        for r in al: a(f'v_sub_f32 v{r}, v{r}, v{mx}')
        for r in al: a(f'v_exp_f32 v{r}, v{r}')
        a(f'v_add_f32 v42, v{ms[0]}, v{ms[1]}')
        a(f'v_add_f32 v43, v{ms[2]}, v{ms[3]}')
        a('v_add_f32 v42, v42, v43')
        a('v_mul_f32 v42, 0.5, v42')
        for r in xs: a(f'v_add_f32 v42, v42, v{r}')
        for sw in ('16', '32'):
            a('v_mov_b32 v41, v42')
            a(f'v_permlane{sw}_swap_b32 v42, v41')
            a('v_add_f32 v42, v42, v41')
        a('v_rcp_f32 v42, v42')
        for r in al: a(f'v_mul_f32 v{r}, v{r}, v42')
        o = 44 + 8 * tt
        for k in range(4): a(f'v_cvt_pk_bf16_f32 v{o+k}, v{xs[k]}, ' + (f'v{xs[4+k]}' if tt else '0'))
        a(f'v_cvt_pk_bf16_f32 v{o+4}, v{ms[0]}, v{ms[1]}')
        a(f'v_cvt_pk_bf16_f32 v{o+5}, v{ms[2]}, v{ms[3]}')
        for k in range(6): a(f'v_min_u32 v{o+k}, -2, v{o+k}')
        a(f'buffer_store_dwordx4 v[{o}:{o+3}], v2, {WS}, s26 offen {st}')
        a('s_mov_b64 exec, s[50:51]')
        a(f'buffer_store_dwordx2 v[{o+4}:{o+5}], v63, {WS}, s27 offen {st}')
        a('s_mov_b64 exec, -1')
        if tt == 0:
            a(f's_add_u32 s26, s26, {PT_B}')
            a(f's_add_u32 s27, s27, {PT_B}')
    ev(a, 2)
    evflush(a, 3, 9030)

def toko_body(a, seg_s, vq_s, ld='', sync=None, OUT='s[12:15]'):
    a(f's_lshl_b32 s20, {vq_s}, 2')
    a('s_add_u32 s20, s20, s16')
    a('s_mul_i32 s24, s20, 65')
    a(f's_add_u32 s24, s24, {seg_s}')
    a('s_lshl_b32 s24, s24, 13')
    a(f's_add_u32 s24, s24, {T2_OFF + 8*KB}')
    a(f's_mul_i32 s21, s20, {VO_SV}')
    a(f's_mul_i32 s22, {seg_s}, {VO_SS}')
    a('s_add_u32 s21, s21, s22')
    a(f's_add_u32 s21, s21, {VO_OFF}')
    a(f's_lshl_b32 s25, {seg_s}, 1')
    a(f's_mul_i32 s25, s25, {PT_B}')
    a(f's_add_u32 s25, s25, {PT_OFF}')
    a('v_mov_b32 v5, v2')
    a('v_min_u32 v6, 11, v4')
    a('v_mad_u32_u24 v6, v3, 12, v6')
    a('v_lshlrev_b32 v6, 4, v6')
    a('v_add_u32 v6, 1024, v6')
    a('v_lshrrev_b32 v8, 1, v3')
    a('v_lshl_add_u32 v8, v8, 4, v4')
    a('v_lshlrev_b32 v8, 4, v8')
    a('v_and_b32 v9, 1, v3')
    a('v_lshl_add_u32 v7, v9, 3, v8')
    VA, PA = 0, 128
    T2R, PMR = 28, 64
    if sync:
        a(f's_lshr_b32 s26, {seg_s}, 3')
        a('s_lshl_b32 s26, s26, 4')
        a('s_add_u32 s26, s26, s20')
        a('s_lshl_b32 s26, s26, 7')
        a(f's_add_u32 s26, s26, {CNT_OFF + VOC}')
        wait_eq(a, sync + '_wv', 's26', 56, sync + '_abort')
    for h in range(16):
        if TOKD and 2 * h >= TOKD: a(f's_waitcnt vmcnt({TOKD-2})')
        if h % 2 == 0: a(f's_add_u32 s22, s21, {h*1792}')
        for t in range(2):
            r = VA + 8 * h + 4 * t
            a(f'buffer_load_dwordx4 a[{r}:{r+3}], v{5+t}, {WS}, s22 offen offset:{(h & 1)*1792} {ld}')
    if sync:
        a(f's_and_b32 s27, {seg_s}, 1')
        a(f's_cmp_ge_u32 {seg_s}, 62')
        a(f's_cselect_b32 s27, {seg_s}, s27')
        a('s_lshl_b32 s26, s20, 6')
        a('s_add_u32 s26, s26, s27')
        a('s_lshl_b32 s26, s26, 4')
        a(f's_add_u32 s26, s26, {CNT_OFF + T2F}')
        wait_eq(a, sync + '_wt', 's26', 1, sync + '_abort', four=True)
    a('v_mul_u32_u24 v9, 1792, v4')
    a('v_lshl_add_u32 v9, v3, 3, v9')
    a('s_lshl_b32 s22, s20, 5')
    a('v_add_u32 v8, s22, v9')
    a('s_mul_i32 s22, s20, 24')
    a('s_add_u32 s22, s22, 512')
    a('v_add_u32 v9, s22, v9')
    a('v_mov_b32 v10, 0x40000000')
    a('v_cmp_eq_u32 vcc, 3, v3')
    a('v_cndmask_b32 v9, v9, v10, vcc')
    a(f's_mul_i32 s44, {seg_s}, {32*1792}')
    a('s_add_u32 s44, s44, 896')
    a(f's_add_u32 s45, s44, {16*1792}')
    a(f's_lshl_b32 s26, {seg_s}, 7')
    a(f's_add_u32 s26, s26, {CNT_OFF + PTC}')
    wait_eq(a, sync + '_wp', 's26', 16, sync + '_abort')
    PQ = 64
    a('s_lshl_b32 s31, s16, 2')
    a('s_add_u32 s31, s31, s26')
    a('s_lshl_b32 s28, s16, 12')
    a('s_add_u32 s26, s25, s28')
    a(f's_add_u32 s27, s26, {PT_B}')
    a('s_lshl_b32 s28, s16, 10')
    a('s_add_u32 s28, s28, s25')
    a(f's_add_u32 s28, s28, {16*KB}')
    a(f's_add_u32 s29, s28, {PT_B}')
    a('s_add_u32 s23, s24, 4096')
    a('s_mov_b32 s30, 0')
    if GATE:
        def retry(lbl, light):
            if light: backoff(a, lbl, SLEEP2)
            a('s_add_u32 s30, s30, 1')
            a(f's_cmp_lt_u32 s30, {WAIT_LIMIT}')
            a(f's_cbranch_scc1 {lbl}')
            a(f's_branch {sync}_abort')
        a(f's_sub_u32 s33, s24, {8*KB if GATE2 else 0}')
        a(f's_cmp_ge_u32 s17, {GATE}')
        a('s_cselect_b32 s31, s33, s26')
        a('s_cselect_b32 s33, s33, s24')
        a.label(sync + '_ps')
        a(f'buffer_load_dword v61, off, {WS}, s33 sc1')
        a(f'buffer_load_dword v62, off, {WS}, s31 sc1')
        a('s_waitcnt vmcnt(0)')
        a('v_max_u32 v61, v61, v62')
        a('v_cmp_eq_u32 vcc, -1, v61')
        a(f's_cbranch_vccz {sync}_pl')
        retry(sync + '_ps', True)
        def pload():
            for tt in range(2):
                for hh in range(4):
                    r = PQ + 20 * tt + 4 * hh
                    a(f'buffer_load_dwordx4 v[{r}:{r+3}], v2, {WS}, s{26+tt} offen offset:{hh*1024} {ld}')
                r = PQ + 20 * tt + 16
                a(f'buffer_load_dwordx4 v[{r}:{r+3}], v2, {WS}, s{28+tt} offen {ld}')
        a.label(sync + '_pl')
        ev(a, 0)
        a(f'buffer_load_dword v250, v251, {PEEK}, 0 offen sc1')
        for hq in range(4):
            for t_ in range(2):
                r = T2R + 8 * hq + 4 * t_
                a(f'buffer_load_dwordx4 v[{r}:{r+3}], v2, {WS}, {"s24" if hq < 2 else "s23"} offen offset:{(hq & 1)*2048 + t_*1024} {ld}')
        pload()
        a('s_waitcnt vmcnt(10)')
        a(f'v_max_u32 v61, v{T2R}, v{T2R+1}')
        for r in range(T2R + 2, T2R + 32, 2): a(f'v_max3_u32 v61, v61, v{r}, v{r+1}')
        a('v_cmp_eq_u32 vcc, -1, v61')
        a(f's_cbranch_vccz {sync}_p2')
        retry(sync + '_pl', False)
        a.label(sync + '_p1')
        pload()
        a.label(sync + '_p2')
        a('s_waitcnt vmcnt(0)')
        a(f'v_max_u32 v61, v{PQ}, v{PQ+1}')
        for r in range(PQ + 2, PQ + 40, 2): a(f'v_max3_u32 v61, v61, v{r}, v{r+1}')
        a('v_cmp_eq_u32 vcc, -1, v61')
        a(f's_cbranch_vccz {sync}_p3')
        retry(sync + '_p1', False)
        a.label(sync + '_p3')
        a('s_mul_i32 s22, s16, 10240')
        a('v_add_u32 v62, s22, v2')
        for k_ in range(10): a(f'ds_write_b128 v62, v[{PQ+4*k_}:{PQ+4*k_+3}] offset:{k_*1024}')
    a.label(sync + '_pk')
    ev(a, 1)
    a('s_lshl_b32 s22, s16, 2')
    a('s_add_u32 s22, s22, 49152')
    a('v_mov_b32 v63, s22')
    a('ds_write_b32 v63, v250')
    a('s_waitcnt lgkmcnt(0)')
    a('s_barrier')
    a('v_mov_b32 v63, 49152')
    a('ds_read_b32 v250, v63')
    ev(a, 2)
    ACC = 12
    def mm(A_, B_, t, tt, first):
        d = ACC + 8 * t + 4 * tt
        a(f'v_mfma_f32_16x16x32_bf16 v[{d}:{d+3}], {A_}, {B_}, ' + ('0' if first else f'v[{d}:{d+3}]'))
    fr = [(q, k, tt) for q in range(4) for k in range(5) for tt in range(2)]
    NB = 10
    def rd(i):
        q, k, tt = fr[i]; r = PQ + 4 * (i % NB)
        a(f'ds_read_b128 v[{r}:{r+3}], v2 offset:{q*10240 + (tt*5 + k)*1024}')
    for i in range(8): rd(i)
    for i, (q, k, tt) in enumerate(fr):
        a(f's_waitcnt lgkmcnt({min(7, 39 - i)})')
        r = PQ + 4 * (i % NB)
        for t_ in range(2):
            A_ = f'a[{VA+8*(4*q+k)+4*t_}:{VA+8*(4*q+k)+4*t_+3}]' if k < 4 else f'v[{T2R+8*q+4*t_}:{T2R+8*q+4*t_+3}]'
            mm(A_, f'v[{r}:{r+3}]', t_, tt, i < 2)
            if t_ == 0 and i + 8 < 40: rd(i + 8)
    for tt in range(2):
        for t_ in range(2):
            d = ACC + 8 * t_ + 4 * tt; o = 108 + 4 * tt + 2 * t_
            a(f'v_cvt_pk_bf16_f32 v{o}, v{d}, v{d+1}')
            a(f'v_cvt_pk_bf16_f32 v{o+1}, v{d+2}, v{d+3}')
            a(f'buffer_store_dwordx2 v[{o}:{o+1}], v{8+t_}, {OUT}, s{44+tt} offen {OST}')
    ev(a, 3)
    evflush(a, 4, 9040)

def gen_tok(which):
    name = f'tok{which}_kernel'
    a = Asm(); a.raw(kernel_header(name))
    common(a, f't{which}_end')
    a('s_lshr_b32 s17, s2, 2')
    a('s_and_b32 s18, s2, 3')
    if which == 'p': tokp_body(a, 's17', 's18')
    else: toko_body(a, 's17', 's18')
    a.label(f't{which}_end')
    a('s_endpgm')
    return a
```

```python
import sys, os
for x in sys.argv[2:]:
    if x.startswith('VOL='): os.environ['VOL'] = x[4:]
    if x.startswith('FOFF='): os.environ['FOFF'] = x[5:]
    if x.startswith('NINIT='): os.environ['NINIT'] = x[6:]
from asmlib import *
import prep, chain2
import os
HDR = open(os.path.dirname(os.path.abspath(__file__)) + '/hdr.txt').read()
def build(path):
    prep.RING = 1
    ks = [(prep.gen_prep(), 'prep_kernel', 'grid=(256,1,1) block=(256,1,1) lds=163840', (272, 256)),
          (chain2.gen_chain_kernel('main_kernel'), 'main_kernel', 'grid=(256,1,1) block=(256,1,1) lds=163840', (512, 256))]
    if chain2.FUSE: ks = ks[1:]
    if os.environ.get('TINY'):
        t = Asm(); t.raw(kernel_header('tiny_kernel'))
        t('s_memrealtime s[4:5]\ns_load_dwordx2 s[6:7], s[0:1], 128\ns_cmp_lg_u32 s2, 0\ns_cbranch_scc1 tk_end\ns_waitcnt lgkmcnt(0)')
        t('s_mov_b32 s8, s6\ns_and_b32 s9, s7, 0xffff\ns_mov_b32 s10, 0x10000000\ns_mov_b32 s11, 0x20000\ns_mov_b32 s12, 0x7000000\nv_mov_b32 v1, s4')
        t('buffer_store_dword v1, off, s[8:11], s12 sc1\ntk_end:\ns_endpgm')
        e = (t, 'tiny_kernel', 'grid=(1,1,1) block=(64,1,1) lds=0', (8, 8))
        ks = [e] + ks if os.environ['TINY'] == '1' else ks + [e]
    out = [HDR.rstrip('\n')]
    for a, n, l, _ in ks: out.append(f'; @launch kernel={n} {l}')
    out += ['.amdgcn_target "amdgcn-amd-amdhsa--gfx950"', '.text']
    for a, n, l, _ in ks: out.append(a.text())
    out.append('.section .rodata,"a"')
    for a, n, l, (v, ac) in ks: out.append(kernel_desc(n, v, ac))
    open(path, 'w').write('\n'.join(out) + '\n')
    print('instructions', sum(a.count for a, *_ in ks))
if __name__ == '__main__':
    for x in sys.argv[2:]:
        k, v = x.split('=')
        if k in ('VOL', 'NINIT', 'FOFF'): continue
        if k in ('PST', 'TOUCH_B', 'CT', 'SP_PF', 'ST2_AT', 'RT_AT', 'ST1_AT', 'RAMP'):
            import prep2; setattr(prep2, k, int(v)); continue
        if k in ('TOKD', 'NEAR', 'LONG', 'SLEEP', 'FULLPOLL', 'SAMPLE0', 'SLEEP2', 'HEADS', 'GATE', 'GATE2'):
            import tok; setattr(tok, k, int(v)); continue
        if k in ('SRV_SLEEP', 'SRV_D'):
            import t2srv; setattr(t2srv, k, int(v)); continue
        if k == 'OSTT':
            import tok; tok.OST = v; continue
        if k == 'OST':
            import tok, s4d; tok.OST = v; s4d.OST = v; continue
        if k in ('LDFL', 'TFL'):
            import prep2; setattr(prep2, k, v); continue
        assert hasattr(chain2, k), k
        setattr(chain2, k, int(v))
    build(sys.argv[1])
```

```python
import os
from asmlib import *
from layout import *

SRD = 's[8:11]'; DBG = 's[12:15]'
SPIN_LIMIT = 400000
NSTEPS = 64
STAMPS = 0
STAMP_STEP = 42
STEPLOG = 0
STAMP_OFF = 100 * 1024 * 1024
NST = 10
POLL_DEPTH = 5
F1_DELAY = 36
F2_POS = 3
FILL_A = 0
FILL_B = 0
DIAG = 0
CODE_PF = 1
SYNC = 1
XCD_SEL = 3
HLP_EARLY = 1
P_MOV = 2
D = 'row_mask:0xf bank_mask:0xf'
XSEG_B = 28 * KB
FLG1 = EXCH_OFF + 2 * EXCH_B
FOFF = int(os.environ.get('FOFF', '128'))
FLG2 = FLG1 + 16 * 128 - FOFF
RING_B = 2 * EXCH_B + 48 * 128
SC_SLEEP = 7
X_EARLY = 0
R1 = 1
R2 = 1
VO_PRE = 5
VO_EVERY = 1
B1_POS = 4
TLB_WARM = 0
WARM = 0
PCHK = 1
NOX = 0
X_POS = 12
X_EVERY = 4
XFL = 'sc1'
TAIL = 0
SC_TOUCH = 0
TOUCH_AHEAD = 1
MG_LATE = 0
P_PRE = 10
F3_POS = 7
F2_DELAY = 18
P3_SLEEP = 5
H3_DELAY = 0
H2_DELAY = 0
X_LATE = 2

def stamp(a, k):
    if STAMPS: a(f's_memtime s[{40+2*k}:{41+2*k}]')
def stamp_flush(a, path, lbl, t):
    if not STAMPS: return
    a(f's_sub_u32 s22, s19, {STAMP_STEP}')
    a('s_cmp_gt_u32 s22, 1')
    a(f's_cbranch_scc1 {lbl}')
    a('s_waitcnt lgkmcnt(0)')
    a('s_lshl_b32 s22, s22, 14')
    a('s_lshl_b32 s63, s17, 9')
    a('s_add_u32 s22, s22, s63')
    a(f's_add_u32 s22, s22, {STAMP_OFF + path * 64}')
    a(f'v_mov_b32 v{t}, 0')
    for k in range(NST):
        a(f'v_mov_b32 v{t+1}, s{40+2*k}')
        a(f'buffer_store_dword v{t+1}, v{t}, {SRD}, s22 offen offset:{4*k}')
        a.nop(1)
    a.label(lbl)
def stamp_calib(a, P):
    if not STAMPS: return
    a('s_memrealtime s[64:65]')
    a('s_waitcnt lgkmcnt(0)')
    a('s_lshr_b32 s68, s64, 10')
    a.label(P)
    a('s_memrealtime s[64:65]')
    a('s_memtime s[66:67]')
    a('s_waitcnt lgkmcnt(0)')
    a('s_lshr_b32 s69, s64, 10')
    a('s_cmp_eq_u32 s68, s69')
    a(f's_cbranch_scc1 {P}')
    a('s_lshl_b32 s22, s17, 9')
    a('s_lshl_b32 s63, s89, 6')
    a('s_add_u32 s22, s22, s63')
    a(f's_add_u32 s22, s22, {STAMP_OFF}')
    a('v_mov_b32 v8, s64\nv_mov_b32 v9, s66\nv_mov_b32 v10, 0')
    a(f'buffer_store_dwordx2 v[8:9], v10, {SRD}, s22 offen offset:56')

EVLOG = 0
EV_OFF = 101 * 1024 * 1024
HDBG = 0
HMAP = {9000: 6, 9010: 7, 9011: 8, 9002: 9, 9003: 10, 9004: 11, 9020: 12, 9021: 13, 9022: 14}
ENCT = 0
ENCP = 3
def evlog(a, tag):
    if ENCT and tag == ENCT: a('s_memrealtime s[92:93]')
    if HDBG and tag in HMAP:
        lb = a.newlabel('hd')
        if tag in (9002, 9003, 9004):
            a('s_cmp_lg_u32 s17, 5')
            a(f's_cbranch_scc1 {lb}')
            a('s_cmp_lg_u32 s89, 3')
        else:
            a('s_cmp_lg_u32 s16, 0')
            a(f's_cbranch_scc1 {lb}')
            a(f's_cmp_lg_u32 s2, {HDBG}')
        a(f's_cbranch_scc1 {lb}')
        a('s_memrealtime s[98:99]')
        a('s_waitcnt lgkmcnt(0)')
        a('v_mov_b32 v37, s98')
        a(f'buffer_store_dword v37, off, {DBG}, 0 offset:{4*HMAP[tag]}')
        a.label(lb)
    if not EVLOG: return
    a('s_memrealtime s[98:99]')
    a('s_waitcnt lgkmcnt(0)')
    a(f'v_mov_b32 v36, {tag}')
    a('v_mov_b32 v37, s98')
    a('s_mov_b64 exec, 1')
    a(f'buffer_store_dwordx2 v[36:37], off, {SRD}, s100')
    a('s_mov_b64 exec, -1')
    a('s_add_u32 s100, s100, 8')

def spin(a, back, abort):
    a('s_add_u32 s30, s30, 1')
    a(f's_cmp_lt_u32 s30, {SPIN_LIMIT}')
    a(f's_cbranch_scc1 {back}')
    a(f's_branch {abort}')

def flagpoll(a, vaddr, tag, regs, lbl, abort, fast=0, primed=False):
    Dp = POLL_DEPTH
    if NBPOLL:
        if NBPOLL == 2: a('s_mov_b64 s[66:67], -1')
        a.label(lbl + '_l')
        for i in range(NB_UNROLL):
            if NBPOLL == 2:
                p, q = (64, 66) if i % 2 == 0 else (66, 64)
                a(f'buffer_load_dword v{regs}, v{vaddr}, {SRD}, 0 offen sc1')
                a(f'v_cmp_gt_u32 s[{p}:{p+1}], {tag}, v{regs}')
                a(f's_cmp_eq_u32 s{q}, 0')
                a(f's_cbranch_scc1 {lbl}_d')
            elif NBPOLL == 3:
                a(f'buffer_load_dword v{regs}, v{vaddr}, {SRD}, 0 offen sc1')
                a(f'v_cmp_gt_u32 vcc, {tag}, v{regs}')
                a(f's_cbranch_vccz {lbl}_d')
            else:
                a(f'v_cmp_gt_u32 vcc, {tag}, v{regs}')
                a(f'buffer_load_dword v{regs}, v{vaddr}, {SRD}, 0 offen sc1')
                a(f's_cbranch_vccz {lbl}_d')
        a('s_waitcnt vmcnt(24)')
        spin(a, lbl + '_l', abort)
        a.label(lbl + '_d')
        return
    if fast:
        Dp = fast
        assert Dp % 2 == 0
        ld = lambda i: a(f'buffer_load_dword v{regs+i}, v{vaddr}, {SRD}, 0 offen sc1')
        a('s_mov_b64 s[72:73], -1')
        for i in range(Dp):
            ld(i)
            if i < Dp - 1: a('s_add_u32 s74, s74, 1\ns_add_u32 s74, s74, 1\ns_add_u32 s74, s74, 1')
        a.label(lbl + '_l')
        for i in range(Dp):
            p, q = (70, 72) if i % 2 == 0 else (72, 70)
            a(f's_waitcnt vmcnt({Dp-1})')
            a(f'v_cmp_gt_u32 s[{p}:{p+1}], {tag}, v{regs+i}')
            ld(i)
            a(f's_cmp_eq_u64 s[{q}:{q+1}], 0')
            a(f's_cbranch_scc1 {lbl}_d')
        spin(a, lbl + '_l', abort)
        a.label(lbl + '_d')
        return
    for i in range(0 if primed else Dp):
        a(f'buffer_load_dword v{regs+i}, v{vaddr}, {SRD}, 0 offen sc1')
    a.label(lbl + '_l')
    for i in list(range(Dp)) * POLL_UNROLL:
        a(f's_waitcnt vmcnt({Dp-1})')
        a(f'v_cmp_gt_u32 vcc, {tag}, v{regs+i}')
        if POLL_EARLY: a(f'buffer_load_dword v{regs+i}, v{vaddr}, {SRD}, 0 offen sc1')
        a(f's_cbranch_vccz {lbl}_d')
        if not POLL_EARLY: a(f'buffer_load_dword v{regs+i}, v{vaddr}, {SRD}, 0 offen sc1')
    spin(a, lbl + '_l', abort)
    a.label(lbl + '_d')

def load_units(a, units, base, tmp_s='s22', fl=''):
    cur = None; n = 0
    for off, reg in units:
        for hb in range(2):
            o = off + hb * 1024
            blk = o // 4096 * 4096
            if blk != cur:
                a(f's_add_u32 {tmp_s}, {base}, {blk}'); cur = blk
            a(f'buffer_load_dwordx4 {ureg(reg + 4 * hb, 4)}, v2, {SRD}, {tmp_s} offen offset:{o - blk} {fl}')
            n += 1
            if n % 32 == 0: a('s_waitcnt vmcnt(24)')

def wreg(ti, ks):
    u = ti * 7 + ks
    return 256 + 8 * u if u < 32 else 120 + 8 * (u - 32)

def lane_consts(a):
    a('v_and_b32 v1, 63, v0')
    a('v_lshlrev_b32 v2, 4, v1')
    a('v_lshrrev_b32 v116, 4, v1')
    a('v_and_b32 v117, 15, v1')
    a('v_mov_b32 v3, 0x4444')
    a('v_mov_b32 v118, 0xeeee')
    a('v_cmp_lt_u32 vcc, 7, v117')
    a('v_cndmask_b32 v3, v3, v118, vcc')

def next_step(a):
    a('s_mov_b32 s19, s18')
    a('s_add_u32 s18, s18, 1')
    a('s_mov_b32 s22, s20')
    a('s_mov_b32 s20, s21')
    a('s_mov_b32 s21, s22')
    a('s_add_u32 s23, s20, 4096')

def gap(a, ops):
    for o in ops:
        if not o.startswith('v_'): a(o)
    for o in ops:
        if o.startswith('v_'): a(o)

def poison_max(a, acc, regs):
    regs = list(regs)
    a(f'v_max3_u32 v{acc}, v{regs[0]}, v{regs[1]}, v{regs[2]}'); regs = regs[3:]
    while len(regs) >= 2:
        a(f'v_max3_u32 v{acc}, v{acc}, v{regs[0]}, v{regs[1]}'); regs = regs[2:]
    if regs: a(f'v_max_u32 v{acc}, v{acc}, v{regs[0]}')

def poison_max16(a, acc, regs):
    regs = list(regs)
    a(f'v_pk_max_u16 v{acc}, v{regs[0]}, v{regs[1]}')
    for r in regs[2:]: a(f'v_pk_max_u16 v{acc}, v{acc}, v{r}')
    a(f'v_lshlrev_b32 v{acc+1}, 16, v{acc}')
    a(f'v_max_u32 v{acc}, v{acc}, v{acc+1}')
    a(f'v_cmp_le_u32 vcc, 0xffff0000, v{acc}')

XP = 0
MP = 4 * KB
MJ = MP + 2304
XB = 8 * KB
def score_tiles(w):
    kb = 4 + (w >> 1); pP = w & 1
    return [(w, 0), (w, 1), (w, 2), (w, 3), (kb, 2 * pP), (kb, 2 * pP + 1), (6, 2 * (1 - pP) + (w >> 1))]
def score_mreg(w):
    kb = 4 + (w >> 1)
    m = {0: 8, 1: 12, 2: 16, 3: 20, 9 - kb: 24}
    if w & 1: m[kb] = 28; m[6] = 32
    else: m[6] = 28; m[kb] = 32
    return m

def gen_score(a, w, st, tag):
    L = lambda n: f'{tag}_sc{w}_{n}'
    ABORT = f'{tag}_abort'
    MR = score_mreg(w)
    ka = w; half6 = w >> 1
    AC = [36, 40, 44, 48, 52, 56, 60 + 2 * half6]
    TMP = 66; SX = 68; BOP2 = 76; XS = [80, 88, 96, 104]
    D0, D1, BOPA = [MR[k] for k in range(4) if k != ka]
    SACC = 52; W = 56
    pb, p6 = (0, 1) if w & 1 else (1, 0)
    def S(ti, ks):
        return f'v_smfmac_f32_16x16x64_bf16 v[{AC[ti]}:{AC[ti]+3}], v[{MR[ks]}:{MR[ks]+3}], {ureg(wreg(ti, ks), 8)}, v3'
    def cvt(dst, src):
        return [f'v_cvt_pk_bf16_f32 v{dst}, v{src}, v{src+1}', f'v_cvt_pk_bf16_f32 v{dst+1}, v{src+2}, v{src+3}']
    def cin(ti, hi):
        r = AC[ti]
        return cvt(r, r) if hi else cvt(r + 2, r)[::-1]
    def T(dst, src): return f'v_mfma_f32_16x16x32_bf16 v[{dst}:{dst+3}], v[{src}:{src+3}], v[4:7], 0'
    def xld(k):
        buf, hb = k >> 1, k & 1; r = XS[buf] + 4 * hb
        return f'buffer_load_dwordx4 v[{r}:{r+3}], v{117 if buf < 2 else 2}, {SRD}, {"s26" if buf & 1 else "s24"} offen offset:{hb*1024} {XFL}'
    a.xld = xld
    def Smm(m, b, first=False):
        c = '0' if first else f'v[{SACC}:{SACC+3}]'
        return f'v_mfma_f32_16x16x32_bf16 v[{SACC}:{SACC+3}], v[{m}:{m+3}], v[{b}:{b+3}], {c}'
    def Sx(tt, b, buf):
        return f'v_smfmac_f32_16x16x64_bf16 v[{SX+4*tt}:{SX+4*tt+3}], v[{b}:{b+3}], v[{XS[buf]}:{XS[buf]+7}], v3'
    ZR = list(range(36, 52)) + list(range(AC[6], AC[6] + 4)) + list(range(SX, SX + 8)) + list(range(52, 60))
    def zero(lo=0, hi=99):
        for r in ZR[lo:hi]: a(f'v_mov_b32 v{r}, 0')
    def mls(ks): return f'buffer_load_dwordx4 v[{MR[ks]}:{MR[ks]+3}], v2, {SRD}, {"s20" if ks < 4 else "s23"} offen offset:{(ks & 3) * 1024} sc1'
    def ml(ks): a(mls(ks))
    a.raw('.p2align 6')
    a.label(L('loop'))
    a('s_mov_b32 s30, 0')
    a('s_mov_b32 s62, 0')
    a('s_setprio 3')
    spf_n = [SPF0, SPF1W, SPF + SPF3, SPF + SPF3]
    RO = [[0, 1, 2, 3], [(k + w) % 4 for k in range(4)], [(k ^ (w & 1)) for k in range(4)]][MROT]
    if w == 0:
        flagpoll(a, 0, 's19', 112 if NBPOLL else 24, L('fp'), ABORT, FP2)
        if not W0_LATE: ml(RO[0])
        a('s_barrier')
        if W0_LATE: ml(RO[0])
    else:
        a('s_barrier')
        ml(RO[0])
    stamp(a, 0)
    for k in (1, 2, 3):
        a(f's_setprio {3-k}')
        ml(RO[k])
    for k in range(WARM if w == 3 else 0): a(f'v_mfma_f32_32x32x16_bf16 v[36:51], v[{SX}:{SX+3}], v[{SX}:{SX+3}], 0')
    a.flush()
    a.label(L('go'))
    chk = lambda k: f'v_cmp_eq_u32 vcc, -1, v{MR[RO[k]]}'
    ex1 = lambda k: [chk(k)]
    ex3 = [f'v_max3_u32 v{TMP}, v24, v27, v28', f'v_max3_u32 v{TMP}, v{TMP}, v31, v32', f'v_max_u32 v{TMP}, v{TMP}, v35', f'v_cmp_eq_u32 vcc, -1, v{TMP}']
    if LATECHK == 3:
        ex3 = [f'v_max3_u32 v{TMP}, v{MR[RO[1]]}, v{MR[RO[2]]}, v{MR[RO[3]]}', f'v_max3_u32 v{TMP}, v{TMP}, v24, v27', f'v_max3_u32 v{TMP}, v{TMP}, v28, v31',
               f'v_max3_u32 v{TMP}, v{TMP}, v32, v35', f'v_cmp_eq_u32 vcc, -1, v{TMP}']
    a('s_waitcnt vmcnt(3)')
    stamp(a, 1)
    xpos = [-1] * (X_LATE + X_W2) + [X_POS + X_EVERY * k for k in range(8 - X_LATE - X_W2)]
    nx = 0
    if LATECHK:
        for ks in range(4):
            for ti in range(7):
                a(S(ti, RO[ks]))
                if ks == 0 and ti in (0, 2, 5): ml(4 + (ti // 2 + (w if MROT else 0)) % 3)
                if ti == 2 and (ks == 0 or LATECHK < 3): a(f's_cbranch_vccnz {L(f"r{ks}")}')
                if ti == 6 and ks < 3: a(f's_waitcnt vmcnt({5 - ks + nx})')
                if ks == 3 and ti == (6 if LATECHK >= 2 else 1): a(f's_waitcnt vmcnt({nx})')
                if 7 * ks + ti in xpos and not NOX:
                    a(xld(X_LATE + X_W2 + nx)); nx += 1
                if 0 <= 7 * ks + ti - SPF1_POS < SPF1: a(f's_buffer_load_dword s{64 + (ti & 3)}, {SRD}, s34 offset:{(sum(spf_n) + w * SPF1 + 7 * ks + ti - SPF1_POS) * 64}')
                if ti == 0 and (ks == 0 or LATECHK < 3): a(chk(ks))
                if LATECHK == 3 and ks == 3 and ti == 1: a(ex3[0])
                if ks == 3 and 1 <= ti <= 4 and LATECHK == 1: a(ex3[ti - 1])
                if ks == 3 and ti == 6 and LATECHK == 1:
                    a(f's_cbranch_vccnz {L("r4")}')
                    a.label(L('c4'))
    else:
        for ks in range(4):
            for ti in range(7):
                a(S(ti, RO[ks]))
                if ks == 0:
                    if ti in (0, 2, 5): ml(4 + (ti // 2 + (w if MROT else 0)) % 3)
                    if ti == 2: a(f's_cbranch_vccnz {L("r0")}')
                if ti == 4 and ks < 3: a(f's_waitcnt vmcnt({[4, 4, 3][ks] + nx})')
                if ks == 3 and ti == 1: a(f's_waitcnt vmcnt({nx})')
                if 7 * ks + ti in xpos and not NOX:
                    assert 7 * ks + ti > 5
                    a(xld(X_LATE + X_W2 + nx)); nx += 1
                if ks == 0 and ti == 0: a(chk(0))
                if ti == 4 and ks < 3: a(chk(ks + 1))
                if ks == 3 and 1 <= ti <= 4: a(ex3[ti - 1])
                if ti == 6:
                    a(f's_cbranch_vccnz {L(f"r{ks+1}")}')
                    a.label(L(f'c{ks+1}'))
    stamp(a, 2)
    seq = []
    for ti in (6, 4, 5, 0, 1, 2, 3):
        for ks in (4, 5, 6): seq.append([S(ti, ks), []])
    def side(i, ops): seq[i][1] += ops
    def spread(i, ops):
        for k, o in enumerate(ops): side(i + k, [o])
    if LATECHK >= 2:
        spread(0, ex3[-4:])
        side(5, [f's_cbranch_vccnz {L("r4")}'])
    spread(5, cin(6, half6))
    seq.insert(8, [T(D0, 62 - 2 * half6), []])
    spread(8, cin(4, 0))
    spread(10, cvt(BOP2 + 2 * p6, D0))
    spread(12, cin(5, 1))
    seq.insert(15, [T(D1, 54), []])
    spread(15, cin(0, 0))
    spread(17, cvt(BOP2 + 2 * pb, D1))
    spread(19, cin(1, 1))
    c2 = cin(2, 0); c3 = cin(3, 1)
    for k in range(X_LATE + X_W2 + nx, 8):
        if not NOX: side(xpos[k] - 28, [xld(k)])
    side(22, ['s_waitcnt vmcnt(4)'] + c2[:1])
    seq.append([Sx(0, BOP2, 0), c2[1:]])
    seq.append([T(D0, 38), c3])
    seq.append([T(D1, 46), []])
    seq.append([Sx(1, BOP2, 1), cvt(BOPA, D0)[:1]])
    seq.append([Smm(30, BOP2, True), ['s_waitcnt vmcnt(0)'] + cvt(BOPA, D0)[1:] + cvt(BOPA + 2, D1)])
    wm = f'ds_write_b128 v113, v[{SACC}:{SACC+3}]'
    def foldx(t):
        b = SX + 4 * t
        a(f'v_permlane32_swap_b32 v{b}, v{b+2}')
        a(f'v_permlane32_swap_b32 v{b+1}, v{b+3}')
        a(f'v_add_f32 v{W+t}, v{b}, v{b+2}')
        a(f'v_add_f32 v{W+2+t}, v{b+1}, v{b+3}')
    last3 = [Sx(0, BOPA, 2), Sx(1, BOPA, 3), Smm(MR[ka], BOPA)]
    for k in [(2, 0, 1), (0, 1, 2), (0, 2, 1), (0, 1, 2)][TAIL]: seq.append([last3[k], []])
    for m, ops in seq:
        a(m)
        gap(a, ops)
    nz = 0
    if TAIL == 0:
        a(wm); foldx(0); foldx(1)
    elif TAIL == 1:
        foldx(0); foldx(1); a(wm)
    else:
        foldx(0); a(wm); foldx(1)
    a(f'ds_write_b128 v2, v[{W}:{W+3}] offset:{XP + w*1024}')
    a(f'v_cmp_u_f32 vcc, v{W+1}, v{W+3}')
    stamp(a, 3)
    ZP = 64 - 4 * half6
    zm = lambda d, z: a(f'v_mfma_f32_32x32x16_bf16 v[{d}:{d+15}], v[{SX}:{SX+3}], v[{SX}:{SX+3}], 0')
    for r in range(SX, SX + 4): a(f'v_mov_b32 v{r}, 0')
    a(f's_cbranch_vccnz {L("retry")}')
    a.label(L('cont'))
    a(f's_add_u32 s24, s24, {XSEG_B}')
    a(f's_add_u32 s26, s26, {XSEG_B}')
    for k in range(X_LATE): a(xld(k))
    for r in range(SX + 4, SX + 4 + FILL_A): a(f'v_mov_b32 v{r}, 0')
    if ZV == 3 and w == 3: a(f'v_mfma_f32_16x16x32_bf16 v[{AC[6]}:{AC[6]+3}], v[{SX}:{SX+3}], v[{SX}:{SX+3}], 0')
    else: zm(36, ZP)
    a('s_waitcnt lgkmcnt(0)')
    a('s_barrier')
    stamp(a, 4)
    def f1(pos):
        if w == F1_W and pos == F1_POS: a(f'buffer_store_dword v112, v116, {SRD}, 0 offen {st}')
    if w < 2:
        t = 8
        for k in range(4): a(f'ds_read_b64 v[{t+2*k}:{t+2*k+1}], v114 offset:{k*1024}')
        a(f'ds_read2_b32 v[{t+8}:{t+9}], v115 offset0:0 offset1:64')
        a(f'ds_read2_b32 v[{t+10}:{t+11}], v115 offset0:128 offset1:192')
        if ZV != 2: zm(52, SX)
        a('s_waitcnt lgkmcnt(0)')
        stamp(a, 5)
        X = t; Y = t + 4; Mm = t + 8; m = t + 12; mx = t + 14; l = t + 16
        a(f'v_pk_add_f32 v[{Mm}:{Mm+1}], v[{Mm}:{Mm+1}], v[{Mm+2}:{Mm+3}]')
        a(f'v_pk_add_f32 v[{X}:{X+1}], v[{X}:{X+1}], v[{X+2}:{X+3}]')
        a(f'v_pk_add_f32 v[{Y}:{Y+1}], v[{Y}:{Y+1}], v[{Y+2}:{Y+3}]')
        a(f'v_add_f32 v{m}, v{Mm}, v{Mm+1}')
        a(f'v_pk_add_f32 v[{X}:{X+1}], v[{X}:{X+1}], v[{Y}:{Y+1}]')
        a(f'v_max_f32 v{mx}, v{X}, v{X+1}')
        a(f'v_add_f32_dpp v{m}, v{m}, v{m} row_ror:8 {D}')
        f1(0)
        a(f'v_max_f32_dpp v{mx}, v{mx}, v{mx} row_ror:8 {D}')
        a(f'v_max_f32 v{mx}, v{mx}, v{m}')
        f1(1)
        a(f'v_max_f32_dpp v{mx}, v{mx}, v{mx} quad_perm:[1,0,3,2] {D}')
        f1(2)
        a(f'v_max_f32_dpp v{mx}, v{mx}, v{mx} quad_perm:[2,3,0,1] {D}')
        f1(3)
        a(f'v_max_f32_dpp v{mx}, v{mx}, v{mx} row_half_mirror {D}')
        a(f'v_pk_add_f32 v[{X}:{X+1}], v[{X}:{X+1}], v[{mx}:{mx+1}] op_sel_hi:[1,0] neg_lo:[0,1] neg_hi:[0,1]')
        a(f'v_sub_f32 v{m}, v{m}, v{mx}')
        f1(4)
        a(f'v_exp_f32 v{X}, v{X}')
        a(f'v_exp_f32 v{X+1}, v{X+1}')
        a(f'v_exp_f32 v{m}, v{m}')
        f1(5)
        a(f'v_add_f32 v{l}, v{X}, v{X+1}')
        a(f'v_fmac_f32 v{l}, 0.5, v{m}')
        a(f'v_mov_b32_dpp v{m+1}, v{m} quad_perm:[1,0,3,2] {D}')
        a(f'v_add_f32_dpp v{l}, v{l}, v{l} quad_perm:[1,0,3,2] {D}')
        f1(6)
        a(f'v_add_f32_dpp v{l}, v{l}, v{l} quad_perm:[2,3,0,1] {D}')
        a(f'v_add_f32_dpp v{l}, v{l}, v{l} row_half_mirror {D}')
        a(f'v_add_f32_dpp v{l}, v{l}, v{l} row_ror:8 {D}')
        a(f'v_rcp_f32 v{l}, v{l}')
        a(f'v_pk_mul_f32 v[{X}:{X+1}], v[{X}:{X+1}], v[{l}:{l+1}] op_sel_hi:[1,0]')
        a(f'v_cvt_pk_bf16_f32 v{X}, abs(v{X}), abs(v{X+1})')
        a(f'buffer_store_dword v{X}, v1, {SRD}, s20 offen {st}')
        a(f'v_pk_mul_f32 v[{m}:{m+1}], v[{m}:{m+1}], v[{l}:{l+1}] op_sel_hi:[1,0]')
        a(f'v_cvt_pk_bf16_f32 v{m}, abs(v{m}), abs(v{m+1})')
        a(f'buffer_store_dword v{m}, v118, {SRD}, s20 offen {st}')
        stamp(a, 6)
        if WB_EVERY and w == 1 and not st:
            a('s_lshl_b32 s22, s17, 8')
            a('s_or_b32 s22, s22, s18')
            a(f's_and_b32 s22, s22, {0xf00 + WB_EVERY - 1}')
            a(f's_cbranch_scc1 {L("nwb")}')
            a('buffer_wbl2 sc1')
            a.label(L('nwb'))
        if ZV == 2: zm(52, SX)
    else:
        if ZV == 0 or (ZV == 3 and w == 2):
            zm(52, SX)
            a(f'buffer_store_dwordx2 v[118:119], v114, {SRD}, s21 offen {st}')
            a(f'buffer_store_dwordx2 v[118:119], v115, {SRD}, s21 offen {st}')
            if STLB:
                a(f's_buffer_load_dword s70, {SRD}, s35')
                a(f's_add_u32 s22, s24, {4*XSEG_B}')
                a(f's_buffer_load_dword s71, {SRD}, s22')
                a(f's_mul_i32 s22, s18, {7*KB}')
                a(f's_add_u32 s22, s22, {MEMG_OFF + 3*7*KB}')
                a(f's_buffer_load_dword s72, {SRD}, s22')
                a(f's_add_u32 s35, s35, {VO_SS}')
        elif ZV == 3:
            for r in range(52, 52 + ZX): a(f'v_mov_b32 v{r}, 0')
            zm(36, SX)
        else:
            for r in list(range(52, 60)) + list(range(AC[6], AC[6] + 4)): a(f'v_mov_b32 v{r}, 0')
            for k in range(ZX if w == 2 else 0): a(f'v_mov_b32 v{TMP}, 0')
    for r in range(SX + 4 + FILL_A, SX + 8): a(f'v_mov_b32 v{r}, 0')
    if SPF:
        for k in range(spf_n[w]):
            if k == SPF and SPF_SL: a(f's_sleep {SPF_SL}')
            a(f's_buffer_load_dword s{64 + (k & 3)}, {SRD}, s34 offset:{(sum(spf_n[:w]) + k) * 64}')
    a('s_mov_b32 s36, s34')
    a(f's_add_u32 s34, s33, {VO_SS}')
    a('s_mov_b32 s33, s34')
    if X_W2:
        sl = X_SLEEP + (5 if w >= 2 else 0)
        if sl: a(f's_sleep {sl}')
        for k in range(X_LATE, X_LATE + X_W2): a(xld(k))
    stamp_flush(a, w, L('sf'), BOP2)
    if STEPLOG and w in (1, 3):
        a('s_memtime s[40:41]' if w == 1 else 's_memrealtime s[40:41]')
        a('s_lshl_b32 s22, s17, 8')
        if w == 3: a('s_add_u32 s22, s22, 4096')
        a('s_lshl_b32 s42, s19, 2')
        a('s_add_u32 s22, s22, s42')
        a(f's_add_u32 s22, s22, {STAMP_OFF}')
        a(f'v_mov_b32 v{BOP2}, 0')
        a('s_waitcnt lgkmcnt(0)')
        a(f'v_mov_b32 v{BOP2+1}, s40')
        a(f'buffer_store_dword v{BOP2+1}, v{BOP2}, {SRD}, s22 offen')
    if DIAG and w == 3:
        a('s_cmp_lg_u32 s19, 1')
        a(f's_cbranch_scc1 {L("dg")}')
        a('s_memtime s[90:91]')
        a('s_memrealtime s[86:87]')
        a.label(L('dg'))
    next_step(a)
    if w == F1_W: a('v_mov_b32 v112, s18')
    if w == 0 and SC_SLEEP: a(f's_sleep {SC_SLEEP}')
    a(f's_cmp_lt_u32 s19, {NSTEPS-1}')
    a.flush()
    a(f's_cbranch_scc1 {L("loop")}')
    if w == HU_W:
        a('s_lshl_b32 s22, s17, 2')
        a(f's_add_u32 s22, s22, {CNT_OFF + PTC + 63*128 + 64}')
        a('v_mov_b32 v8, 1')
        a('s_mov_b64 exec, 1')
        a(f'buffer_store_dword v8, off, {SRD}, s22 sc1')
        a('s_mov_b64 exec, -1')
    a(f's_branch {tag}_done')
    for k in range(5):
        if LATECHK == 3 and 0 < k < 4: continue
        ks_ = [RO[k]] if k < 4 else (RO[1:] if LATECHK == 3 else []) + [4, 5, 6]
        a.label(L(f'r{k}'))
        a(f's_add_u32 s31, s31, {[1, 0x100, 0x100, 0x100, 0x1000000][k] if RCLS else 1}')
        for ks in ks_: ml(ks)
        a('s_waitcnt vmcnt(0)')
        for x in (ex1(k) if k < 4 else ex3): a(x)
        if k == 0:
            for r in range(36, 52): a(f'v_mov_b32 v{r}, 0')
        a.flush()
        a(f's_cbranch_vccz {L("go" if k == 0 else "rz" if (LATECHK and k < 3 + LATECHK) else f"c{k}")}')
        spin(a, L(f'r{k}'), ABORT)
    a.label(L('retry'))
    a('s_cmp_lg_u32 s62, 0')
    a(f's_cbranch_scc1 {L("cont")}')
    a('s_waitcnt vmcnt(0) lgkmcnt(0)')
    a.label(L('rv'))
    for ks in range(7): ml(ks)
    a('s_waitcnt vmcnt(0)')
    poison_max(a, TMP, range(8, 36))
    a(f'v_cmp_eq_u32 vcc, -1, v{TMP}')
    a(f's_cbranch_vccz {L("rk")}')
    spin(a, L('rv'), ABORT)
    a.label(L('rk'))
    a('s_mov_b32 s62, 1')
    a('s_add_u32 s31, s31, 0x100')
    a.label(L('rz'))
    zero()
    a.flush()
    a(f's_branch {L("go")}')

def touch_ring(a, t, w):
    nl = (2 * EXCH_B) // 128 + 33
    a(f's_mov_b32 s22, {EXCH_OFF}')
    for k in range(w, (nl + 63) // 64, 4):
        a(f'v_lshrrev_b32 v{t}, 4, v2')
        a(f'v_add_u32 v{t}, {64*k}, v{t}')
        a(f'v_min_u32 v{t}, {nl-1}, v{t}')
        a(f'v_lshlrev_b32 v{t}, 7, v{t}')
        a(f'buffer_load_dword v{t+1}, v{t}, {SRD}, s22 offen sc1')

def WFL(): return 'sc1' if FUSE else ''
HELP = 0
HFULL = 0
def mask_wait(a, P, vaddr, soff, smask, sleep=3):
    poll(a, P, [f'buffer_load_dword v9, {vaddr}, {SRD}, {soff} {"offen" if vaddr != "off" else ""} sc1'], [f'v_and_b32 v10, {smask}, v9', f'v_cmp_ne_u32 vcc, {smask}, v10'], sleep=sleep)
def b_wait(a, P, w):
    a('s_lshr_b32 s22, s17, 2')
    a('s_lshl_b32 s28, 0x81, s22')
    a('s_mul_i32 s27, s17, 12')
    for d in (256, 267):
        a(f's_add_u32 s22, s27, {d}')
        a('s_lshr_b32 s22, s22, 6')
        a('s_lshl_b32 s22, 0x81, s22')
        a('s_or_b32 s28, s28, s22')
    a('v_lshrrev_b32 v12, 8, v2')
    a('v_lshlrev_b32 v12, 7, v12')
    a(f's_mov_b32 s27, {PFL + w*512}')
    mask_wait(a, P, 'v12', 's27', 's28')
def a_wait(a, P, kaps):
    a('s_lshl_b32 s27, s17, 7')
    a(f's_add_u32 s27, s27, {PFL + 2048}')
    a(f's_mov_b32 s28, {sum(0x81 << k for k in kaps)}')
    mask_wait(a, P, 'off', 's27', 's28')
def touch_tiles(a, base, tiles):
    a('v_min_u32 v64, 55, v1')
    a('v_lshlrev_b32 v64, 7, v64')
    a(f's_mul_i32 s27, s17, {CUW_B}')
    for t in tiles:
        for hf in range(2):
            a(f's_add_u32 s22, s27, {base + t*TILE_B + hf*7168}')
            if HFULL:
                for k in range(7):
                    if k == 4: a('s_add_u32 s22, s22, 4096')
                    a(f'buffer_load_dwordx4 v[8:11], v2, {SRD}, s22 offen offset:{(k & 3)*1024} sc1')
            else: a(f'buffer_load_dword v67, v64, {SRD}, s22 offen sc1')
def r_wait(a, P, off):
    poll(a, P, [f'buffer_load_dword v9, off, {DBG}, 0 offset:{off} sc1'], ['v_cmp_ne_u32 vcc, 1, v9'], sleep=8)

def init_score(a, w):
    a(f's_mul_i32 s31, s17, {CUW_B}')
    a(f's_add_u32 s31, s31, {WF_A}')
    units = [((kap * 4 + q) * TILE_B + ks * UNIT, wreg(ti, ks)) for ti, (kap, q) in enumerate(score_tiles(w)) for ks in range(7)]
    m2 = (0x81 << (4 + (w >> 1))) | (0x81 << 6)
    a(f's_and_b32 s28, s84, {m2}')
    a('s_lshl_b32 s22, s85, 16')
    a('s_or_b32 s28, s28, s22')
    a(f's_cmp_eq_u32 s28, {0xffff0000 | m2}')
    a(f's_cbranch_scc1 ch_wx{w}_ok')
    r_wait(a, f'ch_wr{w}', D_R2)
    a_wait(a, f'ch_wb{w}', [4 + (w >> 1), 6])
    a(f's_mov_b32 s29, {PFL + 4096}')
    a('s_mov_b32 s28, 0xffff')
    mask_wait(a, f'ch_wx{w}', 'off', 's29', 's28', sleep=8)
    evlog(a, 9002)
    load_units(a, units[28:40], 's31', fl='sc1')
    a(f's_mov_b32 s24, {XF_OFF + w*2048}')
    a(f's_mov_b32 s26, {XF_OFF + w*2048 + 14336}')
    a('v_and_b32 v64, 7, v117')
    a('v_and_b32 v65, 1, v116')
    a('v_lshlrev_b32 v65, 2, v65')
    a('v_sub_u32 v64, v64, v65')
    a('v_lshrrev_b32 v65, 3, v117')
    a('v_lshl_add_u32 v66, v65, 2, v64')
    a('v_cmp_gt_u32 vcc, 4, v64')
    a('v_mov_b32 v67, 99')
    a('v_cndmask_b32 v66, v67, v66, vcc')
    a('v_mov_b32 v68, 0x3f80')
    a('v_mov_b32 v69, 0x3f800000')
    for d in range(4):
        a(f'v_mov_b32 v{4+d}, 0')
        a(f'v_cmp_eq_u32 vcc, {2*d}, v66')
        a(f'v_cndmask_b32 v{4+d}, v{4+d}, v68, vcc')
        a(f'v_cmp_eq_u32 vcc, {2*d+1}, v66')
        a(f'v_cndmask_b32 v{4+d}, v{4+d}, v69, vcc')
    a('v_lshrrev_b32 v64, 1, v116')
    a('v_lshrrev_b32 v65, 3, v117')
    a('v_and_b32 v66, 1, v116')
    a('v_and_b32 v68, 7, v117')
    a('v_lshlrev_b32 v67, 8, v65')
    a('v_lshl_add_u32 v67, v68, 5, v67')
    a('v_lshl_add_u32 v67, v66, 4, v67')
    a(f'v_add_u32 v69, {MP + (w >> 1) * 1088 + (w & 1) * 512}, v67')
    a(f'v_add_u32 v70, {MJ}, v67')
    a('v_cmp_eq_u32 vcc, v64, v65')
    a('v_cndmask_b32 v113, v70, v69, vcc')
    if w < 2:
        if PPERM:
            a('v_and_b32 v74, 3, v117')
            a('v_lshlrev_b32 v74, 1, v74')
            a('v_bfe_u32 v75, v117, 2, 1')
            a('v_or_b32 v74, v74, v75')
            a('v_and_b32 v75, 8, v117')
            a('v_or_b32 v74, v74, v75')
        else: a('v_mov_b32 v74, v117')
        a('v_lshlrev_b32 v67, 9, v64')
        a('v_lshl_add_u32 v67, v74, 4, v67')
        a('v_lshl_add_u32 v67, v66, 3, v67')
        a(f'v_add_u32 v114, {XP + w*256}, v67')
        a('v_mul_u32_u24 v67, 1088, v65')
        a('v_lshl_add_u32 v67, v116, 5, v67')
        a('v_and_b32 v75, 1, v117')
        a('v_and_b32 v76, 2, v117')
        a('v_lshl_add_u32 v75, v76, 1, v75')
        a('v_bfe_u32 v76, v117, 2, 1')
        a('v_lshl_add_u32 v75, v76, 1, v75')
        a('v_lshl_add_u32 v67, v75, 2, v67')
        a(f'v_add_u32 v115, {MP + w*128}, v67')
        a('v_and_b32 v69, 1, v74')
        a('v_lshlrev_b32 v67, 7, v69')
        a('v_lshl_add_u32 v67, v116, 4, v67')
        a('v_lshl_add_u32 v67, v65, 8, v67')
        a('v_bfe_u32 v69, v74, 1, 2')
        a('v_lshl_add_u32 v67, v69, 2, v67')
        a('s_lshl_b32 s22, s17, 9')
        a(f's_add_u32 s22, s22, {PX + w*64}')
        a('v_add_u32 v72, s22, v67')
        a('v_bfe_u32 v69, v75, 1, 1')
        a('v_lshlrev_b32 v67, 7, v69')
        a('v_lshl_add_u32 v67, v116, 4, v67')
        a('v_and_b32 v69, 4, v75')
        a('v_add_u32 v67, v67, v69')
        a('s_lshr_b32 s22, s17, 1')
        a('s_lshl_b32 s22, s22, 8')
        a('s_and_b32 s27, s17, 1')
        a('s_lshl_b32 s27, s27, 3')
        a('s_add_u32 s22, s22, s27')
        a(f's_add_u32 s22, s22, {PM + w*64}')
        a('v_add_u32 v67, s22, v67')
        a('v_and_b32 v69, 9, v117')
        a('v_mov_b32 v70, 0x40000000')
        a('v_cmp_eq_u32 vcc, 0, v69')
        a('v_cndmask_b32 v118, v70, v67, vcc')
        a('v_mov_b32 v119, -1')
    if w == 2:
        a('s_lshl_b32 s22, s17, 9')
        a(f's_add_u32 s22, s22, {PX}')
        a('v_lshl_add_u32 v114, v1, 3, s22')
        a('s_lshr_b32 s22, s17, 1')
        a('s_lshl_b32 s22, s22, 8')
        a('s_and_b32 s27, s17, 1')
        a('s_lshl_b32 s27, s27, 3')
        a('s_add_u32 s22, s22, s27')
        a(f's_add_u32 s22, s22, {PM}')
        a('v_add_u32 v115, s22, v2')
        a('v_mov_b32 v70, 0x40000000')
        a('v_cmp_gt_u32 vcc, 16, v1')
        a('v_cndmask_b32 v115, v70, v115, vcc')
        a('v_mov_b32 v118, -1')
        a('v_mov_b32 v119, -1')
    if w == F1_W:
        a('s_lshl_b32 s22, s17, 2')
        a(f's_add_u32 s22, s22, {FLG1}')
        a('v_lshl_add_u32 v67, v1, 7, s22')
        a('v_mov_b32 v70, 0x40000000')
        a(f'v_cmp_gt_u32 vcc, {R1}, v1')
        a('v_cndmask_b32 v73, v70, v67, vcc')
        a('v_mov_b32 v112, 1')
    a('v_and_b32 v0, 15, v1')
    a(f's_and_b32 s22, s17, {R2-1}')
    a('s_lshl_b32 s22, s22, 7')
    a(f's_add_u32 s22, s22, {FLG2}')
    a('v_lshl_add_u32 v0, v0, 2, s22')
    kb = 4 + (w >> 1)
    k1, k2 = (kb, 6) if w & 1 else (6, kb)
    a('v_xor_b32 v69, 256, v2')
    a(f'v_mul_i32_i24 v70, {(k2 - k1) * 2048}, v66')
    a('v_add_u32 v69, v69, v70')
    a(f'v_add_u32 v117, {(k1 - w)*2048}, v69')
    a('v_mov_b32 v116, v73')
    if w == 0: a('v_mov_b32 v112, 0')
    a(f's_mul_i32 s35, s17, {VO_SV}')
    a(f's_add_u32 s33, s35, {VO_OFF + VO_SS}')
    a('s_mov_b32 s34, 0')
    a(f's_add_u32 s35, s35, {VO_OFF + 4*VO_SS}')
    if w < 2: a('v_mov_b32 v1, v72')
    for r in range(36, 80): a(f'v_mov_b32 v{r}, 0')
    if NOX:
        for r in range(80, 112): a(f'v_mov_b32 v{r}, 0')
    touch_ring(a, 14, w)
    if CT3:
        a('v_lshlrev_b32 v16, 2, v2')
        a('v_lshlrev_b32 v16, 1, v16') if False else None
        code_touch_at(a, f'cA_sc{w}_loop', 16, 15)
    for k in range(8):
        r = 80 + 4 * k
        if not NOX: a(f'buffer_load_dwordx4 v[{r}:{r+3}], v{117 if k < 4 else 2}, {SRD}, {"s26" if k & 2 else "s24"} offen offset:{(k & 1)*1024} {XFL}')
    load_units(a, units[40:], 's31', fl='sc1')

YL = 0; ML = 8 * KB; WL = 16 * KB
def vlds(w):
    return [[0, 1, None, None], [None, 1, 0, None], [None, None, 0, 1]][REBAL][w]
def vwreg(w, ti, ks):
    u = ti * 7 + ks
    return 256 + 8 * u if u < 32 else (176 if w < 2 else 120) + 8 * (u - 32)

def vo_wait0(a, P):
    a('s_lshl_b32 s27, s17, 7')
    a(f's_add_u32 s27, s27, {CNT_OFF + VOC}')
    a('s_mov_b32 s30, 0')
    a.label(P)
    a(f'buffer_load_dword v9, off, {SRD}, s27 sc1')
    a('s_waitcnt vmcnt(0)')
    a('v_cmp_ne_u32 vcc, 56, v9')
    a(f's_cbranch_vccz {P}_d')
    a('s_sleep 2')
    spin(a, P, 'cA_abort')
    a.label(P + '_d')

def resolve_waits(ins):
    out = []; pos = {}; n = 0
    for x in ins:
        if isinstance(x, tuple) and x[0] == 'tag':
            n += 1; pos[x[1]] = n; out.append(x[2])
        elif isinstance(x, tuple):
            out.append(f's_waitcnt lgkmcnt({min(15, n - pos[x[1]])})')
        else:
            if x.startswith('ds_'): n += 1
            out.append(x)
    return out

def gen_value(a, w, st, tag):
    L = lambda n: f'{tag}_va{w}_{n}'
    ABORT = f'{tag}_abort'
    fin = w < 2
    M = 8; ACC = 36
    YA = 152 if fin else 104
    YT = 64; VOR = 80; LO = 48; PL = 52; HI = 160
    STG = [64, 72, 144] if fin else [68, 76, 84]
    nrt = 6 if fin else 7
    lt = vlds(w) is not None
    nt = nrt + lt
    own = [[4, 5], [5, 6], [0, 1], [2, 3]][w]
    wrt = own if w != 1 else [6]
    late = []
    if V2:
        own = wrt = [[2], [3], [0], [1]][w]
        late = [[], [], [4, 5], [6]][w]
    oth = [k for k in range(7) if k not in own]
    def S(ti, ks):
        b = f'v[{STG[ks % 3]}:{STG[ks % 3]+7}]' if ti == nrt else ureg(vwreg(w, ti, ks), 8)
        return f'v_smfmac_f32_16x16x64_bf16 v[{ACC+4*ti}:{ACC+4*ti+3}], v[{M+4*ks}:{M+4*ks+3}], {b}, v3'
    def fold(t):
        r = ACC + 4 * t
        return [f'v_permlane32_swap_b32 v{r}, v{r+2}', f'v_permlane32_swap_b32 v{r+1}, v{r+3}', f'v_add_f32 v{r}, v{r}, v{r+2}', f'v_add_f32 v{r+1}, v{r+1}, v{r+3}',
                f'v_cvt_pk_bf16_f32 v{r+2}, v{r}, v{r+1}', f'ds_write_b32 v{YA+t}, v{r+2}']
    def wrd(ks):
        b = STG[ks % 3]
        return [f'ds_read_b128 v[{b}:{b+3}], v0 offset:{ks*UNIT}', ('tag', f'w{ks}', f'ds_read_b128 v[{b+4}:{b+7}], v0 offset:{ks*UNIT+1024}')]
    def mld(ks): return f'buffer_load_dwordx4 v[{M+4*ks}:{M+4*ks+3}], v2, {SRD}, {"s20" if ks < 4 else "s23"} offen offset:{(ks & 3) * 1024} sc1'
    def vol(h):
        if PROT: pre = [f's_add_u32 s22, s25, s{80 + h // 4}'] if h % 4 == 0 else ['s_add_u32 s22, s22, 3584'] if h % 2 == 0 else []
        else: pre = [f's_add_u32 s22, s25, {h*1792}'] if h % 2 == 0 else []
        return pre + [f'buffer_load_dwordx4 v[{VOR+4*h}:{VOR+4*h+3}], v6, {SRD}, s22 offen offset:{(h & 1)*1792} sc1']
    isv = lambda o: isinstance(o, str) and o.startswith('v_')
    pois = f'buffer_store_dword v162, v1, {SRD}, s21 offen {st}'
    mg = f'buffer_store_dword v{HI}, v1, {SRD}, s38 offen sc1'
    mgp = f'buffer_store_dword v{HI}, v1, {SRD}, s38 offen {st or ["sc1", "", "nt", "sc0"][MG_MODE]}'
    zr = list(range(ACC, ACC + max(28, 4 * nt)))
    a.raw('.p2align 6')
    a.label(L('loop'))
    a('s_mov_b32 s30, 0')
    if w == 2:
        flagpoll(a, 119, 's19', 96, L('fp'), ABORT)
        if not V2:
            for ks in own: a(mld(ks))
        a('s_barrier')
        if V2:
            for ks in own: a(mld(ks))
    else:
        a('s_barrier')
        for ks in own: a(mld(ks))
    stamp(a, 0)
    a('s_barrier')
    if STEPLOG and w == 1: a('s_memtime s[40:41]')
    ny = 0
    def t2pub():
        for r in range(YT, YT + 16): a(f'v_min_u32 v{r}, -2, v{r}')
        for k in range(4):
            if k == 2: a('s_add_u32 s33, s33, 4096')
            a(f'buffer_store_dwordx4 v[{YT+4*k}:{YT+4*k+3}], v2, {SRD}, s33 offen offset:{(k & 1)*2048} sc1')
        a('s_add_u32 s33, s33, 4096')
    if fin:
        a(f's_cmp_lt_u32 s19, {MG_SW}')
        a(f's_cbranch_scc1 {L("m1")}')
        a(mg)
        a(f's_cmp_lg_u32 s19, {NSTEPS-1}')
        a(f's_cbranch_scc1 {L("m2")}')
        t2pub()
        if V2 and w == 1:
            for r in zr: a(f'v_mov_b32 v{r}, 0')
        if V2 == 2: a('s_barrier')
        a('s_waitcnt vmcnt(5)')
        a(f's_branch {L("m3")}')
        a.label(L('m1'))
        a(mgp)
        a.label(L('m2'))
        ny += 1
        for h in range(VO_PRE):
            for x in vol(h): a(x)
        ny += VO_PRE
        a(f's_mul_i32 s38, s18, {7*KB}')
        a(f's_add_u32 s38, s38, {MEMG_OFF}')
        if V2 and w == 1:
            for r in zr: a(f'v_mov_b32 v{r}, 0')
    if V2 == 2:
        if not fin:
            a(f's_sleep {LATE_SL}')
            for ks in late: a(mld(ks))
            ny += len(late)
        a('s_barrier')
        if fin:
            for h in range(VO_PRE, VO_PRE2):
                for x in vol(h): a(x)
            ny += VO_PRE2 - VO_PRE
    if w == 3:
        a(f'buffer_load_dword v100, v116, {SRD}, {"s39" if not NOXT else "s20"} offen sc1')
        a('s_add_u32 s27, s19, 2')
        a('s_min_u32 s27, s27, 63')
        a('s_lshr_b32 s27, s27, 3')
        a('s_lshl_b32 s27, s27, 11')
        a('s_add_u32 s27, s27, s35')
        a('s_cmp_eq_u32 s27, s28')
        a(f's_cselect_b32 s29, {FLG1}, s27')
        a(f'buffer_load_dword v101, off, {SRD}, s29 sc1')
        a(f's_add_u32 s39, s39, {XSEG_B}')
        ny += 2
    if VPROBE >= 0 and w == 1:
        a(f's_waitcnt vmcnt({VPROBE})')
        a('s_memtime s[42:43]')
    a(f's_waitcnt vmcnt({ny})')
    if fin: a.label(L('m3'))
    stamp(a, 1)
    mw = lambda ks: f'ds_write_b128 v2, v[{M+4*ks}:{M+4*ks+3}] offset:{ML + ks*1024}'
    mr = lambda ks: ('tag', f'm{ks}', f'ds_read_b128 v[{M+4*ks}:{M+4*ks+3}], v2 offset:{ML + ks*1024}')
    if V2:
        for ks in wrt: a(mw(ks))
        e1 = [k for k in range(4) if k not in own]
        seq = [[t, S(t, ks), []] for ks in own + e1 for t in range(nrt)]
        if V2 == 1:
            for k, ks in enumerate(late): seq[LATE_POS + k][2].append(mld(ks))
        seq[B1_POS][2] += ['s_waitcnt lgkmcnt(0)', 's_barrier'] + [mr(ks) for ks in e1]
        for k, ks in enumerate(e1): seq[nrt * (k + 1) - 1][2].append(('wait', f'm{ks}'))
        if fin:
            if V2 == 1:
                for h in range(VO_PRE, 16): seq[B1_POS + 1 + (h - VO_PRE) * VO_EVERY][2] += vol(h)
            else:
                for h in range(VO_PRE2, 16): seq[(h - VO_PRE2) * VO_EVERY][2] += vol(h)
        if lt:
            for j_ in range(4):
                seq.insert(len(seq) - 3 * (3 - j_) - 1, [nrt, S(nrt, j_), []])
            pos = [i_ for i_, x in enumerate(seq) if x[0] == nrt]
            for j_, idx in enumerate(pos):
                seq[idx - 7][2] += wrd(j_)
                seq[idx - 1][2].append(('wait', f'w{j_}'))
            for j_ in (4, 5): seq[pos[j_ - 2]][2] += wrd(j_)
        seq[-1][2] += ([f's_waitcnt vmcnt({2 if V2 == 2 and w == 3 else 0})'] + [mw(ks) for ks in late] if late else []) + ['s_waitcnt lgkmcnt(0)', 's_barrier'] + [mr(ks) for ks in (4, 5, 6) if ks not in late]
        if lt: seq[-1][2] += wrd(6)
        seq[-1][2].append('s_waitcnt lgkmcnt(0)')
        seq += [[t, S(t, ks), []] for t in range(nt) for ks in (4, 5, 6)]
    else:
        for ks in wrt: a(f'ds_write_b128 v2, v[{M+4*ks}:{M+4*ks+3}] offset:{ML + ks*1024}')
        seq = [[t, S(t, ks), []] for ks in own for t in range(nrt)]
        seq[B1_POS][2] += ['s_waitcnt lgkmcnt(0)', 's_barrier'] + [('tag', f'm{ks}', f'ds_read_b128 v[{M+4*ks}:{M+4*ks+3}], v2 offset:{ML + ks*1024}') for ks in oth]
        n0 = len(seq)
        rest = [[t, S(t, ks), []] for t in range(nrt) for ks in oth]
        if lt:
            for j_ in range(7): rest.insert(3 + 4 * j_, [nrt, S(nrt, j_), []])
        seq += rest
        for k, ks in enumerate(oth):
            idx = next(i_ for i_ in range(n0, len(seq)) if seq[i_][1] == S(0, ks))
            seq[idx - 1][2].append(('wait', f'm{ks}'))
        if lt:
            for j_ in range(7):
                idx = n0 + 3 + 4 * j_
                seq[idx - (8 if j_ else 5)][2] += wrd(j_)
                seq[idx - 1][2].append(('wait', f'w{j_}'))
        if fin:
            for h in range(VO_PRE, 16): seq[(h - VO_PRE) * VO_EVERY][2] += vol(h)
            if TLB_WARM and w == 1:
                seq[(16 - VO_PRE) * VO_EVERY][2] += [f's_add_u32 s22, s25, {VO_SS + GSH_B - 128}', f'buffer_load_dword v164, off, {SRD}, s22 sc1']
    prime = [f'buffer_load_dword v{164+(0 if NBPOLL else k)}, v4, {SRD}, 0 offen sc1' for k in range(POLL_DEPTH)] if w == 0 and PRIME else []
    for k, x in enumerate(prime): seq[len(seq) - 1 - PRIME * (POLL_DEPTH - 1 - k)][2].append(x)
    last = {}
    for i_, (t, m, sd) in enumerate(seq): last[t] = i_
    ins = []; pend = []; delay = 0; brk = None
    for i_, (t, m, sd) in enumerate(seq):
        ins.append(m)
        ops = list(sd)
        if pend and pend[0].startswith('ds_'): ops.insert(0, pend.pop(0))
        if brk == i_:
            ops.append(f's_cbranch_vccnz {L("slow")}')
            assert not fin or i_ > (16 - VO_PRE) * VO_EVERY + (B1_POS + 1 if V2 else 0)
        if brk is not None and brk + 2 == i_ and fin: ops.append(pois)
        if delay: delay -= 1
        elif pend:
            for _ in range(2 if V2 and len(pend) > V2_DBL else 1):
                if pend and not pend[0].startswith('ds_'):
                    x = pend.pop(0); ops.append(x)
                    if x.startswith('v_cmp'): brk = i_ + 2
        ins += [o for o in ops if not isv(o)] + [o for o in ops if isv(o)]
        if i_ == last[t]:
            delay = max(delay, 2 - len(pend))
            f_ = fold(t)
            if t == 0: f_.insert(4, f'v_cmp_u_f32 vcc, v{ACC}, v{ACC+1}')
            pend += f_
    ins += pend
    nm = 0
    for x in resolve_waits(ins):
        if 'smfmac' in x:
            nm += 1
            if NOT2 and 24 < nm <= 24 + NOT2: continue
        a(x)
    a.label(L('t2d'))
    stamp(a, 2)
    if fin:
        pr = lambda c: 8 + 4 * c
        def pld(c):
            so = ('s22', 's34', 's36')[c // 4]; o = (c & 3) * 1024
            if PROT and c < 8: so = f's{72 + c // 2}'; o = (c & 1) * 1024
            a(f'buffer_load_dwordx4 v[{pr(c)}:{pr(c)+3}], v2, {SRD}, {so} offen offset:{o} sc1')
        if PROT:
            for j_ in range(4): a(f's_add_u32 s{72+j_}, s20, s{76+j_}')
        a(f's_add_u32 s22, s20, {PX}')
        a(f's_add_u32 s34, s20, {PX + 4096}')
        a(f's_add_u32 s36, s20, {PM}')
        a('s_mov_b32 s37, 0')
        for r in range(LO, LO + 4): a(f'v_mov_b32 v{r}, 0')
        a('v_mov_b32 v163, s18')
        a(f's_cmp_eq_u32 s19, {NSTEPS-1}')
        a('s_waitcnt lgkmcnt(0)')
        a(f's_cbranch_scc1 {L("last")}')
        if STAMPS:
            a('s_waitcnt vmcnt(0)')
            stamp(a, 3)
        if STEPLOG and w == 1 and VPROBE < 0:
            a('s_waitcnt vmcnt(0)')
            a('s_memtime s[42:43]')
        if w == 0:
            a('s_setprio 3')
            if FIN_SLEEP: a(f's_sleep {FIN_SLEEP}')
            flagpoll(a, 4, 's18', 164, L('fw'), ABORT, FP1, primed=PRIME > 0)
            for c in range(B3_AT): pld(c)
            if F2_W0: a(f'buffer_store_dword v163, v7, {SRD}, 0 offen {st}')
        a('s_barrier')
        if w == 0:
            for c in range(B3_AT, 10): pld(c)
        elif B3_AT < 10:
            for k in range(2 * (10 - B3_AT) + 4): a(f'v_mov_b32 v{PL+4+(k & 7)}, 0')
        stamp(a, 4)
        if w == 1:
            if W1_DELAY: a(f's_sleep {W1_DELAY}')
            for c in range(10):
                pld(c)
                if c == F2_W1: a(f'buffer_store_dword v163, v165, {SRD}, 0 offen {st}')
        for k in range(4): a(f'ds_read_b128 v[{YT+4*k}:{YT+4*k+3}], v2 offset:{YL + w*4096 + k*1024}')
        a.label(L('lp'))
        nst = 1 if F2_W0 and w == 0 else 0
        ckc = list(range(min(F3_POS - 1, 8))) if PCHK and w == 1 and not V2 else []
        for c in range(10):
            a(f's_waitcnt vmcnt({9-c+nst+(1 if w == 1 and c <= F2_W1 else 0)})' + (' lgkmcnt(0)' if c == 8 else ''))
            if c == 0: stamp(a, 5)
            B_ = VOR + 8 * c if c < 8 else YT + 8 * (c - 8)
            a(f'v_smfmac_f32_16x16x64_bf16 v[{LO}:{LO+3}], v[{pr(c)}:{pr(c)+3}], v[{B_}:{B_+7}], v3')
            if c == F3_POS and w == 1 and not V2:
                if ckc: a(f's_cbranch_vccnz {L("rv")}')
                a(f'buffer_store_dword v163, v7, {SRD}, 0 offen {st}')
                nst = 1
            if c in ckc:
                if c % 2 == 0 and c > 0: a(f'v_max3_u32 v{PL+3}, v{PL+3 if c > 2 else pr(0)}, v{pr(c-1)}, v{pr(c)}')
                elif c == ckc[-1] and c > 0: a(f'v_max_u32 v{PL+3}, v{PL+3 if c > 2 else pr(0)}, v{pr(c)}')
                if c == ckc[-1]: a(f'v_cmp_eq_u32 vcc, -1, v{PL+3 if c > 0 else pr(0)}')
        stamp(a, 6)
        a(f'v_permlane32_swap_b32 v{LO}, v{LO+2}')
        a(f'v_permlane32_swap_b32 v{LO+1}, v{LO+3}')
        a(f'v_pk_add_f32 v[{LO}:{LO+1}], v[{LO}:{LO+1}], v[{LO+2}:{LO+3}]')
        a(f'v_cvt_pk_bf16_f32 v{HI}, v{LO}, v{LO+1}')
        a(f'v_cmp_u_f32 vcc, v{LO}, v{LO+1}')
        a(f'v_mov_b32_dpp v{HI+1}, v{HI} quad_perm:[1,0,3,2] {D}')
        a(f'v_perm_b32 v{HI}, v{HI+1}, v{HI}, v5')
        a(f'v_cndmask_b32 v{HI+1}, v{HI}, v162, vcc')
        a(f'buffer_store_dword v{HI+1}, v1, {SRD}, s21 offen {st}')
        a(f's_cbranch_vccnz {L("rp")}')
        a.label(L('cont'))
        stamp(a, 7)
        if w == 0: a('s_setprio 0')
        a(f's_cmp_lg_u32 s19, {NSTEPS-2}')
        a(f's_cbranch_scc1 {L("nl")}')
        if LAST_DIRECT:
            if w == 0: a('s_sleep 4')
            a(mg)
        if LAST_DIRECT: a('s_mov_b32 s38, 0x40000000')
        a('s_mov_b32 s25, 0x40000000')
        a.label(L('nl'))
        if not NOVO: a(f's_add_u32 s25, s25, {VO_SS}')
        stamp_flush(a, 4 + w, L('sf'), PL)
        if STEPLOG and w == 1:
            a('s_sub_u32 s40, s42, s40')
            a('s_lshl_b32 s22, s17, 8')
            a('s_lshl_b32 s42, s19, 2')
            a('s_add_u32 s22, s22, s42')
            a(f's_add_u32 s22, s22, {STAMP_OFF + 8192}')
            a(f'v_mov_b32 v{PL+1}, s40')
            a(f'buffer_store_dword v{PL+1}, off, {SRD}, s22')
        if not (V2 and w == 1):
            for r in zr: a(f'v_mov_b32 v{r}, 0')
    else:
        a('v_mov_b32 v117, s18')
        if w == 3:
            a('s_cmp_eq_u32 s27, s28')
            a(f's_cbranch_scc1 {L("vok")}')
            a.label(L('vow'))
            a('s_waitcnt vmcnt(0)')
            a('v_cmp_ne_u32 vcc, 56, v101')
            a(f's_cbranch_vccnz {L("vor")}')
            a('s_mov_b32 s28, s27')
            a.label(L('vok'))
        a('s_waitcnt lgkmcnt(0)')
        stamp(a, 3)
        if w == 3 and F2_PRIO: a('s_setprio 3')
        if w == 3 and FIRST_SL: a('s_cmp_eq_u32 s19, 0')
        a('s_barrier')
        if w == 3 and FIRST_SL:
            a(f's_cbranch_scc1 {L("f0")}')
            a.label(L('f1'))
        nd = F2_DELAY if w == 3 else 0
        for r in zr[:nd]: a(f'v_mov_b32 v{r}, 0')
        if w == 3 and not F2_W0 and F2_W1 < 0: a(f'buffer_store_dword v117, v118, {SRD}, 0 offen {st}')
        if w == 3 and F2_PRIO: a('s_setprio 0')
        a(f's_cmp_eq_u32 s19, {NSTEPS-1}')
        a(f's_cbranch_scc1 {tag}_done')
        if w == 2: a('s_sleep 1')
        if VSPF:
            a(f's_add_u32 s25, s25, {VO_SS}')
            for k in range(VSPF): a(f's_buffer_load_dword s{64 + (k & 3)}, {SRD}, s25 offset:{GSH_B - ((w - 1) * VSPF - k) * 64}')
        for r in zr[nd:]: a(f'v_mov_b32 v{r}, 0')
        if w == 2 and P3_SLEEP: a(f's_sleep {P3_SLEEP}')
        stamp_flush(a, 4 + w, L('sf'), 92)
    next_step(a)
    a.flush()
    a(f's_branch {L("loop")}')
    a.label(L('slow'))
    a('s_waitcnt lgkmcnt(0)')
    a.label(L('sl1'))
    a('s_add_u32 s31, s31, 0x1000000')
    for ks in range(7): a(mld(ks))
    a('s_waitcnt vmcnt(0)')
    poison_max(a, ACC, range(M, M + 28))
    a(f'v_cmp_eq_u32 vcc, -1, v{ACC}')
    a(f's_cbranch_vccz {L("sl2")}')
    spin(a, L('sl1'), ABORT)
    a.label(L('sl2'))
    for r in zr: a(f'v_mov_b32 v{r}, 0')
    if fin: a(pois)
    for ks in range(7):
        if lt:
            for x in resolve_waits(wrd(ks)): a(x)
        for t in range(nt):
            if t == nrt: a('s_waitcnt lgkmcnt(0)')
            a(S(t, ks))
    for t in range(nt):
        for x in fold(t): a(x)
    for x in prime: a(x)
    a(f's_branch {L("t2d")}')
    if fin:
        a.label(L('last'))
        a('s_barrier')
        for k in range(4): a(f'ds_read_b128 v[{YT+4*k}:{YT+4*k+3}], v2 offset:{YL + w*4096 + k*1024}')
        a('s_waitcnt lgkmcnt(0)')
        t2pub()
        if w == 0 or not WB1:
            if WB1:
                a('s_cmp_lg_u32 s17, 0')
                a(f's_cbranch_scc1 {tag}_done')
            a('s_waitcnt vmcnt(0)')
            a('buffer_wbl2 sc1')
        a(f's_branch {tag}_done')
        a.label(L('rp'))
        a('s_cmp_eq_u32 s37, 0')
        a(f's_cbranch_scc1 {L("rv")}')
        a(f'v_min_u32 v{HI}, -2, v{HI}')
        a(f'buffer_store_dword v{HI}, v1, {SRD}, s21 offen {st}')
        a(f's_branch {L("cont")}')
        a.label(L('rv'))
        a('s_add_u32 s31, s31, 0x10000')
        for c in range(10): pld(c)
        a('s_waitcnt vmcnt(0)')
        poison_max(a, PL, [pr(c) + r for c in range(10) for r in range(4)])
        a(f'v_cmp_eq_u32 vcc, -1, v{PL}')
        a('s_mov_b32 s37, 1')
        for r in range(LO, LO + 4): a(f'v_mov_b32 v{r}, 0')
        a.flush()
        a(f's_cbranch_vccz {L("lp")}')
        spin(a, L('rv'), ABORT)
    if w == 3 and FIRST_SL:
        a.label(L('f0'))
        a(f's_sleep {FIRST_SL}')
        a(f's_branch {L("f1")}')
    if w == 3:
        a.label(L('vor'))
        a('s_sleep 2')
        a(f'buffer_load_dword v101, off, {SRD}, s27 sc1')
        spin(a, L('vow'), ABORT)

def init_value(a, w):
    fin = w < 2
    YA = 152 if fin else 104
    a('v_mov_b32 v72, v116')
    a('v_mov_b32 v73, v117')
    a('v_lshrrev_b32 v65, 1, v72')
    a('v_and_b32 v66, 1, v72')
    for r in range(36, 64): a(f'v_mov_b32 v{r}, 0')
    a('v_lshlrev_b32 v75, 2, v65')
    a('v_lshl_add_u32 v75, v66, 3, v75')
    tl = [7 * w + t for t in range(6 if fin else 7)] + ([7 * vlds(w) + 6] if vlds(w) is not None else [])
    for t, gt in enumerate(tl):
        a(f'v_add_u32 v67, {16 * gt}, v73')
        a('v_mul_u32_u24 v68, 2341, v67')
        a('v_lshrrev_b32 v68, 16, v68')
        a('v_mul_u32_u24 v69, 28, v68')
        a('v_sub_u32 v69, v67, v69')
        a('v_lshrrev_b32 v70, 4, v69')
        a('v_and_b32 v69, 15, v69')
        a('v_lshlrev_b32 v71, 12, v70')
        a('v_lshl_add_u32 v71, v68, 8, v71')
        a('v_lshl_add_u32 v71, v69, 4, v71')
        a(f'v_add_u32 v{YA+t}, v71, v75')
    a('v_mov_b32 v74, 0x40000000')
    a(f'v_mov_b32 v{164 if fin else 96}, 0')
    if vlds(w) is not None: a(f'v_add_u32 v0, {WL + vlds(w)*TILE_B}, v2')
    if fin:
        a('v_mov_b32 v76, 0\nv_mov_b32 v77, 0\nv_mov_b32 v78, 0\nv_mov_b32 v79, 0')
        for k in range(4): a(f'ds_write_b128 v2, v[76:79] offset:{YL + w*4096 + k*1024}')
        a(f's_and_b32 s22, s17, {R1-1}')
        a('s_lshl_b32 s22, s22, 7')
        a(f's_add_u32 s22, s22, {FLG1}')
        a('v_lshl_add_u32 v4, v73, 2, s22')
        a('v_and_b32 v64, 1, v73')
        a('v_mov_b32 v5, 0x05040100')
        a('v_mov_b32 v65, 0x03020706')
        a('v_cmp_eq_u32 vcc, 1, v64')
        a('v_cndmask_b32 v5, v5, v65, vcc')
        a('s_lshl_b32 s22, s17, 2')
        a(f's_add_u32 s22, s22, {FLG2 + (16*128 - FOFF)*w}')
        a('v_lshl_add_u32 v7, v1, 7, s22')
        a(f'v_cmp_gt_u32 vcc, {R2}, v1')
        a('v_cndmask_b32 v7, v74, v7, vcc')
        a(f'v_subrev_u32 v165, {2048 - FOFF}, v7')
        if w == 0: a('v_mov_b32 v6, v2')
        else:
            a('v_min_u32 v65, 11, v73')
            a('v_mad_u32_u24 v65, v72, 12, v65')
            a('v_lshlrev_b32 v6, 4, v65')
            a('v_add_u32 v6, 1024, v6')
        a('v_lshl_add_u32 v64, v66, 2, v64')
        a('v_and_b32 v65, 2, v72')
        a('v_add_u32 v64, v64, v65')
        a(f's_mul_i32 s22, s17, {12 if w else 16}')
        if w: a('s_add_u32 s22, s22, 256')
        a('v_add_u32 v75, s22, v73')
        a('v_lshrrev_b32 v68, 4, v75')
        a('v_lshlrev_b32 v68, 8, v68')
        a('v_bfe_u32 v69, v75, 1, 1')
        a('v_lshl_add_u32 v68, v69, 7, v68')
        a('v_lshl_add_u32 v68, v64, 4, v68')
        a('v_and_b32 v69, 12, v75')
        a('v_add_u32 v1, v68, v69')
        if MLIN and w == 0:
            a('s_lshl_b32 s22, s17, 8')
            a('v_lshrrev_b32 v1, 2, v2')
            a('v_add_u32 v1, s22, v1')
        if w == 1:
            a('v_cmp_gt_u32 vcc, 12, v73')
            a('v_cndmask_b32 v1, v74, v1, vcc')
        a(f's_mul_i32 s22, s17, {VO_SV}')
        a(f's_add_u32 s25, s22, {VO_OFF}')
        a(f's_and_b32 s27, s17, {PROT}')
        for j_ in range(4):
            a(f's_xor_b32 s22, s27, {j_}')
            a(f's_mul_i32 s{80+j_}, s22, 7168')
            a('s_lshl_b32 s22, s22, 11')
            a(f's_add_u32 s{76+j_}, s22, {PX}')
        a('v_mov_b32 v162, -1')
        a('s_mov_b32 s38, 0x40000000')
    else:
        a(f's_mul_i32 s22, s17, {VO_SV}')
        a(f's_add_u32 s25, s22, {VO_OFF}')
        a('v_and_b32 v119, 15, v1')
        a(f's_and_b32 s22, s17, {R2-1}')
        a('s_lshl_b32 s22, s22, 7')
        a(f's_add_u32 s22, s22, {FLG2 + (0 if V2 else 16*128 - FOFF)}')
        a('v_lshl_add_u32 v119, v119, 2, s22')
        a('s_lshl_b32 s22, s17, 2')
        a(f's_add_u32 s22, s22, {FLG2}')
        a('v_lshl_add_u32 v118, v1, 7, s22')
        a(f'v_cmp_gt_u32 vcc, {R2}, v1')
        a('v_cndmask_b32 v118, v74, v118, vcc')
        a('s_lshl_b32 s35, s17, 7')
        a(f's_add_u32 s35, s35, {CNT_OFF + VOC}')
        for r in range(64, 68): a(f'v_mov_b32 v{r}, 0')
        a('v_min_u32 v116, 13, v1')
        a('s_mul_i32 s22, s17, 14')
        a('v_add_u32 v116, s22, v116')
        a('v_lshlrev_b32 v116, 7, v116')
    a(f's_mul_i32 s31, s17, {CUW_B}')
    a(f's_add_u32 s31, s31, {WF_B + 7*w*TILE_B}')
    if FUSE:
        r_wait(a, f'ch_wr{4+w}', D_R1)
        b_wait(a, f'ch_ww{4+w}', w)
        evlog(a, 9002)
    units = [(ti * TILE_B + ks * UNIT, vwreg(w, ti, ks)) for ti in range(6 if fin else 7) for ks in range(7)]
    load_units(a, units, 's31', fl=WFL())
    if fin:
        for f in range(14):
            if f % 4 == 0:
                a(f's_mov_b32 m0, {WL + w*TILE_B + f*1024}')
                a(f's_add_u32 s22, s31, {6*TILE_B + f*1024}')
            a(f'buffer_load_dwordx4 v2, {SRD}, s22 offen offset:{(f & 3)*1024} {WFL()} lds')
    if CT3:
        a('v_lshlrev_b32 v16, 2, v2')
        code_touch_at(a, f'cA_va{w}_loop', 16, 15)
    r_wait(a, f'ch_ws{4+w}', D_R2)
    if HELP:
        a_wait(a, f'ch_wh{4+w}', [4 + (w >> 1), 6])
        a(f's_mul_i32 s27, s17, {CUW_B}')
        for kap, q in score_tiles(w)[7 - HELP:]:
            for k in range(14):
                if k % 4 == 0: a(f's_add_u32 s22, s27, {WF_A + (kap*4 + q)*TILE_B + k*1024}')
                a(f'buffer_load_dwordx4 v[20:23], v2, {SRD}, s22 offen offset:{(k & 3)*1024} sc1')
    evlog(a, 9012)
    if fin:
        a(f's_mul_i32 s33, s17, {65*8*KB}')
        a(f's_add_u32 s33, s33, {T2_OFF + 63*8*KB + w*1024}')
        for r in range(12, 16): a(f'v_mov_b32 v{r}, -1')
        for k in range(8):
            a(f's_add_u32 s22, s33, {k*2048}')
            a(f'buffer_store_dwordx4 v[12:15], v2, {SRD}, s22 offen sc1')
        a('v_mov_b32 v16, 1')
        a('v_mov_b32 v17, 1')
        a('s_lshl_b32 s22, s17, 10')
        a(f's_add_u32 s22, s22, {CNT_OFF + T2F + 62*16 + 8*w}')
        a('s_waitcnt vmcnt(0)')
        a('s_mov_b64 exec, 3')
        a(f'buffer_store_dwordx2 v[16:17], v2, {SRD}, s22 offen sc1')
        a('s_mov_b64 exec, -1')
    if w >= 2: vo_wait0(a, f'ch_vw{w}')
    a('s_mov_b32 s28, s35')
    if w == 3:
        a(f's_mov_b32 s39, {XF_OFF + XSEG_B}')
        a(f'buffer_load_dword v100, v116, {SRD}, s39 offen sc1')
        a(f's_mov_b32 s39, {XF_OFF + 2*XSEG_B}')

MERGE = 0
RB1_DELAY = 0
def wg_atomic(a, P, dst, srd=DBG):
    a('v_mov_b32 v6, 160000')
    a('s_barrier')
    a('s_cmp_lg_u32 s16, 0')
    a(f's_cbranch_scc1 {P}1')
    a('s_mov_b64 exec, 1')
    a(f'buffer_atomic_add v4, v5, {srd}, 0 offen sc0')
    a('s_waitcnt vmcnt(0)')
    a('ds_write_b32 v6, v4')
    a('s_waitcnt lgkmcnt(0)')
    a('s_mov_b64 exec, -1')
    a.label(f'{P}1')
    a('s_barrier')
    a('ds_read_b32 v4, v6')
    a('s_waitcnt lgkmcnt(0)')
    a(f'v_readfirstlane_b32 {dst}, v4')

def staff_check(a, okl, mode):
    a('s_mov_b32 s30, 0')
    a('v_mov_b32 v36, 0')
    a.label('ch_chk')
    a(f'buffer_load_dword v37, v36, {DBG}, 0 offen sc1')
    a('s_waitcnt vmcnt(0)')
    a('v_readfirstlane_b32 s22, v37')
    a('s_and_b32 s22, s22, 0xffff')
    a('s_cmp_ge_u32 s22, 32')
    a('s_cbranch_scc1 ch_go_end')
    a('s_sleep 16')
    a('s_add_u32 s30, s30, 1')
    a('s_cmp_lt_u32 s30, 64')
    a('s_cbranch_scc1 ch_chk')
    a.label('ch_go_end')
    a('v_mov_b32 v6, 160016')
    a('v_mov_b32 v4, s22')
    a('s_cmp_lg_u32 s16, 0')
    a('s_cbranch_scc1 ch_dec')
    a('ds_write_b32 v6, v4')
    a('s_waitcnt lgkmcnt(0)')
    a.label('ch_dec')
    a('s_barrier')
    a('ds_read_b32 v4, v6')
    a('s_waitcnt lgkmcnt(0)')
    a('v_readfirstlane_b32 s22, v4')
    a('s_cmp_ge_u32 s22, 32')
    a(f's_cbranch_scc1 {okl}')
    a('v_mov_b32 v4, 0x10001')
    a(f's_mov_b32 s18, {mode}')
    a('s_branch ch_take')

D_CLAIM = 4; D_CNT = 12; D_REP = 20; D_R1 = 128; D_R2 = 132; NINIT = int(os.environ.get('NINIT', '8')); UM = 0x3870
FUSE = 1
REP_WAIT = 60
def wg_signal(a, off, inc=1):
    lb = a.newlabel('sig')
    a('s_barrier')
    a('s_cmp_lg_u32 s16, 0')
    a(f's_cbranch_scc1 {lb}')
    a(f'v_mov_b32 v60, {inc}')
    a(f'v_mov_b32 v61, {off}')
    a('s_mov_b64 exec, 1')
    a(f'buffer_atomic_add v60, v61, {DBG}, 0 offen')
    a('s_mov_b64 exec, -1')
    a.label(lb)

def poll(a, P, loads, cond, sleep=2, lim=SPIN_LIMIT, fail='cA_abort'):
    a('s_mov_b32 s30, 0')
    a.label(P)
    for x in loads: a(x)
    a('s_waitcnt vmcnt(0)')
    for x in cond: a(x)
    a(f's_cbranch_vccz {P}_ok')
    a(f's_sleep {sleep}')
    a('s_add_u32 s30, s30, 1')
    a(f's_cmp_lt_u32 s30, {lim}')
    a(f's_cbranch_scc1 {P}')
    a(f's_branch {fail}')
    a.label(P + '_ok')

def uniform(a, sreg, lds=160032):
    lb = a.newlabel('uni')
    a(f'v_mov_b32 v6, {lds}')
    a(f'v_mov_b32 v7, {sreg}')
    a('s_barrier')
    a('s_cmp_lg_u32 s16, 0')
    a(f's_cbranch_scc1 {lb}')
    a('ds_write_b32 v6, v7')
    a('s_waitcnt lgkmcnt(0)')
    a.label(lb)
    a('s_barrier')
    a('ds_read_b32 v7, v6')
    a('s_waitcnt lgkmcnt(0)')
    a(f'v_readfirstlane_b32 {sreg}, v7')

def lanes(a):
    a('v_and_b32 v1, 63, v0')
    a('v_lshlrev_b32 v2, 4, v1')
    a('v_lshrrev_b32 v3, 4, v1')
    a('v_and_b32 v4, 15, v1')

def mem0_load(a):
    from prep import srd
    srd(a, 68, 50, 51, 8 * 448 * 2)
    a('v_lshrrev_b32 v6, 3, v0')
    a('v_min_u32 v6, 27, v6')
    a('v_and_b32 v7, 7, v0')
    a('v_mul_u32_u24 v9, 896, v7')
    a('v_lshl_add_u32 v9, v6, 5, v9')
    a('buffer_load_dwordx4 v[176:179], v9, s[68:71], 0 offen')
    a('buffer_load_dwordx4 v[180:183], v9, s[68:71], 0 offen offset:16')

def init_job(a, P, k_s, mid=None, nmid=0):
    a('v_mov_b32 v10, 0x40000000')
    a('v_mov_b32 v5, 1')
    for r in range(148, 152): a(f'v_mov_b32 v{r}, 0')
    for r in range(152, 156): a(f'v_mov_b32 v{r}, -1')
    a('v_lshlrev_b32 v8, 4, v0')
    def count(Q, off, inc, roff, doff=None):
        a('s_waitcnt vmcnt(0)')
        a('s_barrier')
        a('s_cmp_lg_u32 s16, 0')
        a(f's_cbranch_scc1 {Q}_e')
        a('v_mov_b32 v6, 1')
        a('s_mov_b64 exec, 1')
        a(f'buffer_atomic_add v6, v252, {DBG}, 0 offen offset:{off} sc0')
        a('s_waitcnt vmcnt(0)')
        a('v_readfirstlane_b32 s20, v6')
        a(f's_cmp_lg_u32 s20, {NINIT-1}')
        a(f's_cbranch_scc1 {Q}_e0')
        if doff: a(f'buffer_store_dword v5, v252, {DBG}, 0 offen offset:{doff} sc1')
        a('s_mov_b64 exec, 0xff')
        a('v_lshlrev_b32 v6, 7, v0')
        a(f's_mov_b32 s20, {PFL + 4096}')
        a(f'buffer_store_dword v5, v6, {SRD}, s20 offen offset:{roff} sc1')
        a.label(f'{Q}_e0')
        a('s_mov_b64 exec, -1')
        a.label(f'{Q}_e')
    from prep import srd
    NK = 56 // NINIT
    srd(a, 64, 48, 49, 2048 * 448 * 2)
    a(f's_lshl_b32 s21, {k_s}, 2')
    a('s_add_u32 s21, s21, s16')
    a(f's_lshr_b32 s22, s21, {(NINIT // 4).bit_length() - 1}')
    a(f's_mul_i32 s22, s22, {14*KB}')
    a(f's_and_b32 s24, s21, {NINIT // 4 - 1}')
    a(f's_mul_i32 s24, s24, {64*NK}')
    a('s_add_u32 s22, s22, s24')
    a(f's_mul_i32 s21, s21, {NK*KB}')
    a('v_mul_u32_u24 v7, 896, v4')
    a('v_lshl_add_u32 v7, v3, 4, v7')
    for kk in range(NK): a(f'buffer_load_dwordx4 v[{64+4*kk}:{67+4*kk}], v7, s[64:67], s22 offen offset:{64*kk}')
    mem0_load(a)
    a(f's_cmp_lg_u32 {k_s}, 0')
    a(f's_cbranch_scc1 {P}_1')
    a(f's_mov_b32 s23, {PFL}')
    a(f'buffer_store_dwordx4 v[148:151], v8, {SRD}, s23 offen sc1')
    a(f's_mov_b32 s23, {PFL + 4096}')
    a(f'buffer_store_dwordx4 v[148:151], v8, {SRD}, s23 offen sc1')
    a('s_waitcnt vmcnt(0)')
    a('s_barrier')
    a(f'buffer_store_dword v5, v252, {DBG}, 0 offen offset:{D_R1} sc1')
    a.label(f'{P}_1')
    a('s_waitcnt vmcnt(1)')
    for kk in range(NK):
        if kk % 4 == 0: a(f's_add_u32 s23, s21, {XF_OFF + kk*1024}')
        a(f'buffer_store_dwordx4 v[{64+4*kk}:{67+4*kk}], v2, {SRD}, s23 offen offset:{(kk & 3)*1024} sc1')
    count(P + '_x', D_CLAIM, 1, 8)
    a(f's_lshl_b32 s20, {k_s}, 12')
    a('v_add_u32 v8, s20, v8')
    for base, n, r in ((CNT_OFF, AC, 148), (EXCH_OFF + 2 * EXCH_B, 48 * 128, 148), (EXCH_OFF + 7 * KB, 2 * EXCH_B - 7 * KB, 152), (MEMG_OFF + 7 * KB, 63 * 7 * KB, 152)):
        RB = 4096 * NINIT
        full, rem = divmod(n, RB)
        a(f's_mov_b32 s23, {base}')
        if full:
            lb = a.newlabel(P + 'lp')
            a.label(lb)
            a(f'buffer_store_dwordx4 v[{r}:{r+3}], v8, {SRD}, s23 offen sc1')
            a(f's_add_u32 s23, s23, {RB}')
            a(f's_cmp_lt_u32 s23, {base + full * RB}')
            a(f's_cbranch_scc1 {lb}')
        if rem:
            a(f'v_cmp_gt_u32 vcc, {rem}, v8')
            a('v_cndmask_b32 v9, v10, v8, vcc')
            a(f'buffer_store_dwordx4 v[{r}:{r+3}], v9, {SRD}, s23 offen sc1')
    a(f's_cmp_lg_u32 {k_s}, 1')
    a(f's_cbranch_scc1 {P}_nm')
    a('v_lshrrev_b32 v6, 3, v0')
    a('v_and_b32 v7, 7, v0')
    a('v_lshlrev_b32 v8, 8, v6')
    a('v_lshl_add_u32 v8, v7, 4, v8')
    a('v_cmp_gt_u32 vcc, 28, v6')
    a('v_cndmask_b32 v8, v10, v8, vcc')
    a('s_waitcnt vmcnt(4)')
    for j in range(4):
        a(f'v_min_u32 v{184+j}, -2, v{176+2*j}')
        a(f'v_min_u32 v{188+j}, -2, v{177+2*j}')
    for base in (EXCH_OFF, MEMG_OFF):
        a(f's_mov_b32 s23, {base}')
        a(f'buffer_store_dwordx4 v[184:187], v8, {SRD}, s23 offen sc1')
        a(f'buffer_store_dwordx4 v[188:191], v8, {SRD}, s23 offen offset:128 sc1')
    a.label(f'{P}_nm')
    count(P, D_CNT, 1, 4, D_R2)

FLAG_AT = 4
FLAG2_AT = 16
WP_SLEEP = 8
CT2 = 1
XPRE = 1
POLL_UNROLL = 3
POLL_EARLY = 1
PPERM = 1
CT3 = 1
FIN_SLEEP = 0
PRIME = 3
LATECHK = 3
NOT2 = 0
NBPOLL = 1
F2_W0 = 0
MLIN = 0
RCLS = 0
REBAL = 1
LAST_DIRECT = 0
V2 = 0
TA_FIRST = 1
WB_EVERY = 0
S4X = 1
UPRE = 1
ADX = 1
SRVX = 15
TLAG = 8
HU_W = -1
IDLEX = 2
NIDLE = 32
IDLEM = 0
FX = 1
S4WB = 0
WB1 = 1
MROT = 1
SPF = 14
SPF3 = 0
SPF0 = 14
SPF1W = 14
SPF_SL = 0
VSPF = 0
SPF1 = 0
TWO = 0
TC = 2
FIRST_SL = 3
F2_W1 = -1
SPF1_POS = 3
LATE_POS = 1
LATE_SL = 2
VO_PRE2 = 6
V2_DBL = 3
W0_LATE = 0
W1_DELAY = 0
NB_UNROLL = 16
GST = 0
TA_LATE = 0
def worker_prep(a):
    import prep2
    ldi = [f'buffer_load_dwordx2 v[254:255], v252, {DBG}, 0 offen offset:{D_R1} sc1']
    def flag(P, mat):
        a('s_barrier')
        a('s_cmp_lg_u32 s16, 0')
        a(f's_cbranch_scc1 {P}_f')
        a('v_readfirstlane_b32 s20, v254')
        a('s_cmp_eq_u32 s20, 1')
        a(f's_cbranch_scc1 {P}_w_ok')
        poll(a, P + '_w', [f'buffer_load_dword v254, off, {DBG}, 0 offset:{D_R1} sc1'], ['v_cmp_ne_u32 vcc, 1, v254'], sleep=8, lim=16, fail=P + '_f')
        a('s_lshl_b32 s20, s17, 7')
        a(f's_add_u32 s20, s20, {PFL + (2048 if mat == "A" else 0)}')
        a('s_lshl_b32 s21, 1, s19')
        a('v_mov_b32 v248, s21')
        a('s_mov_b64 exec, 1')
        a(f'buffer_atomic_or v248, v252, {SRD}, s20 offen sc0')
        a('s_mov_b64 exec, -1')
        a(f's_mov_b32 s{38 if mat == "A" else 37}, s21')
        a.label(P + '_f')
    def flag2(P, mat):
        sr = f's{38 if mat == "A" else 37}'
        full = UM if mat == 'A' else 0x3fff
        a('v_readfirstlane_b32 s20, v248')
        a(f's_and_b32 s20, s20, {full}')
        a(f's_xor_b32 s20, s20, {sr}')
        a(f's_cmp_lg_u32 s20, {full}')
        a(f's_cselect_b32 s20, 0, {sr}')
        a(f's_mov_b32 {sr}, 0')
        a('s_cmp_eq_u32 s20, 0')
        a(f's_cbranch_scc1 {P}')
        a(f's_lshl_b32 s21, {0x10000 if mat == "A" else 1}, s17')
        a('v_mov_b32 v248, s21')
        a(f's_mov_b32 s20, {PFL + 4096}')
        a('v_lshlrev_b32 v247, 7, v0')
        a('s_mov_b64 exec, 0xff')
        a(f'buffer_atomic_or v248, v247, {SRD}, s20 offen')
        a('s_mov_b64 exec, -1')
        a.label(P)
    ldr = ldi + [f'buffer_load_dword v253, v252, {DBG}, 0 offen sc1']
    prep2.pst(a)
    a(f's_sub_u32 s35, s3, {XCD_SEL + 1}')
    a('s_and_b32 s35, s35, 7')
    a('s_lshr_b32 s36, s2, 3')
    a('s_lshl_b32 s33, s35, 5')
    a('s_add_u32 s33, s33, s36')
    a('s_mov_b32 s97, 0')
    a('s_mov_b32 s96, 0')
    a('s_mov_b32 s37, 0')
    a('s_mov_b32 s38, 0')
    a('s_mov_b32 s39, 0xffff0000')
    a('s_mov_b32 s101, -1')
    lanes(a)
    a('s_cmp_ge_u32 s33, 224')
    a('s_cbranch_scc1 wp_all')
    if TWO:
        prep2.decode(a, 's33')
        prep2.touch_wo(a, 253)
    if TA_FIRST == 2: prep2.touch_rows(a, 'A', 's33', 253)
    prep2.touch_rows(a, 'B', 's33', 253)
    if TA_FIRST == 1: prep2.touch_rows(a, 'A', 's33', 253)
    if TC == 1:
        prep2.decode(a, 's33')
        a('s_cmp_lt_u32 s18, 4')
        a('s_cselect_b32 s34, 1, 0')
        prep2.touch_cols(a, 253, 's34')
    prep2.consts(a)
    a.label('wp_B')
    prep2.decode(a, 's33')
    prep2.xunit_load(a, 's33')
    def hk(n):
        a('s_mov_b32 s55, s27')
        if n == 8: prep2.setup(a, 'AB')
        else: prep2.touch_rows(a, 'A', 's33', 253)
        a('s_mov_b32 s27, s55')
    prep2.issue(a, 'B', hk, (0, TA_FIRST) if TA_FIRST > 2 else 0)
    a('s_cmp_lt_u32 s18, 4')
    a('s_cselect_b32 s34, 1, s97')
    if not TA_FIRST: prep2.touch_rows(a, 'A', 's33', 253)
    if TC == 0: prep2.touch_cols(a, 253, 's34')
    prep2.compute(a, 'wpb', 'B', (0 if TA_FIRST else 1) + (1 if TC == 0 else 0), pre_epi=ldr, early=prep2.xunit_store())
    evlog(a, 9010)
    a('s_cmp_lg_u32 s34, 0')
    a('s_cbranch_scc1 wp_B2')
    def hook(n):
        if n == 8 + FLAG_AT:
            a(f's_waitcnt vmcnt({n})')
            flag('wp_f1', 'B')
            prep2.pst(a)
        else:
            a(f's_waitcnt vmcnt({n - 8 - FLAG_AT})')
            flag2('wp_g1', 'B')
    prep2.issue(a, 'A', hook, (FLAG_AT, FLAG2_AT))
    a('s_branch wp_A')
    a.label('wp_B2')
    if CT2:
        a('v_lshlrev_b32 v6, 7, v1')
        code_touch_at(a, 'wp_fin', 6, 7)
        code_touch_at(a, 'wg_vo', 6, 7)
    a(f's_waitcnt vmcnt({2 * CT2})')
    flag('wp_f2', 'B')
    prep2.pst(a, 4)
    prep2.pst_flush(a)
    if XPRE:
        a('s_cmp_eq_u32 s97, 0')
        a('s_cselect_b32 s39, -1, s39')
    a('s_branch wp_fin')
    a.label('wp_A0')
    prep2.issue(a, 'A')
    prep2.setup(a, 'A')
    a.label('wp_A')
    prep2.compute(a, 'wpa', 'A', 0, pre_epi=ldr)
    a('s_waitcnt vmcnt(0)')
    flag('wp_f3', 'A')
    prep2.pst(a)
    prep2.pst_flush(a)
    evlog(a, 9011)
    a('s_cmp_eq_u32 s97, 3')
    a('s_cbranch_scc1 wk_adone')
    a.label('wp_fin')
    a('s_cmp_lg_u32 s97, 0')
    a('s_cbranch_scc1 wp_all')
    a('v_readfirstlane_b32 s20, v254')
    a('v_readfirstlane_b32 s21, v253')
    a('s_and_b32 s21, s21, 0xffe0')
    a('s_cselect_b32 s96, s20, 0')
    a('s_cmp_eq_u32 s96, 0')
    a('s_cbranch_scc1 wp_all')
    a('v_mov_b32 v250, 1')
    a(f's_mov_b32 s20, {CNT_OFF + JOBC}')
    a('s_mov_b64 exec, 1')
    a(f'buffer_atomic_add v250, v252, {SRD}, s20 offen sc0')
    a('s_mov_b64 exec, -1')
    a.label('wp_all')
    a('v_mov_b32 v252, 0x40000000')
    a('v_cmp_eq_u32 vcc, 0, v0')
    a('v_cndmask_b32 v252, v252, v0, vcc')
    a('s_mov_b32 s34, 0')
    a('s_cmp_lg_u32 s16, 0')
    a('s_cbranch_scc1 wp_w2')
    a('s_getreg_b32 s24, hwreg(HW_REG_XCC_ID)')
    a(f's_sub_u32 s24, s24, {XCD_SEL}')
    a('s_and_b32 s24, s24, 7')
    a('s_lshl_b32 s24, s24, 7')
    a(f's_add_u32 s24, s24, {PFL + 4096}')
    a('s_cmp_lg_u32 s96, 0')
    a('s_cbranch_scc1 wp_v0')
    a('s_waitcnt vmcnt(0)')
    a.label('wp_v0')
    a('s_cmp_eq_u32 s97, 0')
    a('s_cbranch_scc1 wp_v1')
    a('s_waitcnt vmcnt(0)')
    a.label('wp_v1')
    a('s_waitcnt vmcnt(1)')
    flag2('wp_g3', 'A')
    flag2('wp_g2', 'B')
    a('s_cmp_lg_u32 s96, 0')
    a('s_cbranch_scc1 wp_v_ok')
    poll(a, 'wp_v', [f'buffer_load_dwordx2 v[64:65], off, {DBG}, 0 sc1', f'buffer_load_dword v66, off, {DBG}, 0 offset:{D_R1} sc1'],
         ['v_and_b32 v68, 0xffe0, v64', 'v_min_u32 v68, v68, v66', 'v_cmp_ne_u32 vcc, 1, v68'], sleep=16, lim=REP_WAIT // 2, fail='wp_w1')
    a('v_mov_b32 v64, 32')
    a('s_cmp_eq_u32 s97, 2')
    a(f's_cselect_b32 s31, 1, {REP_WAIT}')
    a('s_cmp_eq_u32 s39, -1')
    a('s_cselect_b32 s20, 4, 0')
    a('s_add_u32 s24, s24, s20')
    poll(a, 'wp_w', [f'buffer_load_dword v66, off, {SRD}, s24 sc1', f'buffer_load_dword v67, off, {SRD}, s24 offset:4 sc1'], ['v_or_b32 v66, s39, v66', 'v_add_u32 v66, v66, v67', 'v_cmp_ne_u32 vcc, 0, v66'], sleep=WP_SLEEP, lim='s31', fail='wp_w1')
    a('s_branch wp_w2')
    a.label('wp_w1')
    a('v_readfirstlane_b32 s20, v64')
    a('v_readfirstlane_b32 s21, v65')
    a('s_and_b32 s20, s20, 0xffff')
    a('s_cmp_lt_u32 s20, 32')
    a('s_cselect_b32 s34, 2, 1')
    a('s_add_u32 s32, s32, 1')
    a('s_cmp_lt_u32 s32, 4000')
    a('s_cselect_b32 s34, s34, 3')
    a.label('wp_w2')
    uniform(a, 's34')
    a('s_cmp_lg_u32 s34, 0')
    a('s_cbranch_scc1 wp_bad')
    a('s_cmp_lg_u32 s39, -1')
    a('s_cbranch_scc1 wp_done')
    import gemm
    a('s_mov_b32 s101, 0')
    gemm.xbase(a, 's101')
    gemm.xload(a, 'sc1')
    a('s_mov_b32 s39, 0xffff0000')
    a('s_branch wp_all')
    a.label('wp_bad')
    a('s_and_b32 s39, s39, 0xffff0000')
    a('s_mov_b32 s97, 1')
    a('s_cmp_eq_u32 s34, 1')
    a('s_cbranch_scc1 wp_rep')
    a('s_cmp_eq_u32 s34, 3')
    a('s_cbranch_scc1 cA_abort')
    a('s_load_dwordx8 s[40:47], s[0:1], 72')
    a('s_load_dwordx4 s[48:51], s[0:1], 56')
    a('s_waitcnt lgkmcnt(0)')
    a('v_mov_b32 v4, 0x10001')
    a('s_mov_b32 s18, 1')
    a('s_branch ch_take')
    a.label('wp_rep')
    a('s_mov_b32 s101, -1')
    a('s_load_dwordx8 s[40:47], s[0:1], 72')
    a('s_load_dwordx4 s[48:51], s[0:1], 56')
    a('s_waitcnt vmcnt(0) lgkmcnt(0)')
    a('v_mov_b32 v4, 1')
    a(f'v_mov_b32 v5, {D_REP}')
    wg_atomic(a, 'wp_el', 's33')
    lanes(a)
    prep2.consts(a)
    a('s_and_b32 s33, s33, 511')
    a('s_and_b32 s20, s33, 255')
    a('s_cmp_ge_u32 s20, 224')
    a('s_cselect_b32 s97, 1, 2')
    a('s_cbranch_scc1 wp_all')
    prep2.decode(a, 's20')
    a('s_lshl_b32 s20, s17, 7')
    a('s_lshr_b32 s21, s33, 8')
    a('s_lshl_b32 s21, s21, 11')
    a('s_add_u32 s20, s20, s21')
    a(f's_add_u32 s20, s20, {PFL}')
    a(f'buffer_load_dword v5, off, {SRD}, s20 sc1')
    a('s_waitcnt vmcnt(0)')
    a('v_readfirstlane_b32 s34, v5')
    uniform(a, 's34')
    a('s_cmp_lt_u32 s33, 256')
    a(f's_cselect_b32 s20, 0, {0x3fff ^ UM}')
    a('s_or_b32 s34, s34, s20')
    a('s_bitcmp1_b32 s34, s19')
    a('s_cbranch_scc1 wp_rep')
    a('s_barrier')
    a('s_cmp_lt_u32 s33, 256')
    a('s_cbranch_scc1 wp_B')
    a('s_branch wp_A0')
    a.label('wp_done')

JOBS = None
NOS4D = 0
NOXT = 0
VPROBE = -1
MG_MODE = 2
MG_SW = 60
FP1 = 0
FP2 = 0
F2_PRIO = 1
B3_AT = 10
F1_W = 1
ZV = 3
ZX = 8
F1_POS = 3
STLB = 1
ENC = 0
EXIT_WB = 0
EARLY_A = 0
TA_AT = 32
X_W2 = 0
X_SLEEP = 0
NOVO = 0
PROT = 3
SELF_TOUCH = 256
def local_pick(a, P, dst, ng, base):
    a('s_getreg_b32 s33, hwreg(HW_REG_XCC_ID)')
    a(f's_sub_u32 s33, s33, {XCD_SEL + 1}')
    a('s_and_b32 s33, s33, 7')
    a(f's_min_u32 s33, s33, {ng-1}')
    a(f's_mov_b32 s35, {ng-1}')
    a.label(P + 'c')
    a('s_lshl_b32 s34, s33, 7')
    a(f's_add_u32 s34, s34, {base}')
    a('v_mov_b32 v4, 1')
    a('v_mov_b32 v5, s34')
    wg_atomic(a, P + 'e', dst, SRD)
    a(f's_cmp_lt_u32 {dst}, 16')
    a(f's_cbranch_scc1 {P}g')
    a('s_mov_b32 s33, s35')
    a('s_sub_u32 s35, s35, 1')
    a('s_max_i32 s35, s35, 0')
    a(f's_branch {P}c')
    a.label(P + 'g')
    a('s_lshl_b32 s33, s33, 4')
    a(f's_add_u32 {dst}, {dst}, s33')

def worker_all(a):
    import s4d, gemm, tok, t2srv, prep2
    JS = SRD
    JO = CNT_OFF + JOBC
    LD = 'sc1' if FUSE else ''
    N0 = 224 if FUSE else 0
    NJ = 1264
    tok.PEEK = JS
    tok.EV = EVLOG == 2
    if FUSE: worker_prep(a)
    def ask():
        lb = a.newlabel('ask')
        a('s_cmp_lg_u32 s16, 0')
        a(f's_cbranch_scc1 {lb}')
        a('v_mov_b32 v250, 1')
        a(f'v_mov_b32 v251, {JO}')
        a('s_mov_b64 exec, 1')
        a(f'buffer_atomic_add v250, v251, {JS}, 0 offen sc0')
        a('s_mov_b64 exec, -1')
        a.label(lb)
    if FUSE:
        a('s_mov_b32 s97, s39')
        a('s_cmp_lg_u32 s96, 0')
        a('s_cbranch_scc1 wk_next')
    else: a('s_mov_b32 s96, 0')
    ask()
    a('s_branch wk_next')
    a.label('wk_loop')
    a('s_waitcnt vmcnt(0) lgkmcnt(0)')
    if not FUSE:
        a('s_cmp_eq_u32 s96, 1')
        a('s_cbranch_scc1 wk_ask')
        a('s_mov_b32 s96, 1')
        staff_check(a, 'wk_ask', 0)
    if IDLEX >= 0:
        a('s_getreg_b32 s22, hwreg(HW_REG_XCC_ID)')
        a('s_and_b32 s22, s22, 15')
        a(f's_bitcmp0_b32 {(1 << IDLEX) | IDLEM}, s22')
        a('s_cbranch_scc1 wk_ni')
        a('s_cmp_ge_u32 s96, 6')
        a('s_cbranch_scc1 wk_ni')
        a('s_mov_b32 s96, 6')
        a('v_mov_b32 v4, 1')
        a(f'v_mov_b32 v5, {PFL + 4096 + 1280}')
        wg_atomic(a, 'wk_ide', 's3', SRD)
        a(f's_cmp_lt_u32 s3, {NIDLE}')
        a('s_cbranch_scc1 wk_done')
        a.label('wk_ni')
    if SRVX >= 0:
        a('s_getreg_b32 s22, hwreg(HW_REG_XCC_ID)')
        a('s_and_b32 s22, s22, 15')
        a(f's_cmp_lg_u32 s22, {SRVX}')
        a('s_cbranch_scc1 wk_ask')
        a('s_cmp_eq_u32 s96, 7')
        a('s_cbranch_scc0 wk_srv')
    a.label('wk_ask')
    a('v_readfirstlane_b32 s22, v250')
    a(f's_cmp_ge_u32 s22, {NJ}')
    a('s_cbranch_scc1 wk_next')
    ask()
    a.label('wk_next')
    evlog(a, 9005)
    a('v_mov_b32 v6, 160000')
    a('s_waitcnt vmcnt(0)')
    a('s_barrier')
    a('s_cmp_lg_u32 s16, 0')
    a('s_cbranch_scc1 wk_n1')
    a('s_mov_b64 exec, 1')
    a('ds_write_b32 v6, v250')
    a('s_mov_b64 exec, -1')
    a('s_waitcnt lgkmcnt(0)')
    a.label('wk_n1')
    a('s_barrier')
    a('ds_read_b32 v4, v6')
    a('s_waitcnt lgkmcnt(0)')
    a('v_readfirstlane_b32 s3, v4')
    evlog(a, 's3')
    a(f's_cmp_ge_u32 s3, {NJ}')
    a('s_cbranch_scc1 wk_done')
    a('v_mov_b32 v250, 0')
    a(f'v_mov_b32 v251, {PFL + 4096 + 1024}')
    a(f's_cmp_lg_u32 s3, {NJ-1}')
    a('s_cbranch_scc1 wk_nl')
    a(f'v_mov_b32 v5, {NJ}')
    a('s_mov_b64 exec, 1')
    a(f'buffer_store_dword v5, v251, {SRD}, 0 offen sc1')
    a('s_mov_b64 exec, -1')
    a.label('wk_nl')
    lanes(a)
    if FUSE:
        a('s_cmp_lt_u32 s3, 112')
        a('s_cbranch_scc1 wk_n2')
        a('s_cmp_eq_u32 s97, 0')
        a('s_cbranch_scc1 wk_n2')
        evlog(a, 9021)
        a('v_mov_b32 v250, s3')
        for x in ('s96, 1', 's97, 1', 's39, 0', 's37, 0', 's38, 0', 's32, 0'): a('s_mov_b32 ' + x)
        a('s_branch wp_all')
        a.label('wk_n2')
    if SRVX >= 0:
        a('s_sub_u32 s20, s3, 288')
        a('s_cmp_ge_u32 s20, 352')
        a('s_cbranch_scc1 wk_nr')
        a('s_cmp_ge_u32 s20, 320')
        a('s_cbranch_scc1 wk_srv')
        a('s_add_u32 s3, s3, 32')
        a.label('wk_nr')
    a('s_cmp_ge_u32 s3, 752')
    a('s_cbranch_scc1 wk_tok')
    a('s_cmp_ge_u32 s3, 640')
    a('s_cbranch_scc1 wk_s4d')
    a('s_cmp_ge_u32 s3, 448')
    a('s_cbranch_scc1 wk_full')
    a('s_cmp_ge_u32 s3, 320')
    a('s_cbranch_scc1 wk_adef')
    a('s_cmp_ge_u32 s3, 288')
    a('s_cbranch_scc1 wk_srv')
    a('s_and_b32 s17, s3, 15')
    a('s_add_u32 s17, s17, 16')
    a('s_cmp_ge_u32 s3, 224')
    a('s_cbranch_scc1 wk_half')
    a('s_cmp_ge_u32 s3, 112')
    a('s_cselect_b32 s18, 1, 0')
    a('s_cselect_b32 s20, 112, 0')
    a('s_sub_u32 s34, s3, s20')
    a('s_lshr_b32 s34, s34, 4')
    a('s_lshl_b32 s34, s34, 1')
    a('s_add_u32 s35, s34, 2')
    a('s_branch wk_gemm')
    a.label('wk_adef')
    a('s_mov_b32 s101, -1')
    a('s_load_dwordx8 s[40:47], s[0:1], 72')
    a('s_sub_u32 s20, s3, 320')
    if ADX:
        local_pick(a, 'wk_ad', 's20', 8, CNT_OFF + JOBC + 1024)
        lanes(a)
    a('s_lshr_b32 s33, s20, 2')
    a('s_mul_i32 s33, s33, 7')
    a('s_and_b32 s20, s20, 3')
    a('s_add_u32 s33, s33, s20')
    a('s_mov_b32 s97, 3')
    a('v_mov_b32 v252, 0x40000000')
    a('v_cmp_eq_u32 vcc, 0, v0')
    a('v_cndmask_b32 v252, v252, v0, vcc')
    prep2.consts(a)
    prep2.decode(a, 's33')
    a('s_waitcnt lgkmcnt(0)')
    a('s_barrier')
    a('s_branch wp_A0')
    a.label('wk_adone')
    a('s_mov_b32 s97, 0')
    a('s_branch wk_loop')
    a.label('wk_half')
    a('s_sub_u32 s20, s3, 224')
    a('s_lshr_b32 s18, s20, 5')
    a('s_add_u32 s18, s18, 2')
    a('s_bitcmp1_b32 s20, 4')
    a('s_cselect_b32 s34, 7, 0')
    a('s_add_u32 s35, s34, 7')
    a('s_branch wk_gemm')
    a.label('wk_full')
    a('s_sub_u32 s20, s3, 384')
    a('s_and_b32 s17, s20, 15')
    a('s_lshr_b32 s18, s20, 4')
    a('s_mov_b32 s34, 0')
    a('s_mov_b32 s35, 14')
    a('s_cmp_lt_u32 s18, 8')
    a('s_cselect_b32 s21, 16, 0')
    a('s_add_u32 s17, s17, s21')
    a('s_and_b32 s18, s18, 7')
    a('s_cmp_ge_u32 s17, 16')
    a('s_cbranch_scc1 wk_gemm')
    if FX:
        local_pick(a, 'wk_fx', 's20', 8, CNT_OFF + T2F + 64)
        lanes(a)
        a('s_lshr_b32 s17, s20, 4')
        a('s_lshl_b32 s17, s17, 1')
        a('s_and_b32 s21, s20, 1')
        a('s_add_u32 s17, s17, s21')
        a('s_bfe_u32 s18, s20, 0x30001')
        a('s_mov_b32 s34, 0')
        a('s_mov_b32 s35, 14')
    if UPRE:
        from prep import srd
        a('s_load_dwordx8 s[40:47], s[0:1], 0')
        a('s_load_dwordx2 s[48:49], s[0:1], 32')
        a('s_sub_u32 s21, s3, 512')
        a('v_min_u32 v12, 111, v0')
        a('v_lshlrev_b32 v12, 7, v12')
        a('v_min_u32 v13, 13, v0')
        a('v_lshlrev_b32 v13, 7, v13')
        a('s_mul_i32 s22, s21, 14336')
        a('s_mul_i32 s21, s21, 1792')
        a('s_waitcnt lgkmcnt(0)')
        a('s_cmp_ge_u32 s16, 2')
        a('s_cbranch_scc1 wk_up')
        srd(a, 60, 40, 41, 2048 * 448 * 2)
        a('buffer_load_dword v14, v12, s[60:63], s22 offen')
        for k in range(4):
            srd(a, 60, 42 + 2 * k, 43 + 2 * k, 448 * 256 * 2)
            a('buffer_load_dword v14, v13, s[60:63], s21 offen')
        a.label('wk_up')
    a_wait(a, 'wk_aw', range(7))
    a.label('wk_gemm')
    gemm.gemm_body(a, 'wg', 's18', 's17', st='sc1', signal=True, ld=LD, ev=(lambda t: evlog(a, t)) if GST else None)
    a('s_branch wk_loop')
    a.label('wk_srv')
    if SRVX >= 0:
        a('s_mov_b32 s96, 7')
        a('v_mov_b32 v4, 1')
        a(f'v_mov_b32 v5, {PFL + 4096 + 1152}')
        wg_atomic(a, 'wk_sve', 's3', SRD)
        lanes(a)
        a('v_mov_b32 v250, 0')
        a('s_cmp_ge_u32 s3, 32')
        a('s_cbranch_scc1 wk_ask')
    a('s_and_b32 s18, s3, 15')
    a('s_lshr_b32 s19, s3, 4')
    a('s_and_b32 s19, s19, 1')
    t2srv.t2srv_body(a, 'ws', 's18', 's19', 'cA_abort', ld=LD)
    a('v_mov_b32 v250, 0')
    a('s_branch wk_loop')
    a.label('wk_s4d')
    a('s_sub_u32 s3, s3, 640')
    if S4X:
        local_pick(a, 'wk_s4', 's3', 7, CNT_OFF + JOBC + 128)
    if not NOS4D:
        s4d.s4d_setup(a)
        s4d.s4d_item(a, 'wk', 's3')
        if S4WB:
            a('s_waitcnt vmcnt(0)')
            a('s_barrier')
            a('s_and_b32 s20, s3, 15')
            a('s_lshl_b32 s20, s20, 2')
            a('s_add_u32 s20, s20, s16')
            a('s_cmp_lg_u32 s20, 60')
            a('s_cbranch_scc1 wk_loop')
            a('s_sleep 127')
            a('buffer_wbl2 sc1')
    a('s_branch wk_loop')
    a.label('wk_tok')
    a('s_sub_u32 s3, s3, 752')
    a('s_cmp_ge_u32 s3, 512')
    a('s_cbranch_scc1 wk_done')
    a('s_and_b32 s18, s3, 3')
    if TLAG:
        a('s_lshr_b32 s17, s3, 2')
        a(f's_cmp_lt_u32 s17, {TLAG}')
        a('s_cbranch_scc1 wk_tokp')
        a(f's_sub_u32 s20, s17, {TLAG}')
        a('s_sub_u32 s17, s17, 64')
        a(f's_cmp_ge_u32 s20, {2 * (64 - TLAG)}')
        a('s_cbranch_scc1 wk_toko')
        a('s_lshr_b32 s17, s20, 1')
        a('s_bitcmp0_b32 s20, 0')
        a('s_cbranch_scc1 wk_toko')
        a(f's_add_u32 s17, s17, {TLAG}')
        a.label('wk_tokp')
    else:
        a('s_lshr_b32 s17, s3, 3')
        a('s_bitcmp1_b32 s3, 2')
        a('s_cbranch_scc1 wk_toko')
    tok.tokp_body(a, 's17', 's18', ld='sc1', st='sc1', sync='wp', ldx=LD)
    a('s_branch wk_loop')
    a.label('wk_toko')
    a('s_load_dwordx2 s[36:37], s[0:1], 112')
    a('s_waitcnt lgkmcnt(0)')
    a(f's_mov_b32 s92, s36\ns_and_b32 s93, s37, 0xffff\ns_mov_b32 s94, {2048*896*2}\ns_mov_b32 s95, 0x20000')
    tok.toko_body(a, 's17', 's18', ld='sc1', sync='wo', OUT='s[92:95]')
    a('v_readfirstlane_b32 s22, v250')
    a(f's_cmp_ge_u32 s22, {NJ}')
    a('s_cbranch_scc1 wk_done')
    a('s_branch wk_loop')
    a.label('wp_abort')
    a.label('wo_abort')
    a('s_branch cA_abort')
    a.label('wk_done')
    if DIAG:
        a('s_cmp_lg_u32 s16, 0')
        a('s_cbranch_scc1 ch_end')
        a('s_waitcnt vmcnt(0)')
        a('s_memrealtime s[98:99]')
        a('s_waitcnt lgkmcnt(0)')
        a('v_mov_b32 v37, s98')
        a('s_mov_b64 exec, 1')
        a(f'buffer_atomic_umax v37, off, {DBG}, 0 offset:192')
        a('s_mov_b64 exec, -1')
    if EXIT_WB:
        a('s_cmp_lg_u32 s16, 0')
        a('s_cbranch_scc1 ch_end')
        a('buffer_wbl2 sc1')
    evlog(a, 9020)

def gen_chain_kernel(name='main_kernel', worker=None):
    a = Asm()
    a.raw(kernel_header(name))
    a('s_cmp_ge_u32 s2, 256')
    a('s_cbranch_scc1 ch_end')
    if DIAG: a('s_memrealtime s[94:95]')
    a('s_load_dwordx2 s[4:5], s[0:1], 120')
    a('s_load_dwordx2 s[6:7], s[0:1], 128')
    a('s_load_dwordx8 s[40:47], s[0:1], 72')
    a('s_load_dwordx4 s[48:51], s[0:1], 56')
    a('s_mov_b32 s32, 0')
    a('s_getreg_b32 s3, hwreg(HW_REG_XCC_ID)')
    a('s_and_b32 s3, s3, 15')
    a(f's_cmp_lg_u32 s3, {XCD_SEL}')
    a('s_cbranch_scc1 ch_pf')
    a('s_cmp_lt_u32 s2, 224')
    a('s_cbranch_scc1 ch_npf')
    a.label('ch_pf')
    code_prefetch(a, name, 'ch_end', 150000, 60)
    a.label('ch_npf')
    a('v_lshrrev_b32 v1, 6, v0')
    a('v_readfirstlane_b32 s16, v1')
    a('s_waitcnt lgkmcnt(0)')
    a('s_mov_b32 s8, s6\ns_and_b32 s9, s7, 0xffff\ns_mov_b32 s10, 0x10000000\ns_mov_b32 s11, 0x20000')
    a('s_mov_b32 s12, s4\ns_and_b32 s13, s5, 0xffff\ns_mov_b32 s14, 256\ns_mov_b32 s15, 0x20000')
    if EVLOG:
        a('s_lshl_b32 s100, s2, 2')
        a('s_add_u32 s100, s100, s16')
        a(f's_lshl_b32 s100, s100, {8 if EVLOG == 1 else 9}')
        a(f's_add_u32 s100, s100, {EV_OFF}')
    evlog(a, 9000)
    if FUSE:
        a('v_mov_b32 v252, 0x40000000')
        a('v_cmp_eq_u32 vcc, 0, v0')
        a('v_cndmask_b32 v252, v252, v0, vcc')
    a(f's_cmp_lg_u32 s3, {XCD_SEL}')
    a('s_cbranch_scc1 ch_worker')
    import prep2
    a('s_mov_b32 s18, 0')
    a('v_mov_b32 v249, 1')
    a('s_mov_b64 exec, 1')
    a(f'buffer_atomic_add v249, v252, {DBG}, 0 offen sc0')
    a('s_mov_b64 exec, -1')
    lanes(a)
    a('s_lshr_b32 s33, s2, 3')
    prep2.touch_w(a, 's33', 32, ((42, 256),))
    a('s_waitcnt vmcnt(2)')
    a('v_readfirstlane_b32 s17, v249')
    uniform(a, 's17')
    a('s_branch ch_got')
    a.label('ch_take')
    a('v_mov_b32 v5, 0')
    wg_atomic(a, 'ch_el', 's17')
    a.label('ch_got')
    a('s_and_b32 s17, s17, 0xffff')
    a('s_cmp_lt_u32 s17, 32')
    a('s_cbranch_scc1 ch_role')
    a('s_cmp_eq_u32 s18, 0')
    a('s_cbranch_scc1 ch_worker')
    lanes(a)
    a('s_branch wp_all')
    a.label('ch_role')
    if FUSE:
        import prep2
        lanes(a)
        a('s_cmp_lt_u32 s17, 16')
        a('s_cbranch_scc1 ch_self')
        a(f's_cmp_lt_u32 s17, {32 - NINIT}')
        a('s_cbranch_scc1 ch_tch')
        a(f's_sub_u32 s33, s17, {32 - NINIT}')
        init_job(a, 'ch_ij', 's33')
        a('s_branch ch_role2')
        a.label('ch_tch')
        a('s_sub_u32 s33, s17, 16')
        if SELF_TOUCH: prep2.touch_w(a, 's33', 16 - NINIT, ((40, SELF_TOUCH),))
        a('s_branch ch_role2')
        a.label('ch_self')
        st1 = [f'buffer_load_dword v13, off, {DBG}, 0 offset:{D_R1} sc1', f'buffer_load_dword v9, off, {DBG}, 0 sc1']
        st2 = ['v_readfirstlane_b32 s86, v13', 's_lshl_b32 s22, s17, 7', f's_add_u32 s22, s22, {PFL + 2048}', f's_mov_b32 s23, {PFL + 4096}',
               f'buffer_load_dword v13, off, {SRD}, s22 sc1', f'buffer_load_dwordx2 v[10:11], off, {SRD}, s23 sc1']
        pf1 = st2[:3] + [f'buffer_load_dword v5, off, {SRD}, s22 sc1']
        pf2 = [['s_waitcnt vmcnt(0)', 'v_readfirstlane_b32 s22, v5', 'v_min_u32 v8, 7040, v6', f's_mul_i32 s24, s17, {CUW_B}', f's_mul_i32 s23, s16, {3*TILE_B}', 's_add_u32 s24, s24, s23',
                f's_add_u32 s24, s24, {WF_A + 16*TILE_B}', f's_and_b32 s22, s22, {UM}', 's_mul_i32 s22, s22, s86', f's_cmp_eq_u32 s22, {UM}', 's_cselect_b32 s24, s24, 0x40000000']]
        pf2 += [[f'buffer_load_dword v5, v8, {SRD}, s24 offen sc1', 's_add_u32 s24, s24, 7168'] for k in range(6)]
        prep2.selfprep(a, (lambda t: evlog(a, t)) if EVLOG else None, st1, st2, pf1, pf2)
        a('v_readfirstlane_b32 s84, v13')
        a('v_readfirstlane_b32 s85, v10')
        a('v_readfirstlane_b32 s22, v11')
        a('s_and_b32 s86, s86, s22')
        a('s_cmp_eq_u32 s86, 1')
        a('s_cselect_b32 s84, s84, 0')
        evlog(a, 9001)
        a('v_and_b32 v10, 0xffe0, v9')
        a('v_cmp_eq_u32 vcc, 0, v10')
        a('s_cbranch_vccz ch_md_ok')
        a.label('ch_role2')
    poll(a, 'ch_md', [f'buffer_load_dword v9, off, {DBG}, 0 sc1'], ['v_and_b32 v10, 0xffe0, v9', 'v_cmp_eq_u32 vcc, 0, v10'], sleep=4, lim=SPIN_LIMIT * 4, fail='ch_end')
    a('v_readfirstlane_b32 s88, v9')
    a('s_lshr_b32 s88, s88, 16')
    lane_consts(a)
    a('s_mov_b32 s19, 0')
    a('s_mov_b32 s18, 1')
    a(f's_mov_b32 s20, {EXCH_OFF}')
    a(f's_mov_b32 s21, {EXCH_OFF + EXCH_B}')
    a(f's_mov_b32 s23, {EXCH_OFF + 4096}')
    a('s_lshr_b32 s89, s17, 4')
    a('s_lshl_b32 s89, s89, 2')
    a('s_add_u32 s89, s89, s16')
    a('s_and_b32 s17, s17, 15')
    for p in range(8):
        a(f's_cmp_eq_u32 s89, {p}')
        a(f's_cbranch_scc1 ch_init{p}')
    a('s_branch ch_end')
    for p in range(8):
        a.label(f'ch_init{p}')
        if p < 4: init_score(a, p)
        else: init_value(a, p - 4)
        a('s_waitcnt vmcnt(1) lgkmcnt(0)' if p == 7 else 's_waitcnt vmcnt(0) lgkmcnt(0)')
        evlog(a, 9003)
        if EVLOG or HDBG: a('v_mov_b32 v36, 0\nv_mov_b32 v37, 0')
        if DIAG: a('s_memtime s[90:91]')
        a('s_mov_b32 s31, 0')
        a('s_cmp_lg_u32 s88, 0')
        role = 'sc' if p < 4 else 'va'
        a(f's_cbranch_scc1 cB_{role}{p & 3}_loop')
        a(f's_branch cA_{role}{p & 3}_loop')
    for tag, st in (('cA', ''), ('cB', 'sc1')):
        for w in range(4): gen_score(a, w, st, tag)
        for w in range(4): gen_value(a, w, st, tag)
        a.label(f'{tag}_abort')
        a('v_mov_b32 v4, 0xdead')
        a('v_mov_b32 v5, 16')
        a(f'buffer_store_dword v4, v5, {DBG}, 0 offen')
        a('s_branch ch_end')
        a.label(f'{tag}_done')
        evlog(a, 9004)
        if DIAG:
            a('s_memtime s[60:61]')
            a('s_waitcnt lgkmcnt(0)')
            a('s_sub_u32 s60, s60, s90')
            a('v_mov_b32 v4, s60')
            a('s_cmp_eq_u32 s89, 3')
            a('s_cselect_b32 s22, 8, 0x1000')
            a('v_mov_b32 v5, s22')
            a(f'buffer_store_dword v4, v5, {DBG}, 0 offen')
            a('s_memrealtime s[60:61]')
            a('s_sub_u32 s86, s86, s94')
            a('s_waitcnt lgkmcnt(0)')
            a('s_sub_u32 s60, s60, s94')
            a('v_mov_b32 v6, s86')
            a('v_mov_b32 v7, s60')
            a(f'buffer_store_dwordx2 v[6:7], v5, {DBG}, 0 offen offset:16')
            a('v_mov_b32 v8, s94')
            a(f'buffer_store_dword v8, v5, {DBG}, 0 offen offset:44')
            a('s_cmp_eq_u32 s31, 0')
            a(f's_cbranch_scc1 {tag}_dz')
            a('s_mov_b64 exec, 1')
            for k in range(4):
                a(f's_bfe_u32 s22, s31, {(8 << 16) | (8 * k)}')
                a(f'v_mov_b32 v{4+k}, s22')
                a(f'v_mov_b32 v10, {32 + 4*k}')
                a(f'buffer_atomic_add v{4+k}, v10, {DBG}, 0 offen')
                a.nop(2)
            a('s_mov_b64 exec, -1')
            a.label(f'{tag}_dz')
        if ENC:
            a(f's_cmp_lg_u32 s89, {ENCP}')
            a('s_cbranch_scc1 ch_end')
            a('s_cmp_lg_u32 s17, 5')
            a('s_cbranch_scc1 ch_end')
            a('s_add_u32 s62, s94, 20000')
            if ENC == 6:
                if ENCT: a('s_sub_u32 s86, s92, s94')
                a('s_mul_i32 s86, s86, 10')
                a('s_add_u32 s62, s62, s86')
            if ENC == 4:
                a('s_mov_b32 s22, 0x7000000')
                a(f'buffer_load_dword v8, off, {SRD}, s22 sc1')
                a('s_waitcnt vmcnt(0)')
                a('v_readfirstlane_b32 s62, v8')
                a('s_sub_u32 s63, s94, s62')
                a('s_min_u32 s63, s63, 5000')
                a('s_sub_u32 s62, s94, s63')
                a('s_add_u32 s62, s62, 20000')
            if ENC in (5, 7):
                for _ in range(14): a('s_sleep 127')
                a(f'buffer_load_dword v8, off, {DBG}, 0 offset:192 sc1')
                a('s_waitcnt vmcnt(0)')
                a('v_readfirstlane_b32 s62, v8')
                if ENC == 7:
                    a('s_sub_u32 s62, s62, s94')
                    a('s_sub_u32 s62, s62, s60')
                    a('s_mul_i32 s62, s62, 10')
                    a('s_add_u32 s62, s62, s94')
                a('s_add_u32 s62, s62, 20000')
            if ENC == 2: a('s_add_u32 s62, s62, s86')
            if ENC == 3: a('s_add_u32 s62, s62, s60')
            a.label(f'{tag}_enc')
            a('s_memrealtime s[64:65]')
            a('s_waitcnt lgkmcnt(0)')
            a('s_sub_u32 s64, s64, s62')
            a('s_cmp_lt_i32 s64, 0')
            a(f's_cbranch_scc1 {tag}_enc')
        stamp_calib(a, f'{tag}_cal')
        a('s_branch ch_end')
    a.label('ch_worker')
    worker_all(a)
    a.label('ch_end')
    a('s_endpgm')
    return a
```
